```python
import torch

def _softmax(x, axis=-1):
    return torch.softmax(x, dim=axis)
def _gelu(x):
    return torch.nn.functional.gelu(x, approximate="tanh")
def _silu(x):
    return torch.nn.functional.silu(x)
def _sigmoid(x):
    return torch.sigmoid(x)
def _layernorm(x, axis=-1, eps=1e-5):
    m = x.mean(dim=axis, keepdim=True)
    v = x.var(dim=axis, keepdim=True, unbiased=False)
    return (x - m) / torch.sqrt(v + eps)
def _scatter_add(tgt, idx, src, axis=0):
    return tgt.clone().index_add_(axis, idx, src)
def _segment_sum(src, seg, n):
    out = torch.zeros((n,) + src.shape[1:], dtype=src.dtype)
    return out.index_add_(0, seg, src)
def _pad(x, pw):
    flat = tuple(v for pair in reversed(pw) for v in pair)
    return torch.nn.functional.pad(x, flat)

kernel_name = 'sequential_preLN__ssm_conv_s4d__mixer_s_mlp__prompt'

def setup_inputs():

    _w = (lambda a: (lambda t: t.to(torch.bfloat16) if t.is_floating_point() else t)(torch.as_tensor(a)))
    def _A_setup():
        Bsz, L, D, N = 1, 2048, 448, 256
        return {
            "u": _w((lambda *s: torch.randn(*s, dtype=torch.bfloat16) * 0.05)(Bsz, L, D)),
            "log_A_real": _w((lambda *s: torch.randn(*s, dtype=torch.bfloat16) * 6.4)(D, N) * 0.5),
            "A_imag": _w((lambda *s: torch.randn(*s, dtype=torch.bfloat16) * 0.05)(D, N) * 3.14),
            "C_real": _w((lambda *s: torch.randn(*s, dtype=torch.bfloat16) * 0.05)(D, N) / N ** 0.5),
            "C_imag": _w((lambda *s: torch.randn(*s, dtype=torch.bfloat16) * 0.05)(D, N) / N ** 0.5),
            "log_dt": _w((lambda *s: torch.randn(*s, dtype=torch.bfloat16) * 0.05)(D) * 0.5 - 4.0),
            "D_skip": _w((lambda *s: torch.randn(*s, dtype=torch.bfloat16) * 0.05)(D)),
        }
    _A_in = _A_setup()

    def _B_setup():
        B, S, D, F = 1, 2048, 448, 1792
        return {
            "x":  _w((lambda *s: torch.randn(*s, dtype=torch.bfloat16) * 0.05)(B, S, D)),
            "w1": _w((lambda *s: torch.randn(*s, dtype=torch.bfloat16) * 6.4)(D, D) * (D ** -0.5)),
            "w2": _w((lambda *s: torch.randn(*s, dtype=torch.bfloat16) * 6.4)(D, D) * (D ** -0.5)),
            "w3": _w((lambda *s: torch.randn(*s, dtype=torch.bfloat16) * 6.4)(D, F) * (D ** -0.5)),
            "w4": _w((lambda *s: torch.randn(*s, dtype=torch.bfloat16) * 3.2)(F, D) * (F ** -0.5)),
        }
    _B_in = _B_setup()

    return {
        "A_u": _A_in["u"],
        "A_log_A_real": _A_in["log_A_real"],
        "A_A_imag": _A_in["A_imag"],
        "A_C_real": _A_in["C_real"],
        "A_C_imag": _A_in["C_imag"],
        "A_log_dt": _A_in["log_dt"],
        "A_D_skip": _A_in["D_skip"],
        "B_x": _B_in["x"],
        "B_w1": _B_in["w1"],
        "B_w2": _B_in["w2"],
        "B_w3": _B_in["w3"],
        "B_w4": _B_in["w4"],
    }

def reference(A_u, A_log_A_real, A_A_imag, A_C_real, A_C_imag, A_log_dt, A_D_skip, B_x, B_w1, B_w2, B_w3, B_w4):
    def _A_ref(u, log_A_real, A_imag, C_real, C_imag, log_dt, D_skip):
        L = u.shape[1]
        dt = torch.exp(log_dt)
        A = -torch.exp(log_A_real) + 1j * A_imag
        C = (C_real + 1j * C_imag) * dt[:, None]
        pos = (lambda x, dt: x.to(dt))(torch.arange(L), log_dt.dtype)
        P = torch.exp((A * dt[:, None])[:, :, None] * pos[None, None, :])
        K = 2.0 * torch.einsum("dn,dnl->dl", C, P).real
        L2 = 2 * L
        u_t = (lambda x, *d: x.permute(*d))(u, 0, 2, 1)
        Kf = (lambda x, *a, **k: torch.fft.rfft(x.float(), *a, **k))(K, L2)
        Uf = (lambda x, *a, **k: torch.fft.rfft(x.float(), *a, **k))(u_t, L2)
        y = (lambda x, *a, **k: torch.fft.irfft(x, *a, **k).to(torch.bfloat16))(Uf * Kf[None, :, :], L2)[:, :, :L]
        y = (lambda x, *d: x.permute(*d))(y, 0, 2, 1)
        return y + u * D_skip[None, None, :]

    def _B_ref(x, w1, w2, w3, w4):
        B, S, D = x.shape
        h = _gelu(_layernorm(x, axis=-1) @ w1)
        c = D // 4
        g0 = _pad(h[:, :, 0*c:1*c], ((0, 0), (1, 0), (0, 0)))[:, :S, :]
        g1 = _pad(h[:, :, 1*c:2*c], ((0, 0), (0, 1), (0, 0)))[:, 1:, :]
        g2 = _pad(h[:, :, 2*c:3*c], ((0, 0), (2, 0), (0, 0)))[:, :S, :]
        g3 = _pad(h[:, :, 3*c:   ], ((0, 0), (0, 2), (0, 0)))[:, 2:, :]
        hs = torch.concatenate([g0, g1, g2, g3], axis=-1) @ w2
        x1 = x + hs
        h2 = _gelu(_layernorm(x1, axis=-1) @ w3) @ w4
        return x1 + h2

    x = A_u
    h = x + _A_ref(_layernorm(x, axis=-1), A_log_A_real, A_A_imag, A_C_real, A_C_imag, A_log_dt, A_D_skip)
    h2 = h + _B_ref(_layernorm(h, axis=-1), B_w1, B_w2, B_w3, B_w4)
    return h2
```

```python
import re, copy

REG = re.compile(r'^(-|\|)?(abs\()?([vsa])(\d+|\[(\d+):(\d+)\])\)?\|?$')
TRANS = ('v_exp_f32', 'v_log_f32', 'v_rcp_f32', 'v_rsq_f32', 'v_sqrt_f32', 'v_sin_f32', 'v_cos_f32')

def regs_of(tok):
    tok = tok.strip()
    if tok in ('vcc',): return {'vcc'}
    if tok in ('vcc_lo', 'vcc_hi'): return {'vcc'}
    if tok in ('exec', 'exec_lo', 'exec_hi'): return {'exec'}
    if tok == 'm0': return {'m0'}
    m = REG.match(tok)
    if not m: return set()
    f = m.group(3)
    if m.group(5) is not None:
        return {f'{f}{i}' for i in range(int(m.group(5)), int(m.group(6)) + 1)}
    return {f'{f}{m.group(4)}'}

def split_ops(s):
    out, depth, cur = [], 0, ''
    for ch in s:
        if ch in '[(': depth += 1
        if ch in '])': depth -= 1
        if ch == ',' and depth == 0:
            out.append(cur.strip()); cur = ''
        else: cur += ch
    if cur.strip(): out.append(cur.strip())
    return out

class Ins:
    def __init__(s, text):
        s.text = text
        t = text.split(None, 1)
        s.mn = mn = t[0]
        rest = t[1] if len(t) > 1 else ''
        ops = split_ops(rest)
        mods = ''
        if ops:
            p = ops[-1].split(None, 1)
            ops[-1] = p[0]
            mods = p[1] if len(p) > 1 else ''
        s.ops, s.mods = ops, mods
        R = [regs_of(o) for o in ops]
        s.rd, s.wr = set(), set()
        s.kind = 'other'; s.passes = 0; s.srcc = set(); s.ab = set(); s.sdata = set()
        U = lambda l: set().union(*l) if l else set()
        if mn.startswith('v_mfma'):
            s.kind = 'mfma'; s.wr = R[0]; s.rd = U(R[1:]); s.srcc = R[3]; s.ab = R[1] | R[2]
            s.passes = 8 if '32x32' in mn else 4
        elif mn.startswith('v_'):
            s.kind = 'valu'
            if mn.startswith('v_swap') or 'permlane' in mn and 'swap' in mn:
                s.wr = R[0] | R[1]; s.rd = R[0] | R[1]
            elif mn.startswith(('v_add_co', 'v_sub_co', 'v_addc_co', 'v_subb_co')):
                s.wr = R[0] | R[1]; s.rd = U(R[2:])
            else:
                s.wr = R[0]; s.rd = U(R[1:])
                if mn.startswith(('v_fmac', 'v_dot2c', 'v_writelane', 'v_pk_fmac')) or 'dpp' in mn or 'sdwa' in mn or 'op_sel' in mods and not mn.startswith('v_pk'): s.rd |= R[0]
            if mn == 'v_nop': s.wr = set(); s.rd = set()
        elif mn.startswith('ds_'):
            s.kind = 'ds'
            if mn.startswith(('ds_read', 'ds_bpermute', 'ds_permute', 'ds_swizzle')):
                s.wr = R[0]; s.rd = U(R[1:])
                if 'd16' in mn: s.rd |= R[0]
            else: s.rd = U(R)
            if 'addtid' in mn: s.rd.add('m0')
        elif mn.startswith(('buffer_', 'global_')):
            s.kind = 'vmem'
            lds = re.search(r'\blds\b', mods) is not None or 'load_lds' in mn
            s.lds = lds
            if 'load' in mn and not lds:
                s.wr = R[0]; s.rd = U(R[1:])
                if 'd16' in mn: s.rd |= R[0]
            else:
                s.rd = U(R)
                if lds: s.rd.add('m0')
                if 'store' in mn and ('x4' in mn or 'x3' in mn):
                    s.sdata = R[0] if mn.startswith('buffer') else R[1]
                if 'atomic' in mn and 'sc0' in mods: s.wr = R[0]
        elif mn.startswith(('s_load', 's_memtime', 's_memrealtime', 's_buffer_load')):
            s.kind = 'smem'; s.wr = R[0]; s.rd = U(R[1:])
        elif mn.startswith('s_'):
            s.kind = 'salu'
            if mn.startswith(('s_cmp', 's_bitcmp', 's_waitcnt', 's_barrier', 's_cbranch', 's_branch', 's_nop', 's_setprio', 's_sleep', 's_endpgm', 's_setreg')):
                s.rd = U(R)
                if 'vcc' in mn: s.rd.add('vcc')
            else:
                s.wr = R[0]; s.rd = U(R[1:])
                if 'saveexec' in mn: s.wr = s.wr | {'exec'}
                if mn.startswith(('s_addk', 's_mulk', 's_bitset', 's_cmov')): s.rd |= R[0]
        s.dpp = mn.endswith('_dpp') or bool(re.search(r'row_|quad_perm|wave_', mods))
        s.trans = mn.replace('_e32', '').replace('_e64', '') in TRANS
        s.states = 1
        if mn == 's_nop': s.states = int(ops[0], 0) + 1

def isv(r): return r[0] in 'va' and r != 'vcc'
def iss(r): return r == 'vcc' or (r[0] == 's')

def need(p, c):
    n = 0
    if p.kind == 'valu':
        vw = {r for r in p.wr if isv(r)}; sw = {r for r in p.wr if iss(r)}
        if c.kind == 'mfma' and vw & c.rd: n = max(n, 2)
        if c.kind == 'valu':
            if vw & c.rd:
                if c.dpp or 'permlane' in c.mn: n = max(n, 2)
                if c.mn.startswith(('v_readlane', 'v_readfirstlane')): n = max(n, 1)
                if p.trans and not c.trans: n = max(n, 1)
                if 'sdwa' in p.mn or ('op_sel' in p.mods and not p.mn.startswith('v_pk')): n = max(n, 1)
            if sw & c.rd:
                n = max(n, 4 if c.mn.startswith(('v_readlane', 'v_writelane')) else 2)
            if 'vcc' in sw and c.mn.startswith(('v_cndmask', 'v_addc', 'v_subb')): n = max(n, 2)
        if p.trans and c.kind in ('ds', 'vmem') and vw & c.rd: n = max(n, 1)
        if c.kind == 'vmem' and sw & c.rd: n = max(n, 5)
        if c.kind in ('salu', 'smem') and sw & c.rd: n = max(n, 2)
    if p.kind == 'mfma':
        big = p.passes == 8
        if c.kind == 'mfma':
            if p.wr & c.ab: n = max(n, 12 if big else 8)
            if p.wr & c.srcc and not (p.wr == c.srcc and p.passes == c.passes): n = max(n, 10 if big else 6)
            if p.wr & c.wr and not p.wr & c.srcc: n = max(n, 12 if big else 8)
        elif c.kind in ('valu', 'ds', 'vmem'):
            if p.wr & (c.rd | c.wr): n = max(n, 12 if big else 8)
            if p.srcc & c.wr: n = max(n, 7 if big else 3)
    if p.kind == 'salu' and 'm0' in p.wr and 'm0' in c.rd and c.kind in ('ds', 'vmem'): n = max(n, 1)
    if p.kind == 'vmem' and p.sdata & c.wr: n = max(n, 2)
    return n

class Asm:
    def __init__(s):
        s.out = []
        s.hist = []
        s.vm = []
        s.lg = []
        s.nid = 0
        s.nins = 0
    def raw(s, t): s.out.append(t)
    def comment(s, t): s.out.append('    ; ' + t)
    def _emit(s, ins):
        s.out.append('    ' + ins.text); s.hist.append(ins); s.hist = s.hist[-24:]; s.nins += 1
    def _wait(s, vm=None, lg=None):
        parts = []
        if vm is not None:
            vm = min(vm, 63)
            if len(s.vm) > vm:
                parts.append(f'vmcnt({vm})'); s.vm = s.vm[len(s.vm) - vm:] if vm else []
        if lg is not None:
            lg = min(lg, 15)
            if any(x[2] for x in s.lg) and len(s.lg) > lg: lg = 0
            if len(s.lg) > lg:
                parts.append(f'lgkmcnt({lg})'); s.lg = s.lg[len(s.lg) - lg:] if lg else []
        if parts: s._emit(Ins('s_waitcnt ' + ' '.join(parts)))
    def wait(s, *handles):
        vm = lg = None
        for h in handles:
            for i, x in enumerate(s.vm):
                if x[0] == h: n = len(s.vm) - 1 - i; vm = n if vm is None else min(vm, n)
            for i, x in enumerate(s.lg):
                if x[0] == h: n = len(s.lg) - 1 - i; lg = n if lg is None else min(lg, n)
        s._wait(vm, lg)
    def wait_vm(s, n=0, force=False):
        if force: s._emit(Ins(f's_waitcnt vmcnt({n})')); s.vm = s.vm[len(s.vm) - n:] if n else []
        else: s._wait(vm=n)
    def wait_lg(s, n=0, force=False):
        if force: s._emit(Ins(f's_waitcnt lgkmcnt({n})')); s.lg = s.lg[len(s.lg) - n:] if n else []
        else: s._wait(lg=n)
    def __call__(s, text):
        h = None
        for line in text.strip().split('\n'):
            line = line.split(';')[0].strip()
            if line: h = s.op(line)
        return h
    def op(s, text):
        ins = Ins(text)
        touched = ins.rd | ins.wr
        hs = [x[0] for x in s.vm if x[1] & touched] + [x[0] for x in s.lg if x[1] & touched]
        if hs: s.wait(*hs)
        dist = 0; pad = 0
        for p in reversed(s.hist):
            pad = max(pad, need(p, ins) - dist)
            dist += p.states
            if dist > 20: break
        while pad > 0:
            k = min(pad, 16); s._emit(Ins(f's_nop {k-1}')); pad -= k
        s._emit(ins)
        if ins.kind == 'vmem':
            s.nid += 1; s.vm.append((s.nid, set(ins.wr))); assert len(s.vm) <= 63, 'vmcnt overflow'; return s.nid
        if ins.kind in ('ds', 'smem'):
            s.nid += 1; s.lg.append((s.nid, set(ins.wr), ins.kind == 'smem')); return s.nid
    def barrier(s):
        s._wait(lg=0); s._emit(Ins('s_barrier'))
    def label(s, name): s.out.append(name + ':')
    def state(s): return (list(s.hist), list(s.vm), list(s.lg))
    def set_state(s, st): s.hist, s.vm, s.lg = list(st[0]), list(st[1]), list(st[2])
    def flush_hazards(s, n=12):
        worst = 0; dist = 0
        for p in reversed(s.hist):
            w = {'mfma': 12 if p.passes == 8 else 8, 'valu': 5 if any(iss(r) for r in p.wr) else 2, 'vmem': 2 if p.sdata else 0, 'salu': 1 if 'm0' in p.wr else 0}.get(p.kind, 0)
            worst = max(worst, w - dist); dist += p.states
        if worst > 0: s._emit(Ins(f's_nop {worst-1}'))
    def text(s): return '\n'.join(s.out) + '\n'
```

```python
from gen import *
C1 = -2.0 * 0.7978845608028654 * 1.4426950408889634
C2 = C1 * 0.044715
import struct
def fh(x): return '0x%08x' % struct.unpack('<I', struct.pack('<f', x))[0]
L_STA, L_STB, L_ST3, L_FAST = L_ST, L_ST + 768, L_ST + 1152, L_ST + 2176
L_JUNK = L_ST + 2304
vW3, vW4A, vW4B = 52, 200, 52
vCS3, vAC3 = 164, 180
vRES = 36
sM0, sM1 = 78, 80
sCT = 82
SPIN = 1 << 20

class G3(G):
    def __init__(s):
        super().__init__(); s.ool = []
    def xstore(s, lines):
        slow, back = s.lab('xs'), s.lab('xb')
        s(f's_cmp_eq_u32 s{sFAST}, 0')
        from dsl import Ins
        for l in lines:
            ins = Ins(l); t = ins.rd | ins.wr
            hs = [x[0] for x in s.vm if x[1] & t] + [x[0] for x in s.lg if x[1] & t]
            if hs: s.wait(*hs)
        s.flush_hazards()
        s(f's_cbranch_scc1 {slow}')
        for l in lines: s(l)
        s.label(back)
        s.ool.append(f'{slow}:\n' + ''.join(f'    {l} sc1\n' for l in lines) + f'    s_branch {back}\n')
    def wload(s, reg, sbase, i):
        if i % 4 == 0 and i: s(f's_add_u32 s{sbase}, s{sbase}, 4096')
        s(f'buffer_load_dwordx4 {vr(reg)}, v{vL16}, {sr(rWS)}, s{sbase} offen offset:{(i % 4) * 1024}')
    def poll(s, vaddr, soff, lo, hi, vtmp=4):
        lp, done = s.lab('pl'), s.lab('pd')
        s(f's_mov_b32 exec_lo, {lo}\ns_mov_b32 exec_hi, {hi}\ns_mov_b32 s97, 0')
        s.flush_hazards()
        s.label(lp)
        s(f'buffer_load_dword v{vtmp}, v{vaddr}, {sr(rWS)}, s{soff} offen sc1')
        s(f's_add_u32 s97, s97, 1\ns_cmp_gt_u32 s97, {SPIN}\ns_cbranch_scc1 {done}')
        s.wait_vm(0, force=True)
        s(f'v_cmp_ne_u32 vcc, s{sTAG}, v{vtmp}\ns_cbranch_vccnz {lp}')
        s.label(done)
        s.wait_vm(0, force=True)
        s('s_mov_b64 exec, -1')
    def flag(s, soff, vtmp):
        s.wait_vm(0, force=True)
        s(f's_mov_b64 exec, 1\nv_mov_b32 v{vtmp}, s{sTAG}')
        s.xstore([f'buffer_store_dword v{vtmp}, off, {sr(rWS)}, s{soff}'])
        s('s_mov_b64 exec, -1')
    def dma(s, n, ssrc, ldsbase):
        for i in range(n):
            if i % 4 == 0:
                if i: s(f's_add_u32 s{ssrc}, s{ssrc}, 4096')
                s(f's_mov_b32 m0, {ldsbase + i * 1024}')
            s(f'buffer_load_dwordx4 v{vL16}, {sr(rWS)}, s{ssrc} offen offset:{(i % 4) * 1024} sc1 lds')
    def pos(s, d, src, t):
        s(f'''v_and_b32 v{t}, 3, v{src}
        v_lshlrev_b32 v{t}, 2, v{t}
        v_and_or_b32 v{t}, v{src}, -16, v{t}
        v_bfe_u32 v{d}, v{src}, 2, 2
        v_or_b32 v{d}, v{d}, v{t}
        v_lshlrev_b32 v{d}, 4, v{d}''')

    def xcc_publish(s):
        s(f'''s_getreg_b32 s70, hwreg(HW_REG_XCC_ID, 0, 4)
        s_add_u32 s83, s70, s{sTAG}
        s_lshl_b32 s70, s2, 7
        s_add_u32 s70, s70, {FX}
        v_mov_b32 v4, s83
        s_mov_b64 exec, 1
        buffer_store_dword v4, off, {sr(rWS)}, s70 sc1
        s_mov_b64 exec, -1''')
    def xcc_check(s):
        lp, done = s.lab('xl'), s.lab('xd')
        s(f'''s_and_b32 s70, s2, 0xc7
        s_lshl_b32 s70, s70, 7
        s_add_u32 s70, s70, {FX}
        v_lshlrev_b32 v44, 10, v{vL}
        s_mov_b64 exec, 0xff
        s_mov_b32 s97, 0''')
        s.flush_hazards(); s.label(lp)
        s(f'buffer_load_dword v45, v44, {sr(rWS)}, s70 offen sc1')
        s(f's_add_u32 s97, s97, 1\ns_cmp_gt_u32 s97, {SPIN}\ns_cbranch_scc1 {done}')
        s.wait_vm(0, force=True)
        s(f'v_subrev_u32 v46, s{sTAG}, v45\nv_cmp_lt_u32 vcc, 15, v46\ns_cbranch_vccnz {lp}')
        s.label(done); s.wait_vm(0, force=True)
        s(f'''v_cmp_ne_u32 vcc, s83, v45
        s_cmp_eq_u64 vcc, 0
        s_cselect_b32 s70, 1, 0
        v_mov_b32 v45, s70
        v_mov_b32 v44, {L_FAST}
        ds_write_b32 v44, v45
        s_mov_b64 exec, -1''')

    def b_setup(s):
        s.comment('phase B addresses')
        s(f'''s_mul_i32 s{sCT}, s{sQ}, 7
        s_add_u32 s{sCT}, s{sCT}, s{sW}
        s_mul_i32 s84, s{sCT}, {14*1024}
        s_add_u32 s85, s84, {W2P}
        s_mul_i32 s86, s{sM}, 7
        s_add_u32 s86, s86, s{sW}
        s_mul_i32 s87, s86, {28*1024}
        s_add_u32 s86, s87, {W3P}
        s_add_u32 s87, s87, {W4P}''')
    def h2_addr(s):
        s(f'''v_min_u32 v44, 503, v0
        v_mul_u32_u24 v45, 7282, v44
        v_lshrrev_b32 v45, 16, v45
        v_mul_u32_u24 v46, 9, v45
        v_sub_u32 v46, v44, v46
        v_mul_u32_u24 v4, {4*HPITCH}, v45
        v_lshl_add_u32 v4, v46, 4, v4
        v_mul_u32_u24 v5, 768, v45
        v_lshrrev_b32 v47, 2, v46
        v_lshl_add_u32 v5, v47, 8, v5
        v_and_b32 v47, 3, v46
        v_lshl_add_u32 v5, v47, 4, v5
        v_add_u32 v5, {L_HI}, v5
        s_and_b32 s70, s{sQ}, 1
        s_lshl_b32 s70, s70, 4
        s_lshl_b32 s88, s{sTB}, 7
        s_add_u32 s88, s88, s70
        s_add_u32 s88, s88, {HP + 128 - 16}
        s_add_u32 s89, s88, {HPITCH}
        s_add_u32 s90, s88, {2*HPITCH}
        s_add_u32 s91, s88, {3*HPITCH}''')
    def h2_load(s):
        for j in range(4): s(f'buffer_load_dwordx4 {vr(8+4*j)}, v4, {sr(rWS)}, s{88+j} offen sc1')
    def h2_stage(s):
        for j in range(4):
            for i in range(j): s(f'v_swap_b32 v{8+4*j+i}, v{8+4*i+j}')
        for i in range(4): s(f'ds_write_b128 v5, {vr(8+4*i)} offset:{64*i}')

    def stats_tail(s, acc, extra, vadr, tab):
        a = acc
        s(f'''v_cndmask_b32 v{a}, v{a}, v{a+1}, s[92:93]
        v_cndmask_b32 v{a}, v{a}, v{a+2}, s[94:95]
        v_mul_f32 v{a+3}, s96, v{a+3}
        v_mul_f32 v{a}, s96, v{a}
        v_fma_f32 v{a}, -v{a+3}, v{a+3}, v{a}
        v_max_f32 v{a}, 0, v{a}
        v_add_f32 v{a+1}, 0x3727c5ac, v{a}
        v_rsq_f32 v{a+1}, v{a+1}''')
        if extra:
            s(f'''v_mul_f32 v{a}, v{a}, v{a+1}
            v_mov_b32 v50, v{a+1}
            v_mul_f32 v51, -v{a+3}, v{a+1}
            v_fmaak_f32 v{a}, v{a}, v{a+1}, 0x3727c5ac
            v_rsq_f32 v{a}, v{a}
            ds_write_b64 v{extra}, v[50:51] offset:{tab // 2}
            v_mul_f32 v{a+1}, v{a+1}, v{a}''')
        s(f'''v_rcp_f32 v{a+2}, v{a+1}
        v_mul_f32 v{a}, {fh(C1)}, v{a+1}
        v_mul_f32 v{a+1}, v{a+1}, v{a+1}
        v_mul_f32 v{a+1}, v{a+1}, v{a}
        v_mul_f32 v{a+1}, {fh(0.044715)}, v{a+1}
        ds_write_b128 v{vadr}, {vr(a)} offset:{tab}''')

    def gelu_pk(s, acc, cs, st, n, t, out):
        P = range(0, n, 2)
        for i in P: s(f'v_pk_fma_f32 {vr(acc+i,2)}, {vr(cs+i,2)}, {vr(st+2,2)}, {vr(acc+i,2)} op_sel:[0,1,0] op_sel_hi:[1,1,1] neg_lo:[0,1,0] neg_hi:[0,1,0]')
        for i in P: s(f'v_pk_mul_f32 {vr(t+i,2)}, {vr(acc+i,2)}, {vr(acc+i,2)}')
        for i in P: s(f'v_pk_fma_f32 {vr(t+i,2)}, {vr(t+i,2)}, {vr(st,2)}, {vr(st,2)} op_sel:[0,1,0] op_sel_hi:[1,1,0]')
        for i in P: s(f'v_pk_mul_f32 {vr(t+i,2)}, {vr(t+i,2)}, {vr(acc+i,2)}')
        for i in range(n): s(f'v_exp_f32 v{t+i}, v{t+i}')
        for i in P: s(f'v_pk_fma_f32 {vr(t+i,2)}, {vr(t+i,2)}, {vr(st+2,2)}, {vr(st+2,2)} op_sel_hi:[1,0,0]')
        for i in range(n): s(f'v_rcp_f32 v{t+i}, v{t+i}')
        for i in P: s(f'v_pk_mul_f32 {vr(t+i,2)}, {vr(t+i,2)}, {vr(acc+i,2)}')
        for i in P: s(f'v_cvt_pk_bf16_f32 v{out+i//2}, v{t+i}, v{t+i+1}')
    def gelu_sc(s, acc, cs, st, n, t, out):
        R = range(n)
        for i in R: s(f'v_fma_f32 v{acc+i}, -v{cs+i}, v{st+3}, v{acc+i}')
        for i in R: s(f'v_mul_f32 v{t+i}, v{acc+i}, v{acc+i}')
        for i in R: s(f'v_fma_f32 v{t+i}, v{t+i}, v{st+1}, v{st}')
        for i in R: s(f'v_mul_f32 v{t+i}, v{t+i}, v{acc+i}')
        for i in R: s(f'v_exp_f32 v{t+i}, v{t+i}')
        for i in R: s(f'v_fma_f32 v{t+i}, v{t+i}, v{st+2}, v{st+2}')
        for i in R: s(f'v_rcp_f32 v{t+i}, v{t+i}')
        for i in R: s(f'v_mul_f32 v{t+i}, v{t+i}, v{acc+i}')
        for i in range(0, n, 2): s(f'v_cvt_pk_bf16_f32 v{out+i//2}, v{t+i}, v{t+i+1}')

    def gemm16(s, W, acc, vaddr, kstride, first_zero, extra=None):
        seq = [(ks, t) for ks in range(14) for t in range(2)]
        ex = list(extra or [])
        def rd(i): ks, t = seq[i]; s(f'ds_read_b128 {vr(8+4*(i%4))}, v{vaddr} offset:{ks*kstride + 256*t}')
        for i in range(3): rd(i)
        for i, (ks, t) in enumerate(seq):
            if i + 3 < 28: rd(i + 3)
            c = 0 if (first_zero and ks == 0) else vr(acc + 4*t)
            s(f'v_mfma_f32_16x16x32_bf16 {vr(acc+4*t)}, {vr(W+4*ks)}, {vr(8+4*(i%4))}, {c}')
            if ex: ex.pop(0)()
        while ex: ex.pop(0)()
    def gemm32(s, W, nk, acc, vaddr, base, extra=None, buf=8, nb=4):
        ex = list(extra or [])
        def rd(i): s(f'ds_read_b128 {vr(buf+4*(i%nb))}, v{vaddr} offset:{base + 1024*i}')
        for i in range(nb - 1): rd(i)
        for i in range(nk):
            if i + nb - 1 < nk: rd(i + nb - 1)
            s(f'v_mfma_f32_32x32x16_bf16 {vr(acc,16)}, {vr(W+4*i)}, {vr(buf+4*(i%nb))}, {vr(acc,16) if i else 0}')
            if ex: ex.pop(0)()
        while ex: ex.pop(0)()

    def g_wave(s):
        s.comment('G wave: addresses')
        s(f'''s_lshl_b32 s70, s{sQ}, 2
        s_lshr_b32 s71, 0x2213, s70
        s_and_b32 s71, s71, 15
        s_lshr_b32 s72, 0x0404, s70
        s_and_b32 s72, s72, 15
        v_and_b32 v44, 15, v{vL}
        v_lshrrev_b32 v45, 4, v{vL}
        v_add_u32 v46, s71, v44
        v_add_u32 v47, s72, v44''')
        s.pos(6, 46, 48)
        s(f'v_mul_u32_u24 v48, 768, v45\nv_add3_u32 v6, v6, v48, 0\nv_add_u32 v6, {L_HI}, v6')
        s.pos(7, 47, 48)
        s(f'''v_lshrrev_b32 v48, 1, v45
        s_lshl_b32 s73, s{sCT}, 1
        v_add_u32 v48, s73, v48
        v_mul_u32_u24 v48, 768, v48
        v_and_b32 v49, 1, v45
        v_lshl_add_u32 v48, v49, 3, v48
        v_add3_u32 v7, v7, v48, 0
        v_add_u32 v7, {L_HI}, v7
        s_sub_u32 s73, s71, s72
        s_lshl_b32 s70, s{sTB}, 5
        s_add_u32 s73, s73, s70
        v_add_u32 v48, s73, v44
        v_add_u32 v49, 16, v48
        s_movk_i32 s70, 2048
        v_cmp_gt_u32 {sr(sM0,2)}, s70, v48
        v_cmp_gt_u32 {sr(sM1,2)}, s70, v49
        v_lshlrev_b32 v50, 4, v46
        v_add_u32 v50, {L_STA}, v50
        v_lshlrev_b32 v51, 3, v47
        v_add_u32 v51, {L_STB}, v51
        v_mov_b32 v24, 0x3f803f80
        v_mov_b32 v25, 0x3f803f80
        v_mov_b32 v26, 0x3f803f80
        v_mov_b32 v27, 0x3f803f80''')
        s.h2_stage()
        for ks in range(14): s(f'v_mfma_f32_16x16x32_bf16 v[32:35], {vr(vW1+4*ks)}, v[24:27], {"v[32:35]" if ks else 0}')
        s.barrier(); s.stamp(2)
        s(f'v_lshlrev_b32 v5, 4, v44\nv_lshl_add_u32 v5, v45, 9, v5')
        s.gemm16(vW1, 24, 6, 3072, True)
        s.barrier(); s.stamp(3)
        s(f'''ds_read_b128 v[36:39], v50
        ds_read_b128 v[40:43], v50 offset:256
        v_mov_b32 v4, {L_FAST}
        ds_read_b32 v4, v4
        s_mul_i32 s70, s{sTB}, 28
        s_add_u32 s70, s70, s{sCT}
        s_lshl_b32 s70, s70, 10
        s_add_u32 s71, s70, {X1}
        s_add_u32 s70, s70, {GX}
        s_lshl_b32 s72, s{sTB}, 5
        s_add_u32 s72, s72, s{sCT}
        s_lshl_b32 s72, s72, 2
        s_add_u32 s73, s72, {F4}
        s_add_u32 s72, s72, {F3}''')
        s.gelu_pk(24, 32, 36, 4, 8, 20)
        s(f'v_readfirstlane_b32 s{sFAST}, v4')
        s.gelu_pk(28, 32, 40, 4, 12, 22)
        s(f'''v_cndmask_b32 v20, 0, v20, {sr(sM0,2)}
        v_cndmask_b32 v21, 0, v21, {sr(sM0,2)}
        v_cndmask_b32 v22, 0, v22, {sr(sM1,2)}
        v_cndmask_b32 v23, 0, v23, {sr(sM1,2)}
        v_permlane16_swap_b32 v20, v22
        v_permlane16_swap_b32 v21, v23''')
        s.xstore([f'buffer_store_dwordx4 v[20:23], v{vL16}, {sr(rWS)}, s70 offen'])
        s.stamp(4)
        s('''ds_read_b64 v[8:9], v7
        ds_read_b64 v[10:11], v7 offset:256
        ds_read_b64 v[12:13], v51
        ds_read_b64 v[14:15], v51 offset:128''')
        for i in range(4): s(f'v_lshlrev_b32 v{vRES+2*i}, 16, v{8+i}\nv_and_b32 v{vRES+1+2*i}, 0xffff0000, v{8+i}')
        for i in range(4): s(f'v_pk_fma_f32 {vr(24+2*i,2)}, {vr(vRES+2*i,2)}, {vr(12+2*(i>>1),2)}, {vr(12+2*(i>>1),2)} op_sel:[0,0,1] op_sel_hi:[1,0,1]')
        s.flag(72, 4)
        s.stamp(5)
        for i in range(23, 28): s.wload(vW3 + 4*i, 86, i)
        s.barrier(); s.stamp(6)
        s.gemm16(vW2, 24, 5, 2048, False)
        for i in range(4): s(f'v_cvt_pk_bf16_f32 v{20+i}, v{24+2*i}, v{25+2*i}')
        s('v_permlane16_swap_b32 v20, v22\nv_permlane16_swap_b32 v21, v23')
        s.xstore([f'buffer_store_dwordx4 v[20:23], v{vL16}, {sr(rWS)}, s71 offen'])
        s.stamp(7)
        for i in range(4): s(f'v_pk_add_f32 {vr(vRES+2*i,2)}, {vr(vRES+2*i,2)}, {vr(24+2*i,2)}')
        s.flag(73, 4)
        s.stamp(8)
        for i in range(14): s.wload(vW4A + 4*i, 87, i)
        for i in range(4): s(f'v_mov_b32 v{24+i}, 0x3f803f80')
        for ks in range(28): s(f'v_mfma_f32_32x32x16_bf16 {vr(vCS3,16)}, {vr(vW3+4*ks)}, v[24:27], {vr(vCS3,16) if ks else 0}')
        s(f'''v_add_u32 v6, {L_XI}, v{vL16}
        s_lshl_b32 s70, s{sW}, 11
        s_add_u32 s70, s70, {L_HID}
        v_add_u32 v7, s70, v{vL16}
        v_add_u32 v44, {L_HID}, v{vL16}
        v_and_b32 v45, 31, v{vL}
        v_lshlrev_b32 v46, 4, v45
        v_add_u32 v46, {L_ST3}, v46
        v_mul_u32_u24 v45, 896, v45
        v_lshrrev_b32 v47, 5, v{vL}
        v_lshl_add_u32 v45, v47, 4, v45''')
        s.barrier(); s.stamp(9)
        for t in range(2):
            ex = None
            if t == 1:
                ex = [lambda: None] * 2 + [(lambda i=i: s.wload(vW4B + 4*i, 87, 14 + i)) for i in range(14)]
            s.gemm32(vW3, 28, vAC3, 6, 28672 * t, extra=ex)
            if t == 0: s.barrier(); s.stamp(10)
            s(f'ds_read_b128 v[196:199], v46 offset:{512*t}')
            for j in range(2):
                s.gelu_sc(vAC3 + 8*j, vCS3 + 8*j, 196, 8, 24, 32)
                s(f'ds_write_b128 v7, v[32:35] offset:{14336*t + 1024*j}')
            s.stamp(11 + t)
        s(f'''s_mul_i32 s70, s{sCL}, 56
        s_lshl_b32 s71, s{sW}, 2
        s_add_u32 s71, s71, s70
        s_lshl_b32 s71, s71, 3
        s_add_u32 s71, s71, s{sM}
        s_lshl_b32 s71, s71, 10
        s_add_u32 s71, s71, {PX}
        s_lshl_b32 s72, s{sCL}, 6
        s_lshl_b32 s73, s{sM}, 3
        s_add_u32 s73, s73, s72
        s_add_u32 s73, s73, s{sW}
        s_lshl_b32 s73, s73, 2
        s_add_u32 s73, s73, {F5}
        s_lshr_b32 s74, s{sCT}, 2
        s_add_u32 s72, s72, s74
        s_lshl_b32 s72, s72, 2
        s_add_u32 s72, s72, {F5}''')
        s.barrier(); s.stamp(13)
        n = 0
        for ctl, W in ((0, vW4A), (1, vW4B)):
            for t in range(2):
                acc = 112 + 16 * (n & 1); pk = 24 + 8 * 0; n += 1
                s.gemm32(W, 14, acc, 44, 14336 * t)
                for i in range(8): s(f'v_cvt_pk_bf16_f32 v{pk+i}, v{acc+2*i}, v{acc+2*i+1}')
                s(f's_add_u32 s74, s71, {(28*t + 2*ctl) * 8192}\ns_add_u32 s75, s74, 8192')
                s.xstore([f'buffer_store_dwordx4 {vr(pk)}, v{vL16}, {sr(rWS)}, s74 offen', f'buffer_store_dwordx4 {vr(pk+4)}, v{vL16}, {sr(rWS)}, s75 offen'])
        s.stamp(14)
        s(f'''v_and_b32 v8, 15, v{vL}
        v_bfe_u32 v9, v{vL}, 4, 1
        v_lshlrev_b32 v9, 3, v9
        v_sub_u32 v8, v8, v9
        v_mov_b32 v10, 0x3f80
        v_mov_b32 v11, 1.0''')
        for d in range(4):
            s(f'''v_cmp_eq_u32 vcc, {2*d}, v8
            v_cndmask_b32 v{48+d}, 0, v10, vcc
            v_cmp_eq_u32 vcc, {2*d+1}, v8
            v_cndmask_b32 v{48+d}, v{48+d}, v11, vcc''')
        s(f'''v_lshlrev_b32 v6, 5, v{vL}
        s_mul_i32 s74, s{sTB}, 28
        s_add_u32 s74, s74, s{sCT}
        s_lshl_b32 s74, s74, 13
        s_add_u32 s74, s74, {PX}
        s_add_u32 s75, s74, 4096
        s_mul_i32 s76, s{sTB}, {32*896}
        s_lshl_b32 s77, s{sCT}, 5
        s_add_u32 s76, s76, s77''')
        s.srd(rO, sOUT, 2048 * 896)
        s.flag(73, 4)
        s.stamp(15)
        s.poll(6, 72, '0xff', 0)
        s.stamp(16)
        for u in range(4):
            for t in range(2): s(f'buffer_load_dwordx4 {vr(52+8*u+4*t)}, v5, {sr(rWS)}, s{74+(u>>1)} offen offset:{2048*(u&1) + 256*t} sc1')
        for u in range(4):
            for t in range(2): s(f'v_mfma_f32_16x16x32_bf16 {vr(vRES+4*t)}, v[48:51], {vr(52+8*u+4*t)}, {vr(vRES+4*t)}')
        for i in range(4): s(f'v_cvt_pk_bf16_f32 v{20+i}, v{vRES+2*i}, v{vRES+1+2*i}')
        s('v_permlane16_swap_b32 v20, v22\nv_permlane16_swap_b32 v21, v23')
        s(f'buffer_store_dwordx4 v[20:23], v45, {sr(rO)}, s76 offen')
        s.stamp(17)

    def s_mfma(s, addrs, acc, kstride, base):
        seq = [(ks, t) for ks in range(14) for t in range(3)]
        nb = 8
        def rd(i): ks, t = seq[i]; s(f'ds_read_b128 {vr(52+4*(i%nb))}, v{addrs+t} offset:{base + ks*kstride}')
        s('s_mov_b32 exec_lo, 0x77777777\ns_mov_b32 exec_hi, 0x77777777')
        for i in range(nb - 1): rd(i)
        for i, (ks, t) in enumerate(seq):
            if i + nb - 1 < len(seq): rd(i + nb - 1)
            s(f'v_mfma_f32_16x16x32_bf16 {vr(acc+4*t)}, {vr(52+4*(i%nb))}, {vr(52+4*(i%nb))}, {vr(acc+4*t) if ks else 0}')
        s('s_mov_b32 exec_lo, 0x00700007\ns_mov_b32 exec_hi, 0x70000700')
    def s_wave(s):
        s.comment('S wave')
        s('s_setprio 2')
        for i in range(32): s(f'v_mov_b32 v{52+i}, 0x3f803f80')
        s(f'''v_and_b32 v44, 3, v{vL}
        v_bfe_u32 v45, v{vL}, 2, 2
        v_mad_u32_u24 v40, v45, 3, v44
        v_lshrrev_b32 v41, 4, v{vL}
        v_cmp_eq_u32 s[92:93], 1, v44
        v_cmp_eq_u32 s[94:95], 2, v44
        s_mov_b32 s96, 0x3b124925''')
        for t in range(3):
            s(f'v_add_u32 v46, {12*t}, v40')
            s.pos(84 + t, 46, 47)
            s(f'v_mul_u32_u24 v47, 768, v41\nv_add3_u32 v{84+t}, v{84+t}, v47, 0\nv_add_u32 v{84+t}, {L_HI}, v{84+t}')
            s(f'v_min_u32 v46, 31, v46\nv_lshlrev_b32 v46, 4, v46\nv_add_u32 v{92+t}, {L_ST3}, v46\nv_lshl_add_u32 v46, v41, 9, v46\nv_add_u32 v{88+t}, {L_XI}, v46')
        s(f'''v_lshlrev_b32 v42, 4, v40
        v_add_u32 v42, {L_STA}, v42
        v_lshlrev_b32 v43, 3, v40
        v_add_u32 v43, {L_STB}, v43
        v_lshlrev_b32 v6, 2, v{vL}''')
        s.h2_stage()
        s.xcc_check()
        s.barrier(); s.stamp(2)
        s.s_mfma(84, 24, 3072, 0)
        for t in range(3): s.stats_tail(24 + 4*t, 43, 42, 192 * t)
        s('s_mov_b64 exec, -1')
        s(f'''s_lshl_b32 s72, s{sTB}, 7
        s_add_u32 s72, s72, {F3}
        s_mul_i32 s70, s{sTB}, {28*1024}
        s_add_u32 s70, s70, {GX}
        s_lshl_b32 s73, s{sCL}, 8
        s_add_u32 s73, s73, {F4}
        s_mul_i32 s71, s{sCL}, {56*1024}
        s_add_u32 s71, s71, {X1}''')
        s.barrier(); s.stamp(3)
        s.poll(6, 72, '0x0fffffff', 0); s.stamp(5)
        s.dma(28, 70, L_GI); s.wait_vm(0)
        s.barrier(); s.stamp(6)
        s.poll(6, 73, '0x0fffffff', '0x0fffffff'); s.stamp(8)
        s.dma(56, 71, L_XI); s.wait_vm(0)
        s.barrier(); s.stamp(9)
        for t in range(2):
            s.s_mfma(88, 24, 2048, 28672 * t)
            for k in range(3): s.stats_tail(24 + 4*k, None, 92 + k, 512 * t)
        s('s_mov_b64 exec, -1')
        s.barrier(); s.stamp(10)
        s.barrier(); s.stamp(13)

def k3(stamps):
    s = G3(); s.stamps = stamps
    s.entry('Lend3')
    s(f's_mov_b32 s{sTAG}, 16\ns_mov_b32 s{sFAST}, 0')
    s.b_setup(); s.h2_addr(); s.h2_load()
    s(f's_cmp_eq_u32 s{sW}, 7\ns_cbranch_scc1 Lsw')
    st = s.state()
    for i in range(14): s.wload(vW1 + 4*i, 84, i)
    for i in range(14): s.wload(vW2 + 4*i, 85, i)
    s(f'''v_lshlrev_b32 v44, 7, v{vL}
    s_mul_i32 s70, s{sTB}, 28
    s_add_u32 s70, s70, s{sCT}
    s_lshl_b32 s71, s70, 13
    s_add_u32 s71, s71, {PX}
    s_lshl_b32 s70, s70, 10
    s_add_u32 s72, s70, {X1}
    s_add_u32 s70, s70, {GX}
    s_mov_b32 m0, {L_JUNK}
    buffer_load_dword v{vL16}, {sr(rWS)}, s70 offen sc1 lds
    buffer_load_dword v{vL16}, {sr(rWS)}, s72 offen sc1 lds''')
    for i in range(23): s.wload(vW3 + 4*i, 86, i)
    s(f'buffer_load_dword v44, {sr(rWS)}, s71 offen sc1 lds')
    s.stamp(1)
    s.g_wave(); s.dump_stamps()
    s('s_endpgm')
    s.label('Lsw'); s.set_state(st)
    s.xcc_publish()
    s(f'''v_lshlrev_b32 v44, 7, v{vL}
    v_and_b32 v44, 128, v44
    s_lshl_b32 s70, s{sCL}, 8
    s_add_u32 s71, s70, {F3}
    s_add_u32 s72, s70, {F4}
    s_add_u32 s73, s70, {F5}
    buffer_load_dword v28, v44, {sr(rWS)}, s71 offen sc1
    buffer_load_dword v29, v44, {sr(rWS)}, s72 offen sc1
    buffer_load_dword v30, v44, {sr(rWS)}, s73 offen sc1''')
    s.stamp(1)
    s.s_wave(); s.dump_stamps()
    s.label('Lend3'); s('s_endpgm')
    return s.text() + ''.join(s.ool)
```

```python
import sys, os
sys.path.insert(0, os.path.dirname(os.path.abspath(__file__)))
from dsl import Asm

NAME = 'sequential_preLN__ssm_conv_s4d__mixer_s_mlp__prompt'
WP, W1P, W2P, W3P, W4P = 0, 0, 392 * 1024, 784 * 1024, 2352 * 1024
UB, BB, UPITCH = 0x400000, 0x600000, 7296
HP, HPITCH = 0x800000, 8320
GX, X1, PX = 0xA00000, 0xC00000, 0x1000000
FL = 0x2000000
F3, F4, F5, FX = FL, FL + 0x2000, FL + 0x4000, FL + 0x8000
TS = 0x3000000
WS_BYTES = 0x4000000
L_LN, LNP = 0, 960
L_PK = 15360
L_KG, KGP = 31744, 288
L_Y = 0
L_KT, KTSZ = 68608, 12320
L_KE, KEO, KECH = 93312, 4160, 8320
L_U = 109952
L_HI = 106880
L_GI = 0
L_XI = 28672
L_HID = 106880
L_ST = 149888
LDS_BYTES = 153600
LOG2E = 0x3fb8aa3b
INV2PI = 0x3e22f983

sX, sLA, sAI, sCR, sCI, sDT, sDS = 4, 6, 8, 10, 12, 14, 16
sW1, sW2, sW3, sW4, sOUT, sWS = 20, 22, 24, 26, 28, 30
rWS, rX, rD, rW, rO = 32, 36, 40, 44, 48
sW, sXCD, sI, sP, sTAG = 52, 53, 54, 55, 56
sTB, sQ, sCL, sM, sFAST = 57, 58, 59, 60, 61
def sr(n, k=4): return f's[{n}:{n+k-1}]'
def vr(n, k=4): return f'v[{n}:{n+k-1}]'
vL16, vL = 1, 2
vW1, vW2 = 144, 200

class G(Asm):
    stamps = False
    nlab = 0
    def lab(s, p):
        G.nlab += 1; return f'L{p}{G.nlab}'
    def srd(s, r, ptr, size):
        s(f's_mov_b32 s{r}, s{ptr}\ns_mov_b32 s{r+1}, s{ptr+1}\ns_mov_b32 s{r+2}, {size}\ns_mov_b32 s{r+3}, 0x20000')
    def stamp(s, idx):
        if not s.stamps: return
        s('s_memtime s[98:99]'); s.wait_lg(0)
        s(f'v_writelane_b32 v3, s98, {idx}')
    def dump_stamps(s):
        if not s.stamps: return
        s(f's_lshl_b32 s98, s2, 3\ns_add_u32 s98, s98, s{sW}\ns_lshl_b32 s98, s98, 8\ns_add_u32 s98, s98, {TS}')
        s(f'v_lshlrev_b32 v4, 2, v{vL}\nbuffer_store_dword v3, v4, {sr(rWS)}, s98 offen')

    def entry(s, end):
        s(f's_cmp_ge_u32 s2, 256\ns_cbranch_scc1 {end}')
        if s.stamps: s('v_mov_b32 v3, 0')
        s.stamp(0)
        s(f'''s_load_dwordx16 s[4:19], s[0:1], 0
        s_load_dwordx8 s[20:27], s[0:1], 64
        s_load_dwordx2 s[28:29], s[0:1], 96
        s_load_dwordx2 s[30:31], s[0:1], 112
        v_lshrrev_b32 v4, 6, v0
        v_and_b32 v{vL}, 63, v0
        v_readfirstlane_b32 s{sW}, v4
        v_lshlrev_b32 v{vL16}, 4, v{vL}
        s_and_b32 s{sXCD}, s2, 7
        s_lshr_b32 s{sI}, s2, 3
        s_mul_i32 s{sP}, s{sXCD}, 28
        s_add_u32 s{sP}, s{sP}, s{sI}
        s_lshl_b32 s{sTB}, s{sXCD}, 3
        s_lshr_b32 s62, s{sI}, 2
        s_add_u32 s{sTB}, s{sTB}, s62
        s_and_b32 s{sQ}, s{sI}, 3
        s_lshr_b32 s{sCL}, s{sTB}, 1
        s_and_b32 s{sM}, s{sI}, 7''')
        s.srd(rWS, sWS, WS_BYTES)

    def ln_issue(s):
        s.comment('LN: wave <-> token 8b+w')
        s(f'''s_lshl_b32 s62, s2, 3
        s_add_u32 s62, s62, s{sW}
        s_mul_i32 s63, s62, 896
        s_add_u32 s{rX}, s{sX}, s63
        s_addc_u32 s{rX+1}, s{sX+1}, 0
        s_mov_b32 s{rX+2}, 896
        s_mov_b32 s{rX+3}, 0x20000''')
        s.srd(rD, sDS, 896)
        s(f'buffer_load_dwordx4 v[8:11], v{vL16}, {sr(rX)}, 0 offen')
        s(f'buffer_load_dwordx4 v[12:15], v{vL16}, {sr(rD)}, 0 offen')

    def pack_issue(s):
        s.comment('pack: one 32x32 weight tile per wave')
        l3, l4, lgo, lskip = s.lab('p3'), s.lab('p4'), s.lab('pg'), s.lab('ps')
        s(f'''s_mov_b32 s{rW}, s{sW1}
        s_mov_b32 s{rW+1}, s{sW1+1}
        s_mov_b32 s{rW+2}, {448*896}
        s_mov_b32 s{rW+3}, 0x20000
        s_mov_b32 s64, 896
        s_mov_b32 s67, 1024
        s_mov_b32 s68, 1024
        s_mov_b32 s69, 0
        s_mov_b32 s66, 0
        v_mov_b32 v16, 0
        v_mov_b32 v17, 0
        s_cmp_ge_u32 s62, 1960
        s_cbranch_scc1 {lskip}
        s_mov_b32 s69, 1
        s_cmp_ge_u32 s62, 1176
        s_cbranch_scc1 {l4}
        s_cmp_ge_u32 s62, 392
        s_cbranch_scc1 {l3}
        s_cmp_ge_u32 s62, 196
        s_cselect_b32 s{rW}, s{sW2}, s{sW1}
        s_cselect_b32 s{rW+1}, s{sW2+1}, s{sW1+1}
        s_cselect_b32 s70, 196, 0
        s_sub_u32 s71, s62, s70
        s_mul_i32 s72, s71, 4682
        s_lshr_b32 s72, s72, 16
        s_mul_i32 s73, s72, 14
        s_sub_u32 s73, s71, s73
        s_lshl_b32 s70, s70, 1
        s_mul_i32 s66, s73, 28
        s_add_u32 s66, s66, s72
        s_add_u32 s66, s66, s70
        s_mov_b32 s67, {14*1024}
        s_mov_b32 s68, 32
        s_branch {lgo}''')
        s.label(l3)
        s(f'''s_mov_b32 s{rW}, s{sW3}
        s_mov_b32 s{rW+1}, s{sW3+1}
        s_mov_b32 s{rW+2}, {448*3584}
        s_mov_b32 s64, 3584
        s_sub_u32 s71, s62, 392
        s_mul_i32 s72, s71, 1171
        s_lshr_b32 s72, s72, 16
        s_mul_i32 s73, s72, 56
        s_sub_u32 s73, s71, s73
        s_mul_i32 s66, s73, 28
        s_lshl_b32 s70, s72, 1
        s_add_u32 s66, s66, s70
        s_add_u32 s66, s66, 784
        s_branch {lgo}''')
        s.label(l4)
        s(f'''s_mov_b32 s{rW}, s{sW4}
        s_mov_b32 s{rW+1}, s{sW4+1}
        s_mov_b32 s{rW+2}, {1792*896}
        s_sub_u32 s71, s62, 1176
        s_mul_i32 s72, s71, 4682
        s_lshr_b32 s72, s72, 16
        s_mul_i32 s73, s72, 14
        s_sub_u32 s73, s71, s73
        s_mul_i32 s70, s72, 9363
        s_lshr_b32 s70, s70, 16
        s_mul_i32 s71, s70, 7
        s_sub_u32 s71, s72, s71
        s_mul_i32 s66, s70, 14
        s_add_u32 s66, s66, s73
        s_mul_i32 s66, s66, 14
        s_lshl_b32 s71, s71, 1
        s_add_u32 s66, s66, s71
        s_add_u32 s66, s66, 2352''')
        s.label(lgo)
        s(f'''s_mul_i32 s65, s72, s64
        s_lshl_b32 s65, s65, 5
        s_lshl_b32 s70, s73, 6
        s_add_u32 s65, s65, s70
        s_lshl_b32 s66, s66, 10
        v_lshrrev_b32 v4, 2, v{vL}
        v_mul_u32_u24 v4, s64, v4
        v_and_b32 v5, 3, v{vL}
        v_lshl_add_u32 v4, v5, 4, v4
        s_lshl_b32 s70, s{sW}, 11
        s_add_u32 s70, s70, {L_PK}
        s_mov_b32 m0, s70
        s_lshl_b32 s71, s64, 4
        s_add_u32 s71, s71, s65''')
        st = s.state()
        s(f'buffer_load_dwordx4 v4, {sr(rW)}, s65 offen lds')
        s(f's_add_u32 m0, s70, 1024')
        s(f'buffer_load_dwordx4 v4, {sr(rW)}, s71 offen lds')
        s(f'''v_bfe_u32 v6, v{vL}, 2, 2
        v_lshrrev_b32 v7, 4, v{vL}
        v_lshl_add_u32 v16, v7, 3, v6
        v_lshlrev_b32 v16, 6, v16
        v_lshl_add_u32 v16, v5, 3, v16
        v_lshrrev_b32 v17, 5, v{vL}
        v_lshl_add_u32 v17, v17, 3, v6
        v_lshlrev_b32 v17, 6, v17
        v_and_b32 v7, 1, v7
        v_lshl_add_u32 v17, v7, 5, v17
        v_and_b32 v6, 1, v5
        v_lshl_add_u32 v17, v6, 4, v17
        v_lshrrev_b32 v6, 1, v5
        v_lshl_add_u32 v17, v6, 3, v17
        s_cmp_eq_u32 s68, 32
        s_cselect_b64 vcc, -1, 0
        v_cndmask_b32 v16, v17, v16, vcc
        v_add_u32 v16, s70, v16
        v_add_u32 v17, s68, v16''')
        s.flush_hazards()
        s.label(lskip)
        s.vm = list(st[1]); s.pack_pending = True

    def ln_compute(s):
        if getattr(s, 'pack_pending', False): s.wait_vm(0, force=True)
        s.stamp(1)
        s('''v_mov_b32 v7, 0x3f803f80
        v_dot2_f32_bf16 v4, v8, v7, 0
        v_dot2_f32_bf16 v5, v8, v8, 0''')
        for i in (9, 10, 11): s(f'v_dot2_f32_bf16 v4, v{i}, v7, v4\nv_dot2_f32_bf16 v5, v{i}, v{i}, v5')
        for i in range(4):
            s(f'v_lshlrev_b32 v{20+2*i}, 16, v{8+i}\nv_and_b32 v{21+2*i}, 0xffff0000, v{8+i}')
        k = 0
        for m in ('row_shr:1', 'row_shr:2', 'row_shr:4', 'row_shr:8', 'row_bcast:15 row_mask:0xa', 'row_bcast:31 row_mask:0xc'):
            s(f'v_add_f32_dpp v4, v4, v4 {m}\nv_add_f32_dpp v5, v5, v5 {m}')
            if k < 4: s(f'v_lshlrev_b32 v{28+2*k}, 16, v{12+k}')
            else: s(f'v_and_b32 v{29+2*(k-4)}, 0xffff0000, v{12+k-4}')
            k += 1
        s(f'''v_readlane_b32 s70, v4, 63
        v_readlane_b32 s71, v5, 63
        v_and_b32 v33, 0xffff0000, v14
        v_and_b32 v35, 0xffff0000, v15
        v_mov_b32 v6, 0x3b124925
        v_mul_f32 v4, s70, v6
        v_mul_f32 v5, s71, v6
        v_fma_f32 v5, -v4, v4, v5
        v_max_f32 v5, 0, v5
        v_add_f32 v5, 0x3727c5ac, v5
        v_rsq_f32 v6, v5
        v_mul_f32 v7, -v4, v6''')
        for i in range(4):
            s(f'v_pk_fma_f32 {vr(36+2*i,2)}, {vr(20+2*i,2)}, v[6:7], v[6:7] op_sel:[0,0,1] op_sel_hi:[1,0,1]')
        for i in range(4): s(f'v_cvt_pk_bf16_f32 v{8+i}, v{36+2*i}, v{37+2*i}')
        s(f's_mul_i32 s70, s{sW}, {LNP}\nv_add_u32 v4, s70, v{vL16}\ns_mov_b32 exec_hi, 0x00ffffff')
        s(f'ds_write_b128 v4, v[8:11] offset:{L_LN}')
        for i in range(4): s(f'v_pk_fma_f32 {vr(36+2*i,2)}, {vr(36+2*i,2)}, {vr(28+2*i,2)}, {vr(20+2*i,2)}')
        for i in range(4): s(f'v_cvt_pk_bf16_f32 v{12+i}, v{36+2*i}, v{37+2*i}')
        s(f'ds_write_b128 v4, v[12:15] offset:{L_LN + 8*LNP}\ns_mov_b32 exec_hi, -1')
        s(f'''v_bfe_u32 v4, v{vL}, 2, 2
        v_mul_u32_u24 v4, {LNP}, v4
        v_lshrrev_b32 v5, 4, v{vL}
        v_lshl_add_u32 v4, v5, 5, v4
        v_and_b32 v5, 3, v{vL}
        v_lshl_add_u32 v4, v5, 3, v4
        s_lshl_b32 s70, s{sW}, 7
        v_add_u32 v4, s70, v4
        s_mul_i32 s70, s2, {UPITCH}
        s_lshl_b32 s71, s{sW}, 10
        s_add_u32 s70, s70, s71
        s_add_u32 s71, s70, {BB}
        s_add_u32 s70, s70, {UB}''')
        s.barrier()
        l7 = s.lab('ln7')
        s(f's_cmp_eq_u32 s{sW}, 7\ns_cbranch_scc1 {l7}')
        s(f'''ds_read_b64_tr_b16 v[8:9], v4 offset:{L_LN}
        ds_read_b64_tr_b16 v[10:11], v4 offset:{L_LN + 4*LNP}
        ds_read_b64_tr_b16 v[12:13], v4 offset:{L_LN + 8*LNP}
        ds_read_b64_tr_b16 v[14:15], v4 offset:{L_LN + 12*LNP}
        buffer_store_dwordx4 v[8:11], v{vL16}, {sr(rWS)}, s70 offen sc1
        buffer_store_dwordx4 v[12:15], v{vL16}, {sr(rWS)}, s71 offen sc1''')
        s.flush_hazards(); s.label(l7); s.vm = []; s.uncounted = True
        s.stamp(2)

    def pack_finish(s):
        lskip = s.lab('pf')
        s(f's_cmp_eq_u32 s69, 0\ns_cbranch_scc1 {lskip}')
        s(f'''ds_read_b64_tr_b16 v[20:21], v16
        ds_read_b64_tr_b16 v[22:23], v16 offset:256
        ds_read_b64_tr_b16 v[24:25], v17
        ds_read_b64_tr_b16 v[26:27], v17 offset:256
        s_add_u32 s67, s67, s66
        buffer_store_dwordx4 v[20:23], v{vL16}, {sr(rWS)}, s66 offen sc1
        buffer_store_dwordx4 v[24:27], v{vL16}, {sr(rWS)}, s67 offen sc1''')
        s.flush_hazards(); s.label(lskip); s.vm = []

    def kgen_issue(s):
        s.comment('Kgen parameter loads: thread <-> mode')
        s(f'''s_lshl_b32 s70, s{sP}, 10
        v_lshl_add_u32 v44, v0, 1, s70
        s_lshr_b32 s71, s{sW}, 2
        s_lshl_b32 s70, s{sP}, 1
        s_add_u32 s70, s70, s71
        s_lshl_b32 s70, s70, 1
        v_mov_b32 v45, s70
        global_load_ushort v46, v44, {sr(sLA,2)}
        global_load_ushort v47, v44, {sr(sAI,2)}
        global_load_ushort v48, v44, {sr(sCR,2)}
        global_load_ushort v49, v44, {sr(sCI,2)}
        global_load_ushort v50, v45, {sr(sDT,2)}''')

    def kgen_pre(s):
        s.comment('zero KT, K tails, u pad; gather addresses')
        s(f'''v_mov_b32 v64, 0
        v_mov_b32 v65, 0
        v_mov_b32 v66, 0
        v_mov_b32 v67, 0
        v_lshlrev_b32 v62, 4, v0
        v_and_b32 v63, 1023, v62
        v_add_u32 v63, {L_U}, v63
        ds_write_b128 v63, v[64:67]
        v_bfe_u32 v63, v0, 1, 2
        v_mul_u32_u24 v63, {KEO}, v63
        v_and_b32 v62, 16, v62
        v_add3_u32 v63, v63, v62, 0
        v_add_u32 v63, {L_KE + 4096}, v63
        ds_write_b128 v63, v[64:67]''')
        s(f'''v_and_b32 v62, 255, v0
        v_lshlrev_b32 v62, 3, v62
        v_sub_u32 v62, 2047, v62
        v_lshrrev_b32 v63, 8, v0
        v_mul_u32_u24 v63, {KTSZ}, v63
        v_add_u32 v63, {L_KT}, v63
        ds_write_b128 v63, v[64:67] offset:{768*16}
        s_mov_b32 s70, 0x10221820
        v_mov_b32 v64, 0x00261c24''')
        for t in range(9):
            d = 52 + t
            s(f'''v_subrev_u32 v65, {t}, v62
            v_cvt_f32_i32 v66, v65
            v_cvt_pk_bf16_f32 v66, v66, v66
            v_lshlrev_b32 v66, 16, v66
            v_cvt_i32_f32 v66, v66
            v_subrev_u32 v66, 1, v66
            v_and_b32 v67, 7, v66
            v_or_b32 v67, 0x0c0c0c00, v67
            v_perm_b32 v67, v64, s70, v67
            v_ashrrev_i32 v66, 3, v66
            v_lshl_add_u32 v66, v67, 4, v66''')
            if t >= 7:
                s(f'v_cmp_gt_i32 vcc, 1, v65\nv_mov_b32 v67, {640 if t == 7 else 768}\nv_cndmask_b32 v66, v66, v67, vcc')
            s(f'v_lshl_add_u32 v{d}, v66, 4, v63')

    def cmul(s, d, a, b, t):
        s(f'v_pk_mul_f32 {vr(t,2)}, {vr(a,2)}, {vr(b,2)} op_sel_hi:[1,0]')
        s(f'v_pk_fma_f32 {vr(d,2)}, {vr(a,2)}, {vr(b,2)}, {vr(t,2)} op_sel:[1,1,0] op_sel_hi:[0,1,1] neg_lo:[1,0,0]')

    def kgen(s):
        s.comment('Kgen')
        Z = lambda k: 62 + 2 * k
        Z128, R0, R1, T0, T1, PK = 80, 82, 84, 86, 88, 90
        BF, AF, ACC = 92, 108, 124
        s(f'''s_mov_b32 s70, {LOG2E}
        s_mov_b32 s71, {INV2PI}
        v_lshlrev_b32 v50, 16, v50
        v_lshlrev_b32 v46, 16, v46
        v_mul_f32 v50, s70, v50
        v_mul_f32 v46, s70, v46
        v_exp_f32 v50, v50
        v_exp_f32 v46, v46
        v_lshlrev_b32 v47, 16, v47
        v_lshlrev_b32 v48, 16, v48
        v_lshlrev_b32 v49, 16, v49
        v_cvt_pk_bf16_f32 v50, v50, v46
        v_and_b32 v46, 0xffff0000, v50
        v_lshlrev_b32 v50, 16, v50
        v_mul_f32 v46, v46, v50
        v_mul_f32 v47, v47, v50
        v_mul_f32 v46, s70, v46
        v_mul_f32 v47, s71, v47
        v_add_f32 v50, v50, v50
        v_mul_f32 v{R0}, v48, v50
        v_mul_f32 v{R0+1}, v49, v50
        s_mul_i32 s72, s{sW}, {16*KGP}
        s_add_u32 s72, s72, {L_KG}
        s_mov_b32 m0, s72''')
        for P, lit, d in ((8, '0x41000000', Z(8)), (128, '0x43000000', Z128), (1, None, Z(1))):
            if lit: s(f'v_mul_f32 v48, {lit}, v46\nv_mul_f32 v49, {lit}, v47\nv_exp_f32 v48, -v48\nv_fract_f32 v49, v49')
            else: s('v_exp_f32 v48, -v46\nv_fract_f32 v49, v47')
            s(f'v_cos_f32 v{d}, v49\nv_sin_f32 v{d+1}, v49\nv_pk_mul_f32 {vr(d,2)}, {vr(d,2)}, v[48:49] op_sel_hi:[1,0]')
        s(f'''v_and_b32 v44, 15, v{vL}
        v_mul_u32_u24 v44, {KGP}, v44
        v_lshrrev_b32 v45, 4, v{vL}
        v_lshl_add_u32 v44, v45, 4, v44
        v_add_u32 v44, s72, v44''')
        pk = [0]
        s.stamp(8)
        def put(row, src, neg=False):
            r = PK + (pk[0] & 1); pk[0] += 1
            s(f'v_cvt_pk_bf16_f32 v{r}, v{src}, {"-" if neg else ""}v{src+1}')
            s(f'ds_write_addtid_b32 v{r} offset:{row*KGP}')
        pre = [(Z(2), Z(1), Z(1)), (Z(3), Z(2), Z(1)), (Z(4), Z(2), Z(2)), (Z(5), Z(4), Z(1)), (Z(6), Z(4), Z(2)), (Z(7), Z(4), Z(3))]
        cur, nxt = R0, R1
        for j in range(16):
            if j < 15: s.cmul(nxt, cur, Z(8), T0)
            put(j, cur, neg=True)
            if j < len(pre): s.cmul(*pre[j], T1)
            cur, nxt = nxt, cur
        for ks in range(4): s(f'ds_read_b128 {vr(BF+4*ks)}, v44 offset:{64*ks}')
        s.stamp(9)
        def mf(tile):
            for ks in range(4):
                s(f'v_mfma_f32_16x16x32_bf16 {vr(ACC+4*tile)}, {vr(AF+4*ks)}, {vr(BF+4*ks)}, {vr(ACC+4*tile) if ks else 0}')
        def rd():
            for ks in range(4): s(f'ds_read_b128 {vr(AF+4*ks)}, v44 offset:{64*ks}')
        def chain(row0, phi, n):
            cur, nxt = Z(phi), R0
            for i in range(n):
                if i < n - 1: s.cmul(nxt, cur, Z128, T0)
                put(row0 + i, cur)
                cur, nxt = nxt, (R1 if nxt == R0 else R0)
        s(f'''s_lshr_b32 s70, s{sW}, 2
        s_mul_i32 s70, s70, {KTSZ}
        s_add_u32 s70, s70, {L_KT}
        v_lshrrev_b32 v47, 3, v{vL}
        v_add_u32 v47, s{sW}, v47
        v_and_b32 v47, 3, v47
        v_and_b32 v46, 15, v{vL}
        v_lshl_add_u32 v46, v45, 6, v46
        v_lshl_add_u32 v46, v46, 4, s70
        v_lshl_add_u32 v46, v47, 2, v46''')
        def wr(t):
            for r in range(4): s(f'ds_write_b32 v46, v{ACC+4*t+r} offset:{(16*t+r)*256}')
        chain(0, 8, 16); rd()
        chain(0, 4, 8); mf(0); chain(8, 2, 4); wr(0); chain(12, 6, 4); rd()
        chain(0, 1, 2); chain(2, 3, 2); mf(1); chain(4, 5, 2); chain(6, 7, 2); wr(1)
        s(f'v_mov_b32 v{T1}, 0x3f80\nds_write_addtid_b32 v{T1} offset:{8*KGP}')
        rd()
        mf(2); wr(2)
        s.barrier()
        s.stamp(3)
        for t in range(9): s(f'ds_read_b128 {vr(64+4*t)}, v{52+t}')
        s(f'''v_and_b32 v44, 255, v0
        v_lshlrev_b32 v44, 4, v44
        v_lshrrev_b32 v45, 8, v0
        v_mul_u32_u24 v45, {KECH}, v45
        v_add3_u32 v44, v44, v45, 0
        v_add_u32 v44, {L_KE}, v44''')
        for t in range(9):
            s(f'v_pk_add_f32 {vr(64+4*t,2)}, {vr(64+4*t,2)}, {vr(66+4*t,2)}')
            if t: s(f'v_add_f32 v{60+4*t}, v{60+4*t}, v{61+4*t}')
        s('v_add_f32 v96, v96, v97')
        for i in range(4): s(f'v_cvt_pk_bf16_f32 v{100+i}, v{64+8*i}, v{68+8*i}')
        s('ds_write_b128 v44, v[100:103]')
        for i in range(4): s(f'v_cvt_pk_bf16_f32 v{104+i}, v{68+8*i}, v{72+8*i}')
        s(f'ds_write_b128 v44, v[104:107] offset:{KEO}')

    def conv_addr(s):
        s.comment('conv addresses')
        s(f'''s_and_b32 s70, s{sW}, 3
        s_lshr_b32 s71, s{sW}, 2
        v_and_b32 v13, 15, v{vL}
        v_lshrrev_b32 v14, 4, v{vL}
        v_lshrrev_b32 v15, 1, v13
        v_lshlrev_b32 v4, 2, v14
        v_sub_u32 v4, v4, v15
        s_lshl_b32 s72, s70, 5
        s_sub_u32 s72, {1015 - 144}, s72
        v_add_u32 v4, s72, v4
        v_and_b32 v15, 1, v13
        v_xor_b32 v15, 1, v15
        v_mul_u32_u24 v15, {KEO}, v15
        v_lshl_add_u32 v4, v4, 2, v15
        s_mul_i32 s72, s71, {KECH}
        s_add_u32 s72, s72, {L_KE}
        v_add_u32 v4, s72, v4
        v_subrev_u32 v5, 1024, v4
        v_subrev_u32 v6, 2048, v4
        v_subrev_u32 v7, 3072, v4''')
        for e in range(2):
            s(f'''s_lshl_b32 s72, s70, 3
            s_sub_u32 s72, {30 - 4*e}, s72
            v_lshl_add_u32 v15, v13, 1, v14
            v_add_u32 v15, s72, v15
            v_bfe_u32 v16, v15, 3, 1
            v_xor_b32 v16, s71, v16
            v_lshlrev_b32 v15, 5, v15
            v_lshl_add_u32 v15, v16, 4, v15
            v_add_u32 v{8+e}, {L_U}, v15''')
        s(f'''v_lshrrev_b32 v15, 1, v0
        v_bfe_u32 v16, v0, 4, 1
        v_xor_b32 v16, v16, v0
        v_and_b32 v16, 1, v16
        v_mul_u32_u24 v15, {UPITCH}, v15
        v_lshl_add_u32 v10, v16, 4, v15
        s_lshl_b32 s72, s{sW}, 5
        v_lshl_add_u32 v15, v13, 1, s72
        v_lshrrev_b32 v16, 1, v14
        v_add_u32 v15, v15, v16
        v_mul_u32_u24 v15, {UPITCH}, v15
        v_and_b32 v16, 1, v14
        v_lshl_add_u32 v11, v16, 3, v15
        v_lshlrev_b32 v12, 6, v13
        v_lshl_add_u32 v12, v14, 4, v12
        s_lshl_b32 s74, s{sP}, 5
        s_add_u32 s75, s74, {BB}
        s_add_u32 s74, s74, {UB}
        s_mul_i32 s76, s{sP}, {HPITCH}
        s_lshl_b32 s72, s{sW}, 10
        s_add_u32 s76, s76, s72
        s_add_u32 s76, s76, {HP + 128}
        s_add_u32 s77, s72, {L_U + 1024}''')

    def u_issue(s):
        s(f's_mov_b32 m0, s77')
        s.h_u = s(f'buffer_load_dwordx4 v10, {sr(rWS)}, s74 offen sc1 lds')
        s(f'buffer_load_dwordx2 v[16:17], v11, {sr(rWS)}, s75 offen sc1')
        s(f'buffer_load_dwordx2 v[18:19], v11, {sr(rWS)}, s75 offen offset:16 sc1')

    def conv(s, extra=None):
        A, B, ACC = 28, 60, 92
        def rdA(slot, e, a):
            off = 16 * (1 - e) + 128 * (1 - (a & 1))
            s(f'ds_read2_b32 {vr(A+4*slot,2)}, v{4+(a>>1)} offset0:{off} offset1:{off+1}')
            s(f'ds_read2_b32 {vr(A+4*slot+2,2)}, v{4+(a>>1)} offset0:{off+2} offset1:{off+3}')
        def rdB(e, b): s(f'ds_read_b128 {vr(B+4*b)}, v{8+e} offset:{1024*b}')
        s.barrier()
        s.stamp(4)
        for a in range(8): rdA(a, 0, a)
        s.wait(s.h_u); s.barrier()
        s.stamp(5)
        for b in range(8): rdB(0, b)
        s(f's_lshl_b32 s72, s{sW}, 10\nv_add_u32 v13, s72, v{vL16}')
        s(f's_lshl_b32 s73, s{sW}, 13\nv_add_u32 v14, s73, v{vL16}')
        ex = list(extra or [])
        for b in range(8):
            for a in range(8 - b):
                s(f'v_mfma_f32_16x16x32_bf16 {vr(ACC+4*(a+b))}, {vr(A+4*a)}, {vr(B+4*b)}, {vr(ACC+4*(a+b)) if b else 0}')
                if ex: ex.pop(0)()
            rdA(7 - b, 1, b); rdB(1, b)
            if b == 1:
                for i in range(4): s(f'v_lshlrev_b32 v{20+2*i}, 16, v{16+i}\nv_and_b32 v{21+2*i}, 0xffff0000, v{16+i}')
        for nu in range(8):
            for a in range(nu + 1):
                s(f'v_mfma_f32_16x16x32_bf16 {vr(ACC+4*nu)}, {vr(A+4*(7-a))}, {vr(B+4*(nu-a))}, {vr(ACC+4*nu)}')
                if ex: ex.pop(0)()
            if nu >= 3: s(f'ds_write_b128 v13, {vr(ACC+4*(nu-3))} offset:{L_Y + 8192*(nu-3)}')
            if nu >= 6: s(f'ds_write_b128 v13, {vr(ACC+4*(nu-1))} offset:{L_Y + 8192*(nu-1)}')
        while ex: ex.pop(0)()
        s(f'ds_write_b128 v13, {vr(ACC+4*7)} offset:{L_Y + 8192*7}')
        s.barrier()
        s.stamp(6)
        for i in range(8): s(f'ds_read_b128 {vr(A+4*i)}, v14 offset:{L_Y + 1024*i}')
        for i in range(8):
            c = i >> 2
            for h in range(2): s(f'v_pk_add_f32 {vr(20+4*c+2*h,2)}, {vr(20+4*c+2*h,2)}, {vr(A+4*i+2*h,2)}')
        for r in range(4): s(f'v_cvt_pk_bf16_f32 v{16+r}, v{20+r}, v{24+r}')
        s(f'buffer_store_dwordx4 v[16:19], v12, {sr(rWS)}, s76 offen sc1')
        s.stamp(7)

def kd(name):
    return f'''.amdhsa_kernel {name}
  .amdhsa_next_free_vgpr 256
  .amdhsa_next_free_sgpr 102
  .amdhsa_accum_offset 256
  .amdhsa_group_segment_fixed_size 0
  .amdhsa_kernarg_size 120
  .amdhsa_user_sgpr_count 2
  .amdhsa_user_sgpr_kernarg_segment_ptr 1
  .amdhsa_system_sgpr_workgroup_id_x 1
.end_amdhsa_kernel
'''
def head(name): return f'.globl {name}\n.p2align 8\n.type {name},@function\n{name}:\n'

def k1(stamps):
    s = G(); s.stamps = stamps
    s.entry('Lend1'); s.ln_issue(); s.pack_issue()
    s(f'''v_mov_b32 v20, 0
    v_mov_b32 v21, 0
    v_mov_b32 v22, 0
    v_mov_b32 v23, 0
    v_and_b32 v24, 0xf0, v{vL16}
    s_lshl_b32 s70, s2, 8
    s_add_u32 s70, s70, {FL}
    buffer_store_dwordx4 v[20:23], v24, {sr(rWS)}, s70 offen''')
    s.ln_compute(); s.pack_finish(); s.dump_stamps()
    s.label('Lend1'); s('s_endpgm')
    return s.text()

def k2(stamps):
    s = G(); s.stamps = stamps
    s.entry('Lend2')
    s(f's_cmp_ge_u32 s{sI}, 28\ns_cbranch_scc1 Lend2')
    s.kgen_issue(); s.conv_addr(); s.u_issue(); s.kgen_pre(); s.barrier(); s.stamp(2); s.kgen(); s.conv(); s.dump_stamps()
    s.label('Lend2'); s('s_endpgm')
    return s.text()

def build(mode='split', stamps=False):
    ks = [('k1_kernel', k1), ('k2_kernel', k2)]
    try:
        from gen3 import k3
        ks.append(('k3_kernel', k3))
    except ImportError: pass
    t = ''.join(f'; @launch kernel={n} grid=(256,1,1) block=(512,1,1) lds={LDS_BYTES}\n' for n, _ in ks)
    t += '.amdgcn_target "amdgcn-amd-amdhsa--gfx950"\n.text\n'
    for n, f in ks: t += head(n) + f(stamps == n or stamps is True)
    t += '.section .rodata,"a"\n'
    for n, _ in ks: t += '.p2align 6\n' + kd(n)
    return t

if __name__ == '__main__':
    sys.stdout.write(build(*(sys.argv[1:2] or ['split']), stamps=(sys.argv[2] if len(sys.argv) > 2 else False)))
```

```python
import sys
sys.path.insert(0, 'gen')
import gen
base = gen.build('split')
def add(kernels, front):
    lines = base.split('\n')
    n = sum(1 for l in lines if l.startswith('; @launch'))
    L = [f'; @launch kernel={k[0]} grid=({k[1]},1,1) block=({k[2]},1,1) lds={k[3]}' for k in kernels]
    head = (L + lines[:n]) if front else (lines[:n] + L)
    rest = '\n'.join(lines[n:])
    seen = {}
    for k in kernels: seen[k[0]] = k
    code = ''.join(gen.head(k[0]) + k[4] + '    s_endpgm\n' for k in seen.values())
    rest = rest.replace('.section .rodata,"a"\n', code + '.section .rodata,"a"\n' + ''.join('.p2align 6\n' + gen.kd(k[0]) for k in seen.values()))
    return '\n'.join(head) + '\n' + rest
def rd(off, n):
    b = f"""    s_cmp_ge_u32 s2, 256
    s_cbranch_scc1 Lrd_end
    s_load_dwordx2 s[4:5], s[0:1], 112
    v_lshlrev_b32 v1, 4, v0
    s_mul_i32 s16, s2, {n*4096}
    s_add_u32 s16, s16, {off}
    s_waitcnt lgkmcnt(0)
    s_mov_b32 s8, s4
    s_mov_b32 s9, s5
    s_mov_b32 s10, 0x10000000
    s_mov_b32 s11, 0x20000
"""
    for i in range(n): b += f"    buffer_load_dwordx4 v[{4+4*i}:{7+4*i}], v1, s[8:11], s16 offen\n    s_add_u32 s16, s16, 4096\n"
    return b + "    s_waitcnt vmcnt(0)\nLrd_end:\n"
e = ('e_kernel', 256, 256, 0, '')
open('v_front4.s', 'w').write(add([e] * 4, True))
open('v_back4.s', 'w').write(add([e] * 4, False))
open('v_rd_lo.s', 'w').write(add([('r_kernel', 256, 256, 0, rd(0x4000000, 32))], True))
open('v_rd_hi.s', 'w').write(add([('r_kernel', 256, 256, 0, rd(0xE000000, 32))], True))
open('v_base.s', 'w').write(base)
```

```python
import sys
sys.path.insert(0, 'gen')
import gen
base = gen.build('split')
def add(kernels, front):
    lines = base.split('\n')
    n = sum(1 for l in lines if l.startswith('; @launch'))
    L = [f'; @launch kernel={k[0]} grid=({k[1]},1,1) block=({k[2]},1,1) lds={k[3]}' for k in kernels]
    head = (L + lines[:n]) if front else (lines[:n] + L)
    rest = '\n'.join(lines[n:])
    seen = {}
    for k in kernels: seen[k[0]] = k
    code = ''.join(gen.head(k[0]) + k[4] + '    s_endpgm\n' for k in seen.values())
    rest = rest.replace('.section .rodata,"a"\n', code + '.section .rodata,"a"\n' + ''.join('.p2align 6\n' + gen.kd(k[0]) for k in seen.values()))
    return '\n'.join(head) + '\n' + rest
def rd(off, n):
    b = f"""    s_cmp_ge_u32 s2, 256
    s_cbranch_scc1 Lrd_end
    s_load_dwordx2 s[4:5], s[0:1], 112
    v_lshlrev_b32 v1, 4, v0
    s_mul_i32 s16, s2, {n*4096}
    s_add_u32 s16, s16, {off}
    s_waitcnt lgkmcnt(0)
    s_mov_b32 s8, s4
    s_mov_b32 s9, s5
    s_mov_b32 s10, 0x10000000
    s_mov_b32 s11, 0x20000
"""
    for i in range(n): b += f"    buffer_load_dwordx4 v[{4+4*i}:{7+4*i}], v1, s[8:11], s16 offen\n    s_add_u32 s16, s16, 4096\n"
    return b + "    s_waitcnt vmcnt(0)\nLrd_end:\n"
e = ('e_kernel', 256, 256, 0, '')
open('v_front4.s', 'w').write(add([e] * 4, True))
open('v_back4.s', 'w').write(add([e] * 4, False))
open('v_rd_lo.s', 'w').write(add([('r_kernel', 256, 256, 0, rd(0x4000000, 32))], True))
open('v_rd_hi.s', 'w').write(add([('r_kernel', 256, 256, 0, rd(0xE000000, 32))], True))
open('v_base.s', 'w').write(base)
def chase(slot, off, n, stride, size):
    b = f"""    s_cmp_ge_u32 s2, 1
    s_cbranch_scc1 Lrd_end
    s_load_dwordx2 s[4:5], s[0:1], {slot}
    v_mov_b32 v1, 0
    s_mov_b32 s16, {off}
    s_mov_b32 s17, {n}
    s_waitcnt lgkmcnt(0)
    s_mov_b32 s8, s4
    s_mov_b32 s9, s5
    s_mov_b32 s10, {size}
    s_mov_b32 s11, 0x20000
Lch:
    buffer_load_dword v2, v1, s[8:11], s16 offen
    s_add_u32 s16, s16, {stride}
    s_sub_u32 s17, s17, 1
    s_cmp_lg_u32 s17, 0
    s_waitcnt vmcnt(0)
    s_cbranch_scc1 Lch
Lrd_end:
"""
    return b
open('v_ch_wslo.s', 'w').write(add([('r_kernel', 1, 64, 0, chase(112, 0x4000000, 100, 4224, 0x10000000))], True))
open('v_ch_wshi.s', 'w').write(add([('r_kernel', 1, 64, 0, chase(112, 0xFE00000, 100, 4224, 0x10000000))], True))
open('v_ch_bx.s', 'w').write(add([('r_kernel', 1, 64, 0, chase(56, 0, 100, 4224, 1835008))], True))
open('v_ch_same.s', 'w').write(add([('r_kernel', 1, 64, 0, chase(56, 0, 100, 0, 1835008))], True))
open('v_ch_out.s', 'w').write(add([('r_kernel', 1, 64, 0, chase(96, 0, 100, 4224, 1835008))], True))
open('v_ch_tlb.s', 'w').write(add([('r_kernel', 1, 64, 0, chase(112, 0x3000000, 100, 0x200080, 0x10000000))], True))
```

```python
import sys, os, struct
sys.path.insert(0, os.path.dirname(os.path.abspath(__file__)))
from dsl import Asm, Ins

NAME = 'sequential_preLN__ssm_conv_s4d__mixer_s_mlp__prompt'
W1P, W2P, W3P, W4P = 0, 392 * 1024, 784 * 1024, 2352 * 1024
UB, BB, UPITCH = 0x400000, 0x600000, 7296
HP, HPITCH = 0x800000, 8320
GX, X1, PX = 0xA00000, 0xC00000, 0x1000000
FL = 0x2000000
F3, F4, F5 = FL, FL + 0x2000, FL + 0x4000
FA, FB, FH, EP = FL + 0x8000, FL + 0x9000, FL + 0xA000, FL + 0x10000
TS = 0x3000000
WS_BYTES = 0x4000000
L_LN, LNP = 0, 960
L_PK = 15360
L_KG, KGP = 31744, 288
L_Y = 0
L_KT, KTSZ = 68608, 12320
L_KE, KEO, KECH = 93312, 4160, 8320
L_U = 109952
L_HI, L_GI, L_XI, L_HID, L_ST = 106880, 0, 28672, 106880, 149888
L_STA, L_STB, L_ST3, L_FAST, L_JUNK, L_CS = L_ST, L_ST + 768, L_ST + 1152, L_ST + 2176, L_ST + 2304, L_ST + 2560
LDS_BYTES = 153600
LOG2E, INV2PI, EPS, INVD = 0x3fb8aa3b, 0x3e22f983, 0x3727c5ac, 0x3b124925
C1 = -2.0 * 0.7978845608028654 * 1.4426950408889634
def fh(x): return '0x%08x' % struct.unpack('<I', struct.pack('<f', x))[0]
SPIN = 1 << 18
sX, sLA, sAI, sCR, sCI, sDT, sDS = 4, 6, 8, 10, 12, 14, 16
sW1, sW2, sW3, sW4, sOUT, sWS = 20, 22, 24, 26, 28, 30
rWS, rX, rD, rW, rG = 32, 36, 40, 44, 48
sW, sXCD, sI, sP, sTAG, sTB, sQ, sCL, sM, sFAST = range(52, 62)
sPD0, sPD1, sUO, sBO, sFO, sPACT = range(62, 68)
sUS, sBS, sHD, sUM = 74, 75, 76, 77
sM0, sM1, sCT, sTX = 78, 80, 82, 83
sA1, sA2, sA3, sA4 = 84, 85, 86, 87
def sr(n, k=4): return f's[{n}:{n+k-1}]'
def vr(n, k=4): return f'v[{n}:{n+k-1}]'
vL16, vL = 1, 2
vW1, vW2, vW3, vW4A, vW4B = 144, 200, 52, 200, 52
vCS3, vAC3, vST3, vRES = 164, 180, 196, 36

class Cfg:
    nb2 = 5
    n1 = 5
    n2 = 15
    touch_at = 7

def zipl(*streams):
    out = []; n = max(len(x) for x in streams)
    for i in range(n):
        for x in streams:
            if i < len(x): out.append(x[i])
    return out

class K(Asm):
    def __init__(s, stamps, cfg):
        super().__init__(); s.stamps = stamps; s.cfg = cfg; s.ool = []; s.nlab = 0; s.wcnt = {}
    def lab(s, p): s.nlab += 1; return f'L{p}{s.nlab}'
    def srd(s, r, ptr, size):
        s(f's_mov_b32 s{r}, s{ptr}\ns_mov_b32 s{r+1}, s{ptr+1}\ns_mov_b32 s{r+2}, {size}\ns_mov_b32 s{r+3}, 0x20000')
    def stamp(s, idx, real=False):
        if not s.stamps: return
        s(f's_mem{"real" if real else ""}time s[98:99]'); s.wait_lg(0)
        s(f'v_writelane_b32 v3, s98, {idx}')
    def dump_stamps(s):
        if not s.stamps: return
        s.stamp(61, True)
        s(f's_lshl_b32 s98, s2, 3\ns_add_u32 s98, s98, s{sW}\ns_lshl_b32 s98, s98, 8\ns_add_u32 s98, s98, {TS}')
        s(f'v_lshlrev_b32 v4, 2, v{vL}\nbuffer_store_dword v3, v4, {sr(rWS)}, s98 offen')
    def cond(s, cmp_skip, body):
        l = s.lab('c')
        s(cmp_skip); s.flush_hazards(); s(f's_cbranch_scc1 {l}')
        vm, lg = list(s.vm), list(s.lg)
        body(); s._wait(lg=0); s.flush_hazards(); s.label(l)
        s.vm, s.lg = vm, lg
    def xstore(s, lines):
        slow, back = s.lab('xs'), s.lab('xb')
        s(f's_cmp_eq_u32 s{sFAST}, 0')
        for l in lines:
            ins = Ins(l); t = ins.rd | ins.wr
            hs = [x[0] for x in s.vm if x[1] & t] + [x[0] for x in s.lg if x[1] & t]
            if hs: s.wait(*hs)
        s(f's_cbranch_scc1 {slow}')
        for l in lines: s(l)
        s.label(back)
        s.ool.append(f'{slow}:\n    s_nop 7\n    s_nop 3\n' + ''.join(f'    {l} sc1\n' for l in lines) + f'    s_branch {back}\n')
    def wload(s, reg0, sbase, i):
        assert s.wcnt.get(sbase, 0) == i, (sbase, i, s.wcnt)
        s.wcnt[sbase] = i + 1
        if i % 4 == 0 and i: s(f's_add_u32 s{sbase}, s{sbase}, 4096')
        s(f'buffer_load_dwordx4 {vr(reg0 + 4*i)}, v{vL16}, {sr(rG)}, s{sbase} offen offset:{(i % 4) * 1024}')
    def wl(s, which, a, b):
        reg0, sb = {1: (vW1, sA1), 2: (vW2, sA2), 3: (vW3, sA3), 4: (vW4A, sA4), 5: (vW4B - 56, sA4)}[which]
        return [(lambda i=i: s.wload(reg0, sb, i)) for i in range(a, b)]
    def run(s, l):
        for f in l: f()
    def poll_issue(s, vdst, vaddr, soff): return s(f'buffer_load_dword v{vdst}, v{vaddr}, {sr(rWS)}, {soff} offen sc1')
    def poll_check(s, vdst, vaddr, soff, sleep=0):
        retry, back = s.lab('pr'), s.lab('pb')
        s(f'v_subrev_u32 v{vdst}, s{sTAG}, v{vdst}\nv_cmp_lt_u32 vcc, 15, v{vdst}\ns_mov_b32 s97, 0\ns_cbranch_vccnz {retry}')
        s.label(back)
        s.ool.append(f'''{retry}:
''' + (f'    s_sleep {sleep}\n' if sleep else '') + f'''    buffer_load_dword v{vdst}, v{vaddr}, {sr(rWS)}, {soff} offen sc1
    s_add_u32 s97, s97, 1
    s_cmp_gt_u32 s97, {SPIN}
    s_waitcnt vmcnt(0)
    s_cbranch_scc1 {back}
    v_subrev_u32 v{vdst}, s{sTAG}, v{vdst}
    v_cmp_lt_u32 vcc, 15, v{vdst}
    s_nop 1
    s_cbranch_vccnz {retry}
    s_branch {back}
''')
    def poll(s, vdst, vaddr, soff, lo=None, hi=None, sleep=0):
        if lo is not None: s(f's_mov_b32 exec_lo, {lo}\ns_mov_b32 exec_hi, {hi}')
        s.poll_issue(vdst, vaddr, soff); s.poll_check(vdst, vaddr, soff, sleep)
        if lo is not None: s('s_mov_b64 exec, -1')
    def flag(s, soff, vtmp=4):
        s(f'v_mov_b32 v{vtmp}, s{sTAG}')
        s.wait_vm(0, force=True)
        s('s_mov_b64 exec, 1')
        s.xstore([f'buffer_store_dword v{vtmp}, off, {sr(rWS)}, s{soff}'])
        s('s_mov_b64 exec, -1')
    def gflag(s, wave, soff, sval, vtmp):
        s.cond(f's_cmp_lg_u32 s{sW}, {wave}', lambda: s(f'v_mov_b32 v{vtmp}, s{sval}\ns_mov_b64 exec, 1\nbuffer_store_dword v{vtmp}, off, {sr(rWS)}, s{soff} sc1\ns_mov_b64 exec, -1'))
    def dma(s, a, b, ssrc, ldsbase):
        h = None
        for i in range(a, b):
            if i % 4 == 0:
                if i: s(f's_add_u32 s{ssrc}, s{ssrc}, 4096')
                s(f's_mov_b32 m0, {ldsbase + i * 1024}')
            h = s(f'buffer_load_dwordx4 v{vL16}, {sr(rWS)}, s{ssrc} offen offset:{(i % 4) * 1024} sc1 lds')
        return h
    def pos(s, d, src, t):
        s(f'''v_and_b32 v{t}, 3, v{src}
        v_lshlrev_b32 v{t}, 2, v{t}
        v_and_or_b32 v{t}, v{src}, -16, v{t}
        v_bfe_u32 v{d}, v{src}, 2, 2
        v_or_b32 v{d}, v{d}, v{t}
        v_lshlrev_b32 v{d}, 4, v{d}''')

    def entry(s):
        s('s_cmp_ge_u32 s2, 256\ns_cbranch_scc1 Lend')
        s(f'''s_load_dwordx16 s[4:19], s[0:1], 0
        s_load_dwordx8 s[20:27], s[0:1], 64
        s_load_dwordx2 s[28:29], s[0:1], 96
        s_load_dwordx2 s[30:31], s[0:1], 112''')
        if s.stamps: s('s_memtime s[100:101]\ns_memrealtime s[96:97]\nv_mov_b32 v3, 0')
        s(f'''v_lshrrev_b32 v4, 6, v0
        v_and_b32 v{vL}, 63, v0
        v_readfirstlane_b32 s{sW}, v4
        v_lshlrev_b32 v{vL16}, 4, v{vL}
        s_and_b32 s{sXCD}, s2, 7
        s_lshr_b32 s{sI}, s2, 3
        s_mul_i32 s{sP}, s{sXCD}, 28
        s_add_u32 s{sP}, s{sP}, s{sI}
        s_min_u32 s{sP}, s{sP}, 223
        s_lshl_b32 s{sTB}, s{sXCD}, 3
        s_lshr_b32 s68, s{sI}, 2
        s_add_u32 s{sTB}, s{sTB}, s68
        s_and_b32 s{sQ}, s{sI}, 3
        s_lshr_b32 s{sCL}, s{sTB}, 1
        s_and_b32 s{sM}, s{sI}, 7
        s_lshl_b32 s68, s2, 3
        s_add_u32 s68, s68, s{sW}
        s_mul_i32 s69, s68, 896
        s_lshl_b32 s70, s{sP}, 10
        v_lshl_add_u32 v44, v0, 1, s70
        s_lshr_b32 s71, s{sW}, 2
        s_lshl_b32 s70, s{sP}, 1
        s_add_u32 s70, s70, s71
        s_lshl_b32 s70, s70, 1
        v_mov_b32 v45, s70
        v_mov_b32 v20, -1
        v_mov_b32 v21, -1
        v_mov_b32 v22, -1
        v_mov_b32 v23, -1
        v_lshlrev_b32 v24, 4, v0
        s_lshl_b32 s70, s2, 13
        s_add_u32 s70, s70, {HP}
        s_mov_b32 s{rX+2}, 896
        s_mov_b32 s{rX+3}, 0x20000
        s_add_u32 s{rX}, s{sX}, s69
        s_addc_u32 s{rX+1}, s{sX+1}, 0''')
        s(f'buffer_load_dwordx4 v[8:11], v{vL16}, {sr(rX)}, 0 offen')
        if s.stamps: s('v_writelane_b32 v3, s100, 0\nv_writelane_b32 v3, s96, 60')
        s.stamp(1)
        s.srd(rD, sDS, 896)
        s(f'''buffer_load_dwordx4 v[12:15], v{vL16}, {sr(rD)}, 0 offen
        s_add_u32 s72, s{sWS}, {EP}
        s_addc_u32 s73, s{sWS+1}, 0
        s_load_dword s{sTAG}, s[72:73], 0
        global_load_ushort v46, v44, {sr(sLA,2)}
        global_load_ushort v47, v44, {sr(sAI,2)}
        global_load_ushort v48, v44, {sr(sCR,2)}
        global_load_ushort v49, v44, {sr(sCI,2)}
        global_load_ushort v50, v45, {sr(sDT,2)}''')
        s.srd(rWS, sWS, WS_BYTES)
        s(f'''s_mov_b32 s{rG}, s{sWS}
        s_mov_b32 s{rG+1}, s{sWS+1}
        s_cmp_eq_u32 s{sW}, 7
        s_cselect_b32 s{rG+2}, 0, {WS_BYTES}
        s_mov_b32 s{rG+3}, 0x20000
        buffer_store_dwordx4 v[20:23], v24, {sr(rWS)}, s70 offen sc1''')

    def pack_issue(s):
        s.comment('weight packing: one 32x32 tile per wave, U = 256 w + 32 xcd + i')
        l3, l4, lgo = s.lab('p3'), s.lab('p4'), s.lab('pg')
        s(f'''s_lshl_b32 s68, s{sW}, 8
        s_lshl_b32 s69, s{sXCD}, 5
        s_add_u32 s68, s68, s69
        s_add_u32 s68, s68, s{sI}
        s_mov_b32 s{rW+3}, 0x20000
        s_mov_b32 s88, 896
        s_mov_b32 s{sPD1}, 1024
        s_mov_b32 s89, 1024
        s_mov_b32 s{sPACT}, 1
        s_cmp_ge_u32 s68, 1176
        s_cbranch_scc1 {l4}
        s_cmp_ge_u32 s68, 392
        s_cbranch_scc1 {l3}
        s_mov_b32 s{rW+2}, {448*896}
        s_cmp_ge_u32 s68, 196
        s_cselect_b32 s{rW}, s{sW2}, s{sW1}
        s_cselect_b32 s{rW+1}, s{sW2+1}, s{sW1+1}
        s_cselect_b32 s70, 196, 0
        s_sub_u32 s71, s68, s70
        s_mul_i32 s72, s71, 4682
        s_lshr_b32 s72, s72, 16
        s_mul_i32 s73, s72, 14
        s_sub_u32 s73, s71, s73
        s_lshl_b32 s70, s70, 1
        s_mul_i32 s{sPD0}, s73, 28
        s_add_u32 s{sPD0}, s{sPD0}, s72
        s_add_u32 s{sPD0}, s{sPD0}, s70
        s_mov_b32 s{sPD1}, {14*1024}
        s_mov_b32 s89, 32
        s_branch {lgo}''')
        s.label(l3)
        s(f'''s_mov_b32 s{rW}, s{sW3}
        s_mov_b32 s{rW+1}, s{sW3+1}
        s_mov_b32 s{rW+2}, {448*3584}
        s_mov_b32 s88, 3584
        s_sub_u32 s71, s68, 392
        s_mul_i32 s72, s71, 1171
        s_lshr_b32 s72, s72, 16
        s_mul_i32 s73, s72, 56
        s_sub_u32 s73, s71, s73
        s_mul_i32 s{sPD0}, s73, 28
        s_lshl_b32 s70, s72, 1
        s_add_u32 s{sPD0}, s{sPD0}, s70
        s_add_u32 s{sPD0}, s{sPD0}, 784
        s_branch {lgo}''')
        s.label(l4)
        s(f'''s_mov_b32 s{rW}, s{sW4}
        s_mov_b32 s{rW+1}, s{sW4+1}
        s_cmp_lt_u32 s68, 1960
        s_cselect_b32 s{rW+2}, {1792*896}, 0
        s_cselect_b32 s{sPACT}, 1, 0
        s_min_u32 s68, s68, 1959
        s_sub_u32 s71, s68, 1176
        s_mul_i32 s72, s71, 4682
        s_lshr_b32 s72, s72, 16
        s_mul_i32 s73, s72, 14
        s_sub_u32 s73, s71, s73
        s_mul_i32 s70, s72, 9363
        s_lshr_b32 s70, s70, 16
        s_mul_i32 s71, s70, 7
        s_sub_u32 s71, s72, s71
        s_mul_i32 s{sPD0}, s70, 14
        s_add_u32 s{sPD0}, s{sPD0}, s73
        s_mul_i32 s{sPD0}, s{sPD0}, 14
        s_lshl_b32 s71, s71, 1
        s_add_u32 s{sPD0}, s{sPD0}, s71
        s_add_u32 s{sPD0}, s{sPD0}, 2352''')
        s.label(lgo)
        s(f'''s_mul_i32 s69, s72, s88
        s_lshl_b32 s69, s69, 5
        s_lshl_b32 s70, s73, 6
        s_add_u32 s69, s69, s70
        s_lshl_b32 s{sPD0}, s{sPD0}, 10
        s_add_u32 s{sPD1}, s{sPD1}, s{sPD0}
        v_lshrrev_b32 v4, 2, v{vL}
        v_mul_u32_u24 v4, s88, v4
        v_and_b32 v5, 3, v{vL}
        v_lshl_add_u32 v4, v5, 4, v4
        s_lshl_b32 s70, s{sW}, 11
        s_add_u32 s70, s70, {L_PK}
        s_mov_b32 m0, s70
        s_lshl_b32 s71, s88, 4
        s_add_u32 s71, s71, s69
        buffer_load_dwordx4 v4, {sr(rW)}, s69 offen lds
        s_add_u32 m0, s70, 1024''')
        s.h_pack = s(f'buffer_load_dwordx4 v4, {sr(rW)}, s71 offen lds')
        s(f'''v_bfe_u32 v6, v{vL}, 2, 2
        v_lshrrev_b32 v7, 4, v{vL}
        v_lshl_add_u32 v16, v7, 3, v6
        v_lshlrev_b32 v16, 6, v16
        v_lshl_add_u32 v16, v5, 3, v16
        v_lshrrev_b32 v17, 5, v{vL}
        v_lshl_add_u32 v17, v17, 3, v6
        v_lshlrev_b32 v17, 6, v17
        v_and_b32 v7, 1, v7
        v_lshl_add_u32 v17, v7, 5, v17
        v_and_b32 v6, 1, v5
        v_lshl_add_u32 v17, v6, 4, v17
        v_lshrrev_b32 v6, 1, v5
        v_lshl_add_u32 v17, v6, 3, v17
        s_cmp_eq_u32 s89, 32
        s_cselect_b64 vcc, -1, 0
        v_cndmask_b32 v16, v17, v16, vcc
        v_add_u32 v16, s70, v16
        v_add_u32 v17, s89, v16''')
        s(f's_cmp_lt_u32 s{sW}, 2\ns_cselect_b32 s{sPACT}, 0, s{sPACT}')
    def pack_store(s):
        s.wait(s.h_pack)
        s(f'''ds_read_b64_tr_b16 v[20:21], v16
        ds_read_b64_tr_b16 v[22:23], v16 offset:256
        ds_read_b64_tr_b16 v[24:25], v17
        ds_read_b64_tr_b16 v[26:27], v17 offset:256
        buffer_store_dwordx4 v[20:23], v{vL16}, {sr(rWS)}, s{sPD0} offen sc1
        buffer_store_dwordx4 v[24:27], v{vL16}, {sr(rWS)}, s{sPD1} offen sc1''')

    def setup_misc(s):
        s.comment('scalar offsets, LN transposition address (v18), flag poll address (v19)')
        s(f'''s_mul_i32 s70, s2, {UPITCH}
        s_lshl_b32 s71, s{sW}, 10
        s_add_u32 s70, s70, s71
        s_add_u32 s{sBO}, s70, {BB}
        s_add_u32 s{sUO}, s70, {UB}
        s_lshl_b32 s{sFO}, s2, 4
        s_add_u32 s{sFO}, s{sFO}, {FA}
        s_mul_i32 s{sCT}, s{sQ}, 7
        s_add_u32 s{sCT}, s{sCT}, s{sW}
        s_mul_i32 s{sA1}, s{sCT}, {14*1024}
        s_add_u32 s{sA2}, s{sA1}, {W2P}
        s_mul_i32 s{sA3}, s{sM}, 7
        s_add_u32 s{sA3}, s{sA3}, s{sW}
        s_mul_i32 s{sA4}, s{sA3}, {28*1024}
        s_add_u32 s{sA3}, s{sA4}, {W3P}
        s_add_u32 s{sA4}, s{sA4}, {W4P}
        s_lshl_b32 s{sUS}, s{sP}, 5
        s_add_u32 s{sBS}, s{sUS}, {BB}
        s_add_u32 s{sUS}, s{sUS}, {UB}
        s_mul_i32 s{sHD}, s{sP}, {HPITCH}
        s_add_u32 s{sHD}, s{sHD}, s71
        s_add_u32 s{sHD}, s{sHD}, {HP + 128}
        s_add_u32 s{sUM}, s71, {L_U + 1024}
        s_mov_b32 s{sFAST}, 0
        v_bfe_u32 v18, v{vL}, 2, 2
        v_mul_u32_u24 v18, {LNP}, v18
        v_lshrrev_b32 v5, 4, v{vL}
        v_lshl_add_u32 v18, v5, 5, v18
        v_and_b32 v5, 3, v{vL}
        v_lshl_add_u32 v18, v5, 3, v18
        s_lshl_b32 s70, s{sW}, 7
        v_add_u32 v18, s70, v18
        v_and_b32 v19, 0x1f0, v{vL16}
        s_lshl_b32 s70, s{sW}, 9
        s_add_u32 s70, s70, {FA}
        v_add_u32 v19, s70, v19''')

    def kgen_pre(s):
        s.comment('zero K tails / u pad / zero entry; gather addresses v52..v60')
        s(f'''v_mov_b32 v64, 0
        v_mov_b32 v65, 0
        v_mov_b32 v66, 0
        v_mov_b32 v67, 0
        v_add_u32 v63, {L_U}, v{vL16}
        ds_write_b128 v63, v[64:67]
        v_bfe_u32 v63, v0, 1, 2
        v_mul_u32_u24 v63, {KEO}, v63
        v_and_b32 v62, 16, v{vL16}
        v_add_u32 v63, v63, v62
        v_add_u32 v63, {L_KE + 4096}, v63
        ds_write_b128 v63, v[64:67]
        v_and_b32 v62, 255, v0
        v_lshlrev_b32 v62, 3, v62
        v_sub_u32 v62, 2047, v62
        v_lshrrev_b32 v63, 8, v0
        v_mul_u32_u24 v63, {KTSZ}, v63
        v_add_u32 v63, {L_KT}, v63
        ds_write_b128 v63, v[64:67] offset:{768*16}
        s_mov_b32 s70, 0x10221820
        s_mov_b32 s71, 0x0c0c0c00
        v_mov_b32 v64, 0x00261c24
        v_cvt_f32_i32 v61, v62''')
        for t in range(0, 9, 2):
            two = t < 8
            s(f'v_subrev_f32 v65, {fh(t)}, v61' if t else 'v_mov_b32 v65, v61')
            if two: s(f'v_subrev_f32 v66, {fh(t+1)}, v61')
            s(f'v_cvt_pk_bf16_f32 v66, v65, v66\nv_lshlrev_b32 v65, 16, v66')
            if two: s('v_and_b32 v66, 0xffff0000, v66')
            for e in range(2 if two else 1):
                r = 65 + e
                s(f'''v_cvt_i32_f32 v{r}, v{r}
                v_subrev_u32 v{r}, 1, v{r}
                v_and_or_b32 v67, v{r}, 7, s71
                v_perm_b32 v67, v64, s70, v67''')
                if t + e >= 7: s(f'v_cmp_gt_i32 vcc, 0, v{r}')
                s(f'v_ashrrev_i32 v{r}, 3, v{r}\nv_lshl_add_u32 v{r}, v67, 4, v{r}')
                if t + e >= 7: s(f'v_mov_b32 v67, {640 if t + e == 7 else 768}\nv_cndmask_b32 v{r}, v{r}, v67, vcc')
                s(f'v_lshl_add_u32 v{52+t+e}, v{r}, 4, v63')

    def ln(s):
        s.comment('layernorm of one token per wave')
        s('v_mov_b32 v7, 0x3f803f80\nv_dot2_f32_bf16 v4, v8, v7, 0')
        s.stamp(2)
        s('v_dot2_f32_bf16 v5, v8, v8, 0')
        for i in (9, 10, 11): s(f'v_dot2_f32_bf16 v4, v{i}, v7, v4\nv_dot2_f32_bf16 v5, v{i}, v{i}, v5')
        for i in range(4): s(f'v_lshlrev_b32 v{20+2*i}, 16, v{8+i}\nv_and_b32 v{21+2*i}, 0xffff0000, v{8+i}')
        k = 0
        for m in ('row_shr:1', 'row_shr:2', 'row_shr:4', 'row_shr:8', 'row_bcast:15 row_mask:0xa', 'row_bcast:31 row_mask:0xc'):
            s(f'v_add_f32_dpp v4, v4, v4 {m}\nv_add_f32_dpp v5, v5, v5 {m}')
            if k < 4: s(f'v_lshlrev_b32 v{28+2*k}, 16, v{12+k}')
            else: s(f'v_and_b32 v{29+2*(k-4)}, 0xffff0000, v{12+k-4}')
            k += 1
        s(f'''v_readlane_b32 s70, v4, 63
        v_readlane_b32 s71, v5, 63
        v_and_b32 v33, 0xffff0000, v14
        v_and_b32 v35, 0xffff0000, v15
        v_mov_b32 v6, {INVD}
        v_mul_f32 v4, s70, v6
        v_mul_f32 v5, s71, v6
        v_fma_f32 v5, -v4, v4, v5
        v_max_f32 v5, 0, v5
        v_add_f32 v5, {EPS}, v5
        v_rsq_f32 v6, v5
        s_mul_i32 s70, s{sW}, {LNP}
        v_mul_f32 v7, -v4, v6''')
        for i in range(4): s(f'v_pk_fma_f32 {vr(36+2*i,2)}, {vr(20+2*i,2)}, v[6:7], v[6:7] op_sel:[0,0,1] op_sel_hi:[1,0,1]')
        for i in range(4): s(f'v_cvt_pk_bf16_f32 v{8+i}, v{36+2*i}, v{37+2*i}')
        s(f'v_add_u32 v4, s70, v{vL16}\ns_mov_b32 exec_hi, 0x00ffffff')
        s(f'ds_write_b128 v4, v[8:11] offset:{L_LN}')
        for i in range(4): s(f'v_pk_fma_f32 {vr(36+2*i,2)}, {vr(36+2*i,2)}, {vr(28+2*i,2)}, {vr(20+2*i,2)}')
        for i in range(4): s(f'v_cvt_pk_bf16_f32 v{12+i}, v{36+2*i}, v{37+2*i}')
        s(f'ds_write_b128 v4, v[12:15] offset:{L_LN + 8*LNP}\ns_mov_b32 exec_hi, -1')
        s(f'''s_lshr_b32 s{sTAG}, s{sTAG}, 4
        s_mul_i32 s{sTAG}, s{sTAG}, 1664525
        s_add_u32 s{sTAG}, s{sTAG}, 1013904223
        s_lshl_b32 s{sTAG}, s{sTAG}, 4
        s_getreg_b32 s70, hwreg(HW_REG_XCC_ID, 0, 4)
        s_add_u32 s{sTX}, s70, s{sTAG}''')
        s.barrier()
        s(f'''ds_read_b64_tr_b16 v[8:9], v18 offset:{L_LN}
        ds_read_b64_tr_b16 v[10:11], v18 offset:{L_LN + 4*LNP}
        ds_read_b64_tr_b16 v[12:13], v18 offset:{L_LN + 8*LNP}
        ds_read_b64_tr_b16 v[14:15], v18 offset:{L_LN + 12*LNP}
        buffer_store_dwordx4 v[8:11], v{vL16}, {sr(rG)}, s{sUO} offen sc1''')
        s.stamp(3)
        s.cond(f's_cmp_ge_u32 s{sW}, 2', s.pack_store)

    def publish_a(s):
        s.wait_vm(0, force=True); s.barrier()
        s.stamp(5)
        s.gflag(0, sFO, sTX, 4)
        s(f'buffer_store_dwordx4 v[12:15], v{vL16}, {sr(rG)}, s{sBO} offen sc1')
        s.cond(f's_cmp_eq_u32 s{sPACT}, 0', s.pack_store)
        s(f'''s_mov_b32 s73, m0
        s_mul_i32 s70, s{sTB}, 28
        s_add_u32 s70, s70, s{sCT}
        s_lshl_b32 s70, s70, 10
        s_add_u32 s71, s70, {X1}
        s_add_u32 s70, s70, {GX}
        s_mov_b32 m0, {L_JUNK}
        s_add_u32 s{sFO}, s{sFO}, {FB - FA}
        buffer_load_dword v{vL16}, {sr(rG)}, s70 offen sc1 lds
        buffer_load_dword v{vL16}, {sr(rG)}, s71 offen sc1 lds''')
        def fl():
            s(f'''v_and_b32 v4, 1, v{vL}
            v_lshlrev_b32 v4, 7, v4
            v_bfe_u32 v5, v{vL}, 1, 2
            v_min_u32 v5, 2, v5
            v_lshl_add_u32 v4, v5, 13, v4
            s_lshl_b32 s70, s{sCL}, 8
            s_add_u32 s70, s70, {F3}
            buffer_load_dword v4, {sr(rWS)}, s70 offen sc1 lds''')
        s.cond(f's_cmp_lg_u32 s{sW}, 7', fl)
        s('s_mov_b32 m0, s73')

    def cm(s, d, a, b, t):
        return [f'v_pk_mul_f32 {vr(t,2)}, {vr(a,2)}, {vr(b,2)} op_sel_hi:[1,0]',
                f'v_pk_fma_f32 {vr(d,2)}, {vr(a,2)}, {vr(b,2)}, {vr(t,2)} op_sel:[1,1,0] op_sel_hi:[0,1,1] neg_lo:[1,0,0]']
    def kgen(s):
        s.comment('K generation')
        Z = lambda k: 62 + 2 * k
        Z128, ZD = 80, 82
        CH = [(84, 86, 88, 90), (28, 30, 32, 34)]
        BF, AF, ACC = 92, (108, 124, 64), 20
        s(f'''s_mov_b32 s70, {LOG2E}
        s_mov_b32 s71, {INV2PI}
        v_lshlrev_b32 v50, 16, v50
        v_lshlrev_b32 v46, 16, v46
        v_mul_f32 v50, s70, v50
        v_mul_f32 v46, s70, v46
        v_exp_f32 v50, v50
        v_exp_f32 v46, v46
        v_lshlrev_b32 v47, 16, v47
        v_lshlrev_b32 v48, 16, v48
        v_lshlrev_b32 v49, 16, v49
        v_cvt_pk_bf16_f32 v50, v50, v46
        v_and_b32 v46, 0xffff0000, v50
        v_lshlrev_b32 v50, 16, v50
        v_pk_mul_f32 v[46:47], v[46:47], v[50:51] op_sel_hi:[1,0]
        v_add_f32 v50, v50, v50
        v_pk_mul_f32 v[46:47], v[46:47], s[70:71]
        v_pk_mul_f32 v[36:37], v[48:49], v[50:51] op_sel_hi:[1,0]
        s_mul_i32 s72, s{sW}, {16*KGP}
        s_add_u32 s72, s72, {L_KG}
        s_mov_b32 m0, s72
        s_mov_b32 s70, 0x41000000
        s_mov_b32 s71, 0x43000000
        v_pk_mul_f32 v[48:49], v[46:47], s[70:71] op_sel_hi:[1,0]
        v_pk_mul_f32 v[50:51], v[46:47], s[70:71] op_sel:[0,1]''')
        for r in (48, 50, 46): s(f'v_exp_f32 v{r}, -v{r}\nv_fract_f32 v{r+1}, v{r+1}')
        for r, d in ((48, Z(8)), (50, Z128), (46, Z(1))): s(f'v_cos_f32 v{d}, v{r+1}\nv_sin_f32 v{d+1}, v{r+1}')
        s(f'v_and_b32 v44, 15, v{vL}\nv_lshrrev_b32 v45, 4, v{vL}')
        for r, d in ((48, Z(8)), (50, Z128), (46, Z(1))): s(f'v_pk_mul_f32 {vr(d,2)}, {vr(d,2)}, {vr(r,2)} op_sel_hi:[1,0]')
        s.stamp(4)
        def chain(st, rows, start, mul, neg=False):
            a, b, t, pk = CH[st]; out = []; cur, nxt = start, a
            for i, row in enumerate(rows):
                c = s.cm(nxt, cur, mul, t) if i < len(rows) - 1 else []
                out += c[:1] + [f'v_cvt_pk_bf16_f32 v{pk + (i&1)}, v{cur}, {"-" if neg else ""}v{cur+1}'] + c[1:] + [f'ds_write_addtid_b32 v{pk + (i&1)} offset:{row*KGP}']
                cur, nxt = nxt, (b if nxt == a else a)
            return out
        def rd(dst):
            for ks in range(4): s(f'ds_read_b128 {vr(dst+4*ks)}, v46 offset:{64*ks}')
        E = lambda l: [s(x) for x in l]
        E(zipl(s.cm(ZD, Z(8), Z(8), 88), s.cm(38, 36, Z(8), 32), [f'v_mul_u32_u24 v46, {KGP}, v44', 'v_lshl_add_u32 v46, v45, 4, v46']))
        s('v_add_u32 v46, s72, v46')
        E(zipl(chain(0, range(0, 16, 2), 36, ZD, True), chain(1, range(1, 16, 2), 38, ZD, True)))
        rd(BF)
        E(zipl(s.cm(ZD, Z128, Z128, 88), s.cm(38, Z(8), Z128, 32), s.cm(Z(2), Z(1), Z(1), 40)))
        s.publish_a()
        E(zipl(chain(0, range(0, 16, 2), Z(8), ZD), chain(1, range(1, 16, 2), 38, ZD)))
        rd(AF[0])
        E(zipl(s.cm(Z(4), Z(2), Z(2), 88), s.cm(Z(3), Z(2), Z(1), 32)))
        E(zipl(s.cm(Z(6), Z(4), Z(2), 88), s.cm(Z(5), Z(4), Z(1), 32), s.cm(Z(7), Z(4), Z(3), 40)))
        E(zipl(chain(0, range(0, 8), Z(4), Z128), chain(1, range(8, 12), Z(2), Z128) + chain(1, range(12, 16), Z(6), Z128)))
        rd(AF[1])
        E(zipl(chain(0, (0, 1), Z(1), Z128) + chain(0, (4, 5), Z(5), Z128), chain(1, (2, 3), Z(3), Z128) + chain(1, (6, 7), Z(7), Z128)))
        s(f'v_mov_b32 v40, 0x3f80\nds_write_addtid_b32 v40 offset:{8*KGP}')
        rd(AF[2])
        s.stamp(6)
        s.wait_vm(0, force=True)
        s.poll_issue(43, 19, 0)
        for ks in range(4):
            for t in range(2): s(f'v_mfma_f32_16x16x32_bf16 {vr(ACC+4*t)}, {vr(AF[t]+4*ks)}, {vr(BF+4*ks)}, {vr(ACC+4*t) if ks else 0}')
        s(f'''s_lshr_b32 s70, s{sW}, 2
        s_mul_i32 s70, s70, {KTSZ}
        s_add_u32 s70, s70, {L_KT}
        v_lshrrev_b32 v47, 3, v{vL}
        v_add_u32 v47, s{sW}, v47
        v_and_b32 v47, 3, v47
        v_lshl_add_u32 v46, v45, 6, v44
        v_lshl_add_u32 v46, v46, 4, s70
        v_lshl_add_u32 v46, v47, 2, v46''')
        for ks in range(4): s(f'v_mfma_f32_16x16x32_bf16 {vr(ACC+8)}, {vr(AF[2]+4*ks)}, {vr(BF+4*ks)}, {vr(ACC+8) if ks else 0}')
        for t in range(3):
            for r in range(4): s(f'ds_write_b32 v46, v{ACC+4*t+r} offset:{(16*t+r)*256}')
        s.conv_addr()
        s.barrier()
        s.stamp(7)
        s.gflag(0, sFO, sTAG, 42)
        for t in range(9): s(f'ds_read_b128 {vr(64+4*t)}, v{52+t}')
        s.poll_check(43, 19, 0)
        s(f's_mov_b32 m0, s{sUM}')
        s.h_u = s(f'buffer_load_dwordx4 v10, {sr(rWS)}, s{sUS} offen sc1 lds')
        s.stamp(8)
        s(f'''v_and_b32 v46, 255, v0
        v_lshlrev_b32 v46, 4, v46
        v_lshrrev_b32 v47, 8, v0
        v_mul_u32_u24 v47, {KECH}, v47
        v_add_u32 v46, v46, v47
        v_add_u32 v46, {L_KE}, v46''')
        for t in range(9):
            s(f'v_pk_add_f32 {vr(64+4*t,2)}, {vr(64+4*t,2)}, {vr(66+4*t,2)}')
            if t: s(f'v_add_f32 v{60+4*t}, v{60+4*t}, v{61+4*t}')
        s('v_add_f32 v96, v96, v97')
        for i in range(4): s(f'v_cvt_pk_bf16_f32 v{100+i}, v{64+8*i}, v{68+8*i}')
        s('ds_write_b128 v46, v[100:103]')
        for i in range(4): s(f'v_cvt_pk_bf16_f32 v{104+i}, v{68+8*i}, v{72+8*i}')
        s(f'ds_write_b128 v46, v[104:107] offset:{KEO}')

    def conv_addr(s):
        s(f'''s_and_b32 s70, s{sW}, 3
        s_lshr_b32 s71, s{sW}, 2
        v_lshrrev_b32 v15, 1, v44
        v_lshlrev_b32 v4, 2, v45
        v_sub_u32 v4, v4, v15
        s_lshl_b32 s72, s70, 7
        s_sub_u32 s72, {4*(1015 - 144) + L_KE + KEO}, s72
        s_mul_i32 s73, s71, {KECH}
        s_add_u32 s72, s72, s73
        v_and_b32 v15, 1, v44
        v_mul_u32_u24 v15, {KEO}, v15
        v_sub_u32 v15, s72, v15
        v_lshl_add_u32 v4, v4, 2, v15
        v_subrev_u32 v5, 1024, v4
        v_subrev_u32 v6, 2048, v4
        v_subrev_u32 v7, 3072, v4
        v_lshl_add_u32 v14, v44, 1, v45''')
        for e in range(2):
            s(f'''s_lshl_b32 s72, s70, 3
            s_sub_u32 s72, {30 - 4*e}, s72
            v_add_u32 v15, s72, v14
            v_bfe_u32 v16, v15, 3, 1
            v_xor_b32 v16, s71, v16
            v_lshlrev_b32 v15, 5, v15
            v_lshl_add_u32 v15, v16, 4, v15
            v_add_u32 v{8+e}, {L_U}, v15''')
        s(f'''v_lshrrev_b32 v15, 1, v0
        v_bfe_u32 v16, v0, 4, 1
        v_xor_b32 v16, v16, v0
        v_and_b32 v16, 1, v16
        v_mul_u32_u24 v15, {UPITCH}, v15
        v_lshl_add_u32 v10, v16, 4, v15
        s_lshl_b32 s72, s{sW}, 5
        v_lshl_add_u32 v15, v44, 1, s72
        v_lshrrev_b32 v16, 1, v45
        v_add_u32 v15, v15, v16
        v_mul_u32_u24 v15, {UPITCH}, v15
        v_and_b32 v16, 1, v45
        v_lshl_add_u32 v11, v16, 3, v15
        v_lshlrev_b32 v12, 6, v44
        v_lshl_add_u32 v12, v45, 4, v12
        s_lshl_b32 s72, s{sW}, 10
        v_add_u32 v13, s72, v{vL16}
        s_lshl_b32 s72, s{sW}, 13
        v_add_u32 v14, s72, v{vL16}''')

    def conv(s):
        A, B, ACC = 28, 60, 92
        def rdA(slot, e, a):
            off = 16 * (1 - e) + 128 * (1 - (a & 1))
            s(f'ds_read2_b32 {vr(A+4*slot,2)}, v{4+(a>>1)} offset0:{off} offset1:{off+1}')
            s(f'ds_read2_b32 {vr(A+4*slot+2,2)}, v{4+(a>>1)} offset0:{off+2} offset1:{off+3}')
        def rdB(e, b): s(f'ds_read_b128 {vr(B+4*b)}, v{8+e} offset:{1024*b}')
        s.barrier(); s.stamp(9)
        for a in range(8): rdA(a, 0, a)
        s.h2_addr()
        s.wait(s.h_u); s.barrier(); s.stamp(10)
        for b in range(8): rdB(0, b)
        s(f's_movk_i32 s68, {FB - FA}')
        s.poll_issue(15, 19, 's68')
        ex = s.wl(1, 0, 7)
        for b in range(8):
            for a in range(8 - b):
                s(f'v_mfma_f32_16x16x32_bf16 {vr(ACC+4*(a+b))}, {vr(A+4*a)}, {vr(B+4*b)}, {vr(ACC+4*(a+b)) if b else 0}')
                if ex: ex.pop(0)()
            rdA(7 - b, 1, b); rdB(1, b)
        s.poll_check(15, 19, 's68')
        s(f'buffer_load_dwordx2 v[16:17], v11, {sr(rWS)}, s{sBS} offen sc1')
        s(f'buffer_load_dwordx2 v[18:19], v11, {sr(rWS)}, s{sBS} offen offset:16 sc1')
        ex = s.wl(1, 7, 14)
        for nu in range(8):
            for a in range(nu + 1):
                s(f'v_mfma_f32_16x16x32_bf16 {vr(ACC+4*nu)}, {vr(A+4*(7-a))}, {vr(B+4*(nu-a))}, {vr(ACC+4*nu)}')
                if ex: ex.pop(0)()
            if nu >= 3: s(f'ds_write_b128 v13, {vr(ACC+4*(nu-3))} offset:{L_Y + 8192*(nu-3)}')
            if nu >= 6: s(f'ds_write_b128 v13, {vr(ACC+4*(nu-1))} offset:{L_Y + 8192*(nu-1)}')
        s(f'ds_write_b128 v13, {vr(ACC+4*7)} offset:{L_Y + 8192*7}')
        s(f's_lshl_b32 s68, s2, 6\ns_add_u32 s68, s68, {FH}')
        s.barrier(); s.stamp(11)
        for i in range(8): s(f'ds_read_b128 {vr(A+4*i)}, v14 offset:{L_Y + 1024*i}')
        s.gflag(7, 68, sTAG, 4)
        for i in range(4): s(f'v_lshlrev_b32 v{20+2*i}, 16, v{16+i}\nv_and_b32 v{21+2*i}, 0xffff0000, v{16+i}')
        for i in range(8):
            c = i >> 2
            for h in range(2): s(f'v_pk_add_f32 {vr(20+4*c+2*h,2)}, {vr(20+4*c+2*h,2)}, {vr(A+4*i+2*h,2)}')
        for r in range(4): s(f'v_cvt_pk_bf16_f32 v{16+r}, v{20+r}, v{24+r}')
        for r in range(4): s(f'v_min_u32 v{16+r}, -2, v{16+r}')
        h = s(f'buffer_store_dwordx4 v[16:19], v12, {sr(rWS)}, s{sHD} offen sc1')
        s.stamp(12)
        s.run(s.wl(2, 0, s.cfg.nb2))
        return h

    def nonconv(s):
        s.comment('workgroups without a channel pair')
        s.publish_a()
        s.h2_addr()
        s.wait_vm(0, force=True); s.barrier()
        s.gflag(0, sFO, sTAG, 42)
        s.poll(15, 19, 0, sleep=8)
        s.barrier()
        s.run(s.wl(1, 0, 14)); s.run(s.wl(2, 0, s.cfg.nb2))
        s(f's_movk_i32 s68, {FB - FA}')
        s.poll(15, 19, 's68', sleep=8)
        s(f's_lshl_b32 s68, s2, 6\ns_add_u32 s68, s68, {FH - 32*64}\nv_mov_b32 v14, 0')
        s.cond(f's_cmp_lg_u32 s{sW}, 7', lambda: s.poll(15, 14, 's68', 1, 0, sleep=4))
        s.barrier()

    def h2_addr(s):
        s(f'''v_min_u32 v126, 503, v0
        v_mul_u32_u24 v127, 7282, v126
        v_lshrrev_b32 v127, 16, v127
        v_mul_u32_u24 v128, 9, v127
        v_sub_u32 v128, v126, v128
        v_mul_u32_u24 v124, {4*HPITCH}, v127
        v_lshl_add_u32 v124, v128, 4, v124
        v_mul_u32_u24 v125, 768, v127
        v_lshrrev_b32 v126, 2, v128
        v_lshl_add_u32 v125, v126, 8, v125
        v_and_b32 v126, 3, v128
        v_lshl_add_u32 v125, v126, 4, v125
        v_add_u32 v125, {L_HI}, v125
        s_and_b32 s70, s{sQ}, 1
        s_lshl_b32 s71, s{sTB}, 3
        s_add_u32 s70, s70, s71
        s_lshl_b32 s88, s70, 4
        s_add_u32 s88, s88, {HP + 128 - 16}
        s_add_u32 s89, s88, {HPITCH}
        s_add_u32 s90, s88, {2*HPITCH}
        s_add_u32 s91, s88, {3*HPITCH}
        s_sub_u32 s70, s70, 1
        v_add_u32 v128, s70, v128
        s_movk_i32 s70, 512
        v_cmp_gt_u32 s[92:93], s70, v128''')
    def h2(s, behind):
        ld = [f'buffer_load_dwordx4 {vr(8+4*j)}, v4, {sr(rWS)}, s{88+j} offen sc1' for j in range(4)]
        chk = [f'v_max3_u32 v24, v{8+2*i}, v{9+2*i}, {"v24" if i else "v8"}' for i in range(8)] + ['v_cmp_eq_u32 vcc, -1, v24']
        for l in ld: s(l)
        behind()
        for l in chk: s(l)
        retry, back = s.lab('hr'), s.lab('hb')
        s(f's_mov_b32 s97, 0\ns_and_b64 vcc, vcc, s[92:93]\ns_cbranch_vccnz {retry}')
        s.label(back)
        s.ool.append(f'{retry}:\n' + ''.join(f'    {l}\n' for l in ld) + f'    s_add_u32 s97, s97, 1\n    s_cmp_gt_u32 s97, {SPIN}\n    s_waitcnt vmcnt(0)\n    s_cbranch_scc1 {back}\n'
                     + ''.join(f'    {l}\n' for l in chk) + f'    s_nop 1\n    s_and_b64 vcc, vcc, s[92:93]\n    s_cbranch_vccnz {retry}\n    s_branch {back}\n')
        if s.stamps: s('v_writelane_b32 v3, s97, 59')
        s.stamp(14)
        for j in range(4):
            for i in range(j): s(f'v_swap_b32 v{8+4*j+i}, v{8+4*i+j}')
        for i in range(4): s(f'ds_write_b128 v5, {vr(8+4*i)} offset:{64*i}')

    def stats_tail(s, a, extra, vadr, tab):
        s(f'''v_cndmask_b32 v{a}, v{a}, v{a+1}, s[92:93]
        v_cndmask_b32 v{a}, v{a}, v{a+2}, s[94:95]
        v_mul_f32 v{a+3}, s96, v{a+3}
        v_mul_f32 v{a}, s96, v{a}
        v_fma_f32 v{a}, -v{a+3}, v{a+3}, v{a}
        v_max_f32 v{a}, 0, v{a}
        v_add_f32 v{a+1}, {EPS}, v{a}
        v_rsq_f32 v{a+1}, v{a+1}''')
        if extra:
            s(f'''v_mul_f32 v{a}, v{a}, v{a+1}
            v_mov_b32 v50, v{a+1}
            v_mul_f32 v51, -v{a+3}, v{a+1}
            v_fmaak_f32 v{a}, v{a}, v{a+1}, {EPS}
            v_rsq_f32 v{a}, v{a}
            ds_write_b64 v{extra}, v[50:51] offset:{tab // 2}
            v_mul_f32 v{a+1}, v{a+1}, v{a}''')
        s(f'''v_rcp_f32 v{a+2}, v{a+1}
        v_mul_f32 v{a}, {fh(C1)}, v{a+1}
        v_mul_f32 v{a+1}, v{a+1}, v{a+1}
        v_mul_f32 v{a+1}, v{a+1}, v{a}
        v_mul_f32 v{a+1}, {fh(0.044715)}, v{a+1}
        ds_write_b128 v{vadr}, {vr(a)} offset:{tab}''')
    def gelu_pk(s, acc, cs, st, n, t, out):
        P = range(0, n, 2); o = []
        o += [f'v_pk_fma_f32 {vr(acc+i,2)}, {vr(cs+i,2)}, {vr(st+2,2)}, {vr(acc+i,2)} op_sel:[0,1,0] op_sel_hi:[1,1,1] neg_lo:[0,1,0] neg_hi:[0,1,0]' for i in P]
        o += [f'v_pk_mul_f32 {vr(t+i,2)}, {vr(acc+i,2)}, {vr(acc+i,2)}' for i in P]
        o += [f'v_pk_fma_f32 {vr(t+i,2)}, {vr(t+i,2)}, {vr(st,2)}, {vr(st,2)} op_sel:[0,1,0] op_sel_hi:[1,1,0]' for i in P]
        o += [f'v_pk_mul_f32 {vr(t+i,2)}, {vr(t+i,2)}, {vr(acc+i,2)}' for i in P]
        o += [f'v_exp_f32 v{t+i}, v{t+i}' for i in range(n)]
        o += [f'v_pk_fma_f32 {vr(t+i,2)}, {vr(t+i,2)}, {vr(st+2,2)}, {vr(st+2,2)} op_sel_hi:[1,0,0]' for i in P]
        o += [f'v_rcp_f32 v{t+i}, v{t+i}' for i in range(n)]
        o += [f'v_pk_mul_f32 {vr(t+i,2)}, {vr(t+i,2)}, {vr(acc+i,2)}' for i in P]
        o += [f'v_cvt_pk_bf16_f32 v{out+i//2}, v{t+i}, v{t+i+1}' for i in P]
        return o
    def gelu_sc(s, acc, cs, st, n, t, out):
        R = range(n)
        for i in R: s(f'v_fma_f32 v{acc+i}, -v{cs+i}, v{st+3}, v{acc+i}')
        for i in R: s(f'v_mul_f32 v{t+i}, v{acc+i}, v{acc+i}')
        for i in R: s(f'v_fma_f32 v{t+i}, v{t+i}, v{st+1}, v{st}')
        for i in R: s(f'v_mul_f32 v{t+i}, v{t+i}, v{acc+i}')
        for i in R: s(f'v_exp_f32 v{t+i}, v{t+i}')
        for i in R: s(f'v_fma_f32 v{t+i}, v{t+i}, v{st+2}, v{st+2}')
        for i in R: s(f'v_rcp_f32 v{t+i}, v{t+i}')
        for i in R: s(f'v_mul_f32 v{t+i}, v{t+i}, v{acc+i}')
        for i in range(0, n, 2): s(f'v_cvt_pk_bf16_f32 v{out+i//2}, v{t+i}, v{t+i+1}')
    def gemm16(s, W, acc, vaddr, kstride, first_zero):
        seq = [(ks, t) for ks in range(14) for t in range(2)]
        def rd(i): ks, t = seq[i]; s(f'ds_read_b128 {vr(8+4*(i%4))}, v{vaddr} offset:{ks*kstride + 256*t}')
        for i in range(3): rd(i)
        for i, (ks, t) in enumerate(seq):
            if i + 3 < 28: rd(i + 3)
            c = 0 if (first_zero and ks == 0) else vr(acc + 4*t)
            s(f'v_mfma_f32_16x16x32_bf16 {vr(acc+4*t)}, {vr(W+4*ks)}, {vr(8+4*(i%4))}, {c}')
    def gemm32(s, jobs, vaddr, extra=None, nb=4, buf=8):
        seq = [(j, i) for j, job in enumerate(jobs) for i in range(job[1])]
        ex = list(extra or [])
        def rd(n): j, i = seq[n]; s(f'ds_read_b128 {vr(buf+4*(n%nb))}, v{vaddr} offset:{jobs[j][3] + 1024*i}')
        s('s_setprio 1')
        for n in range(nb - 1): rd(n)
        for n, (j, i) in enumerate(seq):
            W, nk, acc, _, after = jobs[j]
            if n + nb - 1 < len(seq): rd(n + nb - 1)
            s(f'v_mfma_f32_32x32x16_bf16 {vr(acc,16)}, {vr(W+4*i)}, {vr(buf+4*(n%nb))}, {vr(acc,16) if i else 0}')
            if ex: ex.pop(0)()
            if i == nk - 1 and after: ex += [lambda: None] * 3 + after
        s('s_setprio 0')
        s.run(ex)
    def cs3(s, a, b):
        for ks in range(a, b): s(f'v_mfma_f32_16x16x32_bf16 v[168:171], {vr(vW3+4*ks)}, v[164:167], {"v[168:171]" if ks else 0}')

    def g_pre(s):
        s.comment('G wave addresses (v6 GEMM1 B, v7 residual h, v50/v51 stats, masks)')
        s(f'''s_lshl_b32 s70, s{sQ}, 2
        s_lshr_b32 s71, 0x2213, s70
        s_and_b32 s71, s71, 15
        s_lshr_b32 s72, 0x0404, s70
        s_and_b32 s72, s72, 15
        v_and_b32 v44, 15, v{vL}
        v_lshrrev_b32 v45, 4, v{vL}
        v_add_u32 v46, s71, v44
        v_add_u32 v47, s72, v44''')
        s.pos(6, 46, 48)
        s(f'v_mul_u32_u24 v48, 768, v45\nv_add_u32 v6, v6, v48\nv_add_u32 v6, {L_HI}, v6')
        s.pos(7, 47, 48)
        s(f'''v_lshrrev_b32 v48, 1, v45
        s_lshl_b32 s73, s{sCT}, 1
        v_add_u32 v48, s73, v48
        v_mul_u32_u24 v48, 768, v48
        v_and_b32 v49, 1, v45
        v_lshl_add_u32 v48, v49, 3, v48
        v_add_u32 v7, v7, v48
        v_add_u32 v7, {L_HI}, v7
        s_sub_u32 s73, s71, s72
        s_lshl_b32 s70, s{sTB}, 5
        s_add_u32 s73, s73, s70
        v_add_u32 v48, s73, v44
        v_add_u32 v49, 16, v48
        s_movk_i32 s70, 2048
        v_cmp_gt_u32 {sr(sM0,2)}, s70, v48
        v_cmp_gt_u32 {sr(sM1,2)}, s70, v49
        v_lshlrev_b32 v50, 4, v46
        v_add_u32 v50, {L_STA}, v50
        v_lshlrev_b32 v51, 3, v47
        v_add_u32 v51, {L_STB}, v51''')
        for i in range(4): s(f'v_mov_b32 v{28+i}, 0x3f803f80')
        for ks in range(14): s(f'v_mfma_f32_16x16x32_bf16 v[32:35], {vr(vW1+4*ks)}, v[28:31], {"v[32:35]" if ks else 0}')

    def g_wave(s, hst):
        c = s.cfg
        s.g_pre()
        if hst: s.wait(hst)
        s.stamp(13)
        s.h2(lambda: s.run(s.wl(2, c.nb2, 14) + s.wl(3, 0, c.n1)))
        s.barrier(); s.stamp(15)
        s('v_lshlrev_b32 v5, 4, v44\nv_lshl_add_u32 v5, v45, 9, v5')
        s.gemm16(vW1, 24, 6, 3072, True)
        s(f'''s_mul_i32 s70, s{sTB}, 28
        s_add_u32 s70, s70, s{sCT}
        s_lshl_b32 s70, s70, 10
        s_add_u32 s71, s70, {X1}
        s_add_u32 s70, s70, {GX}
        s_lshl_b32 s72, s{sTB}, 5
        s_add_u32 s72, s72, s{sCT}
        s_lshl_b32 s72, s72, 2
        s_add_u32 s73, s72, {F4}
        s_add_u32 s72, s72, {F3}
        v_mov_b32 v4, {L_FAST}''')
        s.barrier(); s.stamp(16)
        s('ds_read_b128 v[36:39], v50\nds_read_b128 v[40:43], v50 offset:256\nds_read_b32 v4, v4')
        for l in zipl(s.gelu_pk(24, 32, 36, 4, 8, 20), s.gelu_pk(28, 32, 40, 4, 12, 22)): s(l)
        s(f'''v_readfirstlane_b32 s{sFAST}, v4
        v_cndmask_b32 v20, 0, v20, {sr(sM0,2)}
        v_cndmask_b32 v22, 0, v22, {sr(sM1,2)}
        v_cndmask_b32 v21, 0, v21, {sr(sM0,2)}
        v_cndmask_b32 v23, 0, v23, {sr(sM1,2)}
        v_permlane16_swap_b32 v20, v22
        v_permlane16_swap_b32 v21, v23''')
        s.xstore([f'buffer_store_dwordx4 v[20:23], v{vL16}, {sr(rWS)}, s70 offen'])
        s.stamp(17)
        s('''ds_read_b64 v[8:9], v7
        ds_read_b64 v[10:11], v7 offset:256
        ds_read_b64 v[12:13], v51
        ds_read_b64 v[14:15], v51 offset:128''')
        s.flag(72)
        s.stamp(18)
        for i in range(4): s(f'v_lshlrev_b32 v{vRES+2*i}, 16, v{8+i}\nv_and_b32 v{vRES+1+2*i}, 0xffff0000, v{8+i}')
        for i in range(4): s(f'v_pk_fma_f32 {vr(24+2*i,2)}, {vr(vRES+2*i,2)}, {vr(12+2*(i>>1),2)}, {vr(12+2*(i>>1),2)} op_sel:[0,0,1] op_sel_hi:[1,0,1]')
        s(f'''v_xor_b32 v46, v44, v45
        v_and_b32 v46, 1, v46
        v_cmp_eq_u32 vcc, 0, v46
        v_mov_b32 v46, 0x3f803f80
        v_cndmask_b32 v164, 0, v46, vcc
        v_cndmask_b32 v165, 0, v46, vcc
        v_cndmask_b32 v166, 0, v46, vcc
        v_cndmask_b32 v167, 0, v46, vcc
        s_lshl_b32 s70, s{sW}, 7
        s_add_u32 s70, s70, {L_CS}
        v_and_b32 v46, 1, v44
        v_lshlrev_b32 v46, 6, v46
        v_lshl_add_u32 v46, v45, 4, v46
        v_add_u32 v48, s70, v46
        v_lshrrev_b32 v47, 5, v{vL}
        v_lshl_add_u32 v49, v47, 4, s70
        v_add_u32 v6, {L_XI}, v{vL16}
        s_lshl_b32 s70, s{sW}, 11
        s_add_u32 s70, s70, {L_HID}
        v_add_u32 v7, s70, v{vL16}
        v_add_u32 v44, {L_HID}, v{vL16}
        v_and_b32 v45, 31, v{vL}
        v_lshlrev_b32 v46, 4, v45
        v_add_u32 v46, {L_ST3}, v46
        v_mul_u32_u24 v45, 896, v45
        v_lshl_add_u32 v45, v47, 4, v45''')
        s.cs3(0, c.n1)
        s.barrier()
        s.run(s.wl(3, c.n1, c.n2))
        s.barrier(); s.stamp(19)
        s.gemm16(vW2, 24, 5, 2048, False)
        for i in range(4): s(f'v_cvt_pk_bf16_f32 v{20+i}, v{24+2*i}, v{25+2*i}')
        s('v_permlane16_swap_b32 v20, v22\nv_permlane16_swap_b32 v21, v23')
        s.xstore([f'buffer_store_dwordx4 v[20:23], v{vL16}, {sr(rWS)}, s71 offen'])
        s.stamp(20)
        for i in range(4): s(f'v_pk_add_f32 {vr(vRES+2*i,2)}, {vr(vRES+2*i,2)}, {vr(24+2*i,2)}')
        s.flag(73)
        s.stamp(21)
        s.cs3(c.n1, c.n2)
        s(f'''s_mul_i32 s70, s{sCL}, 56
        s_lshl_b32 s71, s{sW}, 2
        s_add_u32 s71, s71, s70
        s_lshl_b32 s71, s71, 3
        s_add_u32 s71, s71, s{sM}
        s_lshl_b32 s71, s71, 10
        s_add_u32 s71, s71, {PX}
        s_lshl_b32 s72, s{sCL}, 6
        s_lshl_b32 s73, s{sM}, 3
        s_add_u32 s73, s73, s72
        s_add_u32 s73, s73, s{sW}
        s_lshl_b32 s73, s73, 2
        s_add_u32 s73, s73, {F5}
        s_lshr_b32 s74, s{sCT}, 2
        s_add_u32 s72, s72, s74
        s_lshl_b32 s72, s72, 2
        s_add_u32 s72, s72, {F5}''')
        s.barrier()
        s.run(s.wl(3, c.n2, 28))
        lb, lj = s.lab('wb'), s.lab('wj')
        s(f's_cmp_ge_u32 s{sW}, 4'); s.flush_hazards(); s(f's_cbranch_scc1 {lb}')
        st = s.state(); wc = dict(s.wcnt)
        def cs_fin():
            s.cs3(c.n2, 28)
            s('ds_write_b128 v48, v[168:171]')
            for b in range(4): s(f'ds_read_b128 {vr(vCS3+4*b)}, v49 offset:{32*b}')
        def gelu(t):
            s(f'ds_read_b128 {vr(vST3)}, v46 offset:{512*t}')
            for j in range(2):
                s.gelu_sc(vAC3 + 8*j, vCS3 + 8*j, vST3, 8, 24, 32)
                s(f'ds_write_b128 v7, v[32:35] offset:{14336*t + 1024*j}')
        cnt = [0]
        def g4(ctl, t):
            acc = 112 + 16 * (cnt[0] & 1); cnt[0] += 1
            def fin(h):
                for i in range(4): s(f'v_cvt_pk_bf16_f32 v{24+4*h+i}, v{acc+8*h+2*i}, v{acc+8*h+2*i+1}')
                s(f's_add_u32 s74, s71, {(28*t + 2*ctl + h) * 8192}')
                s.xstore([f'buffer_store_dwordx4 {vr(24+4*h)}, v{vL16}, {sr(rWS)}, s74 offen'])
            return ((vW4A, vW4B)[ctl], 14, acc, 14336 * t, [lambda: fin(0), lambda: None, lambda: fin(1)])
        g3 = lambda t: (vW3, 28, vAC3, 28672 * t, None)
        w4b = lambda: [lambda: None] * 2 + s.wl(5, 14, 28)
        s.run(s.wl(4, 0, 14))
        s.barrier(); s.stamp(22)
        s.gemm32([g3(0)], 6); cs_fin()
        s.barrier(); s.stamp(23)
        gelu(0); s.stamp(24); s.gemm32([g3(1)], 6, w4b())
        s.barrier(); s.stamp(25)
        gelu(1); s.stamp(26); s.gemm32([g4(0, 0), g4(1, 0)], 44)
        s.barrier(); s.stamp(27)
        s.gemm32([g4(0, 1), g4(1, 1)], 44)
        s.flush_hazards(); s(f's_branch {lj}')
        s.label(lb); s.set_state(st); s.wcnt = wc; cnt[0] = 0
        s.barrier(); s.stamp(22)
        s.run(s.wl(4, 0, 14))
        cs_fin()
        s.barrier(); s.stamp(23)
        s.gemm32([g3(0)], 6); s.stamp(24); gelu(0)
        s.barrier(); s.stamp(25)
        s.gemm32([g3(1)], 6, w4b()); s.stamp(26); gelu(1)
        s.barrier(); s.stamp(27)
        s.gemm32([g4(0, 0), g4(0, 1), g4(1, 0), g4(1, 1)], 44)
        s.flush_hazards()
        s.label(lj); s.lg = []
        s.stamp(28)
        s(f'''v_and_b32 v8, 15, v{vL}
        v_bfe_u32 v9, v{vL}, 4, 1
        v_lshlrev_b32 v9, 3, v9
        v_sub_u32 v8, v8, v9
        v_mov_b32 v10, 0x3f80
        v_mov_b32 v11, 1.0
        v_lshlrev_b32 v6, 5, v{vL}''')
        s.flag(73)
        s.stamp(29)
        s('s_mov_b64 exec, 0xff')
        s.poll_issue(4, 6, 's72')
        s('s_mov_b64 exec, -1')
        for d in range(4):
            s(f'''v_cmp_eq_u32 vcc, {2*d}, v8
            v_cmp_eq_u32 s[68:69], {2*d+1}, v8
            v_cndmask_b32 v{48+d}, 0, v10, vcc
            v_cndmask_b32 v{48+d}, v{48+d}, v11, s[68:69]''')
        s(f'''s_mul_i32 s74, s{sTB}, 28
        s_add_u32 s74, s74, s{sCT}
        s_lshl_b32 s74, s74, 13
        s_add_u32 s74, s74, {PX}
        s_add_u32 s75, s74, 4096
        s_mul_i32 s76, s{sTB}, {32*896}
        s_lshl_b32 s77, s{sCT}, 5
        s_add_u32 s76, s76, s77''')
        s.srd(rX, sOUT, 2048 * 896)
        s('s_mov_b64 exec, 0xff')
        s.poll_check(4, 6, 's72')
        s('s_mov_b64 exec, -1')
        s.stamp(30)
        for u in range(4):
            for t in range(2): s(f'buffer_load_dwordx4 {vr(52+8*u+4*t)}, v5, {sr(rWS)}, s{74+(u>>1)} offen offset:{2048*(u&1) + 256*t} sc1')
        for u in range(4):
            for t in range(2): s(f'v_mfma_f32_16x16x32_bf16 {vr(vRES+4*t)}, v[48:51], {vr(52+8*u+4*t)}, {vr(vRES+4*t)}')
        for i in range(4): s(f'v_cvt_pk_bf16_f32 v{20+i}, v{vRES+2*i}, v{vRES+1+2*i}')
        s('v_permlane16_swap_b32 v20, v22\nv_permlane16_swap_b32 v21, v23')
        s(f'buffer_store_dwordx4 v[20:23], v45, {sr(rX)}, s76 offen')
        s.stamp(31)

    def s_mfma(s, addrs, acc, kstride, base):
        seq = [(ks, t) for ks in range(14) for t in range(3)]
        nb = 8
        def rd(i): ks, t = seq[i]; s(f'ds_read_b128 {vr(52+4*(i%nb))}, v{addrs+t} offset:{base + ks*kstride}')
        s('s_mov_b32 exec_lo, 0x77777777\ns_mov_b32 exec_hi, 0x77777777')
        for i in range(nb - 1): rd(i)
        for i, (ks, t) in enumerate(seq):
            if i + nb - 1 < len(seq): rd(i + nb - 1)
            s(f'v_mfma_f32_16x16x32_bf16 {vr(acc+4*t)}, {vr(52+4*(i%nb))}, {vr(52+4*(i%nb))}, {vr(acc+4*t) if ks else 0}')
        s('s_mov_b32 exec_lo, 0x00700007\ns_mov_b32 exec_hi, 0x70000700')
    def s_wave(s, hst):
        s.comment('S wave: statistics, polling, DMA')
        s('s_setprio 2')
        s(f'''s_and_b32 s70, s2, 0xc7
        s_lshl_b32 s70, s70, 4
        s_add_u32 s70, s70, {FA}
        v_and_b32 v44, 7, v{vL}
        v_lshlrev_b32 v44, 7, v44
        buffer_load_dword v48, v44, {sr(rWS)}, s70 offen sc1''')
        for i in range(32): s(f'v_mov_b32 v{52+i}, 0x3f803f80')
        s(f'''v_and_b32 v44, 3, v{vL}
        v_bfe_u32 v45, v{vL}, 2, 2
        v_mad_u32_u24 v40, v45, 3, v44
        v_lshrrev_b32 v41, 4, v{vL}''')
        for t in range(3):
            s(f'v_add_u32 v46, {12*t}, v40')
            s.pos(84 + t, 46, 47)
            s(f'v_mul_u32_u24 v47, 768, v41\nv_add_u32 v{84+t}, v{84+t}, v47\nv_add_u32 v{84+t}, {L_HI}, v{84+t}')
            s(f'v_min_u32 v46, 31, v46\nv_lshlrev_b32 v46, 4, v46\nv_add_u32 v{92+t}, {L_ST3}, v46\nv_lshl_add_u32 v46, v41, 9, v46\nv_add_u32 v{88+t}, {L_XI}, v46')
        s(f'''v_lshlrev_b32 v42, 4, v40
        v_add_u32 v42, {L_STA}, v42
        v_lshlrev_b32 v43, 3, v40
        v_add_u32 v43, {L_STB}, v43
        v_lshlrev_b32 v6, 2, v{vL}
        v_lshlrev_b32 v7, 7, v{vL}
        v_cmp_ne_u32 vcc, s{sTX}, v48
        v_mov_b32 v46, {L_FAST}
        s_cmp_eq_u64 vcc, 0
        s_cselect_b32 s70, 1, 0
        v_mov_b32 v45, s70
        ds_write_b32 v46, v45''')
        s.stamp(13)
        s.h2(lambda: None)
        s(f'v_cmp_eq_u32 s[92:93], 1, v44\nv_cmp_eq_u32 s[94:95], 2, v44\ns_mov_b32 s96, {INVD}')
        s.barrier(); s.stamp(15)
        s.s_mfma(84, 24, 3072, 0)
        for t in range(3): s.stats_tail(24 + 4*t, 43, 42, 192 * t)
        s(f'''s_mov_b64 exec, -1
        s_lshl_b32 s72, s{sTB}, 7
        s_add_u32 s72, s72, {F3}
        s_mul_i32 s70, s{sTB}, {28*1024}
        s_add_u32 s70, s70, {GX}
        s_lshl_b32 s73, s{sCL}, 8
        s_add_u32 s73, s73, {F4}
        s_mul_i32 s71, s{sCL}, {56*1024}
        s_add_u32 s71, s71, {X1}''')
        s.barrier(); s.stamp(16)
        s.poll(4, 6, 's72', '0x0fffffff', 0); s.stamp(18)
        s.dma(0, 28, 70, L_GI)
        s.barrier()
        s.wait_vm(0); s.barrier(); s.stamp(19)
        s.poll(4, 6, 's73', '0x0fffffff', '0x0fffffff'); s.stamp(21)
        h0 = s.dma(0, 28, 71, L_XI); s.dma(28, 56, 71, L_XI)
        s.barrier()
        s.wait(h0); s.barrier(); s.stamp(22)
        def touch():
            s(f'''s_mul_i32 s70, s{sTB}, 28
            s_mul_i32 s71, s{sQ}, 7
            s_add_u32 s70, s70, s71
            s_lshl_b32 s70, s70, 13
            s_add_u32 s70, s70, {PX}
            s_mov_b32 m0, {L_JUNK}''')
            for i in range(7):
                s(f'buffer_load_dword v7, {sr(rWS)}, s70 offen sc1 lds\ns_add_u32 s70, s70, 8192')
                s.wait_vm(1)
        for t in range(2):
            s.s_mfma(88, 24, 2048, 28672 * t)
            for k in range(3): s.stats_tail(24 + 4*k, None, 92 + k, 512 * t)
            s('s_mov_b64 exec, -1')
            s.wait_vm(0)
            s.barrier(); s.stamp(23 + 2*t)
        if s.cfg.touch_at == 6: touch()
        s.barrier(); s.stamp(27)
        if s.cfg.touch_at == 7: touch()
        s.cond('s_cmp_lg_u32 s2, 0', lambda: s(f'v_mov_b32 v4, s{sTAG}\ns_mov_b32 s70, {EP}\ns_mov_b64 exec, 1\nbuffer_store_dword v4, off, {sr(rWS)}, s70 sc1\ns_mov_b64 exec, -1'))
        s.wait_vm(0); s.stamp(28)

def build(stamps=False, cfg=None):
    s = K(stamps, cfg or Cfg())
    s.entry(); s.pack_issue(); s.setup_misc(); s.kgen_pre(); s.ln()
    s(f's_cmp_ge_u32 s{sI}, 28'); s.flush_hazards(); s('s_cbranch_scc1 Lnonconv')
    st = s.state()
    s.kgen(); hst = s.conv()
    s.label('Ljoin')
    s(f'v_mov_b32 v4, v124\nv_mov_b32 v5, v125\ns_cmp_eq_u32 s{sW}, 7'); s.flush_hazards(); s('s_cbranch_scc1 Lsw')
    st2 = s.state()
    s.g_wave(hst); s.dump_stamps(); s('s_endpgm')
    s.label('Lsw'); s.set_state(st2)
    s.s_wave(hst); s.dump_stamps()
    s.label('Lend'); s('s_endpgm')
    s.label('Lnonconv'); s.set_state(st); s.wcnt = {}
    s.nonconv(); s.flush_hazards(); s('s_branch Ljoin')
    name = NAME + '_kernel'
    return f'''; @launch grid=(256,1,1) block=(512,1,1) lds={LDS_BYTES}
.amdgcn_target "amdgcn-amd-amdhsa--gfx950"
.text
.globl {name}
.p2align 8
.type {name},@function
{name}:
''' + s.text() + ''.join(s.ool) + f'''.section .rodata,"a"
.p2align 6
.amdhsa_kernel {name}
  .amdhsa_next_free_vgpr 256
  .amdhsa_next_free_sgpr 102
  .amdhsa_accum_offset 256
  .amdhsa_group_segment_fixed_size 0
  .amdhsa_kernarg_size 120
  .amdhsa_user_sgpr_count 2
  .amdhsa_user_sgpr_kernarg_segment_ptr 1
  .amdhsa_system_sgpr_workgroup_id_x 1
.end_amdhsa_kernel
'''
if __name__ == '__main__':
    sys.stdout.write(build(stamps=len(sys.argv) > 1))
```

```python
import sys
sys.path.insert(0, 'gen')
import fused
base = fused.build(False)
def pad(us):
    t = base.replace("    s_load_dwordx16 s[4:19], s[0:1], 0\n", "    s_memrealtime s[100:101]\n    s_load_dwordx16 s[4:19], s[0:1], 0\n", 1)
    n = [0]
    parts = t.split("    s_endpgm\n")
    tail = lambda k: f"Lpad{k}:\n    s_memrealtime s[98:99]\n    s_waitcnt lgkmcnt(0)\n    s_sub_u32 s98, s98, s100\n    s_cmp_lt_u32 s98, {us*100}\n    s_cbranch_scc1 Lpad{k}\n"
    return parts[0] + tail(0) + "    s_endpgm\n" + "    s_endpgm\n".join(parts[1:])
for us in (40, 60):
    open(f'v_pad{us}.s', 'w').write(pad(us))
```

```python
import sys, os, struct
sys.path.insert(0, os.path.dirname(os.path.abspath(__file__)))
from dsl import Asm, Ins

NAME = 'sequential_preLN__ssm_conv_s4d__mixer_s_mlp__prompt'
W1P, W2P, W3P, W4P = 0, 392 * 1024, 784 * 1024, 2352 * 1024
UB, SM, UPITCH = 0x400000, 0x600000, 7296
HP, HPITCH = 0x800000, 8320
GX, X1, PX = 0xA00000, 0xC00000, 0x1000000
FL = 0x2000000
F3, F4, F5 = FL, FL + 0x2000, FL + 0x4000
FA, FB, FH, FW, EP = FL + 0x8000, FL + 0x9000, FL + 0xA000, FL + 0xE000, FL + 0x10000
TS = 0x3000000
WS_BYTES = 0x4000000
L_LN, LNP = 0, 960
L_PK, L_PK2 = 15360, 32768
L_KG, KGP = 31744, 288
L_Y = 0
L_KT, KTSZ = 68608, 12320
L_KE, KEO, KECH = 93312, 4160, 8320
L_U = 110080
L_SM = 8 * LNP
L_HI, L_GI, L_XI, L_HID, L_ST = 106880, 0, 28672, 106880, 149888
L_STA, L_STB, L_ST3, L_FAST, L_JUNK, L_CS = L_ST, L_ST + 768, L_ST + 1152, L_ST + 2176, L_ST + 2304, L_ST + 2560
LDS_BYTES = 153600
LOG2E, INV2PI, EPS, INVD = 0x3fb8aa3b, 0x3e22f983, 0x3727c5ac, 0x3b124925
C1 = -2.0 * 0.7978845608028654 * 1.4426950408889634
def fh(x): return '0x%08x' % struct.unpack('<I', struct.pack('<f', x))[0]
SPIN = 1 << 18
sX, sLA, sAI, sCR, sCI, sDT, sDS = 4, 6, 8, 10, 12, 14, 16
sW1, sW2, sW3, sW4, sOUT, sWS = 20, 22, 24, 26, 28, 30
rWS, rX, rD, rW, rG = 32, 36, 40, 44, 48
sW, sXCD, sI, sP, sTAG, sTB, sQ, sCL, sM, sFAST = range(52, 62)
sPD0, sPD1, sUO, sTO, sFO, sPACT = range(62, 68)
sUS, sKG, sHD, sUM = 74, 75, 76, 77
sLDT, sD0, sD1 = 40, 41, 42
sM0, sM1, sCT, sTX = 78, 80, 82, 83
sA1, sA2, sA3, sA4 = 84, 85, 86, 87
def sr(n, k=4): return f's[{n}:{n+k-1}]'
def vr(n, k=4): return f'v[{n}:{n+k-1}]'
vL16, vL = 1, 2
vW1, vW2, vW3, vW4A, vW4B = 144, 200, 52, 200, 52
vCS3, vAC3, vST3, vRES = 164, 180, 196, 36

class Cfg:
    f_kt = 0
    fa_at, dma_at, poll_at, chk_at, pst_at, fa_sleep = -1, 1, 3, 5, 6, 2
    f_conv = 17
    f_hst = 21
    f_hok = 25
    f_g1 = 34
    f_gfl = 34
    f_b3a = 41
    f_g2 = 45
    f_xfl = 45
    f_b4a = 49
    two = 0
    tab = 0
    xbar = 0
    fb_at = 0
    nc_x1 = 0
    depth = 4
    touch_at = 7
    warm = 0
    cpf = 1
    x_late = 0

def zipl(*streams):
    out = []; n = max(len(x) for x in streams)
    for i in range(n):
        for x in streams:
            if i < len(x): out.append(x[i])
    return out

class K(Asm):
    def __init__(s, stamps, cfg):
        super().__init__(); s.stamps = stamps; s.cfg = cfg; s.ool = []; s.nlab = 0; s.wn = 0
    def lab(s, p): s.nlab += 1; return f'L{p}{s.nlab}'
    def srd(s, r, ptr, size):
        s(f's_mov_b32 s{r}, s{ptr}\ns_mov_b32 s{r+1}, s{ptr+1}\ns_mov_b32 s{r+2}, {size}\ns_mov_b32 s{r+3}, 0x20000')
    def stamp(s, idx, real=False):
        if not s.stamps or (s.stamps is not True and idx not in (31, 61) and (s.stamps == 'span' or idx not in s.stamps)): return
        s(f's_mem{"real" if real else ""}time s[98:99]'); s.wait_lg(0)
        s(f'v_writelane_b32 v3, s98, {idx}')
    def dump_stamps(s):
        if not s.stamps: return
        s.stamp(61, True)
        s(f's_lshl_b32 s98, s2, 3\ns_add_u32 s98, s98, s{sW}\ns_lshl_b32 s98, s98, 8\ns_add_u32 s98, s98, {TS}')
        s(f'v_lshlrev_b32 v4, 2, v{vL}\nbuffer_store_dword v3, v4, {sr(rWS)}, s98 offen')
    def cond(s, cmp_skip, body, drain=True):
        l = s.lab('c')
        s(cmp_skip); s.flush_hazards(); s(f's_cbranch_scc1 {l}')
        vm, lg = list(s.vm), list(s.lg)
        body()
        if drain: s._wait(lg=0)
        s.flush_hazards(); s.label(l)
        s.vm, s.lg = vm, lg
    def xstore(s, lines):
        slow, back = s.lab('xs'), s.lab('xb')
        s(f's_cmp_eq_u32 s{sFAST}, 0')
        for l in lines:
            ins = Ins(l); t = ins.rd | ins.wr
            hs = [x[0] for x in s.vm if x[1] & t] + [x[0] for x in s.lg if x[1] & t]
            if hs: s.wait(*hs)
        s(f's_cbranch_scc1 {slow}')
        for l in lines: s(l)
        s.label(back)
        s.ool.append(f'{slow}:\n    s_nop 7\n    s_nop 3\n' + ''.join(f'    {l} sc1\n' for l in lines) + f'    s_branch {back}\n')
    def feed1(s):
        n = s.wn; s.wn += 1
        if n < 14: reg, sb, i = vW1 + 4*n, sA1, n
        elif n < 28: reg, sb, i = vW2 + 4*(n-14), sA2, n - 14
        elif n < 56: reg, sb, i = vW3 + 4*(n-28), sA3, n - 28
        elif n < 70: reg, sb, i = vW4A + 4*(n-56), sA4, n - 56
        else: reg, sb, i = vW4B + 4*(n-70), sA4, n - 56
        if i % 4 == 0 and i: s(f's_add_u32 s{sb}, s{sb}, 4096')
        s(f'buffer_load_dwordx4 {vr(reg)}, v{vL16}, {sr(rG)}, s{sb} offen offset:{(i % 4) * 1024}')
    def feed(s, upto, depth=None):
        depth = depth or s.cfg.depth
        while s.wn < upto:
            s.wait_vm(depth - 1); s.feed1()
    def spread(s, upto, slots, first=0):
        n = max(0, upto - s.wn); out = [lambda: None] * slots
        pos = [first + (k * (slots - first)) // n for k in range(n)] if n else []
        for p in set(pos):
            out[p] = (lambda c=pos.count(p): [s.feed1() for _ in range(c)])
        return out
    def run(s, l):
        for f in l: f()
    def poll_issue(s, vdst, vaddr, soff): return s(f'buffer_load_dword v{vdst}, v{vaddr}, {sr(rWS)}, {soff} offen sc1')
    def poll_check(s, vdst, vaddr, soff, sleep=0):
        retry, back = s.lab('pr'), s.lab('pb')
        s(f'v_subrev_u32 v{vdst}, s{sTAG}, v{vdst}\nv_cmp_lt_u32 vcc, 15, v{vdst}\ns_mov_b32 s97, 0\ns_cbranch_vccnz {retry}')
        s.label(back)
        s.ool.append(f'''{retry}:
''' + (f'    s_sleep {sleep}\n' if sleep else '') + f'''    buffer_load_dword v{vdst}, v{vaddr}, {sr(rWS)}, {soff} offen sc1
    s_add_u32 s97, s97, 1
    s_cmp_gt_u32 s97, {SPIN}
    s_waitcnt vmcnt(0)
    s_cbranch_scc1 {back}
    v_subrev_u32 v{vdst}, s{sTAG}, v{vdst}
    v_cmp_lt_u32 vcc, 15, v{vdst}
    s_nop 1
    s_cbranch_vccnz {retry}
    s_branch {back}
''')
    def poll(s, vdst, vaddr, soff, lo=None, hi=None, sleep=0):
        if lo is not None: s(f's_mov_b32 exec_lo, {lo}\ns_mov_b32 exec_hi, {hi}')
        s.poll_issue(vdst, vaddr, soff); s.poll_check(vdst, vaddr, soff, sleep)
        if lo is not None: s('s_mov_b64 exec, -1')
    def flag(s, soff, vtmp=4):
        s(f'v_mov_b32 v{vtmp}, s{sTAG}')
        s.wait_vm(0, force=True)
        s('s_mov_b64 exec, 1')
        s.xstore([f'buffer_store_dword v{vtmp}, off, {sr(rWS)}, s{soff}'])
        s('s_mov_b64 exec, -1')
    def gflag(s, wave, soff, sval, vtmp, drain=False):
        s.cond(f's_cmp_lg_u32 s{sW}, {wave}', drain=drain, body=lambda: s(f'v_mov_b32 v{vtmp}, s{sval}\ns_mov_b64 exec, 1\nbuffer_store_dword v{vtmp}, off, {sr(rWS)}, s{soff} sc1\ns_mov_b64 exec, -1'))
    def dma(s, a, b, ssrc, ldsbase):
        h = None
        for i in range(a, b):
            if i % 4 == 0:
                if i: s(f's_add_u32 s{ssrc}, s{ssrc}, 4096')
                s(f's_mov_b32 m0, {ldsbase + i * 1024}')
            h = s(f'buffer_load_dwordx4 v{vL16}, {sr(rWS)}, s{ssrc} offen offset:{(i % 4) * 1024} sc1 lds')
        return h
    def pos(s, d, src, t):
        s(f'''v_and_b32 v{t}, 3, v{src}
        v_lshlrev_b32 v{t}, 2, v{t}
        v_and_or_b32 v{t}, v{src}, -16, v{t}
        v_bfe_u32 v{d}, v{src}, 2, 2
        v_or_b32 v{d}, v{d}, v{t}
        v_lshlrev_b32 v{d}, 4, v{d}''')

    def entry(s):
        s('s_cmp_ge_u32 s2, 256\ns_cbranch_scc1 Lend')
        if s.stamps: s('s_memtime s[100:101]\ns_memrealtime s[96:97]\nv_mov_b32 v3, 0'); s.wait_lg(0)
        s(f"""s_load_dwordx16 s[4:19], s[0:1], 0
        s_load_dwordx8 s[20:27], s[0:1], 64
        s_load_dwordx2 s[28:29], s[0:1], 96
        s_load_dwordx2 s[30:31], s[0:1], 112""")
        s('s_getpc_b64 s[94:95]')
        s.label('Lpc')
        s(f"""s_lshr_b32 s{sI}, s2, 3
        v_lshrrev_b32 v4, 6, v0
        v_and_b32 v6, 255, v0""")
        if s.cfg.cpf in (1, 3): s.cpf(0)
        if s.cfg.cpf == 2: s.cpf(1)
        s(f"""v_readfirstlane_b32 s{sW}, v4
        v_lshlrev_b32 v18, 4, v6""")
        if s.cfg.tab == 0: s.tabload()
        s(f"""        v_and_b32 v{vL}, 63, v0
        v_lshlrev_b32 v{vL16}, 4, v{vL}
        s_and_b32 s{sXCD}, s2, 7
        s_mul_i32 s{sP}, s{sXCD}, 28
        s_add_u32 s{sP}, s{sP}, s{sI}
        s_min_u32 s{sP}, s{sP}, 223
        s_lshl_b32 s70, s{sP}, 10
        v_lshl_add_u32 v64, v0, 1, s70
        s_lshl_b32 s68, s2, 3
        s_add_u32 s68, s68, s{sW}
        s_mul_i32 s73, s68, 896
        s_mov_b32 s{rX+2}, 896
        s_mov_b32 s{rX+3}, 0x20000""")
        s(f"""s_lshl_b32 s68, s{sW}, 8
        s_lshl_b32 s69, s{sXCD}, 5
        s_add_u32 s68, s68, s69
        s_add_u32 s68, s68, s{sI}
        s_cmpk_lt_u32 s68, 392
        s_cselect_b32 s43, 1, 0
        s_cselect_b32 s{rW+2}, {448*896}, 0
        s_min_u32 s68, s68, 391
        s_cmpk_ge_u32 s68, 196
        s_cselect_b32 s69, 196, 0
        s_sub_u32 s68, s68, s69
        s_mul_i32 s70, s68, 4682
        s_lshr_b32 s70, s70, 16
        s_mul_i32 s71, s70, 14
        s_sub_u32 s68, s68, s71
        s_mul_i32 s71, s68, 28
        s_add_u32 s71, s71, s70
        s_lshl1_add_u32 s71, s69, s71
        s_lshl_b32 s{sPD0}, s71, 10
        s_add_u32 s{sPD1}, s{sPD0}, {14*1024}
        s_mul_i32 s90, s70, {32*896}
        s_lshl_b32 s68, s68, 6
        s_add_u32 s90, s90, s68
        s_add_u32 s91, s90, {16*896}
        s_mov_b32 s{rW+3}, 0x20000
        s_lshl_b32 s93, s{sW}, 11
        s_add_u32 s93, s93, {L_PK}
        s_mov_b32 m0, s93
        s_lshl_b32 s71, s{sP}, 2
        s_mov_b32 s72, {EP}
        s_mov_b32 s{rWS+2}, {WS_BYTES}
        s_mov_b32 s{rWS+3}, 0x20000
        v_lshrrev_b32 v6, 2, v{vL}
        v_mul_u32_u24 v4, 896, v6
        v_and_b32 v5, 3, v{vL}
        v_lshl_add_u32 v4, v5, 4, v4
        s_add_u32 s{rX}, s{sX}, s73
        s_addc_u32 s{rX+1}, s{sX+1}, 0
        buffer_load_dwordx4 v[28:31], v{vL16}, {sr(rX)}, 0 offen""")
        if s.stamps: s('v_writelane_b32 v3, s100, 0\nv_writelane_b32 v3, s96, 60')
        s.stamp(1)
        if s.cfg.xbar: s('s_barrier')
        s(f"""s_cmp_eq_u32 s69, 0
        s_cselect_b32 s{rW}, s{sW1}, s{sW2}
        s_cselect_b32 s{rW+1}, s{sW1+1}, s{sW2+1}
        s_load_dword s{sTAG}, {sr(sWS,2)}, s72
        s_load_dword s{sLDT}, {sr(sDT,2)}, s71
        s_load_dword s{sD1}, {sr(sDS,2)}, s71
        buffer_load_dwordx4 v4, {sr(rW)}, s90 offen lds
        s_add_u32 m0, s93, 1024
        s_mov_b32 s{rWS}, s{sWS}
        s_mov_b32 s{rWS+1}, s{sWS+1}""")
        s.h_pack = s(f'buffer_load_dwordx4 v4, {sr(rW)}, s91 offen lds')
        s(f"""global_load_ushort v60, v64, {sr(sLA,2)}
        global_load_ushort v61, v64, {sr(sAI,2)}
        global_load_ushort v62, v64, {sr(sCR,2)}
        global_load_ushort v63, v64, {sr(sCI,2)}
        """)
        if s.cfg.cpf == 2: s.cpf(0)
        if s.cfg.tab == 1: s.tabload()

    def cpf(s, once):
        l = s.lab('cp')
        s(f'v_lshl_add_u32 v7, v0, 8, s2' if once else f'v_lshl_add_u32 v7, v0, 5, s{sI}')
        s(f"""v_lshlrev_b32 v7, 7, v7
        v_cmp_gt_u32 vcc, @CODE_BYTES@, v7
        s_and_saveexec_b64 s[70:71], vcc
        s_cbranch_execz {l}""")
        s.raw('    global_load_dword v255, v7, s[94:95]')
        s.label(l)
        s('s_mov_b64 exec, -1')
    def tabload(s):
        s(f"""s_add_u32 s68, s94, @TAB_OFF@
        s_addc_u32 s69, s95, 0
        global_load_dwordx4 v[66:69], v18, s[68:69]
        global_load_ushort v70, v18, s[68:69] offset:16""")
    def clear(s):
        for i in range(4): s(f'v_mov_b32 v{72+i}, -1')
        s(f'buffer_store_dwordx4 v[72:75], v12, {sr(rWS)}, s{sHD} offen sc1')

    def setup(s):
        s.comment('scalar offsets and lane addresses (in the shadow of the first loads)')
        s(f"""s_mov_b32 s{rG}, s{sWS}
        s_mov_b32 s{rG+1}, s{sWS+1}
        s_cmp_eq_u32 s{sW}, 7
        s_cselect_b32 s{rG+2}, 0, {WS_BYTES}
        s_mov_b32 s{rG+3}, 0x20000
        v_and_b32 v76, 15, v{vL}
        v_lshrrev_b32 v77, 4, v{vL}
        v_bfe_u32 v78, v{vL}, 2, 2
        s_lshl_b32 s{sTB}, s{sXCD}, 3
        s_lshr_b32 s68, s{sI}, 2
        s_add_u32 s{sTB}, s{sTB}, s68
        s_and_b32 s{sQ}, s{sI}, 3
        s_lshr_b32 s{sCL}, s{sTB}, 1
        s_and_b32 s{sM}, s{sI}, 7
        v_and_b32 v79, 1, v{vL}
        s_mul_i32 s70, s2, {UPITCH}
        s_lshl_b32 s71, s{sW}, 10
        s_add_u32 s70, s70, s71
        s_add_u32 s{sUO}, s70, {UB}
        s_lshl_b32 s{sFO}, s2, 4
        s_add_u32 s{sFO}, s{sFO}, {FA}
        v_lshl_add_u32 v24, v77, 3, v78
        v_lshlrev_b32 v24, 6, v24
        v_lshl_add_u32 v24, v5, 3, v24
        s_mul_i32 s{sCT}, s{sQ}, 7
        s_add_u32 s{sCT}, s{sCT}, s{sW}
        s_mul_i32 s{sA1}, s{sCT}, {14*1024}
        v_lshrrev_b32 v82, 1, v77
        s_add_u32 s{sA2}, s{sA1}, {W2P}
        s_mul_i32 s{sA3}, s{sM}, 7
        s_add_u32 s{sA3}, s{sA3}, s{sW}
        v_and_b32 v83, 1, v77
        s_mul_i32 s{sA4}, s{sA3}, {28*1024}
        s_add_u32 s{sA3}, s{sA4}, {W3P}
        s_add_u32 s{sA4}, s{sA4}, {W4P}
        s_lshl_b32 s{sUS}, s{sP}, 5
        s_add_u32 s{sUS}, s{sUS}, {UB}
        s_mul_i32 s{sHD}, s{sP}, {HPITCH}
        v_add_u32 v24, s93, v24
        v_mul_u32_u24 v27, {LNP}, v78
        s_add_u32 s{sHD}, s{sHD}, s71
        s_add_u32 s{sHD}, s{sHD}, {HP + 128}
        s_add_u32 s{sUM}, s71, {L_U + 1024}
        v_lshl_add_u32 v27, v77, 5, v27
        v_lshl_add_u32 v27, v5, 3, v27
        s_lshl_b32 s70, s{sW}, 7
        v_add_u32 v27, s70, v27
        s_mul_i32 s70, s{sW}, {LNP}
        v_add_u32 v26, s70, v{vL16}
        v_add_u32 v13, s71, v{vL16}
        s_lshl_b32 s70, s{sW}, 13
        v_add_u32 v14, s70, v{vL16}
        s_lshl_b32 s70, s{sW}, 9
        s_add_u32 s70, s70, {FA}
        v_and_b32 v17, 0x1f0, v{vL16}
        v_add_u32 v17, s70, v17
        s_mov_b32 s{sFAST}, 0""")
    def setup2(s):
        s(f"""s_and_b32 s70, s{sW}, 3
        s_lshr_b32 s71, s{sW}, 2
        v_lshrrev_b32 v80, 1, v76
        v_lshlrev_b32 v4, 2, v77
        v_sub_u32 v4, v4, v80
        s_lshl_b32 s72, s70, 7
        s_sub_u32 s72, {4*(1015 - 144) + KEO}, s72
        s_mul_i32 s73, s71, {KECH}
        s_add_u32 s73, s73, {L_KE}
        s_add_u32 s72, s72, s73
        v_add_u32 v18, s73, v18
        v_mul_u32_u24 v80, {KEO}, v79
        v_sub_u32 v80, s72, v80
        v_lshl_add_u32 v4, v4, 2, v80
        v_subrev_u32 v5, 1024, v4
        v_subrev_u32 v6, 2048, v4
        v_subrev_u32 v7, 3072, v4
        v_lshl_add_u32 v81, v76, 1, v77
        s_lshl_b32 s72, s70, 3
        s_sub_u32 s72, {30 + L_U // 32}, s72""")
        assert L_U % 512 == 0
        for e in range(2):
            s(f"""v_add_u32 v80, s72, v81
            v_bfe_u32 v84, v80, 3, 1
            v_xor_b32 v84, s71, v84
            v_lshlrev_b32 v80, 5, v80
            v_lshl_add_u32 v{8+e}, v84, 4, v80
            s_sub_u32 s72, s72, 4""")
        s(f"""v_lshrrev_b32 v80, 1, v0
        v_xor_b32 v84, v83, v79
        v_mul_u32_u24 v80, {UPITCH}, v80
        v_lshl_add_u32 v10, v84, 4, v80
        s_lshl_b32 s72, s{sW}, 11
        s_add_u32 s72, s72, {SM}
        v_lshl_add_u32 v80, v76, 1, v82
        v_lshl_add_u32 v84, v80, 6, s72
        v_lshl_add_u32 v11, v83, 5, v84
        v_lshlrev_b32 v15, 5, v80
        v_bfe_u32 v80, v80, 3, 1
        v_lshl_add_u32 v15, v80, 4, v15
        v_lshl_add_u32 v15, v83, 3, v15
        v_add_u32 v15, s{sUM}, v15
        v_xor_b32 v16, 16, v15
        v_lshlrev_b32 v12, 6, v76
        v_lshl_add_u32 v12, v77, 4, v12
        s_mul_i32 s{sKG}, s{sW}, {16*KGP}
        s_add_u32 s{sKG}, s{sKG}, {L_KG}
        v_mul_u32_u24 v20, {KGP}, v76
        v_lshl_add_u32 v20, v77, 4, v20
        v_add_u32 v20, s{sKG}, v20
        s_mul_i32 s70, s71, {KTSZ}
        s_add_u32 s70, s70, {L_KT}
        v_lshrrev_b32 v80, 3, v{vL}
        v_add_u32 v80, s{sW}, v80
        v_and_b32 v80, 3, v80
        v_lshl_add_u32 v19, v77, 6, v76
        v_lshl_add_u32 v19, v19, 4, s70
        v_lshl_add_u32 v19, v80, 2, v19
        v_mov_b32 v84, 0
        v_mov_b32 v85, 0
        v_mov_b32 v86, 0
        v_mov_b32 v87, 0
        v_add_u32 v80, {L_U}, v{vL16}
        ds_write_b128 v80, v[84:87]
        v_mul_u32_u24 v80, {KEO}, v78
        v_lshl_add_u32 v80, v79, 4, v80
        v_add_u32 v80, {L_KE + 4096}, v80
        ds_write_b128 v80, v[84:87]
        v_mov_b32 v80, s70
        ds_write_b128 v80, v[84:87] offset:{768*16}""")
        for t in range(9):
            s(f'v_add_u32_sdwa v{132+t}, v80, v{66+t//2} dst_sel:DWORD dst_unused:UNUSED_PAD src0_sel:DWORD src1_sel:WORD_{t&1}')
    def h2_addr(s):
        s(f"""v_min_u32 v80, 503, v0
        v_mul_u32_u24 v81, 7282, v80
        v_lshrrev_b32 v81, 16, v81
        v_mul_u32_u24 v84, 9, v81
        v_sub_u32 v84, v80, v84
        s_and_b32 s70, s{sQ}, 1
        s_lshl_b32 s71, s{sTB}, 3
        s_add_u32 s70, s70, s71
        v_mul_u32_u24 v21, {4*HPITCH}, v81
        v_lshl_add_u32 v21, v84, 4, v21
        v_mul_u32_u24 v22, 768, v81
        s_lshl_b32 s88, s70, 4
        s_add_u32 s88, s88, {HP + 128 - 16}
        s_add_u32 s89, s88, {HPITCH}
        v_lshrrev_b32 v80, 2, v84
        v_lshl_add_u32 v22, v80, 8, v22
        v_and_b32 v80, 3, v84
        s_add_u32 s90, s88, {2*HPITCH}
        s_add_u32 s91, s88, {3*HPITCH}
        s_sub_u32 s70, s70, 1
        v_lshl_add_u32 v22, v80, 4, v22
        v_add_u32 v22, {L_HI}, v22
        v_add_u32 v84, s70, v84
        s_movk_i32 s70, 512
        v_cmp_gt_u32 s[92:93], s70, v84
        s_mul_i32 s70, s{sW}, {64*7282}
        s_lshr_b32 s70, s70, 16
        s_lshl_b32 s70, s70, 6
        s_add_u32 s70, s70, {FB}
        v_add_u32 v26, s70, v{vL16}
        s_mov_b32 exec_lo, 0
        v_add_u32 v26, {FB + 192*16}, v{vL16}
        s_mov_b32 exec_lo, -1""")

    def pack_early(s):
        s.wait(s.h_pack)
        s(f"""ds_read_b64_tr_b16 v[52:53], v24
        ds_read_b64_tr_b16 v[54:55], v24 offset:256
        ds_read_b64_tr_b16 v[56:57], v24 offset:32
        ds_read_b64_tr_b16 v[58:59], v24 offset:288
        buffer_store_dwordx4 v[52:55], v{vL16}, {sr(rWS)}, s{sPD0} offen sc1
        buffer_store_dwordx4 v[56:59], v{vL16}, {sr(rWS)}, s{sPD1} offen sc1""")

    def ln(s):
        s.comment('layernorm of one token per wave')
        s('v_mov_b32 v51, 0x3f803f80\nv_dot2_f32_bf16 v48, v28, v51, 0')
        s.stamp(2)
        s('v_dot2_f32_bf16 v49, v28, v28, 0')
        for i in (29, 30, 31): s(f'v_dot2_f32_bf16 v48, v{i}, v51, v48\nv_dot2_f32_bf16 v49, v{i}, v{i}, v49')
        un = []
        for i in range(4): un += [f'v_lshlrev_b32 v{32+2*i}, 16, v{28+i}', f'v_and_b32 v{33+2*i}, 0xffff0000, v{28+i}']
        s(un.pop()); s(un.pop()); s(f'v_mov_b32 v50, {INVD}')
        for m in ('row_shr:1', 'row_shr:2', 'row_shr:4', 'row_shr:8', 'row_bcast:15 row_mask:0xa', 'row_bcast:31 row_mask:0xc'):
            s(f'v_add_f32_dpp v48, v48, v48 {m}\nv_add_f32_dpp v49, v49, v49 {m}')
            s(un.pop())
        s(f"""v_readlane_b32 s70, v48, 63
        v_readlane_b32 s71, v49, 63
        s_lshl_b32 s72, s{sW}, 3
        v_mov_b32 v65, s72
        v_mul_f32 v49, s70, v50
        v_mul_f32 v48, s71, v50
        v_fma_f32 v48, -v49, v49, v48
        v_max_f32 v48, 0, v48
        v_add_f32 v48, {EPS}, v48
        v_rsq_f32 v50, v48
        s_mov_b32 exec_hi, 0x00ffffff
        v_mul_f32 v51, -v49, v50""")
        for i in range(4): s(f'v_pk_fma_f32 {vr(40+2*i,2)}, {vr(32+2*i,2)}, v[50:51], v[50:51] op_sel:[0,0,1] op_sel_hi:[1,0,1]')
        for i in range(4): s(f'v_cvt_pk_bf16_f32 v{28+i}, v{40+2*i}, v{41+2*i}')
        s(f"""ds_write_b128 v26, v[28:31] offset:{L_LN}
        v_mul_f32 v48, v48, v50
        ds_write_b64 v65, v[48:49] offset:{L_SM}
        s_mov_b32 exec_hi, -1
        s_lshr_b32 s{sTAG}, s{sTAG}, 4
        s_mul_i32 s{sTAG}, s{sTAG}, 1664525
        s_add_u32 s{sTAG}, s{sTAG}, 1013904223
        s_lshl_b32 s{sTAG}, s{sTAG}, 4
        s_getreg_b32 s70, hwreg(HW_REG_XCC_ID, 0, 4)
        s_add_u32 s{sTX}, s70, s{sTAG}""")
        s.barrier()
        s(f'ds_read_b64_tr_b16 v[48:49], v27 offset:{L_LN}\nds_read_b64_tr_b16 v[50:51], v27 offset:{L_LN + 4*LNP}')
        s.cond(f's_cmp_lg_u32 s{sW}, 7', lambda: s(f's_mov_b64 exec, 15\nds_read_b128 v[48:51], v{vL16} offset:{L_SM}\ns_lshl_b32 s{sUO}, s2, 6\ns_add_u32 s{sUO}, s{sUO}, {SM}'))
        s(f'buffer_store_dwordx4 v[48:51], v{vL16}, {sr(rWS)}, s{sUO} offen sc1\ns_mov_b64 exec, -1')
        s.stamp(3)
        s.wait(*[h for h, r in s.vm if r])
        s.stamp(40)
        s.cond(f's_cmp_eq_u32 s43, 0', s.pack_early)

    def pack_late_issue(s):
        s.comment('W3/W4 packing: unit V = 256 w + 32 xcd + i - 392 in [0, 1568)')
        s(f"""s_lshl_b32 s68, s{sW}, 8
        s_lshl_b32 s69, s{sXCD}, 5
        s_add_u32 s68, s68, s69
        s_add_u32 s68, s68, s{sI}
        s_sub_u32 s68, s68, 392
        s_cmpk_lt_u32 s68, 1568
        s_cselect_b32 s{rW+2}, {448*3584}, 0
        s_cselect_b32 s{sPACT}, {WS_BYTES}, 0
        s_min_u32 s68, s68, 1567
        s_cmpk_lt_u32 s68, 784
        s_cselect_b32 s{rW}, s{sW3}, s{sW4}
        s_cselect_b32 s{rW+1}, s{sW3+1}, s{sW4+1}
        s_cselect_b32 s4, 56, 14
        s_cselect_b32 s5, 28, 14
        s_cselect_b32 s6, 0, 182
        s_cselect_b32 s10, 0, 784
        s_movk_i32 s7, 4682
        s_cmovk_i32 s7, 1171
        s_movk_i32 s8, 896
        s_cmovk_i32 s8, 3584
        s_movk_i32 s9, 2352
        s_cmovk_i32 s9, 784
        s_sub_u32 s68, s68, s10
        v_mul_u32_u24 v23, s8, v6
        s_mov_b32 s15, s93
        s_lshl_b32 s11, s8, 4
        s_mul_i32 s69, s68, s7
        s_lshr_b32 s69, s69, 16
        v_lshl_add_u32 v23, v5, 4, v23
        s_mul_i32 s70, s69, s4
        s_sub_u32 s70, s68, s70
        s_mul_i32 s71, s69, 9363
        v_lshl_add_u32 v25, v82, 3, v78
        s_lshr_b32 s71, s71, 16
        s_mul_i32 s71, s71, s6
        s_mul_i32 s72, s70, s5
        v_lshlrev_b32 v25, 6, v25
        s_add_u32 s71, s71, s72
        s_lshl1_add_u32 s71, s69, s71
        s_add_u32 s71, s71, s9
        v_lshl_add_u32 v25, v83, 5, v25
        s_lshl_b32 s12, s71, 10
        s_mul_i32 s69, s69, s11
        s_lshl_b32 s70, s70, 6
        v_lshl_add_u32 v25, v79, 4, v25
        s_lshl1_add_u32 s69, s69, s70
        s_add_u32 s13, s69, s11
        s_mov_b32 s14, s69
        v_lshrrev_b32 v81, 1, v5
        v_lshl_add_u32 v25, v81, 3, v25
        v_add_u32 v25, s93, v25""")
    def pack_late_dma(s):
        s(f's_mov_b32 m0, s15\nbuffer_load_dwordx4 v23, {sr(rW)}, s14 offen lds\ns_add_u32 m0, s15, 1024')
        s.h_pack = s(f'buffer_load_dwordx4 v23, {sr(rW)}, s13 offen lds')
    def publish_a(s, conv=True):
        s.wait_vm(2 if s.cfg.dma_at == 0 else 0, force=True)
        s('s_barrier')
        s.stamp(5)
        s.gflag(0, sFO, sTX, 118)
        if conv: s(f's_lshl_b32 s{sFO}, s{sP}, 4\ns_add_u32 s{sFO}, s{sFO}, {FB}')
        else: s(f's_lshl2_add_u32 s{sFO}, s{sXCD}, s{sQ}\ns_lshl_b32 s{sFO}, s{sFO}, 4\ns_add_u32 s{sFO}, s{sFO}, {FB + 224*16}')
        if conv: s.clear()
        if s.cfg.dma_at == 1: s.pack_late_dma(); s(f's_mov_b32 m0, s{sKG}')
    def pack_late_store(s):
        s.wait(s.h_pack)
        for e in range(4): s(f'ds_read_b64_tr_b16 {vr(76+2*e,2)}, v25 offset:{1024*(e>>1) + 256*(e&1)}')
        s(f"""s_mov_b32 s{rW}, s{sWS}
        s_mov_b32 s{rW+1}, s{sWS+1}
        s_mov_b32 s{rW+2}, s{sPACT}
        buffer_store_dwordx4 v[76:79], v{vL16}, {sr(rW)}, s12 offen sc1""")
        s.h_pst = s(f'buffer_store_dwordx4 v[80:83], v{vL16}, {sr(rW)}, s12 offen offset:1024 sc1')

    def cm(s, d, a, b, t):
        return [f'v_pk_mul_f32 {vr(t,2)}, {vr(a,2)}, {vr(b,2)} op_sel_hi:[1,0]',
                f'v_pk_fma_f32 {vr(d,2)}, {vr(a,2)}, {vr(b,2)}, {vr(t,2)} op_sel:[1,1,0] op_sel_hi:[0,1,1] neg_lo:[1,0,0]']
    def kgen(s):
        c = s.cfg
        assert c.pst_at >= 4 and c.fa_at <= c.poll_at <= c.chk_at
        Z = lambda k: 74 + 2 * k
        Z128, ZD, R0, R1, TT = 92, 94, 112, 114, 116
        CH = [(96, 98, 100, 102), (104, 106, 108, 110)]
        BF, AF, ACC = 156, (172, 188, 204), 220
        s(f"""s_lshl_b32 s70, s{sLDT}, 16
        s_and_b32 s71, s{sLDT}, 0xffff0000
        s_cmp_lt_u32 s{sW}, 4
        s_cselect_b32 s72, s70, s71
        s_mov_b32 s70, {LOG2E}
        s_mov_b32 s71, {INV2PI}
        v_mov_b32 v64, s72
        v_lshlrev_b32 v60, 16, v60
        v_mul_f32 v64, s70, v64
        v_mul_f32 v60, s70, v60
        v_exp_f32 v64, v64
        v_exp_f32 v60, v60
        v_lshlrev_b32 v61, 16, v61
        v_lshlrev_b32 v62, 16, v62
        v_lshlrev_b32 v63, 16, v63
        v_cvt_pk_bf16_f32 v64, v64, v60
        v_and_b32 v60, 0xffff0000, v64
        v_lshlrev_b32 v64, 16, v64
        v_pk_mul_f32 v[60:61], v[60:61], v[64:65] op_sel_hi:[1,0]
        v_add_f32 v64, v64, v64
        v_pk_mul_f32 v[60:61], v[60:61], s[70:71]
        v_pk_mul_f32 {vr(R0,2)}, v[62:63], v[64:65] op_sel_hi:[1,0]
        s_mov_b32 m0, s{sKG}
        s_mov_b32 s70, 0x41000000
        s_mov_b32 s71, 0x43000000
        v_pk_mul_f32 v[62:63], v[60:61], s[70:71] op_sel_hi:[1,0]
        v_pk_mul_f32 v[64:65], v[60:61], s[70:71] op_sel:[0,1]
        s_lshl_b32 s{sD0}, s{sD1}, 16
        s_and_b32 s{sD1}, s{sD1}, 0xffff0000""")
        for r in (62, 64, 60): s(f'v_exp_f32 v{r}, -v{r}\nv_fract_f32 v{r+1}, v{r+1}')
        for r, d in ((62, Z(8)), (64, Z128), (60, Z(1))): s(f'v_cos_f32 v{d}, v{r+1}\nv_sin_f32 v{d+1}, v{r+1}')
        for r, d in ((62, Z(8)), (64, Z128), (60, Z(1))): s(f'v_pk_mul_f32 {vr(d,2)}, {vr(d,2)}, {vr(r,2)} op_sel_hi:[1,0]')
        s.stamp(4)
        def chain(st, rows, start, mul, neg=False):
            a, b, t, pk = CH[st]; out = []; cur, nxt = start, a
            for i, row in enumerate(rows):
                cc = s.cm(nxt, cur, mul, t) if i < len(rows) - 1 else []
                out += cc[:1] + [f'v_cvt_pk_bf16_f32 v{pk + (i&1)}, v{cur}, {"-" if neg else ""}v{cur+1}'] + cc[1:] + [f'ds_write_addtid_b32 v{pk + (i&1)} offset:{row*KGP}']
                cur, nxt = nxt, (b if nxt == a else a)
            return out
        def rd(dst):
            for ks in range(4): s(f'ds_read_b128 {vr(dst+4*ks)}, v20 offset:{64*ks}')
        E = lambda l: [s(x) for x in l]
        zz = zipl if c.two else (lambda *a: sum(a, []))
        def hook(k):
            if c.fa_at == k: s.publish_a()
            if c.poll_at == k: s.poll_issue(118, 17, 0)
            if c.chk_at == k:
                s.poll_check(118, 17, 0, c.fa_sleep)
                if s.stamps: s('v_writelane_b32 v3, s97, 58')
                s(f's_mov_b32 m0, s{sUM}')
                s.h_u = s(f'buffer_load_dwordx4 v10, {sr(rWS)}, s{sUS} offen sc1 lds')
                if k < 4: s(f's_mov_b32 m0, s{sKG}')
                s.stamp(8)
            if c.pst_at == k: s.pack_late_store()
        hook(0)
        if c.two:
            E(zipl(s.cm(ZD, Z(8), Z(8), 100), s.cm(R1, R0, Z(8), 108), s.cm(Z(2), Z(1), Z(1), TT)))
            E(zipl(chain(0, range(0, 16, 2), R0, ZD, True), chain(1, range(1, 16, 2), R1, ZD, True)))
            rd(BF)
            E(zipl(s.cm(ZD, Z128, Z128, 100), s.cm(R1, Z(8), Z128, 108), s.cm(Z(4), Z(2), Z(2), TT)))
            hook(1); s.stamp(35)
            E(zipl(chain(0, range(0, 16, 2), Z(8), ZD), chain(1, range(1, 16, 2), R1, ZD)))
        else:
            E(chain(0, range(16), R0, Z(8), True))
            rd(BF)
            E(s.cm(Z(2), Z(1), Z(1), TT) + s.cm(Z(4), Z(2), Z(2), TT))
            hook(1); s.stamp(35)
            E(chain(0, range(16), Z(8), Z128))
        rd(AF[0])
        E(zipl(s.cm(Z(6), Z(4), Z(2), 100), s.cm(Z(3), Z(2), Z(1), 108), s.cm(Z(5), Z(4), Z(1), TT)))
        hook(2); s.stamp(36)
        E(zz(chain(0, range(0, 8), Z(4), Z128), chain(1, range(8, 12), Z(2), Z128) + chain(1, range(12, 16), Z(6), Z128), s.cm(Z(7), Z(6), Z(1), TT)))
        rd(AF[1])
        hook(3); s.stamp(37)
        E(zz(chain(0, (0, 1), Z(1), Z128) + chain(0, (4, 5), Z(5), Z128), chain(1, (2, 3), Z(3), Z128) + chain(1, (6, 7), Z(7), Z128)))
        s(f'v_mov_b32 v{TT}, 0x3f80\nds_write_addtid_b32 v{TT} offset:{8*KGP}')
        rd(AF[2])
        s.stamp(6); hook(4)
        for ks in range(4):
            for t in range(2): s(f'v_mfma_f32_16x16x32_bf16 {vr(ACC+4*t)}, {vr(AF[t]+4*ks)}, {vr(BF+4*ks)}, {vr(ACC+4*t) if ks else 0}')
        for ks in range(4): s(f'v_mfma_f32_16x16x32_bf16 {vr(ACC+8)}, {vr(AF[2]+4*ks)}, {vr(BF+4*ks)}, {vr(ACC+8) if ks else 0}')
        for t in range(3):
            for r in range(4): s(f'ds_write_b32 v19, v{ACC+4*t+r} offset:{(16*t+r)*256}')
        hook(5)
        s.barrier()
        s.stamp(7)
        for t in range(9): s(f'ds_read_b128 {vr(28+4*t)}, v{132+t}')
        hook(6)
        if c.chk_at <= 5: s.feed(c.f_kt, 63)
        for t in range(9):
            s(f'v_pk_add_f32 {vr(28+4*t,2)}, {vr(28+4*t,2)}, {vr(30+4*t,2)}')
            if t: s(f'v_add_f32 v{24+4*t}, v{24+4*t}, v{25+4*t}')
        s('v_add_f32 v60, v60, v61')
        for i in range(4): s(f'v_cvt_pk_bf16_f32 v{64+i}, v{28+8*i}, v{32+8*i}')
        s('ds_write_b128 v18, v[64:67]')
        for i in range(4): s(f'v_cvt_pk_bf16_f32 v{68+i}, v{32+8*i}, v{36+8*i}')
        s(f'ds_write_b128 v18, v[68:71] offset:{KEO}')
        s.stamp(9); hook(7)

    def conv(s):
        c = s.cfg
        A, B, ACC = 28, 60, 92
        def rdA(slot, e, a):
            off = 16 * (1 - e) + 128 * (1 - (a & 1))
            s(f'ds_read2_b32 {vr(A+4*slot,2)}, v{4+(a>>1)} offset0:{off} offset1:{off+1}')
            s(f'ds_read2_b32 {vr(A+4*slot+2,2)}, v{4+(a>>1)} offset0:{off+2} offset1:{off+3}')
        def rdB(slot, e, b): s(f'ds_read_b128 {vr(B+4*slot)}, v{8+e} offset:{1024*b}')
        s.wait(s.h_u); s.barrier(); s.stamp(10)
        for k in range(4): rdA(k, 0, k); rdB(k, 0, k)
        s(f'buffer_load_dwordx4 v[124:127], v11, {sr(rWS)}, 0 offen sc1\nbuffer_load_dwordx4 v[128:131], v11, {sr(rWS)}, 0 offen offset:16 sc1')
        ex = s.spread(c.f_conv, 66)
        bs = ['ds_read_b64 v[140:141], v15', 'ds_read_b64 v[142:143], v16', '', '', '', '']
        for i in range(4): bs += [f'v_lshlrev_b32 v{132+2*i}, 16, v{140+i}', f'v_and_b32 v{133+2*i}, 0xffff0000, v{140+i}']
        for ch in range(2):
            bs += [f'v_add_f32 v{140+r}, s{sD0+ch}, v{124+2*r}' for r in range(4)]
            bs += [f'v_fma_f32 v{132+4*ch+r}, v{132+4*ch+r}, v{140+r}, v{125+2*r}' for r in range(4)]
        seen = set(); n = [0]
        def mf(nu, a, b):
            s(f'v_mfma_f32_16x16x32_bf16 {vr(ACC+4*nu)}, {vr(A+4*a)}, {vr(B+4*b)}, {vr(ACC+4*nu) if nu in seen else 0}')
            seen.add(nu); n[0] += 1
            if ex: ex.pop(0)()
            if n[0] > 40 and bs: s(bs.pop(0))
        slot = {}
        for k in range(8):
            if k < 4: rdA(k + 4, 0, k + 4); rdB(k + 4, 0, k + 4)
            prs = [(k, j) for j in range(k + 1) if k + j <= 7] + [(j, k) for j in range(k) if k + j <= 7]
            for a, b in prs: mf(a + b, a, b)
            if k >= 4:
                for j, sl in ((2*(k-4), k), (2*(k-4) + 1, 7 - k)):
                    slot[j] = sl; rdA(sl, 1, j); rdB(sl, 1, j)
        for nu in range(8):
            if nu == c.fb_at:
                s.wait(s.h_pst); s('s_barrier'); s.gflag(3, sFO, sTAG, 18, False)
            for a in range(nu + 1): mf(nu, slot[a], slot[nu - a])
            if nu >= 3: s(f'ds_write_b128 v13, {vr(ACC+4*(nu-3))} offset:{L_Y + 8192*(nu-3)}')
            if nu >= 6: s(f'ds_write_b128 v13, {vr(ACC+4*(nu-1))} offset:{L_Y + 8192*(nu-1)}')
        assert not bs
        s.stamp(38)
        s(f'ds_write_b128 v13, {vr(ACC+4*7)} offset:{L_Y + 8192*7}')
        s(f's_lshl_b32 s68, s2, 6\ns_add_u32 s68, s68, {FH}')
        s.barrier(); s.stamp(11)
        for i in (0, 4, 1, 5, 2, 6, 3, 7): s(f'ds_read_b128 {vr(A+4*i)}, v14 offset:{L_Y + 1024*i}')
        s.poll_issue(25, 26, 0)
        s.gflag(7, 68, sTAG, 4, False)
        for i in (0, 4, 1, 5, 2, 6, 3, 7):
            ch = i >> 2
            for h in range(2): s(f'v_pk_add_f32 {vr(132+4*ch+2*h,2)}, {vr(132+4*ch+2*h,2)}, {vr(A+4*i+2*h,2)}')
        for r in range(4): s(f'v_cvt_pk_bf16_f32 v{140+r}, v{132+r}, v{136+r}')
        for r in range(4): s(f'v_min_u32 v{140+r}, -2, v{140+r}')
        h = s(f'buffer_store_dwordx4 v[140:143], v12, {sr(rWS)}, s{sHD} offen sc1')
        s.stamp(12)
        s.feed(c.f_hst, 63)
        return h

    def nonconv(s):
        c = s.cfg
        s(f"""v_lshlrev_b32 v15, 7, v{vL}
        s_lshl_b32 s68, s{sXCD}, 2
        s_add_u32 s68, s68, s{sQ}
        s_lshl_b32 s73, s68, 8
        s_add_u32 s73, s73, {F3}
        s_mul_i32 s68, s68, 7
        s_add_u32 s68, s68, s{sW}
        s_lshl_b32 s68, s68, 13
        s_add_u32 s69, s68, {X1}
        s_add_u32 s68, s68, {GX}
        v_lshlrev_b32 v16, 7, v79
        v_min_u32 v81, 2, v78
        v_lshl_add_u32 v16, v81, 13, v16
        s_mov_b32 s{sKG}, 0""")
        s.h2_addr()
        if c.dma_at == 0: s.pack_late_dma()
        s.publish_a(False)
        s.pack_late_store()
        s.wait_vm(0); s.barrier(); s.stamp(7)
        s.gflag(1, sFO, sTAG, 118)
        s.poll_issue(18, 17, 0)
        s(f'buffer_load_dword v119, v16, {sr(rWS)}, s73 offen sc1\nbuffer_load_dword v120, v15, {sr(rG)}, s68 offen sc1')
        if c.nc_x1: s(f'buffer_load_dword v121, v15, {sr(rG)}, s69 offen sc1')
        s.poll_check(18, 17, 0, 8)
        s.barrier(); s.stamp(8)
        s.feed(c.f_hst, 63)
        s(f's_lshl_b32 s68, s2, 6\ns_add_u32 s68, s68, {FH - 32*64}\nv_mov_b32 v14, 0')
        s.wait_vm(0); s.stamp(10)
        s.cond(f's_cmp_lg_u32 s{sW}, 7', lambda: s.poll(18, 14, 's68', 1, 0, sleep=4))
        s.barrier()
        s.poll_issue(25, 26, 0); s.wait_vm(0)

    def h2(s, behind):
        ld = [f'buffer_load_dwordx4 {vr(8+4*j)}, v4, {sr(rWS)}, s{88+j} offen sc1' for j in range(4)]
        chk = [f'v_max3_u32 v24, v{8+2*i}, v{9+2*i}, {"v24" if i else "v8"}' for i in range(8)] + ['v_cmp_eq_u32 vcc, -1, v24']
        s.poll_check(25, 26, 0, 2)
        if s.stamps: s('v_writelane_b32 v3, s97, 57')
        for l in ld: s(l)
        for l in chk: s(l)
        retry, back = s.lab('hr'), s.lab('hb')
        s(f's_mov_b32 s97, 0\ns_and_b64 vcc, vcc, s[92:93]\ns_cbranch_vccnz {retry}')
        s.label(back)
        s.ool.append(f'{retry}:\n' + ''.join(f'    {l}\n' for l in ld) + f'    s_add_u32 s97, s97, 1\n    s_cmp_gt_u32 s97, {SPIN}\n    s_waitcnt vmcnt(0)\n    s_cbranch_scc1 {back}\n'
                     + ''.join(f'    {l}\n' for l in chk) + f'    s_nop 1\n    s_and_b64 vcc, vcc, s[92:93]\n    s_cbranch_vccnz {retry}\n    s_branch {back}\n')
        if s.stamps: s('v_writelane_b32 v3, s97, 59')
        s.stamp(14)
        behind()
        for j in range(4):
            for i in range(j): s(f'v_swap_b32 v{8+4*j+i}, v{8+4*i+j}')
        for i in range(4): s(f'ds_write_b128 v5, {vr(8+4*i)} offset:{64*i}')

    def stats_tail(s, a, extra, vadr, tab):
        s(f'''v_cndmask_b32 v{a}, v{a}, v{a+1}, s[92:93]
        v_cndmask_b32 v{a}, v{a}, v{a+2}, s[94:95]
        v_mul_f32 v{a+3}, s96, v{a+3}
        v_mul_f32 v{a}, s96, v{a}
        v_fma_f32 v{a}, -v{a+3}, v{a+3}, v{a}
        v_max_f32 v{a}, 0, v{a}
        v_add_f32 v{a+1}, {EPS}, v{a}
        v_rsq_f32 v{a+1}, v{a+1}''')
        if extra:
            s(f'''v_mul_f32 v{a}, v{a}, v{a+1}
            v_mov_b32 v50, v{a+1}
            v_mul_f32 v51, -v{a+3}, v{a+1}
            v_fmaak_f32 v{a}, v{a}, v{a+1}, {EPS}
            v_rsq_f32 v{a}, v{a}
            ds_write_b64 v{extra}, v[50:51] offset:{tab // 2}
            v_mul_f32 v{a+1}, v{a+1}, v{a}''')
        s(f'''v_rcp_f32 v{a+2}, v{a+1}
        v_mul_f32 v{a}, {fh(C1)}, v{a+1}
        v_mul_f32 v{a+1}, v{a+1}, v{a+1}
        v_mul_f32 v{a+1}, v{a+1}, v{a}
        v_mul_f32 v{a+1}, {fh(0.044715)}, v{a+1}
        ds_write_b128 v{vadr}, {vr(a)} offset:{tab}''')
    def gelu_pk(s, acc, cs, st, n, t, out):
        P = range(0, n, 2); o = []
        o += [f'v_pk_fma_f32 {vr(acc+i,2)}, {vr(cs+i,2)}, {vr(st+2,2)}, {vr(acc+i,2)} op_sel:[0,1,0] op_sel_hi:[1,1,1] neg_lo:[0,1,0] neg_hi:[0,1,0]' for i in P]
        o += [f'v_pk_mul_f32 {vr(t+i,2)}, {vr(acc+i,2)}, {vr(acc+i,2)}' for i in P]
        o += [f'v_pk_fma_f32 {vr(t+i,2)}, {vr(t+i,2)}, {vr(st,2)}, {vr(st,2)} op_sel:[0,1,0] op_sel_hi:[1,1,0]' for i in P]
        o += [f'v_pk_mul_f32 {vr(t+i,2)}, {vr(t+i,2)}, {vr(acc+i,2)}' for i in P]
        o += [f'v_exp_f32 v{t+i}, v{t+i}' for i in range(n)]
        o += [f'v_pk_fma_f32 {vr(t+i,2)}, {vr(t+i,2)}, {vr(st+2,2)}, {vr(st+2,2)} op_sel_hi:[1,0,0]' for i in P]
        o += [f'v_rcp_f32 v{t+i}, v{t+i}' for i in range(n)]
        o += [f'v_pk_mul_f32 {vr(t+i,2)}, {vr(t+i,2)}, {vr(acc+i,2)}' for i in P]
        o += [f'v_cvt_pk_bf16_f32 v{out+i//2}, v{t+i}, v{t+i+1}' for i in P]
        return o
    def gelu_sc(s, acc, cs, st, n, t, out, ex):
        steps = [lambda i: f'v_fma_f32 v{acc+i}, -v{cs+i}, v{st+3}, v{acc+i}', lambda i: f'v_mul_f32 v{t+i}, v{acc+i}, v{acc+i}',
                 lambda i: f'v_fma_f32 v{t+i}, v{t+i}, v{st+1}, v{st}', lambda i: f'v_mul_f32 v{t+i}, v{t+i}, v{acc+i}',
                 lambda i: f'v_exp_f32 v{t+i}, v{t+i}', lambda i: f'v_fma_f32 v{t+i}, v{t+i}, v{st+2}, v{st+2}',
                 lambda i: f'v_rcp_f32 v{t+i}, v{t+i}', lambda i: f'v_mul_f32 v{t+i}, v{t+i}, v{acc+i}',
                 lambda i: f'v_cvt_pk_bf16_f32 v{out+i//2}, v{t+i}, v{t+i+1}' if i % 2 == 0 else '']
        for f in steps:
            ex.pop(0)()
            for i in range(n): s(f(i))
    def gemm16(s, W, acc, vaddr, kstride, first_zero, ex):
        seq = [(ks, t) for ks in range(14) for t in range(2)]
        def rd(i): ks, t = seq[i]; s(f'ds_read_b128 {vr(8+4*(i%4))}, v{vaddr} offset:{ks*kstride + 256*t}')
        for i in range(3): rd(i)
        for i, (ks, t) in enumerate(seq):
            if i + 3 < 28: rd(i + 3)
            c = 0 if (first_zero and ks == 0) else vr(acc + 4*t)
            s(f'v_mfma_f32_16x16x32_bf16 {vr(acc+4*t)}, {vr(W+4*ks)}, {vr(8+4*(i%4))}, {c}')
            if ex: ex.pop(0)()
    def gemm32(s, jobs, vaddr, extra=None, nb=4, buf=8):
        seq = [(j, i) for j, job in enumerate(jobs) for i in range(job[1])]
        ex = list(extra or [])
        def rd(n): j, i = seq[n]; s(f'ds_read_b128 {vr(buf+4*(n%nb))}, v{vaddr} offset:{jobs[j][3] + 1024*i}')
        s('s_setprio 1')
        for n in range(nb - 1): rd(n)
        for n, (j, i) in enumerate(seq):
            W, nk, acc, _, after = jobs[j]
            if n + nb - 1 < len(seq): rd(n + nb - 1)
            s(f'v_mfma_f32_32x32x16_bf16 {vr(acc,16)}, {vr(W+4*i)}, {vr(buf+4*(n%nb))}, {vr(acc,16) if i else 0}')
            if ex: ex.pop(0)()
            if i == nk - 1 and after: ex += [lambda: None] * 3 + after
        s('s_setprio 0')
        s.run(ex)
    def cs3(s, a, b):
        for ks in range(a, b): s(f'v_mfma_f32_16x16x32_bf16 v[168:171], {vr(vW3+4*ks)}, v[164:167], {"v[168:171]" if ks else 0}')

    def g_pre(s):
        s.comment('G wave addresses (v6 GEMM1 B, v7 residual h, v50/v51 stats, masks)')
        s(f'''s_lshl_b32 s70, s{sQ}, 2
        s_lshr_b32 s71, 0x2213, s70
        s_and_b32 s71, s71, 15
        s_lshr_b32 s72, 0x0404, s70
        s_and_b32 s72, s72, 15
        v_and_b32 v44, 15, v{vL}
        v_lshrrev_b32 v45, 4, v{vL}
        v_add_u32 v46, s71, v44
        v_add_u32 v47, s72, v44''')
        s.pos(6, 46, 48)
        s(f'v_mul_u32_u24 v48, 768, v45\nv_add_u32 v6, v6, v48\nv_add_u32 v6, {L_HI}, v6')
        s.pos(7, 47, 48)
        s(f'''v_lshrrev_b32 v48, 1, v45
        s_lshl_b32 s73, s{sCT}, 1
        v_add_u32 v48, s73, v48
        v_mul_u32_u24 v48, 768, v48
        v_and_b32 v49, 1, v45
        v_lshl_add_u32 v48, v49, 3, v48
        v_add_u32 v7, v7, v48
        v_add_u32 v7, {L_HI}, v7
        s_sub_u32 s73, s71, s72
        s_lshl_b32 s70, s{sTB}, 5
        s_add_u32 s73, s73, s70
        v_add_u32 v48, s73, v44
        v_add_u32 v49, 16, v48
        s_movk_i32 s70, 2048
        v_cmp_gt_u32 {sr(sM0,2)}, s70, v48
        v_cmp_gt_u32 {sr(sM1,2)}, s70, v49
        v_lshlrev_b32 v50, 4, v46
        v_add_u32 v50, {L_STA}, v50
        v_lshlrev_b32 v51, 3, v47
        v_add_u32 v51, {L_STB}, v51''')
        for i in range(4): s(f'v_mov_b32 v{28+i}, 0x3f803f80')
        for ks in range(14): s(f'v_mfma_f32_16x16x32_bf16 v[32:35], {vr(vW1+4*ks)}, v[28:31], {"v[32:35]" if ks else 0}')

    def g_wave(s, hst):
        c = s.cfg
        assert c.f_hok <= 28
        s.g_pre()
        if hst: s.wait(hst)
        s.stamp(13)
        s.h2(lambda: s.feed(c.f_hok, 63))
        s.barrier(); s.stamp(15)
        s('v_lshlrev_b32 v5, 4, v44\nv_lshl_add_u32 v5, v45, 9, v5')
        s.gemm16(vW1, 24, 6, 3072, True, s.spread(c.f_g1, 28))
        n1 = max(0, s.wn - 28)
        s(f'''s_mul_i32 s70, s{sTB}, 28
        s_add_u32 s70, s70, s{sCT}
        s_lshl_b32 s70, s70, 10
        s_add_u32 s71, s70, {X1}
        s_add_u32 s70, s70, {GX}
        s_lshl_b32 s72, s{sTB}, 5
        s_add_u32 s72, s72, s{sCT}
        s_lshl_b32 s72, s72, 2
        s_add_u32 s73, s72, {F4}
        s_add_u32 s72, s72, {F3}
        v_mov_b32 v4, {L_FAST}''')
        s.barrier(); s.stamp(16)
        s('ds_read_b128 v[36:39], v50\nds_read_b128 v[40:43], v50 offset:256\nds_read_b32 v4, v4')
        for l in zipl(s.gelu_pk(24, 32, 36, 4, 8, 20), s.gelu_pk(28, 32, 40, 4, 12, 22)): s(l)
        s(f'''v_readfirstlane_b32 s{sFAST}, v4
        v_cndmask_b32 v20, 0, v20, {sr(sM0,2)}
        v_cndmask_b32 v22, 0, v22, {sr(sM1,2)}
        v_cndmask_b32 v21, 0, v21, {sr(sM0,2)}
        v_cndmask_b32 v23, 0, v23, {sr(sM1,2)}
        v_permlane16_swap_b32 v20, v22
        v_permlane16_swap_b32 v21, v23''')
        s.xstore([f'buffer_store_dwordx4 v[20:23], v{vL16}, {sr(rWS)}, s70 offen'])
        s.stamp(17)
        s('''ds_read_b64 v[8:9], v7
        ds_read_b64 v[10:11], v7 offset:256
        ds_read_b64 v[12:13], v51
        ds_read_b64 v[14:15], v51 offset:128''')
        s.flag(72)
        s.stamp(18)
        for i in range(4): s(f'v_lshlrev_b32 v{vRES+2*i}, 16, v{8+i}\nv_and_b32 v{vRES+1+2*i}, 0xffff0000, v{8+i}')
        for i in range(4): s(f'v_pk_fma_f32 {vr(24+2*i,2)}, {vr(vRES+2*i,2)}, {vr(12+2*(i>>1),2)}, {vr(12+2*(i>>1),2)} op_sel:[0,0,1] op_sel_hi:[1,0,1]')
        s(f'''v_xor_b32 v46, v44, v45
        v_and_b32 v46, 1, v46
        v_cmp_eq_u32 vcc, 0, v46
        v_mov_b32 v46, 0x3f803f80
        v_cndmask_b32 v164, 0, v46, vcc
        v_cndmask_b32 v165, 0, v46, vcc
        v_cndmask_b32 v166, 0, v46, vcc
        v_cndmask_b32 v167, 0, v46, vcc
        s_lshl_b32 s70, s{sW}, 7
        s_add_u32 s70, s70, {L_CS}
        v_and_b32 v46, 1, v44
        v_lshlrev_b32 v46, 6, v46
        v_lshl_add_u32 v46, v45, 4, v46
        v_add_u32 v48, s70, v46
        v_lshrrev_b32 v47, 5, v{vL}
        v_lshl_add_u32 v49, v47, 4, s70
        v_add_u32 v6, {L_XI}, v{vL16}
        s_lshl_b32 s70, s{sW}, 11
        s_add_u32 s70, s70, {L_HID}
        v_add_u32 v7, s70, v{vL16}
        v_add_u32 v44, {L_HID}, v{vL16}
        v_and_b32 v45, 31, v{vL}
        v_lshlrev_b32 v46, 4, v45
        v_add_u32 v46, {L_ST3}, v46
        v_mul_u32_u24 v45, 896, v45
        v_lshl_add_u32 v45, v47, 4, v45''')
        s.cs3(0, n1)
        s.feed(c.f_gfl, 2)
        s.barrier()
        s.feed(c.f_b3a)
        s.barrier(); s.stamp(19)
        s.gemm16(vW2, 24, 5, 2048, False, s.spread(c.f_g2, 14))
        n2 = min(28, s.wn - 28)
        for i in range(4): s(f'v_cvt_pk_bf16_f32 v{20+i}, v{24+2*i}, v{25+2*i}')
        s('v_permlane16_swap_b32 v20, v22\nv_permlane16_swap_b32 v21, v23')
        s.xstore([f'buffer_store_dwordx4 v[20:23], v{vL16}, {sr(rWS)}, s71 offen'])
        s.stamp(20)
        for i in range(4): s(f'v_pk_add_f32 {vr(vRES+2*i,2)}, {vr(vRES+2*i,2)}, {vr(24+2*i,2)}')
        s.flag(73)
        s.stamp(21)
        s.cs3(n1, n2)
        s.feed(c.f_xfl, 2)
        s(f'''s_mul_i32 s70, s{sCL}, 56
        s_lshl_b32 s71, s{sW}, 2
        s_add_u32 s71, s71, s70
        s_lshl_b32 s71, s71, 3
        s_add_u32 s71, s71, s{sM}
        s_lshl_b32 s71, s71, 10
        s_add_u32 s71, s71, {PX}
        s_lshl_b32 s72, s{sCL}, 6
        s_lshl_b32 s73, s{sM}, 3
        s_add_u32 s73, s73, s72
        s_add_u32 s73, s73, s{sW}
        s_lshl_b32 s73, s73, 2
        s_add_u32 s73, s73, {F5}
        s_lshr_b32 s74, s{sCT}, 2
        s_add_u32 s72, s72, s74
        s_lshl_b32 s72, s72, 2
        s_add_u32 s72, s72, {F5}''')
        s.barrier()
        lb, lj = s.lab('wb'), s.lab('wj')
        s(f's_cmp_ge_u32 s{sW}, 4'); s.flush_hazards(); s(f's_cbranch_scc1 {lb}')
        st = s.state(); wc = s.wn
        def cs_fin():
            s.cs3(n2, 28)
            s('ds_write_b128 v48, v[168:171]')
            for b in range(4): s(f'ds_read_b128 {vr(vCS3+4*b)}, v49 offset:{32*b}')
        def gelu(t, upto):
            ex = s.spread(upto, 18)
            s(f'ds_read_b128 {vr(vST3)}, v46 offset:{512*t}')
            for j in range(2):
                s.gelu_sc(vAC3 + 8*j, vCS3 + 8*j, vST3, 8, 24, 32, ex)
                s(f'ds_write_b128 v7, v[32:35] offset:{14336*t + 1024*j}')
        cnt = [0]
        def g4(ctl, t):
            acc = 112 + 16 * (cnt[0] & 1); cnt[0] += 1
            def fin(h):
                for i in range(4): s(f'v_cvt_pk_bf16_f32 v{24+4*h+i}, v{acc+8*h+2*i}, v{acc+8*h+2*i+1}')
                s(f's_add_u32 s74, s71, {(28*t + 2*ctl + h) * 8192}')
                s.xstore([f'buffer_store_dwordx4 {vr(24+4*h)}, v{vL16}, {sr(rWS)}, s74 offen'])
            return ((vW4A, vW4B)[ctl], 14, acc, 14336 * t, [lambda: fin(0), lambda: None, lambda: fin(1)])
        g3 = lambda t: (vW3, 28, vAC3, 28672 * t, None)
        s.feed(c.f_b4a, 63)
        s.barrier(); s.stamp(22)
        s.gemm32([g3(0)], 6, s.spread(56, max(1, s.wn - 28 - 4)) if s.wn < 56 else None); cs_fin()
        s.barrier(); s.stamp(23)
        gelu(0, 70); s.stamp(24); s.gemm32([g3(1)], 6, s.spread(77, 28, 2))
        s.barrier(); s.stamp(25)
        gelu(1, 84); s.stamp(26); s.gemm32([g4(0, 0), g4(1, 0)], 44)
        s.barrier(); s.stamp(27)
        s.gemm32([g4(0, 1), g4(1, 1)], 44)
        s.flush_hazards(); s(f's_branch {lj}')
        s.label(lb); s.set_state(st); s.wn = wc; cnt[0] = 0
        s.barrier(); s.stamp(22)
        s.feed(56, 3)
        cs_fin()
        s.barrier(); s.stamp(23)
        s.gemm32([g3(0)], 6); s.stamp(24); gelu(0, 63)
        s.barrier(); s.stamp(25)
        s.gemm32([g3(1)], 6, s.spread(70, 28)); s.stamp(26); gelu(1, 84)
        s.barrier(); s.stamp(27)
        s.gemm32([g4(0, 0), g4(0, 1), g4(1, 0), g4(1, 1)], 44)
        s.flush_hazards()
        s.label(lj); s.lg = []
        s.stamp(28)
        s(f'''v_and_b32 v8, 15, v{vL}
        v_bfe_u32 v9, v{vL}, 4, 1
        v_lshlrev_b32 v9, 3, v9
        v_sub_u32 v8, v8, v9
        v_mov_b32 v10, 0x3f80
        v_mov_b32 v11, 1.0
        v_lshlrev_b32 v6, 5, v{vL}''')
        s.flag(73)
        s.stamp(29)
        s('s_mov_b64 exec, 0xff')
        s.poll_issue(4, 6, 's72')
        s('s_mov_b64 exec, -1')
        for d in range(4):
            s(f'''v_cmp_eq_u32 vcc, {2*d}, v8
            v_cmp_eq_u32 s[68:69], {2*d+1}, v8
            v_cndmask_b32 v{48+d}, 0, v10, vcc
            v_cndmask_b32 v{48+d}, v{48+d}, v11, s[68:69]''')
        s(f'''s_mul_i32 s74, s{sTB}, 28
        s_add_u32 s74, s74, s{sCT}
        s_lshl_b32 s74, s74, 13
        s_add_u32 s74, s74, {PX}
        s_add_u32 s75, s74, 4096
        s_mul_i32 s76, s{sTB}, {32*896}
        s_lshl_b32 s77, s{sCT}, 5
        s_add_u32 s76, s76, s77''')
        s.srd(rX, sOUT, 2048 * 896)
        s('s_mov_b64 exec, 0xff')
        s.poll_check(4, 6, 's72')
        s('s_mov_b64 exec, -1')
        s.stamp(30)
        for u in range(4):
            for t in range(2): s(f'buffer_load_dwordx4 {vr(52+8*u+4*t)}, v5, {sr(rWS)}, s{74+(u>>1)} offen offset:{2048*(u&1) + 256*t} sc1')
        for u in range(4):
            for t in range(2): s(f'v_mfma_f32_16x16x32_bf16 {vr(vRES+4*t)}, v[48:51], {vr(52+8*u+4*t)}, {vr(vRES+4*t)}')
        for i in range(4): s(f'v_cvt_pk_bf16_f32 v{20+i}, v{vRES+2*i}, v{vRES+1+2*i}')
        s('v_permlane16_swap_b32 v20, v22\nv_permlane16_swap_b32 v21, v23')
        s(f'buffer_store_dwordx4 v[20:23], v45, {sr(rX)}, s76 offen')
        s.stamp(31)

    def s_mfma(s, addrs, acc, kstride, base):
        seq = [(ks, t) for ks in range(14) for t in range(3)]
        nb = 8
        def rd(i): ks, t = seq[i]; s(f'ds_read_b128 {vr(52+4*(i%nb))}, v{addrs+t} offset:{base + ks*kstride}')
        s('s_mov_b32 exec_lo, 0x77777777\ns_mov_b32 exec_hi, 0x77777777')
        for i in range(nb - 1): rd(i)
        for i, (ks, t) in enumerate(seq):
            if i + nb - 1 < len(seq): rd(i + nb - 1)
            s(f'v_mfma_f32_16x16x32_bf16 {vr(acc+4*t)}, {vr(52+4*(i%nb))}, {vr(52+4*(i%nb))}, {vr(acc+4*t) if ks else 0}')
        s('s_mov_b32 exec_lo, 0x00700007\ns_mov_b32 exec_hi, 0x70000700')
    def s_wave(s, hst):
        s.comment('S wave: statistics, polling, DMA')
        s('s_setprio 2')
        s(f'''s_and_b32 s70, s2, 0xc7
        s_lshl_b32 s70, s70, 4
        s_add_u32 s70, s70, {FA}
        v_and_b32 v44, 7, v{vL}
        v_lshlrev_b32 v44, 7, v44
        buffer_load_dword v48, v44, {sr(rWS)}, s70 offen sc1''')
        for i in range(32): s(f'v_mov_b32 v{52+i}, 0x3f803f80')
        s(f'''v_and_b32 v44, 3, v{vL}
        v_bfe_u32 v45, v{vL}, 2, 2
        v_mad_u32_u24 v40, v45, 3, v44
        v_lshrrev_b32 v41, 4, v{vL}''')
        for t in range(3):
            s(f'v_add_u32 v46, {12*t}, v40')
            s.pos(84 + t, 46, 47)
            s(f'v_mul_u32_u24 v47, 768, v41\nv_add_u32 v{84+t}, v{84+t}, v47\nv_add_u32 v{84+t}, {L_HI}, v{84+t}')
            s(f'v_min_u32 v46, 31, v46\nv_lshlrev_b32 v46, 4, v46\nv_add_u32 v{92+t}, {L_ST3}, v46\nv_lshl_add_u32 v46, v41, 9, v46\nv_add_u32 v{88+t}, {L_XI}, v46')
        s(f'''v_lshlrev_b32 v42, 4, v40
        v_add_u32 v42, {L_STA}, v42
        v_lshlrev_b32 v43, 3, v40
        v_add_u32 v43, {L_STB}, v43
        v_lshlrev_b32 v6, 2, v{vL}
        v_lshlrev_b32 v7, 7, v{vL}
        v_cmp_ne_u32 vcc, s{sTX}, v48
        v_mov_b32 v46, {L_FAST}
        s_cmp_eq_u64 vcc, 0
        s_cselect_b32 s70, 1, 0
        v_mov_b32 v45, s70
        ds_write_b32 v46, v45''')
        s.stamp(13)
        s.h2(lambda: None)
        s(f'v_cmp_eq_u32 s[92:93], 1, v44\nv_cmp_eq_u32 s[94:95], 2, v44\ns_mov_b32 s96, {INVD}')
        s(f's_mul_i32 s70, s{sTB}, 28\ns_add_u32 s70, s70, s{sCT}\ns_lshl_b32 s70, s70, 10\ns_add_u32 s70, s70, {X1 - 7*1024}\ns_mov_b32 m0, {L_JUNK}')
        s.barrier(); s.stamp(15)
        if not s.cfg.nc_x1: s(f's_mov_b32 exec_hi, 0x00ffffff\nbuffer_load_dword v7, {sr(rWS)}, s70 offen sc1 lds')
        s.s_mfma(84, 24, 3072, 0)
        for t in range(3): s.stats_tail(24 + 4*t, 43, 42, 192 * t)
        s(f'''s_mov_b64 exec, -1
        s_lshl_b32 s72, s{sTB}, 7
        s_add_u32 s72, s72, {F3}
        s_mul_i32 s70, s{sTB}, {28*1024}
        s_add_u32 s70, s70, {GX}
        s_lshl_b32 s73, s{sCL}, 8
        s_add_u32 s73, s73, {F4}
        s_mul_i32 s71, s{sCL}, {56*1024}
        s_add_u32 s71, s71, {X1}''')
        s.barrier(); s.stamp(16)
        s.poll(4, 6, 's72', '0x0fffffff', 0); s.stamp(18)
        s.dma(0, 28, 70, L_GI)
        s.barrier()
        s.wait_vm(0); s.barrier(); s.stamp(19)
        s.poll(4, 6, 's73', '0x0fffffff', '0x0fffffff'); s.stamp(21)
        h0 = s.dma(0, 28, 71, L_XI); s.dma(28, 56, 71, L_XI)
        s.barrier()
        s.wait(h0); s.barrier(); s.stamp(22)
        def touch():
            s(f'''s_mul_i32 s70, s{sTB}, 28
            s_mul_i32 s71, s{sQ}, 7
            s_add_u32 s70, s70, s71
            s_lshl_b32 s70, s70, 13
            s_add_u32 s70, s70, {PX}
            s_mov_b32 m0, {L_JUNK}''')
            for i in range(7):
                s(f'buffer_load_dword v7, {sr(rWS)}, s70 offen sc1 lds\ns_add_u32 s70, s70, 8192')
                s.wait_vm(1)
        for t in range(2):
            s.s_mfma(88, 24, 2048, 28672 * t)
            for k in range(3): s.stats_tail(24 + 4*k, None, 92 + k, 512 * t)
            s('s_mov_b64 exec, -1')
            s.wait_vm(0)
            s.barrier(); s.stamp(23 + 2*t)
        if s.cfg.touch_at == 6: touch()
        s.barrier(); s.stamp(27)
        if s.cfg.touch_at == 7: touch()
        s.cond('s_cmp_lg_u32 s2, 0', lambda: s(f'v_mov_b32 v4, s{sTAG}\ns_mov_b32 s70, {EP}\ns_mov_b64 exec, 1\nbuffer_store_dword v4, off, {sr(rWS)}, s70 sc1\ns_mov_b64 exec, -1'))
        s.wait_vm(0); s.stamp(28)

def build(stamps=False, cfg=None):
    s = K(stamps, cfg or Cfg())
    s.entry(); s.setup(); s.pack_late_issue()
    s.stamp(34); s.ln()
    s(f's_cmp_ge_u32 s{sI}, 28'); s.flush_hazards(); s('s_cbranch_scc1 Lnonconv')
    st = s.state()
    s.setup2(); s.h2_addr(); s.stamp(33)
    if s.cfg.dma_at == 0: s.pack_late_dma()
    if s.cfg.fa_at == -1: s.publish_a()
    s.kgen(); hst = s.conv()
    s.label('Ljoin')
    s(f'v_mov_b32 v4, v21\nv_mov_b32 v5, v22\ns_cmp_eq_u32 s{sW}, 7'); s.flush_hazards(); s('s_cbranch_scc1 Lsw')
    st2 = s.state()
    s.g_wave(hst); s.dump_stamps(); s('s_endpgm')
    s.label('Lsw'); s.set_state(st2)
    s.s_wave(hst); s.dump_stamps()
    s.label('Lend'); s('s_endpgm')
    s.label('Lnonconv'); s.set_state(st); s.wn = 0
    s.nonconv(); s.flush_hazards(); s('s_branch Ljoin')
    name = NAME + '_kernel'
    txt = f'''; @launch grid=(256,1,1) block=(512,1,1) lds={LDS_BYTES}
.amdgcn_target "amdgcn-amd-amdhsa--gfx950"
.text
.globl {name}
.p2align 8
.type {name},@function
{name}:
''' + s.text() + ''.join(s.ool) + tap_table() + f'''.section .rodata,"a"
.p2align 6
.amdhsa_kernel {name}
  .amdhsa_next_free_vgpr 256
  .amdhsa_next_free_sgpr 102
  .amdhsa_accum_offset 256
  .amdhsa_group_segment_fixed_size 0
  .amdhsa_kernarg_size 120
  .amdhsa_user_sgpr_count 2
  .amdhsa_user_sgpr_kernarg_segment_ptr 1
  .amdhsa_system_sgpr_workgroup_id_x 1
.end_amdhsa_kernel
'''
    size, syms = code_info(txt.replace('@CODE_BYTES@', '1000').replace('@TAB_OFF@', '1000'))
    return txt.replace('@CODE_BYTES@', str(size - syms['Lpc'] - 4)).replace('@TAB_OFF@', str(syms['tap_table'] - syms['Lpc']))
def tap_table():
    RB = {8: 0, 4: 16, 2: 24, 6: 28, 1: 32, 3: 34, 5: 36, 7: 38}
    def rnd(l):
        sh = max(0, l.bit_length() - 8)
        if not sh: return l
        q, r = l >> sh, l & ((1 << sh) - 1); half = 1 << (sh - 1)
        return (q + (r > half or (r == half and q & 1))) << sh
    v = []
    for i in range(2056):
        l = 2047 - i
        if l < 0: e = 768
        elif l == 0: e = 640
        else: p = rnd(l); e = RB[((p - 1) & 7) + 1] * 16 + ((p - 1) >> 3)
        v.append(e * 16)
    t = '.p2align 7\n.type tap_table,@object\ntap_table:\n'
    for i in range(0, 2056, 8): t += '.short ' + ', '.join(map(str, v[i:i+8])) + '\n'
    return t + '.size tap_table, 4112\n'
def code_info(txt):
    import subprocess, tempfile, re
    with tempfile.TemporaryDirectory() as d:
        open(d + '/a.s', 'w').write(txt)
        subprocess.run(['clang', '-x', 'assembler', '-target', 'amdgcn-amd-amdhsa', '-mcpu=gfx950', '-c', d + '/a.s', '-o', d + '/a.o'], check=True)
        o = subprocess.run(['llvm-readelf', '-S', '-s', d + '/a.o'], capture_output=True, text=True).stdout
        size = int(re.search(r'\.text\s+PROGBITS\s+\S+\s+\S+\s+(\S+)', o).group(1), 16)
        return size, {m.group(2): int(m.group(1), 16) for m in re.finditer(r'\d+: ([0-9a-f]{16}) .* (\S+)\n', o)}
if __name__ == '__main__':
    sys.stdout.write(build(stamps=len(sys.argv) > 1))
```

```python
import sys, os, struct
sys.path.insert(0, os.path.dirname(os.path.abspath(__file__)))
from dsl import Asm, Ins

NAME = 'sequential_preLN__ssm_conv_s4d__mixer_s_mlp__prompt'
W1P, W2P, W3P, W4P = 0, 392 * 1024, 784 * 1024, 2352 * 1024
SM = 0x600000
GX, X1, PX = 0xA00000, 0xC00000, 0x1000000
FL = 0x2000000
F3, F4, F5 = FL, FL + 0x2000, FL + 0x4000
FA, FB, FH, FN, EP = FL + 0x8000, FL + 0x9000, FL + 0xA000, FL + 0xE000, FL + 0x10000
TS = 0x3000000
WS_BYTES = 0x4000000
L_LN, LNP = 0, 960
L_PK, L_PK2 = 15360, 32768
L_KG, KGP = 31744, 288
L_Y = 0
L_KT, KTSZ = 68608, 12320
L_KE, KEO, KECH = 93312, 4160, 8320
L_U = 110080
L_SM = 8 * LNP
L_HI, L_GI, L_XI, L_HID, L_ST = 106880, 0, 28672, 106880, 149888
L_STA, L_STB, L_FAST, L_JUNK, L_ST3 = L_ST, L_ST + 768, L_ST + 1152, L_ST + 1280, L_ST + 1536
L_CNT = L_FAST + 16
LDS_BYTES = 153600
LOG2E, INV2PI, EPS, INVD = 0x3fb8aa3b, 0x3e22f983, 0x3727c5ac, 0x3b124925
C1 = -2.0 * 0.7978845608028654 * 1.4426950408889634
def fh(x): return '0x%08x' % struct.unpack('<I', struct.pack('<f', x))[0]
SPIN = 1 << 18
sX, sLA, sAI, sCR, sCI, sDT, sDS = 4, 6, 8, 10, 12, 14, 16
sW1, sW2, sW3, sW4, sOUT, sWS = 20, 22, 24, 26, 28, 30
rWS, rX, rD, rW, rG = 32, 36, 40, 44, 48
sW, sXCD, sI, sP, sTAG, sTB, sQ, sCL, sM, sFAST = range(52, 62)
sPD0, sPD1, sUO, sHH, sFO, sPACT = range(62, 68)
sUS, sKG, sHD, sUM = 74, 75, 76, 77
sLDT, sD0, sD1 = 40, 41, 42
sM0, sM1, sCT, sTX = 78, 80, 82, 83
sA1, sA2, sA3, sA4 = 84, 85, 86, 87
def sr(n, k=4): return f's[{n}:{n+k-1}]'
def vr(n, k=4): return f'v[{n}:{n+k-1}]'
vL16, vL = 1, 2
vW1, vW2, vW3, vW4A, vW4B = 144, 200, 52, 200, 52
vCS3, vAC3, vST3, vRES = 164, 180, 196, 36

class Cfg:
    f_kt = 0
    fa_at, dma_at, poll_at, chk_at, pst_at, fa_sleep = -1, 1, 3, 5, 6, 2
    f_conv = 17
    f_hst = 21
    f_hok = 25
    f_g1 = 34
    f_gfl = 34
    f_b3a = 38
    f_g2 = 45
    f_xfl = 45
    f_b4a = 49
    two = 0
    tab = 0
    xbar = 0
    fb_at = 0
    x_nof = 99
    prio = 0
    bar_a, cs_a, cs_b, x_at = 1, 8, 12, 8
    ggrp, burst, pd, sd = 4, 1, 3, 2
    q = (29, 44, 59, 74, 89)
    fin0 = (92, 94, 96, 98)
    w4a, w4b = (8, 36), (37, 60)
    nc_depth, hint_at = 8, 8
    depth = 4
    touch_at = 0
    warm = 1
    refresh = 1
    tdepth = 1
    cpf = 1
    x_late = 0

def zipl(*streams):
    out = []; n = max(len(x) for x in streams)
    for i in range(n):
        for x in streams:
            if i < len(x): out.append(x[i])
    return out

class K(Asm):
    def __init__(s, stamps, cfg):
        super().__init__(); s.stamps = stamps; s.cfg = cfg; s.ool = []; s.nlab = 0; s.wn = 0
    def lab(s, p): s.nlab += 1; return f'L{p}{s.nlab}'
    def srd(s, r, ptr, size):
        s(f's_mov_b32 s{r}, s{ptr}\ns_mov_b32 s{r+1}, s{ptr+1}\ns_mov_b32 s{r+2}, {size}\ns_mov_b32 s{r+3}, 0x20000')
    def stamp(s, idx, real=False):
        if not s.stamps or (s.stamps is not True and idx not in (31, 61) and (s.stamps == 'span' or idx not in s.stamps)): return
        s(f's_mem{"real" if real else ""}time s[98:99]'); s.wait_lg(0)
        s(f'v_writelane_b32 v3, s98, {idx}')
    def dump_stamps(s):
        if not s.stamps: return
        s.stamp(61, True)
        s(f's_lshl_b32 s98, s2, 3\ns_add_u32 s98, s98, s{sW}\ns_lshl_b32 s98, s98, 8\ns_add_u32 s98, s98, {TS}')
        s(f'v_lshlrev_b32 v4, 2, v{vL}\nbuffer_store_dword v3, v4, {sr(rWS)}, s98 offen')
    def cond(s, cmp_skip, body, drain=True):
        l = s.lab('c')
        s(cmp_skip); s.flush_hazards(); s(f's_cbranch_scc1 {l}')
        vm, lg = list(s.vm), list(s.lg)
        body()
        if drain: s._wait(lg=0)
        s.flush_hazards(); s.label(l)
        s.vm, s.lg = vm, lg
    def xstore(s, lines):
        slow, back = s.lab('xs'), s.lab('xb')
        s(f's_cmp_eq_u32 s{sFAST}, 0')
        for l in lines:
            ins = Ins(l); t = ins.rd | ins.wr
            hs = [x[0] for x in s.vm if x[1] & t] + [x[0] for x in s.lg if x[1] & t]
            if hs: s.wait(*hs)
        s(f's_cbranch_scc1 {slow}')
        for l in lines: s(l)
        s.label(back)
        s.ool.append(f'{slow}:\n    s_nop 7\n    s_nop 3\n' + ''.join(f'    {l} sc1\n' for l in lines) + f'    s_branch {back}\n')
    def feed1(s):
        n = s.wn; s.wn += 1
        if n >= s.cfg.x_nof: return
        if n < 14: reg, sb, i = vW1 + 4*n, sA1, n
        elif n < 28: reg, sb, i = vW2 + 4*(n-14), sA2, n - 14
        elif n < 56: reg, sb, i = vW3 + 4*(n-28), sA3, n - 28
        elif n < 70: reg, sb, i = vW4A + 4*(n-56), sA4, n - 56
        else: reg, sb, i = vW4B + 4*(n-70), sA4, n - 56
        if i % 4 == 0 and i: s(f's_add_u32 s{sb}, s{sb}, 4096')
        s(f'buffer_load_dwordx4 {vr(reg)}, v{vL16}, {sr(rG)}, s{sb} offen offset:{(i % 4) * 1024}')
    def feed(s, upto, depth=None):
        depth = depth or s.cfg.depth
        while s.wn < upto:
            s.wait_vm(depth - 1); s.feed1()
    def spread(s, upto, slots, first=0):
        n = max(0, upto - s.wn); out = [lambda: None] * slots
        pos = [first + (k * (slots - first)) // n for k in range(n)] if n else []
        for p in set(pos):
            out[p] = (lambda c=pos.count(p): [s.feed1() for _ in range(c)])
        return out
    def run(s, l):
        for f in l: f()
    def poll_issue(s, vdst, vaddr, soff): return s(f'buffer_load_dword v{vdst}, v{vaddr}, {sr(rWS)}, {soff} offen sc1')
    def poll_check(s, vdst, vaddr, soff, sleep=0):
        retry, back = s.lab('pr'), s.lab('pb')
        s(f'v_subrev_u32 v{vdst}, s{sTAG}, v{vdst}\nv_cmp_lt_u32 vcc, 15, v{vdst}\ns_mov_b32 s97, 0\ns_cbranch_vccnz {retry}')
        s.label(back)
        s.ool.append(f'''{retry}:
''' + (f'    s_sleep {sleep}\n' if sleep else '') + f'''    buffer_load_dword v{vdst}, v{vaddr}, {sr(rWS)}, {soff} offen sc1
    s_add_u32 s97, s97, 1
    s_cmp_gt_u32 s97, {SPIN}
    s_waitcnt vmcnt(0)
    s_cbranch_scc1 {back}
    v_subrev_u32 v{vdst}, s{sTAG}, v{vdst}
    v_cmp_lt_u32 vcc, 15, v{vdst}
    s_nop 1
    s_cbranch_vccnz {retry}
    s_branch {back}
''')
    def poll(s, vdst, vaddr, soff, lo=None, hi=None, sleep=0):
        if lo is not None: s(f's_mov_b32 exec_lo, {lo}\ns_mov_b32 exec_hi, {hi}')
        s.poll_issue(vdst, vaddr, soff); s.poll_check(vdst, vaddr, soff, sleep)
        if lo is not None: s('s_mov_b64 exec, -1')
    def flag(s, soff, vtmp=4):
        s(f'v_mov_b32 v{vtmp}, s{sTAG}')
        s.wait_vm(0, force=True)
        s('s_mov_b64 exec, 1')
        s.xstore([f'buffer_store_dword v{vtmp}, off, {sr(rWS)}, s{soff}'])
        s('s_mov_b64 exec, -1')
    def gflag(s, wave, soff, sval, vtmp, drain=False):
        s.cond(f's_cmp_lg_u32 s{sW}, {wave}', drain=drain, body=lambda: s(f'v_mov_b32 v{vtmp}, s{sval}\ns_mov_b64 exec, 1\nbuffer_store_dword v{vtmp}, off, {sr(rWS)}, s{soff} sc1\ns_mov_b64 exec, -1'))
    def dma(s, a, b, ssrc, ldsbase):
        h = None
        for i in range(a, b):
            if i % 4 == 0:
                if i: s(f's_add_u32 s{ssrc}, s{ssrc}, 4096')
                s(f's_mov_b32 m0, {ldsbase + i * 1024}')
            h = s(f'buffer_load_dwordx4 v{vL16}, {sr(rWS)}, s{ssrc} offen offset:{(i % 4) * 1024} sc1 lds')
        return h
    def pos(s, d, src, t):
        s(f'''v_and_b32 v{t}, 3, v{src}
        v_lshlrev_b32 v{t}, 2, v{t}
        v_and_or_b32 v{t}, v{src}, -16, v{t}
        v_bfe_u32 v{d}, v{src}, 2, 2
        v_or_b32 v{d}, v{d}, v{t}
        v_lshlrev_b32 v{d}, 4, v{d}''')

    def entry(s):
        s('s_cmp_ge_u32 s2, 256\ns_cbranch_scc1 Lend')
        if s.stamps: s('s_memtime s[100:101]\ns_memrealtime s[96:97]\nv_mov_b32 v3, 0'); s.wait_lg(0)
        s(f"""s_load_dwordx16 s[4:19], s[0:1], 0
        s_load_dwordx8 s[20:27], s[0:1], 64
        s_load_dwordx2 s[28:29], s[0:1], 96
        s_load_dwordx2 s[30:31], s[0:1], 112""")
        s('s_getpc_b64 s[94:95]')
        s.label('Lpc')
        s(f"""s_lshr_b32 s{sI}, s2, 3
        v_lshrrev_b32 v4, 6, v0
        v_and_b32 v6, 255, v0""")
        if s.cfg.cpf in (1, 3): s.cpf(0)
        if s.cfg.cpf == 2: s.cpf(1)
        s(f"""v_readfirstlane_b32 s{sW}, v4
        v_lshlrev_b32 v18, 4, v6""")
        if s.cfg.tab == 0: s.tabload()
        s(f"""        v_and_b32 v{vL}, 63, v0
        v_lshlrev_b32 v{vL16}, 4, v{vL}
        s_and_b32 s{sXCD}, s2, 7
        s_mul_i32 s{sP}, s{sXCD}, 28
        s_add_u32 s{sP}, s{sP}, s{sI}
        s_min_u32 s{sP}, s{sP}, 223
        s_lshl_b32 s70, s{sP}, 10
        v_lshl_add_u32 v64, v0, 1, s70
        s_lshl_b32 s68, s2, 3
        s_add_u32 s68, s68, s{sW}
        s_mul_i32 s73, s68, 896
        s_mov_b32 s{rX+2}, 896
        s_mov_b32 s{rX+3}, 0x20000""")
        s(f"""s_lshl_b32 s68, s{sW}, 8
        s_lshl_b32 s69, s{sXCD}, 5
        s_add_u32 s68, s68, s69
        s_add_u32 s68, s68, s{sI}
        s_cmpk_lt_u32 s68, 392
        s_cselect_b32 s43, 1, 0
        s_cselect_b32 s{rW+2}, {448*896}, 0
        s_min_u32 s68, s68, 391
        s_cmpk_ge_u32 s68, 196
        s_cselect_b32 s69, 196, 0
        s_sub_u32 s68, s68, s69
        s_mul_i32 s70, s68, 4682
        s_lshr_b32 s70, s70, 16
        s_mul_i32 s71, s70, 14
        s_sub_u32 s68, s68, s71
        s_mul_i32 s71, s68, 28
        s_add_u32 s71, s71, s70
        s_lshl1_add_u32 s71, s69, s71
        s_lshl_b32 s{sPD0}, s71, 10
        s_add_u32 s{sPD1}, s{sPD0}, {14*1024}
        s_mul_i32 s90, s70, {32*896}
        s_lshl_b32 s68, s68, 6
        s_add_u32 s90, s90, s68
        s_add_u32 s91, s90, {16*896}
        s_mov_b32 s{rW+3}, 0x20000
        s_lshl_b32 s93, s{sW}, 11
        s_add_u32 s93, s93, {L_PK}
        s_mov_b32 m0, s93
        s_lshl_b32 s71, s{sP}, 2
        s_mov_b32 s72, {EP}
        s_mov_b32 s{rWS+2}, {WS_BYTES}
        s_mov_b32 s{rWS+3}, 0x20000
        v_lshrrev_b32 v6, 2, v{vL}
        v_mul_u32_u24 v4, 896, v6
        v_and_b32 v5, 3, v{vL}
        v_lshl_add_u32 v4, v5, 4, v4
        s_add_u32 s{rX}, s{sX}, s73
        s_addc_u32 s{rX+1}, s{sX+1}, 0
        buffer_load_dwordx4 v[28:31], v{vL16}, {sr(rX)}, 0 offen""")
        if s.stamps: s('v_writelane_b32 v3, s100, 0\nv_writelane_b32 v3, s96, 60')
        s.stamp(1)
        if s.cfg.xbar: s('s_barrier')
        s(f"""s_cmp_eq_u32 s69, 0
        s_cselect_b32 s{rW}, s{sW1}, s{sW2}
        s_cselect_b32 s{rW+1}, s{sW1+1}, s{sW2+1}
        s_load_dword s{sTAG}, {sr(sWS,2)}, s72
        s_load_dword s{sLDT}, {sr(sDT,2)}, s71
        s_load_dword s{sD1}, {sr(sDS,2)}, s71
        buffer_load_dwordx4 v4, {sr(rW)}, s90 offen lds
        s_add_u32 m0, s93, 1024
        s_mov_b32 s{rWS}, s{sWS}
        s_mov_b32 s{rWS+1}, s{sWS+1}""")
        s.h_pack = s(f'buffer_load_dwordx4 v4, {sr(rW)}, s91 offen lds')
        s(f"""global_load_ushort v60, v64, {sr(sLA,2)}
        global_load_ushort v61, v64, {sr(sAI,2)}
        global_load_ushort v62, v64, {sr(sCR,2)}
        global_load_ushort v63, v64, {sr(sCI,2)}
        """)
        if s.cfg.cpf == 2: s.cpf(0)
        if s.cfg.tab == 1: s.tabload()

    def cpf(s, once):
        l = s.lab('cp')
        s(f'v_lshl_add_u32 v7, v0, 8, s2' if once else f'v_lshl_add_u32 v7, v0, 5, s{sI}')
        s(f"""v_lshlrev_b32 v7, 7, v7
        v_cmp_gt_u32 vcc, @CODE_BYTES@, v7
        s_and_saveexec_b64 s[70:71], vcc
        s_cbranch_execz {l}""")
        s.raw('    global_load_dword v255, v7, s[94:95]')
        s.label(l)
        s('s_mov_b64 exec, -1')
    def tabload(s):
        s(f"""s_add_u32 s68, s94, @TAB_OFF@
        s_addc_u32 s69, s95, 0
        global_load_dwordx4 v[66:69], v18, s[68:69]
        global_load_ushort v70, v18, s[68:69] offset:16""")
    def clear(s):
        for i in range(4): s(f'v_mov_b32 v{72+i}, -1')
        s.hstore(72)
    def hstore(s, r): return s(f'buffer_store_dwordx4 {vr(r)}, v12, {sr(rWS)}, s{sHD} offen sc1')

    def setup(s):
        s.comment('scalar offsets and lane addresses (in the shadow of the first loads)')
        s(f"""s_mov_b32 s{rG}, s{sWS}
        s_mov_b32 s{rG+1}, s{sWS+1}
        s_cmp_eq_u32 s{sW}, 7
        s_cselect_b32 s{rG+2}, 0, {WS_BYTES}
        s_mov_b32 s{rG+3}, 0x20000
        v_and_b32 v76, 15, v{vL}
        v_lshrrev_b32 v77, 4, v{vL}
        v_bfe_u32 v78, v{vL}, 2, 2
        s_lshl_b32 s{sTB}, s{sXCD}, 3
        s_lshr_b32 s68, s{sI}, 2
        s_add_u32 s{sTB}, s{sTB}, s68
        s_and_b32 s{sQ}, s{sI}, 3
        s_lshr_b32 s{sCL}, s{sTB}, 1
        s_and_b32 s{sM}, s{sI}, 7
        v_and_b32 v79, 1, v{vL}
        s_mul_i32 s70, s2, 896
        v_mul_u32_u24 v71, 1171, v0
        v_lshrrev_b32 v71, 16, v71
        v_mul_u32_u24 v71, {229376 - 896}, v71
        v_add_u32 v71, v71, v{vL16}
        s_lshl_b32 s71, s{sW}, 10
        s_add_u32 s70, s70, s71
        s_add_u32 s{sUO}, s70, {GX}
        s_lshl_b32 s{sFO}, s2, 4
        s_add_u32 s{sFO}, s{sFO}, {FA}
        v_lshl_add_u32 v24, v77, 3, v78
        v_lshlrev_b32 v24, 6, v24
        v_lshl_add_u32 v24, v5, 3, v24
        s_mul_i32 s{sCT}, s{sQ}, 7
        s_add_u32 s{sCT}, s{sCT}, s{sW}
        s_mul_i32 s{sA1}, s{sCT}, {14*1024}
        v_lshrrev_b32 v82, 1, v77
        s_add_u32 s{sA2}, s{sA1}, {W2P}
        s_mul_i32 s{sA3}, s{sM}, 7
        s_add_u32 s{sA3}, s{sA3}, s{sW}
        v_and_b32 v83, 1, v77
        s_mul_i32 s{sA4}, s{sA3}, {28*1024}
        s_add_u32 s{sA3}, s{sA4}, {W3P}
        s_add_u32 s{sA4}, s{sA4}, {W4P}
        s_mul_i32 s{sUS}, s{sXCD}, 229376
        s_lshl_b32 s70, s{sI}, 5
        s_add_u32 s{sUS}, s{sUS}, s70
        s_add_u32 s{sUS}, s{sUS}, {GX}
        s_mul_i32 s{sHD}, s{sW}, 229376
        s_lshl_b32 s70, s{sP}, 7
        v_add_u32 v24, s93, v24
        v_mul_u32_u24 v27, {LNP}, v78
        s_add_u32 s{sHD}, s{sHD}, s70
        s_add_u32 s{sHD}, s{sHD}, {X1}
        s_add_u32 s{sUM}, s71, {L_U + 1024}
        v_lshl_add_u32 v27, v77, 5, v27
        v_lshl_add_u32 v27, v5, 3, v27
        s_lshl_b32 s70, s{sW}, 7
        v_add_u32 v27, s70, v27
        s_mul_i32 s70, s{sW}, {LNP}
        v_add_u32 v26, s70, v{vL16}
        v_add_u32 v13, s71, v{vL16}
        s_lshl_b32 s70, s{sW}, 13
        v_add_u32 v14, s70, v{vL16}
        s_lshl_b32 s70, s{sW}, 9
        s_add_u32 s70, s70, {FA}
        v_and_b32 v17, 0x1f0, v{vL16}
        v_add_u32 v17, s70, v17
        s_mov_b32 s{sFAST}, 0""")
    def setup2(s):
        s(f"""s_and_b32 s70, s{sW}, 3
        s_lshr_b32 s71, s{sW}, 2
        v_lshrrev_b32 v80, 1, v76
        v_lshlrev_b32 v4, 2, v77
        v_sub_u32 v4, v4, v80
        s_lshl_b32 s72, s70, 7
        s_sub_u32 s72, {4*(1015 - 144) + KEO}, s72
        s_mul_i32 s73, s71, {KECH}
        s_add_u32 s73, s73, {L_KE}
        s_add_u32 s72, s72, s73
        v_add_u32 v18, s73, v18
        v_mul_u32_u24 v80, {KEO}, v79
        v_sub_u32 v80, s72, v80
        v_lshl_add_u32 v4, v4, 2, v80
        v_subrev_u32 v5, 1024, v4
        v_subrev_u32 v6, 2048, v4
        v_subrev_u32 v7, 3072, v4
        v_lshl_add_u32 v81, v76, 1, v77
        s_lshl_b32 s72, s70, 3
        s_sub_u32 s72, {30 + L_U // 32}, s72""")
        assert L_U % 512 == 0
        for e in range(2):
            s(f"""v_add_u32 v80, s72, v81
            v_bfe_u32 v84, v80, 3, 1
            v_xor_b32 v84, s71, v84
            v_lshlrev_b32 v80, 5, v80
            v_lshl_add_u32 v{8+e}, v84, 4, v80
            s_sub_u32 s72, s72, 4""")
        s(f"""v_lshrrev_b32 v80, 1, v0
        v_xor_b32 v84, v83, v79
        v_mul_u32_u24 v80, 896, v80
        v_lshl_add_u32 v10, v84, 4, v80
        s_lshl_b32 s72, s{sW}, 11
        s_add_u32 s72, s72, {SM}
        v_lshl_add_u32 v80, v76, 1, v82
        v_lshl_add_u32 v84, v80, 6, s72
        v_lshl_add_u32 v11, v83, 5, v84
        v_lshlrev_b32 v15, 5, v80
        v_bfe_u32 v80, v80, 3, 1
        v_lshl_add_u32 v15, v80, 4, v15
        v_lshl_add_u32 v15, v83, 3, v15
        v_add_u32 v15, s{sUM}, v15
        v_xor_b32 v16, 16, v15
        v_lshrrev_b32 v80, 1, v76
        v_mul_u32_u24 v12, 28672, v80
        v_lshl_add_u32 v12, v79, 6, v12
        v_lshl_add_u32 v12, v77, 4, v12
        s_mul_i32 s{sKG}, s{sW}, {16*KGP}
        s_add_u32 s{sKG}, s{sKG}, {L_KG}
        v_mul_u32_u24 v20, {KGP}, v76
        v_lshl_add_u32 v20, v77, 4, v20
        v_add_u32 v20, s{sKG}, v20
        s_mul_i32 s70, s71, {KTSZ}
        s_add_u32 s70, s70, {L_KT}
        v_lshrrev_b32 v80, 3, v{vL}
        v_add_u32 v80, s{sW}, v80
        v_and_b32 v80, 3, v80
        v_lshl_add_u32 v19, v77, 6, v76
        v_lshl_add_u32 v19, v19, 4, s70
        v_lshl_add_u32 v19, v80, 2, v19
        v_mov_b32 v84, 0
        v_mov_b32 v85, 0
        v_mov_b32 v86, 0
        v_mov_b32 v87, 0
        v_add_u32 v80, {L_U}, v{vL16}
        ds_write_b128 v80, v[84:87]
        v_mul_u32_u24 v80, {KEO}, v78
        v_lshl_add_u32 v80, v79, 4, v80
        v_add_u32 v80, {L_KE + 4096}, v80
        ds_write_b128 v80, v[84:87]
        v_mov_b32 v80, s70
        ds_write_b128 v80, v[84:87] offset:{768*16}""")
        for t in range(9):
            s(f'v_add_u32_sdwa v{132+t}, v80, v{66+t//2} dst_sel:DWORD dst_unused:UNUSED_PAD src0_sel:DWORD src1_sel:WORD_{t&1}')
    def h2_addr(s):
        s(f"""v_min_u32 v80, 503, v0
        v_mul_u32_u24 v81, 7282, v80
        v_lshrrev_b32 v81, 16, v81
        v_mul_u32_u24 v84, 9, v81
        v_sub_u32 v84, v80, v84
        s_and_b32 s70, s{sQ}, 1
        s_lshl3_add_u32 s70, s{sTB}, s70
        s_add_u32 s70, s70, 7
        v_mul_u32_u24 v22, 768, v81
        v_lshrrev_b32 v80, 2, v84
        v_lshl_add_u32 v22, v80, 8, v22
        v_and_b32 v80, 3, v84
        v_lshl_add_u32 v22, v80, 4, v22
        v_add_u32 v22, {L_HI}, v22
        v_add_u32 v84, s70, v84
        v_lshrrev_b32 v80, 3, v84
        v_mul_u32_u24 v21, 28672, v80
        v_lshl_add_u32 v21, v81, 9, v21
        v_and_b32 v80, 7, v84
        v_lshl_add_u32 v21, v80, 4, v21
        v_subrev_u32 v84, 8, v84
        s_movk_i32 s70, 512
        s_mov_b32 s88, {X1 - 28672}
        v_cmp_gt_u32 s[92:93], s70, v84
        s_mul_i32 s70, s{sW}, {64*7282}
        s_lshr_b32 s70, s70, 16
        s_lshl_b32 s70, s70, 6
        s_add_u32 s70, s70, {FB}
        v_add_u32 v26, s70, v{vL16}
        s_mov_b32 exec_lo, 0
        v_add_u32 v26, {FB + 192*16}, v{vL16}
        s_mov_b32 exec_lo, -1""")

    def pack_early(s):
        s.wait(s.h_pack)
        s(f"""ds_read_b64_tr_b16 v[52:53], v24
        ds_read_b64_tr_b16 v[54:55], v24 offset:256
        ds_read_b64_tr_b16 v[56:57], v24 offset:32
        ds_read_b64_tr_b16 v[58:59], v24 offset:288
        buffer_store_dwordx4 v[52:55], v{vL16}, {sr(rWS)}, s{sPD0} offen sc1
        buffer_store_dwordx4 v[56:59], v{vL16}, {sr(rWS)}, s{sPD1} offen sc1""")

    def ln(s):
        s.comment('layernorm of one token per wave')
        s('v_mov_b32 v51, 0x3f803f80\nv_dot2_f32_bf16 v48, v28, v51, 0')
        s.stamp(2)
        s('v_dot2_f32_bf16 v49, v28, v28, 0')
        for i in (29, 30, 31): s(f'v_dot2_f32_bf16 v48, v{i}, v51, v48\nv_dot2_f32_bf16 v49, v{i}, v{i}, v49')
        un = []
        for i in range(4): un += [f'v_lshlrev_b32 v{32+2*i}, 16, v{28+i}', f'v_and_b32 v{33+2*i}, 0xffff0000, v{28+i}']
        s(un.pop()); s(un.pop()); s(f'v_mov_b32 v50, {INVD}')
        for m in ('row_shr:1', 'row_shr:2', 'row_shr:4', 'row_shr:8', 'row_bcast:15 row_mask:0xa', 'row_bcast:31 row_mask:0xc'):
            s(f'v_add_f32_dpp v48, v48, v48 {m}\nv_add_f32_dpp v49, v49, v49 {m}')
            s(un.pop())
        s(f"""v_readlane_b32 s70, v48, 63
        v_readlane_b32 s71, v49, 63
        s_lshl_b32 s72, s{sW}, 3
        v_mov_b32 v65, s72
        v_mul_f32 v49, s70, v50
        v_mul_f32 v48, s71, v50
        v_fma_f32 v48, -v49, v49, v48
        v_max_f32 v48, 0, v48
        v_add_f32 v48, {EPS}, v48
        v_rsq_f32 v50, v48
        s_mov_b32 exec_hi, 0x00ffffff
        v_mul_f32 v51, -v49, v50""")
        for i in range(4): s(f'v_pk_fma_f32 {vr(40+2*i,2)}, {vr(32+2*i,2)}, v[50:51], v[50:51] op_sel:[0,0,1] op_sel_hi:[1,0,1]')
        for i in range(4): s(f'v_cvt_pk_bf16_f32 v{28+i}, v{40+2*i}, v{41+2*i}')
        s(f"""ds_write_b128 v26, v[28:31] offset:{L_LN}
        v_mul_f32 v48, v48, v50
        ds_write_b64 v65, v[48:49] offset:{L_SM}
        s_mov_b32 exec_hi, -1
        s_lshr_b32 s{sTAG}, s{sTAG}, 4
        s_mul_i32 s{sTAG}, s{sTAG}, 1664525
        s_add_u32 s{sTAG}, s{sTAG}, 1013904223
        s_lshl_b32 s{sTAG}, s{sTAG}, 4
        s_getreg_b32 s70, hwreg(HW_REG_XCC_ID, 0, 4)
        s_add_u32 s{sTX}, s70, s{sTAG}""")
        s.barrier()
        s(f'ds_read_b64_tr_b16 v[48:49], v27 offset:{L_LN}\nds_read_b64_tr_b16 v[50:51], v27 offset:{L_LN + 4*LNP}')
        s.cond(f's_cmp_lg_u32 s{sW}, 7', lambda: s(f's_mov_b64 exec, 15\nds_read_b128 v[48:51], v{vL16} offset:{L_SM}\nv_mov_b32 v71, v{vL16}\ns_lshl_b32 s{sUO}, s2, 6\ns_add_u32 s{sUO}, s{sUO}, {SM}'))
        s(f'buffer_store_dwordx4 v[48:51], v71, {sr(rWS)}, s{sUO} offen sc1\ns_mov_b64 exec, -1')
        s.stamp(3)
        s.wait(*[h for h, r in s.vm if r])
        s.stamp(40)
        s.cond(f's_cmp_eq_u32 s43, 0', s.pack_early)

    def pack_late_issue(s):
        s.comment('W3/W4 packing: unit V = 256 w + 32 xcd + i - 392 in [0, 1568)')
        s(f"""s_lshl_b32 s68, s{sW}, 8
        s_lshl_b32 s69, s{sXCD}, 5
        s_add_u32 s68, s68, s69
        s_add_u32 s68, s68, s{sI}
        s_sub_u32 s68, s68, 392
        s_cmpk_lt_u32 s68, 1568
        s_cselect_b32 s{rW+2}, {448*3584}, 0
        s_cselect_b32 s{sPACT}, {WS_BYTES}, 0
        s_min_u32 s68, s68, 1567
        s_cmpk_lt_u32 s68, 784
        s_cselect_b32 s{rW}, s{sW3}, s{sW4}
        s_cselect_b32 s{rW+1}, s{sW3+1}, s{sW4+1}
        s_cselect_b32 s4, 56, 14
        s_cselect_b32 s5, 28, 14
        s_cselect_b32 s6, 0, 182
        s_cselect_b32 s10, 0, 784
        s_cselect_b32 s16, 0, 13
        s_cselect_b32 s17, 1, 14
        s_movk_i32 s7, 4682
        s_cmovk_i32 s7, 1171
        s_movk_i32 s8, 896
        s_cmovk_i32 s8, 3584
        s_movk_i32 s9, 2352
        s_cmovk_i32 s9, 784
        s_sub_u32 s68, s68, s10
        v_mul_u32_u24 v23, s8, v6
        s_mov_b32 s15, s93
        s_lshl_b32 s11, s8, 4
        s_mul_i32 s69, s68, s7
        s_lshr_b32 s69, s69, 16
        v_lshl_add_u32 v23, v5, 4, v23
        s_mul_i32 s70, s69, s4
        s_sub_u32 s70, s68, s70
        s_mul_i32 s71, s69, 9363
        v_lshl_add_u32 v25, v82, 3, v78
        s_lshr_b32 s71, s71, 16
        s_mul_i32 s71, s71, s6
        s_mul_i32 s72, s70, s5
        v_lshlrev_b32 v25, 6, v25
        s_add_u32 s71, s71, s72
        s_lshl1_add_u32 s71, s69, s71
        s_add_u32 s71, s71, s9
        v_lshl_add_u32 v25, v83, 5, v25
        s_and_b32 s72, s70, 1
        s_mul_i32 s72, s72, s16
        s_sub_u32 s71, s71, s72
        s_lshl_b32 s12, s71, 10
        s_add_u32 s71, s71, s17
        s_lshl_b32 s16, s71, 10
        s_mul_i32 s69, s69, s11
        s_lshl_b32 s70, s70, 6
        v_lshl_add_u32 v25, v79, 4, v25
        s_lshl1_add_u32 s69, s69, s70
        s_add_u32 s13, s69, s11
        s_mov_b32 s14, s69
        v_lshrrev_b32 v81, 1, v5
        v_lshl_add_u32 v25, v81, 3, v25
        v_add_u32 v25, s93, v25""")
    def pack_late_dma(s):
        s(f's_mov_b32 m0, s15\nbuffer_load_dwordx4 v23, {sr(rW)}, s14 offen lds\ns_add_u32 m0, s15, 1024')
        s.h_pack = s(f'buffer_load_dwordx4 v23, {sr(rW)}, s13 offen lds')
    def publish_a(s, conv=True):
        s.wait_vm(2 if s.cfg.dma_at == 0 else 0, force=True)
        s('s_barrier')
        s.stamp(5)
        s.gflag(0, sFO, sTX, 118)
        if conv: s(f's_lshl_b32 s{sFO}, s{sP}, 4\ns_add_u32 s{sFO}, s{sFO}, {FB}')
        else: s(f's_lshl2_add_u32 s{sFO}, s{sXCD}, s{sQ}\ns_lshl_b32 s{sFO}, s{sFO}, 4\ns_add_u32 s{sFO}, s{sFO}, {FB + 224*16}')
        if conv: s.clear()
        if s.cfg.dma_at == 1: s.pack_late_dma(); s(f's_mov_b32 m0, s{sKG}')
    def pack_late_store(s):
        s.wait(s.h_pack)
        for e in range(4): s(f'ds_read_b64_tr_b16 {vr(76+2*e,2)}, v25 offset:{1024*(e>>1) + 256*(e&1)}')
        s(f"""s_mov_b32 s{rW}, s{sWS}
        s_mov_b32 s{rW+1}, s{sWS+1}
        s_mov_b32 s{rW+2}, s{sPACT}
        buffer_store_dwordx4 v[76:79], v{vL16}, {sr(rW)}, s12 offen sc1""")
        s.h_pst = s(f'buffer_store_dwordx4 v[80:83], v{vL16}, {sr(rW)}, s16 offen sc1')

    def cm(s, d, a, b, t):
        return [f'v_pk_mul_f32 {vr(t,2)}, {vr(a,2)}, {vr(b,2)} op_sel_hi:[1,0]',
                f'v_pk_fma_f32 {vr(d,2)}, {vr(a,2)}, {vr(b,2)}, {vr(t,2)} op_sel:[1,1,0] op_sel_hi:[0,1,1] neg_lo:[1,0,0]']
    def kgen(s):
        c = s.cfg
        assert c.pst_at >= 4 and c.fa_at <= c.poll_at <= c.chk_at
        Z = lambda k: 74 + 2 * k
        Z128, ZD, R0, R1, TT = 92, 94, 112, 114, 116
        CH = [(96, 98, 100, 102), (104, 106, 108, 110)]
        BF, AF, ACC = 156, (172, 188, 204), 220
        s(f"""s_lshl_b32 s70, s{sLDT}, 16
        s_and_b32 s71, s{sLDT}, 0xffff0000
        s_cmp_lt_u32 s{sW}, 4
        s_cselect_b32 s72, s70, s71
        s_mov_b32 s70, {LOG2E}
        s_mov_b32 s71, {INV2PI}
        v_mov_b32 v64, s72
        v_lshlrev_b32 v60, 16, v60
        v_mul_f32 v64, s70, v64
        v_mul_f32 v60, s70, v60
        v_exp_f32 v64, v64
        v_exp_f32 v60, v60
        v_lshlrev_b32 v61, 16, v61
        v_lshlrev_b32 v62, 16, v62
        v_lshlrev_b32 v63, 16, v63
        v_cvt_pk_bf16_f32 v64, v64, v60
        v_and_b32 v60, 0xffff0000, v64
        v_lshlrev_b32 v64, 16, v64
        v_pk_mul_f32 v[60:61], v[60:61], v[64:65] op_sel_hi:[1,0]
        v_add_f32 v64, v64, v64
        v_pk_mul_f32 v[60:61], v[60:61], s[70:71]
        v_pk_mul_f32 {vr(R0,2)}, v[62:63], v[64:65] op_sel_hi:[1,0]
        s_mov_b32 m0, s{sKG}
        s_mov_b32 s70, 0x41000000
        s_mov_b32 s71, 0x43000000
        v_pk_mul_f32 v[62:63], v[60:61], s[70:71] op_sel_hi:[1,0]
        v_pk_mul_f32 v[64:65], v[60:61], s[70:71] op_sel:[0,1]
        s_lshl_b32 s{sD0}, s{sD1}, 16
        s_and_b32 s{sD1}, s{sD1}, 0xffff0000""")
        for r in (62, 64, 60): s(f'v_exp_f32 v{r}, -v{r}\nv_fract_f32 v{r+1}, v{r+1}')
        for r, d in ((62, Z(8)), (64, Z128), (60, Z(1))): s(f'v_cos_f32 v{d}, v{r+1}\nv_sin_f32 v{d+1}, v{r+1}')
        for r, d in ((62, Z(8)), (64, Z128), (60, Z(1))): s(f'v_pk_mul_f32 {vr(d,2)}, {vr(d,2)}, {vr(r,2)} op_sel_hi:[1,0]')
        s.stamp(4)
        def chain(st, rows, start, mul, neg=False):
            a, b, t, pk = CH[st]; out = []; cur, nxt = start, a
            for i, row in enumerate(rows):
                cc = s.cm(nxt, cur, mul, t) if i < len(rows) - 1 else []
                out += cc[:1] + [f'v_cvt_pk_bf16_f32 v{pk + (i&1)}, v{cur}, {"-" if neg else ""}v{cur+1}'] + cc[1:] + [f'ds_write_addtid_b32 v{pk + (i&1)} offset:{row*KGP}']
                cur, nxt = nxt, (b if nxt == a else a)
            return out
        def rd(dst):
            for ks in range(4): s(f'ds_read_b128 {vr(dst+4*ks)}, v20 offset:{64*ks}')
        E = lambda l: [s(x) for x in l]
        zz = zipl if c.two else (lambda *a: sum(a, []))
        def hook(k):
            if c.fa_at == k: s.publish_a()
            if c.poll_at == k: s.poll_issue(118, 17, 0)
            if c.chk_at == k:
                s.poll_check(118, 17, 0, c.fa_sleep)
                if s.stamps: s('v_writelane_b32 v3, s97, 58')
                s(f's_mov_b32 m0, s{sUM}')
                s.h_u = s(f'buffer_load_dwordx4 v10, {sr(rWS)}, s{sUS} offen sc1 lds')
                if k < 4: s(f's_mov_b32 m0, s{sKG}')
                s.stamp(8)
            if c.pst_at == k: s.pack_late_store()
        hook(0)
        if c.two:
            E(zipl(s.cm(ZD, Z(8), Z(8), 100), s.cm(R1, R0, Z(8), 108), s.cm(Z(2), Z(1), Z(1), TT)))
            E(zipl(chain(0, range(0, 16, 2), R0, ZD, True), chain(1, range(1, 16, 2), R1, ZD, True)))
            rd(BF)
            E(zipl(s.cm(ZD, Z128, Z128, 100), s.cm(R1, Z(8), Z128, 108), s.cm(Z(4), Z(2), Z(2), TT)))
            hook(1); s.stamp(35)
            E(zipl(chain(0, range(0, 16, 2), Z(8), ZD), chain(1, range(1, 16, 2), R1, ZD)))
        else:
            E(chain(0, range(16), R0, Z(8), True))
            rd(BF)
            E(s.cm(Z(2), Z(1), Z(1), TT) + s.cm(Z(4), Z(2), Z(2), TT))
            hook(1); s.stamp(35)
            E(chain(0, range(16), Z(8), Z128))
        rd(AF[0])
        E(zipl(s.cm(Z(6), Z(4), Z(2), 100), s.cm(Z(3), Z(2), Z(1), 108), s.cm(Z(5), Z(4), Z(1), TT)))
        hook(2); s.stamp(36)
        E(zz(chain(0, range(0, 8), Z(4), Z128), chain(1, range(8, 12), Z(2), Z128) + chain(1, range(12, 16), Z(6), Z128), s.cm(Z(7), Z(6), Z(1), TT)))
        rd(AF[1])
        hook(3); s.stamp(37)
        E(zz(chain(0, (0, 1), Z(1), Z128) + chain(0, (4, 5), Z(5), Z128), chain(1, (2, 3), Z(3), Z128) + chain(1, (6, 7), Z(7), Z128)))
        s(f'v_mov_b32 v{TT}, 0x3f80\nds_write_addtid_b32 v{TT} offset:{8*KGP}')
        rd(AF[2])
        s.stamp(6); hook(4)
        for ks in range(4):
            for t in range(2): s(f'v_mfma_f32_16x16x32_bf16 {vr(ACC+4*t)}, {vr(AF[t]+4*ks)}, {vr(BF+4*ks)}, {vr(ACC+4*t) if ks else 0}')
        for ks in range(4): s(f'v_mfma_f32_16x16x32_bf16 {vr(ACC+8)}, {vr(AF[2]+4*ks)}, {vr(BF+4*ks)}, {vr(ACC+8) if ks else 0}')
        for t in range(3):
            for r in range(4): s(f'ds_write_b32 v19, v{ACC+4*t+r} offset:{(16*t+r)*256}')
        hook(5)
        s.barrier()
        s.stamp(7)
        for t in range(9): s(f'ds_read_b128 {vr(28+4*t)}, v{132+t}')
        hook(6)
        if c.chk_at <= 5: s.feed(c.f_kt, 63)
        for t in range(9):
            s(f'v_pk_add_f32 {vr(28+4*t,2)}, {vr(28+4*t,2)}, {vr(30+4*t,2)}')
            if t: s(f'v_add_f32 v{24+4*t}, v{24+4*t}, v{25+4*t}')
        s('v_add_f32 v60, v60, v61')
        for i in range(4): s(f'v_cvt_pk_bf16_f32 v{64+i}, v{28+8*i}, v{32+8*i}')
        s('ds_write_b128 v18, v[64:67]')
        for i in range(4): s(f'v_cvt_pk_bf16_f32 v{68+i}, v{32+8*i}, v{36+8*i}')
        s(f'ds_write_b128 v18, v[68:71] offset:{KEO}')
        s.stamp(9); hook(7)

    def conv(s):
        c = s.cfg
        A, B, ACC = 28, 60, 92
        def rdA(slot, e, a):
            off = 16 * (1 - e) + 128 * (1 - (a & 1))
            s(f'ds_read2_b32 {vr(A+4*slot,2)}, v{4+(a>>1)} offset0:{off} offset1:{off+1}')
            s(f'ds_read2_b32 {vr(A+4*slot+2,2)}, v{4+(a>>1)} offset0:{off+2} offset1:{off+3}')
        def rdB(slot, e, b): s(f'ds_read_b128 {vr(B+4*slot)}, v{8+e} offset:{1024*b}')
        s.wait(s.h_u); s.barrier(); s.stamp(10)
        for k in range(4): rdA(k, 0, k); rdB(k, 0, k)
        s(f'buffer_load_dwordx4 v[124:127], v11, {sr(rWS)}, 0 offen sc1\nbuffer_load_dwordx4 v[128:131], v11, {sr(rWS)}, 0 offen offset:16 sc1')
        s(f's_lshl_b32 s68, s2, 6\ns_add_u32 s68, s68, {FH}')
        ex = s.spread(c.f_conv, 66)
        bs = ['ds_read_b64 v[140:141], v15', 'ds_read_b64 v[142:143], v16', '', '', '', '']
        for i in range(4): bs += [f'v_lshlrev_b32 v{132+2*i}, 16, v{140+i}', f'v_and_b32 v{133+2*i}, 0xffff0000, v{140+i}']
        for ch in range(2):
            bs += [f'v_add_f32 v{140+r}, s{sD0+ch}, v{124+2*r}' for r in range(4)]
            bs += [f'v_fma_f32 v{132+4*ch+r}, v{132+4*ch+r}, v{140+r}, v{125+2*r}' for r in range(4)]
        seen = set(); n = [0]
        def mf(nu, a, b):
            s(f'v_mfma_f32_16x16x32_bf16 {vr(ACC+4*nu)}, {vr(A+4*a)}, {vr(B+4*b)}, {vr(ACC+4*nu) if nu in seen else 0}')
            seen.add(nu); n[0] += 1
            if ex: ex.pop(0)()
            if n[0] > 40 and bs: s(bs.pop(0))
        slot = {}
        for k in range(8):
            if k < 4: rdA(k + 4, 0, k + 4); rdB(k + 4, 0, k + 4)
            prs = [(k, j) for j in range(k + 1) if k + j <= 7] + [(j, k) for j in range(k) if k + j <= 7]
            for a, b in prs: mf(a + b, a, b)
            if k >= 4:
                for j, sl in ((2*(k-4), k), (2*(k-4) + 1, 7 - k)):
                    slot[j] = sl; rdA(sl, 1, j); rdB(sl, 1, j)
        for nu in range(8):
            if nu == c.fb_at:
                s.wait(s.h_pst); s('s_barrier'); s.gflag(3, sFO, sTAG, 18, False)
                s('s_add_u32 s69, s68, 16'); s.gflag(7, 69, sTAG, 18, False)
            if nu == c.hint_at: s.gflag(7, 68, sTAG, 18, False)
            for a in range(nu + 1): mf(nu, slot[a], slot[nu - a])
            if nu >= 3: s(f'ds_write_b128 v13, {vr(ACC+4*(nu-3))} offset:{L_Y + 8192*(nu-3)}')
            if nu >= 6: s(f'ds_write_b128 v13, {vr(ACC+4*(nu-1))} offset:{L_Y + 8192*(nu-1)}')
        assert not bs
        s.stamp(38)
        s(f'ds_write_b128 v13, {vr(ACC+4*7)} offset:{L_Y + 8192*7}')
        s.barrier(); s.stamp(11)
        for i in (0, 4, 1, 5, 2, 6, 3, 7): s(f'ds_read_b128 {vr(A+4*i)}, v14 offset:{L_Y + 1024*i}')
        s.poll_issue(25, 26, 0)
        if c.hint_at == 8: s.gflag(7, 68, sTAG, 18, False)
        for i in (0, 4, 1, 5, 2, 6, 3, 7):
            ch = i >> 2
            for h in range(2): s(f'v_pk_add_f32 {vr(132+4*ch+2*h,2)}, {vr(132+4*ch+2*h,2)}, {vr(A+4*i+2*h,2)}')
        for r in range(4): s(f'v_cvt_pk_bf16_f32 v{140+r}, v{132+r}, v{136+r}')
        h = s.hstore(140)
        s.stamp(12)
        s.feed(c.f_hst, 63)
        return h

    def nonconv(s):
        c = s.cfg
        s(f's_mov_b32 s{sKG}, 0\nv_lshlrev_b32 v15, 7, v{vL}')
        s.h2_addr()
        if c.dma_at == 0: s.pack_late_dma()
        s.publish_a(False)
        s.pack_late_store()
        s.poll(18, 17, 0, sleep=8)
        s.barrier(); s.stamp(8)
        s.gflag(1, sFO, sTAG, 118)
        s(f's_add_u32 s70, s{sA2}, {14*1024 - 8192}')
        s.feed(c.f_hst, c.nc_depth)
        if c.warm: s(f'buffer_load_dword v119, v15, {sr(rG)}, s70 offen')
        s(f's_lshl_b32 s68, s2, 6\ns_add_u32 s68, s68, {FH - 32*64 + 16}\nv_mov_b32 v14, 0')
        s.wait_vm(0); s.stamp(10)
        s.poll(18, 14, 's68', 1, 0, sleep=8)
        s.poll_issue(25, 26, 0)
        s.wait_vm(0); s.stamp(12)
    def hint_wait(s):
        def body():
            s(f's_lshl_b32 s68, s2, 6\ns_add_u32 s68, s68, {FH - 32*64}\nv_mov_b32 v9, 0')
            s.poll(8, 9, 's68', 1, 0, sleep=4)
        s.cond(f's_cmp_lt_u32 s{sI}, 28', body)

    def h2(s, behind):
        ld = [f'buffer_load_dwordx4 {vr(8+4*j)}, v4, {sr(rWS)}, s88 offen offset:{128*j} sc1' for j in range(4)]
        chk = [f'v_max3_u32 v24, v{8+2*i}, v{9+2*i}, {"v24" if i else "v8"}' for i in range(8)] + ['v_cmp_eq_u32 vcc, -1, v24']
        s.poll_check(25, 26, 0, 2)
        if s.stamps: s('v_writelane_b32 v3, s97, 57')
        for l in ld: s(l)
        for l in chk: s(l)
        retry, back = s.lab('hr'), s.lab('hb')
        s(f's_mov_b32 s97, 0\ns_and_b64 vcc, vcc, s[92:93]\ns_cbranch_vccnz {retry}')
        s.label(back)
        s.ool.append(f'{retry}:\n' + ''.join(f'    {l}\n' for l in ld) + f'    s_add_u32 s97, s97, 1\n    s_cmp_gt_u32 s97, {SPIN}\n    s_waitcnt vmcnt(0)\n    s_cbranch_scc1 {back}\n'
                     + ''.join(f'    {l}\n' for l in chk) + f'    s_nop 1\n    s_and_b64 vcc, vcc, s[92:93]\n    s_cbranch_vccnz {retry}\n    s_branch {back}\n')
        if s.stamps: s('v_writelane_b32 v3, s97, 59')
        s.stamp(14)
        behind()
        for j in range(4):
            for i in range(j): s(f'v_swap_b32 v{8+4*j+i}, v{8+4*i+j}')
        for i in range(4): s(f'ds_write_b128 v5, {vr(8+4*i)} offset:{64*i}')

    def stats_tail(s, a, extra, vadr, tab):
        s('s_mov_b64 exec, -1')
        for t in range(3): s(f'v_cndmask_b32 v{a+4*t}, v{a+4*t}, v{a+4*t+1}, s[92:93]')
        for t in range(3): s(f'v_cndmask_b32 v{a+4*t}, v{a+4*t}, v{a+4*t+2}, s[94:95]')
        for t in (1, 2):
            s(f'v_mov_b32_dpp v{a+4*t+1}, v{a+4*t+3} row_ror:{4*t}\nv_mov_b32_dpp v{a+4*t+2}, v{a+4*t} row_ror:{4*t}')
        for t in (1, 2):
            s(f'v_cndmask_b32 v{a+3}, v{a+3}, v{a+4*t+1}, {sr(76+2*t,2)}\nv_cndmask_b32 v{a}, v{a}, v{a+4*t+2}, {sr(76+2*t,2)}')
        s(f'''s_mov_b32 exec_lo, 0x77700777
        s_mov_b32 exec_hi, 0x70777707
        v_mul_f32 v{a+3}, s96, v{a+3}
        v_mul_f32 v{a}, s96, v{a}
        v_fma_f32 v{a}, -v{a+3}, v{a+3}, v{a}
        v_max_f32 v{a}, 0, v{a}
        v_add_f32 v{a+1}, {EPS}, v{a}
        v_rsq_f32 v{a+1}, v{a+1}''')
        if extra:
            s(f'''v_mul_f32 v{a}, v{a}, v{a+1}
            v_mov_b32 v50, v{a+1}
            v_mul_f32 v51, -v{a+3}, v{a+1}
            v_fmaak_f32 v{a}, v{a}, v{a+1}, {EPS}
            v_rsq_f32 v{a}, v{a}
            ds_write_b64 v{extra}, v[50:51] offset:{tab // 2}
            v_mul_f32 v{a+1}, v{a+1}, v{a}''')
        if not extra:
            s(f'''v_cvt_pk_bf16_f32 v{a}, -v{a+3}, -v{a+3}
            v_mul_f32 v{a+2}, {fh(C1)}, v{a+1}
            v_and_b32 v51, 0xffff0000, v{a}
            v_add_f32 v51, v51, v{a+3}
            v_rcp_f32 v{a+3}, v{a+1}
            v_mul_f32 v{a+1}, v{a+1}, v{a+1}
            v_mul_f32 v{a+1}, v{a+1}, v{a+2}
            v_and_b32 v{a+3}, 0xffffff7f, v{a+3}
            v_mul_f32 v{a+1}, {fh(0.044715)}, v{a+1}
            v_and_b32 v{a+2}, 0xffffff7f, v{a+2}
            v_and_b32 v{a+1}, 0xffffff7f, v{a+1}
            ds_write_b128 v{vadr}, {vr(a)} offset:{tab}
            v_cvt_pk_bf16_f32 v{a}, -v51, -v51
            ds_write_b128 v{vadr}, {vr(a)} offset:{tab + 512}''')
            return
        s(f'''v_rcp_f32 v{a+2}, v{a+1}
        v_mul_f32 v{a}, {fh(C1)}, v{a+1}
        v_mul_f32 v{a+1}, v{a+1}, v{a+1}
        v_mul_f32 v{a+1}, v{a+1}, v{a}
        v_mul_f32 v{a+1}, {fh(0.044715)}, v{a+1}
        ds_write_b128 v{vadr}, {vr(a)} offset:{tab}''')
    def gelu_pk(s, acc, cs, st, n, t, out):
        P = range(0, n, 2); o = []
        o += [f'v_pk_fma_f32 {vr(acc+i,2)}, {vr(cs+i,2)}, {vr(st+2,2)}, {vr(acc+i,2)} op_sel:[0,1,0] op_sel_hi:[1,1,1] neg_lo:[0,1,0] neg_hi:[0,1,0]' for i in P]
        o += [f'v_pk_mul_f32 {vr(t+i,2)}, {vr(acc+i,2)}, {vr(acc+i,2)}' for i in P]
        o += [f'v_pk_fma_f32 {vr(t+i,2)}, {vr(t+i,2)}, {vr(st,2)}, {vr(st,2)} op_sel:[0,1,0] op_sel_hi:[1,1,0]' for i in P]
        o += [f'v_pk_mul_f32 {vr(t+i,2)}, {vr(t+i,2)}, {vr(acc+i,2)}' for i in P]
        o += [f'v_exp_f32 v{t+i}, v{t+i}' for i in range(n)]
        o += [f'v_pk_fma_f32 {vr(t+i,2)}, {vr(t+i,2)}, {vr(st+2,2)}, {vr(st+2,2)} op_sel_hi:[1,0,0]' for i in P]
        o += [f'v_rcp_f32 v{t+i}, v{t+i}' for i in range(n)]
        o += [f'v_pk_mul_f32 {vr(t+i,2)}, {vr(t+i,2)}, {vr(acc+i,2)}' for i in P]
        o += [f'v_cvt_pk_bf16_f32 v{out+i//2}, v{t+i}, v{t+i+1}' for i in P]
        return o
    def gelu_sc(s, acc, cs, st, n, t, out, ex):
        steps = [lambda i: f'v_fma_f32 v{acc+i}, -v{cs+i}, v{st+3}, v{acc+i}', lambda i: f'v_mul_f32 v{t+i}, v{acc+i}, v{acc+i}',
                 lambda i: f'v_fma_f32 v{t+i}, v{t+i}, v{st+1}, v{st}', lambda i: f'v_mul_f32 v{t+i}, v{t+i}, v{acc+i}',
                 lambda i: f'v_exp_f32 v{t+i}, v{t+i}', lambda i: f'v_fma_f32 v{t+i}, v{t+i}, v{st+2}, v{st+2}',
                 lambda i: f'v_rcp_f32 v{t+i}, v{t+i}', lambda i: f'v_mul_f32 v{t+i}, v{t+i}, v{acc+i}',
                 lambda i: f'v_cvt_pk_bf16_f32 v{out+i//2}, v{t+i}, v{t+i+1}' if i % 2 == 0 else '']
        for f in steps:
            ex.pop(0)()
            for i in range(n): s(f(i))
    def gemm16(s, W, acc, vaddr, kstride, first_zero, ex):
        seq = [(ks, t) for ks in range(14) for t in range(2)]
        def rd(i): ks, t = seq[i]; s(f'ds_read_b128 {vr(8+4*(i%4))}, v{vaddr} offset:{ks*kstride + 256*t}')
        for i in range(3): rd(i)
        for i, (ks, t) in enumerate(seq):
            if i + 3 < 28: rd(i + 3)
            c = 0 if (first_zero and ks == 0) else vr(acc + 4*t)
            s(f'v_mfma_f32_16x16x32_bf16 {vr(acc+4*t)}, {vr(W+4*ks)}, {vr(8+4*(i%4))}, {c}')
            if ex: ex.pop(0)()
    def gemm32(s, jobs, vaddr, extra=None, nb=4, buf=8):
        seq = [(j, i) for j, job in enumerate(jobs) for i in range(job[1])]
        ex = list(extra or [])
        def rd(n): j, i = seq[n]; s(f'ds_read_b128 {vr(buf+4*(n%nb))}, v{vaddr} offset:{jobs[j][3] + 1024*i}')
        if s.cfg.prio: s('s_setprio 1')
        for n in range(nb - 1): rd(n)
        for n, (j, i) in enumerate(seq):
            W, nk, acc, _, after = jobs[j]
            if n + nb - 1 < len(seq): rd(n + nb - 1)
            s(f'v_mfma_f32_32x32x16_bf16 {vr(acc,16)}, {vr(W+4*i)}, {vr(buf+4*(n%nb))}, {vr(acc,16) if i else 0}')
            if ex: ex.pop(0)()
            if i == nk - 1 and after: ex += [lambda: None] * 3 + after
        s('s_setprio 0')
        s.run(ex)
    def cs3(s, a, b):
        for ks in range(a, b): s(f'v_mfma_f32_16x16x32_bf16 v[168:171], v[164:167], {vr(vW3+4*ks)}, {"v[168:171]" if ks else 0}')

    def g_pre(s):
        s.comment('G wave addresses (v6 GEMM1 B, v7 residual h, v50/v51 stats, masks)')
        s(f'''s_lshl_b32 s70, s{sQ}, 2
        s_lshr_b32 s71, 0x2213, s70
        s_and_b32 s71, s71, 15
        s_lshr_b32 s72, 0x0404, s70
        s_and_b32 s72, s72, 15
        v_and_b32 v44, 15, v{vL}
        v_lshrrev_b32 v45, 4, v{vL}
        v_add_u32 v46, s71, v44
        v_add_u32 v47, s72, v44''')
        s.pos(6, 46, 48)
        s(f'v_mul_u32_u24 v48, 768, v45\nv_add_u32 v6, v6, v48\nv_add_u32 v6, {L_HI}, v6')
        s.pos(7, 47, 48)
        s(f'''v_lshrrev_b32 v48, 1, v45
        s_lshl_b32 s73, s{sCT}, 1
        v_add_u32 v48, s73, v48
        v_mul_u32_u24 v48, 768, v48
        v_and_b32 v49, 1, v45
        v_lshl_add_u32 v48, v49, 3, v48
        v_add_u32 v7, v7, v48
        v_add_u32 v7, {L_HI}, v7
        s_sub_u32 s73, s71, s72
        s_lshl_b32 s70, s{sTB}, 5
        s_add_u32 s73, s73, s70
        v_add_u32 v48, s73, v44
        v_add_u32 v49, 16, v48
        s_movk_i32 s70, 2048
        v_cmp_gt_u32 {sr(sM0,2)}, s70, v48
        v_cmp_gt_u32 {sr(sM1,2)}, s70, v49
        v_lshlrev_b32 v50, 4, v46
        v_add_u32 v50, {L_STA}, v50
        v_lshlrev_b32 v51, 3, v47
        v_add_u32 v51, {L_STB}, v51''')
        for j in range(3): s(f's_add_u32 s70, s{sQ}, {j+1}\ns_and_b32 s70, s70, 3\ns_mul_i32 s70, s70, 7\ns_add_u32 s70, s70, s{sW}\ns_lshl_b32 s{4+j}, s70, 10')
        s(f'''s_lshl_b32 s7, s{sW}, 10
        s_mul_i32 s8, s{sTB}, 28672
        s_add_u32 s8, s8, {GX}
        s_xor_b32 s9, s{sTB}, 1
        s_mul_i32 s9, s9, 28672
        s_add_u32 s9, s9, s7
        s_add_u32 s9, s9, {X1}
        s_lshl_b32 s10, s{sTB}, 5
        s_add_u32 s72, s10, s{sCT}
        s_add_u32 s10, s10, s{sW}
        s_and_b32 s11, s10, -33
        s_lshl_b32 s10, s10, 2
        s_add_u32 s10, s10, {F3}
        s_lshl_b32 s11, s11, 2
        s_add_u32 s11, s11, {F4}
        s_lshl_b32 s72, s72, 2
        s_add_u32 s73, s72, {F4}
        s_add_u32 s72, s72, {F3}
        s_lshl_b32 s69, s{sCT}, 10
        s_add_u32 s70, s69, s8
        s_add_u32 s71, s70, {X1 - GX}
        v_add_u32 v46, s69, v{vL16}
        v_and_b32 v47, 3, v{vL}
        v_mul_u32_u24 v47, 28, v47
        v_bfe_u32 v48, v{vL}, 2, 1
        v_lshl_add_u32 v47, v48, 7, v47''')
        for i in range(4): s(f'v_mov_b32 v{28+i}, 0x3f803f80')
        for ks in range(14): s(f'v_mfma_f32_16x16x32_bf16 v[32:35], {vr(vW1+4*ks)}, v[28:31], {"v[32:35]" if ks else 0}')

    def g_wave(s, hst):
        c = s.cfg
        assert c.f_hok <= 28
        s.g_pre()
        s.wait(hst); s.hint_wait()
        s.stamp(13)
        s.h2(lambda: s.feed(c.f_hok, 63))
        s.barrier(); s.stamp(15)
        s(f'v_mov_b32 v4, {L_FAST}\nds_read_b32 v4, v4\nv_lshlrev_b32 v5, 4, v44\nv_lshl_add_u32 v5, v45, 9, v5')
        s.gemm16(vW1, 24, 6, 3072, True, s.spread(c.f_g1, 28))
        s(f'v_readfirstlane_b32 s{sFAST}, v4')
        n1 = max(0, s.wn - 28)
        s.barrier(); s.stamp(16)
        s('ds_read_b128 v[36:39], v50\nds_read_b128 v[40:43], v50 offset:256')
        for l in zipl(s.gelu_pk(24, 32, 36, 4, 8, 20), s.gelu_pk(28, 32, 40, 4, 12, 22)): s(l)
        s(f"""v_cndmask_b32 v20, 0, v20, {sr(sM0,2)}
        v_cndmask_b32 v22, 0, v22, {sr(sM1,2)}
        v_cndmask_b32 v21, 0, v21, {sr(sM0,2)}
        v_cndmask_b32 v23, 0, v23, {sr(sM1,2)}
        v_permlane16_swap_b32 v20, v22
        v_permlane16_swap_b32 v21, v23""")
        s.xstore([f'buffer_store_dwordx4 v[20:23], v{vL16}, {sr(rWS)}, s70 offen'])
        s.stamp(17)
        s(f"""ds_write_b128 v46, v[20:23] offset:{L_GI}
        ds_read_b64 v[8:9], v7
        ds_read_b64 v[10:11], v7 offset:256
        ds_read_b64 v[12:13], v51
        ds_read_b64 v[14:15], v51 offset:128""")
        s.flag(72)
        s.stamp(18)
        s.poll(4, 47, 's10', 15, 0)
        s.stamp(42)
        for j in range(3): hd = s(f's_add_u32 m0, s{4+j}, {L_GI}\ns_add_u32 s68, s{4+j}, s8\nbuffer_load_dwordx4 v{vL16}, {sr(rWS)}, s68 offen sc1 lds')
        if c.bar_a: s('s_barrier')
        s.feed(c.f_b3a, 63)
        for i in range(4): s(f'v_lshlrev_b32 v{vRES+2*i}, 16, v{8+i}\nv_and_b32 v{vRES+1+2*i}, 0xffff0000, v{8+i}')
        for i in range(4): s(f'v_pk_fma_f32 {vr(24+2*i,2)}, {vr(vRES+2*i,2)}, {vr(12+2*(i>>1),2)}, {vr(12+2*(i>>1),2)} op_sel:[0,0,1] op_sel_hi:[1,0,1]')
        s(f"""v_lshrrev_b32 v48, 2, v44
        v_xor_b32 v48, v48, v45
        v_and_b32 v48, 1, v48
        v_cmp_eq_u32 vcc, 0, v48
        v_mov_b32 v48, 0x3f803f80
        s_add_u32 s8, s8, {X1 - GX}
        v_cndmask_b32 v164, 0, v48, vcc
        v_cndmask_b32 v165, 0, v48, vcc
        v_cndmask_b32 v166, 0, v48, vcc
        v_cndmask_b32 v167, 0, v48, vcc""")
        n1 = min(n1, c.cs_a)
        s.cs3(0, n1)
        s.wait(hd); s.barrier(); s.stamp(19)
        s.gemm16(vW2, 24, 5, 2048, False, s.spread(c.f_g2, 14))
        n2 = min(28, s.wn - 28, n1 + c.cs_b)
        for i in range(4): s(f'v_cvt_pk_bf16_f32 v{20+i}, v{24+2*i}, v{25+2*i}')
        s('v_permlane16_swap_b32 v20, v22\nv_permlane16_swap_b32 v21, v23')
        s.xstore([f'buffer_store_dwordx4 v[20:23], v{vL16}, {sr(rWS)}, s71 offen'])
        s.stamp(20)
        s(f'ds_write_b128 v46, v[20:23] offset:{L_XI}')
        s(f"""v_mov_b32 v49, 0
        v_mov_b32 v50, 0
        v_mov_b32 v51, 0
        v_add_u32 v6, {L_XI}, v{vL16}
        s_lshl_b32 s70, s{sW}, 11
        s_add_u32 s70, s70, {L_HID}
        v_add_u32 v7, s70, v{vL16}
        v_add_u32 v44, {L_HID}, v{vL16}""")
        for i in range(8): s(f'v_add_f32 v{vRES+i}, v{vRES+i}, v{24+i}')
        s.flag(73)
        s.stamp(21)
        s.poll(4, 47, 's11', '0xff', 0)
        s.stamp(43)
        for j in range(3): hd = s(f's_add_u32 m0, s{4+j}, {L_XI}\ns_add_u32 s68, s{4+j}, s8\nbuffer_load_dwordx4 v{vL16}, {sr(rWS)}, s68 offen sc1 lds')
        if c.bar_a: s('s_barrier')
        for j in range(4): hx = s(f's_add_u32 m0, s7, {L_XI + 28672 + 7168*j}\ns_add_u32 s68, s9, {7168*j}\nbuffer_load_dwordx4 v{vL16}, {sr(rWS)}, s68 offen sc1 lds')
        s.feed(c.f_b4a, 63)
        s.cs3(n1, n2)
        later = []
        for k in range(4):
            later.append(f"""s_lshl2_add_u32 s68, s{sW}, {k}
            s_mul_i32 s69, s68, 9363
            s_lshr_b32 s69, s69, 16
            s_sub_u32 s69, s{sQ}, s69
            s_and_b32 s69, s69, 3
            s_mul_i32 s70, s{sTB}, 28
            s_add_u32 s70, s70, s68
            s_mul_i32 s71, s70, 5120
            s_add_u32 s71, s71, {PX}
            s_lshl_b32 s70, s70, 10
            s_lshl_b32 s74, s69, 21
            s_add_u32 s70, s70, s74
            s_add_u32 s70, s70, {GX - 0x200000}
            s_cmp_eq_u32 s69, 3
            s_cselect_b32 s70, s71, s70
            s_lshl_b32 s68, s68, 10
            s_cmp_eq_u32 s69, 0
            s_cselect_b32 s{12+k}, s68, s70
            s_cselect_b32 s{16+k}, 0, s{sFAST}""")
        later.append(f"""s_xor_b32 s70, s{sTB}, 1
        s_mul_i32 s70, s70, 28
        s_lshl2_add_u32 s70, s{sW}, s70
        s_mul_i32 s70, s70, 5
        s_add_u32 s70, s70, s{sQ}
        s_lshl_b32 s70, s70, 10
        s_add_u32 s20, s70, {PX + 1024}
        s_lshl_b32 s72, s{sCL}, 6
        s_lshl_b32 s73, s{sM}, 3
        s_add_u32 s73, s73, s72
        s_add_u32 s73, s73, s{sW}
        s_lshl_b32 s73, s73, 2
        s_add_u32 s73, s73, {F5}
        s_lshr_b32 s74, s{sCT}, 2
        s_add_u32 s72, s72, s74
        s_lshl_b32 s72, s72, 2
        s_add_u32 s72, s72, {F5}""")
        AC, ST, A4 = (180, 164), (vST3, 160), ((112, 128), (180, 144))
        seq = []
        for t in range(2): seq += [(vW3 + 4*k, AC[t], k == 0, (6, 28672*t + 1024*k)) for k in range(28)]
        for t in range(2):
            for j in range(2):
                prs = [(w, ctl) for w in range(7) for ctl in range(2)]
                if t == 1 and j == 1: prs = [(w, ctl) for ctl in range(2) for w in range(7)]
                seq += [((vW4A, vW4B)[j] + 4*(2*w + ctl), A4[t][ctl], j == 0 and w == 0, (44, 14336*t + 1024*(2*w + j))) for w, ctl in prs]
        reads = []; ridx = []
        for n, e in enumerate(seq):
            if not reads or reads[-1][0] != e[3]: reads.append((e[3], n))
            ridx.append(len(reads) - 1)
        nb = 4
        rat = {}
        for r, (key, n) in enumerate(reads):
            free = max([m for m in range(112) if ridx[m] == r - nb], default=-1)
            rat[r] = max(free, n - c.pd)
        X = {i: [] for i in range(-1, 113)}
        def place(items, a, b):
            bu = c.burst
            for k, it in enumerate(items):
                p = a + (k * (b - a + 1)) // len(items)
                X[min(b, p + (bu - 1 - (p - a) % bu))].append(it)
        I = lambda t: (lambda: s(t))
        def gelu(t, h):
            acc, st, o, G = AC[t] + 8*h, ST[t], [], c.ggrp
            for j in range(0, 8, G):
                R = range(G); T = 24 + j
                o += [f'v_mul_f32 v{T+i}, v{acc+j+i}, v{acc+j+i}' for i in R]
                o += [f'v_fma_f32 v{T+i}, v{T+i}, v{st+1}, v{st+2}' for i in R]
                o += [f'v_mul_f32 v{T+i}, v{T+i}, v{acc+j+i}' for i in R]
                for i in R: o += [f'v_exp_f32 v{T+i}, v{T+i}', '']
                o += [f'v_fma_f32 v{T+i}, v{T+i}, v{st+3}, v{st+3}' for i in R]
                for i in R: o += [f'v_rcp_f32 v{T+i}, v{T+i}', '']
                o += [f'v_mul_f32 v{T+i}, v{T+i}, v{acc+j+i}' for i in R]
                o += [f'v_cvt_pk_bf16_f32 v{32+(j+i)//2}, v{T+i}, v{T+i+1}' for i in range(0, G, 2)]
            o.append(f'ds_write_b128 v7, v[32:35] offset:{14336*t + 1024*h}\ns_mov_b64 exec, 1\nds_add_u32 v44, v46 offset:{L_CNT - L_HID + 4*(2*t + h)}\ns_mov_b64 exec, -1')
            return [I(x) for x in o]
        def sync(at, k, want, st):
            rdl = f'ds_read_b32 v4, v44 offset:{L_CNT - L_HID + 4*k}'
            def chk():
                spin, back = s.lab('ls'), s.lab('lb')
                s(f'v_readfirstlane_b32 s68, v4\ns_cmp_lg_u32 s68, {want}\ns_cbranch_scc1 {spin}')
                s.label(back); s.stamp(st)
                s.ool.append(f'{spin}:\n    s_mov_b32 s97, 0\n{spin}a:\n    s_sleep 1\n    {rdl}\n    s_add_u32 s97, s97, 1\n    s_cmp_gt_u32 s97, {SPIN*8}\n    s_waitcnt lgkmcnt(0)\n    s_cbranch_scc1 {back}\n'
                             f'    v_readfirstlane_b32 s68, v4\n    s_nop 1\n    s_cmp_lg_u32 s68, {want}\n    s_cbranch_scc1 {spin}a\n    s_branch {back}\n')
            X[at - c.sd].append(I(rdl)); X[at].append(chk)
        def fin(t, ctl, h, pk):
            acc = A4[t][ctl]
            def f():
                for i in range(4): s(f'v_cvt_pk_bf16_f32 v{pk+i}, v{acc+8*h+2*i}, v{acc+8*h+2*i+1}')
                k = 2*ctl + h
                if t == 1:
                    s(f's_add_u32 s74, s20, {k * 5120}')
                    s.xstore([f'buffer_store_dwordx4 {vr(pk)}, v{vL16}, {sr(rWS)}, s74 offen'])
                else:
                    slow, loc, back = s.lab('ps'), s.lab('pl'), s.lab('pb')
                    st = f'buffer_store_dwordx4 {vr(pk)}, v{vL16}, {sr(rWS)}, s{12+k} offen'
                    s(f's_cmp_eq_u32 s{16+k}, 0\ns_cbranch_scc1 {slow}\n{st}')
                    s.label(back)
                    s.ool.append(f'{slow}:\n    s_cmp_lt_u32 s{12+k}, 0x10000\n    s_cbranch_scc1 {loc}\n    {st} sc1\n    s_branch {back}\n'
                                 f'{loc}:\n    v_add_u32 v47, s{12+k}, v{vL16}\n    ds_write_b128 v47, {vr(pk)} offset:{L_GI}\n    s_branch {back}\n')
            return f
        bsave, c.burst = c.burst, 1
        ch = []
        for t in later:
            cur = []
            for l in t.split('\n'):
                if len(cur) >= 5 and 'cselect' not in l: ch.append('\n'.join(cur)); cur = []
                cur.append(l)
            ch.append('\n'.join(cur))
        assert not any(x.strip().split('\n')[-1].strip().startswith('s_cmp') for x in ch)
        place([I(x) for x in ch], 1, 21)
        if s.wn < 56: place([s.feed1] * (56 - s.wn), 0, max(0, s.wn - 28 - 5))
        place([s.feed1] * (70 - max(s.wn, 56)), c.w4a[0], c.w4a[1])
        place([s.feed1] * 14, c.w4b[0], c.w4b[1])
        c.burst = bsave
        for ks in range(n2, 28): X[max(ks - 3, 0)].append(lambda ks=ks: s.cs3(ks, ks + 1))
        X[26] += [I('v_cvt_pk_bf16_f32 v48, v168, v168'), I('v_and_b32 v47, 0xffff0000, v48'), I('v_sub_f32 v47, v168, v47'), I('v_cvt_pk_bf16_f32 v48, v168, v47')]
        first = lambda n: rat[ridx[n]] - 1
        sync(first(28), 4, 8, 23)
        X[first(28)].append(I(f'ds_read_b128 {vr(ST[0])}, v44 offset:{L_ST3 - L_HID}'))
        X[27].append(I(f'v_mfma_f32_32x32x16_bf16 {vr(AC[0],16)}, v[48:51], {vr(ST[0])}, {vr(AC[0],16)}'))
        q = c.q
        for k in range(4): place(gelu(k >> 1, k & 1), q[k], q[k+1] - 1)
        sync(55, 5, 1, 24)
        X[55].append(I(f'ds_read_b128 {vr(ST[1])}, v44 offset:{L_ST3 - L_HID + 1024}'))
        X[57].append(I(f'v_mfma_f32_32x32x16_bf16 {vr(AC[1],16)}, v[48:51], {vr(ST[1])}, {vr(AC[1],16)}'))
        for k in range(4):
            assert first(56 + 14*k) - c.sd >= q[k+1] - 1, (k, first(56 + 14*k))
            sync(first(56 + 14*k), k, 7, (25, 26, 27, 41)[k])
        sync(c.fin0[0] - 3, 6, 1, 44)
        for k, at in enumerate(c.fin0): X[at].append(fin(0, k >> 1, k & 1, (108, 196)[k & 1]))
        X[107].append(fin(1, 0, 0, 108)); X[109].append(fin(1, 0, 1, 196)); X[112] += [fin(1, 1, 0, 24), fin(1, 1, 1, 28)]
        def rd(r): (va, off), _ = reads[r]; s(f'ds_read_b128 {vr(8+4*(r%nb))}, v{va} offset:{off}')
        X[c.x_at].insert(0, lambda: (s.wait(hx), s(f's_mov_b64 exec, 1\nds_add_u32 v44, v46 offset:{L_CNT - L_HID + 16}\ns_mov_b64 exec, -1')))
        s('v_mov_b32 v46, 1')
        s.wait(hd); s.barrier(); s.stamp(22)
        for r in range(len(reads)):
            if rat[r] < 0: rd(r)
        for n, (W, acc, fst, key) in enumerate(seq):
            s(f'v_mfma_f32_32x32x16_bf16 {vr(acc,16)}, {vr(W)}, {vr(8+4*(ridx[n]%nb))}, {0 if fst else vr(acc,16)}')
            for r in range(len(reads)):
                if rat[r] == n: rd(r)
            if c.prio and X[n] and 28 <= n < 98: s('s_setprio 0')
            s.run(X[n])
            if c.prio and X[n] and 28 <= n < 98: s('s_setprio 1')
        s.run(X[112])
        s.stamp(28)
        s(f'''v_and_b32 v8, 15, v{vL}
        v_bfe_u32 v9, v{vL}, 4, 1
        v_lshlrev_b32 v9, 3, v9
        v_sub_u32 v8, v8, v9
        v_mov_b32 v10, 0x3f80
        v_mov_b32 v11, 1.0
        v_lshlrev_b32 v6, 5, v{vL}
        v_lshrrev_b32 v47, 5, v{vL}
        v_and_b32 v45, 31, v{vL}
        v_mul_u32_u24 v45, 896, v45
        v_lshl_add_u32 v45, v47, 4, v45''')
        s.wait_lg(0, force=True)
        s.flag(73)
        s.stamp(29)
        s('s_mov_b64 exec, 0xff')
        s.poll_issue(4, 6, 's72')
        s('s_mov_b64 exec, -1')
        for d in range(4):
            s(f'''v_cmp_eq_u32 vcc, {2*d}, v8
            v_cmp_eq_u32 s[68:69], {2*d+1}, v8
            v_cndmask_b32 v{48+d}, 0, v10, vcc
            v_cndmask_b32 v{48+d}, v{48+d}, v11, s[68:69]''')
        s(f'''s_mul_i32 s74, s{sTB}, 28
        s_add_u32 s74, s74, s{sCT}
        s_mul_i32 s75, s74, 5120
        s_add_u32 s75, s75, {PX}
        s_add_u32 s71, s75, 4096
        s_lshl_b32 s74, s74, 10
        s_add_u32 s74, s74, {GX}
        v_mul_u32_u24 v9, {X1 - GX - 1024}, v47
        v_add_u32 v9, v9, v5
        s_lshl_b32 s70, s{sCT}, 10
        s_sub_u32 s70, s70, 1024
        v_add_u32 v12, s70, v5
        s_mul_i32 s76, s{sTB}, {32*896}
        s_lshl_b32 s77, s{sCT}, 5
        s_add_u32 s76, s76, s77''')
        s.srd(rX, sOUT, 2048 * 896)
        s('s_mov_b64 exec, 0xff')
        s.poll_check(4, 6, 's72')
        s('s_mov_b64 exec, -1')
        s.stamp(30)
        for t in range(2): s(f'buffer_load_dwordx4 {vr(52+4*t)}, v9, {sr(rWS)}, s74 offen offset:{256*t} sc1')
        for u in range(2):
            for t in range(2): s(f'buffer_load_dwordx4 {vr(60+8*u+4*t)}, v5, {sr(rWS)}, s75 offen offset:{2048*u + 256*t} sc1')
        s('s_mov_b32 exec_lo, 0')
        for t in range(2): s(f'ds_read_b128 {vr(76+4*t)}, v12 offset:{L_GI + 256*t}')
        lg, s.lg = s.lg, []
        s('s_mov_b32 exec_lo, -1\ns_mov_b32 exec_hi, 0')
        for t in range(2): s(f'buffer_load_dwordx4 {vr(76+4*t)}, v5, {sr(rWS)}, s71 offen offset:{256*t} sc1')
        s.lg = lg
        s('s_mov_b32 exec_hi, -1')
        for u in range(4):
            for t in range(2): s(f'v_mfma_f32_16x16x32_bf16 {vr(vRES+4*t)}, v[48:51], {vr(52+8*u+4*t)}, {vr(vRES+4*t)}')
        for i in range(4): s(f'v_cvt_pk_bf16_f32 v{20+i}, v{vRES+2*i}, v{vRES+1+2*i}')
        s('v_permlane16_swap_b32 v20, v22\nv_permlane16_swap_b32 v21, v23')
        s(f'buffer_store_dwordx4 v[20:23], v45, {sr(rX)}, s76 offen')
        s.stamp(31)

    def s_mfma(s, addrs, acc, kstride, base):
        seq = [(ks, t) for ks in range(14) for t in range(3)]
        nb = 8
        def rd(i): ks, t = seq[i]; s(f'ds_read_b128 {vr(52+4*(i%nb))}, v{addrs+t} offset:{base + ks*kstride}')
        s('s_mov_b32 exec_lo, 0x77777777\ns_mov_b32 exec_hi, 0x77777777')
        for i in range(nb - 1): rd(i)
        for i, (ks, t) in enumerate(seq):
            if i + nb - 1 < len(seq): rd(i + nb - 1)
            s(f'v_mfma_f32_16x16x32_bf16 {vr(acc+4*t)}, {vr(52+4*(i%nb))}, {vr(52+4*(i%nb))}, {vr(acc+4*t) if ks else 0}')
    def s_wave(s, hst):
        s.comment('S wave: statistics, polling, DMA')
        s('s_setprio 2')
        s(f'''s_and_b32 s70, s2, 0xc7
        s_lshl_b32 s70, s70, 4
        s_add_u32 s70, s70, {FA}
        v_and_b32 v44, 7, v{vL}
        v_lshlrev_b32 v44, 7, v44
        buffer_load_dword v48, v44, {sr(rWS)}, s70 offen sc1''')
        def ftouch():
            s(f'''s_lshl_b32 s72, s{sTB}, 7
            s_add_u32 s72, s72, {F3}
            s_mov_b32 m0, {L_JUNK}
            v_min_u32 v45, 2, v{vL}
            v_lshlrev_b32 v45, 13, v45
            buffer_load_dword v45, {sr(rWS)}, s72 offen sc1 lds''')
        for i in range(32): s(f'v_mov_b32 v{52+i}, 0x3f803f80')
        s(f'''v_and_b32 v44, 3, v{vL}
        v_bfe_u32 v45, v{vL}, 2, 2
        v_mad_u32_u24 v40, v45, 3, v44
        v_lshrrev_b32 v41, 4, v{vL}''')
        for t in range(3):
            s(f'v_add_u32 v46, {12*t}, v40')
            s.pos(84 + t, 46, 47)
            s(f'v_mul_u32_u24 v47, 768, v41\nv_add_u32 v{84+t}, v{84+t}, v47\nv_add_u32 v{84+t}, {L_HI}, v{84+t}')
            s(f'v_min_u32 v46, 31, v46\nv_lshlrev_b32 v46, 4, v46\nv_lshl_add_u32 v46, v41, 9, v46\nv_add_u32 v{88+t}, {L_XI}, v46')
        s(f'''v_sub_u32 v45, v45, v41
        v_and_b32 v45, 3, v45
        v_cmp_eq_u32 s[78:79], 1, v45
        v_cmp_eq_u32 s[80:81], 2, v45
        v_mad_u32_u24 v40, v41, 3, v44
        v_mad_u32_u24 v40, v45, 12, v40
        v_min_u32 v92, 31, v40
        v_lshlrev_b32 v92, 4, v92
        v_add_u32 v92, {L_ST3}, v92
        v_lshlrev_b32 v42, 4, v40
        v_add_u32 v42, {L_STA}, v42
        v_lshlrev_b32 v43, 3, v40
        v_add_u32 v43, {L_STB}, v43
        v_lshlrev_b32 v6, 2, v{vL}
        v_lshlrev_b32 v7, 7, v{vL}
        v_cmp_ne_u32 vcc, s{sTX}, v48
        v_mov_b32 v46, {L_FAST}
        s_cmp_eq_u64 vcc, 0
        s_cselect_b32 s{sFAST}, 1, 0
        v_mov_b32 v45, s{sFAST}
        ds_write_b32 v46, v45
        v_mov_b32 v45, 0
        v_and_b32 v46, 28, v6
        v_add_u32 v46, {L_CNT}, v46
        ds_write_b32 v46, v45''')
        s.hint_wait()
        s.stamp(13)
        s.h2(ftouch)
        s(f'v_cmp_eq_u32 s[92:93], 1, v44\nv_cmp_eq_u32 s[94:95], 2, v44\ns_mov_b32 s96, {INVD}')
        s(f'''s_lshl2_add_u32 s70, s{sTB}, s{sQ}
        s_lshl_b32 s71, s70, 4
        s_add_u32 s71, s71, {FN}
        v_and_b32 v45, 1, v{vL}
        v_lshlrev_b32 v45, 3, v45
        v_sub_u32 v45, v44, v45
        s_lshl2_add_u32 s72, s{sTB}, 4
        v_add_u32 v45, s72, v45
        v_mov_b32 v47, s70
        v_cmp_gt_u32 vcc, 0x100, v45
        v_mov_b32 v36, s{sTAG}
        s_mov_b32 s72, {FN}
        v_cndmask_b32 v45, v47, v45, vcc
        v_lshlrev_b32 v37, 4, v45''')
        s.barrier(); s.stamp(15)
        s(f's_mov_b64 exec, 1\nbuffer_store_dword v36, off, {sr(rWS)}, s71 sc1')
        s.s_mfma(84, 24, 3072, 0)
        s.stats_tail(24, 43, 42, 0)
        s('s_mov_b64 exec, -1')
        s.barrier(); s.stamp(16)
        s.poll(4, 37, 's72', 15, 0, sleep=4)
        for i in range(4 if s.cfg.bar_a else 2): s('s_barrier')
        s.stamp(22)
        def lwait(k, want):
            l = s.lab('tw')
            s('s_mov_b32 s97, 0'); s.label(l)
            s(f'ds_read_b32 v4, v46 offset:{4*k}\ns_add_u32 s97, s97, 1\nv_readfirstlane_b32 s68, v4\ns_cmp_lt_u32 s97, {SPIN*8}\ns_cselect_b32 s68, s68, {want}\ns_cmp_lg_u32 s68, {want}\ns_sleep 1\ns_cbranch_scc1 {l}')
        def touch():
            s(f'''s_mul_i32 s70, s{sTB}, 28
            s_mul_i32 s71, s{sQ}, 7
            s_add_u32 s70, s70, s71
            s_lshl_b32 s71, s70, 10
            s_add_u32 s71, s71, {GX}
            s_add_u32 s69, s71, {X1 - GX}
            s_mul_i32 s70, s70, 5120
            s_add_u32 s70, s70, {PX}
            s_mov_b32 m0, {L_JUNK}
            s_mov_b32 exec_hi, 0x00ffffff''')
            if s.cfg.refresh: s(f'buffer_load_dword v7, {sr(rWS)}, s71 offen sc1 lds\nbuffer_load_dword v7, {sr(rWS)}, s69 offen sc1 lds')
            for i in range(5):
                s(f'buffer_load_dword v7, {sr(rWS)}, s70 offen sc1 lds\ns_add_u32 s70, s70, 7168')
                s.wait_vm(s.cfg.tdepth)
            s('s_mov_b32 exec_hi, -1')
        s(f'v_mov_b32 v46, {L_CNT}\nv_mov_b32 v47, 1')
        for t in range(2):
            s.s_mfma(88, 24, 2048, 28672 * t)
            s.stats_tail(24, None, 92, 1024 * t)
            s(f's_mov_b64 exec, 1\nds_add_u32 v46, v47 offset:{16 + 4*t}\ns_mov_b64 exec, -1')
            s.stamp(23 + t)
            if t == 0:
                lwait(4, 8)
                s(f's_lshl_b32 s72, s{sCL}, 8\ns_add_u32 s72, s72, {F5 + 28}\ns_lshl_b32 s73, s{sM}, 5\ns_add_u32 s73, s73, s72\nv_lshlrev_b32 v37, 5, v{vL}')
                s.flag(73)
        s.poll(4, 37, 's72', '0xff', 0, sleep=2)
        s(f's_mov_b64 exec, 1\nds_add_u32 v46, v47 offset:24\ns_mov_b64 exec, -1')
        if s.cfg.touch_at < 4: lwait(s.cfg.touch_at, 7)
        s.stamp(25)
        if s.cfg.touch_at != 5: touch()
        s.cond('s_cmp_lg_u32 s2, 0', lambda: s(f'v_mov_b32 v4, s{sTAG}\ns_mov_b32 s70, {EP}\ns_mov_b64 exec, 1\nbuffer_store_dword v4, off, {sr(rWS)}, s70 sc1\ns_mov_b64 exec, -1'))
        s.wait_vm(0); s.stamp(28)

def build(stamps=False, cfg=None):
    s = K(stamps, cfg or Cfg())
    s.entry(); s.setup(); s.pack_late_issue()
    s.stamp(34); s.ln()
    s(f's_cmp_ge_u32 s{sI}, 28'); s.flush_hazards(); s('s_cbranch_scc1 Lnonconv')
    st = s.state()
    s.setup2(); s.h2_addr(); s.stamp(33)
    if s.cfg.dma_at == 0: s.pack_late_dma()
    if s.cfg.fa_at == -1: s.publish_a()
    s.kgen(); hst = s.conv()
    s.label('Ljoin')
    s(f'v_mov_b32 v4, v21\nv_mov_b32 v5, v22\ns_cmp_eq_u32 s{sW}, 7'); s.flush_hazards(); s('s_cbranch_scc1 Lsw')
    st2 = s.state()
    s.g_wave(hst); s.dump_stamps(); s('s_endpgm')
    s.label('Lsw'); s.set_state(st2)
    s.s_wave(hst); s.dump_stamps()
    s.label('Lend'); s('s_endpgm')
    s.label('Lnonconv'); s.set_state(st); s.wn = 0
    s.nonconv(); s.flush_hazards(); s('s_branch Ljoin')
    name = NAME + '_kernel'
    txt = f'''; @launch grid=(256,1,1) block=(512,1,1) lds={LDS_BYTES}
.amdgcn_target "amdgcn-amd-amdhsa--gfx950"
.text
.globl {name}
.p2align 8
.type {name},@function
{name}:
''' + s.text() + ''.join(s.ool) + tap_table() + f'''.section .rodata,"a"
.p2align 6
.amdhsa_kernel {name}
  .amdhsa_next_free_vgpr 256
  .amdhsa_next_free_sgpr 102
  .amdhsa_accum_offset 256
  .amdhsa_group_segment_fixed_size 0
  .amdhsa_kernarg_size 120
  .amdhsa_user_sgpr_count 2
  .amdhsa_user_sgpr_kernarg_segment_ptr 1
  .amdhsa_system_sgpr_workgroup_id_x 1
.end_amdhsa_kernel
'''
    size, syms = code_info(txt.replace('@CODE_BYTES@', '1000').replace('@TAB_OFF@', '1000'))
    return txt.replace('@CODE_BYTES@', str(size - syms['Lpc'] - 4)).replace('@TAB_OFF@', str(syms['tap_table'] - syms['Lpc']))
def tap_table():
    RB = {8: 0, 4: 16, 2: 24, 6: 28, 1: 32, 3: 34, 5: 36, 7: 38}
    def rnd(l):
        sh = max(0, l.bit_length() - 8)
        if not sh: return l
        q, r = l >> sh, l & ((1 << sh) - 1); half = 1 << (sh - 1)
        return (q + (r > half or (r == half and q & 1))) << sh
    v = []
    for i in range(2056):
        l = 2047 - i
        if l < 0: e = 768
        elif l == 0: e = 640
        else: p = rnd(l); e = RB[((p - 1) & 7) + 1] * 16 + ((p - 1) >> 3)
        v.append(e * 16)
    t = '.p2align 7\n.type tap_table,@object\ntap_table:\n'
    for i in range(0, 2056, 8): t += '.short ' + ', '.join(map(str, v[i:i+8])) + '\n'
    return t + '.size tap_table, 4112\n'
def code_info(txt):
    import subprocess, tempfile, re
    with tempfile.TemporaryDirectory() as d:
        open(d + '/a.s', 'w').write(txt)
        subprocess.run(['clang', '-x', 'assembler', '-target', 'amdgcn-amd-amdhsa', '-mcpu=gfx950', '-c', d + '/a.s', '-o', d + '/a.o'], check=True)
        o = subprocess.run(['llvm-readelf', '-S', '-s', d + '/a.o'], capture_output=True, text=True).stdout
        size = int(re.search(r'\.text\s+PROGBITS\s+\S+\s+\S+\s+(\S+)', o).group(1), 16)
        return size, {m.group(2): int(m.group(1), 16) for m in re.finditer(r'\d+: ([0-9a-f]{16}) .* (\S+)\n', o)}
if __name__ == '__main__':
    sys.stdout.write(build(stamps=len(sys.argv) > 1))
```

```python
import sys
sys.path.insert(0, 'gen')
import fused
for i, a in enumerate(sys.argv[1:]):
    c = fused.Cfg()
    for k, v in eval('dict(%s)' % a).items(): setattr(c, k, v)
    open(f'v{i}.s', 'w').write(fused.build(False, c))
```

```python
import sys, os, struct
sys.path.insert(0, os.path.dirname(os.path.abspath(__file__)))
from dsl import Asm, Ins

NAME = 'sequential_preLN__ssm_conv_s4d__mixer_s_mlp__prompt'
W1P, W2P, W3P, W4P = 0, 392 * 1024, 784 * 1024, 2352 * 1024
SM = 0x600000
GX, X1, PX = 0xA00000, 0xC00000, 0x1000000
FL = 0x2000000
F3, F4, F5, F7, F7B = FL, FL + 0x2000, FL + 0x4000, FL + 0x6000, FL + 0x8000
FA, FB, FH, FN, EP = FL + 0x18000, FL + 0x19000, FL + 0x1A000, FL + 0x1E000, FL + 0x20000
TS = 0x3000000
WS_BYTES = 0x4000000
L_LN, LNP = 0, 960
L_PK, L_PK2 = 15360, 32768
L_KG, KGP = 31744, 288
L_Y = 0
L_KT, KTSZ = 68608, 12320
L_KE, KEO, KECH = 93312, 4160, 8320
L_U = 110080
L_SM = 8 * LNP
L_HI, L_GI, L_XI, L_HID, L_ST = 106880, 0, 28672, 106880, 149888
L_STA, L_STB, L_FAST, L_JUNK, L_ST3 = L_ST, L_ST + 768, L_ST + 1152, L_ST + 1280, L_ST + 1536
L_CNT = L_FAST + 16
LDS_BYTES = 153600
LOG2E, INV2PI, EPS, INVD = 0x3fb8aa3b, 0x3e22f983, 0x3727c5ac, 0x3b124925
C1 = -2.0 * 0.7978845608028654 * 1.4426950408889634
def fh(x): return '0x%08x' % struct.unpack('<I', struct.pack('<f', x))[0]
SPIN = 1 << 18
sX, sLA, sAI, sCR, sCI, sDT, sDS = 4, 6, 8, 10, 12, 14, 16
sW1, sW2, sW3, sW4, sOUT, sWS = 20, 22, 24, 26, 28, 30
rWS, rX, rD, rW, rG = 32, 36, 40, 44, 48
sW, sXCD, sI, sP, sTAG, sTB, sQ, sCL, sM, sFAST = range(52, 62)
sPD0, sPD1, sUO, sSM, sFO, sPACT = range(62, 68)
sUS, sKG, sHD, sUM = 74, 75, 76, 77
sLDT, sD0, sD1 = 40, 41, 42
sM0, sM1, sCT, sTX = 78, 80, 82, 83
sA1, sA2, sA3, sA4 = 84, 85, 86, 87
def sr(n, k=4): return f's[{n}:{n+k-1}]'
def vr(n, k=4): return f'v[{n}:{n+k-1}]'
vL16, vL = 1, 2
vW1, vW2, vW3, vW4A, vW4B = 144, 200, 52, 200, 52
vCS3, vAC3, vST3, vRES = 164, 180, 196, 36

class Cfg:
    f_kt = 3
    fa_at, dma_at, poll_at, chk_at, pst_at, fa_sleep = 0, 1, 3, 5, 3, 2
    f_conv = 20
    f_hst = 20
    f_hld = 23
    f_hok = 27
    f_g1 = 36
    f_gfl = 34
    f_b3a = 40
    f_g2 = 47
    f_xfl = 45
    f_b4a = 51
    two = 0
    tab = 0
    xbar = 0
    fb_at = 0
    x_nof = 99
    prio = 0
    bar_a, cs_a, cs_b, x_at = 1, 8, 12, 8
    ggrp, burst, pd, sd = 4, 1, 3, 2
    q = (29, 44, 59, 74, 89)
    st0, st1, lastpk = (79, 81, 87, 90, 94, 102), (86, 88, 93, 96, 100, 108), 1
    w4a, w4b = (8, 36), (37, 60)
    nc_depth, hint_at = 8, 8
    depth = 4
    touch_at = 1
    warm = 1
    sb_at, clr_at = 1, 0
    cil, chead, cpace, clead, cy0, cyp = 0, 9, 1.0, 5, 42, 4
    rts = 0
    refresh = 1
    tdepth = 1
    cpf = 1
    x_late = 0

def zipl(*streams):
    out = []; n = max(len(x) for x in streams)
    for i in range(n):
        for x in streams:
            if i < len(x): out.append(x[i])
    return out

class K(Asm):
    def __init__(s, stamps, cfg):
        super().__init__(); s.stamps = stamps; s.cfg = cfg; s.ool = []; s.nlab = 0; s.wn = 0
    def lab(s, p): s.nlab += 1; return f'L{p}{s.nlab}'
    def srd(s, r, ptr, size):
        s(f's_mov_b32 s{r}, s{ptr}\ns_mov_b32 s{r+1}, s{ptr+1}\ns_mov_b32 s{r+2}, {size}\ns_mov_b32 s{r+3}, 0x20000')
    def stamp(s, idx, real=False):
        if not s.stamps or (s.stamps is not True and idx not in (31, 61) and (s.stamps == 'span' or idx not in s.stamps)): return
        s(f's_mem{"real" if real else ""}time s[98:99]'); s.wait_lg(0)
        s(f'v_writelane_b32 v3, s98, {idx}')
        rt = {3: 50, 10: 51, 11: 52, 15: 53, 22: 54, 25: 55, 28: 56}
        if s.cfg.rts and idx in rt:
            s('s_memrealtime s[98:99]'); s.wait_lg(0); s(f'v_writelane_b32 v3, s98, {rt[idx]}')
    def dump_stamps(s):
        if not s.stamps: return
        s.stamp(61, True)
        s(f's_lshl_b32 s98, s2, 3\ns_add_u32 s98, s98, s{sW}\ns_lshl_b32 s98, s98, 8\ns_add_u32 s98, s98, {TS}')
        s(f'v_lshlrev_b32 v4, 2, v{vL}\nbuffer_store_dword v3, v4, {sr(rWS)}, s98 offen')
    def cond(s, cmp_skip, body, drain=True, flush=True):
        l = s.lab('c')
        s(cmp_skip)
        if flush: s.flush_hazards()
        s(f's_cbranch_scc1 {l}')
        vm, lg, hist = list(s.vm), list(s.lg), list(s.hist)
        body()
        if drain: s._wait(lg=0)
        if flush: s.flush_hazards()
        else: s.hist = hist
        s.label(l)
        s.vm, s.lg = vm, lg
    def xstore(s, lines):
        slow, back = s.lab('xs'), s.lab('xb')
        s(f's_cmp_eq_u32 s{sFAST}, 0')
        for l in lines:
            ins = Ins(l); t = ins.rd | ins.wr
            hs = [x[0] for x in s.vm if x[1] & t] + [x[0] for x in s.lg if x[1] & t]
            if hs: s.wait(*hs)
        s(f's_cbranch_scc1 {slow}')
        for l in lines: s(l)
        s.label(back)
        s.ool.append(f'{slow}:\n    s_nop 7\n    s_nop 3\n' + ''.join(f'    {l} sc1\n' for l in lines) + f'    s_branch {back}\n')
    def feed1(s):
        n = s.wn; s.wn += 1
        if n >= s.cfg.x_nof: return
        if n < 14: reg, sb, i = vW1 + 4*n, sA1, n
        elif n < 28: reg, sb, i = vW2 + 4*(n-14), sA2, n - 14
        elif n < 56: reg, sb, i = vW3 + 4*(n-28), sA3, n - 28
        elif n < 70: reg, sb, i = vW4A + 4*(n-56), sA4, n - 56
        else: reg, sb, i = vW4B + 4*(n-70), sA4, n - 56
        if i % 4 == 0 and i: s(f's_add_u32 s{sb}, s{sb}, 4096')
        s(f'buffer_load_dwordx4 {vr(reg)}, v{vL16}, {sr(rG)}, s{sb} offen offset:{(i % 4) * 1024}')
    def feed(s, upto, depth=None):
        depth = depth or s.cfg.depth
        while s.wn < upto:
            s.wait_vm(depth - 1); s.feed1()
    def spread(s, upto, slots, first=0):
        n = max(0, upto - s.wn); out = [lambda: None] * slots
        pos = [first + (k * (slots - first)) // n for k in range(n)] if n else []
        for p in set(pos):
            out[p] = (lambda c=pos.count(p): [s.feed1() for _ in range(c)])
        return out
    def run(s, l):
        for f in l: f()
    def poll_issue(s, vdst, vaddr, soff): return s(f'buffer_load_dword v{vdst}, v{vaddr}, {sr(rWS)}, {soff} offen sc1')
    def poll_check(s, vdst, vaddr, soff, sleep=0):
        retry, back = s.lab('pr'), s.lab('pb')
        s(f'v_subrev_u32 v{vdst}, s{sTAG}, v{vdst}\nv_cmp_lt_u32 vcc, 15, v{vdst}\ns_mov_b32 s97, 0\ns_cbranch_vccnz {retry}')
        s.label(back)
        s.ool.append(f'''{retry}:
''' + (f'    s_sleep {sleep}\n' if sleep else '') + f'''    buffer_load_dword v{vdst}, v{vaddr}, {sr(rWS)}, {soff} offen sc1
    s_add_u32 s97, s97, 1
    s_cmp_gt_u32 s97, {SPIN}
    s_waitcnt vmcnt(0)
    s_cbranch_scc1 {back}
    v_subrev_u32 v{vdst}, s{sTAG}, v{vdst}
    v_cmp_lt_u32 vcc, 15, v{vdst}
    s_nop 1
    s_cbranch_vccnz {retry}
    s_branch {back}
''')
    def poll(s, vdst, vaddr, soff, lo=None, hi=None, sleep=0):
        if lo is not None: s(f's_mov_b32 exec_lo, {lo}\ns_mov_b32 exec_hi, {hi}')
        s.poll_issue(vdst, vaddr, soff); s.poll_check(vdst, vaddr, soff, sleep)
        if lo is not None: s('s_mov_b64 exec, -1')
    def flag(s, soff, vtmp=4):
        s(f'v_mov_b32 v{vtmp}, s{sTAG}')
        s.wait_vm(0, force=True)
        s('s_mov_b64 exec, 1')
        s.xstore([f'buffer_store_dword v{vtmp}, off, {sr(rWS)}, s{soff}'])
        s('s_mov_b64 exec, -1')
    def gflag(s, wave, soff, sval, vtmp, drain=False, flush=True):
        s.cond(f's_cmp_lg_u32 s{sW}, {wave}', drain=drain, flush=flush, body=lambda: s(f'v_mov_b32 v{vtmp}, s{sval}\ns_mov_b64 exec, 1\nbuffer_store_dword v{vtmp}, off, {sr(rWS)}, s{soff} sc1\ns_mov_b64 exec, -1'))
    def dma(s, a, b, ssrc, ldsbase):
        h = None
        for i in range(a, b):
            if i % 4 == 0:
                if i: s(f's_add_u32 s{ssrc}, s{ssrc}, 4096')
                s(f's_mov_b32 m0, {ldsbase + i * 1024}')
            h = s(f'buffer_load_dwordx4 v{vL16}, {sr(rWS)}, s{ssrc} offen offset:{(i % 4) * 1024} sc1 lds')
        return h
    def pos(s, d, src, t):
        s(f'''v_and_b32 v{t}, 3, v{src}
        v_lshlrev_b32 v{t}, 2, v{t}
        v_and_or_b32 v{t}, v{src}, -16, v{t}
        v_bfe_u32 v{d}, v{src}, 2, 2
        v_or_b32 v{d}, v{d}, v{t}
        v_lshlrev_b32 v{d}, 4, v{d}''')

    def W(s, dst, k, base=None, op='add_u32'):
        src = f'v{76 + k//2}'; sel = f'WORD_{k&1}'
        if base is None: s(f'v_mov_b32_sdwa v{dst}, {src} dst_sel:DWORD dst_unused:UNUSED_PAD src0_sel:{sel}')
        else: s(f'v_{op}_sdwa v{dst}, {base}, {src} dst_sel:DWORD dst_unused:UNUSED_PAD src0_sel:DWORD src1_sel:{sel}')
    def entry(s):
        s('s_cmp_ge_u32 s2, 256\ns_cbranch_scc1 Lend')
        if s.stamps: s('s_memtime s[100:101]\ns_memrealtime s[96:97]\nv_mov_b32 v3, 0'); s.wait_lg(0)
        s(f"""s_load_dwordx16 s[4:19], s[0:1], 0
        s_load_dwordx8 s[20:27], s[0:1], 64
        s_load_dwordx2 s[28:29], s[0:1], 96
        s_load_dwordx2 s[30:31], s[0:1], 112""")
        s('s_getpc_b64 s[94:95]')
        s.label('Lpc')
        s(f"""s_lshr_b32 s{sI}, s2, 3
        v_lshrrev_b32 v4, 6, v0
        v_and_b32 v{vL}, 63, v0""")
        s.cpf(0)
        s(f"""v_readfirstlane_b32 s{sW}, v4
        v_lshlrev_b32 v{vL16}, 4, v{vL}
        s_add_u32 s94, s94, @TAB_OFF@
        s_addc_u32 s95, s95, 0
        s_lshl_b32 s69, s2, 6
        s_add_u32 s69, s69, {2048 + 4224}
        v_lshl_add_u32 v5, v4, 3, s69
        global_load_dwordx2 v[84:85], v5, s[94:95]
        global_load_dwordx4 v[80:83], v{vL16}, s[94:95] offset:1024
        global_load_dwordx4 v[76:79], v{vL16}, s[94:95]
        s_lshl3_add_u32 s68, s2, s{sW}
        v_and_b32 v6, 255, v0
        v_lshlrev_b32 v18, 4, v6
        global_load_dwordx4 v[66:69], v18, s[94:95] offset:2048
        global_load_ushort v70, v18, s[94:95] offset:2064
        s_and_b32 s{sXCD}, s2, 7
        s_mul_i32 s{sP}, s{sXCD}, 28
        s_add_u32 s{sP}, s{sP}, s{sI}
        s_min_u32 s{sP}, s{sP}, 223
        s_lshl_b32 s70, s{sP}, 10
        v_lshl_add_u32 v64, v0, 1, s70
        s_mul_i32 s73, s68, 896
        s_mov_b32 s{rX+2}, 896
        s_mov_b32 s{rX+3}, 0x20000
        s_mov_b32 s{rW+3}, 0x20000
        s_mov_b32 s{rWS+2}, {WS_BYTES}
        s_mov_b32 s{rWS+3}, 0x20000
        s_lshl_b32 s93, s{sW}, 11
        s_add_u32 s93, s93, {L_PK}
        s_lshl_b32 s71, s{sP}, 2
        s_mov_b32 s72, {EP}
        s_add_u32 s{rX}, s{sX}, s73
        s_addc_u32 s{rX+1}, s{sX+1}, 0
        buffer_load_dwordx4 v[28:31], v{vL16}, {sr(rX)}, 0 offen""")
        if s.stamps: s('v_writelane_b32 v3, s100, 0\nv_writelane_b32 v3, s96, 60')
        s.stamp(1)
        s(f"""s_load_dword s{sTAG}, {sr(sWS,2)}, s72
        s_load_dword s{sLDT}, {sr(sDT,2)}, s71
        s_load_dword s{sD1}, {sr(sDS,2)}, s71
        global_load_ushort v60, v64, {sr(sLA,2)}
        global_load_ushort v61, v64, {sr(sAI,2)}
        global_load_ushort v62, v64, {sr(sCR,2)}
        global_load_ushort v63, v64, {sr(sCI,2)}
        v_readfirstlane_b32 s90, v84
        v_readfirstlane_b32 s91, v85
        s_lshr_b32 s43, s90, 24
        s_and_b32 s90, s90, 0xffffff
        s_bitcmp1_b32 s43, 0
        s_cselect_b64 s[20:21], s[22:23], s[20:21]
        s_cselect_b64 s[24:25], s[26:27], s[24:25]
        s_cmp_eq_u32 s43, 2
        s_cselect_b64 vcc, -1, 0
        s_movk_i32 s89, 896
        s_cmovk_i32 s89, 3584
        s_cmp_lt_u32 s43, 2
        s_cselect_b64 {sr(rW,2)}, s[20:21], s[24:25]
        s_cselect_b32 s{rW+2}, {448*896}, 0
        s_cselect_b64 s[72:73], -1, 0
        s_lshl4_add_u32 s89, s89, s90
        s_mov_b32 s{rWS}, s{sWS}
        s_mov_b32 s{rWS+1}, s{sWS+1}
        v_cndmask_b32_sdwa v23, v81, v82, vcc dst_sel:DWORD dst_unused:UNUSED_PAD src0_sel:WORD_1 src1_sel:WORD_0""")
        if s.cfg.dma_at >= 0: s.pack_dma()

    def cpf(s, once):
        l = s.lab('cp')
        s(f'v_lshl_add_u32 v7, v0, 8, s2' if once else f'v_lshl_add_u32 v7, v0, 5, s{sI}')
        s(f"""v_lshlrev_b32 v7, 7, v7
        v_cmp_gt_u32 vcc, @CODE_BYTES@, v7
        s_and_saveexec_b64 s[70:71], vcc
        s_cbranch_execz {l}""")
        s.raw('    global_load_dword v255, v7, s[94:95]')
        s.label(l)
        s('s_mov_b64 exec, -1')
    def clear(s):
        for i in range(4): s(f'v_mov_b32 v{72+i}, -1')
        s.hstore(72)
    def hstore(s, r): return s(f'buffer_store_dwordx4 {vr(r)}, v12, {sr(rWS)}, s{sHD} offen sc1')

    def setup(s):
        s.comment('offsets and lane addresses (in the shadow of the first loads)')
        assert L_U % 512 == 0
        s(f"""s_mov_b64 vcc, s[72:73]
        s_lshr_b32 s{sPD1}, s91, 16
        s_lshl_b32 s{sPD1}, s{sPD1}, 10
        v_cndmask_b32_sdwa v24, v81, v80, vcc dst_sel:DWORD dst_unused:UNUSED_PAD src0_sel:WORD_0 src1_sel:WORD_1
        s_and_b32 s{sPD0}, s91, 0xffff
        s_lshl_b32 s{sPD0}, s{sPD0}, 10
        v_mul_u32_u24 v71, 1171, v0
        s_lshl_b32 s70, s{sW}, 7
        v_add_u32 v24, s93, v24""")
        s.W(27, 13, 's70')
        s(f"""s_mul_i32 s70, s{sW}, {LNP}
        v_lshrrev_b32 v71, 16, v71
        v_add_u32 v26, s70, v{vL16}
        s_mul_i32 s70, s2, 896
        s_lshl_b32 s71, s{sW}, 10
        v_mul_u32_u24 v71, {229376 - 896}, v71
        s_add_u32 s70, s70, s71
        s_add_u32 s{sUO}, s70, {GX}
        v_add_u32 v71, v71, v{vL16}""")
        s.W(12, 5, 4, 'lshlrev_b32')
    def setup_b(s):
        s(f"""s_lshl_b32 s71, s{sW}, 10
        s_lshl4_add_u32 s{sFO}, s2, {FA}
        s_add_u32 s{sUM}, s71, {L_U + 1024}
        v_add_u32 v13, s71, v{vL16}
        s_lshl_b32 s70, s{sW}, 13
        v_add_u32 v14, s70, v{vL16}
        s_lshl_b32 s70, s{sW}, 9
        s_add_u32 s70, s70, {FA}
        v_and_b32 v17, 0x1f0, v{vL16}
        v_add_u32 v17, s70, v17
        s_mul_i32 s{sKG}, s{sW}, {16*KGP}
        s_add_u32 s{sKG}, s{sKG}, {L_KG}""")
        s.W(20, 8, f's{sKG}'); s.W(10, 3); s.W(11, 4); s.W(15, 6, f's{sUM}')
        s(f"""s_and_b32 s70, s{sW}, 3
        s_lshr_b32 s71, s{sW}, 2
        s_mul_i32 s73, s71, {KECH}
        s_add_u32 s73, s73, {L_KE}
        v_add_u32 v18, s73, v18
        s_lshl_b32 s72, s70, 7
        s_sub_u32 s72, s73, s72
        s_add_u32 s72, s72, {4*(1015 - 144) - 28}""")
        s.W(4, 0, 's72')
        s(f"""s_lshl_b32 s72, s70, 8
        s_sub_u32 s72, {L_U}, s72
        v_xor_b32 v16, 16, v15""")
        s.W(8, 1, 's72'); s.W(9, 2, 's72')
        s(f"""s_xor_b32 s72, s70, s71
        s_and_b32 s72, s72, 1
        s_lshl_b32 s72, s72, 4
        v_subrev_u32 v5, 1024, v4
        v_subrev_u32 v6, 2048, v4
        v_subrev_u32 v7, 3072, v4
        v_xor_b32 v8, s72, v8
        v_xor_b32 v9, s72, v9
        s_lshl_b32 s72, s70, 2
        s_mul_i32 s70, s71, {KTSZ}
        s_add_u32 s70, s70, {L_KT}
        s_mov_b32 s73, {L_KE + 4096}""")
        s.W(19, 7, 's72', 'xor_b32'); s.W(88, 14, 's73')
        s(f"""v_mov_b32 v84, 0
        v_mov_b32 v85, 0
        v_mov_b32 v86, 0
        v_mov_b32 v87, 0
        v_add_u32 v19, s70, v19
        v_add_u32 v89, {L_U}, v{vL16}
        v_mov_b32 v90, s70
        ds_write_b128 v88, v[84:87]
        ds_write_b128 v89, v[84:87]
        ds_write_b128 v90, v[84:87] offset:{768*16}""")
        for t in range(9):
            s(f'v_add_u32_sdwa v{132+t}, s70, v{66+t//2} dst_sel:DWORD dst_unused:UNUSED_PAD src0_sel:DWORD src1_sel:WORD_{t&1}')
    def scalars(s):
        return f"""s_mov_b32 s{rG}, s{sWS}
        s_mov_b32 s{rG+1}, s{sWS+1}
        s_cmp_eq_u32 s{sW}, 7
        s_cselect_b32 s{rG+2}, 0, {WS_BYTES}
        s_mov_b32 s{rG+3}, 0x20000
        s_mul_i32 s{sHD}, s{sW}, 229376
        s_lshl_b32 s68, s{sP}, 7
        s_add_u32 s{sHD}, s{sHD}, s68
        s_add_u32 s{sHD}, s{sHD}, {X1}
        s_lshr_b32 s68, s{sI}, 2
        s_lshl3_add_u32 s{sTB}, s{sXCD}, s68
        s_and_b32 s{sQ}, s{sI}, 3
        s_lshr_b32 s{sCL}, s{sTB}, 1
        s_and_b32 s{sM}, s{sI}, 7
        s_mul_i32 s{sCT}, s{sQ}, 7
        s_add_u32 s{sCT}, s{sCT}, s{sW}
        s_mul_i32 s{sA1}, s{sCT}, {14*1024}
        s_add_u32 s{sA2}, s{sA1}, {W2P}
        s_mul_i32 s{sA3}, s{sM}, 7
        s_add_u32 s{sA3}, s{sA3}, s{sW}
        s_mul_i32 s{sA4}, s{sA3}, {28*1024}
        s_add_u32 s{sA3}, s{sA4}, {W3P}
        s_add_u32 s{sA4}, s{sA4}, {W4P}
        s_lshl3_add_u32 s{sUS}, s{sXCD}, s{sW}
        s_mul_i32 s{sUS}, s{sUS}, 28672
        s_lshl_b32 s68, s{sI}, 5
        s_add_u32 s{sUS}, s{sUS}, s68
        s_add_u32 s{sUS}, s{sUS}, {GX}
        s_lshl_b32 s{sSM}, s{sW}, 11
        s_add_u32 s{sSM}, s{sSM}, {SM}
        s_mov_b32 s{sFAST}, 0
        s_and_b32 s68, s43, 6
        s_cmp_eq_u32 s68, 2
        s_cselect_b32 s{rW+2}, {448*3584}, 0
        s_cselect_b32 s{sPACT}, {WS_BYTES}, 0"""
    def h2_addr(s):
        return f"""v_min_u32 v18, 503, v0
        v_mul_u32_u24 v19, 7282, v18
        v_lshrrev_b32 v19, 16, v19
        v_mul_u32_u24 v20, 9, v19
        v_sub_u32 v20, v18, v20
        s_and_b32 s70, s{sQ}, 1
        s_lshl3_add_u32 s70, s{sTB}, s70
        s_sub_u32 s70, s70, 1
        v_mul_u32_u24 v22, 768, v19
        v_lshrrev_b32 v18, 2, v20
        v_lshl_add_u32 v22, v18, 8, v22
        v_and_b32 v18, 3, v20
        v_lshl_add_u32 v22, v18, 4, v22
        v_add_u32 v22, {L_HI}, v22
        v_add_u32 v20, s70, v20
        s_movk_i32 s70, 511
        v_med3_i32 v20, v20, 0, s70
        v_lshrrev_b32 v18, 3, v20
        v_mul_u32_u24 v21, 28672, v18
        v_lshl_add_u32 v21, v19, 9, v21
        v_and_b32 v18, 7, v20
        v_lshl_add_u32 v21, v18, 4, v21
        s_mov_b32 s88, {X1}
        s_mul_i32 s70, s{sW}, {64*7282}
        s_lshr_b32 s70, s70, 16
        s_lshl_b32 s70, s70, 6
        s_add_u32 s70, s70, {FB}
        v_add_u32 v26, s70, v{vL16}
        v_add_u32 v18, {FB + 192*16}, v{vL16}
        v_cmp_gt_u32 vcc, 32, v{vL}
        v_cndmask_b32 v26, v18, v26, vcc"""

    def pack_early(s):
        s.wait(s.h_pack)
        s(f"""ds_read_b64_tr_b16 v[52:53], v24
        ds_read_b64_tr_b16 v[54:55], v24 offset:256
        ds_read_b64_tr_b16 v[56:57], v24 offset:32
        ds_read_b64_tr_b16 v[58:59], v24 offset:288
        buffer_store_dwordx4 v[52:55], v{vL16}, {sr(rWS)}, s{sPD0} offen sc1
        buffer_store_dwordx4 v[56:59], v{vL16}, {sr(rWS)}, s{sPD1} offen sc1""")

    def ln(s):
        s.comment('layernorm of one token per wave')
        s('v_mov_b32 v51, 0x3f803f80\nv_dot2_f32_bf16 v48, v28, v51, 0')
        s.stamp(2)
        s('v_dot2_f32_bf16 v49, v28, v28, 0')
        for i in (29, 30, 31): s(f'v_dot2_f32_bf16 v48, v{i}, v51, v48\nv_dot2_f32_bf16 v49, v{i}, v{i}, v49')
        un = []
        for i in range(4): un += [f'v_lshlrev_b32 v{32+2*i}, 16, v{28+i}', f'v_and_b32 v{33+2*i}, 0xffff0000, v{28+i}']
        s(un.pop()); s(un.pop()); s(f'v_mov_b32 v50, {INVD}')
        for m in ('row_shr:1', 'row_shr:2', 'row_shr:4', 'row_shr:8', 'row_bcast:15 row_mask:0xa', 'row_bcast:31 row_mask:0xc'):
            s(f'v_add_f32_dpp v48, v48, v48 {m}\nv_add_f32_dpp v49, v49, v49 {m}')
            s(un.pop())
        s(f"""v_readlane_b32 s70, v48, 63
        v_readlane_b32 s71, v49, 63
        s_lshl_b32 s72, s{sW}, 3
        v_mov_b32 v65, s72
        v_mul_f32 v49, s70, v50
        v_mul_f32 v48, s71, v50
        v_fma_f32 v48, -v49, v49, v48
        v_max_f32 v48, 0, v48
        v_add_f32 v48, {EPS}, v48
        v_rsq_f32 v50, v48
        s_mov_b32 exec_hi, 0x00ffffff
        v_mul_f32 v51, -v49, v50""")
        for i in range(4): s(f'v_pk_fma_f32 {vr(40+2*i,2)}, {vr(32+2*i,2)}, v[50:51], v[50:51] op_sel:[0,0,1] op_sel_hi:[1,0,1]')
        for i in range(4): s(f'v_cvt_pk_bf16_f32 v{28+i}, v{40+2*i}, v{41+2*i}')
        s(f"""ds_write_b128 v26, v[28:31] offset:{L_LN}
        v_mul_f32 v48, v48, v50
        ds_write_b64 v65, v[48:49] offset:{L_SM}
        s_mov_b32 exec_hi, -1
        s_lshr_b32 s{sTAG}, s{sTAG}, 4
        s_mul_i32 s{sTAG}, s{sTAG}, 1664525
        s_add_u32 s{sTAG}, s{sTAG}, 1013904223
        s_lshl_b32 s{sTAG}, s{sTAG}, 4
        s_getreg_b32 s70, hwreg(HW_REG_XCC_ID, 0, 4)
        s_add_u32 s{sTX}, s70, s{sTAG}""")
        s.barrier()
        s(f'ds_read_b64_tr_b16 v[48:49], v27 offset:{L_LN}\nds_read_b64_tr_b16 v[50:51], v27 offset:{L_LN + 4*LNP}')
        s.cond(f's_cmp_lg_u32 s{sW}, 7', lambda: s(f's_mov_b64 exec, 15\nds_read_b128 v[48:51], v{vL16} offset:{L_SM}\nv_mov_b32 v71, v{vL16}\ns_lshl_b32 s{sUO}, s2, 6\ns_add_u32 s{sUO}, s{sUO}, {SM}'))
        s(f'buffer_store_dwordx4 v[48:51], v71, {sr(rWS)}, s{sUO} offen sc1\ns_mov_b64 exec, -1')
        s.stamp(3)
        s.wait(*[h for h, r in s.vm if r])
        s.stamp(40)
        s.cond(f's_cmp_ge_u32 s43, 2', s.pack_early)

    def pack_dma(s):
        s(f's_mov_b32 m0, s93\nbuffer_load_dwordx4 v23, {sr(rW)}, s90 offen lds\ns_add_u32 m0, s93, 1024')
        s.h_pack = s(f'buffer_load_dwordx4 v23, {sr(rW)}, s89 offen lds')
    def publish_a(s, conv=True):
        s.wait_vm((2 if s.cfg.dma_at == 0 else 0) + (1 if conv and s.cfg.clr_at == 0 else 0), force=True)
        s('s_barrier')
        s.stamp(5)
        s.gflag(0, sFO, sTX, 118)
        if conv: s(f's_lshl_b32 s{sFO}, s{sP}, 4\ns_add_u32 s{sFO}, s{sFO}, {FB}')
        else: s(f's_lshl2_add_u32 s{sFO}, s{sXCD}, s{sQ}\ns_lshl_b32 s{sFO}, s{sFO}, 4\ns_add_u32 s{sFO}, s{sFO}, {FB + 224*16}')
        if conv and s.cfg.clr_at == 1: s.clear()
        if s.cfg.dma_at == 1: s.pack_dma(); s(f's_mov_b32 m0, s{sKG}')
    def pack_late_store(s):
        P = 76 if s.cfg.pst_at >= 6 else 28
        s.wait(s.h_pack)
        for e in range(4): s(f'ds_read_b64_tr_b16 {vr(P+2*e,2)}, v24 offset:{1024*(e>>1) + 256*(e&1)}')
        s(f"""s_mov_b32 s{rW}, s{sWS}
        s_mov_b32 s{rW+1}, s{sWS+1}
        s_mov_b32 s{rW+2}, s{sPACT}
        buffer_store_dwordx4 {vr(P)}, v{vL16}, {sr(rW)}, s{sPD0} offen sc1""")
        s.h_pst = s(f'buffer_store_dwordx4 {vr(P+4)}, v{vL16}, {sr(rW)}, s{sPD1} offen sc1')

    def cm(s, d, a, b, t):
        return [f'v_pk_mul_f32 {vr(t,2)}, {vr(a,2)}, {vr(b,2)} op_sel_hi:[1,0]',
                f'v_pk_fma_f32 {vr(d,2)}, {vr(a,2)}, {vr(b,2)}, {vr(t,2)} op_sel:[1,1,0] op_sel_hi:[0,1,1] neg_lo:[1,0,0]']
    def kgen(s):
        c = s.cfg
        assert c.fa_at <= c.poll_at <= c.chk_at
        Z = lambda k: 74 + 2 * k
        Z128, ZD, R0, R1, TT = 92, 94, 112, 114, 116
        CH = [(96, 98, 100, 102), (104, 106, 108, 110)]
        BF, AF, ACC = 156, (172, 188, 204), 220
        s(f"""s_lshl_b32 s70, s{sLDT}, 16
        s_and_b32 s71, s{sLDT}, 0xffff0000
        s_cmp_lt_u32 s{sW}, 4
        s_cselect_b32 s72, s70, s71
        s_mov_b32 s70, {LOG2E}
        s_mov_b32 s71, {INV2PI}
        v_mov_b32 v64, s72
        v_lshlrev_b32 v60, 16, v60
        v_mul_f32 v64, s70, v64
        v_mul_f32 v60, s70, v60
        v_exp_f32 v64, v64
        v_exp_f32 v60, v60
        v_lshlrev_b32 v61, 16, v61
        v_lshlrev_b32 v62, 16, v62
        v_lshlrev_b32 v63, 16, v63
        v_cvt_pk_bf16_f32 v64, v64, v60
        v_and_b32 v60, 0xffff0000, v64
        v_lshlrev_b32 v64, 16, v64
        v_pk_mul_f32 v[60:61], v[60:61], v[64:65] op_sel_hi:[1,0]
        v_add_f32 v64, v64, v64
        v_pk_mul_f32 v[60:61], v[60:61], s[70:71]
        v_pk_mul_f32 {vr(R0,2)}, v[62:63], v[64:65] op_sel_hi:[1,0]
        s_mov_b32 m0, s{sKG}
        s_mov_b32 s70, 0x41000000
        s_mov_b32 s71, 0x43000000
        v_pk_mul_f32 v[62:63], v[60:61], s[70:71] op_sel_hi:[1,0]
        v_pk_mul_f32 v[64:65], v[60:61], s[70:71] op_sel:[0,1]
        s_lshl_b32 s{sD0}, s{sD1}, 16
        s_and_b32 s{sD1}, s{sD1}, 0xffff0000""")
        for r in (62, 64, 60): s(f'v_exp_f32 v{r}, -v{r}\nv_fract_f32 v{r+1}, v{r+1}')
        for r, d in ((62, Z(8)), (64, Z128), (60, Z(1))): s(f'v_cos_f32 v{d}, v{r+1}\nv_sin_f32 v{d+1}, v{r+1}')
        for r, d in ((62, Z(8)), (64, Z128), (60, Z(1))): s(f'v_pk_mul_f32 {vr(d,2)}, {vr(d,2)}, {vr(r,2)} op_sel_hi:[1,0]')
        s.stamp(4)
        def chain(st, rows, start, mul, neg=False):
            a, b, t, pk = CH[st]; out = []; cur, nxt = start, a
            for i, row in enumerate(rows):
                cc = s.cm(nxt, cur, mul, t) if i < len(rows) - 1 else []
                out += cc[:1] + [f'v_cvt_pk_bf16_f32 v{pk + (i&1)}, v{cur}, {"-" if neg else ""}v{cur+1}'] + cc[1:] + [f'ds_write_addtid_b32 v{pk + (i&1)} offset:{row*KGP}']
                cur, nxt = nxt, (b if nxt == a else a)
            return out
        def rd(dst):
            for ks in range(4): s(f'ds_read_b128 {vr(dst+4*ks)}, v20 offset:{64*ks}')
        E = lambda l: [s(x) for x in l]
        zz = zipl if c.two else (lambda *a: sum(a, []))
        def hook(k):
            if c.fa_at == k: s.publish_a()
            if c.pst_at == k and k < c.poll_at: s.pack_late_store()
            if c.poll_at == k: s.poll_issue(118, 17, 0)
            if c.chk_at == k:
                s.poll_check(118, 17, 0, c.fa_sleep)
                if s.stamps: s('v_writelane_b32 v3, s97, 58')
                s(f's_mov_b32 m0, s{sUM}')
                s.h_u = s(f'buffer_load_dwordx4 v10, {sr(rWS)}, s{sUS} offen sc1 lds')
                if k < 4: s(f's_mov_b32 m0, s{sKG}')
                s.stamp(8)
            if c.pst_at == k and k >= c.poll_at: s.pack_late_store()
        hook(0)
        if c.two:
            E(zipl(s.cm(ZD, Z(8), Z(8), 100), s.cm(R1, R0, Z(8), 108), s.cm(Z(2), Z(1), Z(1), TT)))
            E(zipl(chain(0, range(0, 16, 2), R0, ZD, True), chain(1, range(1, 16, 2), R1, ZD, True)))
            rd(BF)
            E(zipl(s.cm(ZD, Z128, Z128, 100), s.cm(R1, Z(8), Z128, 108), s.cm(Z(4), Z(2), Z(2), TT)))
            hook(1); s.stamp(35)
            E(zipl(chain(0, range(0, 16, 2), Z(8), ZD), chain(1, range(1, 16, 2), R1, ZD)))
        else:
            E(chain(0, range(16), R0, Z(8), True))
            rd(BF)
            E(s.cm(Z(2), Z(1), Z(1), TT) + s.cm(Z(4), Z(2), Z(2), TT))
            hook(1); s.stamp(35)
            E(chain(0, range(16), Z(8), Z128))
        rd(AF[0])
        E(zipl(s.cm(Z(6), Z(4), Z(2), 100), s.cm(Z(3), Z(2), Z(1), 108), s.cm(Z(5), Z(4), Z(1), TT)))
        hook(2); s.stamp(36)
        E(zz(chain(0, range(0, 8), Z(4), Z128), chain(1, range(8, 12), Z(2), Z128) + chain(1, range(12, 16), Z(6), Z128), s.cm(Z(7), Z(6), Z(1), TT)))
        rd(AF[1])
        hook(3); s.stamp(37)
        E(zz(chain(0, (0, 1), Z(1), Z128) + chain(0, (4, 5), Z(5), Z128), chain(1, (2, 3), Z(3), Z128) + chain(1, (6, 7), Z(7), Z128)))
        s(f'v_mov_b32 v{TT}, 0x3f80\nds_write_addtid_b32 v{TT} offset:{8*KGP}')
        rd(AF[2])
        s.stamp(6); hook(4)
        for ks in range(4):
            for t in range(2): s(f'v_mfma_f32_16x16x32_bf16 {vr(ACC+4*t)}, {vr(AF[t]+4*ks)}, {vr(BF+4*ks)}, {vr(ACC+4*t) if ks else 0}')
        for ks in range(4): s(f'v_mfma_f32_16x16x32_bf16 {vr(ACC+8)}, {vr(AF[2]+4*ks)}, {vr(BF+4*ks)}, {vr(ACC+8) if ks else 0}')
        for t in range(3):
            for r in range(4): s(f'ds_write_b32 v19, v{ACC+4*t+r} offset:{(16*t+r)*256}')
        hook(5)
        s.barrier()
        s.stamp(7)
        for t in range(9): s(f'ds_read_b128 {vr(28+4*t)}, v{132+t}')
        hook(6)
        if c.chk_at <= 5: s.feed(c.f_kt, 63)
        for t in range(9):
            s(f'v_pk_add_f32 {vr(28+4*t,2)}, {vr(28+4*t,2)}, {vr(30+4*t,2)}')
            if t: s(f'v_add_f32 v{24+4*t}, v{24+4*t}, v{25+4*t}')
        s('v_add_f32 v60, v60, v61')
        for i in range(4): s(f'v_cvt_pk_bf16_f32 v{64+i}, v{28+8*i}, v{32+8*i}')
        s('ds_write_b128 v18, v[64:67]')
        for i in range(4): s(f'v_cvt_pk_bf16_f32 v{68+i}, v{32+8*i}, v{36+8*i}')
        s(f'ds_write_b128 v18, v[68:71] offset:{KEO}')
        s.stamp(9); hook(7)

    def conv(s):
        c = s.cfg
        A, B, ACC = 28, 60, 92
        def rd(kind, slot, e, j):
            if kind == 'B': return [f'ds_read_b128 {vr(B+4*slot)}, v{8+e} offset:{1024*j}']
            off = 16 * (1 - e) + 128 * (1 - (j & 1))
            return [f'ds_read2_b32 {vr(A+4*slot+2*h,2)}, v{4+(j>>1)} offset0:{off+2*h} offset1:{off+2*h+1}' for h in range(2)]
        M = []
        for k in range(8):
            p1 = [(k, j) for j in range(k + 1) if k + j <= 7]; p2 = [(j, k) for j in range(k) if k + j <= 7]
            M += [(0, a, b) for a, b in p1 + p2]
        if c.cil:
            for nu in range(0, 8, 2): M += [(1, a, b) for a, b in zipl([(a, nu + 1 - a) for a in list(range(1, nu + 1)) + [0, nu + 1]], [(a, nu - a) for a in range(nu + 1)])]
        else:
            for nu in range(8): M += [(1, a, nu - a) for a in range(nu + 1)]
        slot = {(0, j): j for j in range(8)}
        for k in range(4, 8): slot[1, 2*(k-4)] = k; slot[1, 2*(k-4) + 1] = 7 - k
        ops = []
        for e in range(2):
            for j in range(8):
                for kind, ix in (('A', 1), ('B', 2)):
                    need = min(n for n, m in enumerate(M) if m[0] == e and m[ix] == j)
                    early = -1 if e == 0 else max(n for n, m in enumerate(M) if m[0] == 0 and m[ix] == slot[1, j])
                    ops += [(need, early, t) for t in rd(kind, slot[e, j], e, j)]
        ops.sort(key=lambda o: o[0])
        D = {n: [] for n in range(-1, 73)}
        pos = -1.0
        for i, (need, early, t) in enumerate(ops):
            if i < c.chead: D[-1].append(t); continue
            pos = max(pos + c.cpace, early)
            pos = max(min(pos, need - c.clead), early)
            D[int(pos)].append(t)
        done = {nu: max(n for n, m in enumerate(M) if m[1] + m[2] == nu) for nu in range(8)}
        at = c.cy0
        for nu in range(8):
            at = max(at, done[nu] + 3)
            D[min(int(at), 72)].append(f'ds_write_b128 v13, {vr(ACC+4*nu)} offset:{L_Y + 8192*nu}')
            at += c.cyp
        s.wait(s.h_u); s.barrier(); s.stamp(10)
        for t in D[-1]: s(t)
        ex = s.spread(c.f_conv, 66, 4)
        bs = ['ds_read_b64 v[140:141], v15', 'ds_read_b64 v[142:143], v16', '', '', '', '']
        for i in range(4): bs += [f'v_lshlrev_b32 v{132+2*i}, 16, v{140+i}', f'v_and_b32 v{133+2*i}, 0xffff0000, v{140+i}']
        for ch in range(2):
            bs += [f'v_add_f32 v{140+r}, s{sD0+ch}, v{124+2*r}' for r in range(4)]
            bs += [f'v_fma_f32 v{132+4*ch+r}, v{132+4*ch+r}, v{140+r}, v{125+2*r}' for r in range(4)]
        ha = s.h2_addr().split('\n')
        seen = set()
        assert c.pst_at < c.chk_at
        for n, (e, a, b) in enumerate(M):
            nu = a + b
            s(f'v_mfma_f32_16x16x32_bf16 {vr(ACC+4*nu)}, {vr(A+4*slot[e, a])}, {vr(B+4*slot[e, b])}, {vr(ACC+4*nu) if nu in seen else 0}')
            seen.add(nu)
            for t in D[n]: s(t)
            if n == 0: s.gflag(7, sFO, sTAG, 17, False, False)
            if n == 1: s(f'buffer_load_dwordx4 v[124:127], v11, {sr(rWS)}, s{sSM} offen sc1')
            if n == 2: s(f'buffer_load_dwordx4 v[128:131], v11, {sr(rWS)}, s{sSM} offen offset:16 sc1\ns_lshl_b32 s68, s2, 6\ns_add_u32 s68, s68, {FH}')
            if ex: ex.pop(0)()
            if n >= 4 and ha: s(ha.pop(0))
            if n >= 40 and bs: s(bs.pop(0))
        for t in D[72]: s(t)
        assert not bs and not ha
        s.stamp(38)
        s.barrier(); s.stamp(11)
        for i in (0, 4, 1, 5, 2, 6, 3, 7): s(f'ds_read_b128 {vr(A+4*i)}, v14 offset:{L_Y + 1024*i}')
        s.poll_issue(25, 26, 0)
        if c.hint_at == 8: s.gflag(7, 68, sTAG, 17, False)
        for i in (0, 4, 1, 5, 2, 6, 3, 7):
            ch = i >> 2
            for h in range(2): s(f'v_pk_add_f32 {vr(132+4*ch+2*h,2)}, {vr(132+4*ch+2*h,2)}, {vr(A+4*i+2*h,2)}')
        for r in range(4): s(f'v_cvt_pk_bf16_f32 v{140+r}, v{132+r}, v{136+r}')
        h = s.hstore(140)
        s.stamp(12)
        s.feed(c.f_hst, 63)
        return h

    def nonconv(s):
        c = s.cfg
        s(f'v_lshlrev_b32 v15, 7, v{vL}')
        if c.sb_at == 1: s.setup_b()
        s(f'v_lshlrev_b32 v15, 7, v{vL}')
        s(s.h2_addr())
        if c.dma_at == 0: s.pack_dma()
        s.publish_a(False)
        s.pack_late_store()
        s.poll(18, 17, 0, sleep=8)
        s.barrier(); s.stamp(8)
        s.gflag(1, sFO, sTAG, 118)
        s(f's_add_u32 s70, s{sA2}, {14*1024 - 8192}')
        s.feed(c.f_hst, c.nc_depth)
        if c.warm: s(f'buffer_load_dword v119, v15, {sr(rG)}, s70 offen')
        s.wait_vm(0); s.stamp(10)
        s.poll_issue(25, 26, 0)
        s.wait_vm(0); s.stamp(12)
    def hint_wait(s):
        def body():
            s(f's_lshl_b32 s68, s2, 6\ns_add_u32 s68, s68, {FH - 32*64}\nv_mov_b32 v9, 0')
            s.poll(8, 9, 's68', 1, 0, sleep=4)
        s.cond(f's_cmp_lt_u32 s{sI}, 28', body)

    def h2(s, behind, mid=lambda: None):
        ld = [f'buffer_load_dwordx4 {vr(8+4*j)}, v4, {sr(rWS)}, s88 offen offset:{128*j} sc1' for j in range(4)]
        chk = [f'v_max3_u32 v24, v{8+2*i}, v{9+2*i}, {"v24" if i else "v8"}' for i in range(8)] + ['v_cmp_eq_u32 vcc, -1, v24']
        s.poll_check(25, 26, 0, 2)
        if s.stamps: s('v_writelane_b32 v3, s97, 57')
        for l in ld: s(l)
        mid()
        for l in chk: s(l)
        retry, back = s.lab('hr'), s.lab('hb')
        s(f's_mov_b32 s97, 0\ns_cbranch_vccnz {retry}')
        s.label(back)
        s.ool.append(f'{retry}:\n' + ''.join(f'    {l}\n' for l in ld) + f'    s_add_u32 s97, s97, 1\n    s_cmp_gt_u32 s97, {SPIN}\n    s_waitcnt vmcnt(0)\n    s_cbranch_scc1 {back}\n'
                     + ''.join(f'    {l}\n' for l in chk) + f'    s_nop 1\n    s_cbranch_vccnz {retry}\n    s_branch {back}\n')
        if s.stamps: s('v_writelane_b32 v3, s97, 59')
        s.stamp(14)
        behind()
        for j in range(4):
            for i in range(j): s(f'v_swap_b32 v{8+4*j+i}, v{8+4*i+j}')
        for i in range(4): s(f'ds_write_b128 v5, {vr(8+4*i)} offset:{64*i}')

    def stats_tail(s, a, extra, vadr, tab):
        s('s_mov_b64 exec, -1')
        for t in range(3): s(f'v_cndmask_b32 v{a+4*t}, v{a+4*t}, v{a+4*t+1}, s[92:93]')
        for t in range(3): s(f'v_cndmask_b32 v{a+4*t}, v{a+4*t}, v{a+4*t+2}, s[94:95]')
        for t in (1, 2):
            s(f'v_mov_b32_dpp v{a+4*t+1}, v{a+4*t+3} row_ror:{4*t}\nv_mov_b32_dpp v{a+4*t+2}, v{a+4*t} row_ror:{4*t}')
        for t in (1, 2):
            s(f'v_cndmask_b32 v{a+3}, v{a+3}, v{a+4*t+1}, {sr(76+2*t,2)}\nv_cndmask_b32 v{a}, v{a}, v{a+4*t+2}, {sr(76+2*t,2)}')
        s(f'''s_mov_b32 exec_lo, 0x77700777
        s_mov_b32 exec_hi, 0x70777707
        v_mul_f32 v{a+3}, s96, v{a+3}
        v_mul_f32 v{a}, s96, v{a}
        v_fma_f32 v{a}, -v{a+3}, v{a+3}, v{a}
        v_max_f32 v{a}, 0, v{a}
        v_add_f32 v{a+1}, {EPS}, v{a}
        v_rsq_f32 v{a+1}, v{a+1}''')
        if extra:
            s(f'''v_mul_f32 v{a}, v{a}, v{a+1}
            v_mov_b32 v50, v{a+1}
            v_mul_f32 v51, -v{a+3}, v{a+1}
            v_fmaak_f32 v{a}, v{a}, v{a+1}, {EPS}
            v_rsq_f32 v{a}, v{a}
            ds_write_b64 v{extra}, v[50:51] offset:{tab // 2}
            v_mul_f32 v{a+1}, v{a+1}, v{a}''')
        if not extra:
            s(f'''v_cvt_pk_bf16_f32 v{a}, -v{a+3}, -v{a+3}
            v_mul_f32 v{a+2}, {fh(C1)}, v{a+1}
            v_and_b32 v51, 0xffff0000, v{a}
            v_add_f32 v51, v51, v{a+3}
            v_rcp_f32 v{a+3}, v{a+1}
            v_mul_f32 v{a+1}, v{a+1}, v{a+1}
            v_mul_f32 v{a+1}, v{a+1}, v{a+2}
            v_and_b32 v{a+3}, 0xffffff7f, v{a+3}
            v_mul_f32 v{a+1}, {fh(0.044715)}, v{a+1}
            v_and_b32 v{a+2}, 0xffffff7f, v{a+2}
            v_and_b32 v{a+1}, 0xffffff7f, v{a+1}
            ds_write_b128 v{vadr}, {vr(a)} offset:{tab}
            v_cvt_pk_bf16_f32 v{a}, -v51, -v51
            ds_write_b128 v{vadr}, {vr(a)} offset:{tab + 512}''')
            return
        s(f'''v_rcp_f32 v{a+2}, v{a+1}
        v_mul_f32 v{a}, {fh(C1)}, v{a+1}
        v_mul_f32 v{a+1}, v{a+1}, v{a+1}
        v_mul_f32 v{a+1}, v{a+1}, v{a}
        v_mul_f32 v{a+1}, {fh(0.044715)}, v{a+1}
        ds_write_b128 v{vadr}, {vr(a)} offset:{tab}''')
    def gelu_pk(s, acc, cs, st, n, t, out):
        P = range(0, n, 2); o = []
        o += [f'v_pk_fma_f32 {vr(acc+i,2)}, {vr(cs+i,2)}, {vr(st+2,2)}, {vr(acc+i,2)} op_sel:[0,1,0] op_sel_hi:[1,1,1] neg_lo:[0,1,0] neg_hi:[0,1,0]' for i in P]
        o += [f'v_pk_mul_f32 {vr(t+i,2)}, {vr(acc+i,2)}, {vr(acc+i,2)}' for i in P]
        o += [f'v_pk_fma_f32 {vr(t+i,2)}, {vr(t+i,2)}, {vr(st,2)}, {vr(st,2)} op_sel:[0,1,0] op_sel_hi:[1,1,0]' for i in P]
        o += [f'v_pk_mul_f32 {vr(t+i,2)}, {vr(t+i,2)}, {vr(acc+i,2)}' for i in P]
        o += [f'v_exp_f32 v{t+i}, v{t+i}' for i in range(n)]
        o += [f'v_pk_fma_f32 {vr(t+i,2)}, {vr(t+i,2)}, {vr(st+2,2)}, {vr(st+2,2)} op_sel_hi:[1,0,0]' for i in P]
        o += [f'v_rcp_f32 v{t+i}, v{t+i}' for i in range(n)]
        o += [f'v_pk_mul_f32 {vr(t+i,2)}, {vr(t+i,2)}, {vr(acc+i,2)}' for i in P]
        o += [f'v_cvt_pk_bf16_f32 v{out+i//2}, v{t+i}, v{t+i+1}' for i in P]
        return o
    def gelu_sc(s, acc, cs, st, n, t, out, ex):
        steps = [lambda i: f'v_fma_f32 v{acc+i}, -v{cs+i}, v{st+3}, v{acc+i}', lambda i: f'v_mul_f32 v{t+i}, v{acc+i}, v{acc+i}',
                 lambda i: f'v_fma_f32 v{t+i}, v{t+i}, v{st+1}, v{st}', lambda i: f'v_mul_f32 v{t+i}, v{t+i}, v{acc+i}',
                 lambda i: f'v_exp_f32 v{t+i}, v{t+i}', lambda i: f'v_fma_f32 v{t+i}, v{t+i}, v{st+2}, v{st+2}',
                 lambda i: f'v_rcp_f32 v{t+i}, v{t+i}', lambda i: f'v_mul_f32 v{t+i}, v{t+i}, v{acc+i}',
                 lambda i: f'v_cvt_pk_bf16_f32 v{out+i//2}, v{t+i}, v{t+i+1}' if i % 2 == 0 else '']
        for f in steps:
            ex.pop(0)()
            for i in range(n): s(f(i))
    def gemm16(s, W, acc, vaddr, kstride, first_zero, ex):
        seq = [(ks, t) for ks in range(14) for t in range(2)]
        def rd(i): ks, t = seq[i]; s(f'ds_read_b128 {vr(8+4*(i%4))}, v{vaddr} offset:{ks*kstride + 256*t}')
        for i in range(3): rd(i)
        for i, (ks, t) in enumerate(seq):
            if i + 3 < 28: rd(i + 3)
            c = 0 if (first_zero and ks == 0) else vr(acc + 4*t)
            s(f'v_mfma_f32_16x16x32_bf16 {vr(acc+4*t)}, {vr(W+4*ks)}, {vr(8+4*(i%4))}, {c}')
            if ex: ex.pop(0)()
    def gemm32(s, jobs, vaddr, extra=None, nb=4, buf=8):
        seq = [(j, i) for j, job in enumerate(jobs) for i in range(job[1])]
        ex = list(extra or [])
        def rd(n): j, i = seq[n]; s(f'ds_read_b128 {vr(buf+4*(n%nb))}, v{vaddr} offset:{jobs[j][3] + 1024*i}')
        if s.cfg.prio: s('s_setprio 1')
        for n in range(nb - 1): rd(n)
        for n, (j, i) in enumerate(seq):
            W, nk, acc, _, after = jobs[j]
            if n + nb - 1 < len(seq): rd(n + nb - 1)
            s(f'v_mfma_f32_32x32x16_bf16 {vr(acc,16)}, {vr(W+4*i)}, {vr(buf+4*(n%nb))}, {vr(acc,16) if i else 0}')
            if ex: ex.pop(0)()
            if i == nk - 1 and after: ex += [lambda: None] * 3 + after
        s('s_setprio 0')
        s.run(ex)
    def cs3(s, a, b):
        for ks in range(a, b): s(f'v_mfma_f32_16x16x32_bf16 v[168:171], v[164:167], {vr(vW3+4*ks)}, {"v[168:171]" if ks else 0}')

    def g_pre(s):
        s.comment('G wave addresses (v6 GEMM1 B, v7 residual h, v50/v51 stats, masks)')
        s(f'''s_lshl_b32 s70, s{sQ}, 2
        s_lshr_b32 s71, 0x2213, s70
        s_and_b32 s71, s71, 15
        s_lshr_b32 s72, 0x0404, s70
        s_and_b32 s72, s72, 15
        v_and_b32 v44, 15, v{vL}
        v_lshrrev_b32 v45, 4, v{vL}
        v_add_u32 v46, s71, v44
        v_add_u32 v47, s72, v44''')
        s.pos(6, 46, 48)
        s(f'v_mul_u32_u24 v48, 768, v45\nv_add_u32 v6, v6, v48\nv_add_u32 v6, {L_HI}, v6')
        s.pos(7, 47, 48)
        s(f'''v_lshrrev_b32 v48, 1, v45
        s_lshl_b32 s73, s{sCT}, 1
        v_add_u32 v48, s73, v48
        v_mul_u32_u24 v48, 768, v48
        v_and_b32 v49, 1, v45
        v_lshl_add_u32 v48, v49, 3, v48
        v_add_u32 v7, v7, v48
        v_add_u32 v7, {L_HI}, v7
        s_sub_u32 s73, s71, s72
        s_lshl_b32 s70, s{sTB}, 5
        s_add_u32 s73, s73, s70
        v_add_u32 v48, s73, v44
        v_add_u32 v49, 16, v48
        s_movk_i32 s70, 2048
        v_cmp_gt_u32 {sr(sM0,2)}, s70, v48
        v_cmp_gt_u32 {sr(sM1,2)}, s70, v49
        v_lshlrev_b32 v50, 4, v46
        v_add_u32 v50, {L_STA}, v50
        v_lshlrev_b32 v51, 3, v47
        v_add_u32 v51, {L_STB}, v51''')
        for j in range(3): s(f's_add_u32 s70, s{sQ}, {j+1}\ns_and_b32 s70, s70, 3\ns_mul_i32 s70, s70, 7\ns_add_u32 s70, s70, s{sW}\ns_lshl_b32 s{4+j}, s70, 10')
        s(f'''s_lshl_b32 s7, s{sW}, 10
        s_mul_i32 s8, s{sTB}, 28672
        s_add_u32 s8, s8, {GX}
        s_xor_b32 s9, s{sTB}, 1
        s_mul_i32 s9, s9, 28672
        s_add_u32 s9, s9, s7
        s_add_u32 s9, s9, {X1}
        s_lshl_b32 s10, s{sTB}, 5
        s_add_u32 s72, s10, s{sCT}
        s_add_u32 s10, s10, s{sW}
        s_and_b32 s11, s10, -33
        s_lshl_b32 s10, s10, 2
        s_add_u32 s10, s10, {F3}
        s_lshl_b32 s11, s11, 2
        s_add_u32 s11, s11, {F4}
        s_lshl_b32 s72, s72, 2
        s_add_u32 s73, s72, {F4}
        s_add_u32 s72, s72, {F3}
        s_lshl_b32 s69, s{sCT}, 10
        s_add_u32 s70, s69, s8
        s_add_u32 s71, s70, {X1 - GX}
        v_add_u32 v46, s69, v{vL16}
        v_and_b32 v47, 3, v{vL}
        v_mul_u32_u24 v47, 28, v47
        v_bfe_u32 v48, v{vL}, 2, 1
        v_lshl_add_u32 v47, v48, 7, v47''')
        for i in range(4): s(f'v_mov_b32 v{28+i}, 0x3f803f80')
        for ks in range(14): s(f'v_mfma_f32_16x16x32_bf16 v[32:35], {vr(vW1+4*ks)}, v[28:31], {"v[32:35]" if ks else 0}')

    def g_wave(s, hst):
        c = s.cfg
        assert c.f_hok <= 28
        s.g_pre()
        s.wait(hst); s.hint_wait()
        s.stamp(13)
        s.h2(lambda: s.feed(c.f_hok, 63), lambda: s.feed(c.f_hld, 63))
        s.barrier(); s.stamp(15)
        s(f'v_mov_b32 v4, {L_FAST}\nds_read_b32 v4, v4\nv_lshlrev_b32 v5, 4, v44\nv_lshl_add_u32 v5, v45, 9, v5')
        s.gemm16(vW1, 24, 6, 3072, True, s.spread(c.f_g1, 28))
        s(f'v_readfirstlane_b32 s{sFAST}, v4')
        n1 = max(0, s.wn - 28)
        s.barrier(); s.stamp(16)
        s('ds_read_b128 v[36:39], v50\nds_read_b128 v[40:43], v50 offset:256')
        for l in zipl(s.gelu_pk(24, 32, 36, 4, 8, 20), s.gelu_pk(28, 32, 40, 4, 12, 22)): s(l)
        s(f"""v_cndmask_b32 v20, 0, v20, {sr(sM0,2)}
        v_cndmask_b32 v22, 0, v22, {sr(sM1,2)}
        v_cndmask_b32 v21, 0, v21, {sr(sM0,2)}
        v_cndmask_b32 v23, 0, v23, {sr(sM1,2)}
        v_permlane16_swap_b32 v20, v22
        v_permlane16_swap_b32 v21, v23""")
        s.xstore([f'buffer_store_dwordx4 v[20:23], v{vL16}, {sr(rWS)}, s70 offen'])
        s.stamp(17)
        s(f"""ds_write_b128 v46, v[20:23] offset:{L_GI}
        ds_read_b64 v[8:9], v7
        ds_read_b64 v[10:11], v7 offset:256
        ds_read_b64 v[12:13], v51
        ds_read_b64 v[14:15], v51 offset:128""")
        s.flag(72)
        s.stamp(18)
        s.poll(4, 47, 's10', 15, 0)
        s.stamp(42)
        for j in range(3): hd = s(f's_add_u32 m0, s{4+j}, {L_GI}\ns_add_u32 s68, s{4+j}, s8\nbuffer_load_dwordx4 v{vL16}, {sr(rWS)}, s68 offen sc1 lds')
        if c.bar_a: s('s_barrier')
        s.feed(c.f_b3a, 63)
        for i in range(4): s(f'v_lshlrev_b32 v{vRES+2*i}, 16, v{8+i}\nv_and_b32 v{vRES+1+2*i}, 0xffff0000, v{8+i}')
        for i in range(4): s(f'v_pk_fma_f32 {vr(24+2*i,2)}, {vr(vRES+2*i,2)}, {vr(12+2*(i>>1),2)}, {vr(12+2*(i>>1),2)} op_sel:[0,0,1] op_sel_hi:[1,0,1]')
        s(f"""v_lshrrev_b32 v48, 2, v44
        v_xor_b32 v48, v48, v45
        v_and_b32 v48, 1, v48
        v_cmp_eq_u32 vcc, 0, v48
        v_mov_b32 v48, 0x3f803f80
        s_add_u32 s8, s8, {X1 - GX}
        v_cndmask_b32 v164, 0, v48, vcc
        v_cndmask_b32 v165, 0, v48, vcc
        v_cndmask_b32 v166, 0, v48, vcc
        v_cndmask_b32 v167, 0, v48, vcc""")
        n1 = min(n1, c.cs_a)
        s.cs3(0, n1)
        s.wait(hd); s.barrier(); s.stamp(19)
        s.gemm16(vW2, 24, 5, 2048, False, s.spread(c.f_g2, 14))
        n2 = min(28, s.wn - 28, n1 + c.cs_b)
        for i in range(4): s(f'v_cvt_pk_bf16_f32 v{20+i}, v{24+2*i}, v{25+2*i}')
        s('v_permlane16_swap_b32 v20, v22\nv_permlane16_swap_b32 v21, v23')
        s.xstore([f'buffer_store_dwordx4 v[20:23], v{vL16}, {sr(rWS)}, s71 offen'])
        s.stamp(20)
        s(f'ds_write_b128 v46, v[20:23] offset:{L_XI + 28672}')
        s(f"""v_mov_b32 v49, 0
        v_mov_b32 v50, 0
        v_mov_b32 v51, 0
        v_add_u32 v6, {L_XI}, v{vL16}
        s_lshl_b32 s70, s{sW}, 11
        s_add_u32 s70, s70, {L_HID}
        v_add_u32 v7, s70, v{vL16}
        v_add_u32 v44, {L_HID}, v{vL16}""")
        for i in range(8): s(f'v_add_f32 v{vRES+i}, v{vRES+i}, v{24+i}')
        s.flag(73)
        s.stamp(21)
        s.poll(4, 47, 's11', '0xff', 0)
        s.stamp(43)
        for j in range(4): hd = s(f's_add_u32 m0, s7, {L_XI + 7168*j}\ns_add_u32 s68, s9, {7168*j}\nbuffer_load_dwordx4 v{vL16}, {sr(rWS)}, s68 offen sc1 lds')
        if c.bar_a: s('s_barrier')
        for j in range(3): hx = s(f's_add_u32 m0, s{4+j}, {L_XI + 28672}\ns_add_u32 s68, s{4+j}, s8\nbuffer_load_dwordx4 v{vL16}, {sr(rWS)}, s68 offen sc1 lds')
        s.feed(c.f_b4a, 63)
        s.cs3(n1, n2)
        later = []
        for r, x in ((12, 1), (15, 0)):
            later.append(f"""s_xor_b32 s69, s{sTB}, {x}
            s_mul_i32 s70, s69, 28
            s_add_u32 s70, s70, s{sCT}
            s_lshl_b32 s71, s70, 10
            s_add_u32 s{r}, s71, {GX}
            s_add_u32 s{r+1}, s71, {X1}
            s_lshl1_add_u32 s{r+2}, s71, {PX}
            s_lshl_b32 s69, s69, 5
            s_add_u32 s69, s69, s{sCT}
            s_lshl2_add_u32 s{18+x}, s69, {F7}""")
        later.append(f"""s_lshl_b32 s72, s{sCL}, 6
        s_lshl_b32 s73, s{sM}, 3
        s_add_u32 s73, s73, s72
        s_add_u32 s73, s73, s{sW}
        s_lshl_b32 s73, s73, 2
        s_add_u32 s73, s73, {F5}
        s_lshr_b32 s74, s{sCT}, 2
        s_lshl_b32 s72, s{sTB}, 5
        s_add_u32 s72, s72, s74
        s_lshl2_add_u32 s72, s72, {F5}""")
        AC, ST, A4 = (180, 164), (vST3, 160), ((112, 128), (180, 144))
        seq = []
        for t in range(2): seq += [(vW3 + 4*k, AC[t], k == 0, (6, 28672*t + 1024*k)) for k in range(28)]
        for t in range(2):
            for j in range(2):
                prs = [(w, ctl) for w in range(7) for ctl in range(2)]
                if j == 1: prs = [(w, ctl) for ctl in range(2) for w in range(7)]
                seq += [((vW4A + 4*(2*w + ctl), vW4B + 4*(7*ctl + w))[j], A4[t][ctl], j == 0 and w == 0, (44, 14336*t + 1024*(2*w + j))) for w, ctl in prs]
        reads = []; ridx = []
        for n, e in enumerate(seq):
            if not reads or reads[-1][0] != e[3]: reads.append((e[3], n))
            ridx.append(len(reads) - 1)
        nb = 4
        rat = {}
        for r, (key, n) in enumerate(reads):
            free = max([m for m in range(112) if ridx[m] == r - nb], default=-1)
            rat[r] = max(free, n - c.pd)
        X = {i: [] for i in range(-1, 113)}
        def place(items, a, b):
            bu = c.burst
            for k, it in enumerate(items):
                p = a + (k * (b - a + 1)) // len(items)
                X[min(b, p + (bu - 1 - (p - a) % bu))].append(it)
        I = lambda t: (lambda: s(t))
        def gelu(t, h):
            acc, st, o, G = AC[t] + 8*h, ST[t], [], c.ggrp
            for j in range(0, 8, G):
                R = range(G); T = 24 + j
                o += [f'v_mul_f32 v{T+i}, v{acc+j+i}, v{acc+j+i}' for i in R]
                o += [f'v_fma_f32 v{T+i}, v{T+i}, v{st+1}, v{st+2}' for i in R]
                o += [f'v_mul_f32 v{T+i}, v{T+i}, v{acc+j+i}' for i in R]
                for i in R: o += [f'v_exp_f32 v{T+i}, v{T+i}', '']
                o += [f'v_fma_f32 v{T+i}, v{T+i}, v{st+3}, v{st+3}' for i in R]
                for i in R: o += [f'v_rcp_f32 v{T+i}, v{T+i}', '']
                o += [f'v_mul_f32 v{T+i}, v{T+i}, v{acc+j+i}' for i in R]
                o += [f'v_cvt_pk_bf16_f32 v{32+(j+i)//2}, v{T+i}, v{T+i+1}' for i in range(0, G, 2)]
            o.append(f'ds_write_b128 v7, v[32:35] offset:{14336*t + 1024*h}\ns_mov_b64 exec, 1\nds_add_u32 v44, v46 offset:{L_CNT - L_HID + 4*(2*t + h)}\ns_mov_b64 exec, -1')
            return [I(x) for x in o]
        def sync(at, k, want, st):
            rdl = f'ds_read_b32 v4, v44 offset:{L_CNT - L_HID + 4*k}'
            def chk():
                spin, back = s.lab('ls'), s.lab('lb')
                s(f'v_readfirstlane_b32 s68, v4\ns_cmp_lg_u32 s68, {want}\ns_cbranch_scc1 {spin}')
                s.label(back); s.stamp(st)
                s.ool.append(f'{spin}:\n    s_mov_b32 s97, 0\n{spin}a:\n    s_sleep 1\n    {rdl}\n    s_add_u32 s97, s97, 1\n    s_cmp_gt_u32 s97, {SPIN*8}\n    s_waitcnt lgkmcnt(0)\n    s_cbranch_scc1 {back}\n'
                             f'    v_readfirstlane_b32 s68, v4\n    s_nop 1\n    s_cmp_lg_u32 s68, {want}\n    s_cbranch_scc1 {spin}a\n    s_branch {back}\n')
            X[at - c.sd].append(I(rdl)); X[at].append(chk)
        hs = {}
        def blk(base, k): return f's{base + min(k, 2)} offen offset:{1024 * (k == 3)}'
        def fin(t, ctl, h, pk, last=False):
            acc = A4[t][ctl] + 8*h
            def f():
                if t == 1:
                    un = A4[0][ctl] + 8*h
                    if last:
                        for i in range(0, 8, 2): s(f'v_pk_add_f32 {vr(acc+i,2)}, {vr(acc+i,2)}, {vr(un+i,2)}')
                    else:
                        for i in range(8): s(f'v_add_f32 v{acc+i}, v{acc+i}, v{un+i}')
                for i in range(4): s(f'v_cvt_pk_bf16_f32 v{pk+i}, v{acc+2*i}, v{acc+2*i+1}')
                s.xstore([f'buffer_store_dwordx4 {vr(pk)}, v{vL16}, {sr(rWS)}, {blk(12 + 3*t, 2*ctl + h)}'])
                hs[t, ctl] = s.vm[-1][0]
            return f
        def stage1(ctl, at):
            fo = ctl * (F7B - F7)
            def flag():
                s(f'v_mov_b32 v45, s{sTAG}\ns_add_u32 s69, s18, {fo}')
                s.wait(hs[0, ctl]); s('s_mov_b64 exec, 1')
                s.xstore([f'buffer_store_dword v45, off, {sr(rWS)}, s69'])
                s('s_mov_b64 exec, -1')
            def fetch():
                s.poll_check(47, 49, 's70'); s.stamp(45 + ctl)
                for h in range(2): s(f'buffer_load_dwordx4 {vr(164 + 8*ctl + 4*h)}, v{vL16}, {sr(rWS)}, {blk(15, 2*ctl + h)} sc1')
            X[at[0]].append(fin(0, ctl, 0, 108)); X[at[1]].append(fin(0, ctl, 1, 196))
            X[at[2]].append(flag)
            X[at[3]].append(lambda: (s(f's_add_u32 s70, s19, {fo}'), s.poll_issue(47, 49, 's70')))
            X[at[4]].append(fetch)
            un = []
            for i in range(8): un += [f'v_lshlrev_b32 v{A4[0][ctl] + 2*i}, 16, v{164 + 8*ctl + i}', f'v_and_b32 v{A4[0][ctl] + 2*i + 1}, 0xffff0000, v{164 + 8*ctl + i}']
            place([I(x) for x in un], at[5], min(at[5] + 3, 111))
        bsave, c.burst = c.burst, 1
        ch = []
        for t in later:
            cur = []
            for l in t.split('\n'):
                if len(cur) >= 5 and 'cselect' not in l: ch.append('\n'.join(cur)); cur = []
                cur.append(l)
            ch.append('\n'.join(cur))
        assert not any(x.strip().split('\n')[-1].strip().startswith('s_cmp') for x in ch)
        place([I(x) for x in ch], 1, 21)
        if s.wn < 56: place([s.feed1] * (56 - s.wn), 0, max(0, s.wn - 28 - 5))
        place([s.feed1] * (70 - max(s.wn, 56)), c.w4a[0], c.w4a[1])
        place([s.feed1] * 14, c.w4b[0], c.w4b[1])
        c.burst = bsave
        for ks in range(n2, 28): X[max(ks - 3, 0)].append(lambda ks=ks: s.cs3(ks, ks + 1))
        X[26] += [I('v_cvt_pk_bf16_f32 v48, v168, v168'), I('v_and_b32 v47, 0xffff0000, v48'), I('v_sub_f32 v47, v168, v47'), I('v_cvt_pk_bf16_f32 v48, v168, v47')]
        first = lambda n: rat[ridx[n]] - 1
        sync(first(28), 4, 8, 23)
        X[first(28)].append(I(f'ds_read_b128 {vr(ST[0])}, v44 offset:{L_ST3 - L_HID}'))
        X[27].append(I(f'v_mfma_f32_32x32x16_bf16 {vr(AC[0],16)}, v[48:51], {vr(ST[0])}, {vr(AC[0],16)}'))
        q = c.q
        for k in range(4): place(gelu(k >> 1, k & 1), q[k], q[k+1] - 1)
        sync(55, 5, 1, 24)
        X[55].append(I(f'ds_read_b128 {vr(ST[1])}, v44 offset:{L_ST3 - L_HID + 1024}'))
        X[57].append(I(f'v_mfma_f32_32x32x16_bf16 {vr(AC[1],16)}, v[48:51], {vr(ST[1])}, {vr(AC[1],16)}'))
        for k in range(4):
            assert first(56 + 14*k) - c.sd >= q[k+1] - 1, (k, first(56 + 14*k))
            sync(first(56 + 14*k), k, 7, (25, 26, 27, 41)[k])
        sync(73, 6, 1, 44)
        assert c.st0[4] >= q[3] and c.st1[4] >= q[4] and c.st0[4] < c.st1[3]
        stage1(0, c.st0); stage1(1, c.st1)
        X[107].append(fin(1, 0, 0, 108)); X[109].append(fin(1, 0, 1, 196)); X[112] += [fin(1, 1, 0, 24, c.lastpk), fin(1, 1, 1, 28, c.lastpk)]
        def rd(r): (va, off), _ = reads[r]; s(f'ds_read_b128 {vr(8+4*(r%nb))}, v{va} offset:{off}')
        X[c.x_at].insert(0, lambda: (s.wait(hx), s(f's_mov_b64 exec, 1\nds_add_u32 v44, v46 offset:{L_CNT - L_HID + 16}\ns_mov_b64 exec, -1')))
        s('v_mov_b32 v46, 1')
        s.wait(hd); s.barrier(); s.stamp(22)
        for r in range(len(reads)):
            if rat[r] < 0: rd(r)
        for n, (W, acc, fst, key) in enumerate(seq):
            s(f'v_mfma_f32_32x32x16_bf16 {vr(acc,16)}, {vr(W)}, {vr(8+4*(ridx[n]%nb))}, {0 if fst else vr(acc,16)}')
            for r in range(len(reads)):
                if rat[r] == n: rd(r)
            if c.prio and X[n] and 28 <= n < 98: s('s_setprio 0')
            s.run(X[n])
            if c.prio and X[n] and 28 <= n < 98: s('s_setprio 1')
        s.run(X[112])
        s.stamp(28)
        s(f'''v_and_b32 v8, 15, v{vL}
        v_bfe_u32 v9, v{vL}, 4, 1
        v_lshlrev_b32 v9, 3, v9
        v_sub_u32 v8, v8, v9
        v_mov_b32 v10, 0x3f80
        v_mov_b32 v11, 1.0
        v_lshlrev_b32 v6, 5, v{vL}
        v_lshrrev_b32 v47, 5, v{vL}
        v_and_b32 v45, 31, v{vL}
        v_mul_u32_u24 v45, 896, v45
        v_lshl_add_u32 v45, v47, 4, v45''')
        s.flag(73)
        s.stamp(29)
        s('s_mov_b64 exec, 15')
        s.poll_issue(4, 6, 's72')
        s('s_mov_b64 exec, -1')
        for d in range(4):
            s(f'''v_cmp_eq_u32 vcc, {2*d}, v8
            v_cmp_eq_u32 s[68:69], {2*d+1}, v8
            v_cndmask_b32 v{48+d}, 0, v10, vcc
            v_cndmask_b32 v{48+d}, v{48+d}, v11, s[68:69]''')
        s(f'''s_mul_i32 s74, s{sTB}, 28
        s_lshr_b32 s70, s{sCT}, 2
        s_add_u32 s74, s74, s70
        s_lshl_b32 s74, s74, 10
        s_and_b32 s70, s{sCT}, 1
        s_lshl_b32 s71, s70, 21
        s_add_u32 s71, s71, s74
        s_add_u32 s71, s71, {GX}
        s_lshl_b32 s70, s70, 10
        s_lshl1_add_u32 s74, s74, s70
        s_add_u32 s74, s74, {PX}
        s_movk_i32 s70, 7168
        s_bitcmp1_b32 s{sCT}, 1
        s_cselect_b32 s74, s74, s71
        s_cmovk_i32 s70, 14336
        s_lshl1_add_u32 s75, s70, s74
        s_sub_u32 s70, s70, 1024
        v_mad_u32_u24 v9, v47, s70, v5
        s_mul_i32 s76, s{sTB}, {32*896}
        s_lshl_b32 s77, s{sCT}, 5
        s_add_u32 s76, s76, s77''')
        s.srd(rX, sOUT, 2048 * 896)
        s('s_mov_b64 exec, 15')
        s.poll_check(4, 6, 's72')
        s('s_mov_b64 exec, -1')
        s.stamp(30)
        for u in range(2):
            for t in range(2): s(f'buffer_load_dwordx4 {vr(52+8*u+4*t)}, v9, {sr(rWS)}, s{74+u} offen offset:{256*t} sc1')
        for u in range(2):
            for t in range(2): s(f'v_mfma_f32_16x16x32_bf16 {vr(vRES+4*t)}, v[48:51], {vr(52+8*u+4*t)}, {vr(vRES+4*t)}')
        for i in range(4): s(f'v_cvt_pk_bf16_f32 v{20+i}, v{vRES+2*i}, v{vRES+1+2*i}')
        s('v_permlane16_swap_b32 v20, v22\nv_permlane16_swap_b32 v21, v23')
        s(f'buffer_store_dwordx4 v[20:23], v45, {sr(rX)}, s76 offen')
        s.stamp(31)

    def s_mfma(s, addrs, acc, kstride, base):
        seq = [(ks, t) for ks in range(14) for t in range(3)]
        nb = 8
        def rd(i): ks, t = seq[i]; s(f'ds_read_b128 {vr(52+4*(i%nb))}, v{addrs+t} offset:{base + ks*kstride}')
        s('s_mov_b32 exec_lo, 0x77777777\ns_mov_b32 exec_hi, 0x77777777')
        for i in range(nb - 1): rd(i)
        for i, (ks, t) in enumerate(seq):
            if i + nb - 1 < len(seq): rd(i + nb - 1)
            s(f'v_mfma_f32_16x16x32_bf16 {vr(acc+4*t)}, {vr(52+4*(i%nb))}, {vr(52+4*(i%nb))}, {vr(acc+4*t) if ks else 0}')
    def s_wave(s, hst):
        s.comment('S wave: statistics, polling, DMA')
        s('s_setprio 2')
        s(f'''s_and_b32 s70, s2, 0xc7
        s_lshl_b32 s70, s70, 4
        s_add_u32 s70, s70, {FA}
        v_and_b32 v44, 7, v{vL}
        v_lshlrev_b32 v44, 7, v44
        buffer_load_dword v48, v44, {sr(rWS)}, s70 offen sc1''')
        def ftouch():
            s(f'''s_lshl_b32 s72, s{sTB}, 7
            s_add_u32 s72, s72, {F3}
            s_mov_b32 m0, {L_JUNK}
            v_min_u32 v45, 4, v{vL}
            v_lshlrev_b32 v45, 13, v45
            buffer_load_dword v45, {sr(rWS)}, s72 offen sc1 lds''')
        for i in range(32): s(f'v_mov_b32 v{52+i}, 0x3f803f80')
        s(f'''v_and_b32 v44, 3, v{vL}
        v_bfe_u32 v45, v{vL}, 2, 2
        v_mad_u32_u24 v40, v45, 3, v44
        v_lshrrev_b32 v41, 4, v{vL}''')
        for t in range(3):
            s(f'v_add_u32 v46, {12*t}, v40')
            s.pos(84 + t, 46, 47)
            s(f'v_mul_u32_u24 v47, 768, v41\nv_add_u32 v{84+t}, v{84+t}, v47\nv_add_u32 v{84+t}, {L_HI}, v{84+t}')
            s(f'v_min_u32 v46, 31, v46\nv_lshlrev_b32 v46, 4, v46\nv_lshl_add_u32 v46, v41, 9, v46\nv_add_u32 v{88+t}, {L_XI}, v46')
        s(f'''v_sub_u32 v45, v45, v41
        v_and_b32 v45, 3, v45
        v_cmp_eq_u32 s[78:79], 1, v45
        v_cmp_eq_u32 s[80:81], 2, v45
        v_mad_u32_u24 v40, v41, 3, v44
        v_mad_u32_u24 v40, v45, 12, v40
        v_min_u32 v92, 31, v40
        v_lshlrev_b32 v92, 4, v92
        v_add_u32 v92, {L_ST3}, v92
        v_lshlrev_b32 v42, 4, v40
        v_add_u32 v42, {L_STA}, v42
        v_lshlrev_b32 v43, 3, v40
        v_add_u32 v43, {L_STB}, v43
        v_lshlrev_b32 v6, 2, v{vL}
        v_lshlrev_b32 v7, 7, v{vL}
        v_cmp_ne_u32 vcc, s{sTX}, v48
        v_mov_b32 v46, {L_FAST}
        s_cmp_eq_u64 vcc, 0
        s_cselect_b32 s{sFAST}, 1, 0
        v_mov_b32 v45, s{sFAST}
        ds_write_b32 v46, v45
        v_mov_b32 v45, 0
        v_and_b32 v46, 28, v6
        v_add_u32 v46, {L_CNT}, v46
        ds_write_b32 v46, v45''')
        s.hint_wait()
        s.stamp(13)
        s.h2(ftouch)
        s(f'v_cmp_eq_u32 s[92:93], 1, v44\nv_cmp_eq_u32 s[94:95], 2, v44\ns_mov_b32 s96, {INVD}')
        s(f'''s_lshl2_add_u32 s70, s{sTB}, s{sQ}
        s_lshl_b32 s71, s70, 4
        s_add_u32 s71, s71, {FN}
        v_and_b32 v45, 1, v{vL}
        v_lshlrev_b32 v45, 3, v45
        v_sub_u32 v45, v44, v45
        s_lshl2_add_u32 s72, s{sTB}, 4
        v_add_u32 v45, s72, v45
        v_mov_b32 v47, s70
        v_cmp_gt_u32 vcc, 0x100, v45
        v_mov_b32 v36, s{sTAG}
        s_mov_b32 s72, {FN}
        v_cndmask_b32 v45, v47, v45, vcc
        v_lshlrev_b32 v37, 4, v45''')
        s.barrier(); s.stamp(15)
        s(f's_mov_b64 exec, 1\nbuffer_store_dword v36, off, {sr(rWS)}, s71 sc1')
        s.s_mfma(84, 24, 3072, 0)
        s.stats_tail(24, 43, 42, 0)
        s('s_mov_b64 exec, -1')
        s.barrier(); s.stamp(16)
        s.poll(4, 37, 's72', 15, 0, sleep=4)
        for i in range(4 if s.cfg.bar_a else 2): s('s_barrier')
        s.stamp(22)
        def lwait(k, want):
            l = s.lab('tw')
            s('s_mov_b32 s97, 0'); s.label(l)
            s(f'ds_read_b32 v4, v46 offset:{4*k}\ns_add_u32 s97, s97, 1\nv_readfirstlane_b32 s68, v4\ns_cmp_lt_u32 s97, {SPIN*8}\ns_cselect_b32 s68, s68, {want}\ns_cmp_lg_u32 s68, {want}\ns_sleep 1\ns_cbranch_scc1 {l}')
        def touch():
            s(f'''s_mul_i32 s70, s{sTB}, 28
            s_mul_i32 s71, s{sQ}, 7
            s_add_u32 s70, s70, s71
            s_lshl_b32 s71, s70, 10
            s_add_u32 s71, s71, {GX}
            s_add_u32 s69, s71, {X1 - GX}
            s_lshl_b32 s70, s70, 11
            s_add_u32 s70, s70, {PX}
            s_mov_b32 m0, {L_JUNK}
            s_mov_b32 exec_hi, 0x00ffffff''')
            if s.cfg.refresh: s(f'buffer_load_dword v7, {sr(rWS)}, s71 offen sc1 lds\nbuffer_load_dword v7, {sr(rWS)}, s69 offen sc1 lds')
            for i in range(2):
                s(f'buffer_load_dword v7, {sr(rWS)}, s70 offen sc1 lds\ns_add_u32 s70, s70, 7168')
                s.wait_vm(s.cfg.tdepth)
            s('s_mov_b32 exec_hi, -1')
        s(f'v_mov_b32 v46, {L_CNT}\nv_mov_b32 v47, 1')
        for t in range(2):
            s.s_mfma(88, 24, 2048, 28672 * t)
            s.stats_tail(24, None, 92, 1024 * t)
            s(f's_mov_b64 exec, 1\nds_add_u32 v46, v47 offset:{16 + 4*t}\ns_mov_b64 exec, -1')
            s.stamp(23 + t)
            if t == 0:
                lwait(4, 8)
                s(f's_lshl_b32 s72, s{sCL}, 8\ns_add_u32 s72, s72, {F5 + 28}\ns_lshl_b32 s73, s{sM}, 5\ns_add_u32 s73, s73, s72\nv_lshlrev_b32 v37, 5, v{vL}')
                s.flag(73)
        s.poll(4, 37, 's72', '0xff', 0, sleep=2)
        s(f's_mov_b64 exec, 1\nds_add_u32 v46, v47 offset:24\ns_mov_b64 exec, -1')
        if s.cfg.touch_at < 4: lwait(s.cfg.touch_at, 7)
        s.stamp(25)
        if s.cfg.touch_at != 5: touch()
        s.cond('s_cmp_lg_u32 s2, 0', lambda: s(f'v_mov_b32 v4, s{sTAG}\ns_mov_b32 s70, {EP}\ns_mov_b64 exec, 1\nbuffer_store_dword v4, off, {sr(rWS)}, s70 sc1\ns_mov_b64 exec, -1'))
        s.wait_vm(0); s.stamp(28)

def build(stamps=False, cfg=None):
    s = K(stamps, cfg or Cfg())
    c = s.cfg
    s.entry(); s.setup(); s(s.scalars())
    if c.dma_at == -1: s(f's_cmp_lt_u32 s43, 2\ns_cmov_b32 s{rW+2}, {448*896}'); s.pack_dma()
    if c.sb_at == 0: s.setup_b()
    s.stamp(34); s.ln()
    s(f's_cmp_ge_u32 s{sI}, 28'); s.flush_hazards(); s('s_cbranch_scc1 Lnonconv')
    st = s.state()
    if c.clr_at == 0: s.clear()
    if c.sb_at == 1: s.setup_b()
    if c.dma_at == 0: s.pack_dma()
    if c.fa_at == -1: s.publish_a()
    s.kgen(); hst = s.conv()
    s.label('Ljoin')
    s(f'v_mov_b32 v4, v21\nv_mov_b32 v5, v22\ns_cmp_eq_u32 s{sW}, 7'); s.flush_hazards(); s('s_cbranch_scc1 Lsw')
    st2 = s.state()
    s.g_wave(hst); s.dump_stamps(); s('s_endpgm')
    s.label('Lsw'); s.set_state(st2)
    s.s_wave(hst); s.dump_stamps()
    s.label('Lend'); s('s_endpgm')
    s.label('Lnonconv'); s.set_state(st); s.wn = 0
    s.nonconv(); s.flush_hazards(); s('s_branch Ljoin')
    name = NAME + '_kernel'
    txt = f'''; @launch grid=(256,1,1) block=(512,1,1) lds={LDS_BYTES}
.amdgcn_target "amdgcn-amd-amdhsa--gfx950"
.text
.globl {name}
.p2align 8
.type {name},@function
{name}:
''' + s.text() + ''.join(s.ool) + tap_table() + f'''.section .rodata,"a"
.p2align 6
.amdhsa_kernel {name}
  .amdhsa_next_free_vgpr 256
  .amdhsa_next_free_sgpr 102
  .amdhsa_accum_offset 256
  .amdhsa_group_segment_fixed_size 0
  .amdhsa_kernarg_size 120
  .amdhsa_user_sgpr_count 2
  .amdhsa_user_sgpr_kernarg_segment_ptr 1
  .amdhsa_system_sgpr_workgroup_id_x 1
.end_amdhsa_kernel
'''
    size, syms = code_info(txt.replace('@CODE_BYTES@', '1000').replace('@TAB_OFF@', '1000'))
    return txt.replace('@CODE_BYTES@', str(syms['tap_table'] + 2048 + 4224 - syms['Lpc'] - 4)).replace('@TAB_OFF@', str(syms['tap_table'] - syms['Lpc']))
def tap_table():
    RB = {8: 0, 4: 16, 2: 24, 6: 28, 1: 32, 3: 34, 5: 36, 7: 38}
    def rnd(l):
        sh = max(0, l.bit_length() - 8)
        if not sh: return l
        q, r = l >> sh, l & ((1 << sh) - 1); half = 1 << (sh - 1)
        return (q + (r > half or (r == half and q & 1))) << sh
    v = []
    for i in range(2056):
        l = 2047 - i
        if l < 0: e = 768
        elif l == 0: e = 640
        else: p = rnd(l); e = RB[((p - 1) & 7) + 1] * 16 + ((p - 1) >> 3)
        v.append(e * 16)
    v += [0] * 56
    lane = []
    for l in range(64):
        n, g = l & 15, l >> 4; tb = 2*n + (g >> 1); rr, cc = (l >> 2) & 3, l & 3
        bb = lambda c_: 32*c_ + 16*((c_ >> 3) & 1)
        lane.append([4*(4*g - (n >> 1)) + 28 + KEO*(1 - (n & 1)), bb(30 + 2*n + g), bb(26 + 2*n + g), (l >> 1)*896 + 16*((l ^ g) & 1),
                     tb*64 + (g & 1)*32, (n >> 1)*1792 + 4*(n & 1) + g, bb(tb) + 8*(g & 1), (g*64 + n)*16 + 4*((l >> 3) & 3),
                     n*KGP + 16*g, (8*g + rr)*64 + cc*8, (8*(g >> 1) + rr)*64 + (g & 1)*32 + (cc & 1)*16 + (cc >> 1)*8,
                     (l >> 2)*896 + cc*16, (l >> 2)*3584 + cc*16, rr*LNP + 32*g + 8*cc, rr*KEO + 16*(l & 1), 0])
    pk = []
    for b in range(256):
        for w in range(8):
            U = 256*w + 32*(b & 7) + (b >> 3)
            if U < 392: m, V = divmod(U, 196); kb, cb = divmod(V, 14); src = kb*32*896; d0 = 392*m + 28*cb + kb; d1 = d0 + 14
            elif U < 1176: m = 2; kb, cb = divmod(U - 392, 56); src = kb*32*3584; d0 = 784 + 28*cb + 2*kb; d1 = d0 + 1
            elif U < 1960: m = 3; kb, cb = divmod(U - 1176, 14); src = kb*32*896; d1 = 2352 + ((kb//7)*7 + (cb >> 1))*28; d0 = d1 + 2*(kb % 7) + (cb & 1); d1 += 14 + 7*(cb & 1) + kb % 7
            else: m, cb, src, d0, d1 = 4, 0, 0, 0, 0
            pk += [(m << 24) | (src + 64*cb), d0 | (d1 << 16)]
    t = '.p2align 7\n.type tap_table,@object\ntap_table:\n'
    for h in range(2):
        for l in range(64): t += '.short ' + ', '.join(map(str, lane[l][8*h:8*h+8])) + '\n'
    for i in range(0, 2112, 8): t += '.short ' + ', '.join(map(str, v[i:i+8])) + '\n'
    for i in range(0, 4096, 8): t += '.long ' + ', '.join(map(str, pk[i:i+8])) + '\n'
    return t + f'.size tap_table, {2048 + 4224 + 16384}\n'
def code_info(txt):
    import subprocess, tempfile, re
    with tempfile.TemporaryDirectory() as d:
        open(d + '/a.s', 'w').write(txt)
        subprocess.run(['clang', '-x', 'assembler', '-target', 'amdgcn-amd-amdhsa', '-mcpu=gfx950', '-c', d + '/a.s', '-o', d + '/a.o'], check=True)
        o = subprocess.run(['llvm-readelf', '-S', '-s', d + '/a.o'], capture_output=True, text=True).stdout
        size = int(re.search(r'\.text\s+PROGBITS\s+\S+\s+\S+\s+(\S+)', o).group(1), 16)
        return size, {m.group(2): int(m.group(1), 16) for m in re.finditer(r'\d+: ([0-9a-f]{16}) .* (\S+)\n', o)}
if __name__ == '__main__':
    sys.stdout.write(build(stamps=len(sys.argv) > 1))
```

```python
import sys, os, struct
sys.path.insert(0, os.path.dirname(os.path.abspath(__file__)))
from dsl import Asm, Ins

NAME = 'sequential_preLN__ssm_conv_s4d__mixer_s_mlp__prompt'
W1P, W2P, W3P, W4P = 0, 392 * 1024, 784 * 1024, 2352 * 1024
SM = 0x600000
GX, X1, PX = 0xA00000, 0xC00000, 0x1000000
FL = 0x2000000
F3, F4, F5, F7, F7B = FL, FL + 0x2000, FL + 0x4000, FL + 0x6000, FL + 0x8000
FH, FN, EP, FA, FB = FL + 0x1A000, FL + 0x1E000, FL + 0x20000, FL + 0x30000, FL + 0x40000
FCP = 4352
TS = 0x3000000
WS_BYTES = 0x4000000
L_LN, LNP = 0, 960
L_PK, L_PK2 = 15360, 32768
L_KG, KGP = 31744, 288
L_Y = 0
L_KT, KTSZ = 68608, 12320
L_KE, KEO, KECH = 93312, 4160, 8320
L_U = 110080
L_SM = 8 * LNP
L_HI, L_GI, L_XI, L_HID, L_ST = 106880, 0, 28672, 106880, 149888
L_STA, L_STB, L_FAST, L_JUNK, L_ST3 = L_ST, L_ST + 768, L_ST + 1152, L_ST + 1280, L_ST + 1536
L_CNT = L_FAST + 16
LDS_BYTES = 153600
LOG2E, INV2PI, EPS, INVD = 0x3fb8aa3b, 0x3e22f983, 0x3727c5ac, 0x3b124925
C1 = -2.0 * 0.7978845608028654 * 1.4426950408889634
def fh(x): return '0x%08x' % struct.unpack('<I', struct.pack('<f', x))[0]
SPIN = 1 << 18
sX, sLA, sAI, sCR, sCI, sDT, sDS = 4, 6, 8, 10, 12, 14, 16
sW1, sW2, sW3, sW4, sOUT, sWS = 20, 22, 24, 26, 28, 30
rWS, rX, rD, rW, rG = 32, 36, 40, 44, 48
sW, sXCD, sI, sP, sTAG, sTB, sQ, sCL, sM, sFAST = range(52, 62)
sPD0, sPD1, sUO, sSM, sFO, sPACT = range(62, 68)
sUS, sKG, sHD, sUM = 74, 75, 76, 77
sLDT, sD0, sD1 = 40, 41, 42
sM0, sM1, sCT, sTX = 78, 80, 82, 83
sA1, sA2, sA3, sA4 = 84, 85, 86, 87
def sr(n, k=4): return f's[{n}:{n+k-1}]'
def vr(n, k=4): return f'v[{n}:{n+k-1}]'
vL16, vL = 1, 2
vW1, vW2, vW3, vW4A, vW4B = 144, 200, 52, 200, 52
vCS3, vAC3, vST3, vRES = 164, 180, 196, 36

class Cfg:
    f_kt = 3
    fa_at, dma_at, poll_at, chk_at, pst_at, fa_sleep = 0.5, 1, 3, 5, 6, 1
    rsplit = 8
    f_conv = 17
    f_hst = 17
    f_hld = 17
    f_hok = 21
    f_g1 = 31
    f_gfl = 34
    f_b3a = 35
    f_g2 = 41
    f_xfl = 45
    f_b4a = 45
    two = 0
    tab = 0
    xbar = 0
    fb_at = 0
    x_nof = 99
    prio = 0
    bar_a, cs_a, cs_b, x_at = 1, 8, 12, 3
    ggrp, burst, pd, sd = 4, 1, 3, 2
    q = (33, 47, 61, 75, 89)
    st0, st1, lastpk = (79, 81, 87, 90, 94, 102), (86, 88, 93, 96, 100, 108), 1
    w4a, w4b = (17, 44), (45, 68)
    nc_depth, hint_at = 8, 8
    depth = 4
    touch_at = 1
    warm = 1
    gp, gd, w3e = 17, 4, 16
    hack, hdel, hmask = 1, 0, 0
    upf = 0
    ktm = 0
    kbar = 0
    lst2, lregs = (), (4, 6, 8, 10, 12, 14, 16, 18, 20, 22, 24, 26, 78, 80, 94)
    fm, fc, fg = 4, 0, 0
    lst = 0
    sb_at, clr_at = 1, 0
    cil, chead, cpace, clead, cy0, cyp = 0, 9, 1.0, 5, 42, 4
    rts = 0
    refresh = 1
    tdepth = 1
    cpf = 1
    x_late = 0

def zipl(*streams):
    out = []; n = max(len(x) for x in streams)
    for i in range(n):
        for x in streams:
            if i < len(x): out.append(x[i])
    return out

class K(Asm):
    def __init__(s, stamps, cfg):
        super().__init__(); s.stamps = stamps; s.cfg = cfg; s.ool = []; s.nlab = 0; s.wn = 0
    def lab(s, p): s.nlab += 1; return f'L{p}{s.nlab}'
    def srd(s, r, ptr, size):
        s(f's_mov_b32 s{r}, s{ptr}\ns_mov_b32 s{r+1}, s{ptr+1}\ns_mov_b32 s{r+2}, {size}\ns_mov_b32 s{r+3}, 0x20000')
    def stamp(s, idx, real=False):
        if idx in s.cfg.lst2:
            r = s.cfg.lregs[list(s.cfg.lst2).index(idx)]
            s.raw(f'    s_memtime s[{r}:{r+1}]')
            if idx == s.cfg.lst2[-1]:
                s.wait_lg(0, force=True)
                for i, k in enumerate(s.cfg.lst2): s(f'v_writelane_b32 v3, s{s.cfg.lregs[i]}, {k}')
            return
        if not s.stamps or (s.stamps is not True and idx not in (31, 61) and (s.stamps == 'span' or idx not in s.stamps)): return
        s(f's_mem{"real" if real else ""}time s[98:99]'); s.wait_lg(0)
        s(f'v_writelane_b32 v3, s98, {idx}')
        rt = {3: 50, 10: 51, 11: 52, 15: 53, 22: 54, 25: 55, 28: 56}
        if s.cfg.rts and idx in rt:
            s('s_memrealtime s[98:99]'); s.wait_lg(0); s(f'v_writelane_b32 v3, s98, {rt[idx]}')
    def dump_stamps(s):
        if not s.stamps: return
        s.stamp(61, True)
        s(f's_lshl_b32 s98, s2, 3\ns_add_u32 s98, s98, s{sW}\ns_lshl_b32 s98, s98, 8\ns_add_u32 s98, s98, {TS}')
        s(f'v_lshlrev_b32 v4, 2, v{vL}\nbuffer_store_dword v3, v4, {sr(rWS)}, s98 offen')
    def cond(s, cmp_skip, body, drain=True, flush=True):
        l = s.lab('c')
        s(cmp_skip)
        if flush: s.flush_hazards()
        s(f's_cbranch_scc1 {l}')
        vm, lg, hist = list(s.vm), list(s.lg), list(s.hist)
        body()
        if drain: s._wait(lg=0)
        if flush: s.flush_hazards()
        else: s.hist = hist
        s.label(l)
        s.vm, s.lg = vm, lg
    def xstore(s, lines):
        slow, back = s.lab('xs'), s.lab('xb')
        s(f's_cmp_eq_u32 s{sFAST}, 0')
        for l in lines:
            ins = Ins(l); t = ins.rd | ins.wr
            hs = [x[0] for x in s.vm if x[1] & t] + [x[0] for x in s.lg if x[1] & t]
            if hs: s.wait(*hs)
        s(f's_cbranch_scc1 {slow}')
        for l in lines: s(l)
        s.label(back)
        s.ool.append(f'{slow}:\n    s_nop 7\n    s_nop 3\n' + ''.join(f'    {l} sc1\n' for l in lines) + f'    s_branch {back}\n')
    def feed1(s):
        n = s.wn; s.wn += 1
        if n >= s.cfg.x_nof: return
        if n < 14: reg, sb, i = vW1 + 4*n, sA1, n
        elif n < 28: reg, sb, i = vW2 + 4*(n-14), sA2, n - 14
        elif n < 56: reg, sb, i = vW3 + 4*(n-28), sA3, n - 28
        elif n < 70: reg, sb, i = vW4A + 4*(n-56), sA4, n - 56
        else: reg, sb, i = vW4B + 4*(n-70), sA4, n - 56
        if i % 4 == 0 and i: s(f's_add_u32 s{sb}, s{sb}, 4096')
        s(f'buffer_load_dwordx4 {vr(reg)}, v{vL16}, {sr(rG)}, s{sb} offen offset:{(i % 4) * 1024}')
    def feed(s, upto, depth=None):
        depth = depth or s.cfg.depth
        while s.wn < upto:
            s.wait_vm(depth - 1); s.feed1()
    def spread(s, upto, slots, first=0):
        n = max(0, upto - s.wn); out = [lambda: None] * slots
        pos = [first + (k * (slots - first)) // n for k in range(n)] if n else []
        for p in set(pos):
            out[p] = (lambda c=pos.count(p): [s.feed1() for _ in range(c)])
        return out
    def fair(s, n, k):
        if k and n % k == 0: s('s_setprio 1')
        if k and n % k == k - 1: s('s_setprio 0')
    def run(s, l):
        for f in l: f()
    def poll_issue(s, vdst, vaddr, soff): return s(f'buffer_load_dword v{vdst}, v{vaddr}, {sr(rWS)}, {soff} offen sc1')
    def poll_check(s, vdst, vaddr, soff, sleep=0):
        retry, back = s.lab('pr'), s.lab('pb')
        s(f'v_subrev_u32 v{vdst}, s{sTAG}, v{vdst}\nv_cmp_lt_u32 vcc, 15, v{vdst}\ns_mov_b32 s97, 0\ns_cbranch_vccnz {retry}')
        s.label(back)
        s.ool.append(f'''{retry}:
''' + (f'    s_sleep {sleep}\n' if sleep else '') + f'''    buffer_load_dword v{vdst}, v{vaddr}, {sr(rWS)}, {soff} offen sc1
    s_add_u32 s97, s97, 1
    s_cmp_gt_u32 s97, {SPIN}
    s_waitcnt vmcnt(0)
    s_cbranch_scc1 {back}
    v_subrev_u32 v{vdst}, s{sTAG}, v{vdst}
    v_cmp_lt_u32 vcc, 15, v{vdst}
    s_nop 1
    s_cbranch_vccnz {retry}
    s_branch {back}
''')
    def poll(s, vdst, vaddr, soff, lo=None, hi=None, sleep=0):
        if lo is not None: s(f's_mov_b32 exec_lo, {lo}\ns_mov_b32 exec_hi, {hi}')
        s.poll_issue(vdst, vaddr, soff); s.poll_check(vdst, vaddr, soff, sleep)
        if lo is not None: s('s_mov_b64 exec, -1')
    def flag(s, soff, vtmp=4):
        s(f'v_mov_b32 v{vtmp}, s{sTAG}')
        s.wait_vm(0, force=True)
        s('s_mov_b64 exec, 1')
        s.xstore([f'buffer_store_dword v{vtmp}, off, {sr(rWS)}, s{soff}'])
        s('s_mov_b64 exec, -1')
    def gflag(s, wave, soff, sval, vtmp, drain=False, flush=True):
        s.cond(f's_cmp_lg_u32 s{sW}, {wave}', drain=drain, flush=flush, body=lambda: s(f'v_mov_b32 v{vtmp}, s{sval}\ns_mov_b64 exec, 1\nbuffer_store_dword v{vtmp}, off, {sr(rWS)}, s{soff} sc1\ns_mov_b64 exec, -1'))
    def gflag8(s, wave, soff, sval, vtmp, flush=True):
        s.cond(f's_cmp_lg_u32 s{sW}, {wave}', drain=False, flush=flush, body=lambda: s(f'v_mov_b32 v{vtmp}, s{sval}\nv_mul_u32_u24 v{vtmp+1}, {FCP}, v{vL}\ns_mov_b64 exec, 0xff\nbuffer_store_dword v{vtmp}, v{vtmp+1}, {sr(rWS)}, s{soff} offen sc1\ns_mov_b64 exec, -1'))
    def dma(s, a, b, ssrc, ldsbase):
        h = None
        for i in range(a, b):
            if i % 4 == 0:
                if i: s(f's_add_u32 s{ssrc}, s{ssrc}, 4096')
                s(f's_mov_b32 m0, {ldsbase + i * 1024}')
            h = s(f'buffer_load_dwordx4 v{vL16}, {sr(rWS)}, s{ssrc} offen offset:{(i % 4) * 1024} sc1 lds')
        return h
    def pos(s, d, src, t):
        s(f'''v_and_b32 v{t}, 3, v{src}
        v_lshlrev_b32 v{t}, 2, v{t}
        v_and_or_b32 v{t}, v{src}, -16, v{t}
        v_bfe_u32 v{d}, v{src}, 2, 2
        v_or_b32 v{d}, v{d}, v{t}
        v_lshlrev_b32 v{d}, 4, v{d}''')

    def W(s, dst, k, base=None, op='add_u32'):
        src = f'v{76 + k//2}'; sel = f'WORD_{k&1}'
        if base is None: s(f'v_mov_b32_sdwa v{dst}, {src} dst_sel:DWORD dst_unused:UNUSED_PAD src0_sel:{sel}')
        else: s(f'v_{op}_sdwa v{dst}, {base}, {src} dst_sel:DWORD dst_unused:UNUSED_PAD src0_sel:DWORD src1_sel:{sel}')
    def entry(s):
        s('s_cmp_ge_u32 s2, 256\ns_cbranch_scc1 Lend')
        if s.stamps: s('s_memtime s[100:101]\ns_memrealtime s[96:97]\nv_mov_b32 v3, 0'); s.wait_lg(0)
        s(f"""s_load_dwordx16 s[4:19], s[0:1], 0
        s_load_dwordx8 s[20:27], s[0:1], 64
        s_load_dwordx2 s[28:29], s[0:1], 96
        s_load_dwordx2 s[30:31], s[0:1], 112""")
        s('s_getpc_b64 s[94:95]')
        s.label('Lpc')
        s(f"""s_lshr_b32 s{sI}, s2, 3
        v_lshrrev_b32 v4, 6, v0
        v_and_b32 v{vL}, 63, v0""")
        s.cpf(0)
        s(f"""v_readfirstlane_b32 s{sW}, v4
        v_lshlrev_b32 v{vL16}, 4, v{vL}
        s_add_u32 s94, s94, @TAB_OFF@
        s_addc_u32 s95, s95, 0
        s_lshl_b32 s69, s2, 6
        s_add_u32 s69, s69, {2048 + 4224}
        v_lshl_add_u32 v5, v4, 3, s69
        global_load_dwordx2 v[84:85], v5, s[94:95]
        global_load_dwordx4 v[80:83], v{vL16}, s[94:95] offset:1024
        global_load_dwordx4 v[76:79], v{vL16}, s[94:95]
        s_lshl3_add_u32 s68, s2, s{sW}
        v_and_b32 v6, 255, v0
        v_lshlrev_b32 v18, 4, v6
        global_load_dwordx4 v[66:69], v18, s[94:95] offset:2048
        global_load_ushort v70, v18, s[94:95] offset:2064
        s_and_b32 s{sXCD}, s2, 7
        s_mul_i32 s{sP}, s{sXCD}, 28
        s_add_u32 s{sP}, s{sP}, s{sI}
        s_min_u32 s{sP}, s{sP}, 223
        s_lshl_b32 s70, s{sP}, 10
        v_lshl_add_u32 v64, v0, 1, s70
        s_mul_i32 s73, s68, 896
        s_mov_b32 s{rX+2}, 896
        s_mov_b32 s{rX+3}, 0x20000
        s_mov_b32 s{rW+3}, 0x20000
        s_mov_b32 s{rWS+2}, {WS_BYTES}
        s_mov_b32 s{rWS+3}, 0x20000
        s_lshl_b32 s93, s{sW}, 11
        s_add_u32 s93, s93, {L_PK}
        s_lshl_b32 s71, s{sP}, 2
        s_mov_b32 s72, {EP}
        s_add_u32 s{rX}, s{sX}, s73
        s_addc_u32 s{rX+1}, s{sX+1}, 0
        buffer_load_dwordx4 v[28:31], v{vL16}, {sr(rX)}, 0 offen""")
        if s.stamps: s('v_writelane_b32 v3, s100, 0\nv_writelane_b32 v3, s96, 60')
        s.stamp(1)
        s(f"""s_load_dword s{sTAG}, {sr(sWS,2)}, s72
        s_load_dword s{sLDT}, {sr(sDT,2)}, s71
        s_load_dword s{sD1}, {sr(sDS,2)}, s71
        global_load_ushort v60, v64, {sr(sLA,2)}
        global_load_ushort v61, v64, {sr(sAI,2)}
        global_load_ushort v62, v64, {sr(sCR,2)}
        global_load_ushort v63, v64, {sr(sCI,2)}
        v_readfirstlane_b32 s90, v84
        v_readfirstlane_b32 s91, v85
        s_lshr_b32 s43, s90, 24
        s_and_b32 s90, s90, 0xffffff
        s_bitcmp1_b32 s43, 0
        s_cselect_b64 s[20:21], s[22:23], s[20:21]
        s_cselect_b64 s[24:25], s[26:27], s[24:25]
        s_cmp_eq_u32 s43, 2
        s_cselect_b64 vcc, -1, 0
        s_movk_i32 s89, 896
        s_cmovk_i32 s89, 3584
        s_cmp_lt_u32 s43, 2
        s_cselect_b64 {sr(rW,2)}, s[20:21], s[24:25]
        s_cselect_b32 s{rW+2}, {448*896}, 0
        s_cselect_b64 s[72:73], -1, 0
        s_lshl4_add_u32 s89, s89, s90
        s_mov_b32 s{rWS}, s{sWS}
        s_mov_b32 s{rWS+1}, s{sWS+1}
        v_cndmask_b32_sdwa v23, v81, v82, vcc dst_sel:DWORD dst_unused:UNUSED_PAD src0_sel:WORD_1 src1_sel:WORD_0""")
        if s.cfg.dma_at >= 0: s.pack_dma()

    def cpf(s, once):
        l = s.lab('cp')
        s(f'v_lshl_add_u32 v7, v0, 8, s2' if once else f'v_lshl_add_u32 v7, v0, 5, s{sI}')
        s(f"""v_lshlrev_b32 v7, 7, v7
        v_cmp_gt_u32 vcc, @CODE_BYTES@, v7
        s_and_saveexec_b64 s[70:71], vcc
        s_cbranch_execz {l}""")
        s.raw('    global_load_dword v255, v7, s[94:95]')
        s.label(l)
        s('s_mov_b64 exec, -1')
    def clear(s):
        for i in range(4): s(f'v_mov_b32 v{72+i}, -1')
        s.hstore(72)
    def hstore(s, r): return s(f'buffer_store_dwordx4 {vr(r)}, v12, {sr(rWS)}, s{sHD} offen sc1')

    def setup(s):
        s.comment('offsets and lane addresses (in the shadow of the first loads)')
        assert L_U % 512 == 0
        s(f"""s_mov_b64 vcc, s[72:73]
        s_lshr_b32 s{sPD1}, s91, 16
        s_lshl_b32 s{sPD1}, s{sPD1}, 10
        v_cndmask_b32_sdwa v24, v81, v80, vcc dst_sel:DWORD dst_unused:UNUSED_PAD src0_sel:WORD_0 src1_sel:WORD_1
        s_and_b32 s{sPD0}, s91, 0xffff
        s_lshl_b32 s{sPD0}, s{sPD0}, 10
        v_mul_u32_u24 v71, 1171, v0
        s_lshl_b32 s70, s{sW}, 7
        v_add_u32 v24, s93, v24""")
        s.W(27, 13, 's70')
        s(f"""s_mul_i32 s70, s{sW}, {LNP}
        v_lshrrev_b32 v71, 16, v71
        v_add_u32 v26, s70, v{vL16}
        s_mul_i32 s70, s2, 896
        s_lshl_b32 s71, s{sW}, 10
        v_mul_u32_u24 v71, {229376 - 896}, v71
        s_add_u32 s70, s70, s71
        s_add_u32 s{sUO}, s70, {GX}
        v_add_u32 v71, v71, v{vL16}""")
        s.W(12, 5, 4, 'lshlrev_b32')
    def setup_b(s):
        s(f"""s_lshl_b32 s71, s{sW}, 10
        s_lshl4_add_u32 s{sFO}, s2, {FA}
        s_add_u32 s{sUM}, s71, {L_U + 1024}
        v_add_u32 v13, s71, v{vL16}
        s_lshl_b32 s70, s{sW}, 13
        v_add_u32 v14, s70, v{vL16}
        s_lshl_b32 s70, s{sW}, 9
        s_mul_i32 s72, s{sXCD}, {FCP}
        s_add_u32 s70, s70, s72
        s_add_u32 s70, s70, {FA}
        v_and_b32 v17, 0x1f0, v{vL16}
        v_add_u32 v17, s70, v17
        s_mul_i32 s{sKG}, s{sW}, {16*KGP}
        s_add_u32 s{sKG}, s{sKG}, {L_KG}""")
        s.W(20, 8, f's{sKG}'); s.W(10, 3); s.W(11, 4); s.W(15, 6, f's{sUM}')
        s(f"""s_and_b32 s70, s{sW}, 3
        s_lshr_b32 s71, s{sW}, 2
        s_mul_i32 s73, s71, {KECH}
        s_add_u32 s73, s73, {L_KE}
        v_add_u32 v18, s73, v18
        s_lshl_b32 s72, s70, 7
        s_sub_u32 s72, s73, s72
        s_add_u32 s72, s72, {4*(1015 - 144) - 28}""")
        s.W(4, 0, 's72')
        s(f"""s_lshl_b32 s72, s70, 8
        s_sub_u32 s72, {L_U}, s72
        v_xor_b32 v16, 16, v15""")
        s.W(8, 1, 's72'); s.W(9, 2, 's72')
        s(f"""s_xor_b32 s72, s70, s71
        s_and_b32 s72, s72, 1
        s_lshl_b32 s72, s72, 4
        v_subrev_u32 v5, 1024, v4
        v_subrev_u32 v6, 2048, v4
        v_subrev_u32 v7, 3072, v4
        v_xor_b32 v8, s72, v8
        v_xor_b32 v9, s72, v9
        s_lshl_b32 s72, s70, 2
        s_mul_i32 s70, s71, {KTSZ}
        s_add_u32 s70, s70, {L_KT}
        s_mov_b32 s73, {L_KE + 4096}""")
        s.W(19, 7, 's72', 'xor_b32'); s.W(88, 14, 's73')
        s(f"""v_mov_b32 v84, 0
        v_mov_b32 v85, 0
        v_mov_b32 v86, 0
        v_mov_b32 v87, 0
        v_add_u32 v19, s70, v19
        v_add_u32 v89, {L_U}, v{vL16}
        v_mov_b32 v90, s70
        ds_write_b128 v88, v[84:87]
        ds_write_b128 v89, v[84:87]
        ds_write_b128 v90, v[84:87] offset:{768*16}""")
        for t in range(9):
            s(f'v_add_u32_sdwa v{132+t}, s70, v{66+t//2} dst_sel:DWORD dst_unused:UNUSED_PAD src0_sel:DWORD src1_sel:WORD_{t&1}')
    def scalars(s):
        return f"""s_mov_b32 s{rG}, s{sWS}
        s_mov_b32 s{rG+1}, s{sWS+1}
        s_cmp_eq_u32 s{sW}, 7
        s_cselect_b32 s{rG+2}, 0, {WS_BYTES}
        s_mov_b32 s{rG+3}, 0x20000
        s_mul_i32 s{sHD}, s{sW}, 229376
        s_lshl_b32 s68, s{sP}, 7
        s_add_u32 s{sHD}, s{sHD}, s68
        s_add_u32 s{sHD}, s{sHD}, {X1}
        s_lshr_b32 s68, s{sI}, 2
        s_lshl3_add_u32 s{sTB}, s{sXCD}, s68
        s_and_b32 s{sQ}, s{sI}, 3
        s_lshr_b32 s{sCL}, s{sTB}, 1
        s_and_b32 s{sM}, s{sI}, 7
        s_mul_i32 s{sCT}, s{sQ}, 7
        s_add_u32 s{sCT}, s{sCT}, s{sW}
        s_mul_i32 s{sA1}, s{sCT}, {14*1024}
        s_add_u32 s{sA2}, s{sA1}, {W2P}
        s_mul_i32 s{sA3}, s{sM}, 7
        s_add_u32 s{sA3}, s{sA3}, s{sW}
        s_mul_i32 s{sA4}, s{sA3}, {28*1024}
        s_add_u32 s{sA3}, s{sA4}, {W3P}
        s_add_u32 s{sA4}, s{sA4}, {W4P}
        s_lshl3_add_u32 s{sUS}, s{sXCD}, s{sW}
        s_mul_i32 s{sUS}, s{sUS}, 28672
        s_lshl_b32 s68, s{sI}, 5
        s_add_u32 s{sUS}, s{sUS}, s68
        s_add_u32 s{sUS}, s{sUS}, {GX}
        s_lshl_b32 s{sSM}, s{sW}, 11
        s_add_u32 s{sSM}, s{sSM}, {SM}
        s_mov_b32 s{sFAST}, 0
        s_and_b32 s68, s43, 6
        s_cmp_eq_u32 s68, 2
        s_cselect_b32 s{rW+2}, {448*3584}, 0
        s_cselect_b32 s{sPACT}, {WS_BYTES}, 0"""
    def h2_addr(s):
        return f"""v_min_u32 v18, 503, v0
        v_mul_u32_u24 v19, 7282, v18
        v_lshrrev_b32 v19, 16, v19
        v_mul_u32_u24 v20, 9, v19
        v_sub_u32 v20, v18, v20
        s_and_b32 s70, s{sQ}, 1
        s_lshl3_add_u32 s70, s{sTB}, s70
        s_sub_u32 s70, s70, 1
        v_mul_u32_u24 v22, 768, v19
        v_lshrrev_b32 v18, 2, v20
        v_lshl_add_u32 v22, v18, 8, v22
        v_and_b32 v18, 3, v20
        v_lshl_add_u32 v22, v18, 4, v22
        v_add_u32 v22, {L_HI}, v22
        v_add_u32 v20, s70, v20
        s_movk_i32 s70, 511
        v_med3_i32 v20, v20, 0, s70
        v_lshrrev_b32 v18, 3, v20
        v_mul_u32_u24 v21, 28672, v18
        v_lshl_add_u32 v21, v19, 9, v21
        v_and_b32 v18, 7, v20
        v_lshl_add_u32 v21, v18, 4, v21
        s_mov_b32 s88, {X1}
        v_add_u32 v26, {FB - FA}, v17"""

    def pack_early(s):
        s.wait(s.h_pack)
        s(f"""ds_read_b64_tr_b16 v[52:53], v24
        ds_read_b64_tr_b16 v[54:55], v24 offset:256
        ds_read_b64_tr_b16 v[56:57], v24 offset:32
        ds_read_b64_tr_b16 v[58:59], v24 offset:288
        buffer_store_dwordx4 v[52:55], v{vL16}, {sr(rWS)}, s{sPD0} offen sc1
        buffer_store_dwordx4 v[56:59], v{vL16}, {sr(rWS)}, s{sPD1} offen sc1""")

    def ln(s):
        s.comment('layernorm of one token per wave')
        s('v_mov_b32 v51, 0x3f803f80\nv_dot2_f32_bf16 v48, v28, v51, 0')
        s.stamp(2)
        s('v_dot2_f32_bf16 v49, v28, v28, 0')
        for i in (29, 30, 31): s(f'v_dot2_f32_bf16 v48, v{i}, v51, v48\nv_dot2_f32_bf16 v49, v{i}, v{i}, v49')
        un = []
        for i in range(4): un += [f'v_lshlrev_b32 v{32+2*i}, 16, v{28+i}', f'v_and_b32 v{33+2*i}, 0xffff0000, v{28+i}']
        s(un.pop()); s(un.pop()); s(f'v_mov_b32 v50, {INVD}')
        for m in ('row_shr:1', 'row_shr:2', 'row_shr:4', 'row_shr:8', 'row_bcast:15 row_mask:0xa', 'row_bcast:31 row_mask:0xc'):
            s(f'v_add_f32_dpp v48, v48, v48 {m}\nv_add_f32_dpp v49, v49, v49 {m}')
            s(un.pop())
        s(f"""v_readlane_b32 s70, v48, 63
        v_readlane_b32 s71, v49, 63
        s_lshl_b32 s72, s{sW}, 3
        v_mov_b32 v65, s72
        v_mul_f32 v49, s70, v50
        v_mul_f32 v48, s71, v50
        v_fma_f32 v48, -v49, v49, v48
        v_max_f32 v48, 0, v48
        v_add_f32 v48, {EPS}, v48
        v_rsq_f32 v50, v48
        s_mov_b32 exec_hi, 0x00ffffff
        v_mul_f32 v51, -v49, v50""")
        for i in range(4): s(f'v_pk_fma_f32 {vr(40+2*i,2)}, {vr(32+2*i,2)}, v[50:51], v[50:51] op_sel:[0,0,1] op_sel_hi:[1,0,1]')
        for i in range(4): s(f'v_cvt_pk_bf16_f32 v{28+i}, v{40+2*i}, v{41+2*i}')
        s(f"""ds_write_b128 v26, v[28:31] offset:{L_LN}
        v_mul_f32 v48, v48, v50
        ds_write_b64 v65, v[48:49] offset:{L_SM}
        s_mov_b32 exec_hi, -1
        s_lshr_b32 s{sTAG}, s{sTAG}, 4
        s_mul_i32 s{sTAG}, s{sTAG}, 1664525
        s_add_u32 s{sTAG}, s{sTAG}, 1013904223
        s_lshl_b32 s{sTAG}, s{sTAG}, 4
        s_getreg_b32 s70, hwreg(HW_REG_XCC_ID, 0, 4)
        s_add_u32 s{sTX}, s70, s{sTAG}""")
        s.barrier()
        s(f'ds_read_b64_tr_b16 v[48:49], v27 offset:{L_LN}\nds_read_b64_tr_b16 v[50:51], v27 offset:{L_LN + 4*LNP}')
        s.cond(f's_cmp_lg_u32 s{sW}, 7', lambda: s(f's_mov_b64 exec, 15\nds_read_b128 v[48:51], v{vL16} offset:{L_SM}\nv_mov_b32 v71, v{vL16}\ns_lshl_b32 s{sUO}, s2, 6\ns_add_u32 s{sUO}, s{sUO}, {SM}'))
        s(f'buffer_store_dwordx4 v[48:51], v71, {sr(rWS)}, s{sUO} offen sc1\ns_mov_b64 exec, -1')
        s.stamp(3)
        s.wait(*[h for h, r in s.vm if r])
        s.stamp(40)
        s.cond(f's_cmp_ge_u32 s43, 2', s.pack_early)

    def pack_dma(s):
        s(f's_mov_b32 m0, s93\nbuffer_load_dwordx4 v23, {sr(rW)}, s90 offen lds\ns_add_u32 m0, s93, 1024')
        s.h_pack = s(f'buffer_load_dwordx4 v23, {sr(rW)}, s89 offen lds')
    def publish_a(s, conv=True):
        s.wait_vm(0, force=True)
        s('s_barrier')
        s.stamp(5)
        s.gflag8(0, sFO, sTX, 118)
        s(f's_lshl4_add_u32 s{sFO}, s2, {FB}')
        if s.cfg.dma_at == 1: s.pack_dma(); s(f's_mov_b32 m0, s{sKG}')
    def pack_late_store(s):
        P = 76 if s.cfg.pst_at >= 6 else 28
        s.wait(s.h_pack)
        for e in range(4): s(f'ds_read_b64_tr_b16 {vr(P+2*e,2)}, v24 offset:{1024*(e>>1) + 256*(e&1)}')
        s(f"""s_mov_b32 s{rW}, s{sWS}
        s_mov_b32 s{rW+1}, s{sWS+1}
        s_mov_b32 s{rW+2}, s{sPACT}
        buffer_store_dwordx4 {vr(P)}, v{vL16}, {sr(rW)}, s{sPD0} offen sc1""")
        s.h_pst = s(f'buffer_store_dwordx4 {vr(P+4)}, v{vL16}, {sr(rW)}, s{sPD1} offen sc1')

    def cm(s, d, a, b, t):
        return [f'v_pk_mul_f32 {vr(t,2)}, {vr(a,2)}, {vr(b,2)} op_sel_hi:[1,0]',
                f'v_pk_fma_f32 {vr(d,2)}, {vr(a,2)}, {vr(b,2)}, {vr(t,2)} op_sel:[1,1,0] op_sel_hi:[0,1,1] neg_lo:[1,0,0]']
    def kgen(s):
        c = s.cfg
        assert c.fa_at <= c.poll_at <= c.chk_at
        Z = lambda k: 74 + 2 * k
        Z128, ZD, R0, R1, TT = 92, 94, 112, 114, 116
        CH = [(96, 98, 100, 102), (104, 106, 108, 110)]
        BF, AF, ACC = 156, (172, 188, 204), 220
        s(f"""s_lshl_b32 s70, s{sLDT}, 16
        s_and_b32 s71, s{sLDT}, 0xffff0000
        s_cmp_lt_u32 s{sW}, 4
        s_cselect_b32 s72, s70, s71
        s_mov_b32 s70, {LOG2E}
        s_mov_b32 s71, {INV2PI}
        v_mov_b32 v64, s72
        v_lshlrev_b32 v60, 16, v60
        v_mul_f32 v64, s70, v64
        v_mul_f32 v60, s70, v60
        v_exp_f32 v64, v64
        v_exp_f32 v60, v60
        v_lshlrev_b32 v61, 16, v61
        v_lshlrev_b32 v62, 16, v62
        v_lshlrev_b32 v63, 16, v63
        v_cvt_pk_bf16_f32 v64, v64, v60
        v_and_b32 v60, 0xffff0000, v64
        v_lshlrev_b32 v64, 16, v64
        v_pk_mul_f32 v[60:61], v[60:61], v[64:65] op_sel_hi:[1,0]
        v_add_f32 v64, v64, v64
        v_pk_mul_f32 v[60:61], v[60:61], s[70:71]
        v_pk_mul_f32 {vr(R0,2)}, v[62:63], v[64:65] op_sel_hi:[1,0]
        s_mov_b32 m0, s{sKG}
        s_mov_b32 s70, 0x41000000
        s_mov_b32 s71, 0x43000000
        v_pk_mul_f32 v[62:63], v[60:61], s[70:71] op_sel_hi:[1,0]
        v_pk_mul_f32 v[64:65], v[60:61], s[70:71] op_sel:[0,1]
        s_lshl_b32 s{sD0}, s{sD1}, 16
        s_and_b32 s{sD1}, s{sD1}, 0xffff0000""")
        for r in (62, 64, 60): s(f'v_exp_f32 v{r}, -v{r}\nv_fract_f32 v{r+1}, v{r+1}')
        for r, d in ((62, Z(8)), (64, Z128), (60, Z(1))): s(f'v_cos_f32 v{d}, v{r+1}\nv_sin_f32 v{d+1}, v{r+1}')
        for r, d in ((62, Z(8)), (64, Z128), (60, Z(1))): s(f'v_pk_mul_f32 {vr(d,2)}, {vr(d,2)}, {vr(r,2)} op_sel_hi:[1,0]')
        s.stamp(4)
        def chain(st, rows, start, mul, neg=False):
            a, b, t, pk = CH[st]; out = []; cur, nxt = start, a
            for i, row in enumerate(rows):
                cc = s.cm(nxt, cur, mul, t) if i < len(rows) - 1 else []
                out += cc[:1] + [f'v_cvt_pk_bf16_f32 v{pk + (i&1)}, v{cur}, {"-" if neg else ""}v{cur+1}'] + cc[1:] + [f'ds_write_addtid_b32 v{pk + (i&1)} offset:{row*KGP}']
                cur, nxt = nxt, (b if nxt == a else a)
            return out
        def rd(dst):
            for ks in range(4): s(f'ds_read_b128 {vr(dst+4*ks)}, v20 offset:{64*ks}')
        E = lambda l: [s(x) for x in l]
        zz = zipl if c.two else (lambda *a: sum(a, []))
        def hook(k):
            if c.fa_at == k: s.publish_a()
            if c.pst_at == k and k < c.poll_at: s.pack_late_store()
            if c.poll_at == k:
                s.poll_issue(118, 17, 0)
                if c.upf: s(f'buffer_load_dword v119, v10, {sr(rWS)}, s{sUS} offen sc1')
            if c.chk_at == k:
                s.poll_check(118, 17, 0, c.fa_sleep)
                if s.stamps: s('v_writelane_b32 v3, s97, 58')
                s(f's_mov_b32 m0, s{sUM}')
                s.h_u = s(f'buffer_load_dwordx4 v10, {sr(rWS)}, s{sUS} offen sc1 lds')
                if k < 4: s(f's_mov_b32 m0, s{sKG}')
                s.stamp(8)
            if c.pst_at == k and k >= c.poll_at: s.pack_late_store()
        hook(0)
        if c.two:
            E(zipl(s.cm(ZD, Z(8), Z(8), 100), s.cm(R1, R0, Z(8), 108), s.cm(Z(2), Z(1), Z(1), TT)))
            E(zipl(chain(0, range(0, 16, 2), R0, ZD, True), chain(1, range(1, 16, 2), R1, ZD, True)))
            rd(BF)
            E(zipl(s.cm(ZD, Z128, Z128, 100), s.cm(R1, Z(8), Z128, 108), s.cm(Z(4), Z(2), Z(2), TT)))
            hook(1); s.stamp(35)
            E(zipl(chain(0, range(0, 16, 2), Z(8), ZD), chain(1, range(1, 16, 2), R1, ZD)))
        else:
            rc = chain(0, range(16), R0, Z(8), True)
            E(rc[:4*c.rsplit]); hook(0.5); E(rc[4*c.rsplit:])
            rd(BF)
            E(s.cm(Z(2), Z(1), Z(1), TT) + s.cm(Z(4), Z(2), Z(2), TT))
            hook(1); s.stamp(35)
            E(chain(0, range(16), Z(8), Z128))
        rd(AF[0])
        E(zipl(s.cm(Z(6), Z(4), Z(2), 100), s.cm(Z(3), Z(2), Z(1), 108), s.cm(Z(5), Z(4), Z(1), TT)))
        hook(2); s.stamp(36)
        E(zz(chain(0, range(0, 8), Z(4), Z128), chain(1, range(8, 12), Z(2), Z128) + chain(1, range(12, 16), Z(6), Z128), s.cm(Z(7), Z(6), Z(1), TT)))
        rd(AF[1])
        s.stamp(47); hook(3); s.stamp(37)
        E(zz(chain(0, (0, 1), Z(1), Z128) + chain(0, (4, 5), Z(5), Z128), chain(1, (2, 3), Z(3), Z128) + chain(1, (6, 7), Z(7), Z128)))
        s(f'v_mov_b32 v{TT}, 0x3f80\nds_write_addtid_b32 v{TT} offset:{8*KGP}')
        rd(AF[2])
        s.stamp(6); hook(4)
        if c.kbar: s('s_barrier')
        mf = lambda t, ks: f'v_mfma_f32_16x16x32_bf16 {vr(ACC+4*t)}, {vr(AF[t]+4*ks)}, {vr(BF+4*ks)}, {vr(ACC+4*t) if ks else 0}'
        wr = lambda t, r: f'ds_write_b32 v19, v{ACC+4*t+r} offset:{(16*t+r)*256}'
        if c.ktm:
            E([mf(0, k) for k in range(4)] + [mf(1, k) for k in range(4)] + zipl([mf(2, k) for k in range(4)], [wr(0, r) for r in range(4)]))
            E([wr(t, r) for t in (1, 2) for r in range(4)])
        else:
            E([mf(t, k) for k in range(4) for t in range(2)] + [mf(2, k) for k in range(4)] + [wr(t, r) for t in range(3) for r in range(4)])
        s.stamp(48); hook(5)
        s.barrier()
        s.stamp(7)
        hook(5.5)
        for t in range(9): s(f'ds_read_b128 {vr(28+4*t)}, v{132+t}')
        hook(6)
        if c.chk_at <= 5 and c.pst_at <= 6: s.feed(c.f_kt, 63)
        for t in range(9):
            s(f'v_pk_add_f32 {vr(28+4*t,2)}, {vr(28+4*t,2)}, {vr(30+4*t,2)}')
            if t: s(f'v_add_f32 v{24+4*t}, v{24+4*t}, v{25+4*t}')
        s('v_add_f32 v60, v60, v61')
        for i in range(4): s(f'v_cvt_pk_bf16_f32 v{64+i}, v{28+8*i}, v{32+8*i}')
        s('ds_write_b128 v18, v[64:67]')
        for i in range(4): s(f'v_cvt_pk_bf16_f32 v{68+i}, v{32+8*i}, v{36+8*i}')
        s(f'ds_write_b128 v18, v[68:71] offset:{KEO}')
        s.stamp(9); hook(7)

    def conv(s):
        c = s.cfg
        A, B, ACC = 28, 60, 92
        def rd(kind, slot, e, j):
            if kind == 'B': return [f'ds_read_b128 {vr(B+4*slot)}, v{8+e} offset:{1024*j}']
            off = 16 * (1 - e) + 128 * (1 - (j & 1))
            return [f'ds_read2_b32 {vr(A+4*slot+2*h,2)}, v{4+(j>>1)} offset0:{off+2*h} offset1:{off+2*h+1}' for h in range(2)]
        M = []
        for k in range(8):
            p1 = [(k, j) for j in range(k + 1) if k + j <= 7]; p2 = [(j, k) for j in range(k) if k + j <= 7]
            M += [(0, a, b) for a, b in p1 + p2]
        if c.cil:
            for nu in range(0, 8, 2): M += [(1, a, b) for a, b in zipl([(a, nu + 1 - a) for a in list(range(1, nu + 1)) + [0, nu + 1]], [(a, nu - a) for a in range(nu + 1)])]
        else:
            for nu in range(8): M += [(1, a, nu - a) for a in range(nu + 1)]
        slot = {(0, j): j for j in range(8)}
        for k in range(4, 8): slot[1, 2*(k-4)] = k; slot[1, 2*(k-4) + 1] = 7 - k
        ops = []
        for e in range(2):
            for j in range(8):
                for kind, ix in (('A', 1), ('B', 2)):
                    need = min(n for n, m in enumerate(M) if m[0] == e and m[ix] == j)
                    early = -1 if e == 0 else max(n for n, m in enumerate(M) if m[0] == 0 and m[ix] == slot[1, j])
                    ops += [(need, early, t) for t in rd(kind, slot[e, j], e, j)]
        ops.sort(key=lambda o: o[0])
        D = {n: [] for n in range(-1, 73)}
        pos = -1.0
        for i, (need, early, t) in enumerate(ops):
            if i < c.chead: D[-1].append(t); continue
            pos = max(pos + c.cpace, early)
            pos = max(min(pos, need - c.clead), early)
            D[int(pos)].append(t)
        done = {nu: max(n for n, m in enumerate(M) if m[1] + m[2] == nu) for nu in range(8)}
        at = c.cy0
        for nu in range(8):
            at = max(at, done[nu] + 3)
            D[min(int(at), 72)].append(f'ds_write_b128 v13, {vr(ACC+4*nu)} offset:{L_Y + 8192*nu}')
            at += c.cyp
        s.wait(s.h_u); s.barrier(); s.stamp(10)
        for t in D[-1]: s(t)
        ex = s.spread(c.f_conv, 66, 4)
        bs = ['ds_read_b64 v[140:141], v15', 'ds_read_b64 v[142:143], v16', '', '', '', '']
        for i in range(4): bs += [f'v_lshlrev_b32 v{132+2*i}, 16, v{140+i}', f'v_and_b32 v{133+2*i}, 0xffff0000, v{140+i}']
        for ch in range(2):
            bs += [f'v_add_f32 v{140+r}, s{sD0+ch}, v{124+2*r}' for r in range(4)]
            bs += [f'v_fma_f32 v{132+4*ch+r}, v{132+4*ch+r}, v{140+r}, v{125+2*r}' for r in range(4)]
        ha = s.h2_addr().split('\n')
        seen = set()
        for n, (e, a, b) in enumerate(M):
            nu = a + b
            s.fair(n, c.fc)
            s(f'v_mfma_f32_16x16x32_bf16 {vr(ACC+4*nu)}, {vr(A+4*slot[e, a])}, {vr(B+4*slot[e, b])}, {vr(ACC+4*nu) if nu in seen else 0}')
            seen.add(nu)
            for t in D[n]: s(t)
            if n == 1: s(f'buffer_load_dwordx4 v[124:127], v11, {sr(rWS)}, s{sSM} offen sc1')
            if n == 2: s(f'buffer_load_dwordx4 v[128:131], v11, {sr(rWS)}, s{sSM} offen offset:16 sc1\ns_lshl_b32 s68, s2, 6\ns_add_u32 s68, s68, {FH}')
            if ex: ex.pop(0)()
            if n >= 4 and ha: s(ha.pop(0))
            if n >= 40 and bs: s(bs.pop(0))
        if c.fc: s('s_setprio 0')
        for t in D[72]: s(t)
        assert not bs and not ha
        s.stamp(38)
        s.barrier(); s.stamp(11)
        for i in (0, 4, 1, 5, 2, 6, 3, 7): s(f'ds_read_b128 {vr(A+4*i)}, v14 offset:{L_Y + 1024*i}')
        s.gflag8(6, sFO, sTAG, 23)
        if c.hint_at == 8: s.gflag(7, 68, sTAG, 17, False)
        for i in (0, 4, 1, 5, 2, 6, 3, 7):
            ch = i >> 2
            for h in range(2): s(f'v_pk_add_f32 {vr(132+4*ch+2*h,2)}, {vr(132+4*ch+2*h,2)}, {vr(A+4*i+2*h,2)}')
        for r in range(4): s(f'v_cvt_pk_bf16_f32 v{140+r}, v{132+r}, v{136+r}')
        h = s.hstore(140)
        s.stamp(12)
        s.feed(c.f_hst, 63)
        return h

    def nonconv(s):
        c = s.cfg
        s(f'v_lshlrev_b32 v15, 7, v{vL}')
        if c.sb_at == 1: s.setup_b()
        s(f'v_lshlrev_b32 v15, 7, v{vL}')
        s(s.h2_addr())
        if c.dma_at == 0: s.pack_dma()
        s.publish_a(False)
        s.pack_late_store()
        s.poll(18, 17, 0, sleep=8)
        s.barrier(); s.stamp(8)
        s.gflag8(1, sFO, sTAG, 118)
        s(f's_add_u32 s70, s{sA2}, {14*1024 - 8192}')
        s.feed(c.f_hst, c.nc_depth)
        if c.warm: s(f'buffer_load_dword v119, v15, {sr(rG)}, s70 offen')
        s.wait_vm(0); s.stamp(10)
    def hint_wait(s):
        def body():
            s(f's_lshl_b32 s68, s2, 6\ns_add_u32 s68, s68, {FH - 32*64}\nv_mov_b32 v9, 0')
            s.poll(8, 9, 's68', 1, 0, sleep=4)
        s.cond(f's_cmp_lt_u32 s{sI}, 28', body)

    def h2(s, behind, mid=lambda: None):
        ld = [f'buffer_load_dwordx4 {vr(8+4*j)}, v4, {sr(rWS)}, s88 offen offset:{128*j} sc1' for j in range(4)]
        chk = [f'v_max3_u32 v24, v{8+2*i}, v{9+2*i}, {"v24" if i else "v8"}' for i in range(8)] + ['v_cmp_eq_u32 vcc, -1, v24']
        if s.cfg.hdel: s(f's_sleep {s.cfg.hdel}')
        for l in ld: s(l)
        s.poll_issue(25, 26, 0)
        mid()
        for l in chk: s(l)
        retry, back = s.lab('hr'), s.lab('hb')
        s(f's_mov_b32 s97, 0\ns_cbranch_vccnz {retry}')
        s.label(back)
        s.ool.append(f'{retry}:\n' + ('    s_mov_b64 exec, vcc\n' if s.cfg.hmask else '') + ''.join(f'    {l}\n' for l in ld) + f'    s_add_u32 s97, s97, 1\n    s_cmp_gt_u32 s97, {SPIN}\n    s_waitcnt vmcnt(0)\n    s_cbranch_scc1 {back}\n'
                     + ''.join(f'    {l}\n' for l in chk) + f'    s_nop 1\n    s_cbranch_vccnz {retry}\n    s_branch {back}\n')
        if s.cfg.hmask: s('s_mov_b64 exec, -1')
        if s.stamps: s('v_writelane_b32 v3, s97, 59')
        s.stamp(14)
        behind()
        for j in range(4):
            for i in range(j): s(f'v_swap_b32 v{8+4*j+i}, v{8+4*i+j}')
        for i in range(4): s(f'ds_write_b128 v5, {vr(8+4*i)} offset:{64*i}')
        s.poll_check(25, 26, 0, 2)
        if s.stamps: s('v_writelane_b32 v3, s97, 57')

    def stats_tail(s, a, extra, vadr, tab):
        s('s_mov_b64 exec, -1')
        for t in range(3): s(f'v_cndmask_b32 v{a+4*t}, v{a+4*t}, v{a+4*t+1}, s[92:93]')
        for t in range(3): s(f'v_cndmask_b32 v{a+4*t}, v{a+4*t}, v{a+4*t+2}, s[94:95]')
        for t in (1, 2):
            s(f'v_mov_b32_dpp v{a+4*t+1}, v{a+4*t+3} row_ror:{4*t}\nv_mov_b32_dpp v{a+4*t+2}, v{a+4*t} row_ror:{4*t}')
        for t in (1, 2):
            s(f'v_cndmask_b32 v{a+3}, v{a+3}, v{a+4*t+1}, {sr(76+2*t,2)}\nv_cndmask_b32 v{a}, v{a}, v{a+4*t+2}, {sr(76+2*t,2)}')
        s(f'''s_mov_b32 exec_lo, 0x77700777
        s_mov_b32 exec_hi, 0x70777707
        v_mul_f32 v{a+3}, s96, v{a+3}
        v_mul_f32 v{a}, s96, v{a}
        v_fma_f32 v{a}, -v{a+3}, v{a+3}, v{a}
        v_max_f32 v{a}, 0, v{a}
        v_add_f32 v{a+1}, {EPS}, v{a}
        v_rsq_f32 v{a+1}, v{a+1}''')
        if extra:
            s(f'''v_mul_f32 v{a}, v{a}, v{a+1}
            v_mov_b32 v50, v{a+1}
            v_mul_f32 v51, -v{a+3}, v{a+1}
            v_fmaak_f32 v{a}, v{a}, v{a+1}, {EPS}
            v_rsq_f32 v{a}, v{a}
            ds_write_b64 v{extra}, v[50:51] offset:{tab // 2}
            v_mul_f32 v{a+1}, v{a+1}, v{a}''')
        if not extra:
            s(f'''v_cvt_pk_bf16_f32 v{a}, -v{a+3}, -v{a+3}
            v_mul_f32 v{a+2}, {fh(C1)}, v{a+1}
            v_and_b32 v51, 0xffff0000, v{a}
            v_add_f32 v51, v51, v{a+3}
            v_rcp_f32 v{a+3}, v{a+1}
            v_mul_f32 v{a+1}, v{a+1}, v{a+1}
            v_mul_f32 v{a+1}, v{a+1}, v{a+2}
            v_and_b32 v{a+3}, 0xffffff7f, v{a+3}
            v_mul_f32 v{a+1}, {fh(0.044715)}, v{a+1}
            v_and_b32 v{a+2}, 0xffffff7f, v{a+2}
            v_and_b32 v{a+1}, 0xffffff7f, v{a+1}
            ds_write_b128 v{vadr}, {vr(a)} offset:{tab}
            v_cvt_pk_bf16_f32 v{a}, -v51, -v51
            ds_write_b128 v{vadr}, {vr(a)} offset:{tab + 512}''')
            return
        s(f'''v_rcp_f32 v{a+2}, v{a+1}
        v_mul_f32 v{a}, {fh(C1)}, v{a+1}
        v_mul_f32 v{a+1}, v{a+1}, v{a+1}
        v_mul_f32 v{a+1}, v{a+1}, v{a}
        v_mul_f32 v{a+1}, {fh(0.044715)}, v{a+1}
        ds_write_b128 v{vadr}, {vr(a)} offset:{tab}''')
    def gelu_pk(s, acc, cs, st, n, t, out):
        P = range(0, n, 2); o = []
        o += [f'v_pk_fma_f32 {vr(acc+i,2)}, {vr(cs+i,2)}, {vr(st+2,2)}, {vr(acc+i,2)} op_sel:[0,1,0] op_sel_hi:[1,1,1] neg_lo:[0,1,0] neg_hi:[0,1,0]' for i in P]
        o += [f'v_pk_mul_f32 {vr(t+i,2)}, {vr(acc+i,2)}, {vr(acc+i,2)}' for i in P]
        o += [f'v_pk_fma_f32 {vr(t+i,2)}, {vr(t+i,2)}, {vr(st,2)}, {vr(st,2)} op_sel:[0,1,0] op_sel_hi:[1,1,0]' for i in P]
        o += [f'v_pk_mul_f32 {vr(t+i,2)}, {vr(t+i,2)}, {vr(acc+i,2)}' for i in P]
        o += [f'v_exp_f32 v{t+i}, v{t+i}' for i in range(n)]
        o += [f'v_pk_fma_f32 {vr(t+i,2)}, {vr(t+i,2)}, {vr(st+2,2)}, {vr(st+2,2)} op_sel_hi:[1,0,0]' for i in P]
        o += [f'v_rcp_f32 v{t+i}, v{t+i}' for i in range(n)]
        o += [f'v_pk_mul_f32 {vr(t+i,2)}, {vr(t+i,2)}, {vr(acc+i,2)}' for i in P]
        o += [f'v_cvt_pk_bf16_f32 v{out+i//2}, v{t+i}, v{t+i+1}' for i in P]
        return o
    def gelu_sc(s, acc, cs, st, n, t, out, ex):
        steps = [lambda i: f'v_fma_f32 v{acc+i}, -v{cs+i}, v{st+3}, v{acc+i}', lambda i: f'v_mul_f32 v{t+i}, v{acc+i}, v{acc+i}',
                 lambda i: f'v_fma_f32 v{t+i}, v{t+i}, v{st+1}, v{st}', lambda i: f'v_mul_f32 v{t+i}, v{t+i}, v{acc+i}',
                 lambda i: f'v_exp_f32 v{t+i}, v{t+i}', lambda i: f'v_fma_f32 v{t+i}, v{t+i}, v{st+2}, v{st+2}',
                 lambda i: f'v_rcp_f32 v{t+i}, v{t+i}', lambda i: f'v_mul_f32 v{t+i}, v{t+i}, v{acc+i}',
                 lambda i: f'v_cvt_pk_bf16_f32 v{out+i//2}, v{t+i}, v{t+i+1}' if i % 2 == 0 else '']
        for f in steps:
            ex.pop(0)()
            for i in range(n): s(f(i))
    def gemm16(s, W, acc, vaddr, kstride, first_zero, ex):
        seq = [(ks, t) for ks in range(14) for t in range(2)]
        def rd(i): ks, t = seq[i]; s(f'ds_read_b128 {vr(8+4*(i%4))}, v{vaddr} offset:{ks*kstride + 256*t}')
        for i in range(3): rd(i)
        for i, (ks, t) in enumerate(seq):
            if i + 3 < 28: rd(i + 3)
            c = 0 if (first_zero and ks == 0) else vr(acc + 4*t)
            s.fair(i, s.cfg.fg)
            s(f'v_mfma_f32_16x16x32_bf16 {vr(acc+4*t)}, {vr(W+4*ks)}, {vr(8+4*(i%4))}, {c}')
            if ex: ex.pop(0)()
        if s.cfg.fg: s('s_setprio 0')
    def gemm32(s, jobs, vaddr, extra=None, nb=4, buf=8):
        seq = [(j, i) for j, job in enumerate(jobs) for i in range(job[1])]
        ex = list(extra or [])
        def rd(n): j, i = seq[n]; s(f'ds_read_b128 {vr(buf+4*(n%nb))}, v{vaddr} offset:{jobs[j][3] + 1024*i}')
        if s.cfg.prio: s('s_setprio 1')
        for n in range(nb - 1): rd(n)
        for n, (j, i) in enumerate(seq):
            W, nk, acc, _, after = jobs[j]
            if n + nb - 1 < len(seq): rd(n + nb - 1)
            s(f'v_mfma_f32_32x32x16_bf16 {vr(acc,16)}, {vr(W+4*i)}, {vr(buf+4*(n%nb))}, {vr(acc,16) if i else 0}')
            if ex: ex.pop(0)()
            if i == nk - 1 and after: ex += [lambda: None] * 3 + after
        s('s_setprio 0')
        s.run(ex)
    def cs3(s, a, b):
        for ks in range(a, b): s(f'v_mfma_f32_16x16x32_bf16 v[32:35], v[196:199], {vr(vW3+4*ks)}, {"v[32:35]" if ks else 0}')

    def g_pre(s):
        s.comment('G wave addresses (v6 GEMM1 B, v7 residual h, v50/v51 stats, masks)')
        s(f'''s_lshl_b32 s70, s{sQ}, 2
        s_lshr_b32 s71, 0x2213, s70
        s_and_b32 s71, s71, 15
        s_lshr_b32 s72, 0x0404, s70
        s_and_b32 s72, s72, 15
        v_and_b32 v44, 15, v{vL}
        v_lshrrev_b32 v45, 4, v{vL}
        v_add_u32 v46, s71, v44
        v_add_u32 v47, s72, v44''')
        s.pos(6, 46, 48)
        s(f'v_mul_u32_u24 v48, 768, v45\nv_add_u32 v6, v6, v48\nv_add_u32 v6, {L_HI}, v6')
        s.pos(7, 47, 48)
        s(f'''v_lshrrev_b32 v48, 1, v45
        s_lshl_b32 s73, s{sCT}, 1
        v_add_u32 v48, s73, v48
        v_mul_u32_u24 v48, 768, v48
        v_and_b32 v49, 1, v45
        v_lshl_add_u32 v48, v49, 3, v48
        v_add_u32 v7, v7, v48
        v_add_u32 v7, {L_HI}, v7
        s_sub_u32 s73, s71, s72
        s_lshl_b32 s70, s{sTB}, 5
        s_add_u32 s73, s73, s70
        v_add_u32 v48, s73, v44
        v_add_u32 v49, 16, v48
        s_movk_i32 s70, 2048
        v_cmp_gt_u32 {sr(sM0,2)}, s70, v48
        v_cmp_gt_u32 {sr(sM1,2)}, s70, v49
        v_lshlrev_b32 v50, 4, v46
        v_add_u32 v50, {L_STA}, v50
        v_lshlrev_b32 v51, 3, v47
        v_add_u32 v51, {L_STB}, v51''')
        for j in range(3): s(f's_add_u32 s70, s{sQ}, {j+1}\ns_and_b32 s70, s70, 3\ns_mul_i32 s70, s70, 7\ns_add_u32 s70, s70, s{sW}\ns_lshl_b32 s{4+j}, s70, 10')
        s(f'''s_lshl_b32 s7, s{sW}, 10
        s_mul_i32 s8, s{sTB}, 28672
        s_add_u32 s8, s8, {GX}
        s_xor_b32 s9, s{sTB}, 1
        s_mul_i32 s9, s9, 28672
        s_add_u32 s9, s9, s7
        s_add_u32 s9, s9, {X1}
        s_lshl_b32 s10, s{sTB}, 5
        s_add_u32 s72, s10, s{sCT}
        s_add_u32 s10, s10, s{sW}
        s_and_b32 s11, s10, -33
        s_lshl_b32 s10, s10, 2
        s_add_u32 s10, s10, {F3}
        s_lshl_b32 s11, s11, 2
        s_add_u32 s11, s11, {F4}
        s_lshl_b32 s72, s72, 2
        s_add_u32 s73, s72, {F4}
        s_add_u32 s72, s72, {F3}
        s_lshl_b32 s69, s{sCT}, 10
        s_add_u32 s70, s69, s8
        s_add_u32 s71, s70, {X1 - GX}
        v_add_u32 v46, s69, v{vL16}
        v_and_b32 v47, 3, v{vL}
        v_mul_u32_u24 v47, 28, v47
        v_bfe_u32 v48, v{vL}, 2, 1
        v_lshl_add_u32 v47, v48, 7, v47''')
        for i in range(4): s(f'v_mov_b32 v{28+i}, 0x3f803f80')
        for ks in range(14): s(f'v_mfma_f32_16x16x32_bf16 v[32:35], {vr(vW1+4*ks)}, v[28:31], {"v[32:35]" if ks else 0}')

    def g_wave(s, hst):
        c = s.cfg
        assert c.f_hok <= 28
        s.g_pre()
        if c.hack: s.wait(hst)
        s.hint_wait()
        s.stamp(13)
        s.h2(lambda: s.feed(c.f_hok, 63), lambda: s.feed(c.f_hld, 63))
        s.barrier(); s.stamp(15)
        s(f'v_mov_b32 v4, {L_FAST}\nds_read_b32 v4, v4\nv_lshlrev_b32 v5, 4, v44\nv_lshl_add_u32 v5, v45, 9, v5')
        s.gemm16(vW1, 24, 6, 3072, True, s.spread(c.f_g1, 28))
        s(f'v_readfirstlane_b32 s{sFAST}, v4')
        n1 = max(0, s.wn - 28)
        s.barrier(); s.stamp(16)
        s('ds_read_b128 v[36:39], v50\nds_read_b128 v[40:43], v50 offset:256')
        for l in zipl(s.gelu_pk(24, 32, 36, 4, 8, 20), s.gelu_pk(28, 32, 40, 4, 12, 22)): s(l)
        s(f"""v_cndmask_b32 v20, 0, v20, {sr(sM0,2)}
        v_cndmask_b32 v22, 0, v22, {sr(sM1,2)}
        v_cndmask_b32 v21, 0, v21, {sr(sM0,2)}
        v_cndmask_b32 v23, 0, v23, {sr(sM1,2)}
        v_permlane16_swap_b32 v20, v22
        v_permlane16_swap_b32 v21, v23""")
        s.xstore([f'buffer_store_dwordx4 v[20:23], v{vL16}, {sr(rWS)}, s70 offen'])
        s.stamp(17)
        s(f"""ds_write_b128 v46, v[20:23] offset:{L_GI}
        ds_read_b64 v[8:9], v7
        ds_read_b64 v[10:11], v7 offset:256
        ds_read_b64 v[12:13], v51
        ds_read_b64 v[14:15], v51 offset:128""")
        s.flag(72)
        s.stamp(18)
        s.poll(4, 47, 's10', 15, 0)
        s.stamp(42)
        for j in range(3): hd = s(f's_add_u32 m0, s{4+j}, {L_GI}\ns_add_u32 s68, s{4+j}, s8\nbuffer_load_dwordx4 v{vL16}, {sr(rWS)}, s68 offen sc1 lds')
        if c.bar_a: s('s_barrier')
        s.feed(c.f_b3a, 63)
        for i in range(4): s(f'v_lshlrev_b32 v{vRES+2*i}, 16, v{8+i}\nv_and_b32 v{vRES+1+2*i}, 0xffff0000, v{8+i}')
        for i in range(4): s(f'v_pk_fma_f32 {vr(24+2*i,2)}, {vr(vRES+2*i,2)}, {vr(12+2*(i>>1),2)}, {vr(12+2*(i>>1),2)} op_sel:[0,0,1] op_sel_hi:[1,0,1]')
        s(f"""v_lshrrev_b32 v48, 2, v44
        v_xor_b32 v48, v48, v45
        v_and_b32 v48, 1, v48
        v_cmp_eq_u32 vcc, 0, v48
        v_mov_b32 v48, 0x3f803f80
        s_add_u32 s8, s8, {X1 - GX}
        v_cndmask_b32 v196, 0, v48, vcc
        v_cndmask_b32 v197, 0, v48, vcc
        v_cndmask_b32 v198, 0, v48, vcc
        v_cndmask_b32 v199, 0, v48, vcc""")
        n1 = min(n1, c.cs_a)
        s.cs3(0, n1)
        s.wait(hd); s.barrier(); s.stamp(19)
        s.gemm16(vW2, 24, 5, 2048, False, s.spread(c.f_g2, 14))
        n2 = min(28, s.wn - 28, n1 + c.cs_b)
        for i in range(4): s(f'v_cvt_pk_bf16_f32 v{20+i}, v{24+2*i}, v{25+2*i}')
        s('v_permlane16_swap_b32 v20, v22\nv_permlane16_swap_b32 v21, v23')
        s.xstore([f'buffer_store_dwordx4 v[20:23], v{vL16}, {sr(rWS)}, s71 offen'])
        s.stamp(20)
        s(f'ds_write_b128 v46, v[20:23] offset:{L_XI + 28672}')
        s(f"""v_mov_b32 v49, 0
        v_mov_b32 v50, 0
        v_mov_b32 v51, 0
        v_add_u32 v6, {L_XI}, v{vL16}
        s_lshl_b32 s70, s{sW}, 11
        s_add_u32 s70, s70, {L_HID}
        v_add_u32 v7, s70, v{vL16}
        v_add_u32 v44, {L_HID}, v{vL16}""")
        for i in range(8): s(f'v_add_f32 v{vRES+i}, v{vRES+i}, v{24+i}')
        s.flag(73)
        s.stamp(21)
        s.poll(4, 47, 's11', '0xff', 0)
        s.stamp(43)
        for j in range(4): hd = s(f's_add_u32 m0, s7, {L_XI + 7168*j}\ns_add_u32 s68, s9, {7168*j}\nbuffer_load_dwordx4 v{vL16}, {sr(rWS)}, s68 offen sc1 lds')
        if c.bar_a: s('s_barrier')
        for j in range(3): hx = s(f's_add_u32 m0, s{4+j}, {L_XI + 28672}\ns_add_u32 s68, s{4+j}, s8\nbuffer_load_dwordx4 v{vL16}, {sr(rWS)}, s68 offen sc1 lds')
        s.feed(c.f_b4a, 63)
        s.cs3(n1, n2)
        later = []
        for r, x in ((12, 1), (15, 0)):
            later.append(f"""s_xor_b32 s69, s{sTB}, {x}
            s_mul_i32 s70, s69, 28
            s_add_u32 s70, s70, s{sCT}
            s_lshl_b32 s71, s70, 10
            s_add_u32 s{r}, s71, {GX}
            s_add_u32 s{r+1}, s71, {X1}
            s_lshl1_add_u32 s{r+2}, s71, {PX}
            s_lshl_b32 s69, s69, 5
            s_add_u32 s69, s69, s{sCT}
            s_lshl2_add_u32 s{18+x}, s69, {F7}""")
        later.append(f"""s_lshl_b32 s72, s{sCL}, 6
        s_lshl_b32 s73, s{sM}, 3
        s_add_u32 s73, s73, s72
        s_add_u32 s73, s73, s{sW}
        s_lshl_b32 s73, s73, 2
        s_add_u32 s73, s73, {F5}
        s_lshr_b32 s74, s{sCT}, 2
        s_lshl_b32 s72, s{sTB}, 5
        s_add_u32 s72, s72, s74
        s_lshl2_add_u32 s72, s72, {F5}""")
        AC, ST, A4 = (180, 164), (vST3, 160), ((112, 128), (180, 144))
        seq = []
        gp, gd = c.gp, c.gd
        for t, a, b in ((0, 0, gp), (1, 0, gd), (0, gp, 28), (1, gd, 28)): seq += [(vW3 + 4*k, AC[t], k == 0, (6, 28672*t + 1024*k)) for k in range(a, b)]
        use0 = lambda k: k if k < gp else k + gd
        e0 = 27 + gd
        for t in range(2):
            for j in range(2):
                prs = [(w, ctl) for w in range(7) for ctl in range(2)]
                if j == 1: prs = [(w, ctl) for ctl in range(2) for w in range(7)]
                seq += [((vW4A + 4*(2*w + ctl), vW4B + 4*(7*ctl + w))[j], A4[t][ctl], j == 0 and w == 0, (44, 14336*t + 1024*(2*w + j))) for w, ctl in prs]
        reads = []; ridx = []
        for n, e in enumerate(seq):
            if not reads or reads[-1][0] != e[3]: reads.append((e[3], n))
            ridx.append(len(reads) - 1)
        nb = 4
        rat = {}
        for r, (key, n) in enumerate(reads):
            free = max([m for m in range(112) if ridx[m] == r - nb], default=-1)
            rat[r] = max(free, n - c.pd)
        X = {i: [] for i in range(-1, 113)}
        def place(items, a, b):
            bu = c.burst
            for k, it in enumerate(items):
                p = a + (k * (b - a + 1)) // len(items)
                X[min(b, p + (bu - 1 - (p - a) % bu))].append(it)
        I = lambda t: (lambda: s(t))
        def gelu(t, h):
            acc, st, o, G = AC[t] + 8*h, ST[t], [], c.ggrp
            for j in range(0, 8, G):
                R = range(G); T = 24 + j
                o += [f'v_mul_f32 v{T+i}, v{acc+j+i}, v{acc+j+i}' for i in R]
                o += [f'v_fma_f32 v{T+i}, v{T+i}, v{st+1}, v{st+2}' for i in R]
                o += [f'v_mul_f32 v{T+i}, v{T+i}, v{acc+j+i}' for i in R]
                for i in R: o += [f'v_exp_f32 v{T+i}, v{T+i}', '']
                o += [f'v_fma_f32 v{T+i}, v{T+i}, v{st+3}, v{st+3}' for i in R]
                for i in R: o += [f'v_rcp_f32 v{T+i}, v{T+i}', '']
                o += [f'v_mul_f32 v{T+i}, v{T+i}, v{acc+j+i}' for i in R]
                o += [f'v_cvt_pk_bf16_f32 v{32+(j+i)//2}, v{T+i}, v{T+i+1}' for i in range(0, G, 2)]
            o.append(f'ds_write_b128 v7, v[32:35] offset:{14336*t + 1024*h}\ns_mov_b64 exec, 1\nds_add_u32 v44, v46 offset:{L_CNT - L_HID + 4*(2*t + h)}\ns_mov_b64 exec, -1')
            return [I(x) for x in o]
        def sync(at, k, want, st):
            rdl = f'ds_read_b32 v4, v44 offset:{L_CNT - L_HID + 4*k}'
            def chk():
                spin, back = s.lab('ls'), s.lab('lb')
                s(f'v_readfirstlane_b32 s68, v4\ns_cmp_lg_u32 s68, {want}\ns_cbranch_scc1 {spin}')
                s.label(back); s.stamp(st)
                s.ool.append(f'{spin}:\n    s_mov_b32 s97, 0\n{spin}a:\n    s_sleep 1\n    {rdl}\n    s_add_u32 s97, s97, 1\n    s_cmp_gt_u32 s97, {SPIN*8}\n    s_waitcnt lgkmcnt(0)\n    s_cbranch_scc1 {back}\n'
                             f'    v_readfirstlane_b32 s68, v4\n    s_nop 1\n    s_cmp_lg_u32 s68, {want}\n    s_cbranch_scc1 {spin}a\n    s_branch {back}\n')
            X[at - c.sd].append(I(rdl)); X[at].append(chk)
        hs = {}
        def blk(base, k): return f's{base + min(k, 2)} offen offset:{1024 * (k == 3)}'
        def fin(t, ctl, h, pk, last=False):
            acc = A4[t][ctl] + 8*h
            def f():
                if t == 1:
                    un = A4[0][ctl] + 8*h
                    if last:
                        for i in range(0, 8, 2): s(f'v_pk_add_f32 {vr(acc+i,2)}, {vr(acc+i,2)}, {vr(un+i,2)}')
                    else:
                        for i in range(8): s(f'v_add_f32 v{acc+i}, v{acc+i}, v{un+i}')
                for i in range(4): s(f'v_cvt_pk_bf16_f32 v{pk+i}, v{acc+2*i}, v{acc+2*i+1}')
                s.xstore([f'buffer_store_dwordx4 {vr(pk)}, v{vL16}, {sr(rWS)}, {blk(12 + 3*t, 2*ctl + h)}'])
                hs[t, ctl] = s.vm[-1][0]
            return f
        def stage1(ctl, at):
            fo = ctl * (F7B - F7)
            def flag():
                s(f'v_mov_b32 v45, s{sTAG}\ns_add_u32 s69, s18, {fo}')
                s.wait(hs[0, ctl]); s('s_mov_b64 exec, 1')
                s.xstore([f'buffer_store_dword v45, off, {sr(rWS)}, s69'])
                s('s_mov_b64 exec, -1')
            def fetch():
                s.poll_check(47, 49, 's70'); s.stamp(45 + ctl)
                for h in range(2): s(f'buffer_load_dwordx4 {vr(164 + 8*ctl + 4*h)}, v{vL16}, {sr(rWS)}, {blk(15, 2*ctl + h)} sc1')
            X[at[0]].append(fin(0, ctl, 0, 108)); X[at[1]].append(fin(0, ctl, 1, 196))
            X[at[2]].append(flag)
            X[at[3]].append(lambda: (s(f's_add_u32 s70, s19, {fo}'), s.poll_issue(47, 49, 's70')))
            X[at[4]].append(fetch)
            un = []
            for i in range(8): un += [f'v_lshlrev_b32 v{A4[0][ctl] + 2*i}, 16, v{164 + 8*ctl + i}', f'v_and_b32 v{A4[0][ctl] + 2*i + 1}, 0xffff0000, v{164 + 8*ctl + i}']
            place([I(x) for x in un], at[5], min(at[5] + 3, 111))
        bsave, c.burst = c.burst, 1
        ch = []
        for t in later:
            cur = []
            for l in t.split('\n'):
                if len(cur) >= 5 and 'cselect' not in l: ch.append('\n'.join(cur)); cur = []
                cur.append(l)
            ch.append('\n'.join(cur))
        assert not any(x.strip().split('\n')[-1].strip().startswith('s_cmp') for x in ch)
        place([I(x) for x in ch], 1, 9)
        if s.wn < 56:
            w3e = c.w3e if c.w3e is not None else max(0, s.wn - 28 - 5)
            n3 = 56 - s.wn
            assert all((k * (w3e + 1)) // n3 < use0(s.wn - 28 + k) - 3 for k in range(n3)) and w3e < c.w4a[0]
            place([s.feed1] * n3, 0, w3e)
        place([s.feed1] * (70 - max(s.wn, 56)), c.w4a[0], c.w4a[1])
        place([s.feed1] * 14, c.w4b[0], c.w4b[1])
        c.burst = bsave
        for ks in range(n2, 28): X[max(use0(ks) - 3, 0)].append(lambda ks=ks: s.cs3(ks, ks + 1))
        X[e0 - 1] += [I('v_cvt_pk_bf16_f32 v48, v32, v32'), I('v_and_b32 v47, 0xffff0000, v48'), I('v_sub_f32 v47, v32, v47'), I('v_cvt_pk_bf16_f32 v48, v32, v47')]
        first = lambda n: rat[ridx[n]] - 1
        x1st = first(gp if gd else 28)
        assert c.x_at <= x1st - c.sd
        sync(x1st if gd else x1st - 3, 7, 7, 49)
        sync(e0 - 3, 4, 1, 23)
        X[e0 - 3].append(I(f'ds_read_b128 {vr(ST[0])}, v44 offset:{L_ST3 - L_HID}'))
        X[e0].append(I(f'v_mfma_f32_32x32x16_bf16 {vr(AC[0],16)}, v[48:51], {vr(ST[0])}, {vr(AC[0],16)}'))
        assert c.q[0] > e0
        q = c.q
        for k in range(4): place(gelu(k >> 1, k & 1), q[k], q[k+1] - 1)
        sync(55, 5, 1, 24)
        X[55].append(I(f'ds_read_b128 {vr(ST[1])}, v44 offset:{L_ST3 - L_HID + 1024}'))
        X[57].append(I(f'v_mfma_f32_32x32x16_bf16 {vr(AC[1],16)}, v[48:51], {vr(ST[1])}, {vr(AC[1],16)}'))
        for k in range(4):
            assert first(56 + 14*k) - c.sd >= q[k+1] - 1, (k, first(56 + 14*k))
            sync(first(56 + 14*k), k, 7, (25, 26, 27, 41)[k])
        sync(73, 6, 1, 44)
        assert c.st0[4] >= q[3] and c.st1[4] >= q[4] and c.st0[4] < c.st1[3]
        stage1(0, c.st0); stage1(1, c.st1)
        X[107].append(fin(1, 0, 0, 108)); X[109].append(fin(1, 0, 1, 196)); X[112] += [fin(1, 1, 0, 24, c.lastpk), fin(1, 1, 1, 28, c.lastpk)]
        def rd(r): (va, off), _ = reads[r]; s(f'ds_read_b128 {vr(8+4*(r%nb))}, v{va} offset:{off}')
        X[c.x_at].insert(0, lambda: (s.wait(hx), s(f's_mov_b64 exec, 1\nds_add_u32 v44, v46 offset:{L_CNT - L_HID + 28}\ns_mov_b64 exec, -1')))
        s('v_mov_b32 v46, 1')
        s.wait(hd); s.barrier(); s.stamp(22)
        for r in range(len(reads)):
            if rat[r] < 0: rd(r)
        LS = [20, 22, 24, 26, 40, 42, 44, 46, 62, 64, 66, 88, 90, 92, 94]
        for n, (W, acc, fst, key) in enumerate(seq):
            if c.lst and n % 8 == 0: s.raw(f'    s_memtime s[{LS[n//8]}:{LS[n//8]+1}]')
            s.fair(n, c.fm)
            s(f'v_mfma_f32_32x32x16_bf16 {vr(acc,16)}, {vr(W)}, {vr(8+4*(ridx[n]%nb))}, {0 if fst else vr(acc,16)}')
            for r in range(len(reads)):
                if rat[r] == n: rd(r)
            s.run(X[n])
        if c.lst: s.raw('    s_memtime s[94:95]')
        s.run(X[112])
        if c.lst:
            s.wait_lg(0, force=True)
            for i, r in enumerate(LS): s(f'v_writelane_b32 v3, s{r}, {1 + i}')
        s.stamp(28)
        s(f'''v_and_b32 v8, 15, v{vL}
        v_bfe_u32 v9, v{vL}, 4, 1
        v_lshlrev_b32 v9, 3, v9
        v_sub_u32 v8, v8, v9
        v_mov_b32 v10, 0x3f80
        v_mov_b32 v11, 1.0
        v_lshlrev_b32 v6, 5, v{vL}
        v_lshrrev_b32 v47, 5, v{vL}
        v_and_b32 v45, 31, v{vL}
        v_mul_u32_u24 v45, 896, v45
        v_lshl_add_u32 v45, v47, 4, v45''')
        s.flag(73)
        s.stamp(29)
        s('s_mov_b64 exec, 15')
        s.poll_issue(4, 6, 's72')
        s('s_mov_b64 exec, -1')
        for d in range(4):
            s(f'''v_cmp_eq_u32 vcc, {2*d}, v8
            v_cmp_eq_u32 s[68:69], {2*d+1}, v8
            v_cndmask_b32 v{48+d}, 0, v10, vcc
            v_cndmask_b32 v{48+d}, v{48+d}, v11, s[68:69]''')
        s(f'''s_mul_i32 s74, s{sTB}, 28
        s_lshr_b32 s70, s{sCT}, 2
        s_add_u32 s74, s74, s70
        s_lshl_b32 s74, s74, 10
        s_and_b32 s70, s{sCT}, 1
        s_lshl_b32 s71, s70, 21
        s_add_u32 s71, s71, s74
        s_add_u32 s71, s71, {GX}
        s_lshl_b32 s70, s70, 10
        s_lshl1_add_u32 s74, s74, s70
        s_add_u32 s74, s74, {PX}
        s_movk_i32 s70, 7168
        s_bitcmp1_b32 s{sCT}, 1
        s_cselect_b32 s74, s74, s71
        s_cmovk_i32 s70, 14336
        s_lshl1_add_u32 s75, s70, s74
        s_sub_u32 s70, s70, 1024
        v_mad_u32_u24 v9, v47, s70, v5
        s_mul_i32 s76, s{sTB}, {32*896}
        s_lshl_b32 s77, s{sCT}, 5
        s_add_u32 s76, s76, s77''')
        s.srd(rX, sOUT, 2048 * 896)
        s('s_mov_b64 exec, 15')
        s.poll_check(4, 6, 's72')
        s('s_mov_b64 exec, -1')
        s.stamp(30)
        for u in range(2):
            for t in range(2): s(f'buffer_load_dwordx4 {vr(52+8*u+4*t)}, v9, {sr(rWS)}, s{74+u} offen offset:{256*t} sc1')
        for u in range(2):
            for t in range(2): s(f'v_mfma_f32_16x16x32_bf16 {vr(vRES+4*t)}, v[48:51], {vr(52+8*u+4*t)}, {vr(vRES+4*t)}')
        for i in range(4): s(f'v_cvt_pk_bf16_f32 v{20+i}, v{vRES+2*i}, v{vRES+1+2*i}')
        s('v_permlane16_swap_b32 v20, v22\nv_permlane16_swap_b32 v21, v23')
        s(f'buffer_store_dwordx4 v[20:23], v45, {sr(rX)}, s76 offen')
        s.stamp(31)

    def s_mfma(s, addrs, acc, kstride, base):
        seq = [(ks, t) for ks in range(14) for t in range(3)]
        nb = 8
        def rd(i): ks, t = seq[i]; s(f'ds_read_b128 {vr(52+4*(i%nb))}, v{addrs+t} offset:{base + ks*kstride}')
        s('s_mov_b32 exec_lo, 0x77777777\ns_mov_b32 exec_hi, 0x77777777')
        for i in range(nb - 1): rd(i)
        for i, (ks, t) in enumerate(seq):
            if i + nb - 1 < len(seq): rd(i + nb - 1)
            s(f'v_mfma_f32_16x16x32_bf16 {vr(acc+4*t)}, {vr(52+4*(i%nb))}, {vr(52+4*(i%nb))}, {vr(acc+4*t) if ks else 0}')
    def s_wave(s, hst):
        s.comment('S wave: statistics, polling, DMA')
        s('s_setprio 2')
        s(f'''s_and_b32 s70, s2, 0xc7
        s_lshl_b32 s70, s70, 4
        s_mul_i32 s71, s{sXCD}, {FCP}
        s_add_u32 s70, s70, s71
        s_add_u32 s70, s70, {FA}
        v_and_b32 v44, 7, v{vL}
        v_lshlrev_b32 v44, 7, v44
        buffer_load_dword v48, v44, {sr(rWS)}, s70 offen sc1''')
        def ftouch():
            s(f'''s_lshl_b32 s72, s{sTB}, 7
            s_add_u32 s72, s72, {F3}
            s_mov_b32 m0, {L_JUNK}
            v_min_u32 v45, 4, v{vL}
            v_lshlrev_b32 v45, 13, v45
            buffer_load_dword v45, {sr(rWS)}, s72 offen sc1 lds''')
        for i in range(32): s(f'v_mov_b32 v{52+i}, 0x3f803f80')
        s(f'''v_and_b32 v44, 3, v{vL}
        v_bfe_u32 v45, v{vL}, 2, 2
        v_mad_u32_u24 v40, v45, 3, v44
        v_lshrrev_b32 v41, 4, v{vL}''')
        for t in range(3):
            s(f'v_add_u32 v46, {12*t}, v40')
            s.pos(84 + t, 46, 47)
            s(f'v_mul_u32_u24 v47, 768, v41\nv_add_u32 v{84+t}, v{84+t}, v47\nv_add_u32 v{84+t}, {L_HI}, v{84+t}')
            s(f'v_min_u32 v46, 31, v46\nv_lshlrev_b32 v46, 4, v46\nv_lshl_add_u32 v46, v41, 9, v46\nv_add_u32 v{88+t}, {L_XI}, v46')
        s(f'''v_sub_u32 v45, v45, v41
        v_and_b32 v45, 3, v45
        v_cmp_eq_u32 s[78:79], 1, v45
        v_cmp_eq_u32 s[80:81], 2, v45
        v_mad_u32_u24 v40, v41, 3, v44
        v_mad_u32_u24 v40, v45, 12, v40
        v_min_u32 v92, 31, v40
        v_lshlrev_b32 v92, 4, v92
        v_add_u32 v92, {L_ST3}, v92
        v_lshlrev_b32 v42, 4, v40
        v_add_u32 v42, {L_STA}, v42
        v_lshlrev_b32 v43, 3, v40
        v_add_u32 v43, {L_STB}, v43
        v_lshlrev_b32 v6, 2, v{vL}
        v_lshlrev_b32 v7, 7, v{vL}
        v_cmp_ne_u32 vcc, s{sTX}, v48
        v_mov_b32 v46, {L_FAST}
        s_cmp_eq_u64 vcc, 0
        s_cselect_b32 s{sFAST}, 1, 0
        v_mov_b32 v45, s{sFAST}
        ds_write_b32 v46, v45
        v_mov_b32 v45, 0
        v_and_b32 v46, 28, v6
        v_add_u32 v46, {L_CNT}, v46
        ds_write_b32 v46, v45''')
        s.hint_wait()
        s.stamp(13)
        s.h2(ftouch)
        s(f'v_cmp_eq_u32 s[92:93], 1, v44\nv_cmp_eq_u32 s[94:95], 2, v44\ns_mov_b32 s96, {INVD}')
        s(f'''s_lshl2_add_u32 s70, s{sTB}, s{sQ}
        s_lshl_b32 s71, s70, 4
        s_add_u32 s71, s71, {FN}
        v_and_b32 v45, 1, v{vL}
        v_lshlrev_b32 v45, 3, v45
        v_sub_u32 v45, v44, v45
        s_lshl2_add_u32 s72, s{sTB}, 4
        v_add_u32 v45, s72, v45
        v_mov_b32 v47, s70
        v_cmp_gt_u32 vcc, 0x100, v45
        v_mov_b32 v36, s{sTAG}
        s_mov_b32 s72, {FN}
        v_cndmask_b32 v45, v47, v45, vcc
        v_lshlrev_b32 v37, 4, v45''')
        s.barrier(); s.stamp(15)
        s(f's_mov_b64 exec, 1\nbuffer_store_dword v36, off, {sr(rWS)}, s71 sc1')
        s.s_mfma(84, 24, 3072, 0)
        s.stats_tail(24, 43, 42, 0)
        s('s_mov_b64 exec, -1')
        s.barrier(); s.stamp(16)
        s.poll(4, 37, 's72', 15, 0, sleep=4)
        for i in range(4 if s.cfg.bar_a else 2): s('s_barrier')
        s.stamp(22)
        def lwait(k, want):
            l = s.lab('tw')
            s('s_mov_b32 s97, 0'); s.label(l)
            s(f'ds_read_b32 v4, v46 offset:{4*k}\ns_add_u32 s97, s97, 1\nv_readfirstlane_b32 s68, v4\ns_cmp_lt_u32 s97, {SPIN*8}\ns_cselect_b32 s68, s68, {want}\ns_cmp_lg_u32 s68, {want}\ns_sleep 1\ns_cbranch_scc1 {l}')
        def touch():
            s(f'''s_mul_i32 s70, s{sTB}, 28
            s_mul_i32 s71, s{sQ}, 7
            s_add_u32 s70, s70, s71
            s_lshl_b32 s71, s70, 10
            s_add_u32 s71, s71, {GX}
            s_add_u32 s69, s71, {X1 - GX}
            s_lshl_b32 s70, s70, 11
            s_add_u32 s70, s70, {PX}
            s_mov_b32 m0, {L_JUNK}
            s_mov_b32 exec_hi, 0x00ffffff''')
            if s.cfg.refresh: s(f'buffer_load_dword v7, {sr(rWS)}, s71 offen sc1 lds\nbuffer_load_dword v7, {sr(rWS)}, s69 offen sc1 lds')
            for i in range(2):
                s(f'buffer_load_dword v7, {sr(rWS)}, s70 offen sc1 lds\ns_add_u32 s70, s70, 7168')
                s.wait_vm(s.cfg.tdepth)
            s('s_mov_b32 exec_hi, -1')
        s(f'v_mov_b32 v46, {L_CNT}\nv_mov_b32 v47, 1')
        for t in range(2):
            s.s_mfma(88, 24, 2048, 28672 * t)
            s.stats_tail(24, None, 92, 1024 * t)
            s(f's_mov_b64 exec, 1\nds_add_u32 v46, v47 offset:{16 + 4*t}\ns_mov_b64 exec, -1')
            s.stamp(23 + t)
            if t == 0:
                lwait(7, 7)
                s(f's_lshl_b32 s72, s{sCL}, 8\ns_add_u32 s72, s72, {F5 + 28}\ns_lshl_b32 s73, s{sM}, 5\ns_add_u32 s73, s73, s72\nv_lshlrev_b32 v37, 5, v{vL}')
                s.flag(73)
        s.poll(4, 37, 's72', '0xff', 0, sleep=2)
        s(f's_mov_b64 exec, 1\nds_add_u32 v46, v47 offset:24\ns_mov_b64 exec, -1')
        if s.cfg.touch_at < 4: lwait(s.cfg.touch_at, 7)
        s.stamp(25)
        if s.cfg.touch_at != 5: touch()
        s.cond('s_cmp_lg_u32 s2, 0', lambda: s(f'v_mov_b32 v4, s{sTAG}\ns_mov_b32 s70, {EP}\ns_mov_b64 exec, 1\nbuffer_store_dword v4, off, {sr(rWS)}, s70 sc1\ns_mov_b64 exec, -1'))
        s.wait_vm(0); s.stamp(28)

def build(stamps=False, cfg=None):
    s = K(stamps, cfg or Cfg())
    c = s.cfg
    s.entry(); s.setup(); s(s.scalars())
    if c.dma_at == -1: s(f's_cmp_lt_u32 s43, 2\ns_cmov_b32 s{rW+2}, {448*896}'); s.pack_dma()
    if c.sb_at == 0: s.setup_b()
    s.stamp(34); s.ln()
    s(f's_cmp_ge_u32 s{sI}, 28'); s.flush_hazards(); s('s_cbranch_scc1 Lnonconv')
    st = s.state()
    s.clear()
    if c.sb_at == 1: s.setup_b()
    s.stamp(33)
    if c.dma_at == 0: s.pack_dma()
    if c.fa_at == -1: s.publish_a()
    s.kgen(); hst = s.conv()
    s.label('Ljoin')
    s(f'v_mov_b32 v4, v21\nv_mov_b32 v5, v22\ns_cmp_eq_u32 s{sW}, 7'); s.flush_hazards(); s('s_cbranch_scc1 Lsw')
    st2 = s.state()
    s.g_wave(hst); s.dump_stamps(); s('s_endpgm')
    s.label('Lsw'); s.set_state(st2)
    s.s_wave(hst); s.dump_stamps()
    s.label('Lend'); s('s_endpgm')
    s.label('Lnonconv'); s.set_state(st); s.wn = 0
    s.nonconv(); s.flush_hazards(); s('s_branch Ljoin')
    name = NAME + '_kernel'
    txt = f'''; @launch grid=(256,1,1) block=(512,1,1) lds={LDS_BYTES}
.amdgcn_target "amdgcn-amd-amdhsa--gfx950"
.text
.globl {name}
.p2align 8
.type {name},@function
{name}:
''' + s.text() + ''.join(s.ool) + tap_table() + f'''.section .rodata,"a"
.p2align 6
.amdhsa_kernel {name}
  .amdhsa_next_free_vgpr 256
  .amdhsa_next_free_sgpr 102
  .amdhsa_accum_offset 256
  .amdhsa_group_segment_fixed_size 0
  .amdhsa_kernarg_size 120
  .amdhsa_user_sgpr_count 2
  .amdhsa_user_sgpr_kernarg_segment_ptr 1
  .amdhsa_system_sgpr_workgroup_id_x 1
.end_amdhsa_kernel
'''
    size, syms = code_info(txt.replace('@CODE_BYTES@', '1000').replace('@TAB_OFF@', '1000'))
    return txt.replace('@CODE_BYTES@', str(syms['tap_table'] + 2048 + 4224 - syms['Lpc'] - 4)).replace('@TAB_OFF@', str(syms['tap_table'] - syms['Lpc']))
def tap_table():
    RB = {8: 0, 4: 16, 2: 24, 6: 28, 1: 32, 3: 34, 5: 36, 7: 38}
    def rnd(l):
        sh = max(0, l.bit_length() - 8)
        if not sh: return l
        q, r = l >> sh, l & ((1 << sh) - 1); half = 1 << (sh - 1)
        return (q + (r > half or (r == half and q & 1))) << sh
    v = []
    for i in range(2056):
        l = 2047 - i
        if l < 0: e = 768
        elif l == 0: e = 640
        else: p = rnd(l); e = RB[((p - 1) & 7) + 1] * 16 + ((p - 1) >> 3)
        v.append(e * 16)
    v += [0] * 56
    lane = []
    for l in range(64):
        n, g = l & 15, l >> 4; tb = 2*n + (g >> 1); rr, cc = (l >> 2) & 3, l & 3
        bb = lambda c_: 32*c_ + 16*((c_ >> 3) & 1)
        lane.append([4*(4*g - (n >> 1)) + 28 + KEO*(1 - (n & 1)), bb(30 + 2*n + g), bb(26 + 2*n + g), (l >> 1)*896 + 16*((l ^ g) & 1),
                     tb*64 + (g & 1)*32, (n >> 1)*1792 + 4*(n & 1) + g, bb(tb) + 8*(g & 1), (g*64 + n)*16 + 4*((l >> 3) & 3),
                     n*KGP + 16*g, (8*g + rr)*64 + cc*8, (8*(g >> 1) + rr)*64 + (g & 1)*32 + (cc & 1)*16 + (cc >> 1)*8,
                     (l >> 2)*896 + cc*16, (l >> 2)*3584 + cc*16, rr*LNP + 32*g + 8*cc, rr*KEO + 16*(l & 1), 0])
    pk = []
    for b in range(256):
        for w in range(8):
            U = 256*w + 32*(b & 7) + (b >> 3)
            if U < 392: m, V = divmod(U, 196); kb, cb = divmod(V, 14); src = kb*32*896; d0 = 392*m + 28*cb + kb; d1 = d0 + 14
            elif U < 1176: m = 2; kb, cb = divmod(U - 392, 56); src = kb*32*3584; d0 = 784 + 28*cb + 2*kb; d1 = d0 + 1
            elif U < 1960: m = 3; kb, cb = divmod(U - 1176, 14); src = kb*32*896; d1 = 2352 + ((kb//7)*7 + (cb >> 1))*28; d0 = d1 + 2*(kb % 7) + (cb & 1); d1 += 14 + 7*(cb & 1) + kb % 7
            else: m, cb, src, d0, d1 = 4, 0, 0, 0, 0
            pk += [(m << 24) | (src + 64*cb), d0 | (d1 << 16)]
    t = '.p2align 7\n.type tap_table,@object\ntap_table:\n'
    for h in range(2):
        for l in range(64): t += '.short ' + ', '.join(map(str, lane[l][8*h:8*h+8])) + '\n'
    for i in range(0, 2112, 8): t += '.short ' + ', '.join(map(str, v[i:i+8])) + '\n'
    for i in range(0, 4096, 8): t += '.long ' + ', '.join(map(str, pk[i:i+8])) + '\n'
    return t + f'.size tap_table, {2048 + 4224 + 16384}\n'
def code_info(txt):
    import subprocess, tempfile, re
    with tempfile.TemporaryDirectory() as d:
        open(d + '/a.s', 'w').write(txt)
        subprocess.run(['clang', '-x', 'assembler', '-target', 'amdgcn-amd-amdhsa', '-mcpu=gfx950', '-c', d + '/a.s', '-o', d + '/a.o'], check=True)
        o = subprocess.run(['llvm-readelf', '-S', '-s', d + '/a.o'], capture_output=True, text=True).stdout
        size = int(re.search(r'\.text\s+PROGBITS\s+\S+\s+\S+\s+(\S+)', o).group(1), 16)
        return size, {m.group(2): int(m.group(1), 16) for m in re.finditer(r'\d+: ([0-9a-f]{16}) .* (\S+)\n', o)}
if __name__ == '__main__':
    sys.stdout.write(build(stamps=len(sys.argv) > 1))
```

```python
import sys, os, struct
sys.path.insert(0, os.path.dirname(os.path.abspath(__file__)))
from dsl import Asm, Ins

NAME = 'sequential_preLN__ssm_conv_s4d__mixer_s_mlp__prompt'
W1P, W2P, W3P, W4P = 0, 392 * 1024, 784 * 1024, 2352 * 1024
SM, CSP = 0x600000, 0x700000
GX, X1, PX = 0xA00000, 0xC00000, 0x1000000
FL = 0x2000000
F3, F4, F5, F7, F7B = FL, FL + 0x2000, FL + 0x4000, FL + 0x6000, FL + 0x8000
FH, FN, EP, FA, FB = FL + 0x1A000, FL + 0x1E000, FL + 0x20000, FL + 0x30000, FL + 0x40000
FCP = 4352
TS = 0x3000000
WS_BYTES = 0x4000000
L_LN, LNP = 0, 960
L_PK, L_PK2 = 15360, 32768
L_KG, KGP = 31744, 288
L_Y = 0
L_KT, KTSZ = 68608, 12320
L_KE, KEO, KECH = 93312, 4160, 8320
L_U = 110080
L_SM = 8 * LNP
L_HI, L_GI, L_XI, L_HID, L_ST = 106880, 0, 28672, 106880, 149888
L_STA, L_STB, L_FAST, L_JUNK, L_ST3 = L_ST, L_ST + 768, L_ST + 1152, L_ST + 1280, L_ST + 1536
L_EV = 86016
LDS_BYTES = 153600
LOG2E, INV2PI, EPS, INVD = 0x3fb8aa3b, 0x3e22f983, 0x3727c5ac, 0x3b124925
C1 = -2.0 * 0.7978845608028654 * 1.4426950408889634
def fh(x): return '0x%08x' % struct.unpack('<I', struct.pack('<f', x))[0]
SPIN = 1 << 18
sX, sLA, sAI, sCR, sCI, sDT, sDS = 4, 6, 8, 10, 12, 14, 16
sW1, sW2, sW3, sW4, sOUT, sWS = 20, 22, 24, 26, 28, 30
rWS, rX, rD, rW, rG = 32, 36, 40, 44, 48
sW, sXCD, sI, sP, sTAG, sTB, sQ, sCL, sM, sFAST = range(52, 62)
sPD0, sPD1, sUO, sSM, sFO, sPACT = range(62, 68)
sUS, sKG, sHD, sUM = 74, 75, 76, 77
sLDT, sD0, sD1 = 40, 41, 42
sM0, sM1, sCT, sTX = 78, 80, 82, 83
sA1, sA2, sA3, sA4 = 84, 85, 86, 87
def sr(n, k=4): return f's[{n}:{n+k-1}]'
def vr(n, k=4): return f'v[{n}:{n+k-1}]'
vL16, vL = 1, 2
vW1, vW2, vW3, vW4A, vW4B = 144, 200, 52, 200, 52
vCS3, vAC3, vST3, vRES = 164, 180, 196, 36

class Cfg:
    f_kt = 3
    fa_at, dma_at, poll_at, chk_at, pst_at, fa_sleep = 0.5, 1, 3, 5, 6, 1
    rsplit = 8
    f_conv = 18
    f_hst = 18
    f_hld = 18
    f_hok = 24
    f_g1 = 35
    f_gel = 0
    x_dp, g2span = 0, 14
    f_gfl = 0
    f_b3a = 0
    f_g2 = 43
    f_xfl = 0
    f_b4a = 45
    two = 0
    tab = 0
    xbar = 0
    fb_at = 0
    x_nof = 99
    prio = 0
    bar_a, x_at = 0, 3
    ggrp, burst, pd, sd = 4, 1, 3, 2
    q = (33, 47, 61, 75, 89)
    st0, st1, lastpk = (79, 81, 87, 90, 94, 102), (86, 88, 93, 96, 100, 108), 1
    w4a, w4b = (17, 44), (45, 68)
    nc_depth, hint_at = 8, 8
    depth = 4
    touch_at = 1
    warm = 1
    dack, fpoll, cs_at, f_gok = (1, 1, 1), 102, 2, 37
    etouch, touch2 = 0, 4
    x_ns = x_nc = 0
    gp, gd, w3e = 17, 4, 16
    hack, hdel, hmask = 1, 0, 0
    upf = 0
    ktm = 0
    kbar = 0
    lst2, lregs = (), (4, 6, 8, 10, 12, 14, 16, 18, 20, 22, 24, 26, 78, 80, 94)
    fm, fc, fg = 4, 0, 0
    lst = 0
    sb_at, clr_at = 1, 0
    cil, chead, cpace, clead, cy0, cyp = 0, 9, 1.0, 5, 42, 4
    rts = 0
    refresh = 0
    tdepth = 1
    cpf = 1
    x_late = 0

def zipl(*streams):
    out = []; n = max(len(x) for x in streams)
    for i in range(n):
        for x in streams:
            if i < len(x): out.append(x[i])
    return out

class K(Asm):
    def __init__(s, stamps, cfg):
        super().__init__(); s.stamps = stamps; s.cfg = cfg; s.ool = []; s.nlab = 0; s.wn = 0
    def lab(s, p): s.nlab += 1; return f'L{p}{s.nlab}'
    def srd(s, r, ptr, size):
        s(f's_mov_b32 s{r}, s{ptr}\ns_mov_b32 s{r+1}, s{ptr+1}\ns_mov_b32 s{r+2}, {size}\ns_mov_b32 s{r+3}, 0x20000')
    def stamp(s, idx, real=False):
        if idx in s.cfg.lst2:
            r = s.cfg.lregs[list(s.cfg.lst2).index(idx)]
            s.raw(f'    s_memtime s[{r}:{r+1}]')
            if idx == s.cfg.lst2[-1]:
                s.wait_lg(0, force=True)
                for i, k in enumerate(s.cfg.lst2): s(f'v_writelane_b32 v3, s{s.cfg.lregs[i]}, {k}')
            return
        if not s.stamps or (s.stamps is not True and idx not in (31, 61) and (s.stamps == 'span' or idx not in s.stamps)): return
        s(f's_mem{"real" if real else ""}time s[98:99]'); s.wait_lg(0)
        s(f'v_writelane_b32 v3, s98, {idx}')
        rt = {3: 50, 10: 51, 11: 52, 15: 53, 22: 54, 25: 55, 28: 56}
        if s.cfg.rts and idx in rt:
            s('s_memrealtime s[98:99]'); s.wait_lg(0); s(f'v_writelane_b32 v3, s98, {rt[idx]}')
    def dump_stamps(s):
        if not s.stamps: return
        s.stamp(61, True)
        s(f's_lshl_b32 s98, s2, 3\ns_add_u32 s98, s98, s{sW}\ns_lshl_b32 s98, s98, 8\ns_add_u32 s98, s98, {TS}')
        s(f'v_lshlrev_b32 v4, 2, v{vL}\nbuffer_store_dword v3, v4, {sr(rWS)}, s98 offen')
    def cond(s, cmp_skip, body, drain=True, flush=True):
        l = s.lab('c')
        s(cmp_skip)
        if flush: s.flush_hazards()
        s(f's_cbranch_scc1 {l}')
        vm, lg, hist = list(s.vm), list(s.lg), list(s.hist)
        body()
        if drain: s._wait(lg=0)
        if flush: s.flush_hazards()
        else: s.hist = hist
        s.label(l)
        s.vm, s.lg = vm, lg
    def xstore(s, lines):
        slow, back = s.lab('xs'), s.lab('xb')
        s(f's_cmp_eq_u32 s{sFAST}, 0')
        for l in lines:
            ins = Ins(l); t = ins.rd | ins.wr
            hs = [x[0] for x in s.vm if x[1] & t] + [x[0] for x in s.lg if x[1] & t]
            if hs: s.wait(*hs)
        s(f's_cbranch_scc1 {slow}')
        for l in lines: s(l)
        s.label(back)
        s.ool.append(f'{slow}:\n    s_nop 7\n    s_nop 3\n' + ''.join(f'    {l} sc1\n' for l in lines) + f'    s_branch {back}\n')
    def feed1(s):
        n = s.wn; s.wn += 1
        if n >= s.cfg.x_nof: return
        if n < 14: reg, sb, i = vW1 + 4*n, sA1, n
        elif n < 28: reg, sb, i = vW2 + 4*(n-14), sA2, n - 14
        elif n < 56: reg, sb, i = vW3 + 4*(n-28), sA3, n - 28
        elif n < 70: reg, sb, i = vW4A + 4*(n-56), sA4, n - 56
        else: reg, sb, i = vW4B + 4*(n-70), sA4, n - 56
        if i % 4 == 0 and i: s(f's_add_u32 s{sb}, s{sb}, 4096')
        s(f'buffer_load_dwordx4 {vr(reg)}, v{vL16}, {sr(rG)}, s{sb} offen offset:{(i % 4) * 1024}')
    def feed(s, upto, depth=None):
        depth = depth or s.cfg.depth
        while s.wn < upto:
            s.wait_vm(depth - 1); s.feed1()
    def spread(s, upto, slots, first=0):
        n = max(0, upto - s.wn); out = [lambda: None] * slots
        pos = [first + (k * (slots - first)) // n for k in range(n)] if n else []
        for p in set(pos):
            out[p] = (lambda c=pos.count(p): [s.feed1() for _ in range(c)])
        return out
    def fair(s, n, k):
        if k and n % k == 0: s('s_setprio 1')
        if k and n % k == k - 1: s('s_setprio 0')
    def run(s, l):
        for f in l: f()
    def poll_issue(s, vdst, vaddr, soff): return s(f'buffer_load_dword v{vdst}, v{vaddr}, {sr(rWS)}, {soff} offen sc1')
    def poll_check(s, vdst, vaddr, soff, sleep=0):
        retry, back = s.lab('pr'), s.lab('pb')
        s(f'v_subrev_u32 v{vdst}, s{sTAG}, v{vdst}\nv_cmp_lt_u32 vcc, 15, v{vdst}\ns_mov_b32 s97, 0\ns_cbranch_vccnz {retry}')
        s.label(back)
        s.ool.append(f'''{retry}:
''' + (f'    s_sleep {sleep}\n' if sleep else '') + f'''    buffer_load_dword v{vdst}, v{vaddr}, {sr(rWS)}, {soff} offen sc1
    s_add_u32 s97, s97, 1
    s_cmp_gt_u32 s97, {SPIN}
    s_waitcnt vmcnt(0)
    s_cbranch_scc1 {back}
    v_subrev_u32 v{vdst}, s{sTAG}, v{vdst}
    v_cmp_lt_u32 vcc, 15, v{vdst}
    s_nop 1
    s_cbranch_vccnz {retry}
    s_branch {back}
''')
    def poll(s, vdst, vaddr, soff, lo=None, hi=None, sleep=0):
        if lo is not None: s(f's_mov_b32 exec_lo, {lo}\ns_mov_b32 exec_hi, {hi}')
        s.poll_issue(vdst, vaddr, soff); s.poll_check(vdst, vaddr, soff, sleep)
        if lo is not None: s('s_mov_b64 exec, -1')
    def flag(s, soff, vtmp=4):
        s(f'v_mov_b32 v{vtmp}, s{sTAG}')
        s.wait_vm(0, force=True)
        s('s_mov_b64 exec, 1')
        s.xstore([f'buffer_store_dword v{vtmp}, off, {sr(rWS)}, s{soff}'])
        s('s_mov_b64 exec, -1')
    def gflag(s, wave, soff, sval, vtmp, drain=False, flush=True):
        s.cond(f's_cmp_lg_u32 s{sW}, {wave}', drain=drain, flush=flush, body=lambda: s(f'v_mov_b32 v{vtmp}, s{sval}\ns_mov_b64 exec, 1\nbuffer_store_dword v{vtmp}, off, {sr(rWS)}, s{soff} sc1\ns_mov_b64 exec, -1'))
    def gflag8(s, wave, soff, sval, vtmp, flush=True):
        s.cond(f's_cmp_lg_u32 s{sW}, {wave}', drain=False, flush=flush, body=lambda: s(f'v_mov_b32 v{vtmp}, s{sval}\nv_mul_u32_u24 v{vtmp+1}, {FCP}, v{vL}\ns_mov_b64 exec, 0xff\nbuffer_store_dword v{vtmp}, v{vtmp+1}, {sr(rWS)}, s{soff} offen sc1\ns_mov_b64 exec, -1'))
    def dma(s, a, b, ssrc, ldsbase):
        h = None
        for i in range(a, b):
            if i % 4 == 0:
                if i: s(f's_add_u32 s{ssrc}, s{ssrc}, 4096')
                s(f's_mov_b32 m0, {ldsbase + i * 1024}')
            h = s(f'buffer_load_dwordx4 v{vL16}, {sr(rWS)}, s{ssrc} offen offset:{(i % 4) * 1024} sc1 lds')
        return h
    def fetch_issue(s, blocks):
        t = ''.join(f's_add_u32 m0, s{a}, {b}\ns_add_u32 s68, s{c_}, {d}\nbuffer_load_dwordx4 v{vL16}, {sr(rWS)}, s68 offen sc1 lds\n' for a, b, c_, d in blocks)
        return s(t), t
    def fetch_check(s, h, t, va, off, n, T, m0=None):
        rd = [f'ds_read_b32 v{T+j}, v{va} offset:{off + 7168*j}' for j in range(n)]
        ck = [f'v_and_b32 v{T}, v{T}, v{T+1}', f'v_and_b32 v{T+2}, v{T+2}, v{T+3}', f'v_and_b32 v{T}, 1, v{T}', f'v_and_b32 v{T}, v{T}, v{T+2}', f'v_cmp_eq_u32 vcc, 0, v{T}']
        retry, back = s.lab('fr'), s.lab('fb')
        def part1(): s.wait(h); [s(l) for l in rd]
        def part2():
            for l in ck: s(l)
            s(f's_mov_b32 s97, 0\ns_cbranch_vccnz {retry}'); s.label(back)
            s.ool.append(f'{retry}:\n' + ''.join(f'    {l}\n' for l in t.strip().split('\n')) + (f'    {m0}\n' if m0 else '') + f'    s_add_u32 s97, s97, 1\n    s_cmp_gt_u32 s97, {SPIN}\n    s_waitcnt vmcnt(0)\n    s_cbranch_scc1 {back}\n'
                         + ''.join(f'    {l}\n' for l in rd) + '    s_waitcnt lgkmcnt(0)\n' + ''.join(f'    {l}\n' for l in ck) + f'    s_nop 1\n    s_cbranch_vccnz {retry}\n    s_branch {back}\n')
        return part1, part2
    def pos(s, d, src, t):
        s(f'''v_and_b32 v{t}, 3, v{src}
        v_lshlrev_b32 v{t}, 2, v{t}
        v_and_or_b32 v{t}, v{src}, -16, v{t}
        v_bfe_u32 v{d}, v{src}, 2, 2
        v_or_b32 v{d}, v{d}, v{t}
        v_lshlrev_b32 v{d}, 4, v{d}''')

    def W(s, dst, k, base=None, op='add_u32'):
        src = f'v{76 + k//2}'; sel = f'WORD_{k&1}'
        if base is None: s(f'v_mov_b32_sdwa v{dst}, {src} dst_sel:DWORD dst_unused:UNUSED_PAD src0_sel:{sel}')
        else: s(f'v_{op}_sdwa v{dst}, {base}, {src} dst_sel:DWORD dst_unused:UNUSED_PAD src0_sel:DWORD src1_sel:{sel}')
    def entry(s):
        s('s_cmp_ge_u32 s2, 256\ns_cbranch_scc1 Lend')
        if s.stamps: s('s_memtime s[100:101]\ns_memrealtime s[96:97]\nv_mov_b32 v3, 0'); s.wait_lg(0)
        s(f"""s_load_dwordx16 s[4:19], s[0:1], 0
        s_load_dwordx8 s[20:27], s[0:1], 64
        s_load_dwordx2 s[28:29], s[0:1], 96
        s_load_dwordx2 s[30:31], s[0:1], 112""")
        s('s_getpc_b64 s[94:95]')
        s.label('Lpc')
        s(f"""s_lshr_b32 s{sI}, s2, 3
        v_lshrrev_b32 v4, 6, v0
        v_and_b32 v{vL}, 63, v0""")
        s.cpf(0)
        s(f"""v_readfirstlane_b32 s{sW}, v4
        v_lshlrev_b32 v{vL16}, 4, v{vL}
        s_add_u32 s94, s94, @TAB_OFF@
        s_addc_u32 s95, s95, 0
        s_lshl_b32 s69, s2, 6
        s_add_u32 s69, s69, {2048 + 4224}
        v_lshl_add_u32 v5, v4, 3, s69
        global_load_dwordx2 v[84:85], v5, s[94:95]
        global_load_dwordx4 v[80:83], v{vL16}, s[94:95] offset:1024
        global_load_dwordx4 v[76:79], v{vL16}, s[94:95]
        s_lshl3_add_u32 s68, s2, s{sW}
        v_and_b32 v6, 255, v0
        v_lshlrev_b32 v18, 4, v6
        global_load_dwordx4 v[66:69], v18, s[94:95] offset:2048
        global_load_ushort v70, v18, s[94:95] offset:2064
        s_and_b32 s{sXCD}, s2, 7
        s_mul_i32 s{sP}, s{sXCD}, 28
        s_add_u32 s{sP}, s{sP}, s{sI}
        s_min_u32 s{sP}, s{sP}, 223
        s_lshl_b32 s70, s{sP}, 10
        v_lshl_add_u32 v64, v0, 1, s70
        s_mul_i32 s73, s68, 896
        s_mov_b32 s{rX+2}, 896
        s_mov_b32 s{rX+3}, 0x20000
        s_mov_b32 s{rW+3}, 0x20000
        s_mov_b32 s{rWS+2}, {WS_BYTES}
        s_mov_b32 s{rWS+3}, 0x20000
        s_lshl_b32 s93, s{sW}, 11
        s_add_u32 s93, s93, {L_PK}
        s_lshl_b32 s71, s{sP}, 2
        s_mov_b32 s72, {EP}
        s_add_u32 s{rX}, s{sX}, s73
        s_addc_u32 s{rX+1}, s{sX+1}, 0
        buffer_load_dwordx4 v[28:31], v{vL16}, {sr(rX)}, 0 offen""")
        if s.stamps: s('v_writelane_b32 v3, s100, 0\nv_writelane_b32 v3, s96, 60')
        s.stamp(1)
        s(f"""s_load_dword s{sTAG}, {sr(sWS,2)}, s72
        s_load_dword s{sLDT}, {sr(sDT,2)}, s71
        s_load_dword s{sD1}, {sr(sDS,2)}, s71
        global_load_ushort v60, v64, {sr(sLA,2)}
        global_load_ushort v61, v64, {sr(sAI,2)}
        global_load_ushort v62, v64, {sr(sCR,2)}
        global_load_ushort v63, v64, {sr(sCI,2)}
        v_readfirstlane_b32 s90, v84
        v_readfirstlane_b32 s91, v85
        s_lshr_b32 s43, s90, 24
        s_and_b32 s90, s90, 0xffffff
        s_bitcmp1_b32 s43, 0
        s_cselect_b64 s[20:21], s[22:23], s[20:21]
        s_cselect_b64 s[24:25], s[26:27], s[24:25]
        s_cmp_eq_u32 s43, 2
        s_cselect_b64 vcc, -1, 0
        s_movk_i32 s89, 896
        s_cmovk_i32 s89, 3584
        s_cmp_lt_u32 s43, 2
        s_cselect_b64 {sr(rW,2)}, s[20:21], s[24:25]
        s_cselect_b32 s{rW+2}, {448*896}, 0
        s_cselect_b64 s[72:73], -1, 0
        s_lshl4_add_u32 s89, s89, s90
        s_mov_b32 s{rWS}, s{sWS}
        s_mov_b32 s{rWS+1}, s{sWS+1}
        v_cndmask_b32_sdwa v23, v81, v82, vcc dst_sel:DWORD dst_unused:UNUSED_PAD src0_sel:WORD_1 src1_sel:WORD_0""")
        if s.cfg.dma_at >= 0: s.pack_dma()

    def cpf(s, once):
        l = s.lab('cp')
        s(f'v_lshl_add_u32 v7, v0, 8, s2' if once else f'v_lshl_add_u32 v7, v0, 5, s{sI}')
        s(f"""v_lshlrev_b32 v7, 7, v7
        v_cmp_gt_u32 vcc, @CODE_BYTES@, v7
        s_and_saveexec_b64 s[70:71], vcc
        s_cbranch_execz {l}""")
        s.raw('    global_load_dword v255, v7, s[94:95]')
        s.label(l)
        s('s_mov_b64 exec, -1')
    def clear(s):
        for i in range(4): s(f'v_mov_b32 v{72+i}, -1')
        s.hstore(72)
    def hstore(s, r): return s(f'buffer_store_dwordx4 {vr(r)}, v12, {sr(rWS)}, s{sHD} offen sc1')

    def setup(s):
        s.comment('offsets and lane addresses (in the shadow of the first loads)')
        assert L_U % 512 == 0
        s(f"""s_mov_b64 vcc, s[72:73]
        s_lshr_b32 s{sPD1}, s91, 16
        s_lshl_b32 s{sPD1}, s{sPD1}, 10
        v_cndmask_b32_sdwa v24, v81, v80, vcc dst_sel:DWORD dst_unused:UNUSED_PAD src0_sel:WORD_0 src1_sel:WORD_1
        s_and_b32 s{sPD0}, s91, 0xffff
        s_lshl_b32 s{sPD0}, s{sPD0}, 10
        v_mul_u32_u24 v71, 1171, v0
        s_lshl_b32 s70, s{sW}, 7
        v_add_u32 v24, s93, v24""")
        s.W(27, 13, 's70')
        s(f"""s_mul_i32 s70, s{sW}, {LNP}
        v_lshrrev_b32 v71, 16, v71
        v_add_u32 v26, s70, v{vL16}
        s_mul_i32 s70, s2, 896
        s_lshl_b32 s71, s{sW}, 10
        v_mul_u32_u24 v71, {229376 - 896}, v71
        s_add_u32 s70, s70, s71
        s_add_u32 s{sUO}, s70, {GX}
        v_add_u32 v71, v71, v{vL16}""")
        s.W(12, 5, 4, 'lshlrev_b32')
    def setup_b(s):
        s(f"""s_lshl_b32 s71, s{sW}, 10
        s_lshl4_add_u32 s{sFO}, s2, {FA}
        s_add_u32 s{sUM}, s71, {L_U + 1024}
        v_add_u32 v13, s71, v{vL16}
        s_lshl_b32 s70, s{sW}, 13
        v_add_u32 v14, s70, v{vL16}
        s_lshl_b32 s70, s{sW}, 9
        s_mul_i32 s72, s{sXCD}, {FCP}
        s_add_u32 s70, s70, s72
        s_add_u32 s70, s70, {FA}
        v_and_b32 v17, 0x1f0, v{vL16}
        v_add_u32 v17, s70, v17
        s_mul_i32 s{sKG}, s{sW}, {16*KGP}
        s_add_u32 s{sKG}, s{sKG}, {L_KG}""")
        s.W(20, 8, f's{sKG}'); s.W(10, 3); s.W(11, 4); s.W(15, 6, f's{sUM}')
        s(f"""s_and_b32 s70, s{sW}, 3
        s_lshr_b32 s71, s{sW}, 2
        s_mul_i32 s73, s71, {KECH}
        s_add_u32 s73, s73, {L_KE}
        v_add_u32 v18, s73, v18
        s_lshl_b32 s72, s70, 7
        s_sub_u32 s72, s73, s72
        s_add_u32 s72, s72, {4*(1015 - 144) - 28}""")
        s.W(4, 0, 's72')
        s(f"""s_lshl_b32 s72, s70, 8
        s_sub_u32 s72, {L_U}, s72
        v_xor_b32 v16, 16, v15""")
        s.W(8, 1, 's72'); s.W(9, 2, 's72')
        s(f"""s_xor_b32 s72, s70, s71
        s_and_b32 s72, s72, 1
        s_lshl_b32 s72, s72, 4
        v_subrev_u32 v5, 1024, v4
        v_subrev_u32 v6, 2048, v4
        v_subrev_u32 v7, 3072, v4
        v_xor_b32 v8, s72, v8
        v_xor_b32 v9, s72, v9
        s_lshl_b32 s72, s70, 2
        s_mul_i32 s70, s71, {KTSZ}
        s_add_u32 s70, s70, {L_KT}
        s_mov_b32 s73, {L_KE + 4096}""")
        s.W(19, 7, 's72', 'xor_b32'); s.W(88, 14, 's73')
        s(f"""v_mov_b32 v84, 0
        v_mov_b32 v85, 0
        v_mov_b32 v86, 0
        v_mov_b32 v87, 0
        v_add_u32 v19, s70, v19
        v_add_u32 v89, {L_U}, v{vL16}
        v_mov_b32 v90, s70
        ds_write_b128 v88, v[84:87]
        ds_write_b128 v89, v[84:87]
        ds_write_b128 v90, v[84:87] offset:{768*16}""")
        for t in range(9):
            s(f'v_add_u32_sdwa v{132+t}, s70, v{66+t//2} dst_sel:DWORD dst_unused:UNUSED_PAD src0_sel:DWORD src1_sel:WORD_{t&1}')
    def scalars(s):
        return f"""s_mov_b32 s{rG}, s{sWS}
        s_mov_b32 s{rG+1}, s{sWS+1}
        s_cmp_eq_u32 s{sW}, 7
        s_cselect_b32 s{rG+2}, 0, {WS_BYTES}
        s_mov_b32 s{rG+3}, 0x20000
        s_mul_i32 s{sHD}, s{sW}, 229376
        s_lshl_b32 s68, s{sP}, 7
        s_add_u32 s{sHD}, s{sHD}, s68
        s_add_u32 s{sHD}, s{sHD}, {X1}
        s_lshr_b32 s68, s{sI}, 2
        s_lshl3_add_u32 s{sTB}, s{sXCD}, s68
        s_and_b32 s{sQ}, s{sI}, 3
        s_lshr_b32 s{sCL}, s{sTB}, 1
        s_and_b32 s{sM}, s{sI}, 7
        s_mul_i32 s{sCT}, s{sQ}, 7
        s_add_u32 s{sCT}, s{sCT}, s{sW}
        s_mul_i32 s{sA1}, s{sCT}, {14*1024}
        s_add_u32 s{sA2}, s{sA1}, {W2P}
        s_mul_i32 s{sA3}, s{sM}, 7
        s_add_u32 s{sA3}, s{sA3}, s{sW}
        s_mul_i32 s{sA4}, s{sA3}, {28*1024}
        s_add_u32 s{sA3}, s{sA4}, {W3P}
        s_add_u32 s{sA4}, s{sA4}, {W4P}
        s_lshl3_add_u32 s{sUS}, s{sXCD}, s{sW}
        s_mul_i32 s{sUS}, s{sUS}, 28672
        s_lshl_b32 s68, s{sI}, 5
        s_add_u32 s{sUS}, s{sUS}, s68
        s_add_u32 s{sUS}, s{sUS}, {GX}
        s_lshl_b32 s{sSM}, s{sW}, 11
        s_add_u32 s{sSM}, s{sSM}, {SM}
        s_mov_b32 s{sFAST}, 0
        s_and_b32 s68, s43, 6
        s_cmp_eq_u32 s68, 2
        s_cselect_b32 s{rW+2}, {448*3584}, 0
        s_cselect_b32 s{sPACT}, {WS_BYTES}, 0"""
    def h2_addr(s):
        return f"""v_min_u32 v18, 503, v0
        v_mul_u32_u24 v19, 7282, v18
        v_lshrrev_b32 v19, 16, v19
        v_mul_u32_u24 v20, 9, v19
        v_sub_u32 v20, v18, v20
        s_and_b32 s70, s{sQ}, 1
        s_lshl3_add_u32 s70, s{sTB}, s70
        s_sub_u32 s70, s70, 1
        v_mul_u32_u24 v22, 768, v19
        v_lshrrev_b32 v18, 2, v20
        v_lshl_add_u32 v22, v18, 8, v22
        v_and_b32 v18, 3, v20
        v_lshl_add_u32 v22, v18, 4, v22
        v_add_u32 v22, {L_HI}, v22
        v_add_u32 v20, s70, v20
        s_movk_i32 s70, 511
        v_med3_i32 v20, v20, 0, s70
        v_lshrrev_b32 v18, 3, v20
        v_mul_u32_u24 v21, 28672, v18
        v_lshl_add_u32 v21, v19, 9, v21
        v_and_b32 v18, 7, v20
        v_lshl_add_u32 v21, v18, 4, v21
        s_mov_b32 s88, {X1}
        v_add_u32 v26, {FB - FA}, v17"""

    def pack_early(s):
        s.wait(s.h_pack)
        s(f"""ds_read_b64_tr_b16 v[52:53], v24
        ds_read_b64_tr_b16 v[54:55], v24 offset:256
        ds_read_b64_tr_b16 v[56:57], v24 offset:32
        ds_read_b64_tr_b16 v[58:59], v24 offset:288
        buffer_store_dwordx4 v[52:55], v{vL16}, {sr(rWS)}, s{sPD0} offen sc1
        buffer_store_dwordx4 v[56:59], v{vL16}, {sr(rWS)}, s{sPD1} offen sc1""")

    def ln(s):
        s.comment('layernorm of one token per wave')
        s('v_mov_b32 v51, 0x3f803f80\nv_dot2_f32_bf16 v48, v28, v51, 0')
        s.stamp(2)
        s('v_dot2_f32_bf16 v49, v28, v28, 0')
        for i in (29, 30, 31): s(f'v_dot2_f32_bf16 v48, v{i}, v51, v48\nv_dot2_f32_bf16 v49, v{i}, v{i}, v49')
        un = []
        for i in range(4): un += [f'v_lshlrev_b32 v{32+2*i}, 16, v{28+i}', f'v_and_b32 v{33+2*i}, 0xffff0000, v{28+i}']
        s(un.pop()); s(un.pop()); s(f'v_mov_b32 v50, {INVD}')
        for m in ('row_shr:1', 'row_shr:2', 'row_shr:4', 'row_shr:8', 'row_bcast:15 row_mask:0xa', 'row_bcast:31 row_mask:0xc'):
            s(f'v_add_f32_dpp v48, v48, v48 {m}\nv_add_f32_dpp v49, v49, v49 {m}')
            s(un.pop())
        s(f"""v_readlane_b32 s70, v48, 63
        v_readlane_b32 s71, v49, 63
        s_lshl_b32 s72, s{sW}, 3
        v_mov_b32 v65, s72
        v_mul_f32 v49, s70, v50
        v_mul_f32 v48, s71, v50
        v_fma_f32 v48, -v49, v49, v48
        v_max_f32 v48, 0, v48
        v_add_f32 v48, {EPS}, v48
        v_rsq_f32 v50, v48
        s_mov_b32 exec_hi, 0x00ffffff
        v_mul_f32 v51, -v49, v50""")
        for i in range(4): s(f'v_pk_fma_f32 {vr(40+2*i,2)}, {vr(32+2*i,2)}, v[50:51], v[50:51] op_sel:[0,0,1] op_sel_hi:[1,0,1]')
        for i in range(4): s(f'v_cvt_pk_bf16_f32 v{28+i}, v{40+2*i}, v{41+2*i}')
        s(f"""ds_write_b128 v26, v[28:31] offset:{L_LN}
        v_mul_f32 v48, v48, v50
        ds_write_b64 v65, v[48:49] offset:{L_SM}
        s_mov_b32 exec_hi, -1
        s_lshr_b32 s{sTAG}, s{sTAG}, 4
        s_mul_i32 s{sTAG}, s{sTAG}, 1664525
        s_add_u32 s{sTAG}, s{sTAG}, 1013904223
        s_lshl_b32 s{sTAG}, s{sTAG}, 4
        s_getreg_b32 s70, hwreg(HW_REG_XCC_ID, 0, 4)
        s_add_u32 s{sTX}, s70, s{sTAG}""")
        s.barrier()
        s(f'ds_read_b64_tr_b16 v[48:49], v27 offset:{L_LN}\nds_read_b64_tr_b16 v[50:51], v27 offset:{L_LN + 4*LNP}')
        s.cond(f's_cmp_lg_u32 s{sW}, 7', lambda: s(f's_mov_b64 exec, 15\nds_read_b128 v[48:51], v{vL16} offset:{L_SM}\nv_mov_b32 v71, v{vL16}\ns_lshl_b32 s{sUO}, s2, 6\ns_add_u32 s{sUO}, s{sUO}, {SM}'))
        s(f'v_and_b32 v48, -2, v48\nbuffer_store_dwordx4 v[48:51], v71, {sr(rWS)}, s{sUO} offen sc1\ns_mov_b64 exec, -1')
        s.stamp(3)
        s.wait(*[h for h, r in s.vm if r])
        s.stamp(40)
        s.cond(f's_cmp_ge_u32 s43, 2', s.pack_early)

    def pack_dma(s):
        s(f's_mov_b32 m0, s93\nbuffer_load_dwordx4 v23, {sr(rW)}, s90 offen lds\ns_add_u32 m0, s93, 1024')
        s.h_pack = s(f'buffer_load_dwordx4 v23, {sr(rW)}, s89 offen lds')
    def publish_a(s, conv=True):
        s.wait_vm(0, force=True)
        s('s_barrier')
        s.stamp(5)
        s.gflag8(0, sFO, sTX, 118)
        s(f's_lshl4_add_u32 s{sFO}, s2, {FB}')
        if s.cfg.dma_at == 1: s.pack_dma(); s(f's_mov_b32 m0, s{sKG}')
    def pack_late_store(s):
        P = 76 if s.cfg.pst_at >= 6 else 28
        s.wait(s.h_pack)
        for e in range(4): s(f'ds_read_b64_tr_b16 {vr(P+2*e,2)}, v24 offset:{1024*(e>>1) + 256*(e&1)}')
        s(f"""s_mov_b32 s{rW}, s{sWS}
        s_mov_b32 s{rW+1}, s{sWS+1}
        s_mov_b32 s{rW+2}, s{sPACT}
        buffer_store_dwordx4 {vr(P)}, v{vL16}, {sr(rW)}, s{sPD0} offen sc1""")
        s.h_pst = s(f'buffer_store_dwordx4 {vr(P+4)}, v{vL16}, {sr(rW)}, s{sPD1} offen sc1')
        def colsum():
            s(f's_mov_b32 vcc_lo, 0xf0f00f0f\ns_mov_b32 vcc_hi, 0xf0f00f0f\nv_mov_b32 v{P+12}, 0x3f803f80')
            for i in range(4): s(f'v_cndmask_b32 v{P+8+i}, 0, v{P+12}, vcc')
            s(f'''s_lshr_b32 s70, s{sPD0}, 4
            s_add_u32 s70, s70, {CSP - W3P // 16}
            v_mfma_f32_16x16x32_bf16 {vr(P+12)}, {vr(P+8)}, {vr(P)}, 0
            v_mfma_f32_16x16x32_bf16 {vr(P+12)}, {vr(P+8)}, {vr(P+4)}, {vr(P+12)}
            v_lshlrev_b32 v{P+8}, 2, v{vL}
            s_mov_b32 exec_hi, 0
            buffer_store_dword v{P+12}, v{P+8}, {sr(rWS)}, s70 offen sc1
            s_mov_b32 exec_hi, -1''')
        s.cond('s_cmp_lg_u32 s43, 2', colsum, drain=False)

    def cm(s, d, a, b, t):
        return [f'v_pk_mul_f32 {vr(t,2)}, {vr(a,2)}, {vr(b,2)} op_sel_hi:[1,0]',
                f'v_pk_fma_f32 {vr(d,2)}, {vr(a,2)}, {vr(b,2)}, {vr(t,2)} op_sel:[1,1,0] op_sel_hi:[0,1,1] neg_lo:[1,0,0]']
    def kgen(s):
        c = s.cfg
        assert c.fa_at <= c.poll_at <= c.chk_at
        Z = lambda k: 74 + 2 * k
        Z128, ZD, R0, R1, TT = 92, 94, 112, 114, 116
        CH = [(96, 98, 100, 102), (104, 106, 108, 110)]
        BF, AF, ACC = 156, (172, 188, 204), 220
        s(f"""s_lshl_b32 s70, s{sLDT}, 16
        s_and_b32 s71, s{sLDT}, 0xffff0000
        s_cmp_lt_u32 s{sW}, 4
        s_cselect_b32 s72, s70, s71
        s_mov_b32 s70, {LOG2E}
        s_mov_b32 s71, {INV2PI}
        v_mov_b32 v64, s72
        v_lshlrev_b32 v60, 16, v60
        v_mul_f32 v64, s70, v64
        v_mul_f32 v60, s70, v60
        v_exp_f32 v64, v64
        v_exp_f32 v60, v60
        v_lshlrev_b32 v61, 16, v61
        v_lshlrev_b32 v62, 16, v62
        v_lshlrev_b32 v63, 16, v63
        v_cvt_pk_bf16_f32 v64, v64, v60
        v_and_b32 v60, 0xffff0000, v64
        v_lshlrev_b32 v64, 16, v64
        v_pk_mul_f32 v[60:61], v[60:61], v[64:65] op_sel_hi:[1,0]
        v_add_f32 v64, v64, v64
        v_pk_mul_f32 v[60:61], v[60:61], s[70:71]
        v_pk_mul_f32 {vr(R0,2)}, v[62:63], v[64:65] op_sel_hi:[1,0]
        s_mov_b32 m0, s{sKG}
        s_mov_b32 s70, 0x41000000
        s_mov_b32 s71, 0x43000000
        v_pk_mul_f32 v[62:63], v[60:61], s[70:71] op_sel_hi:[1,0]
        v_pk_mul_f32 v[64:65], v[60:61], s[70:71] op_sel:[0,1]
        s_lshl_b32 s{sD0}, s{sD1}, 16
        s_and_b32 s{sD1}, s{sD1}, 0xffff0000""")
        for r in (62, 64, 60): s(f'v_exp_f32 v{r}, -v{r}\nv_fract_f32 v{r+1}, v{r+1}')
        for r, d in ((62, Z(8)), (64, Z128), (60, Z(1))): s(f'v_cos_f32 v{d}, v{r+1}\nv_sin_f32 v{d+1}, v{r+1}')
        for r, d in ((62, Z(8)), (64, Z128), (60, Z(1))): s(f'v_pk_mul_f32 {vr(d,2)}, {vr(d,2)}, {vr(r,2)} op_sel_hi:[1,0]')
        s.stamp(4)
        def chain(st, rows, start, mul, neg=False):
            a, b, t, pk = CH[st]; out = []; cur, nxt = start, a
            for i, row in enumerate(rows):
                cc = s.cm(nxt, cur, mul, t) if i < len(rows) - 1 else []
                out += cc[:1] + [f'v_cvt_pk_bf16_f32 v{pk + (i&1)}, v{cur}, {"-" if neg else ""}v{cur+1}'] + cc[1:] + [f'ds_write_addtid_b32 v{pk + (i&1)} offset:{row*KGP}']
                cur, nxt = nxt, (b if nxt == a else a)
            return out
        def rd(dst):
            for ks in range(4): s(f'ds_read_b128 {vr(dst+4*ks)}, v20 offset:{64*ks}')
        E = lambda l: [s(x) for x in l]
        zz = zipl if c.two else (lambda *a: sum(a, []))
        def hook(k):
            if c.fa_at == k: s.publish_a()
            if c.pst_at == k and k < c.poll_at: s.pack_late_store()
            if c.poll_at == k:
                s.poll_issue(118, 17, 0)
                if c.upf: s(f'buffer_load_dword v119, v10, {sr(rWS)}, s{sUS} offen sc1')
            if c.chk_at == k:
                s.poll_check(118, 17, 0, c.fa_sleep)
                if s.stamps: s('v_writelane_b32 v3, s97, 58')
                s(f's_mov_b32 m0, s{sUM}')
                s.h_u = s(f'buffer_load_dwordx4 v10, {sr(rWS)}, s{sUS} offen sc1 lds')
                if k < 4: s(f's_mov_b32 m0, s{sKG}')
                s.stamp(8)
            if c.pst_at == k and k >= c.poll_at: s.pack_late_store()
        hook(0)
        if c.two:
            E(zipl(s.cm(ZD, Z(8), Z(8), 100), s.cm(R1, R0, Z(8), 108), s.cm(Z(2), Z(1), Z(1), TT)))
            E(zipl(chain(0, range(0, 16, 2), R0, ZD, True), chain(1, range(1, 16, 2), R1, ZD, True)))
            rd(BF)
            E(zipl(s.cm(ZD, Z128, Z128, 100), s.cm(R1, Z(8), Z128, 108), s.cm(Z(4), Z(2), Z(2), TT)))
            hook(1); s.stamp(35)
            E(zipl(chain(0, range(0, 16, 2), Z(8), ZD), chain(1, range(1, 16, 2), R1, ZD)))
        else:
            rc = chain(0, range(16), R0, Z(8), True)
            E(rc[:4*c.rsplit]); hook(0.5); E(rc[4*c.rsplit:])
            rd(BF)
            E(s.cm(Z(2), Z(1), Z(1), TT) + s.cm(Z(4), Z(2), Z(2), TT))
            hook(1); s.stamp(35)
            E(chain(0, range(16), Z(8), Z128))
        rd(AF[0])
        E(zipl(s.cm(Z(6), Z(4), Z(2), 100), s.cm(Z(3), Z(2), Z(1), 108), s.cm(Z(5), Z(4), Z(1), TT)))
        hook(2); s.stamp(36)
        E(zz(chain(0, range(0, 8), Z(4), Z128), chain(1, range(8, 12), Z(2), Z128) + chain(1, range(12, 16), Z(6), Z128), s.cm(Z(7), Z(6), Z(1), TT)))
        rd(AF[1])
        s.stamp(47); hook(3); s.stamp(37)
        E(zz(chain(0, (0, 1), Z(1), Z128) + chain(0, (4, 5), Z(5), Z128), chain(1, (2, 3), Z(3), Z128) + chain(1, (6, 7), Z(7), Z128)))
        s(f'v_mov_b32 v{TT}, 0x3f80\nds_write_addtid_b32 v{TT} offset:{8*KGP}')
        rd(AF[2])
        s.stamp(6); hook(4)
        if c.kbar: s('s_barrier')
        mf = lambda t, ks: f'v_mfma_f32_16x16x32_bf16 {vr(ACC+4*t)}, {vr(AF[t]+4*ks)}, {vr(BF+4*ks)}, {vr(ACC+4*t) if ks else 0}'
        wr = lambda t, r: f'ds_write_b32 v19, v{ACC+4*t+r} offset:{(16*t+r)*256}'
        if c.ktm:
            E([mf(0, k) for k in range(4)] + [mf(1, k) for k in range(4)] + zipl([mf(2, k) for k in range(4)], [wr(0, r) for r in range(4)]))
            E([wr(t, r) for t in (1, 2) for r in range(4)])
        else:
            E([mf(t, k) for k in range(4) for t in range(2)] + [mf(2, k) for k in range(4)] + [wr(t, r) for t in range(3) for r in range(4)])
        s.stamp(48); hook(5)
        s.barrier()
        s.stamp(7)
        hook(5.5)
        for t in range(9): s(f'ds_read_b128 {vr(28+4*t)}, v{132+t}')
        hook(6)
        if c.chk_at <= 5 and c.pst_at <= 6: s.feed(c.f_kt, 63)
        for t in range(9):
            s(f'v_pk_add_f32 {vr(28+4*t,2)}, {vr(28+4*t,2)}, {vr(30+4*t,2)}')
            if t: s(f'v_add_f32 v{24+4*t}, v{24+4*t}, v{25+4*t}')
        s('v_add_f32 v60, v60, v61')
        for i in range(4): s(f'v_cvt_pk_bf16_f32 v{64+i}, v{28+8*i}, v{32+8*i}')
        s('ds_write_b128 v18, v[64:67]')
        for i in range(4): s(f'v_cvt_pk_bf16_f32 v{68+i}, v{32+8*i}, v{36+8*i}')
        s(f'ds_write_b128 v18, v[68:71] offset:{KEO}')
        s.stamp(9); hook(7)

    def conv(s):
        c = s.cfg
        A, B, ACC = 28, 60, 92
        def rd(kind, slot, e, j):
            if kind == 'B': return [f'ds_read_b128 {vr(B+4*slot)}, v{8+e} offset:{1024*j}']
            off = 16 * (1 - e) + 128 * (1 - (j & 1))
            return [f'ds_read2_b32 {vr(A+4*slot+2*h,2)}, v{4+(j>>1)} offset0:{off+2*h} offset1:{off+2*h+1}' for h in range(2)]
        M = []
        for k in range(8):
            p1 = [(k, j) for j in range(k + 1) if k + j <= 7]; p2 = [(j, k) for j in range(k) if k + j <= 7]
            M += [(0, a, b) for a, b in p1 + p2]
        if c.cil:
            for nu in range(0, 8, 2): M += [(1, a, b) for a, b in zipl([(a, nu + 1 - a) for a in list(range(1, nu + 1)) + [0, nu + 1]], [(a, nu - a) for a in range(nu + 1)])]
        else:
            for nu in range(8): M += [(1, a, nu - a) for a in range(nu + 1)]
        slot = {(0, j): j for j in range(8)}
        for k in range(4, 8): slot[1, 2*(k-4)] = k; slot[1, 2*(k-4) + 1] = 7 - k
        ops = []
        for e in range(2):
            for j in range(8):
                for kind, ix in (('A', 1), ('B', 2)):
                    need = min(n for n, m in enumerate(M) if m[0] == e and m[ix] == j)
                    early = -1 if e == 0 else max(n for n, m in enumerate(M) if m[0] == 0 and m[ix] == slot[1, j])
                    ops += [(need, early, t) for t in rd(kind, slot[e, j], e, j)]
        ops.sort(key=lambda o: o[0])
        D = {n: [] for n in range(-1, 73)}
        pos = -1.0
        for i, (need, early, t) in enumerate(ops):
            if i < c.chead: D[-1].append(t); continue
            pos = max(pos + c.cpace, early)
            pos = max(min(pos, need - c.clead), early)
            D[int(pos)].append(t)
        done = {nu: max(n for n, m in enumerate(M) if m[1] + m[2] == nu) for nu in range(8)}
        at = c.cy0
        for nu in range(8):
            at = max(at, done[nu] + 3)
            D[min(int(at), 72)].append(f'ds_write_b128 v13, {vr(ACC+4*nu)} offset:{L_Y + 8192*nu}')
            at += c.cyp
        s.wait(s.h_u); s.barrier(); s.stamp(10)
        for t in D[-1]: s(t)
        ex = s.spread(c.f_conv, 66, 4)
        bs = ['ds_read_b64 v[140:141], v15', 'ds_read_b64 v[142:143], v16', '', '', '', '']
        for i in range(4): bs += [f'v_lshlrev_b32 v{132+2*i}, 16, v{140+i}', f'v_and_b32 v{133+2*i}, 0xffff0000, v{140+i}']
        for ch in range(2):
            bs += [f'v_add_f32 v{140+r}, s{sD0+ch}, v{124+2*r}' for r in range(4)]
            bs += [f'v_fma_f32 v{132+4*ch+r}, v{132+4*ch+r}, v{140+r}, v{125+2*r}' for r in range(4)]
        ha = s.h2_addr().split('\n')
        seen = set()
        for n, (e, a, b) in enumerate(M):
            nu = a + b
            s.fair(n, c.fc)
            s(f'v_mfma_f32_16x16x32_bf16 {vr(ACC+4*nu)}, {vr(A+4*slot[e, a])}, {vr(B+4*slot[e, b])}, {vr(ACC+4*nu) if nu in seen else 0}')
            seen.add(nu)
            for t in D[n]: s(t)
            if n == 1: s(f'buffer_load_dwordx4 v[124:127], v11, {sr(rWS)}, s{sSM} offen sc1')
            if n == 2: s(f'buffer_load_dwordx4 v[128:131], v11, {sr(rWS)}, s{sSM} offen offset:16 sc1\ns_lshl_b32 s68, s2, 6\ns_add_u32 s68, s68, {FH}')
            if ex: ex.pop(0)()
            if n >= 4 and ha: s(ha.pop(0))
            if n >= 40 and bs: s(bs.pop(0))
        if c.fc: s('s_setprio 0')
        for t in D[72]: s(t)
        assert not bs and not ha
        s.stamp(38)
        s.barrier(); s.stamp(11)
        for i in (0, 4, 1, 5, 2, 6, 3, 7): s(f'ds_read_b128 {vr(A+4*i)}, v14 offset:{L_Y + 1024*i}')
        s.gflag8(6, sFO, sTAG, 23)
        if c.hint_at == 8: s.gflag(7, 68, sTAG, 17, False)
        for i in (0, 4, 1, 5, 2, 6, 3, 7):
            ch = i >> 2
            for h in range(2): s(f'v_pk_add_f32 {vr(132+4*ch+2*h,2)}, {vr(132+4*ch+2*h,2)}, {vr(A+4*i+2*h,2)}')
        for r in range(4): s(f'v_cvt_pk_bf16_f32 v{140+r}, v{132+r}, v{136+r}')
        s('v_and_b32 v140, -2, v140')
        h = s.hstore(140)
        s.stamp(12)
        s.feed(c.f_hst, 63)
        return h

    def nonconv(s):
        c = s.cfg
        s(f'v_lshlrev_b32 v15, 7, v{vL}')
        if c.sb_at == 1: s.setup_b()
        s(f'v_lshlrev_b32 v15, 7, v{vL}')
        s(s.h2_addr())
        if c.dma_at == 0: s.pack_dma()
        s.publish_a(False)
        s.pack_late_store()
        s.poll(18, 17, 0, sleep=8)
        s.barrier(); s.stamp(8)
        s.gflag8(1, sFO, sTAG, 118)
        s(f's_add_u32 s70, s{sA2}, {14*1024 - 8192}')
        s.feed(c.f_hst, c.nc_depth)
        if c.warm: s(f'buffer_load_dword v119, v15, {sr(rG)}, s70 offen')
        s.wait_vm(0); s.stamp(10)
    def hint_wait(s):
        def body():
            s(f's_lshl_b32 s68, s2, 6\ns_add_u32 s68, s68, {FH - 32*64}\nv_mov_b32 v9, 0')
            s.poll(8, 9, 's68', 1, 0, sleep=4)
        s.cond(f's_cmp_lt_u32 s{sI}, 28', body)

    def h2(s, behind, mid=lambda: None):
        ld = [f'buffer_load_dwordx4 {vr(8+4*j)}, v4, {sr(rWS)}, s88 offen offset:{128*j} sc1' for j in range(4)]
        chk = ['v_or3_b32 v24, v8, v12, v16', 'v_or_b32 v24, v24, v20', 'v_and_b32 v24, 1, v24', 'v_cmp_eq_u32 vcc, 1, v24']
        if s.cfg.hdel: s(f's_sleep {s.cfg.hdel}')
        for l in ld: s(l)
        s.poll_issue(25, 26, 0)
        mid()
        for l in chk: s(l)
        retry, back = s.lab('hr'), s.lab('hb')
        s(f's_mov_b32 s97, 0\ns_cbranch_vccnz {retry}')
        s.label(back)
        s.ool.append(f'{retry}:\n' + ('    s_mov_b64 exec, vcc\n' if s.cfg.hmask else '') + ''.join(f'    {l}\n' for l in ld) + f'    s_add_u32 s97, s97, 1\n    s_cmp_gt_u32 s97, {SPIN}\n    s_waitcnt vmcnt(0)\n    s_cbranch_scc1 {back}\n'
                     + ''.join(f'    {l}\n' for l in chk) + f'    s_nop 1\n    s_cbranch_vccnz {retry}\n    s_branch {back}\n')
        if s.cfg.hmask: s('s_mov_b64 exec, -1')
        if s.stamps: s('v_writelane_b32 v3, s97, 59')
        s.stamp(14)
        behind()
        for j in range(4):
            for i in range(j): s(f'v_swap_b32 v{8+4*j+i}, v{8+4*i+j}')
        for i in range(4): s(f'ds_write_b128 v5, {vr(8+4*i)} offset:{64*i}')
        s.poll_check(25, 26, 0, 2)
        if s.stamps: s('v_writelane_b32 v3, s97, 57')

    def stats_tail(s, a, extra, vadr, tab):
        s('s_mov_b64 exec, -1')
        for t in range(3): s(f'v_cndmask_b32 v{a+4*t}, v{a+4*t}, v{a+4*t+1}, s[92:93]')
        for t in range(3): s(f'v_cndmask_b32 v{a+4*t}, v{a+4*t}, v{a+4*t+2}, s[94:95]')
        for t in (1, 2):
            s(f'v_mov_b32_dpp v{a+4*t+1}, v{a+4*t+3} row_ror:{4*t}\nv_mov_b32_dpp v{a+4*t+2}, v{a+4*t} row_ror:{4*t}')
        for t in (1, 2):
            s(f'v_cndmask_b32 v{a+3}, v{a+3}, v{a+4*t+1}, {sr(76+2*t,2)}\nv_cndmask_b32 v{a}, v{a}, v{a+4*t+2}, {sr(76+2*t,2)}')
        s(f'''s_mov_b32 exec_lo, 0x77700777
        s_mov_b32 exec_hi, 0x70777707
        v_mul_f32 v{a+3}, s96, v{a+3}
        v_mul_f32 v{a}, s96, v{a}
        v_fma_f32 v{a}, -v{a+3}, v{a+3}, v{a}
        v_max_f32 v{a}, 0, v{a}
        v_add_f32 v{a+1}, {EPS}, v{a}
        v_rsq_f32 v{a+1}, v{a+1}''')
        if extra:
            s(f'''v_mul_f32 v{a}, v{a}, v{a+1}
            v_mov_b32 v50, v{a+1}
            v_mul_f32 v51, -v{a+3}, v{a+1}
            v_fmaak_f32 v{a}, v{a}, v{a+1}, {EPS}
            v_rsq_f32 v{a}, v{a}
            ds_write_b64 v{extra}, v[50:51] offset:{tab // 2}
            v_mul_f32 v{a+1}, v{a+1}, v{a}''')
        if not extra:
            s(f'''v_cvt_pk_bf16_f32 v{a}, -v{a+3}, -v{a+3}
            v_mul_f32 v{a+2}, {fh(C1)}, v{a+1}
            v_and_b32 v51, 0xffff0000, v{a}
            v_add_f32 v51, v51, v{a+3}
            v_rcp_f32 v{a+3}, v{a+1}
            v_mul_f32 v{a+1}, v{a+1}, v{a+1}
            v_mul_f32 v{a+1}, v{a+1}, v{a+2}
            v_and_b32 v{a+3}, 0xffffff7f, v{a+3}
            v_mul_f32 v{a+1}, {fh(0.044715)}, v{a+1}
            v_and_b32 v{a+2}, 0xffffff7f, v{a+2}
            v_and_b32 v{a+1}, 0xffffff7f, v{a+1}
            ds_write_b128 v{vadr}, {vr(a)} offset:{tab}
            v_cvt_pk_bf16_f32 v{a}, -v51, -v51
            ds_write_b128 v{vadr}, {vr(a)} offset:{tab + 512}''')
            return
        s(f'''v_rcp_f32 v{a+2}, v{a+1}
        v_mul_f32 v{a}, {fh(C1)}, v{a+1}
        v_mul_f32 v{a+1}, v{a+1}, v{a+1}
        v_mul_f32 v{a+1}, v{a+1}, v{a}
        v_mul_f32 v{a+1}, {fh(0.044715)}, v{a+1}
        ds_write_b128 v{vadr}, {vr(a)} offset:{tab}''')
    def gelu_pk(s, acc, cs, st, n, t, out):
        P = range(0, n, 2); o = []
        o += [f'v_pk_fma_f32 {vr(acc+i,2)}, {vr(cs+i,2)}, {vr(st+2,2)}, {vr(acc+i,2)} op_sel:[0,1,0] op_sel_hi:[1,1,1] neg_lo:[0,1,0] neg_hi:[0,1,0]' for i in P]
        o += [f'v_pk_mul_f32 {vr(t+i,2)}, {vr(acc+i,2)}, {vr(acc+i,2)}' for i in P]
        o += [f'v_pk_fma_f32 {vr(t+i,2)}, {vr(t+i,2)}, {vr(st,2)}, {vr(st,2)} op_sel:[0,1,0] op_sel_hi:[1,1,0]' for i in P]
        o += [f'v_pk_mul_f32 {vr(t+i,2)}, {vr(t+i,2)}, {vr(acc+i,2)}' for i in P]
        o += [f'v_exp_f32 v{t+i}, v{t+i}' for i in range(n)]
        o += [f'v_pk_fma_f32 {vr(t+i,2)}, {vr(t+i,2)}, {vr(st+2,2)}, {vr(st+2,2)} op_sel_hi:[1,0,0]' for i in P]
        o += [f'v_rcp_f32 v{t+i}, v{t+i}' for i in range(n)]
        o += [f'v_pk_mul_f32 {vr(t+i,2)}, {vr(t+i,2)}, {vr(acc+i,2)}' for i in P]
        o += [f'v_cvt_pk_bf16_f32 v{out+i//2}, v{t+i}, v{t+i+1}' for i in P]
        return o
    def gelu_sc(s, acc, cs, st, n, t, out, ex):
        steps = [lambda i: f'v_fma_f32 v{acc+i}, -v{cs+i}, v{st+3}, v{acc+i}', lambda i: f'v_mul_f32 v{t+i}, v{acc+i}, v{acc+i}',
                 lambda i: f'v_fma_f32 v{t+i}, v{t+i}, v{st+1}, v{st}', lambda i: f'v_mul_f32 v{t+i}, v{t+i}, v{acc+i}',
                 lambda i: f'v_exp_f32 v{t+i}, v{t+i}', lambda i: f'v_fma_f32 v{t+i}, v{t+i}, v{st+2}, v{st+2}',
                 lambda i: f'v_rcp_f32 v{t+i}, v{t+i}', lambda i: f'v_mul_f32 v{t+i}, v{t+i}, v{acc+i}',
                 lambda i: f'v_cvt_pk_bf16_f32 v{out+i//2}, v{t+i}, v{t+i+1}' if i % 2 == 0 else '']
        for f in steps:
            ex.pop(0)()
            for i in range(n): s(f(i))
    def gemm16(s, W, acc, vaddr, kstride, first_zero, ex):
        seq = [(ks, t) for ks in range(14) for t in range(2)]
        def rd(i): ks, t = seq[i]; s(f'ds_read_b128 {vr(8+4*(i%4))}, v{vaddr} offset:{ks*kstride + 256*t}')
        for i in range(3): rd(i)
        for i, (ks, t) in enumerate(seq):
            if i + 3 < 28: rd(i + 3)
            c = 0 if (first_zero and ks == 0) else vr(acc + 4*t)
            s.fair(i, s.cfg.fg)
            s(f'v_mfma_f32_16x16x32_bf16 {vr(acc+4*t)}, {vr(W+4*ks)}, {vr(8+4*(i%4))}, {c}')
            if ex: ex.pop(0)()
        if s.cfg.fg: s('s_setprio 0')
    def gemm32(s, jobs, vaddr, extra=None, nb=4, buf=8):
        seq = [(j, i) for j, job in enumerate(jobs) for i in range(job[1])]
        ex = list(extra or [])
        def rd(n): j, i = seq[n]; s(f'ds_read_b128 {vr(buf+4*(n%nb))}, v{vaddr} offset:{jobs[j][3] + 1024*i}')
        if s.cfg.prio: s('s_setprio 1')
        for n in range(nb - 1): rd(n)
        for n, (j, i) in enumerate(seq):
            W, nk, acc, _, after = jobs[j]
            if n + nb - 1 < len(seq): rd(n + nb - 1)
            s(f'v_mfma_f32_32x32x16_bf16 {vr(acc,16)}, {vr(W+4*i)}, {vr(buf+4*(n%nb))}, {vr(acc,16) if i else 0}')
            if ex: ex.pop(0)()
            if i == nk - 1 and after: ex += [lambda: None] * 3 + after
        s('s_setprio 0')
        s.run(ex)
    def g_pre(s):
        s.comment('G wave addresses (v6 GEMM1 B, v7 residual h, v50/v51 stats, masks)')
        s(f'''s_lshl_b32 s70, s{sQ}, 2
        s_lshr_b32 s71, 0x2213, s70
        s_and_b32 s71, s71, 15
        s_lshr_b32 s72, 0x0404, s70
        s_and_b32 s72, s72, 15
        v_and_b32 v44, 15, v{vL}
        v_lshrrev_b32 v45, 4, v{vL}
        v_add_u32 v46, s71, v44
        v_add_u32 v47, s72, v44''')
        s.pos(6, 46, 48)
        s(f'v_mul_u32_u24 v48, 768, v45\nv_add_u32 v6, v6, v48\nv_add_u32 v6, {L_HI}, v6')
        s.pos(7, 47, 48)
        s(f'''v_lshrrev_b32 v48, 1, v45
        s_lshl_b32 s73, s{sCT}, 1
        v_add_u32 v48, s73, v48
        v_mul_u32_u24 v48, 768, v48
        v_and_b32 v49, 1, v45
        v_lshl_add_u32 v48, v49, 3, v48
        v_add_u32 v7, v7, v48
        v_add_u32 v7, {L_HI}, v7
        s_sub_u32 s73, s71, s72
        s_lshl_b32 s70, s{sTB}, 5
        s_add_u32 s73, s73, s70
        v_add_u32 v48, s73, v44
        v_add_u32 v49, 16, v48
        s_movk_i32 s70, 2048
        v_cmp_gt_u32 {sr(sM0,2)}, s70, v48
        v_cmp_gt_u32 {sr(sM1,2)}, s70, v49
        v_lshlrev_b32 v50, 4, v46
        v_add_u32 v50, {L_STA}, v50
        v_lshlrev_b32 v51, 3, v47
        v_add_u32 v51, {L_STB}, v51''')
        for j in range(3): s(f's_add_u32 s70, s{sQ}, {j+1}\ns_and_b32 s70, s70, 3\ns_mul_i32 s70, s70, 7\ns_add_u32 s70, s70, s{sW}\ns_lshl_b32 s{4+j}, s70, 10')
        s(f'''s_lshl_b32 s7, s{sW}, 10
        s_mul_i32 s8, s{sTB}, 28672
        s_add_u32 s8, s8, {GX}
        s_xor_b32 s9, s{sTB}, 1
        s_mul_i32 s9, s9, 28672
        s_add_u32 s9, s9, s7
        s_add_u32 s9, s9, {X1}
        s_lshl_b32 s69, s{sCT}, 10
        s_add_u32 s70, s69, s8
        s_add_u32 s71, s70, {X1 - GX}
        v_add_u32 v46, s69, v{vL16}
        v_add_u32 v47, s7, v{vL16}''')
        for i in range(4): s(f'v_mov_b32 v{28+i}, 0x3f803f80')
        for ks in range(14): s(f'v_mfma_f32_16x16x32_bf16 v[32:35], {vr(vW1+4*ks)}, v[28:31], {"v[32:35]" if ks else 0}')

    def g_wave(s, hst):
        c = s.cfg
        assert c.f_hok <= 28
        s.g_pre()
        if c.hack: s.wait(hst)
        s.hint_wait()
        s.stamp(13)
        s.h2(lambda: s.feed(c.f_hok, 63), lambda: s.feed(c.f_hld, 63))
        s.barrier(); s.stamp(15)
        s(f'v_mov_b32 v4, {L_FAST}\nds_read_b32 v4, v4\nv_lshlrev_b32 v5, 4, v44\nv_lshl_add_u32 v5, v45, 9, v5')
        s.gemm16(vW1, 24, 6, 3072, True, s.spread(c.f_g1, 28))
        s(f'v_readfirstlane_b32 s{sFAST}, v4')
        s(f's_mul_i32 s69, s{sM}, 7\ns_add_u32 s69, s69, s{sW}\ns_mul_i32 s69, s69, 1792\ns_add_u32 s69, s69, {CSP}\nv_lshlrev_b32 v48, 2, v{vL}')
        csl = lambda: [s(f'buffer_load_dword v{164+i}, v48, {sr(rWS)}, s69 offen offset:{256*i}') for i in range(7)]
        if c.cs_at == 0: csl()
        s.barrier(); s.stamp(16)
        s('ds_read_b128 v[36:39], v50\nds_read_b128 v[40:43], v50 offset:256')
        gl = zipl(s.gelu_pk(24, 32, 36, 4, 8, 20), s.gelu_pk(28, 32, 40, 4, 12, 22))
        ex = s.spread(c.f_gel, len(gl))
        for l in gl: s(l); ex.pop(0)()
        s(f"""v_cndmask_b32 v20, 0, v20, {sr(sM0,2)}
        v_cndmask_b32 v22, 0, v22, {sr(sM1,2)}
        v_cndmask_b32 v21, 0, v21, {sr(sM0,2)}
        v_cndmask_b32 v23, 0, v23, {sr(sM1,2)}
        v_permlane16_swap_b32 v20, v22
        v_permlane16_swap_b32 v21, v23
        v_or_b32 v20, 1, v20""")
        s.xstore([f'buffer_store_dwordx4 v[20:23], v{vL16}, {sr(rWS)}, s70 offen'])
        s.stamp(17)
        s(f"""ds_write_b128 v46, v[20:23] offset:{L_GI}
        ds_read_b64 v[8:9], v7
        ds_read_b64 v[10:11], v7 offset:256
        ds_read_b64 v[12:13], v51
        ds_read_b64 v[14:15], v51 offset:128""")
        for i in range(4): s(f'v_lshlrev_b32 v{vRES+2*i}, 16, v{8+i}\nv_and_b32 v{vRES+1+2*i}, 0xffff0000, v{8+i}')
        for i in range(4): s(f'v_pk_fma_f32 {vr(24+2*i,2)}, {vr(vRES+2*i,2)}, {vr(12+2*(i>>1),2)}, {vr(12+2*(i>>1),2)} op_sel:[0,0,1] op_sel_hi:[1,0,1]')
        if c.dack[0]: s.wait_vm(0)
        s.stamp(18)
        hd, td = s.fetch_issue([(4+j, L_GI, 4+j, 's8') for j in range(3)])
        if c.bar_a: s('s_barrier')
        if c.cs_at == 1: csl()
        s.feed(c.f_b3a, 63)
        p1, p2 = s.fetch_check(hd, td, 47, L_GI, 4, 8)
        p1(); p2(); s.stamp(42)
        if s.stamps: s('v_writelane_b32 v3, s97, 62')
        if c.cs_at == 2: csl()
        s.feed(c.f_gok, 63)
        s(f's_add_u32 s8, s8, {X1 - GX}\nv_add_u32 v47, {L_XI}, v47')
        s.barrier(); s.stamp(19)
        s.gemm16(vW2, 24, 5, 2048, False, s.spread(c.f_g2, c.g2span))
        for i in range(4): s(f'v_cvt_pk_bf16_f32 v{20+i}, v{24+2*i}, v{25+2*i}')
        s('v_permlane16_swap_b32 v20, v22\nv_permlane16_swap_b32 v21, v23\nv_or_b32 v20, 1, v20')
        s.xstore([f'buffer_store_dwordx4 v[20:23], v{vL16}, {sr(rWS)}, s71 offen'])
        s.stamp(20)
        s(f'ds_write_b128 v46, v[20:23] offset:{L_XI + 28672}')
        s(f"""v_mov_b32 v49, 0
        v_mov_b32 v50, 0
        v_mov_b32 v51, 0
        v_add_u32 v6, {L_XI}, v{vL16}
        s_lshl_b32 s70, s{sW}, 11
        s_add_u32 s70, s70, {L_HID}
        v_add_u32 v7, s70, v{vL16}
        v_add_u32 v44, {L_HID}, v{vL16}""")
        for i in range(8): s(f'v_add_f32 v{vRES+i}, v{vRES+i}, v{24+i}')
        if c.dack[1]: s.wait_vm(0)
        s.stamp(21)
        hd, td = s.fetch_issue([(7, L_XI + 7168*j, 9, 7168*j) for j in range(4)])
        s(f'''v_pk_add_f32 v[164:165], v[164:165], v[166:167]
        v_add_f32 v168, v168, v170
        v_pk_add_f32 v[164:165], v[164:165], v[168:169]
        v_add_f32 v164, v164, v165
        v_mov_b32 v165, v164
        v_permlane32_swap_b32 v164, v165
        v_add_f32 v164, v164, v165
        v_cvt_pk_bf16_f32 v48, v164, v164
        v_and_b32 v165, 0xffff0000, v48
        v_sub_f32 v165, v164, v165
        v_cvt_pk_bf16_f32 v48, v164, v165''')
        p1, p2 = s.fetch_check(hd, td, 47, 0, 4, 8)
        p1(); p2(); s.stamp(43)
        if s.stamps: s('v_writelane_b32 v3, s97, 63')
        hx, tx = s.fetch_issue([(4+j, L_XI + 28672, 4+j, 's8') for j in range(3)])
        s.feed(c.f_b4a, 63)
        later = []
        for r, x in ((12, 1), (15, 0)):
            later.append(f"""s_xor_b32 s69, s{sTB}, {x}
            s_mul_i32 s70, s69, 28
            s_add_u32 s70, s70, s{sCT}
            s_lshl_b32 s71, s70, 10
            s_add_u32 s{r}, s71, {GX}
            s_add_u32 s{r+1}, s71, {X1}
            s_lshl1_add_u32 s{r+2}, s71, {PX}
            s_lshl_b32 s69, s69, 5
            s_add_u32 s69, s69, s{sCT}
            s_lshl2_add_u32 s{18+x}, s69, {F7}""")
        later.append(f"""s_xor_b32 s72, s{sTB}, 1
        s_lshl_b32 s72, s72, 5
        s_lshr_b32 s74, s{sCT}, 2
        s_add_u32 s72, s72, s74
        s_lshl2_add_u32 s72, s72, {F7}
        s_bfe_u32 s74, s{sCT}, 0x10001
        s_mul_i32 s74, s74, {F7B - F7}
        s_add_u32 s72, s72, s74""")
        AC, ST, A4 = (180, 164), (vST3, 160), ((112, 128), (180, 144))
        seq = []
        gp, gd = c.gp, c.gd
        for t, a, b in ((0, 0, gp), (1, 0, gd), (0, gp, 28), (1, gd, 28)): seq += [(vW3 + 4*k, AC[t], k == 0, (6, 28672*t + 1024*k)) for k in range(a, b)]
        use0 = lambda k: k if k < gp else k + gd
        e0 = 27 + gd
        for t in range(2):
            for j in range(2):
                prs = [(w, ctl) for w in range(7) for ctl in range(2)]
                if j == 1: prs = [(w, ctl) for ctl in range(2) for w in range(7)]
                seq += [((vW4A + 4*(2*w + ctl), vW4B + 4*(7*ctl + w))[j], A4[t][ctl], j == 0 and w == 0, (44, 14336*t + 1024*(2*w + j))) for w, ctl in prs]
        reads = []; ridx = []
        for n, e in enumerate(seq):
            if not reads or reads[-1][0] != e[3]: reads.append((e[3], n))
            ridx.append(len(reads) - 1)
        nb = 4
        rat = {}
        for r, (key, n) in enumerate(reads):
            free = max([m for m in range(112) if ridx[m] == r - nb], default=-1)
            rat[r] = max(free, n - c.pd)
        X = {i: [] for i in range(-1, 113)}
        def place(items, a, b):
            bu = c.burst
            for k, it in enumerate(items):
                p = a + (k * (b - a + 1)) // len(items)
                X[min(b, p + (bu - 1 - (p - a) % bu))].append(it)
        I = lambda t: (lambda: s(t))
        def gelu(t, h):
            acc, st, o, G = AC[t] + 8*h, ST[t], [], c.ggrp
            for j in range(0, 8, G):
                R = range(G); T = 24 + j
                o += [f'v_mul_f32 v{T+i}, v{acc+j+i}, v{acc+j+i}' for i in R]
                o += [f'v_fma_f32 v{T+i}, v{T+i}, v{st+1}, v{st+2}' for i in R]
                o += [f'v_mul_f32 v{T+i}, v{T+i}, v{acc+j+i}' for i in R]
                for i in R: o += [f'v_exp_f32 v{T+i}, v{T+i}', '']
                o += [f'v_fma_f32 v{T+i}, v{T+i}, v{st+3}, v{st+3}' for i in R]
                for i in R: o += [f'v_rcp_f32 v{T+i}, v{T+i}', '']
                o += [f'v_mul_f32 v{T+i}, v{T+i}, v{acc+j+i}' for i in R]
                o += [f'v_cvt_pk_bf16_f32 v{32+(j+i)//2}, v{T+i}, v{T+i+1}' for i in range(0, G, 2)]
            o.append(f'ds_write_b128 v7, v[32:35] offset:{14336*t + 1024*h}\nds_write_addtid_b32 v44 offset:{L_EV - 32768 + 2048*(2*t + h)}')
            return [I(x) for x in o]
        def sync(at, k, st):
            rdl = f'ds_read_b32 v4, v46 offset:{2048*k}'
            def chk():
                spin, back = s.lab('ls'), s.lab('lb')
                s(f's_cbranch_vccnz {spin}')
                s.label(back); s.stamp(st)
                s.ool.append(f'{spin}:\n    s_mov_b32 s97, 0\n{spin}a:\n    {rdl}\n    s_add_u32 s97, s97, 1\n    s_cmp_gt_u32 s97, {SPIN*8}\n    s_waitcnt lgkmcnt(0)\n    s_cbranch_scc1 {back}\n'
                             f'    v_cmp_eq_u32 vcc, 0, v4\n    s_nop 1\n    s_cbranch_vccz {back}\n    s_sleep 1\n    s_branch {spin}a\n')
            X[at - c.sd].append(I(rdl)); X[at].insert(0, I('v_cmp_eq_u32 vcc, 0, v4')); X[at].append(chk)
        hs = {}
        def blk(base, k): return f's{base + min(k, 2)} offen offset:{1024 * (k == 3)}'
        def fin(t, ctl, h, pk, last=False):
            acc = A4[t][ctl] + 8*h
            def f():
                if t == 1:
                    un = A4[0][ctl] + 8*h
                    if last:
                        for i in range(0, 8, 2): s(f'v_pk_add_f32 {vr(acc+i,2)}, {vr(acc+i,2)}, {vr(un+i,2)}')
                    else:
                        for i in range(8): s(f'v_add_f32 v{acc+i}, v{acc+i}, v{un+i}')
                for i in range(4): s(f'v_cvt_pk_bf16_f32 v{pk+i}, v{acc+2*i}, v{acc+2*i+1}')
                s(f'v_or_b32 v{pk}, 1, v{pk}' if t else f'v_and_b32 v{pk}, -2, v{pk}')
                s.xstore([f'buffer_store_dwordx4 {vr(pk)}, v{vL16}, {sr(rWS)}, {blk(12 + 3*t, 2*ctl + h)}'])
                hs[t, ctl] = s.vm[-1][0]
            return f
        def stage1(ctl, at):
            fo = ctl * (F7B - F7)
            def flag():
                s(f'v_mov_b32 v45, s{sTAG}\ns_add_u32 s69, s18, {fo}')
                s.wait(hs[0, ctl]); s('s_mov_b64 exec, 1')
                s.xstore([f'buffer_store_dword v45, off, {sr(rWS)}, s69'])
                s('s_mov_b64 exec, -1')
            def fetch():
                s.poll_check(47, 49, 's70'); s.stamp(45 + ctl)
                for h in range(2): s(f'buffer_load_dwordx4 {vr(164 + 8*ctl + 4*h)}, v{vL16}, {sr(rWS)}, {blk(15, 2*ctl + h)} sc1')
            X[at[0]].append(fin(0, ctl, 0, 108)); X[at[1]].append(fin(0, ctl, 1, 196))
            X[at[2]].append(flag)
            X[at[3]].append(lambda: (s(f's_add_u32 s70, s19, {fo}'), s.poll_issue(47, 49, 's70')))
            X[at[4]].append(fetch)
            un = []
            for i in range(8): un += [f'v_lshlrev_b32 v{A4[0][ctl] + 2*i}, 16, v{164 + 8*ctl + i}', f'v_and_b32 v{A4[0][ctl] + 2*i + 1}, 0xffff0000, v{164 + 8*ctl + i}']
            place([I(x) for x in un], at[5], min(at[5] + 3, 111))
        bsave, c.burst = c.burst, 1
        ch = []
        for t in later:
            cur = []
            for l in t.split('\n'):
                if len(cur) >= 5 and 'cselect' not in l: ch.append('\n'.join(cur)); cur = []
                cur.append(l)
            ch.append('\n'.join(cur))
        assert not any(x.strip().split('\n')[-1].strip().startswith('s_cmp') for x in ch)
        place([I(x) for x in ch], 1, 9)
        if s.wn < 56:
            w3e = c.w3e if c.w3e is not None else max(0, s.wn - 28 - 5)
            n3 = 56 - s.wn
            assert all((k * (w3e + 1)) // n3 < use0(s.wn - 28 + k) for k in range(n3)) and w3e < c.w4a[0]
            place([s.feed1] * n3, 0, w3e)
        if s.wn < 70: place([s.feed1] * (70 - max(s.wn, 56)), c.w4a[0], c.w4a[1])
        place([s.feed1] * 14, c.w4b[0], c.w4b[1])
        c.burst = bsave
        first = lambda n: rat[ridx[n]] - 1
        x1st = first(gp if gd else 28)
        assert c.x_at + 2 <= x1st - c.sd
        sync(x1st if gd else x1st - 3, 5, 49)
        sync(e0 - 3, 4, 23)
        X[e0 - 3].append(I(f'ds_read_b128 {vr(ST[0])}, v44 offset:{L_ST3 - L_HID}'))
        X[e0].append(I(f'v_mfma_f32_32x32x16_bf16 {vr(AC[0],16)}, v[48:51], {vr(ST[0])}, {vr(AC[0],16)}'))
        assert c.q[0] > e0
        q = c.q
        for k in range(4): place(gelu(k >> 1, k & 1), q[k], q[k+1] - 1)
        X[55].append(I(f'ds_read_b128 {vr(ST[1])}, v44 offset:{L_ST3 - L_HID + 1024}'))
        X[57].append(I(f'v_mfma_f32_32x32x16_bf16 {vr(AC[1],16)}, v[48:51], {vr(ST[1])}, {vr(AC[1],16)}'))
        for k in range(4):
            assert first(56 + 14*k) - c.sd >= q[k+1] - 1, (k, first(56 + 14*k))
            sync(first(56 + 14*k), k, (25, 26, 27, 41)[k])
        assert c.st0[4] >= q[3] and c.st1[4] >= q[4] and c.st0[4] < c.st1[3]
        stage1(0, c.st0); stage1(1, c.st1)
        X[107].append(fin(1, 0, 0, 108)); X[109].append(fin(1, 0, 1, 196)); X[112] += [fin(1, 1, 0, 24, c.lastpk), fin(1, 1, 1, 28, c.lastpk)]
        ident = [f'v_and_b32 v24, 15, v{vL}', f'v_bfe_u32 v25, v{vL}, 4, 1', 'v_lshlrev_b32 v25, 3, v25', 'v_sub_u32 v24, v24, v25', 'v_mov_b32 v26, 0x3f80', 'v_mov_b32 v27, 1.0']
        for d in range(4): ident.append(f'v_cmp_eq_u32 s[22:23], {2*d}, v24\nv_cmp_eq_u32 s[24:25], {2*d+1}, v24\nv_cndmask_b32 v{32+d}, 0, v26, s[22:23]\nv_cndmask_b32 v{32+d}, v{32+d}, v27, s[24:25]')
        ident += [f'v_lshrrev_b32 v25, 5, v{vL}\nv_and_b32 v6, 31, v{vL}\nv_mul_u32_u24 v6, 896, v6\nv_lshl_add_u32 v6, v25, 4, v6',
                  f"""s_mul_i32 s74, s{sTB}, 28
        s_lshr_b32 s22, s{sCT}, 2
        s_add_u32 s74, s74, s22
        s_lshl_b32 s74, s74, 10
        s_and_b32 s22, s{sCT}, 1
        s_lshl_b32 s71, s22, 21""", f"""s_add_u32 s71, s71, s74
        s_add_u32 s71, s71, {GX}
        s_lshl_b32 s22, s22, 10
        s_lshl1_add_u32 s74, s74, s22
        s_add_u32 s74, s74, {PX}""", f"""s_movk_i32 s22, 7168
        s_bitcmp1_b32 s{sCT}, 1
        s_cselect_b32 s74, s74, s71
        s_cmovk_i32 s22, 14336
        s_lshl1_add_u32 s75, s22, s74
        s_sub_u32 s22, s22, 1024
        v_mad_u32_u24 v5, v25, s22, v5""", f"""s_mul_i32 s76, s{sTB}, {32*896}
        s_lshl_b32 s77, s{sCT}, 5
        s_add_u32 s76, s76, s77
        s_mov_b32 s{rX}, s{sOUT}
        s_mov_b32 s{rX+1}, s{sOUT+1}
        s_mov_b32 s{rX+2}, {2048*896}
        s_mov_b32 s{rX+3}, 0x20000""", f'v_and_b32 v7, 3, v{vL}\nv_mul_u32_u24 v7, 28, v7']
        place([I(x) for x in ident], q[4] + 1, 101)
        X[c.fpoll].append(lambda: s.poll_issue(45, 7, 's72')); X[c.fpoll + 4].append(lambda: s.poll_check(45, 7, 's72'))
        def rd(r): (va, off), _ = reads[r]; s(f'ds_read_b128 {vr(8+4*(r%nb))}, v{va} offset:{off}')
        p1, p2 = s.fetch_check(hx, tx, 47, 28672, 4, 24, f's_mov_b32 m0, s21')
        X[c.x_at].insert(0, p1); X[c.x_at + 2].append(lambda: (p2(), s(f'ds_write_addtid_b32 v44 offset:{L_EV - 32768 + 2048*5}')))
        s(f'v_and_b32 v46, 7, v{vL}\nv_mul_u32_u24 v46, 260, v46\nv_add_u32 v46, {L_EV}, v46\ns_lshl_b32 s21, s{sW}, 8\ns_add_u32 s21, s21, 32768\ns_mov_b32 m0, s21')
        s.barrier(); s.stamp(22)
        for r in range(len(reads)):
            if rat[r] < 0: rd(r)
        LS = [10, 26, 78, 80, 40, 42, 44, 46, 62, 64, 66, 88, 90, 92, 94]
        for n, (W, acc, fst, key) in enumerate(seq):
            if c.lst and n % 8 == 0: s.raw(f'    s_memtime s[{LS[n//8]}:{LS[n//8]+1}]')
            s.fair(n, c.fm)
            s(f'v_mfma_f32_32x32x16_bf16 {vr(acc,16)}, {vr(W)}, {vr(8+4*(ridx[n]%nb))}, {0 if fst else vr(acc,16)}')
            for r in range(len(reads)):
                if rat[r] == n: rd(r)
            s.run(X[n])
        if c.lst: s.raw('    s_memtime s[94:95]')
        s.run(X[112])
        if c.lst:
            s.wait_lg(0, force=True)
            for i, r in enumerate(LS): s(f'v_writelane_b32 v3, s{r}, {1 + i}')
        s.stamp(28)
        if c.dack[2]: s.wait_vm(0)
        s.stamp(29)
        ld = [f'buffer_load_dwordx4 {vr(52+8*u+4*t)}, v5, {sr(rWS)}, s{74+u} offen offset:{256*t} sc1' for u in range(2) for t in range(2)]
        ck = ['v_and_b32 v8, v52, v56', 'v_and_b32 v9, v60, v64', 'v_and_b32 v8, 1, v8', 'v_and_b32 v8, v8, v9', 'v_cmp_eq_u32 vcc, 0, v8']
        retry, back = s.lab('er'), s.lab('eb')
        for l in ld + ck: s(l)
        s(f's_mov_b32 s97, 0\ns_cbranch_vccnz {retry}'); s.label(back)
        s.ool.append(f'{retry}:\n' + ''.join(f'    {l}\n' for l in ld) + f'    s_add_u32 s97, s97, 1\n    s_cmp_gt_u32 s97, {SPIN}\n    s_waitcnt vmcnt(0)\n    s_cbranch_scc1 {back}\n'
                     + ''.join(f'    {l}\n' for l in ck) + f'    s_nop 1\n    s_cbranch_vccnz {retry}\n    s_branch {back}\n')
        s.stamp(30)
        for u in range(2):
            for t in range(2): s(f'v_mfma_f32_16x16x32_bf16 {vr(vRES+4*t)}, v[32:35], {vr(52+8*u+4*t)}, {vr(vRES+4*t)}')
        for i in range(4): s(f'v_cvt_pk_bf16_f32 v{20+i}, v{vRES+2*i}, v{vRES+1+2*i}')
        s('v_permlane16_swap_b32 v20, v22\nv_permlane16_swap_b32 v21, v23')
        s(f'buffer_store_dwordx4 v[20:23], v6, {sr(rX)}, s76 offen')
        s.stamp(31)

    def s_mfma(s, addrs, acc, kstride, base, nk=14):
        seq = [(ks, t) for ks in range(nk) for t in range(3)]
        nb = 8
        def rd(i): ks, t = seq[i]; s(f'ds_read_b128 {vr(52+4*(i%nb))}, v{addrs+t} offset:{base + ks*kstride}')
        s('s_mov_b32 exec_lo, 0x77777777\ns_mov_b32 exec_hi, 0x77777777')
        for i in range(nb - 1): rd(i)
        for i, (ks, t) in enumerate(seq):
            if i + nb - 1 < len(seq): rd(i + nb - 1)
            s(f'v_mfma_f32_16x16x32_bf16 {vr(acc+4*t)}, {vr(52+4*(i%nb))}, {vr(52+4*(i%nb))}, {vr(acc+4*t) if ks else 0}')
    def s_wave(s, hst):
        s.comment('S wave: statistics, polling, DMA')
        s('s_setprio 2')
        s(f'''s_and_b32 s70, s2, 0xc7
        s_lshl_b32 s70, s70, 4
        s_mul_i32 s71, s{sXCD}, {FCP}
        s_add_u32 s70, s70, s71
        s_add_u32 s70, s70, {FA}
        v_and_b32 v44, 7, v{vL}
        v_lshlrev_b32 v44, 7, v44
        buffer_load_dword v48, v44, {sr(rWS)}, s70 offen sc1''')
        def ftouch():
            s(f'''s_lshl_b32 s72, s{sTB}, 7
            s_add_u32 s72, s72, {F3}
            s_mov_b32 m0, {L_JUNK}
            v_min_u32 v45, 4, v{vL}
            v_lshlrev_b32 v45, 13, v45
            buffer_load_dword v45, {sr(rWS)}, s72 offen sc1 lds''')
            if s.cfg.etouch:
                s(f's_mul_i32 s70, s{sTB}, 28\ns_add_u32 s70, s70, s{sCT}\ns_lshl_b32 s70, s70, 11\ns_add_u32 s70, s70, {PX - 7*2048}\ns_add_u32 s71, s70, 7168\ns_mov_b32 exec_hi, 0x00ffffff')
                s(f'buffer_load_dword v7, {sr(rWS)}, s70 offen sc1 lds\nbuffer_load_dword v7, {sr(rWS)}, s71 offen sc1 lds\ns_mov_b32 exec_hi, -1')
        for i in range(32): s(f'v_mov_b32 v{52+i}, 0x3f803f80')
        s(f'''v_and_b32 v44, 3, v{vL}
        v_bfe_u32 v45, v{vL}, 2, 2
        v_mad_u32_u24 v40, v45, 3, v44
        v_lshrrev_b32 v41, 4, v{vL}''')
        for t in range(3):
            s(f'v_add_u32 v46, {12*t}, v40')
            s.pos(84 + t, 46, 47)
            s(f'v_mul_u32_u24 v47, 768, v41\nv_add_u32 v{84+t}, v{84+t}, v47\nv_add_u32 v{84+t}, {L_HI}, v{84+t}')
            s(f'v_min_u32 v46, 31, v46\nv_lshlrev_b32 v46, 4, v46\nv_lshl_add_u32 v46, v41, 9, v46\nv_add_u32 v{88+t}, {L_XI}, v46')
        s(f'''v_sub_u32 v45, v45, v41
        v_and_b32 v45, 3, v45
        v_cmp_eq_u32 s[78:79], 1, v45
        v_cmp_eq_u32 s[80:81], 2, v45
        v_mad_u32_u24 v40, v41, 3, v44
        v_mad_u32_u24 v40, v45, 12, v40
        v_min_u32 v92, 31, v40
        v_lshlrev_b32 v92, 4, v92
        v_add_u32 v92, {L_ST3}, v92
        v_lshlrev_b32 v42, 4, v40
        v_add_u32 v42, {L_STA}, v42
        v_lshlrev_b32 v43, 3, v40
        v_add_u32 v43, {L_STB}, v43
        v_lshlrev_b32 v6, 2, v{vL}
        v_lshlrev_b32 v7, 7, v{vL}
        v_cmp_ne_u32 vcc, s{sTX}, v48
        v_mov_b32 v46, {L_FAST}
        s_cmp_eq_u64 vcc, 0
        s_cselect_b32 s{sFAST}, 1, 0
        v_mov_b32 v45, s{sFAST}
        ds_write_b32 v46, v45
        v_and_b32 v38, 7, v{vL}
        v_mul_u32_u24 v38, 260, v38
        v_add_u32 v38, {L_EV}, v38
        v_lshlrev_b32 v46, 8, v{vL}
        v_and_b32 v46, 0x3800, v46
        v_add_u32 v46, v46, v38
        s_mov_b32 vcc_lo, 0x80800000
        s_mov_b32 vcc_hi, 0x807f
        v_cndmask_b32 v45, 0, v38, vcc
        ds_write_b32 v46, v45''')
        s.hint_wait()
        s.stamp(13)
        s.h2(ftouch)
        s(f'v_cmp_eq_u32 s[92:93], 1, v44\nv_cmp_eq_u32 s[94:95], 2, v44\ns_mov_b32 s96, {INVD}')
        s(f'''s_lshl2_add_u32 s70, s{sTB}, s{sQ}
        s_lshl_b32 s71, s70, 4
        s_add_u32 s71, s71, {FN}
        v_and_b32 v45, 1, v{vL}
        v_lshlrev_b32 v45, 3, v45
        v_sub_u32 v45, v44, v45
        s_lshl2_add_u32 s72, s{sTB}, 4
        v_add_u32 v45, s72, v45
        v_mov_b32 v47, s70
        v_cmp_gt_u32 vcc, 0x100, v45
        v_mov_b32 v36, s{sTAG}
        s_mov_b32 s72, {FN}
        v_cndmask_b32 v45, v47, v45, vcc
        s_xor_b32 s70, s70, 4
        v_writelane_b32 v45, s70, 4
        v_lshlrev_b32 v37, 4, v45''')
        s.barrier(); s.stamp(15)
        s(f's_mov_b64 exec, 1\nbuffer_store_dword v36, off, {sr(rWS)}, s71 sc1')
        s.s_mfma(84, 24, 3072, 0)
        s.stats_tail(24, 43, 42, 0)
        s('s_mov_b64 exec, -1')
        s.barrier(); s.stamp(16)
        s.poll(4, 37, 's72', 31, 0, sleep=4)
        for i in range(2 + s.cfg.bar_a): s('s_barrier')
        s.stamp(22)
        def lwait(k):
            l, l2, l3 = s.lab('tw'), s.lab('tx'), s.lab('ty')
            s(f's_mov_b32 s97, 0\ns_branch {l2}'); s.label(l); s(f's_sleep 1\ns_add_u32 s97, s97, 1\ns_cmp_gt_u32 s97, {SPIN*8}\ns_cbranch_scc1 {l3}'); s.label(l2)
            s(f'ds_read_b32 v4, v38 offset:{2048*k}\nv_cmp_eq_u32 vcc, 0, v4\ns_cbranch_vccnz {l}'); s.label(l3)
        post = lambda k: s(f's_mov_b64 exec, 0x80\nds_write_b32 v38, v38 offset:{2048*k}\ns_mov_b64 exec, -1')
        def touch():
            s(f'''s_mul_i32 s70, s{sTB}, 28
            s_mul_i32 s71, s{sQ}, 7
            s_add_u32 s70, s70, s71
            s_lshl_b32 s71, s70, 10
            s_add_u32 s71, s71, {GX}
            s_add_u32 s69, s71, {X1 - GX}
            s_lshl_b32 s70, s70, 11
            s_add_u32 s70, s70, {PX}
            s_mov_b32 m0, {L_JUNK}
            s_mov_b32 exec_hi, 0x00ffffff''')
            rf = f'buffer_load_dword v7, {sr(rWS)}, s71 offen sc1 lds\nbuffer_load_dword v7, {sr(rWS)}, s69 offen sc1 lds'
            if s.cfg.refresh == 1: s(rf)
            for i in range(2):
                k = (s.cfg.touch_at, s.cfg.touch2)[i]
                if k < 4: lwait(k)
                s(f'buffer_load_dword v7, {sr(rWS)}, s70 offen sc1 lds\ns_add_u32 s70, s70, 7168')
            if s.cfg.refresh == 2: s(rf)
            s('s_mov_b32 exec_hi, -1')
        for t in range(2):
            if s.cfg.x_ns: s(f's_mov_b32 s96, {fh(1/96)}')
            s.s_mfma(88, 24, 2048, 28672 * t, 3 if s.cfg.x_ns else 14)
            s.stats_tail(24, None, 92, 1024 * t)
            post((4, 0)[t])
            s.stamp(23 + t)
            if t == 0:
                lwait(5)
                s(f's_lshl_b32 s72, s{sCL}, 8\ns_add_u32 s72, s72, {F5 + 28}\ns_lshl_b32 s73, s{sM}, 5\ns_add_u32 s73, s73, s72\nv_lshlrev_b32 v37, 5, v{vL}')
                s.flag(73)
        s.poll(4, 37, 's72', '0xff', 0, sleep=2)
        post(1)
        s.stamp(25)
        if s.cfg.touch_at != 5: touch()
        s.cond('s_cmp_lg_u32 s2, 0', lambda: s(f'v_mov_b32 v4, s{sTAG}\ns_mov_b32 s70, {EP}\ns_mov_b64 exec, 1\nbuffer_store_dword v4, off, {sr(rWS)}, s70 sc1\ns_mov_b64 exec, -1'))
        s.wait_vm(0); s.stamp(28)

def build(stamps=False, cfg=None):
    s = K(stamps, cfg or Cfg())
    c = s.cfg
    s.entry(); s.setup(); s(s.scalars())
    if c.dma_at == -1: s(f's_cmp_lt_u32 s43, 2\ns_cmov_b32 s{rW+2}, {448*896}'); s.pack_dma()
    if c.sb_at == 0: s.setup_b()
    s.stamp(34); s.ln()
    s(f's_cmp_ge_u32 s{sI}, 28'); s.flush_hazards(); s('s_cbranch_scc1 Lnonconv')
    st = s.state()
    s.clear()
    if c.sb_at == 1: s.setup_b()
    s.stamp(33)
    if c.dma_at == 0: s.pack_dma()
    if c.fa_at == -1: s.publish_a()
    s.kgen(); hst = s.conv()
    s.label('Ljoin')
    s(f'v_mov_b32 v4, v21\nv_mov_b32 v5, v22\ns_cmp_eq_u32 s{sW}, 7'); s.flush_hazards(); s('s_cbranch_scc1 Lsw')
    st2 = s.state()
    s.g_wave(hst); s.dump_stamps(); s('s_endpgm')
    s.label('Lsw'); s.set_state(st2)
    s.s_wave(hst); s.dump_stamps()
    s.label('Lend'); s('s_endpgm')
    s.label('Lnonconv'); s.set_state(st); s.wn = 0
    s.nonconv(); s.flush_hazards(); s('s_branch Ljoin')
    name = NAME + '_kernel'
    txt = f'''; @launch grid=(256,1,1) block=(512,1,1) lds={LDS_BYTES}
.amdgcn_target "amdgcn-amd-amdhsa--gfx950"
.text
.globl {name}
.p2align 8
.type {name},@function
{name}:
''' + s.text() + ''.join(s.ool) + tap_table() + f'''.section .rodata,"a"
.p2align 6
.amdhsa_kernel {name}
  .amdhsa_next_free_vgpr 256
  .amdhsa_next_free_sgpr 102
  .amdhsa_accum_offset 256
  .amdhsa_group_segment_fixed_size 0
  .amdhsa_kernarg_size 120
  .amdhsa_user_sgpr_count 2
  .amdhsa_user_sgpr_kernarg_segment_ptr 1
  .amdhsa_system_sgpr_workgroup_id_x 1
.end_amdhsa_kernel
'''
    size, syms = code_info(txt.replace('@CODE_BYTES@', '1000').replace('@TAB_OFF@', '1000'))
    return txt.replace('@CODE_BYTES@', str(syms['tap_table'] + 2048 + 4224 - syms['Lpc'] - 4)).replace('@TAB_OFF@', str(syms['tap_table'] - syms['Lpc']))
def tap_table():
    RB = {8: 0, 4: 16, 2: 24, 6: 28, 1: 32, 3: 34, 5: 36, 7: 38}
    def rnd(l):
        sh = max(0, l.bit_length() - 8)
        if not sh: return l
        q, r = l >> sh, l & ((1 << sh) - 1); half = 1 << (sh - 1)
        return (q + (r > half or (r == half and q & 1))) << sh
    v = []
    for i in range(2056):
        l = 2047 - i
        if l < 0: e = 768
        elif l == 0: e = 640
        else: p = rnd(l); e = RB[((p - 1) & 7) + 1] * 16 + ((p - 1) >> 3)
        v.append(e * 16)
    v += [0] * 56
    lane = []
    for l in range(64):
        n, g = l & 15, l >> 4; tb = 2*n + (g >> 1); rr, cc = (l >> 2) & 3, l & 3
        bb = lambda c_: 32*c_ + 16*((c_ >> 3) & 1)
        lane.append([4*(4*g - (n >> 1)) + 28 + KEO*(1 - (n & 1)), bb(30 + 2*n + g), bb(26 + 2*n + g), (l >> 1)*896 + 16*((l ^ g) & 1),
                     tb*64 + (g & 1)*32, (n >> 1)*1792 + 4*(n & 1) + g, bb(tb) + 8*(g & 1), (g*64 + n)*16 + 4*((l >> 3) & 3),
                     n*KGP + 16*g, (8*g + rr)*64 + cc*8, (8*(g >> 1) + rr)*64 + (g & 1)*32 + (cc & 1)*16 + (cc >> 1)*8,
                     (l >> 2)*896 + cc*16, (l >> 2)*3584 + cc*16, rr*LNP + 32*g + 8*cc, rr*KEO + 16*(l & 1), 0])
    pk = []
    for b in range(256):
        for w in range(8):
            U = 256*w + 32*(b & 7) + (b >> 3)
            if U < 392: m, V = divmod(U, 196); kb, cb = divmod(V, 14); src = kb*32*896; d0 = 392*m + 28*cb + kb; d1 = d0 + 14
            elif U < 1176: m = 2; kb, cb = divmod(U - 392, 56); src = kb*32*3584; d0 = 784 + 28*cb + 2*kb; d1 = d0 + 1
            elif U < 1960: m = 3; kb, cb = divmod(U - 1176, 14); src = kb*32*896; d1 = 2352 + ((kb//7)*7 + (cb >> 1))*28; d0 = d1 + 2*(kb % 7) + (cb & 1); d1 += 14 + 7*(cb & 1) + kb % 7
            else: m, cb, src, d0, d1 = 4, 0, 0, 0, 0
            pk += [(m << 24) | (src + 64*cb), d0 | (d1 << 16)]
    t = '.p2align 7\n.type tap_table,@object\ntap_table:\n'
    for h in range(2):
        for l in range(64): t += '.short ' + ', '.join(map(str, lane[l][8*h:8*h+8])) + '\n'
    for i in range(0, 2112, 8): t += '.short ' + ', '.join(map(str, v[i:i+8])) + '\n'
    for i in range(0, 4096, 8): t += '.long ' + ', '.join(map(str, pk[i:i+8])) + '\n'
    return t + f'.size tap_table, {2048 + 4224 + 16384}\n'
def code_info(txt):
    import subprocess, tempfile, re
    with tempfile.TemporaryDirectory() as d:
        open(d + '/a.s', 'w').write(txt)
        subprocess.run(['clang', '-x', 'assembler', '-target', 'amdgcn-amd-amdhsa', '-mcpu=gfx950', '-c', d + '/a.s', '-o', d + '/a.o'], check=True)
        o = subprocess.run(['llvm-readelf', '-S', '-s', d + '/a.o'], capture_output=True, text=True).stdout
        size = int(re.search(r'\.text\s+PROGBITS\s+\S+\s+\S+\s+(\S+)', o).group(1), 16)
        return size, {m.group(2): int(m.group(1), 16) for m in re.finditer(r'\d+: ([0-9a-f]{16}) .* (\S+)\n', o)}
if __name__ == '__main__':
    sys.stdout.write(build(stamps=len(sys.argv) > 1))
```

```python
import sys, os, struct
sys.path.insert(0, os.path.dirname(os.path.abspath(__file__)))
from dsl import Asm, Ins

NAME = 'sequential_preLN__ssm_conv_s4d__mixer_s_mlp__prompt'
W1P, W2P, W3P, W4P = 0, 392 * 1024, 784 * 1024, 2352 * 1024
SM, CSP = 0x600000, 0x700000
GX, X1, PX = 0xA00000, 0xC00000, 0x1000000
FL = 0x2000000
F3, F4, F5, F7, F7B = FL, FL + 0x2000, FL + 0x4000, FL + 0x6000, FL + 0x8000
FH, FN, EP, FA, FB = FL + 0x1A000, FL + 0x1E000, FL + 0x20000, FL + 0x30000, FL + 0x40000
FCP = 4352
TS = 0x3000000
WS_BYTES = 0x4000000
L_LN, LNP = 0, 960
L_PK, L_PK2 = 15360, 32768
L_KG, KGP = 31744, 288
L_Y = 0
L_KT, KTSZ = 68608, 12320
L_KE, KEO, KECH = 93312, 4160, 8320
L_U = 110080
L_SM = 8 * LNP
L_HI, L_GI, L_XI, L_HID, L_ST = 106880, 0, 28672, 106880, 149888
L_STA, L_STB, L_FAST, L_JUNK, L_ST3 = L_ST, L_ST + 768, L_ST + 1152, L_ST + 1280, L_ST + 1536
L_EV = 86016
LDS_BYTES = 153600
LOG2E, INV2PI, EPS, INVD = 0x3fb8aa3b, 0x3e22f983, 0x3727c5ac, 0x3b124925
C1 = -2.0 * 0.7978845608028654 * 1.4426950408889634
def fh(x): return '0x%08x' % struct.unpack('<I', struct.pack('<f', x))[0]
SPIN = 1 << 18
sX, sLA, sAI, sCR, sCI, sDT, sDS = 4, 6, 8, 10, 12, 14, 16
sW1, sW2, sW3, sW4, sOUT, sWS = 20, 22, 24, 26, 28, 30
rWS, rX, rD, rW, rG = 32, 36, 40, 44, 48
sW, sXCD, sI, sP, sTAG, sTB, sQ, sCL, sM, sFAST = range(52, 62)
sPD0, sPD1, sUO, sSM, sFO, sPACT = range(62, 68)
sUS, sKG, sHD, sUM = 74, 75, 76, 77
sLDT, sD0, sD1 = 40, 41, 42
sM0, sM1, sCT, sTX = 78, 80, 82, 83
sA1, sA2, sA3, sA4 = 84, 85, 86, 87
def sr(n, k=4): return f's[{n}:{n+k-1}]'
def vr(n, k=4): return f'v[{n}:{n+k-1}]'
vL16, vL = 1, 2
vW1, vW2, vW3, vW4A, vW4B = 144, 200, 52, 200, 52
vCS3, vAC3, vST3, vRES = 164, 180, 196, 36

class Cfg:
    f_kt = 3
    fa_at, dma_at, poll_at, chk_at, pst_at, fa_sleep = 0.5, 1, 3, 5, 6, 1
    rsplit = 8
    f_conv = 18
    f_hst = 18
    f_hld = 18
    f_hok = 24
    f_g1 = 35
    f_gel = 0
    x_dp, g2span = 0, 14
    f_gfl = 0
    f_b3a = 0
    f_g2 = 43
    f_xfl = 0
    f_b4a = 45
    two = 0
    tab = 0
    xbar = 0
    fb_at = 0
    x_nof = 99
    prio = 0
    bar_a, x_at = 0, 3
    ggrp, burst, pd, sd = 4, 1, 3, 2
    q = (33, 47, 60, 73, 86)
    st0, st1, lastpk = (79, 80, 89, 94, 100, 108), (86, 87, 96, 0, 95, 103), 1
    w4a, w4b = (17, 44), (45, 68)
    nc_depth, hint_at, fblate = 8, 72, 0
    depth = 4
    touch_at = 1
    warm = 1
    pal, pins = 3, (None,) * 5
    gsc = 0
    evb2, searly, evp, evc = 1, 1, 1, 0
    fpd = 8
    hfeed = 1
    dack, fpoll, cs_at, f_gok = (1, 1, 1), 103, 2, 37
    etouch, touch2 = 0, 4
    x_ns = x_nc = 0
    gp, gd, w3e = 17, 4, 16
    hack, hdel, hmask = 1, 0, 0
    upf = 0
    ktm = 0
    kbar = 0
    lst2, lregs = (), (4, 6, 8, 10, 12, 14, 16, 18, 20, 22, 24, 26, 78, 80, 98)
    fm, fc, fg = 4, 0, 0
    lst = 0
    sb_at, clr_at = 1, 0
    cil, chead, cpace, clead, cy0, cyp = 0, 9, 1.0, 5, 42, 4
    rts = 0
    refresh = 0
    tdepth = 1
    cpf = 1
    x_late = 0

def zipl(*streams):
    out = []; n = max(len(x) for x in streams)
    for i in range(n):
        for x in streams:
            if i < len(x): out.append(x[i])
    return out

class K(Asm):
    def __init__(s, stamps, cfg):
        super().__init__(); s.stamps = stamps; s.cfg = cfg; s.ool = []; s.nlab = 0; s.wn = 0
    def lab(s, p): s.nlab += 1; return f'L{p}{s.nlab}'
    def srd(s, r, ptr, size):
        s(f's_mov_b32 s{r}, s{ptr}\ns_mov_b32 s{r+1}, s{ptr+1}\ns_mov_b32 s{r+2}, {size}\ns_mov_b32 s{r+3}, 0x20000')
    def stamp(s, idx, real=False):
        if idx in s.cfg.lst2:
            r = s.cfg.lregs[list(s.cfg.lst2).index(idx)]
            s.raw(f'    s_memtime s[{r}:{r+1}]')
            if idx == s.cfg.lst2[-1]:
                s.wait_lg(0, force=True)
                for i, k in enumerate(s.cfg.lst2): s(f'v_writelane_b32 v3, s{s.cfg.lregs[i]}, {k}')
            return
        if not s.stamps or (s.stamps is not True and idx not in (31, 61) and (s.stamps == 'span' or idx not in s.stamps)): return
        s(f's_mem{"real" if real else ""}time s[98:99]'); s.wait_lg(0)
        s(f'v_writelane_b32 v3, s98, {idx}')
        rt = {3: 50, 10: 51, 11: 52, 15: 53, 22: 54, 25: 55, 28: 56}
        if s.cfg.rts and idx in rt:
            s('s_memrealtime s[98:99]'); s.wait_lg(0); s(f'v_writelane_b32 v3, s98, {rt[idx]}')
    def dump_stamps(s):
        if not s.stamps: return
        s.stamp(61, True)
        s(f's_lshl_b32 s98, s2, 3\ns_add_u32 s98, s98, s{sW}\ns_lshl_b32 s98, s98, 8\ns_add_u32 s98, s98, {TS}')
        s(f'v_lshlrev_b32 v4, 2, v{vL}\nbuffer_store_dword v3, v4, {sr(rWS)}, s98 offen')
    def cond(s, cmp_skip, body, drain=True, flush=True):
        l = s.lab('c')
        s(cmp_skip)
        if flush: s.flush_hazards()
        s(f's_cbranch_scc1 {l}')
        vm, lg, hist = list(s.vm), list(s.lg), list(s.hist)
        body()
        if drain: s._wait(lg=0)
        if flush: s.flush_hazards()
        else: s.hist = hist
        s.label(l)
        s.vm, s.lg = vm, lg
    def xstore(s, lines):
        slow, back = s.lab('xs'), s.lab('xb')
        s(f's_cmp_eq_u32 s{sFAST}, 0')
        for l in lines:
            ins = Ins(l); t = ins.rd | ins.wr
            hs = [x[0] for x in s.vm if x[1] & t] + [x[0] for x in s.lg if x[1] & t]
            if hs: s.wait(*hs)
        s(f's_cbranch_scc1 {slow}')
        for l in lines: s(l)
        s.label(back)
        s.ool.append(f'{slow}:\n    s_nop 7\n    s_nop 3\n' + ''.join(f'    {l} sc1\n' for l in lines) + f'    s_branch {back}\n')
    def feed1(s):
        n = s.wn; s.wn += 1
        if n >= s.cfg.x_nof: return
        if n < 14: reg, sb, i = vW1 + 4*n, sA1, n
        elif n < 28: reg, sb, i = vW2 + 4*(n-14), sA2, n - 14
        elif n < 56: reg, sb, i = vW3 + 4*(n-28), sA3, n - 28
        elif n < 70: reg, sb, i = vW4A + 4*(n-56), sA4, n - 56
        else: reg, sb, i = vW4B + 4*(n-70), sA4, n - 56
        if i % 4 == 0 and i: s(f's_add_u32 s{sb}, s{sb}, 4096')
        s(f'buffer_load_dwordx4 {vr(reg)}, v{vL16}, {sr(rG)}, s{sb} offen offset:{(i % 4) * 1024}')
    def feed(s, upto, depth=None):
        depth = depth or s.cfg.depth
        while s.wn < upto:
            s.wait_vm(depth - 1); s.feed1()
    def spread(s, upto, slots, first=0):
        n = max(0, upto - s.wn); out = [lambda: None] * slots
        pos = [first + (k * (slots - first)) // n for k in range(n)] if n else []
        for p in set(pos):
            out[p] = (lambda c=pos.count(p): [s.feed1() for _ in range(c)])
        return out
    def pin(s, k):
        if k is None: return
        s.raw(f'    .p2align {s.cfg.pal}')
        for i in range(k): s('s_nop 0')
    def fair(s, n, k):
        if k and n % k == 0: s('s_setprio 1')
        if k and n % k == k - 1: s('s_setprio 0')
    def run(s, l):
        for f in l: f()
    def pl(s, vdst, vaddr, soff): return f'buffer_load_dword v{vdst}, v{vaddr}, {sr(rWS)}, {soff} offen sc1' if vaddr is not None else f'buffer_load_dword v{vdst}, off, {sr(rWS)}, {soff} sc1'
    def poll_issue(s, vdst, vaddr, soff): return s(s.pl(vdst, vaddr, soff))
    def poll_check(s, vdst, vaddr, soff, sleep=0):
        retry, back = s.lab('pr'), s.lab('pb')
        s(f'v_subrev_u32 v{vdst}, s{sTAG}, v{vdst}\nv_cmp_lt_u32 vcc, 15, v{vdst}\ns_mov_b32 s97, 0\ns_cbranch_vccnz {retry}')
        s.label(back)
        s.ool.append(f'''{retry}:
''' + (f'    s_sleep {sleep}\n' if sleep else '') + f'''    {s.pl(vdst, vaddr, soff)}
    s_add_u32 s97, s97, 1
    s_cmp_gt_u32 s97, {SPIN}
    s_waitcnt vmcnt(0)
    s_cbranch_scc1 {back}
    v_subrev_u32 v{vdst}, s{sTAG}, v{vdst}
    v_cmp_lt_u32 vcc, 15, v{vdst}
    s_nop 1
    s_cbranch_vccnz {retry}
    s_branch {back}
''')
    def poll(s, vdst, vaddr, soff, lo=None, hi=None, sleep=0):
        if lo is not None: s(f's_mov_b32 exec_lo, {lo}\ns_mov_b32 exec_hi, {hi}')
        s.poll_issue(vdst, vaddr, soff); s.poll_check(vdst, vaddr, soff, sleep)
        if lo is not None: s('s_mov_b64 exec, -1')
    def flag(s, soff, vtmp=4):
        s(f'v_mov_b32 v{vtmp}, s{sTAG}')
        s.wait_vm(0, force=True)
        s('s_mov_b64 exec, 1')
        s.xstore([f'buffer_store_dword v{vtmp}, off, {sr(rWS)}, s{soff}'])
        s('s_mov_b64 exec, -1')
    def gflag(s, wave, soff, sval, vtmp, drain=False, flush=True):
        s.cond(f's_cmp_lg_u32 s{sW}, {wave}', drain=drain, flush=flush, body=lambda: s(f'v_mov_b32 v{vtmp}, s{sval}\ns_mov_b64 exec, 1\nbuffer_store_dword v{vtmp}, off, {sr(rWS)}, s{soff} sc1\ns_mov_b64 exec, -1'))
    def gflag8(s, wave, soff, sval, vtmp, flush=True):
        s.cond(f's_cmp_lg_u32 s{sW}, {wave}', drain=False, flush=flush, body=lambda: s(f'v_mov_b32 v{vtmp}, s{sval}\nv_mul_u32_u24 v{vtmp+1}, {FCP}, v{vL}\ns_mov_b64 exec, 0xff\nbuffer_store_dword v{vtmp}, v{vtmp+1}, {sr(rWS)}, s{soff} offen sc1\ns_mov_b64 exec, -1'))
    def dma(s, a, b, ssrc, ldsbase):
        h = None
        for i in range(a, b):
            if i % 4 == 0:
                if i: s(f's_add_u32 s{ssrc}, s{ssrc}, 4096')
                s(f's_mov_b32 m0, {ldsbase + i * 1024}')
            h = s(f'buffer_load_dwordx4 v{vL16}, {sr(rWS)}, s{ssrc} offen offset:{(i % 4) * 1024} sc1 lds')
        return h
    def fetch_issue(s, blocks):
        t = ''.join(f's_add_u32 m0, s{a}, {b}\ns_add_u32 s68, s{c_}, {d}\nbuffer_load_dwordx4 v{vL16}, {sr(rWS)}, s68 offen sc1 lds\n' for a, b, c_, d in blocks)
        return s(t), t
    def fetch_check(s, h, t, va, off, n, T, m0=None):
        rd = [f'ds_read_b32 v{T+j}, v{va} offset:{off + 7168*j}' for j in range(n)]
        ck = [f'v_and_b32 v{T}, v{T}, v{T+1}', f'v_and_b32 v{T+2}, v{T+2}, v{T+3}', f'v_and_b32 v{T}, 1, v{T}', f'v_and_b32 v{T}, v{T}, v{T+2}', f'v_cmp_eq_u32 vcc, 0, v{T}']
        retry, back = s.lab('fr'), s.lab('fb')
        def part1(): s.wait(h); [s(l) for l in rd]
        def part2():
            for l in ck: s(l)
            s(f's_mov_b32 s97, 0\ns_cbranch_vccnz {retry}'); s.label(back)
            s.ool.append(f'{retry}:\n' + ''.join(f'    {l}\n' for l in t.strip().split('\n')) + (f'    {m0}\n' if m0 else '') + f'    s_add_u32 s97, s97, 1\n    s_cmp_gt_u32 s97, {SPIN}\n    s_waitcnt vmcnt(0)\n    s_cbranch_scc1 {back}\n'
                         + ''.join(f'    {l}\n' for l in rd) + '    s_waitcnt lgkmcnt(0)\n' + ''.join(f'    {l}\n' for l in ck) + f'    s_nop 1\n    s_cbranch_vccnz {retry}\n    s_branch {back}\n')
        return part1, part2
    def pos(s, d, src, t):
        s(f'''v_and_b32 v{t}, 3, v{src}
        v_lshlrev_b32 v{t}, 2, v{t}
        v_and_or_b32 v{t}, v{src}, -16, v{t}
        v_bfe_u32 v{d}, v{src}, 2, 2
        v_or_b32 v{d}, v{d}, v{t}
        v_lshlrev_b32 v{d}, 4, v{d}''')

    def W(s, dst, k, base=None, op='add_u32'):
        src = f'v{76 + k//2}'; sel = f'WORD_{k&1}'
        if base is None: s(f'v_mov_b32_sdwa v{dst}, {src} dst_sel:DWORD dst_unused:UNUSED_PAD src0_sel:{sel}')
        else: s(f'v_{op}_sdwa v{dst}, {base}, {src} dst_sel:DWORD dst_unused:UNUSED_PAD src0_sel:DWORD src1_sel:{sel}')
    def entry(s):
        s('s_cmp_ge_u32 s2, 256\ns_cbranch_scc1 Lend')
        if s.stamps: s('s_memtime s[100:101]\ns_memrealtime s[96:97]\nv_mov_b32 v3, 0'); s.wait_lg(0)
        s(f"""s_load_dwordx16 s[4:19], s[0:1], 0
        s_load_dwordx8 s[20:27], s[0:1], 64
        s_load_dwordx2 s[28:29], s[0:1], 96
        s_load_dwordx2 s[30:31], s[0:1], 112""")
        s('s_getpc_b64 s[94:95]')
        s.label('Lpc')
        s(f"""s_lshr_b32 s{sI}, s2, 3
        v_lshrrev_b32 v4, 6, v0
        v_and_b32 v{vL}, 63, v0""")
        s.cpf(0)
        s(f"""v_readfirstlane_b32 s{sW}, v4
        v_lshlrev_b32 v{vL16}, 4, v{vL}
        s_add_u32 s94, s94, @TAB_OFF@
        s_addc_u32 s95, s95, 0
        s_lshl_b32 s69, s2, 6
        s_add_u32 s69, s69, {2048 + 4224}
        v_lshl_add_u32 v5, v4, 3, s69
        global_load_dwordx2 v[84:85], v5, s[94:95]
        global_load_dwordx4 v[80:83], v{vL16}, s[94:95] offset:1024
        global_load_dwordx4 v[76:79], v{vL16}, s[94:95]
        s_lshl3_add_u32 s68, s2, s{sW}
        v_and_b32 v6, 255, v0
        v_lshlrev_b32 v18, 4, v6
        global_load_dwordx4 v[66:69], v18, s[94:95] offset:2048
        global_load_ushort v70, v18, s[94:95] offset:2064
        s_and_b32 s{sXCD}, s2, 7
        s_mul_i32 s{sP}, s{sXCD}, 28
        s_add_u32 s{sP}, s{sP}, s{sI}
        s_min_u32 s{sP}, s{sP}, 223
        s_lshl_b32 s70, s{sP}, 10
        v_lshl_add_u32 v64, v0, 1, s70
        s_mul_i32 s73, s68, 896
        s_mov_b32 s{rX+2}, 896
        s_mov_b32 s{rX+3}, 0x20000
        s_mov_b32 s{rW+3}, 0x20000
        s_mov_b32 s{rWS+2}, {WS_BYTES}
        s_mov_b32 s{rWS+3}, 0x20000
        s_lshl_b32 s93, s{sW}, 11
        s_add_u32 s93, s93, {L_PK}
        s_lshl_b32 s71, s{sP}, 2
        s_mov_b32 s72, {EP}
        s_add_u32 s{rX}, s{sX}, s73
        s_addc_u32 s{rX+1}, s{sX+1}, 0
        buffer_load_dwordx4 v[28:31], v{vL16}, {sr(rX)}, 0 offen""")
        if s.stamps: s('v_writelane_b32 v3, s100, 0\nv_writelane_b32 v3, s96, 60')
        s.stamp(1)
        s(f"""s_load_dword s{sTAG}, {sr(sWS,2)}, s72
        s_load_dword s{sLDT}, {sr(sDT,2)}, s71
        s_load_dword s{sD1}, {sr(sDS,2)}, s71
        global_load_ushort v60, v64, {sr(sLA,2)}
        global_load_ushort v61, v64, {sr(sAI,2)}
        global_load_ushort v62, v64, {sr(sCR,2)}
        global_load_ushort v63, v64, {sr(sCI,2)}
        v_readfirstlane_b32 s90, v84
        v_readfirstlane_b32 s91, v85
        s_lshr_b32 s43, s90, 24
        s_and_b32 s90, s90, 0xffffff
        s_bitcmp1_b32 s43, 0
        s_cselect_b64 s[20:21], s[22:23], s[20:21]
        s_cselect_b64 s[24:25], s[26:27], s[24:25]
        s_cmp_eq_u32 s43, 2
        s_cselect_b64 vcc, -1, 0
        s_movk_i32 s89, 896
        s_cmovk_i32 s89, 3584
        s_cmp_lt_u32 s43, 2
        s_cselect_b64 {sr(rW,2)}, s[20:21], s[24:25]
        s_cselect_b32 s{rW+2}, {448*896}, 0
        s_cselect_b64 s[72:73], -1, 0
        s_lshl4_add_u32 s89, s89, s90
        s_mov_b32 s{rWS}, s{sWS}
        s_mov_b32 s{rWS+1}, s{sWS+1}
        v_cndmask_b32_sdwa v23, v81, v82, vcc dst_sel:DWORD dst_unused:UNUSED_PAD src0_sel:WORD_1 src1_sel:WORD_0""")
        if s.cfg.dma_at >= 0: s.pack_dma()

    def cpf(s, once):
        l = s.lab('cp')
        s(f'v_lshl_add_u32 v7, v0, 8, s2' if once else f'v_lshl_add_u32 v7, v0, 5, s{sI}')
        s(f"""v_lshlrev_b32 v7, 7, v7
        v_cmp_gt_u32 vcc, @CODE_BYTES@, v7
        s_and_saveexec_b64 s[70:71], vcc
        s_cbranch_execz {l}""")
        s.raw('    global_load_dword v255, v7, s[94:95]')
        s.label(l)
        s('s_mov_b64 exec, -1')
    def clear(s):
        for i in range(4): s(f'v_mov_b32 v{72+i}, -1')
        s.hstore(72)
    def hstore(s, r): return s(f'buffer_store_dwordx4 {vr(r)}, v12, {sr(rWS)}, s{sHD} offen sc1')

    def setup(s):
        s.comment('offsets and lane addresses (in the shadow of the first loads)')
        assert L_U % 512 == 0
        s(f"""s_mov_b64 vcc, s[72:73]
        s_lshr_b32 s{sPD1}, s91, 16
        s_lshl_b32 s{sPD1}, s{sPD1}, 10
        v_cndmask_b32_sdwa v24, v81, v80, vcc dst_sel:DWORD dst_unused:UNUSED_PAD src0_sel:WORD_0 src1_sel:WORD_1
        s_and_b32 s{sPD0}, s91, 0xffff
        s_lshl_b32 s{sPD0}, s{sPD0}, 10
        v_mul_u32_u24 v71, 1171, v0
        s_lshl_b32 s70, s{sW}, 7
        v_add_u32 v24, s93, v24""")
        s.W(27, 13, 's70')
        s(f"""s_mul_i32 s70, s{sW}, {LNP}
        v_lshrrev_b32 v71, 16, v71
        v_add_u32 v26, s70, v{vL16}
        s_mul_i32 s70, s2, 896
        s_lshl_b32 s71, s{sW}, 10
        v_mul_u32_u24 v71, {229376 - 896}, v71
        s_add_u32 s70, s70, s71
        s_add_u32 s{sUO}, s70, {GX}
        v_add_u32 v71, v71, v{vL16}""")
        s.W(12, 5, 4, 'lshlrev_b32')
    def setup_b(s):
        s(f"""s_lshl_b32 s71, s{sW}, 10
        s_lshl4_add_u32 s{sFO}, s2, {FA}
        s_add_u32 s{sUM}, s71, {L_U + 1024}
        v_add_u32 v13, s71, v{vL16}
        s_lshl_b32 s70, s{sW}, 13
        v_add_u32 v14, s70, v{vL16}
        s_lshl_b32 s70, s{sW}, 9
        s_mul_i32 s72, s{sXCD}, {FCP}
        s_add_u32 s70, s70, s72
        s_add_u32 s70, s70, {FA}
        v_and_b32 v17, 0x1f0, v{vL16}
        v_add_u32 v17, s70, v17
        s_mul_i32 s{sKG}, s{sW}, {16*KGP}
        s_add_u32 s{sKG}, s{sKG}, {L_KG}""")
        s.W(20, 8, f's{sKG}'); s.W(10, 3); s.W(11, 4); s.W(15, 6, f's{sUM}')
        s(f"""s_and_b32 s70, s{sW}, 3
        s_lshr_b32 s71, s{sW}, 2
        s_mul_i32 s73, s71, {KECH}
        s_add_u32 s73, s73, {L_KE}
        v_add_u32 v18, s73, v18
        s_lshl_b32 s72, s70, 7
        s_sub_u32 s72, s73, s72
        s_add_u32 s72, s72, {4*(1015 - 144) - 28}""")
        s.W(4, 0, 's72')
        s(f"""s_lshl_b32 s72, s70, 8
        s_sub_u32 s72, {L_U}, s72
        v_xor_b32 v16, 16, v15""")
        s.W(8, 1, 's72'); s.W(9, 2, 's72')
        s(f"""s_xor_b32 s72, s70, s71
        s_and_b32 s72, s72, 1
        s_lshl_b32 s72, s72, 4
        v_subrev_u32 v5, 1024, v4
        v_subrev_u32 v6, 2048, v4
        v_subrev_u32 v7, 3072, v4
        v_xor_b32 v8, s72, v8
        v_xor_b32 v9, s72, v9
        s_lshl_b32 s72, s70, 2
        s_mul_i32 s70, s71, {KTSZ}
        s_add_u32 s70, s70, {L_KT}
        s_mov_b32 s73, {L_KE + 4096}""")
        s.W(19, 7, 's72', 'xor_b32'); s.W(88, 14, 's73')
        s(f"""v_mov_b32 v84, 0
        v_mov_b32 v85, 0
        v_mov_b32 v86, 0
        v_mov_b32 v87, 0
        v_add_u32 v19, s70, v19
        v_add_u32 v89, {L_U}, v{vL16}
        v_mov_b32 v90, s70
        ds_write_b128 v88, v[84:87]
        ds_write_b128 v89, v[84:87]
        ds_write_b128 v90, v[84:87] offset:{768*16}""")
        for t in range(9):
            s(f'v_add_u32_sdwa v{132+t}, s70, v{66+t//2} dst_sel:DWORD dst_unused:UNUSED_PAD src0_sel:DWORD src1_sel:WORD_{t&1}')
    def scalars(s):
        return f"""s_mov_b32 s{rG}, s{sWS}
        s_mov_b32 s{rG+1}, s{sWS+1}
        s_cmp_eq_u32 s{sW}, 7
        s_cselect_b32 s{rG+2}, 0, {WS_BYTES}
        s_mov_b32 s{rG+3}, 0x20000
        s_mul_i32 s{sHD}, s{sW}, 229376
        s_lshl_b32 s68, s{sP}, 7
        s_add_u32 s{sHD}, s{sHD}, s68
        s_add_u32 s{sHD}, s{sHD}, {X1}
        s_lshr_b32 s68, s{sI}, 2
        s_lshl3_add_u32 s{sTB}, s{sXCD}, s68
        s_and_b32 s{sQ}, s{sI}, 3
        s_lshr_b32 s{sCL}, s{sTB}, 1
        s_and_b32 s{sM}, s{sI}, 7
        s_mul_i32 s{sCT}, s{sQ}, 7
        s_add_u32 s{sCT}, s{sCT}, s{sW}
        s_mul_i32 s{sA1}, s{sCT}, {14*1024}
        s_add_u32 s{sA2}, s{sA1}, {W2P}
        s_mul_i32 s{sA3}, s{sM}, 7
        s_add_u32 s{sA3}, s{sA3}, s{sW}
        s_mul_i32 s{sA4}, s{sA3}, {28*1024}
        s_add_u32 s{sA3}, s{sA4}, {W3P}
        s_add_u32 s{sA4}, s{sA4}, {W4P}
        s_lshl3_add_u32 s{sUS}, s{sXCD}, s{sW}
        s_mul_i32 s{sUS}, s{sUS}, 28672
        s_lshl_b32 s68, s{sI}, 5
        s_add_u32 s{sUS}, s{sUS}, s68
        s_add_u32 s{sUS}, s{sUS}, {GX}
        s_lshl_b32 s{sSM}, s{sW}, 11
        s_add_u32 s{sSM}, s{sSM}, {SM}
        s_mov_b32 s{sFAST}, 0
        s_and_b32 s68, s43, 6
        s_cmp_eq_u32 s68, 2
        s_cselect_b32 s{rW+2}, {448*3584}, 0
        s_cselect_b32 s{sPACT}, {WS_BYTES}, 0"""
    def h2_addr(s):
        return f"""v_lshrrev_b32 v19, 3, v0
        v_and_b32 v20, 7, v0
        v_lshlrev_b32 v21, 9, v19
        v_lshl_add_u32 v21, v20, 4, v21
        s_andn2_b32 s70, 1, s{sQ}
        v_add_u32 v20, s70, v20
        v_mul_u32_u24 v22, 768, v19
        v_lshrrev_b32 v18, 2, v20
        v_lshl_add_u32 v22, v18, 8, v22
        v_and_b32 v18, 3, v20
        v_lshl_add_u32 v22, v18, 4, v22
        v_add_u32 v22, {L_HI}, v22
        s_mul_i32 s88, s{sTB}, 28672
        s_add_u32 s88, s88, {X1}
        v_add_u32 v26, {FB - FA}, v17"""

    def pack_early(s):
        s.wait(s.h_pack)
        s(f"""ds_read_b64_tr_b16 v[52:53], v24
        ds_read_b64_tr_b16 v[54:55], v24 offset:256
        ds_read_b64_tr_b16 v[56:57], v24 offset:32
        ds_read_b64_tr_b16 v[58:59], v24 offset:288
        buffer_store_dwordx4 v[52:55], v{vL16}, {sr(rWS)}, s{sPD0} offen sc1
        buffer_store_dwordx4 v[56:59], v{vL16}, {sr(rWS)}, s{sPD1} offen sc1""")

    def ln(s):
        s.comment('layernorm of one token per wave')
        s('v_mov_b32 v51, 0x3f803f80\nv_dot2_f32_bf16 v48, v28, v51, 0')
        s.stamp(2)
        s('v_dot2_f32_bf16 v49, v28, v28, 0')
        for i in (29, 30, 31): s(f'v_dot2_f32_bf16 v48, v{i}, v51, v48\nv_dot2_f32_bf16 v49, v{i}, v{i}, v49')
        un = []
        for i in range(4): un += [f'v_lshlrev_b32 v{32+2*i}, 16, v{28+i}', f'v_and_b32 v{33+2*i}, 0xffff0000, v{28+i}']
        s(un.pop()); s(un.pop()); s(f'v_mov_b32 v50, {INVD}')
        for m in ('row_shr:1', 'row_shr:2', 'row_shr:4', 'row_shr:8', 'row_bcast:15 row_mask:0xa', 'row_bcast:31 row_mask:0xc'):
            s(f'v_add_f32_dpp v48, v48, v48 {m}\nv_add_f32_dpp v49, v49, v49 {m}')
            s(un.pop())
        s(f"""v_readlane_b32 s70, v48, 63
        v_readlane_b32 s71, v49, 63
        s_lshl_b32 s72, s{sW}, 3
        v_mov_b32 v65, s72
        v_mul_f32 v49, s70, v50
        v_mul_f32 v48, s71, v50
        v_fma_f32 v48, -v49, v49, v48
        v_max_f32 v48, 0, v48
        v_add_f32 v48, {EPS}, v48
        v_rsq_f32 v51, v48
        s_mov_b32 exec_hi, 0x00ffffff
        v_mul_f32 v50, -v49, v51""")
        for i in range(4): s(f'v_pk_fma_f32 {vr(40+2*i,2)}, v[50:51], {vr(32+2*i,2)}, v[50:51] op_sel:[1,0,0] op_sel_hi:[1,1,0]')
        for i in range(4): s(f'v_cvt_pk_bf16_f32 v{28+i}, v{40+2*i}, v{41+2*i}')
        s(f"""ds_write_b128 v26, v[28:31] offset:{L_LN}
        v_mul_f32 v48, v48, v51
        s_mov_b64 exec, 1
        ds_write_b64 v65, v[48:49] offset:{L_SM}
        s_mov_b64 exec, -1""")
        s.barrier()
        s(f'ds_read_b64_tr_b16 v[48:49], v27 offset:{L_LN}\nds_read_b64_tr_b16 v[50:51], v27 offset:{L_LN + 4*LNP}')
        s.cond(f's_cmp_lg_u32 s{sW}, 7', lambda: s(f's_mov_b64 exec, 15\nds_read_b128 v[48:51], v{vL16} offset:{L_SM}\nv_mov_b32 v71, v{vL16}\ns_lshl_b32 s{sUO}, s2, 6\ns_add_u32 s{sUO}, s{sUO}, {SM}'))
        s(f'v_and_b32 v48, -2, v48\nbuffer_store_dwordx4 v[48:51], v71, {sr(rWS)}, s{sUO} offen sc1\ns_mov_b64 exec, -1')
        s.stamp(3)
        s(f"""s_lshr_b32 s{sTAG}, s{sTAG}, 4
        s_mul_i32 s{sTAG}, s{sTAG}, 1664525
        s_add_u32 s{sTAG}, s{sTAG}, 1013904223
        s_lshl_b32 s{sTAG}, s{sTAG}, 4
        s_getreg_b32 s70, hwreg(HW_REG_XCC_ID, 0, 4)
        s_add_u32 s{sTX}, s70, s{sTAG}""")
        s.wait(*[h for h, r in s.vm if r])
        s.stamp(40)
        s.cond(f's_cmp_ge_u32 s43, 2', s.pack_early)

    def pack_dma(s):
        s(f's_mov_b32 m0, s93\nbuffer_load_dwordx4 v23, {sr(rW)}, s90 offen lds\ns_add_u32 m0, s93, 1024')
        s.h_pack = s(f'buffer_load_dwordx4 v23, {sr(rW)}, s89 offen lds')
    def publish_a(s, conv=True):
        s.wait_vm(0, force=True)
        s('s_barrier')
        s.stamp(5)
        s.gflag8(0, sFO, sTX, 118)
        s(f's_lshl4_add_u32 s{sFO}, s2, {FB}')
        if s.cfg.dma_at == 1: s.pack_dma(); s(f's_mov_b32 m0, s{sKG}')
    def pack_late_store(s):
        P = 76 if s.cfg.pst_at >= 6 else 28
        s.wait(s.h_pack)
        for e in range(4): s(f'ds_read_b64_tr_b16 {vr(P+2*e,2)}, v24 offset:{1024*(e>>1) + 256*(e&1)}')
        s(f"""s_mov_b32 s{rW}, s{sWS}
        s_mov_b32 s{rW+1}, s{sWS+1}
        s_mov_b32 s{rW+2}, s{sPACT}
        buffer_store_dwordx4 {vr(P)}, v{vL16}, {sr(rW)}, s{sPD0} offen sc1""")
        s.h_pst = s(f'buffer_store_dwordx4 {vr(P+4)}, v{vL16}, {sr(rW)}, s{sPD1} offen sc1')
        def colsum():
            s(f's_mov_b32 vcc_lo, 0xf0f00f0f\ns_mov_b32 vcc_hi, 0xf0f00f0f\nv_mov_b32 v{P+12}, 0x3f803f80')
            for i in range(4): s(f'v_cndmask_b32 v{P+8+i}, 0, v{P+12}, vcc')
            s(f'''s_lshr_b32 s70, s{sPD0}, 4
            s_add_u32 s70, s70, {CSP - W3P // 16}
            v_mfma_f32_16x16x32_bf16 {vr(P+12)}, {vr(P+8)}, {vr(P)}, 0
            v_mfma_f32_16x16x32_bf16 {vr(P+12)}, {vr(P+8)}, {vr(P+4)}, {vr(P+12)}
            v_lshlrev_b32 v{P+8}, 2, v{vL}
            s_mov_b32 exec_hi, 0
            buffer_store_dword v{P+12}, v{P+8}, {sr(rWS)}, s70 offen sc1
            s_mov_b32 exec_hi, -1''')
        s.cond('s_cmp_lg_u32 s43, 2', colsum, drain=False)

    def cm(s, d, a, b, t):
        return [f'v_pk_mul_f32 {vr(t,2)}, {vr(a,2)}, {vr(b,2)} op_sel_hi:[1,0]',
                f'v_pk_fma_f32 {vr(d,2)}, {vr(a,2)}, {vr(b,2)}, {vr(t,2)} op_sel:[1,1,0] op_sel_hi:[0,1,1] neg_lo:[1,0,0]']
    def kgen(s):
        c = s.cfg
        s.pin(c.pins[0])
        assert c.fa_at <= c.poll_at <= c.chk_at
        Z = lambda k: 74 + 2 * k
        Z128, ZD, R0, R1, TT = 92, 94, 112, 114, 116
        CH = [(96, 98, 100, 102), (104, 106, 108, 110)]
        BF, AF, ACC = 156, (172, 188, 204), 220
        s(f"""s_lshl_b32 s70, s{sLDT}, 16
        s_and_b32 s71, s{sLDT}, 0xffff0000
        s_cmp_lt_u32 s{sW}, 4
        s_cselect_b32 s72, s70, s71
        s_mov_b32 s70, {LOG2E}
        s_mov_b32 s71, {INV2PI}
        v_mov_b32 v64, s72
        v_lshlrev_b32 v60, 16, v60
        v_mul_f32 v64, s70, v64
        v_mul_f32 v60, s70, v60
        v_exp_f32 v64, v64
        v_exp_f32 v60, v60
        v_lshlrev_b32 v61, 16, v61
        v_lshlrev_b32 v62, 16, v62
        v_lshlrev_b32 v63, 16, v63
        v_cvt_pk_bf16_f32 v64, v64, v60
        v_and_b32 v60, 0xffff0000, v64
        v_lshlrev_b32 v64, 16, v64
        v_pk_mul_f32 v[60:61], v[60:61], v[64:65] op_sel_hi:[1,0]
        v_add_f32 v64, v64, v64
        v_pk_mul_f32 v[60:61], v[60:61], s[70:71]
        v_pk_mul_f32 {vr(R0,2)}, v[62:63], v[64:65] op_sel_hi:[1,0]
        s_mov_b32 m0, s{sKG}
        s_mov_b32 s70, 0x41000000
        s_mov_b32 s71, 0x43000000
        v_pk_mul_f32 v[62:63], v[60:61], s[70:71] op_sel_hi:[1,0]
        v_pk_mul_f32 v[64:65], s[70:71], v[60:61] op_sel:[1,0]
        s_lshl_b32 s{sD0}, s{sD1}, 16
        s_and_b32 s{sD1}, s{sD1}, 0xffff0000""")
        for r in (62, 64, 60): s(f'v_exp_f32 v{r}, -v{r}\nv_fract_f32 v{r+1}, v{r+1}')
        for r, d in ((62, Z(8)), (64, Z128), (60, Z(1))): s(f'v_cos_f32 v{d}, v{r+1}\nv_sin_f32 v{d+1}, v{r+1}')
        for r, d in ((62, Z(8)), (64, Z128), (60, Z(1))): s(f'v_pk_mul_f32 {vr(d,2)}, {vr(d,2)}, {vr(r,2)} op_sel_hi:[1,0]')
        s.stamp(4)
        def chain(st, rows, start, mul, neg=False):
            a, b, t, pk = CH[st]; out = []; cur, nxt = start, a
            for i, row in enumerate(rows):
                cc = s.cm(nxt, cur, mul, t) if i < len(rows) - 1 else []
                out += cc[:1] + [f'v_cvt_pk_bf16_f32 v{pk + (i&1)}, v{cur}, {"-" if neg else ""}v{cur+1}'] + cc[1:] + [f'ds_write_addtid_b32 v{pk + (i&1)} offset:{row*KGP}']
                cur, nxt = nxt, (b if nxt == a else a)
            return out
        def rd(dst):
            for ks in range(4): s(f'ds_read_b128 {vr(dst+4*ks)}, v20 offset:{64*ks}')
        E = lambda l: [s(x) for x in l]
        zz = zipl if c.two else (lambda *a: sum(a, []))
        def hook(k):
            if c.fa_at == k: s.publish_a()
            if c.pst_at == k and k < c.poll_at: s.pack_late_store()
            if c.poll_at == k:
                s.poll_issue(118, 17, 0)
                if c.upf: s(f'buffer_load_dword v119, v10, {sr(rWS)}, s{sUS} offen sc1')
            if c.chk_at == k:
                s.poll_check(118, 17, 0, c.fa_sleep)
                if s.stamps: s('v_writelane_b32 v3, s97, 58')
                s(f's_mov_b32 m0, s{sUM}')
                s.h_u = s(f'buffer_load_dwordx4 v10, {sr(rWS)}, s{sUS} offen sc1 lds')
                if k < 4: s(f's_mov_b32 m0, s{sKG}')
                s.stamp(8)
            if c.pst_at == k and k >= c.poll_at: s.pack_late_store()
        hook(0)
        if c.two:
            E(zipl(s.cm(ZD, Z(8), Z(8), 100), s.cm(R1, R0, Z(8), 108), s.cm(Z(2), Z(1), Z(1), TT)))
            E(zipl(chain(0, range(0, 16, 2), R0, ZD, True), chain(1, range(1, 16, 2), R1, ZD, True)))
            rd(BF)
            E(zipl(s.cm(ZD, Z128, Z128, 100), s.cm(R1, Z(8), Z128, 108), s.cm(Z(4), Z(2), Z(2), TT)))
            hook(1); s.stamp(35)
            E(zipl(chain(0, range(0, 16, 2), Z(8), ZD), chain(1, range(1, 16, 2), R1, ZD)))
        else:
            rc = chain(0, range(16), R0, Z(8), True)
            E(rc[:4*c.rsplit]); hook(0.5); E(rc[4*c.rsplit:])
            rd(BF)
            E(s.cm(Z(2), Z(1), Z(1), TT) + s.cm(Z(4), Z(2), Z(2), TT))
            hook(1); s.stamp(35)
            E(chain(0, range(16), Z(8), Z128))
        rd(AF[0])
        E(zipl(s.cm(Z(6), Z(4), Z(2), 100), s.cm(Z(3), Z(2), Z(1), 108), s.cm(Z(5), Z(4), Z(1), TT)))
        hook(2); s.stamp(36)
        E(zz(chain(0, range(0, 8), Z(4), Z128), chain(1, range(8, 12), Z(2), Z128) + chain(1, range(12, 16), Z(6), Z128), s.cm(Z(7), Z(6), Z(1), TT)))
        rd(AF[1])
        s.stamp(47); hook(3); s.stamp(37)
        E(zz(chain(0, (0, 1), Z(1), Z128) + chain(0, (4, 5), Z(5), Z128), chain(1, (2, 3), Z(3), Z128) + chain(1, (6, 7), Z(7), Z128)))
        s(f'v_mov_b32 v{TT}, 0x3f80\nds_write_addtid_b32 v{TT} offset:{8*KGP}')
        rd(AF[2])
        s.stamp(6); hook(4)
        if c.kbar: s('s_barrier')
        mf = lambda t, ks: f'v_mfma_f32_16x16x32_bf16 {vr(ACC+4*t)}, {vr(AF[t]+4*ks)}, {vr(BF+4*ks)}, {vr(ACC+4*t) if ks else 0}'
        wr = lambda t, r: f'ds_write_b32 v19, v{ACC+4*t+r} offset:{(16*t+r)*256}'
        if c.ktm:
            E([mf(0, k) for k in range(4)] + [mf(1, k) for k in range(4)] + zipl([mf(2, k) for k in range(4)], [wr(0, r) for r in range(4)]))
            E([wr(t, r) for t in (1, 2) for r in range(4)])
        else:
            E([mf(t, k) for k in range(4) for t in range(2)] + [mf(2, k) for k in range(4)] + [wr(t, r) for t in range(3) for r in range(4)])
        s.stamp(48); hook(5)
        s.barrier()
        s.stamp(7)
        hook(5.5)
        for t in range(9): s(f'ds_read_b128 {vr(28+4*t)}, v{132+t}')
        hook(6)
        if c.chk_at <= 5 and c.pst_at <= 6: s.feed(c.f_kt, 63)
        for t in range(9):
            s(f'v_pk_add_f32 {vr(28+4*t,2)}, {vr(28+4*t,2)}, {vr(30+4*t,2)}')
            if t: s(f'v_add_f32 v{24+4*t}, v{24+4*t}, v{25+4*t}')
        s('v_add_f32 v60, v60, v61')
        for i in range(4): s(f'v_cvt_pk_bf16_f32 v{64+i}, v{28+8*i}, v{32+8*i}')
        s('ds_write_b128 v18, v[64:67]')
        for i in range(4): s(f'v_cvt_pk_bf16_f32 v{68+i}, v{32+8*i}, v{36+8*i}')
        s(f'ds_write_b128 v18, v[68:71] offset:{KEO}')
        s.stamp(9); hook(7)
        if c.chk_at <= 5 and c.pst_at == 7: s.feed(c.f_kt, 63)

    def conv(s):
        c = s.cfg
        A, B, ACC = 28, 60, 92
        def rd(kind, slot, e, j):
            if kind == 'B': return [f'ds_read_b128 {vr(B+4*slot)}, v{8+e} offset:{1024*j}']
            off = 16 * (1 - e) + 128 * (1 - (j & 1))
            return [f'ds_read2_b32 {vr(A+4*slot+2*h,2)}, v{4+(j>>1)} offset0:{off+2*h} offset1:{off+2*h+1}' for h in range(2)]
        M = []
        for k in range(8):
            p1 = [(k, j) for j in range(k + 1) if k + j <= 7]; p2 = [(j, k) for j in range(k) if k + j <= 7]
            M += [(0, a, b) for a, b in p1 + p2]
        if c.cil:
            for nu in range(0, 8, 2): M += [(1, a, b) for a, b in zipl([(a, nu + 1 - a) for a in list(range(1, nu + 1)) + [0, nu + 1]], [(a, nu - a) for a in range(nu + 1)])]
        else:
            for nu in range(8): M += [(1, a, nu - a) for a in range(nu + 1)]
        slot = {(0, j): j for j in range(8)}
        for k in range(4, 8): slot[1, 2*(k-4)] = k; slot[1, 2*(k-4) + 1] = 7 - k
        ops = []
        for e in range(2):
            for j in range(8):
                for kind, ix in (('A', 1), ('B', 2)):
                    need = min(n for n, m in enumerate(M) if m[0] == e and m[ix] == j)
                    early = -1 if e == 0 else max(n for n, m in enumerate(M) if m[0] == 0 and m[ix] == slot[1, j])
                    ops += [(need, early, t) for t in rd(kind, slot[e, j], e, j)]
        ops.sort(key=lambda o: o[0])
        D = {n: [] for n in range(-1, 73)}
        pos = -1.0
        for i, (need, early, t) in enumerate(ops):
            if i < c.chead: D[-1].append(t); continue
            pos = max(pos + c.cpace, early)
            pos = max(min(pos, need - c.clead), early)
            D[int(pos)].append(t)
        done = {nu: max(n for n, m in enumerate(M) if m[1] + m[2] == nu) for nu in range(8)}
        at = c.cy0
        for nu in range(8):
            at = max(at, done[nu] + 3)
            D[min(int(at), 72)].append(f'ds_write_b128 v13, {vr(ACC+4*nu)} offset:{L_Y + 8192*nu}')
            at += c.cyp
        s.pin(c.pins[1])
        s.wait(s.h_u); s.barrier(); s.stamp(10)
        for t in D[-1]: s(t)
        ex = s.spread(c.f_conv, 66, 4)
        bs = ['ds_read_b64 v[140:141], v15', 'ds_read_b64 v[142:143], v16', '', '', '', '']
        for i in range(4): bs += [f'v_lshlrev_b32 v{132+2*i}, 16, v{140+i}', f'v_and_b32 v{133+2*i}, 0xffff0000, v{140+i}']
        for ch in range(2):
            bs += [f'v_add_f32 v{140+r}, s{sD0+ch}, v{124+2*r}' for r in range(4)]
            bs += [f'v_fma_f32 v{132+4*ch+r}, v{132+4*ch+r}, v{140+r}, v{125+2*r}' for r in range(4)]
        ha = s.h2_addr().split('\n')
        seen = set(); assert 3 <= c.hint_at <= 73
        for n, (e, a, b) in enumerate(M):
            nu = a + b
            s.fair(n, c.fc)
            s(f'v_mfma_f32_16x16x32_bf16 {vr(ACC+4*nu)}, {vr(A+4*slot[e, a])}, {vr(B+4*slot[e, b])}, {vr(ACC+4*nu) if nu in seen else 0}')
            seen.add(nu)
            for t in D[n]: s(t)
            if n == 1: s(f'buffer_load_dwordx4 v[124:127], v11, {sr(rWS)}, s{sSM} offen sc1')
            if n == 2: s(f'buffer_load_dwordx4 v[128:131], v11, {sr(rWS)}, s{sSM} offen offset:16 sc1\ns_lshl_b32 s68, s2, 6\ns_add_u32 s68, s68, {FH}')
            if n == c.hint_at: s.gflag(7, 68, sTAG, 23, False, False)
            if ex: ex.pop(0)()
            if n >= 4 and ha: s(ha.pop(0))
            if n >= 40 and bs: s(bs.pop(0))
        if c.fc: s('s_setprio 0')
        for t in D[72]: s(t)
        assert not bs and not ha
        s.stamp(38)
        s.barrier(); s.stamp(11)
        for i in (0, 4, 1, 5, 2, 6, 3, 7): s(f'ds_read_b128 {vr(A+4*i)}, v14 offset:{L_Y + 1024*i}')
        fb = lambda: s.gflag8(6, sFO, sTAG, 23)
        if not c.fblate: fb()
        if c.hint_at == 72: s.gflag(7, 68, sTAG, 17, False)
        for i in (0, 4, 1, 5, 2, 6, 3, 7):
            ch = i >> 2
            for h in range(2): s(f'v_pk_add_f32 {vr(132+4*ch+2*h,2)}, {vr(132+4*ch+2*h,2)}, {vr(A+4*i+2*h,2)}')
        for r in range(4): s(f'v_cvt_pk_bf16_f32 v{140+r}, v{132+r}, v{136+r}')
        s('v_and_b32 v140, -2, v140')
        h = s.hstore(140)
        s.stamp(12)
        if c.fblate: fb()
        if c.hint_at == 73: s.gflag(7, 68, sTAG, 17, False)
        s.feed(c.f_hst, 63)
        return h

    def nonconv(s):
        c = s.cfg
        s(f'v_lshlrev_b32 v15, 7, v{vL}')
        if c.sb_at == 1: s.setup_b()
        s(f'v_lshlrev_b32 v15, 7, v{vL}')
        s(s.h2_addr())
        if c.dma_at == 0: s.pack_dma()
        s.publish_a(False)
        s.pack_late_store()
        s.poll(18, 17, 0, sleep=8)
        s.barrier(); s.stamp(8)
        s.gflag8(1, sFO, sTAG, 118)
        s(f's_add_u32 s70, s{sA2}, {14*1024 - 8192}')
        s.feed(c.f_hst, c.nc_depth)
        if c.warm: s(f'buffer_load_dword v119, v15, {sr(rG)}, s70 offen')
        s.wait_vm(0); s.stamp(10)
    def hint_wait(s):
        def body():
            s(f's_lshl_b32 s68, s2, 6\ns_add_u32 s68, s68, {FH - 32*64}\nv_mov_b32 v9, 0')
            s.poll(8, 9, 's68', 1, 0, sleep=4)
        s.cond(f's_cmp_lt_u32 s{sI}, 28', body)

    def h2(s, behind, mid=lambda: None, halo=False):
        ld = [f'buffer_load_dwordx4 {vr(8+4*j)}, v4, {sr(rWS)}, s88 offen offset:{128*j} sc1' for j in range(4)]
        chk = ['v_or3_b32 v24, v8, v12, v16', 'v_or_b32 v24, v24, v20', 'v_and_b32 v24, 1, v24', 'v_cmp_eq_u32 vcc, 1, v24']
        if s.cfg.hdel: s(f's_sleep {s.cfg.hdel}')
        for l in ld: s(l)
        s.poll_issue(25, 26, 0)
        mid()
        for l in chk: s(l)
        retry, back = s.lab('hr'), s.lab('hb')
        s(f's_mov_b32 s97, 0\ns_cbranch_vccnz {retry}')
        s.label(back)
        s.ool.append(f'{retry}:\n' + ('    s_mov_b64 exec, vcc\n' if s.cfg.hmask else '') + ''.join(f'    {l}\n' for l in ld) + f'    buffer_load_dword v25, v26, {sr(rWS)}, 0 offen sc1\n    s_add_u32 s97, s97, 1\n    s_cmp_gt_u32 s97, {SPIN}\n    s_waitcnt vmcnt(0)\n    s_cbranch_scc1 {back}\n'
                     + ''.join(f'    {l}\n' for l in chk) + f'    s_nop 1\n    s_cbranch_vccnz {retry}\n    s_branch {back}\n')
        if s.cfg.hmask: s('s_mov_b64 exec, -1')
        if s.stamps: s('v_writelane_b32 v3, s97, 59')
        s.stamp(14)
        if not s.cfg.hfeed: behind()
        if halo:
            s(f's_bitcmp1_b32 s{sQ}, 0\ns_cselect_b64 vcc, -1, 0')
            for i in range(2):
                for j in range(4): s(f'v_cndmask_b32 v{28+4*i+j}, v{10+4*j+i}, v{8+4*j+i}, vcc')
                s(f'ds_write_b128 v5, {vr(28+4*i)} offset:{64*i}')
        else:
            for j in range(4):
                for i in range(j): s(f'v_swap_b32 v{8+4*j+i}, v{8+4*i+j}')
            for i in range(4): s(f'ds_write_b128 v5, {vr(8+4*i)} offset:{64*i}')
        s.stamp(32)
        s.poll_check(25, 26, 0, 2)
        if s.cfg.hfeed: behind()
        if s.stamps: s('v_writelane_b32 v3, s97, 57')

    def stats_tail(s, a, extra, vadr, tab):
        s('s_mov_b64 exec, -1')
        for t in range(3): s(f'v_cndmask_b32 v{a+4*t}, v{a+4*t}, v{a+4*t+1}, s[92:93]')
        for t in range(3): s(f'v_cndmask_b32 v{a+4*t}, v{a+4*t}, v{a+4*t+2}, s[94:95]')
        for t in (1, 2):
            s(f'v_mov_b32_dpp v{a+4*t+1}, v{a+4*t+3} row_ror:{4*t}\nv_mov_b32_dpp v{a+4*t+2}, v{a+4*t} row_ror:{4*t}')
        for t in (1, 2):
            s(f'v_cndmask_b32 v{a+3}, v{a+3}, v{a+4*t+1}, {sr(76+2*t,2)}\nv_cndmask_b32 v{a}, v{a}, v{a+4*t+2}, {sr(76+2*t,2)}')
        s(f'''s_mov_b32 exec_lo, 0x77700777
        s_mov_b32 exec_hi, 0x70777707
        v_mul_f32 v{a+3}, s96, v{a+3}
        v_mul_f32 v{a}, s96, v{a}
        v_fma_f32 v{a}, -v{a+3}, v{a+3}, v{a}
        v_max_f32 v{a}, 0, v{a}''')
        if extra:
            s(f'''v_fmaak_f32 v{a+2}, v{a}, v49, {fh(1e-10)}
            v_add_f32 v51, {EPS}, v{a}
            v_rsq_f32 v{a+1}, v{a+2}
            v_rsq_f32 v51, v51
            v_mul_f32 v{a}, {fh(C1)}, v{a+1}
            v_mul_f32 v{a+4}, {fh(0.044715)}, v{a+1}
            v_mul_f32 v{a+2}, v{a+2}, v{a+1}
            v_mul_f32 v{a+1}, v{a+1}, v{a}
            v_mul_f32 v50, -v{a+3}, v51
            v_mul_f32 v{a+1}, v{a+1}, v{a+4}
            ds_write_b64 v{extra}, v[50:51] offset:{tab // 2}
            ds_write_b128 v{vadr}, {vr(a)} offset:{tab}''')
        else:
            s(f'''v_add_f32 v50, {EPS}, v{a}
            v_rsq_f32 v{a+1}, v50
            v_cvt_pk_bf16_f32 v{a}, -v{a+3}, -v{a+3}
            v_mul_f32 v{a+2}, {fh(C1)}, v{a+1}
            v_mul_f32 v{a+4}, {fh(0.044715)}, v{a+1}
            v_and_b32 v51, 0xffff0000, v{a}
            v_add_f32 v51, v51, v{a+3}
            v_mul_f32 v{a+3}, v50, v{a+1}
            v_mul_f32 v{a+1}, v{a+1}, v{a+2}
            v_and_b32 v{a+2}, 0xffffff7f, v{a+2}
            v_mul_f32 v{a+1}, v{a+1}, v{a+4}
            v_and_b32 v{a+3}, 0xffffff7f, v{a+3}
            v_and_b32 v{a+1}, 0xffffff7f, v{a+1}
            ds_write_b128 v{vadr}, {vr(a)} offset:{tab}
            v_cvt_pk_bf16_f32 v{a}, -v51, -v51
            ds_write_b128 v{vadr}, {vr(a)} offset:{tab + 512}''')
    def gelu_pk(s, acc, cs, st, n, t, out):
        P = range(0, n, 2); o = []
        if s.cfg.gsc:
            R = range(n)
            o += [f'v_fma_f32 v{acc+i}, -v{cs+i}, v{st+3}, v{acc+i}' for i in R]
            if s.cfg.gsc == 2: return o + s.gelu_pk2(acc, cs, st, n, t, out)[n//2:]
            o += [f'v_mul_f32 v{t+i}, v{acc+i}, v{acc+i}' for i in R] + [f'v_fma_f32 v{t+i}, v{t+i}, v{st+1}, v{st}' for i in R]
            o += [f'v_mul_f32 v{t+i}, v{t+i}, v{acc+i}' for i in R] + [f'v_exp_f32 v{t+i}, v{t+i}' for i in R]
            o += [f'v_fma_f32 v{t+i}, v{t+i}, v{st+2}, v{st+2}' for i in R] + [f'v_rcp_f32 v{t+i}, v{t+i}' for i in R]
            o += [f'v_mul_f32 v{t+i}, v{t+i}, v{acc+i}' for i in R] + [f'v_cvt_pk_bf16_f32 v{out+i//2}, v{t+i}, v{t+i+1}' for i in P]
            return o
        return s.gelu_pk2(acc, cs, st, n, t, out)
    def gelu_pk2(s, acc, cs, st, n, t, out):
        P = range(0, n, 2); o = []
        o += [f'v_pk_fma_f32 {vr(acc+i,2)}, {vr(st+2,2)}, {vr(cs+i,2)}, {vr(acc+i,2)} op_sel:[1,0,0] op_sel_hi:[1,1,1] neg_lo:[1,0,0] neg_hi:[1,0,0]' for i in P]
        o += [f'v_pk_mul_f32 {vr(t+i,2)}, {vr(acc+i,2)}, {vr(acc+i,2)}' for i in P]
        o += [f'v_pk_fma_f32 {vr(t+i,2)}, {vr(st,2)}, {vr(t+i,2)}, {vr(st,2)} op_sel:[1,0,0] op_sel_hi:[1,1,0]' for i in P]
        o += [f'v_pk_mul_f32 {vr(t+i,2)}, {vr(t+i,2)}, {vr(acc+i,2)}' for i in P]
        o += [f'v_exp_f32 v{t+i}, v{t+i}' for i in range(n)]
        o += [f'v_pk_fma_f32 {vr(t+i,2)}, {vr(t+i,2)}, {vr(st+2,2)}, {vr(st+2,2)} op_sel_hi:[1,0,0]' for i in P]
        o += [f'v_rcp_f32 v{t+i}, v{t+i}' for i in range(n)]
        o += [f'v_pk_mul_f32 {vr(t+i,2)}, {vr(t+i,2)}, {vr(acc+i,2)}' for i in P]
        o += [f'v_cvt_pk_bf16_f32 v{out+i//2}, v{t+i}, v{t+i+1}' for i in P]
        return o
    def gelu_sc(s, acc, cs, st, n, t, out, ex):
        steps = [lambda i: f'v_fma_f32 v{acc+i}, -v{cs+i}, v{st+3}, v{acc+i}', lambda i: f'v_mul_f32 v{t+i}, v{acc+i}, v{acc+i}',
                 lambda i: f'v_fma_f32 v{t+i}, v{t+i}, v{st+1}, v{st}', lambda i: f'v_mul_f32 v{t+i}, v{t+i}, v{acc+i}',
                 lambda i: f'v_exp_f32 v{t+i}, v{t+i}', lambda i: f'v_fma_f32 v{t+i}, v{t+i}, v{st+2}, v{st+2}',
                 lambda i: f'v_rcp_f32 v{t+i}, v{t+i}', lambda i: f'v_mul_f32 v{t+i}, v{t+i}, v{acc+i}',
                 lambda i: f'v_cvt_pk_bf16_f32 v{out+i//2}, v{t+i}, v{t+i+1}' if i % 2 == 0 else '']
        for f in steps:
            ex.pop(0)()
            for i in range(n): s(f(i))
    def gemm16(s, W, acc, vaddr, kstride, first_zero, ex):
        seq = [(ks, t) for ks in range(14) for t in range(2)]
        def rd(i): ks, t = seq[i]; s(f'ds_read_b128 {vr(8+4*(i%4))}, v{vaddr} offset:{ks*kstride + 256*t}')
        for i in range(3): rd(i)
        for i, (ks, t) in enumerate(seq):
            if i + 3 < 28: rd(i + 3)
            c = 0 if (first_zero and ks == 0) else vr(acc + 4*t)
            s.fair(i, s.cfg.fg)
            s(f'v_mfma_f32_16x16x32_bf16 {vr(acc+4*t)}, {vr(W+4*ks)}, {vr(8+4*(i%4))}, {c}')
            if ex: ex.pop(0)()
        if s.cfg.fg: s('s_setprio 0')
    def gemm32(s, jobs, vaddr, extra=None, nb=4, buf=8):
        seq = [(j, i) for j, job in enumerate(jobs) for i in range(job[1])]
        ex = list(extra or [])
        def rd(n): j, i = seq[n]; s(f'ds_read_b128 {vr(buf+4*(n%nb))}, v{vaddr} offset:{jobs[j][3] + 1024*i}')
        if s.cfg.prio: s('s_setprio 1')
        for n in range(nb - 1): rd(n)
        for n, (j, i) in enumerate(seq):
            W, nk, acc, _, after = jobs[j]
            if n + nb - 1 < len(seq): rd(n + nb - 1)
            s(f'v_mfma_f32_32x32x16_bf16 {vr(acc,16)}, {vr(W+4*i)}, {vr(buf+4*(n%nb))}, {vr(acc,16) if i else 0}')
            if ex: ex.pop(0)()
            if i == nk - 1 and after: ex += [lambda: None] * 3 + after
        s('s_setprio 0')
        s.run(ex)
    def g_pre(s):
        s.comment('G wave addresses (v6 GEMM1 B, v7 residual h, v50/v51 stats, masks)')
        s(f'''s_lshl_b32 s70, s{sQ}, 2
        s_lshr_b32 s71, 0x2213, s70
        s_and_b32 s71, s71, 15
        s_lshr_b32 s72, 0x0404, s70
        s_and_b32 s72, s72, 15
        v_and_b32 v44, 15, v{vL}
        v_lshrrev_b32 v45, 4, v{vL}
        v_add_u32 v46, s71, v44
        v_add_u32 v47, s72, v44''')
        s.pos(6, 46, 48)
        s(f'v_mul_u32_u24 v48, 768, v45\nv_add_u32 v6, v6, v48\nv_add_u32 v6, {L_HI}, v6')
        s.pos(7, 47, 48)
        s(f'''v_lshrrev_b32 v48, 1, v45
        s_lshl_b32 s73, s{sCT}, 1
        v_add_u32 v48, s73, v48
        v_mul_u32_u24 v48, 768, v48
        v_and_b32 v49, 1, v45
        v_lshl_add_u32 v48, v49, 3, v48
        v_add_u32 v7, v7, v48
        v_add_u32 v7, {L_HI}, v7
        s_sub_u32 s73, s71, s72
        s_lshl_b32 s70, s{sTB}, 5
        s_add_u32 s73, s73, s70
        v_add_u32 v48, s73, v44
        v_add_u32 v49, 16, v48
        s_movk_i32 s70, 2048
        v_cmp_gt_u32 {sr(sM0,2)}, s70, v48
        v_cmp_gt_u32 {sr(sM1,2)}, s70, v49
        v_lshlrev_b32 v50, 4, v46
        v_add_u32 v50, {L_STA}, v50
        v_lshlrev_b32 v51, 3, v47
        v_add_u32 v51, {L_STB}, v51''')
        for j in range(3): s(f's_add_u32 s70, s{sQ}, {j+1}\ns_and_b32 s70, s70, 3\ns_mul_i32 s70, s70, 7\ns_add_u32 s70, s70, s{sW}\ns_lshl_b32 s{4+j}, s70, 10')
        s(f'''s_lshl_b32 s7, s{sW}, 10
        s_mul_i32 s8, s{sTB}, 28672
        s_add_u32 s8, s8, {GX}
        s_xor_b32 s9, s{sTB}, 1
        s_mul_i32 s9, s9, 28672
        s_add_u32 s9, s9, s7
        s_add_u32 s9, s9, {X1}
        s_lshl_b32 s69, s{sCT}, 10
        s_add_u32 s70, s69, s8
        s_add_u32 s71, s70, {X1 - GX}
        v_add_u32 v46, s69, v{vL16}
        v_add_u32 v47, s7, v{vL16}''')
        for i in range(4): s(f'v_mov_b32 v{28+i}, 0x3f803f80')
        for ks in range(14): s(f'v_mfma_f32_16x16x32_bf16 v[32:35], {vr(vW1+4*ks)}, v[28:31], {"v[32:35]" if ks else 0}')

    def g_wave(s, hst):
        c = s.cfg
        assert c.f_hok <= 28
        s.g_pre()
        if c.hack: s.wait(hst)
        s.hint_wait()
        s.stamp(13)
        s.h2(lambda: s.feed(c.f_hok, 63), lambda: s.feed(c.f_hld, 63))
        s.pin(c.pins[2])
        s.barrier(); s.stamp(15)
        s(f'v_mov_b32 v4, {L_FAST}\nds_read_b32 v4, v4\nv_lshlrev_b32 v5, 4, v44\nv_lshl_add_u32 v5, v45, 9, v5')
        s.gemm16(vW1, 24, 6, 3072, True, s.spread(c.f_g1, 28))
        s.stamp(39)
        s(f'v_readfirstlane_b32 s{sFAST}, v4')
        s(f's_mul_i32 s69, s{sM}, 7\ns_add_u32 s69, s69, s{sW}\ns_mul_i32 s69, s69, 1792\ns_add_u32 s69, s69, {CSP}\nv_lshlrev_b32 v48, 2, v{vL}')
        csl = lambda: [s(f'buffer_load_dword v{164+i}, v48, {sr(rWS)}, s69 offen offset:{256*i}') for i in range(7)]
        if c.cs_at == 0: csl()
        if c.evb2:
            spin, back = s.lab('es'), s.lab('eb')
            rdl = ['ds_read_b32 v49, v4', 'ds_read_b128 v[36:39], v50', 'ds_read_b128 v[40:43], v50 offset:256'][:1 if c.evc else 3]
            s(f'v_mov_b32 v4, {L_EV + 6*2048 + 7*260}')
            for l in rdl: s(l)
            s(f'v_cmp_eq_u32 vcc, 0, v49\ns_mov_b32 s97, 0\ns_cbranch_vccnz {spin}'); s.label(back)
            s.ool.append(f'{spin}:\n' + ''.join(f'    {l}\n' for l in rdl) + f'    s_add_u32 s97, s97, 1\n    s_cmp_gt_u32 s97, {SPIN*8}\n    s_waitcnt lgkmcnt(0)\n    s_cbranch_scc1 {back}\n'
                         f'    v_cmp_eq_u32 vcc, 0, v49\n    s_nop 1\n    s_cbranch_vccnz {spin}\n    s_branch {back}\n')
            s.stamp(16)
            if c.evc: s('ds_read_b128 v[36:39], v50\nds_read_b128 v[40:43], v50 offset:256')
        else:
            s.barrier(); s.stamp(16)
            s('ds_read_b128 v[36:39], v50\nds_read_b128 v[40:43], v50 offset:256')
        gl = zipl(s.gelu_pk(24, 32, 36, 4, 8, 20), s.gelu_pk(28, 32, 40, 4, 12, 22))
        ex = s.spread(c.f_gel, len(gl))
        for l in gl: s(l); ex.pop(0)()
        s(f"""v_cndmask_b32 v20, 0, v20, {sr(sM0,2)}
        v_cndmask_b32 v22, 0, v22, {sr(sM1,2)}
        v_cndmask_b32 v21, 0, v21, {sr(sM0,2)}
        v_cndmask_b32 v23, 0, v23, {sr(sM1,2)}
        v_permlane16_swap_b32 v20, v22
        v_permlane16_swap_b32 v21, v23
        v_or_b32 v20, 1, v20""")
        s.xstore([f'buffer_store_dwordx4 v[20:23], v{vL16}, {sr(rWS)}, s70 offen'])
        s.stamp(17)
        s(f"""ds_write_b128 v46, v[20:23] offset:{L_GI}
        ds_read_b64 v[8:9], v7
        ds_read_b64 v[10:11], v7 offset:256
        ds_read_b64 v[12:13], v51
        ds_read_b64 v[14:15], v51 offset:128""")
        for i in range(4): s(f'v_lshlrev_b32 v{vRES+2*i}, 16, v{8+i}\nv_and_b32 v{vRES+1+2*i}, 0xffff0000, v{8+i}')
        for i in range(4): s(f'v_pk_fma_f32 {vr(24+2*i,2)}, {vr(12+2*(i>>1),2)}, {vr(vRES+2*i,2)}, {vr(12+2*(i>>1),2)} op_sel:[1,0,0] op_sel_hi:[1,1,0]')
        if c.dack[0]: s.wait_vm(0)
        s.stamp(18)
        hd, td = s.fetch_issue([(4+j, L_GI, 4+j, 's8') for j in range(3)])
        if c.bar_a: s('s_barrier')
        if c.cs_at == 1: csl()
        s.feed(c.f_b3a, 63)
        p1, p2 = s.fetch_check(hd, td, 47, L_GI, 4, 8)
        p1(); p2(); s.stamp(42)
        if s.stamps: s('v_writelane_b32 v3, s97, 62')
        if c.cs_at == 2: csl()
        s.feed(c.f_gok, 63)
        s(f's_add_u32 s8, s8, {X1 - GX}\nv_add_u32 v47, {L_XI}, v47')
        s.barrier(); s.stamp(19)
        s.gemm16(vW2, 24, 5, 2048, False, s.spread(c.f_g2, c.g2span))
        for i in range(4): s(f'v_cvt_pk_bf16_f32 v{20+i}, v{24+2*i}, v{25+2*i}')
        s('v_permlane16_swap_b32 v20, v22\nv_permlane16_swap_b32 v21, v23\nv_or_b32 v20, 1, v20')
        s.xstore([f'buffer_store_dwordx4 v[20:23], v{vL16}, {sr(rWS)}, s71 offen'])
        s.stamp(20)
        s(f'ds_write_b128 v46, v[20:23] offset:{L_XI + 28672}')
        s(f"""v_mov_b32 v49, 0
        v_mov_b32 v50, 0
        v_mov_b32 v51, 0
        v_add_u32 v6, {L_XI}, v{vL16}
        s_lshl_b32 s70, s{sW}, 11
        s_add_u32 s70, s70, {L_HID}
        v_add_u32 v7, s70, v{vL16}
        v_add_u32 v44, {L_HID}, v{vL16}""")
        for i in range(8): s(f'v_add_f32 v{vRES+i}, v{vRES+i}, v{24+i}')
        if c.dack[1]: s.wait_vm(0)
        s.stamp(21)
        hd, td = s.fetch_issue([(7, L_XI + 7168*j, 9, 7168*j) for j in range(4)])
        s(f'''v_pk_add_f32 v[164:165], v[164:165], v[166:167]
        v_add_f32 v168, v168, v170
        v_pk_add_f32 v[164:165], v[164:165], v[168:169]
        v_add_f32 v164, v164, v165
        v_mov_b32 v165, v164
        v_permlane32_swap_b32 v164, v165
        v_add_f32 v164, v164, v165
        v_cvt_pk_bf16_f32 v48, v164, v164
        v_and_b32 v165, 0xffff0000, v48
        v_sub_f32 v165, v164, v165
        v_cvt_pk_bf16_f32 v48, v164, v165''')
        p1, p2 = s.fetch_check(hd, td, 47, 0, 4, 8)
        p1(); p2(); s.stamp(43)
        if s.stamps: s('v_writelane_b32 v3, s97, 63')
        hx, tx = s.fetch_issue([(4+j, L_XI + 28672, 4+j, 's8') for j in range(3)])
        s.feed(c.f_b4a, 63)
        later = []
        for r, x in ((12, 1), (15, 0)):
            later.append(f"""s_xor_b32 s69, s{sTB}, {x}
            s_mul_i32 s70, s69, 28
            s_add_u32 s70, s70, s{sCT}
            s_lshl_b32 s71, s70, 10
            s_add_u32 s{r}, s71, {GX}
            s_add_u32 s{r+1}, s71, {X1}
            s_lshl1_add_u32 s{r+2}, s71, {PX}
            s_lshl_b32 s69, s69, 5
            s_add_u32 s69, s69, s{sCT}
            s_lshl2_add_u32 s{18+x}, s69, {F7}""")
        later.append(f"""s_xor_b32 s72, s{sTB}, 1
        s_lshl_b32 s72, s72, 5
        s_lshr_b32 s74, s{sCT}, 2
        s_add_u32 s72, s72, s74
        s_lshl2_add_u32 s72, s72, {F7}
        s_bfe_u32 s74, s{sCT}, 0x10001
        s_mul_i32 s74, s74, {F7B - F7}
        s_add_u32 s72, s72, s74""")
        later.append(f"""s_mul_i32 s74, s{sTB}, 28
        s_lshr_b32 s22, s{sCT}, 2
        s_add_u32 s74, s74, s22
        s_lshl_b32 s74, s74, 10
        s_and_b32 s22, s{sCT}, 1
        s_lshl_b32 s71, s22, 21
        s_add_u32 s71, s71, s74
        s_add_u32 s71, s71, {GX}
        s_lshl_b32 s22, s22, 10
        s_lshl1_add_u32 s74, s74, s22
        s_add_u32 s74, s74, {PX}
        s_bitcmp1_b32 s{sCT}, 1
        s_cselect_b32 s74, s71, s74
        s_cselect_b32 s22, 7, 14
        s_lshl_b32 s22, s22, 10
        s_lshl1_add_u32 s75, s22, s74
        s_sub_u32 s22, s22, 1024
        v_lshrrev_b32 v28, 5, v{vL}
        v_mad_u32_u24 v5, v28, s22, v5
        s_mul_i32 s76, s{sTB}, {32*896}
        s_lshl_b32 s77, s{sCT}, 5
        s_add_u32 s76, s76, s77
        s_mov_b32 s{rX}, s{sOUT}
        s_mov_b32 s{rX+1}, s{sOUT+1}
        s_mov_b32 s{rX+2}, {2048*896}
        s_mov_b32 s{rX+3}, 0x20000""")
        AC, ST, A4 = (180, 164), (vST3, 160), ((112, 128), (180, 144))
        seq = []
        gp, gd = c.gp, c.gd
        for t, a, b in ((0, 0, gp), (1, 0, gd), (0, gp, 28), (1, gd, 28)): seq += [(vW3 + 4*k, AC[t], k == 0, (6, 28672*t + 1024*k)) for k in range(a, b)]
        use0 = lambda k: k if k < gp else k + gd
        e0 = 27 + gd
        for t in range(2):
            for j in range(2):
                prs = [(w, ctl) for w in range(7) for ctl in range(2)]
                if j == 1: prs = [(w, ctl ^ t) for ctl in range(2) for w in range(7)]
                seq += [((vW4A + 4*(2*w + ctl), vW4B + 4*(7*ctl + w))[j], A4[t][ctl], j == 0 and w == 0, (44, 14336*t + 1024*(2*w + j))) for w, ctl in prs]
        reads = []; ridx = []
        for n, e in enumerate(seq):
            if not reads or reads[-1][0] != e[3]: reads.append((e[3], n))
            ridx.append(len(reads) - 1)
        nb = 4
        rat = {}
        for r, (key, n) in enumerate(reads):
            free = max([m for m in range(112) if ridx[m] == r - nb], default=-1)
            rat[r] = max(free, n - c.pd)
        X = {i: [] for i in range(-1, 113)}
        def place(items, a, b):
            bu = c.burst
            for k, it in enumerate(items):
                p = a + (k * (b - a + 1)) // len(items)
                X[min(b, p + (bu - 1 - (p - a) % bu))].append(it)
        I = lambda t: (lambda: s(t))
        def gelu(t, h):
            acc, st, o, G = AC[t] + 8*h, ST[t], [], c.ggrp
            for j in range(0, 8, G):
                R = range(G); T = 24 + j
                o += [f'v_mul_f32 v{T+i}, v{acc+j+i}, v{acc+j+i}' for i in R]
                o += [f'v_fma_f32 v{T+i}, v{T+i}, v{st+1}, v{st+2}' for i in R]
                o += [f'v_mul_f32 v{T+i}, v{T+i}, v{acc+j+i}' for i in R]
                for i in R: o += [f'v_exp_f32 v{T+i}, v{T+i}', '']
                o += [f'v_fma_f32 v{T+i}, v{T+i}, v{st+3}, v{st+3}' for i in R]
                for i in R: o += [f'v_rcp_f32 v{T+i}, v{T+i}', '']
                o += [f'v_mul_f32 v{T+i}, v{T+i}, v{acc+j+i}' for i in R]
                o += [f'v_cvt_pk_bf16_f32 v{32+(j+i)//2}, v{T+i}, v{T+i+1}' for i in range(0, G, 2)]
            o.append(f'ds_write_b128 v7, v[32:35] offset:{14336*t + 1024*h}\nds_write_addtid_b32 v44 offset:{L_EV - 32768 + 2048*(2*t + h)}')
            return [I(x) for x in o]
        def sync(at, k, st):
            rdl = f'ds_read_b32 v4, v46 offset:{2048*k}'
            def chk():
                spin, back = s.lab('ls'), s.lab('lb')
                s(f's_cbranch_vccnz {spin}')
                s.label(back); s.stamp(st)
                s.ool.append(f'{spin}:\n    s_mov_b32 s97, 0\n{spin}a:\n    {rdl}\n    s_add_u32 s97, s97, 1\n    s_cmp_gt_u32 s97, {SPIN*8}\n    s_waitcnt lgkmcnt(0)\n    s_cbranch_scc1 {back}\n'
                             f'    v_cmp_eq_u32 vcc, 0, v4\n    s_nop 1\n    s_cbranch_vccz {back}\n    s_sleep 1\n    s_branch {spin}a\n')
            X[at - c.sd].append(I(rdl)); X[at].insert(0, I('v_cmp_eq_u32 vcc, 0, v4')); X[at].append(chk)
        hs = {}
        def blk(base, k): return f's{base + min(k ^ 2, 2)} offen offset:{1024 * (k == 1)}'
        def fin(t, ctl, h, pk, last=False):
            acc = A4[t][ctl] + 8*h
            def f():
                if t == 1:
                    un = A4[0][ctl] + 8*h
                    if last:
                        for i in range(0, 8, 2): s(f'v_pk_add_f32 {vr(acc+i,2)}, {vr(acc+i,2)}, {vr(un+i,2)}')
                    else:
                        for i in range(8): s(f'v_add_f32 v{acc+i}, v{acc+i}, v{un+i}')
                for i in range(4): s(f'v_cvt_pk_bf16_f32 v{pk+i}, v{acc+2*i}, v{acc+2*i+1}')
                s(f'v_or_b32 v{pk}, 1, v{pk}' if t else f'v_and_b32 v{pk}, -2, v{pk}')
                s.xstore([f'buffer_store_dwordx4 {vr(pk)}, v{vL16}, {sr(rWS)}, {blk(12 + 3*t, 2*ctl + h)}'])
                hs[t, ctl] = s.vm[-1][0]
            return f
        def stage1(ctl, at):
            fo = ctl * (F7B - F7)
            def flag():
                s(f'v_mov_b32 v45, s{sTAG}\ns_add_u32 s69, s18, {fo}')
                s.wait(hs[0, ctl]); s('s_mov_b64 exec, 1')
                s.xstore([f'buffer_store_dword v45, off, {sr(rWS)}, s69'])
                s('s_mov_b64 exec, -1')
            ld = [f'buffer_load_dwordx4 {vr(164 + 8*ctl + 4*h)}, v{vL16}, {sr(rWS)}, {blk(15, 2*ctl + h)} sc1' for h in range(2)]
            def fetch():
                if ctl == 0: s.poll_check(47, None, 's70'); s.stamp(45)
                for l in ld: s(l)
            def check():
                ck = ['v_or_b32 v4, v172, v176', 'v_and_b32 v4, 1, v4', 'v_cmp_eq_u32 vcc, 1, v4']
                retry, back = s.lab('sr'), s.lab('sb')
                for l in ck: s(l)
                s(f's_mov_b32 s97, 0\ns_cbranch_vccnz {retry}'); s.label(back); s.stamp(46)
                s.ool.append(f'{retry}:\n' + ''.join(f'    {l}\n' for l in ld) + f'    s_add_u32 s97, s97, 1\n    s_cmp_gt_u32 s97, {SPIN}\n    s_waitcnt vmcnt(0)\n    s_cbranch_scc1 {back}\n'
                             + ''.join(f'    {l}\n' for l in ck) + f'    s_nop 1\n    s_cbranch_vccnz {retry}\n    s_branch {back}\n')
            X[at[0]].append(fin(0, ctl, 0, 108)); X[at[1]].append(fin(0, ctl, 1, 196))
            X[at[2]].append(flag)
            if ctl == 0: X[at[3]].append(lambda: (s(f's_add_u32 s70, s19, {fo}'), s.poll_issue(47, None, 's70')))
            X[at[4]].append(fetch)
            if ctl == 1: X[at[5]].append(check)
            un = []
            for i in range(8): un += [f'v_lshlrev_b32 v{A4[0][ctl] + 2*i}, 16, v{164 + 8*ctl + i}', f'v_and_b32 v{A4[0][ctl] + 2*i + 1}, 0xffff0000, v{164 + 8*ctl + i}']
            place([I(x) for x in un], at[5], min(at[5] + 3, 111))
        bsave, c.burst = c.burst, 1
        ch = []
        for t in later:
            cur = []
            for l in t.split('\n'):
                if len(cur) >= 5 and 'cselect' not in l: ch.append('\n'.join(cur)); cur = []
                cur.append(l)
            ch.append('\n'.join(cur))
        assert not any(x.strip().split('\n')[-1].strip().startswith(('s_cmp', 's_bitcmp')) for x in ch)
        place([I(x) for x in ch], 8, 26)
        if s.wn < 56:
            w3e = c.w3e if c.w3e is not None else max(0, s.wn - 28 - 5)
            n3 = 56 - s.wn
            assert all((k * (w3e + 1)) // n3 < use0(s.wn - 28 + k) for k in range(n3)) and w3e < c.w4a[0]
            place([s.feed1] * n3, 0, w3e)
        if s.wn < 70: place([s.feed1] * (70 - max(s.wn, 56)), c.w4a[0], c.w4a[1])
        place([s.feed1] * 14, c.w4b[0], c.w4b[1])
        c.burst = bsave
        first = lambda n: rat[ridx[n]] - 1
        x1st = first(gp if gd else 28)
        assert c.x_at + 2 <= x1st - c.sd
        sync(x1st if gd else x1st - 3, 5, 49)
        sync(e0 - 3, 4, 23)
        X[e0 - 3].append(I(f'ds_read_b128 {vr(ST[0])}, v44 offset:{L_ST3 - L_HID}'))
        X[e0].append(I(f'v_mfma_f32_32x32x16_bf16 {vr(AC[0],16)}, v[48:51], {vr(ST[0])}, {vr(AC[0],16)}'))
        assert c.q[0] > e0
        q = c.q
        for k in range(4): place(gelu(k >> 1, k & 1), q[k], q[k+1] - 1)
        X[55].append(I(f'ds_read_b128 {vr(ST[1])}, v44 offset:{L_ST3 - L_HID + 1024}'))
        X[57].append(I(f'v_mfma_f32_32x32x16_bf16 {vr(AC[1],16)}, v[48:51], {vr(ST[1])}, {vr(AC[1],16)}'))
        for k in range(4):
            assert first(56 + 14*k) - c.sd >= q[k+1] - 1, (k, first(56 + 14*k))
            sync(first(56 + 14*k), k, (25, 26, 27, 41)[k])
        assert c.st0[4] >= q[3] and c.st1[4] >= q[4] and c.st1[5] > first(98) and c.st1[5] + 3 < 107 and c.st1[2] < c.fpoll
        stage1(0, c.st0); stage1(1, c.st1)
        X[107].append(fin(1, 1, 0, 108)); X[109].append(fin(1, 1, 1, 196)); X[112] += [fin(1, 0, 0, 24, c.lastpk), fin(1, 0, 1, 28, c.lastpk)]
        X[58].append(I(f'global_load_dwordx4 v[48:51], v{vL16}, s[94:95] offset:-1024'))
        X[q[4]].append(I(f'v_lshlrev_b32 v6, 3, v{vL}\nglobal_load_dwordx2 v[6:7], v6, s[94:95] offset:-1536'))
        X[c.fpoll].append(lambda: s.poll_issue(45, 7, 's72')); X[c.fpoll + c.fpd].append(lambda: s.poll_check(45, 7, 's72'))
        def rd(r): (va, off), _ = reads[r]; s(f'ds_read_b128 {vr(8+4*(r%nb))}, v{va} offset:{off}')
        p1, p2 = s.fetch_check(hx, tx, 47, 28672, 4, 24, f's_mov_b32 m0, s21')
        X[c.x_at].insert(0, p1); X[c.x_at + 2].append(lambda: (p2(), s(f'ds_write_addtid_b32 v44 offset:{L_EV - 32768 + 2048*5}')))
        s(f'v_and_b32 v46, 7, v{vL}\nv_mul_u32_u24 v46, 260, v46\nv_add_u32 v46, {L_EV}, v46\ns_lshl_b32 s21, s{sW}, 8\ns_add_u32 s21, s21, 32768\ns_mov_b32 m0, s21')
        s.pin(c.pins[3])
        s.barrier(); s.stamp(22)
        for r in range(len(reads)):
            if rat[r] < 0: rd(r)
        LS = [10, 26, 78, 80, 40, 42, 44, 46, 62, 64, 66, 88, 90, 92, 24]
        for n, (W, acc, fst, key) in enumerate(seq):
            if c.lst and n % 8 == 0: s.raw(f'    s_memtime s[{LS[n//8]}:{LS[n//8]+1}]')
            s.fair(n, c.fm)
            s(f'v_mfma_f32_32x32x16_bf16 {vr(acc,16)}, {vr(W)}, {vr(8+4*(ridx[n]%nb))}, {0 if fst else vr(acc,16)}')
            for r in range(len(reads)):
                if rat[r] == n: rd(r)
            s.run(X[n])
        if c.lst: s.raw('    s_memtime s[24:25]')
        s.run(X[112])
        if c.lst:
            s.wait_lg(0, force=True)
            for i, r in enumerate(LS): s(f'v_writelane_b32 v3, s{r}, {1 + i}')
        s.stamp(28)
        if c.dack[2]: s.wait_vm(0)
        s.stamp(29)
        ld = [f'buffer_load_dwordx4 {vr(52+8*u+4*t)}, v5, {sr(rWS)}, s{74+u} offen offset:{256*t} sc1' for u in range(2) for t in range(2)]
        ck = ['v_and_b32 v8, v52, v56', 'v_and_b32 v9, v60, v64', 'v_and_b32 v8, 1, v8', 'v_and_b32 v8, v8, v9', 'v_cmp_eq_u32 vcc, 0, v8']
        retry, back = s.lab('er'), s.lab('eb')
        for l in ld + ck: s(l)
        s(f's_mov_b32 s97, 0\ns_cbranch_vccnz {retry}'); s.label(back)
        s.ool.append(f'{retry}:\n' + ''.join(f'    {l}\n' for l in ld) + f'    s_add_u32 s97, s97, 1\n    s_cmp_gt_u32 s97, {SPIN}\n    s_waitcnt vmcnt(0)\n    s_cbranch_scc1 {back}\n'
                     + ''.join(f'    {l}\n' for l in ck) + f'    s_nop 1\n    s_cbranch_vccnz {retry}\n    s_branch {back}\n')
        s.stamp(30)
        for u in range(2):
            for t in range(2): s(f'v_mfma_f32_16x16x32_bf16 {vr(vRES+4*t)}, v[48:51], {vr(52+8*u+4*t)}, {vr(vRES+4*t)}')
        for i in range(4): s(f'v_cvt_pk_bf16_f32 v{20+i}, v{vRES+2*i}, v{vRES+1+2*i}')
        s('v_permlane16_swap_b32 v20, v22\nv_permlane16_swap_b32 v21, v23')
        s(f'buffer_store_dwordx4 v[20:23], v6, {sr(rX)}, s76 offen')
        s.stamp(31)

    def s_mfma(s, addrs, acc, kstride, base, nk=14):
        seq = [(ks, t) for ks in range(nk) for t in range(3)]
        nb = 8
        def rd(i): ks, t = seq[i]; s(f'ds_read_b128 {vr(52+4*(i%nb))}, v{addrs+t} offset:{base + ks*kstride}')
        s('s_mov_b32 exec_lo, 0x77777777\ns_mov_b32 exec_hi, 0x77777777')
        for i in range(nb - 1): rd(i)
        for i, (ks, t) in enumerate(seq):
            if i + nb - 1 < len(seq): rd(i + nb - 1)
            s(f'v_mfma_f32_16x16x32_bf16 {vr(acc+4*t)}, {vr(52+4*(i%nb))}, {vr(52+4*(i%nb))}, {vr(acc+4*t) if ks else 0}')
    def s_wave(s, hst):
        s.comment('S wave: statistics, polling, DMA')
        s.pin(s.cfg.pins[4])
        s('s_setprio 2')
        s(f'''s_and_b32 s70, s2, 0xc7
        s_lshl_b32 s70, s70, 4
        s_mul_i32 s71, s{sXCD}, {FCP}
        s_add_u32 s70, s70, s71
        s_add_u32 s70, s70, {FA}
        v_and_b32 v44, 7, v{vL}
        v_lshlrev_b32 v44, 7, v44
        buffer_load_dword v48, v44, {sr(rWS)}, s70 offen sc1''')
        def ftouch():
            s(f'''s_lshl_b32 s72, s{sTB}, 7
            s_add_u32 s72, s72, {F3}
            s_mov_b32 m0, {L_JUNK}
            v_min_u32 v45, 4, v{vL}
            v_lshlrev_b32 v45, 13, v45
            buffer_load_dword v45, {sr(rWS)}, s72 offen sc1 lds''')
            if s.cfg.etouch:
                s(f's_mul_i32 s70, s{sTB}, 28\ns_add_u32 s70, s70, s{sCT}\ns_lshl_b32 s70, s70, 11\ns_add_u32 s70, s70, {PX - 7*2048}\ns_add_u32 s71, s70, 7168\ns_mov_b32 exec_hi, 0x00ffffff')
                s(f'buffer_load_dword v7, {sr(rWS)}, s70 offen sc1 lds\nbuffer_load_dword v7, {sr(rWS)}, s71 offen sc1 lds\ns_mov_b32 exec_hi, -1')
        def setup():
            for i in range(32): s(f'v_mov_b32 v{52+i}, 0x3f803f80')
            s(f'''v_and_b32 v44, 3, v{vL}
        v_bfe_u32 v45, v{vL}, 2, 2
        v_mad_u32_u24 v40, v45, 3, v44
        v_lshrrev_b32 v41, 4, v{vL}''')
            for t in range(3):
                s(f'v_add_u32 v46, {12*t}, v40')
                s.pos(84 + t, 46, 47)
                s(f'v_mul_u32_u24 v47, 768, v41\nv_add_u32 v{84+t}, v{84+t}, v47\nv_add_u32 v{84+t}, {L_HI}, v{84+t}')
                s(f'v_min_u32 v46, 31, v46\nv_lshlrev_b32 v46, 4, v46\nv_lshl_add_u32 v46, v41, 9, v46\nv_add_u32 v{88+t}, {L_XI}, v46')
            s(f'''v_sub_u32 v45, v45, v41
        v_and_b32 v45, 3, v45
        v_cmp_eq_u32 s[78:79], 1, v45
        v_cmp_eq_u32 s[80:81], 2, v45
        v_mad_u32_u24 v40, v41, 3, v44
        v_mad_u32_u24 v40, v45, 12, v40
        v_min_u32 v92, 31, v40
        v_lshlrev_b32 v92, 4, v92
        v_add_u32 v92, {L_ST3}, v92
        v_lshlrev_b32 v42, 4, v40
        v_add_u32 v42, {L_STA}, v42
        v_lshlrev_b32 v43, 3, v40
        v_add_u32 v43, {L_STB}, v43
        v_lshlrev_b32 v6, 2, v{vL}
        v_lshlrev_b32 v7, 7, v{vL}
        v_cmp_ne_u32 vcc, s{sTX}, v48
        v_mov_b32 v46, {L_FAST}
        s_cmp_eq_u64 vcc, 0
        s_cselect_b32 s{sFAST}, 1, 0
        v_mov_b32 v45, s{sFAST}
        ds_write_b32 v46, v45
        v_and_b32 v38, 7, v{vL}
        v_mul_u32_u24 v38, 260, v38
        v_add_u32 v38, {L_EV}, v38
        v_lshlrev_b32 v46, 8, v{vL}
        v_and_b32 v46, 0x3800, v46
        v_add_u32 v46, v46, v38
        s_mov_b32 vcc_lo, 0x80800000
        s_mov_b32 vcc_hi, 0x807f
        v_cndmask_b32 v45, 0, v38, vcc
        ds_write_b32 v46, v45''')
        if not s.cfg.searly: setup()
        s(f'''s_and_b32 s70, s{sQ}, 1
        s_mul_i32 s71, s70, 9
        s_lshl3_add_u32 s71, s{sTB}, s71
        s_sub_u32 s71, s71, 1
        s_max_i32 s71, s71, 0
        s_min_i32 s71, s71, 511
        s_lshr_b32 s88, s71, 3
        s_mul_i32 s88, s88, 28672
        s_and_b32 s71, s71, 7
        s_lshl4_add_u32 s88, s71, s88
        s_add_u32 s88, s88, {X1}
        s_mul_i32 s70, s70, 384
        s_add_u32 s70, s70, {L_HI + 128}
        v_min_u32 v5, 55, v{vL}
        v_lshlrev_b32 v4, 9, v5
        v_mul_u32_u24 v5, 768, v5
        v_add_u32 v5, s70, v5''')
        s.wait(hst); s.hint_wait()
        s.stamp(13)
        s.h2(ftouch, setup if s.cfg.searly else (lambda: None), halo=True)
        s(f'v_cmp_eq_u32 s[92:93], 1, v44\nv_cmp_eq_u32 s[94:95], 2, v44\ns_mov_b32 s96, {INVD}\nv_mov_b32 v49, {fh(1 + 1e-5)}')
        s(f'''s_lshl2_add_u32 s70, s{sTB}, s{sQ}
        s_lshl_b32 s71, s70, 4
        s_add_u32 s71, s71, {FN}
        v_and_b32 v45, 1, v{vL}
        v_lshlrev_b32 v45, 3, v45
        v_sub_u32 v45, v44, v45
        s_lshl2_add_u32 s72, s{sTB}, 4
        v_add_u32 v45, s72, v45
        v_mov_b32 v47, s70
        v_cmp_gt_u32 vcc, 0x100, v45
        v_mov_b32 v36, s{sTAG}
        s_mov_b32 s72, {FN}
        v_cndmask_b32 v45, v47, v45, vcc
        s_xor_b32 s70, s70, 4
        v_writelane_b32 v45, s70, 4
        v_lshlrev_b32 v37, 4, v45''')
        s.barrier(); s.stamp(15)
        s(f's_mov_b64 exec, 1\nbuffer_store_dword v36, off, {sr(rWS)}, s71 sc1')
        s.s_mfma(84, 24, 3072, 0)
        s.stamp(39)
        s.stats_tail(24, 43, 42, 0)
        if s.cfg.evp: s.wait_lg(0)
        if s.cfg.evb2: s(f's_mov_b64 exec, 0x80\nds_write_b32 v38, v38 offset:{6*2048}\ns_mov_b64 exec, -1')
        else: s('s_mov_b64 exec, -1'); s.barrier()
        s.stamp(16)
        s.poll(4, 37, 's72', 31, 0, sleep=4)
        for i in range(2 + s.cfg.bar_a): s('s_barrier')
        s.stamp(22)
        def lwait(k):
            l, l2, l3 = s.lab('tw'), s.lab('tx'), s.lab('ty')
            s(f's_mov_b32 s97, 0\ns_branch {l2}'); s.label(l); s(f's_sleep 1\ns_add_u32 s97, s97, 1\ns_cmp_gt_u32 s97, {SPIN*8}\ns_cbranch_scc1 {l3}'); s.label(l2)
            s(f'ds_read_b32 v4, v38 offset:{2048*k}\nv_cmp_eq_u32 vcc, 0, v4\ns_cbranch_vccnz {l}'); s.label(l3)
        post = lambda k: s(f's_mov_b64 exec, 0x80\nds_write_b32 v38, v38 offset:{2048*k}\ns_mov_b64 exec, -1')
        def touch():
            s(f'''s_mul_i32 s70, s{sTB}, 28
            s_mul_i32 s71, s{sQ}, 7
            s_add_u32 s70, s70, s71
            s_lshl_b32 s71, s70, 10
            s_add_u32 s71, s71, {GX}
            s_add_u32 s69, s71, {X1 - GX}
            s_lshl_b32 s70, s70, 11
            s_add_u32 s70, s70, {PX}
            s_mov_b32 m0, {L_JUNK}
            s_mov_b32 exec_hi, 0x00ffffff''')
            rf = f'buffer_load_dword v7, {sr(rWS)}, s71 offen sc1 lds\nbuffer_load_dword v7, {sr(rWS)}, s69 offen sc1 lds'
            if s.cfg.refresh == 1: s(rf)
            for i in range(2):
                k = (s.cfg.touch_at, s.cfg.touch2)[i]
                if k < 4: lwait(k)
                s(f'buffer_load_dword v7, {sr(rWS)}, s70 offen sc1 lds\ns_add_u32 s70, s70, 7168')
            if s.cfg.refresh == 2: s(rf)
            s('s_mov_b32 exec_hi, -1')
        for t in range(2):
            if s.cfg.x_ns: s(f's_mov_b32 s96, {fh(1/96)}')
            s.s_mfma(88, 24, 2048, 28672 * t, 3 if s.cfg.x_ns else 14)
            s.stats_tail(24, None, 92, 1024 * t)
            post((4, 0)[t])
            s.stamp(23 + t)
            if t == 0:
                lwait(5)
                s(f's_lshl_b32 s72, s{sCL}, 8\ns_add_u32 s72, s72, {F5 + 28}\ns_lshl_b32 s73, s{sM}, 5\ns_add_u32 s73, s73, s72\nv_lshlrev_b32 v37, 5, v{vL}')
                s.flag(73)
        s.poll(4, 37, 's72', '0xff', 0, sleep=2)
        post(1)
        s.stamp(25)
        if s.cfg.touch_at != 5: touch()
        s.cond('s_cmp_lg_u32 s2, 0', lambda: s(f'v_mov_b32 v4, s{sTAG}\ns_mov_b32 s70, {EP}\ns_mov_b64 exec, 1\nbuffer_store_dword v4, off, {sr(rWS)}, s70 sc1\ns_mov_b64 exec, -1'))
        s.wait_vm(0); s.stamp(28)

def build(stamps=False, cfg=None):
    s = K(stamps, cfg or Cfg())
    c = s.cfg
    s.entry(); s.setup(); s(s.scalars())
    if c.dma_at == -1: s(f's_cmp_lt_u32 s43, 2\ns_cmov_b32 s{rW+2}, {448*896}'); s.pack_dma()
    if c.sb_at == 0: s.setup_b()
    s.stamp(34); s.ln()
    s(f's_cmp_ge_u32 s{sI}, 28'); s.flush_hazards(); s('s_cbranch_scc1 Lnonconv')
    st = s.state()
    s.clear()
    if c.sb_at == 1: s.setup_b()
    s.stamp(33)
    if c.dma_at == 0: s.pack_dma()
    if c.fa_at == -1: s.publish_a()
    s.kgen(); hst = s.conv()
    s.label('Ljoin')
    s(f'v_mov_b32 v4, v21\nv_mov_b32 v5, v22\ns_cmp_eq_u32 s{sW}, 7'); s.flush_hazards(); s('s_cbranch_scc1 Lsw')
    st2 = s.state()
    s.g_wave(hst); s.dump_stamps(); s('s_endpgm')
    s.label('Lsw'); s.set_state(st2)
    s.s_wave(hst); s.dump_stamps()
    s.label('Lend'); s('s_endpgm')
    s.label('Lnonconv'); s.set_state(st); s.wn = 0
    s.nonconv(); s.flush_hazards(); s('s_branch Ljoin')
    name = NAME + '_kernel'
    txt = f'''; @launch grid=(256,1,1) block=(512,1,1) lds={LDS_BYTES}
.amdgcn_target "amdgcn-amd-amdhsa--gfx950"
.text
.globl {name}
.p2align 8
.type {name},@function
{name}:
''' + s.text() + ''.join(s.ool) + tap_table() + f'''.section .rodata,"a"
.p2align 6
.amdhsa_kernel {name}
  .amdhsa_next_free_vgpr 256
  .amdhsa_next_free_sgpr 102
  .amdhsa_accum_offset 256
  .amdhsa_group_segment_fixed_size 0
  .amdhsa_kernarg_size 120
  .amdhsa_user_sgpr_count 2
  .amdhsa_user_sgpr_kernarg_segment_ptr 1
  .amdhsa_system_sgpr_workgroup_id_x 1
.end_amdhsa_kernel
'''
    size, syms = code_info(txt.replace('@CODE_BYTES@', '1000').replace('@TAB_OFF@', '1000'))
    return txt.replace('@CODE_BYTES@', str(syms['tap_table'] + 2048 + 4224 - syms['Lpc'] - 4)).replace('@TAB_OFF@', str(syms['tap_table'] - syms['Lpc']))
def tap_table():
    RB = {8: 0, 4: 16, 2: 24, 6: 28, 1: 32, 3: 34, 5: 36, 7: 38}
    def rnd(l):
        sh = max(0, l.bit_length() - 8)
        if not sh: return l
        q, r = l >> sh, l & ((1 << sh) - 1); half = 1 << (sh - 1)
        return (q + (r > half or (r == half and q & 1))) << sh
    v = []
    for i in range(2056):
        l = 2047 - i
        if l < 0: e = 768
        elif l == 0: e = 640
        else: p = rnd(l); e = RB[((p - 1) & 7) + 1] * 16 + ((p - 1) >> 3)
        v.append(e * 16)
    v += [0] * 56
    lane = []
    for l in range(64):
        n, g = l & 15, l >> 4; tb = 2*n + (g >> 1); rr, cc = (l >> 2) & 3, l & 3
        bb = lambda c_: 32*c_ + 16*((c_ >> 3) & 1)
        lane.append([4*(4*g - (n >> 1)) + 28 + KEO*(1 - (n & 1)), bb(30 + 2*n + g), bb(26 + 2*n + g), (l >> 1)*896 + 16*((l ^ g) & 1),
                     tb*64 + (g & 1)*32, (n >> 1)*1792 + 4*(n & 1) + g, bb(tb) + 8*(g & 1), (g*64 + n)*16 + 4*((l >> 3) & 3),
                     n*KGP + 16*g, (8*g + rr)*64 + cc*8, (8*(g >> 1) + rr)*64 + (g & 1)*32 + (cc & 1)*16 + (cc >> 1)*8,
                     (l >> 2)*896 + cc*16, (l >> 2)*3584 + cc*16, rr*LNP + 32*g + 8*cc, rr*KEO + 16*(l & 1), 0])
    pk = []
    for b in range(256):
        for w in range(8):
            U = 256*w + 32*(b & 7) + (b >> 3)
            if U < 392: m, V = divmod(U, 196); kb, cb = divmod(V, 14); src = kb*32*896; d0 = 392*m + 28*cb + kb; d1 = d0 + 14
            elif U < 1176: m = 2; kb, cb = divmod(U - 392, 56); src = kb*32*3584; d0 = 784 + 28*cb + 2*kb; d1 = d0 + 1
            elif U < 1960: m = 3; kb, cb = divmod(U - 1176, 14); src = kb*32*896; d1 = 2352 + ((kb//7)*7 + (cb >> 1))*28; d0 = d1 + 2*(kb % 7) + (cb & 1); d1 += 14 + 7*(cb & 1) + kb % 7
            else: m, cb, src, d0, d1 = 4, 0, 0, 0, 0
            pk += [(m << 24) | (src + 64*cb), d0 | (d1 << 16)]
    t = '.p2align 7\n.type tail_table,@object\ntail_table:\n'
    for l in range(64): t += f'.long {(l & 31)*896 + (l >> 5)*16}, {(l & 3)*28}\n'
    for l in range(64): t += '.short ' + ', '.join('0x3f80' if (l & 15) == 8*((l >> 4) & 1) + j else '0' for j in range(8)) + '\n'
    t += '.size tail_table, 1536\n.type tap_table,@object\ntap_table:\n'
    for h in range(2):
        for l in range(64): t += '.short ' + ', '.join(map(str, lane[l][8*h:8*h+8])) + '\n'
    for i in range(0, 2112, 8): t += '.short ' + ', '.join(map(str, v[i:i+8])) + '\n'
    for i in range(0, 4096, 8): t += '.long ' + ', '.join(map(str, pk[i:i+8])) + '\n'
    return t + f'.size tap_table, {2048 + 4224 + 16384}\n'
def code_info(txt):
    import subprocess, tempfile, re
    with tempfile.TemporaryDirectory() as d:
        open(d + '/a.s', 'w').write(txt)
        subprocess.run(['clang', '-x', 'assembler', '-target', 'amdgcn-amd-amdhsa', '-mcpu=gfx950', '-c', d + '/a.s', '-o', d + '/a.o'], check=True)
        o = subprocess.run(['llvm-readelf', '-S', '-s', d + '/a.o'], capture_output=True, text=True).stdout
        size = int(re.search(r'\.text\s+PROGBITS\s+\S+\s+\S+\s+(\S+)', o).group(1), 16)
        return size, {m.group(2): int(m.group(1), 16) for m in re.finditer(r'\d+: ([0-9a-f]{16}) .* (\S+)\n', o)}
if __name__ == '__main__':
    sys.stdout.write(build(stamps=len(sys.argv) > 1))
```

```python
import sys, os, struct
sys.path.insert(0, os.path.dirname(os.path.abspath(__file__)))
from dsl import Asm, Ins

NAME = 'sequential_preLN__ssm_conv_s4d__mixer_s_mlp__prompt'
W1P, W2P, W3P, W4P = 0, 392 * 1024, 784 * 1024, 2352 * 1024
SM, CSP = 0x600000, 0x700000
GX, X1, PX = 0xA00000, 0xC00000, 0x1000000
FL = 0x2000000
F3, F4, F5, F7, F7B = FL, FL + 0x2000, FL + 0x4000, FL + 0x6000, FL + 0x8000
FH, FN, EP, FA, FB = FL + 0x1A000, FL + 0x1E000, FL + 0x20000, FL + 0x30000, FL + 0x40000
FCP = 4352
TS = 0x3000000
WS_BYTES = 0x4000000
L_LN, LNP = 0, 960
L_PK = 119296
L_KG, KGP = 31744, 288
L_Y = 0
L_KT, KTSZ = 68608, 12320
L_KE, KEO, KECH = 93312, 4160, 8320
L_U = 110080
L_SM = 8 * LNP
L_HI, L_GI, L_XI, L_HID, L_ST = 106880, 0, 28672, 106880, 149888
L_STA, L_STB, L_FAST, L_JUNK, L_ST3 = L_ST, L_ST + 768, L_ST + 1152, L_ST + 1280, L_ST + 1536
L_EV = 86016
LDS_BYTES = 153600
LOG2E, INV2PI, EPS, INVD = 0x3fb8aa3b, 0x3e22f983, 0x3727c5ac, 0x3b124925
C1 = -2.0 * 0.7978845608028654 * 1.4426950408889634
def fh(x): return '0x%08x' % struct.unpack('<I', struct.pack('<f', x))[0]
SPIN = 1 << 18
sX, sLA, sAI, sCR, sCI, sDT, sDS = 4, 6, 8, 10, 12, 14, 16
sW1, sW2, sW3, sW4, sOUT, sWS = 20, 22, 24, 26, 28, 30
rWS, rX, rD, rW, rG = 32, 36, 40, 44, 48
sW, sXCD, sI, sP, sTAG, sTB, sQ, sCL, sM, sFAST = range(52, 62)
sPD0, sPD1, sUO, sSM, sFO, sPACT = range(62, 68)
sUS, sKG, sHD, sUM = 74, 75, 76, 77
sLDT, sD0, sD1 = 40, 41, 42
sM0, sM1, sCT, sTX = 78, 80, 82, 83
sA1, sA2, sA3, sA4 = 84, 85, 86, 87
def sr(n, k=4): return f's[{n}:{n+k-1}]'
def vr(n, k=4): return f'v[{n}:{n+k-1}]'
vL16, vL = 1, 2
vW1, vW2, vW3, vW4A, vW4B = 144, 200, 52, 200, 52
vCS3, vAC3, vST3, vRES = 164, 180, 196, 36

class Cfg:
    f_kt = 3
    fa_at, dma_at, poll_at, chk_at, pst_at, fa_sleep = 1, 5, 4, 7, 8, 1
    u_at, uchk_at, pslot = 2, 7, 24
    rsplit = 8
    f_conv = 18
    f_hst = 18
    f_hld = 18
    f_hok = 24
    f_g1 = 35
    f_gel = 0
    x_dp, g2span = 0, 14
    f_gfl = 0
    f_b3a = 0
    f_g2 = 43
    f_xfl = 0
    f_b4a = 45
    two = 0
    tab = 0
    xbar = 0
    fb_at = 0
    x_nof = 99
    prio = 0
    bar_a, x_at = 0, 3
    ggrp, burst, pd, sd = 4, 1, 3, 2
    q = (33, 47, 60, 73, 86)
    st0, st1, lastpk = (79, 80, 89, 94, 100, 108), (86, 87, 96, 0, 95, 103), 1
    w4a, w4b = (17, 44), (45, 68)
    nc_depth, hint_at, fblate = 8, 72, 0
    depth = 4
    touch_at = 1
    warm = 1
    x_pad = None
    pal, pins = 3, (None,) * 5
    gsc = 0
    evb2, searly, evp, evc = 1, 1, 1, 0
    fpd = 8
    hfeed = 1
    dack, fpoll, cs_at, f_gok = (1, 1, 1), 103, 2, 37
    etouch, touch2 = 0, 4
    x_ns = x_nc = 0
    gp, gd, w3e = 17, 4, 16
    hack, hdel, hmask = 1, 0, 0
    upf = 0
    ktm = 0
    kbar = 0
    lst2, lregs = (), (4, 6, 8, 10, 12, 14, 16, 18, 20, 22, 24, 26, 36, 38, 98)
    fm, fc, fg = 4, 0, 0
    lst = 0
    sb_at, clr_at = 1, 0
    cil, chead, cpace, clead, cy0, cyp = 0, 9, 1.0, 5, 42, 4
    rts = 0
    refresh = 0
    tdepth = 1
    cpf = 1
    x_late = 0

def zipl(*streams):
    out = []; n = max(len(x) for x in streams)
    for i in range(n):
        for x in streams:
            if i < len(x): out.append(x[i])
    return out

class K(Asm):
    def __init__(s, stamps, cfg):
        super().__init__(); s.stamps = stamps; s.cfg = cfg; s.ool = []; s.nlab = 0; s.wn = 0
    def lab(s, p): s.nlab += 1; return f'L{p}{s.nlab}'
    def srd(s, r, ptr, size):
        s(f's_mov_b32 s{r}, s{ptr}\ns_mov_b32 s{r+1}, s{ptr+1}\ns_mov_b32 s{r+2}, {size}\ns_mov_b32 s{r+3}, 0x20000')
    def stamp(s, idx, real=False):
        if s.cfg.x_pad and idx == s.cfg.x_pad[0]:
            l = s.lab('pad'); s.wait_lg(0); s.label(l)
            s.raw(f'    s_memrealtime s[98:99]\n    s_waitcnt lgkmcnt(0)\n    s_sub_u32 s98, s98, s100\n    s_cmp_lt_u32 s98, {s.cfg.x_pad[1]*100}\n    s_cbranch_scc1 {l}')
        if idx in s.cfg.lst2:
            r = s.cfg.lregs[list(s.cfg.lst2).index(idx)]
            s.raw(f'    s_memtime s[{r}:{r+1}]')
            if idx == s.cfg.lst2[-1]:
                s.wait_lg(0, force=True)
                for i, k in enumerate(s.cfg.lst2): s(f'v_writelane_b32 v3, s{s.cfg.lregs[i]}, {k}')
            return
        if not s.stamps or (s.stamps is not True and idx not in (31, 61) and (s.stamps == 'span' or idx not in s.stamps)): return
        s(f's_mem{"real" if real else ""}time s[98:99]'); s.wait_lg(0)
        s(f'v_writelane_b32 v3, s98, {idx}')
        rt = {3: 50, 10: 51, 11: 52, 15: 53, 22: 54, 25: 55, 28: 56}
        if s.cfg.rts and idx in rt:
            s('s_memrealtime s[98:99]'); s.wait_lg(0); s(f'v_writelane_b32 v3, s98, {rt[idx]}')
    def dump_stamps(s):
        if not s.stamps: return
        s.stamp(61, True)
        s(f's_lshl_b32 s98, s2, 3\ns_add_u32 s98, s98, s{sW}\ns_lshl_b32 s98, s98, 8\ns_add_u32 s98, s98, {TS}')
        s(f'v_lshlrev_b32 v4, 2, v{vL}\nbuffer_store_dword v3, v4, {sr(rWS)}, s98 offen')
    def cond(s, cmp_skip, body, drain=True, flush=True):
        l = s.lab('c')
        s(cmp_skip)
        if flush: s.flush_hazards()
        s(f's_cbranch_scc1 {l}')
        vm, lg, hist = list(s.vm), list(s.lg), list(s.hist)
        body()
        if drain: s._wait(lg=0)
        if flush: s.flush_hazards()
        else: s.hist = hist
        s.label(l)
        s.vm, s.lg = vm, lg
    def xstore(s, lines):
        slow, back = s.lab('xs'), s.lab('xb')
        s(f's_cmp_eq_u32 s{sFAST}, 0')
        for l in lines:
            ins = Ins(l); t = ins.rd | ins.wr
            hs = [x[0] for x in s.vm if x[1] & t] + [x[0] for x in s.lg if x[1] & t]
            if hs: s.wait(*hs)
        s(f's_cbranch_scc1 {slow}')
        for l in lines: s(l)
        s.label(back)
        s.ool.append(f'{slow}:\n    s_nop 7\n    s_nop 3\n' + ''.join(f'    {l} sc1\n' for l in lines) + f'    s_branch {back}\n')
    def feed1(s):
        n = s.wn; s.wn += 1
        if n >= s.cfg.x_nof: return
        if n < 14: reg, sb, i = vW1 + 4*n, sA1, n
        elif n < 28: reg, sb, i = vW2 + 4*(n-14), sA2, n - 14
        elif n < 56: reg, sb, i = vW3 + 4*(n-28), sA3, n - 28
        elif n < 70: reg, sb, i = vW4A + 4*(n-56), sA4, n - 56
        else: reg, sb, i = vW4B + 4*(n-70), sA4, n - 56
        if i % 4 == 0 and i: s(f's_add_u32 s{sb}, s{sb}, 4096')
        s(f'buffer_load_dwordx4 {vr(reg)}, v{vL16}, {sr(rG)}, s{sb} offen offset:{(i % 4) * 1024}')
    def feed(s, upto, depth=None):
        depth = depth or s.cfg.depth
        while s.wn < upto:
            s.wait_vm(depth - 1); s.feed1()
    def spread(s, upto, slots, first=0):
        n = max(0, upto - s.wn); out = [lambda: None] * slots
        pos = [first + (k * (slots - first)) // n for k in range(n)] if n else []
        for p in set(pos):
            out[p] = (lambda c=pos.count(p): [s.feed1() for _ in range(c)])
        return out
    def pin(s, k):
        if k is None: return
        s.raw(f'    .p2align {s.cfg.pal}')
        for i in range(k): s('s_nop 0')
    def fair(s, n, k):
        if k and n % k == 0: s('s_setprio 1')
        if k and n % k == k - 1: s('s_setprio 0')
    def run(s, l):
        for f in l: f()
    def pl(s, vdst, vaddr, soff): return f'buffer_load_dword v{vdst}, v{vaddr}, {sr(rWS)}, {soff} offen sc1' if vaddr is not None else f'buffer_load_dword v{vdst}, off, {sr(rWS)}, {soff} sc1'
    def poll_issue(s, vdst, vaddr, soff): return s(s.pl(vdst, vaddr, soff))
    def poll_check(s, vdst, vaddr, soff, sleep=0):
        retry, back = s.lab('pr'), s.lab('pb')
        s(f'v_subrev_u32 v{vdst}, s{sTAG}, v{vdst}\nv_cmp_lt_u32 vcc, 15, v{vdst}\ns_mov_b32 s97, 0\ns_cbranch_vccnz {retry}')
        s.label(back)
        s.ool.append(f'''{retry}:
''' + (f'    s_sleep {sleep}\n' if sleep else '') + f'''    {s.pl(vdst, vaddr, soff)}
    s_add_u32 s97, s97, 1
    s_cmp_gt_u32 s97, {SPIN}
    s_waitcnt vmcnt(0)
    s_cbranch_scc1 {back}
    v_subrev_u32 v{vdst}, s{sTAG}, v{vdst}
    v_cmp_lt_u32 vcc, 15, v{vdst}
    s_nop 1
    s_cbranch_vccnz {retry}
    s_branch {back}
''')
    def poll(s, vdst, vaddr, soff, lo=None, hi=None, sleep=0):
        if lo is not None: s(f's_mov_b32 exec_lo, {lo}\ns_mov_b32 exec_hi, {hi}')
        s.poll_issue(vdst, vaddr, soff); s.poll_check(vdst, vaddr, soff, sleep)
        if lo is not None: s('s_mov_b64 exec, -1')
    def flag(s, soff, vtmp=4):
        s(f'v_mov_b32 v{vtmp}, s{sTAG}')
        s.wait_vm(0, force=True)
        s('s_mov_b64 exec, 1')
        s.xstore([f'buffer_store_dword v{vtmp}, off, {sr(rWS)}, s{soff}'])
        s('s_mov_b64 exec, -1')
    def gflag(s, wave, soff, sval, vtmp, drain=False, flush=True):
        s.cond(f's_cmp_lg_u32 s{sW}, {wave}', drain=drain, flush=flush, body=lambda: s(f'v_mov_b32 v{vtmp}, s{sval}\ns_mov_b64 exec, 1\nbuffer_store_dword v{vtmp}, off, {sr(rWS)}, s{soff} sc1\ns_mov_b64 exec, -1'))
    def gflag8(s, wave, soff, sval, vtmp, flush=True):
        s.cond(f's_cmp_lg_u32 s{sW}, {wave}', drain=False, flush=flush, body=lambda: s(f'v_mov_b32 v{vtmp}, s{sval}\nv_mul_u32_u24 v{vtmp+1}, {FCP}, v{vL}\ns_mov_b64 exec, 0xff\nbuffer_store_dword v{vtmp}, v{vtmp+1}, {sr(rWS)}, s{soff} offen sc1\ns_mov_b64 exec, -1'))
    def dma(s, a, b, ssrc, ldsbase):
        h = None
        for i in range(a, b):
            if i % 4 == 0:
                if i: s(f's_add_u32 s{ssrc}, s{ssrc}, 4096')
                s(f's_mov_b32 m0, {ldsbase + i * 1024}')
            h = s(f'buffer_load_dwordx4 v{vL16}, {sr(rWS)}, s{ssrc} offen offset:{(i % 4) * 1024} sc1 lds')
        return h
    def fetch_issue(s, blocks):
        t = ''.join(f's_add_u32 m0, s{a}, {b}\ns_add_u32 s68, s{c_}, {d}\nbuffer_load_dwordx4 v{vL16}, {sr(rWS)}, s68 offen sc1 lds\n' for a, b, c_, d in blocks)
        return s(t), t
    def fetch_check(s, h, t, va, off, n, T, m0=None):
        rd = [f'ds_read_b32 v{T+j}, v{va} offset:{off + 7168*j}' for j in range(n)]
        ck = [f'v_and_b32 v{T}, v{T}, v{T+1}', f'v_and_b32 v{T+2}, v{T+2}, v{T+3}', f'v_and_b32 v{T}, 1, v{T}', f'v_and_b32 v{T}, v{T}, v{T+2}', f'v_cmp_eq_u32 vcc, 0, v{T}']
        retry, back = s.lab('fr'), s.lab('fb')
        def part1(): s.wait(h); [s(l) for l in rd]
        def part2():
            for l in ck: s(l)
            s(f's_mov_b32 s97, 0\ns_cbranch_vccnz {retry}'); s.label(back)
            s.ool.append(f'{retry}:\n' + ''.join(f'    {l}\n' for l in t.strip().split('\n')) + (f'    {m0}\n' if m0 else '') + f'    s_add_u32 s97, s97, 1\n    s_cmp_gt_u32 s97, {SPIN}\n    s_waitcnt vmcnt(0)\n    s_cbranch_scc1 {back}\n'
                         + ''.join(f'    {l}\n' for l in rd) + '    s_waitcnt lgkmcnt(0)\n' + ''.join(f'    {l}\n' for l in ck) + f'    s_nop 1\n    s_cbranch_vccnz {retry}\n    s_branch {back}\n')
        return part1, part2
    def pos(s, d, src, t):
        s(f'''v_and_b32 v{t}, 3, v{src}
        v_lshlrev_b32 v{t}, 2, v{t}
        v_and_or_b32 v{t}, v{src}, -16, v{t}
        v_bfe_u32 v{d}, v{src}, 2, 2
        v_or_b32 v{d}, v{d}, v{t}
        v_lshlrev_b32 v{d}, 4, v{d}''')

    def W(s, dst, k, base=None, op='add_u32'):
        src = f'v{76 + k//2}'; sel = f'WORD_{k&1}'
        if base is None: s(f'v_mov_b32_sdwa v{dst}, {src} dst_sel:DWORD dst_unused:UNUSED_PAD src0_sel:{sel}')
        else: s(f'v_{op}_sdwa v{dst}, {base}, {src} dst_sel:DWORD dst_unused:UNUSED_PAD src0_sel:DWORD src1_sel:{sel}')
    def entry(s):
        s('s_cmp_ge_u32 s2, 256\ns_cbranch_scc1 Lend')
        if s.cfg.x_pad: s('s_memrealtime s[100:101]'); s.wait_lg(0)
        if s.stamps: s('s_memtime s[100:101]\ns_memrealtime s[96:97]\nv_mov_b32 v3, 0'); s.wait_lg(0)
        s(f"""s_load_dwordx16 s[4:19], s[0:1], 0
        s_load_dwordx8 s[20:27], s[0:1], 64
        s_load_dwordx2 s[28:29], s[0:1], 96
        s_load_dwordx2 s[30:31], s[0:1], 112""")
        s('s_getpc_b64 s[94:95]')
        s.label('Lpc')
        s(f"""s_lshr_b32 s{sI}, s2, 3
        v_lshrrev_b32 v4, 6, v0
        v_and_b32 v{vL}, 63, v0""")
        s.cpf(0)
        s(f"""v_readfirstlane_b32 s{sW}, v4
        v_lshlrev_b32 v{vL16}, 4, v{vL}
        s_add_u32 s94, s94, @TAB_OFF@
        s_addc_u32 s95, s95, 0
        s_lshl_b32 s69, s2, 6
        s_add_u32 s69, s69, {2048 + 4224}
        v_lshl_add_u32 v5, v4, 3, s69
        global_load_dwordx2 v[84:85], v5, s[94:95]
        global_load_dwordx4 v[80:83], v{vL16}, s[94:95] offset:1024
        global_load_dwordx4 v[76:79], v{vL16}, s[94:95]
        s_lshl3_add_u32 s68, s2, s{sW}
        v_and_b32 v6, 255, v0
        v_lshlrev_b32 v18, 4, v6
        global_load_dwordx4 v[66:69], v18, s[94:95] offset:2048
        global_load_ushort v70, v18, s[94:95] offset:2064
        s_and_b32 s{sXCD}, s2, 7
        s_mul_i32 s{sP}, s{sXCD}, 28
        s_add_u32 s{sP}, s{sP}, s{sI}
        s_min_u32 s{sP}, s{sP}, 223
        s_lshl_b32 s70, s{sP}, 10
        v_lshl_add_u32 v64, v0, 1, s70
        s_mul_i32 s73, s68, 896
        s_mov_b32 s{rX+2}, 896
        s_mov_b32 s{rX+3}, 0x20000
        s_mov_b32 s{rW+3}, 0x20000
        s_mov_b32 s{rWS+2}, {WS_BYTES}
        s_mov_b32 s{rWS+3}, 0x20000
        s_lshl_b32 s93, s{sW}, 11
        s_add_u32 s93, s93, {L_PK}
        s_lshl_b32 s71, s{sP}, 2
        s_mov_b32 s72, {EP}
        s_add_u32 s{rX}, s{sX}, s73
        s_addc_u32 s{rX+1}, s{sX+1}, 0
        buffer_load_dwordx4 v[28:31], v{vL16}, {sr(rX)}, 0 offen""")
        if s.stamps: s('v_writelane_b32 v3, s100, 0\nv_writelane_b32 v3, s96, 60')
        s.stamp(1)
        s(f"""s_load_dword s{sTAG}, {sr(sWS,2)}, s72
        s_load_dword s{sLDT}, {sr(sDT,2)}, s71
        s_load_dword s{sD1}, {sr(sDS,2)}, s71
        global_load_ushort v60, v64, {sr(sLA,2)}
        global_load_ushort v61, v64, {sr(sAI,2)}
        global_load_ushort v62, v64, {sr(sCR,2)}
        global_load_ushort v63, v64, {sr(sCI,2)}
        v_readfirstlane_b32 s90, v84
        v_readfirstlane_b32 s91, v85
        s_lshr_b32 s43, s90, 24
        s_and_b32 s90, s90, 0xffffff
        s_bitcmp1_b32 s43, 0
        s_cselect_b64 s[20:21], s[22:23], s[20:21]
        s_cselect_b64 s[24:25], s[26:27], s[24:25]
        s_cmp_eq_u32 s43, 2
        s_cselect_b64 vcc, -1, 0
        s_movk_i32 s89, 896
        s_cmovk_i32 s89, 3584
        s_cmp_lt_u32 s43, 2
        s_cselect_b64 {sr(rW,2)}, s[20:21], s[24:25]
        s_cselect_b32 s{rW+2}, {448*896}, 0
        s_cselect_b64 s[72:73], -1, 0
        s_lshl4_add_u32 s89, s89, s90
        s_mov_b32 s{rWS}, s{sWS}
        s_mov_b32 s{rWS+1}, s{sWS+1}
        v_cndmask_b32_sdwa v23, v81, v82, vcc dst_sel:DWORD dst_unused:UNUSED_PAD src0_sel:WORD_1 src1_sel:WORD_0""")
        if s.cfg.dma_at >= 0: s.pack_dma()

    def cpf(s, once):
        l = s.lab('cp')
        s(f'v_lshl_add_u32 v7, v0, 8, s2' if once else f'v_lshl_add_u32 v7, v0, 5, s{sI}')
        s(f"""v_lshlrev_b32 v7, 7, v7
        v_cmp_gt_u32 vcc, @CODE_BYTES@, v7
        s_and_saveexec_b64 s[70:71], vcc
        s_cbranch_execz {l}""")
        s.raw('    global_load_dword v255, v7, s[94:95]')
        s.label(l)
        s('s_mov_b64 exec, -1')
    def clear(s):
        for i in range(4): s(f'v_mov_b32 v{72+i}, -1')
        s.hstore(72)
    def hstore(s, r): return s(f'buffer_store_dwordx4 {vr(r)}, v12, {sr(rWS)}, s{sHD} offen sc1')

    def setup(s):
        s.comment('offsets and lane addresses (in the shadow of the first loads)')
        assert L_U % 512 == 0
        s(f"""s_mov_b64 vcc, s[72:73]
        s_lshr_b32 s{sPD1}, s91, 16
        s_lshl_b32 s{sPD1}, s{sPD1}, 10
        v_cndmask_b32_sdwa v24, v81, v80, vcc dst_sel:DWORD dst_unused:UNUSED_PAD src0_sel:WORD_0 src1_sel:WORD_1
        s_and_b32 s{sPD0}, s91, 0xffff
        s_lshl_b32 s{sPD0}, s{sPD0}, 10
        v_mul_u32_u24 v71, 1171, v0
        s_lshl_b32 s70, s{sW}, 7
        v_add_u32 v24, s93, v24""")
        s.W(27, 13, 's70')
        s(f"""s_mul_i32 s70, s{sW}, {LNP}
        v_lshrrev_b32 v71, 16, v71
        v_add_u32 v26, s70, v{vL16}
        s_mul_i32 s70, s2, 896
        s_lshl_b32 s71, s{sW}, 10
        v_mul_u32_u24 v71, {229376 - 896}, v71
        s_add_u32 s70, s70, s71
        s_add_u32 s{sUO}, s70, {GX}
        v_add_u32 v71, v71, v{vL16}""")
        s.W(12, 5, 4, 'lshlrev_b32')
    def setup_b(s):
        s(f"""s_lshl_b32 s71, s{sW}, 10
        s_lshl4_add_u32 s{sFO}, s2, {FA}
        s_add_u32 s{sUM}, s71, {L_U + 1024}
        v_add_u32 v13, s71, v{vL16}
        s_lshl_b32 s70, s{sW}, 13
        v_add_u32 v14, s70, v{vL16}
        s_lshl_b32 s70, s{sW}, 9
        s_mul_i32 s72, s{sXCD}, {FCP}
        s_add_u32 s70, s70, s72
        s_add_u32 s70, s70, {FA}
        v_and_b32 v17, 0x1f0, v{vL16}
        v_add_u32 v17, s70, v17
        s_mul_i32 s{sKG}, s{sW}, {16*KGP}
        s_add_u32 s{sKG}, s{sKG}, {L_KG}""")
        s.W(20, 8, f's{sKG}'); s.W(10, 3); s.W(11, 4); s.W(15, 6, f's{sUM}')
        s(f"""s_and_b32 s70, s{sW}, 3
        s_lshr_b32 s71, s{sW}, 2
        s_mul_i32 s73, s71, {KECH}
        s_add_u32 s73, s73, {L_KE}
        v_add_u32 v18, s73, v18
        s_lshl_b32 s72, s70, 7
        s_sub_u32 s72, s73, s72
        s_add_u32 s72, s72, {4*(1015 - 144) - 28}""")
        s.W(4, 0, 's72')
        s(f"""s_lshl_b32 s72, s70, 8
        s_sub_u32 s72, {L_U}, s72
        v_xor_b32 v16, 16, v15""")
        s.W(8, 1, 's72'); s.W(9, 2, 's72')
        s(f"""s_xor_b32 s72, s70, s71
        s_and_b32 s72, s72, 1
        s_lshl_b32 s72, s72, 4
        v_subrev_u32 v5, 1024, v4
        v_subrev_u32 v6, 2048, v4
        v_subrev_u32 v7, 3072, v4
        v_xor_b32 v8, s72, v8
        v_xor_b32 v9, s72, v9
        s_lshl_b32 s72, s70, 2
        s_mul_i32 s70, s71, {KTSZ}
        s_add_u32 s70, s70, {L_KT}
        s_mov_b32 s73, {L_KE + 4096}""")
        s.W(19, 7, 's72', 'xor_b32'); s.W(88, 14, 's73')
        s(f"""v_mov_b32 v84, 0
        v_mov_b32 v85, 0
        v_mov_b32 v86, 0
        v_mov_b32 v87, 0
        v_add_u32 v19, s70, v19
        v_add_u32 v89, {L_U}, v{vL16}
        v_mov_b32 v90, s70
        ds_write_b128 v88, v[84:87]
        ds_write_b128 v89, v[84:87]
        ds_write_b128 v90, v[84:87] offset:{768*16}""")
        for t in range(9):
            s(f'v_add_u32_sdwa v{132+t}, s70, v{66+t//2} dst_sel:DWORD dst_unused:UNUSED_PAD src0_sel:DWORD src1_sel:WORD_{t&1}')
    def scalars(s):
        return f"""s_mov_b32 s{rG}, s{sWS}
        s_mov_b32 s{rG+1}, s{sWS+1}
        s_cmp_eq_u32 s{sW}, 7
        s_cselect_b32 s{rG+2}, 0, {WS_BYTES}
        s_mov_b32 s{rG+3}, 0x20000
        s_mul_i32 s{sHD}, s{sW}, 229376
        s_lshl_b32 s68, s{sP}, 7
        s_add_u32 s{sHD}, s{sHD}, s68
        s_add_u32 s{sHD}, s{sHD}, {X1}
        s_lshr_b32 s68, s{sI}, 2
        s_lshl3_add_u32 s{sTB}, s{sXCD}, s68
        s_and_b32 s{sQ}, s{sI}, 3
        s_lshr_b32 s{sCL}, s{sTB}, 1
        s_and_b32 s{sM}, s{sI}, 7
        s_mul_i32 s{sCT}, s{sQ}, 7
        s_add_u32 s{sCT}, s{sCT}, s{sW}
        s_mul_i32 s{sA1}, s{sCT}, {14*1024}
        s_add_u32 s{sA2}, s{sA1}, {W2P}
        s_mul_i32 s{sA3}, s{sM}, 7
        s_add_u32 s{sA3}, s{sA3}, s{sW}
        s_mul_i32 s{sA4}, s{sA3}, {28*1024}
        s_add_u32 s{sA3}, s{sA4}, {W3P}
        s_add_u32 s{sA4}, s{sA4}, {W4P}
        s_lshl3_add_u32 s{sUS}, s{sXCD}, s{sW}
        s_mul_i32 s{sUS}, s{sUS}, 28672
        s_lshl_b32 s68, s{sI}, 5
        s_add_u32 s{sUS}, s{sUS}, s68
        s_add_u32 s{sUS}, s{sUS}, {GX}
        s_lshl_b32 s{sSM}, s{sW}, 11
        s_add_u32 s{sSM}, s{sSM}, {SM}
        s_mov_b32 s{sFAST}, 0
        s_and_b32 s68, s43, 6
        s_cmp_eq_u32 s68, 2
        s_cselect_b32 s{rW+2}, {448*3584}, 0
        s_cselect_b32 s{sPACT}, {WS_BYTES}, 0"""
    def h2_addr(s):
        return f"""v_lshrrev_b32 v19, 3, v0
        v_and_b32 v20, 7, v0
        v_lshlrev_b32 v21, 9, v19
        v_lshl_add_u32 v21, v20, 4, v21
        s_andn2_b32 s70, 1, s{sQ}
        v_add_u32 v20, s70, v20
        v_mul_u32_u24 v22, 768, v19
        v_lshrrev_b32 v18, 2, v20
        v_lshl_add_u32 v22, v18, 8, v22
        v_and_b32 v18, 3, v20
        v_lshl_add_u32 v22, v18, 4, v22
        v_add_u32 v22, {L_HI}, v22
        s_mul_i32 s88, s{sTB}, 28672
        s_add_u32 s88, s88, {X1}
        v_add_u32 v26, {FB - FA}, v17"""

    def pack_early(s):
        s.wait(s.h_pack)
        s(f"""ds_read_b64_tr_b16 v[52:53], v24
        ds_read_b64_tr_b16 v[54:55], v24 offset:256
        ds_read_b64_tr_b16 v[56:57], v24 offset:32
        ds_read_b64_tr_b16 v[58:59], v24 offset:288
        buffer_store_dwordx4 v[52:55], v{vL16}, {sr(rWS)}, s{sPD0} offen sc1
        buffer_store_dwordx4 v[56:59], v{vL16}, {sr(rWS)}, s{sPD1} offen sc1""")

    def ln(s):
        s.comment('layernorm of one token per wave')
        s('v_mov_b32 v51, 0x3f803f80\nv_dot2_f32_bf16 v48, v28, v51, 0')
        s.stamp(2)
        s('v_dot2_f32_bf16 v49, v28, v28, 0')
        for i in (29, 30, 31): s(f'v_dot2_f32_bf16 v48, v{i}, v51, v48\nv_dot2_f32_bf16 v49, v{i}, v{i}, v49')
        un = []
        for i in range(4): un += [f'v_lshlrev_b32 v{32+2*i}, 16, v{28+i}', f'v_and_b32 v{33+2*i}, 0xffff0000, v{28+i}']
        s(un.pop()); s(un.pop()); s(f'v_mov_b32 v50, {INVD}')
        for m in ('row_shr:1', 'row_shr:2', 'row_shr:4', 'row_shr:8', 'row_bcast:15 row_mask:0xa', 'row_bcast:31 row_mask:0xc'):
            s(f'v_add_f32_dpp v48, v48, v48 {m}\nv_add_f32_dpp v49, v49, v49 {m}')
            s(un.pop())
        s(f"""v_readlane_b32 s70, v48, 63
        v_readlane_b32 s71, v49, 63
        s_lshl_b32 s72, s{sW}, 3
        v_mov_b32 v65, s72
        v_mul_f32 v49, s70, v50
        v_mul_f32 v48, s71, v50
        v_fma_f32 v48, -v49, v49, v48
        v_max_f32 v48, 0, v48
        v_add_f32 v48, {EPS}, v48
        v_rsq_f32 v51, v48
        s_mov_b32 exec_hi, 0x00ffffff
        v_mul_f32 v50, -v49, v51""")
        for i in range(4): s(f'v_pk_fma_f32 {vr(40+2*i,2)}, v[50:51], {vr(32+2*i,2)}, v[50:51] op_sel:[1,0,0] op_sel_hi:[1,1,0]')
        s('s_mov_b32 s70, 0x0d800000')
        for i in range(4): s(f'v_pk_mul_f32 {vr(40+2*i,2)}, {vr(40+2*i,2)}, s[70:71] op_sel_hi:[1,0]')
        for i in range(4): s(f'v_cvt_pk_bf16_f32 v{28+i}, v{40+2*i}, v{41+2*i}')
        s(f"""ds_write_b128 v26, v[28:31] offset:{L_LN}
        v_mul_f32 v48, v48, v51
        s_mov_b64 exec, 1
        ds_write_b64 v65, v[48:49] offset:{L_SM}
        s_mov_b64 exec, -1""")
        s.barrier()
        s(f"""ds_read_b64_tr_b16 v[48:49], v27 offset:{L_LN}
        ds_read_b64_tr_b16 v[50:51], v27 offset:{L_LN + 4*LNP}
        s_lshr_b32 s{sTAG}, s{sTAG}, 4
        s_mul_i32 s{sTAG}, s{sTAG}, 1664525
        s_add_u32 s{sTAG}, s{sTAG}, 1013904223
        s_lshl_b32 s{sTAG}, s{sTAG}, 4
        s_and_b32 s78, s{sTAG}, 0x70000000
        s_or_b32 s78, s78, 0x6000
        s_lshl_b32 s79, s{sTAG}, 3
        s_and_b32 s79, s79, 0x70000000
        s_or_b32 s79, s79, 0x1000
        s_lshl_b32 s80, s{sTAG}, 8
        s_and_b32 s80, s80, 0x70007000
        s_lshl_b32 s81, s{sTAG}, 5
        s_and_b32 s81, s81, 0x70007000
        v_mov_b32 v46, 0x8fff8ffe
        v_mov_b32 v47, 0x8fff8fff
        v_and_or_b32 v48, v48, v46, s78
        v_and_or_b32 v49, v49, v47, s79
        v_and_or_b32 v50, v50, v47, s80
        v_and_or_b32 v51, v51, v47, s81""")
        s.cond(f's_cmp_lg_u32 s{sW}, 7', lambda: s(f's_mov_b64 exec, 15\nds_read_b128 v[48:51], v{vL16} offset:{L_SM}\nv_mov_b32 v71, v{vL16}\ns_lshl_b32 s{sUO}, s2, 6\ns_add_u32 s{sUO}, s{sUO}, {SM}'), flush=False)
        s(f'buffer_store_dwordx4 v[48:51], v71, {sr(rWS)}, s{sUO} offen sc1\ns_mov_b64 exec, -1')
        s.stamp(3)
        s(f's_getreg_b32 s70, hwreg(HW_REG_XCC_ID, 0, 4)\ns_add_u32 s{sTX}, s70, s{sTAG}')
        s.wait(*[h for h, r in s.vm if r])
        s.stamp(40)
        s.cond(f's_cmp_ge_u32 s43, 2', s.pack_early)

    def pack_dma(s):
        s(f's_mov_b32 m0, s93\nbuffer_load_dwordx4 v23, {sr(rW)}, s90 offen lds\ns_add_u32 m0, s93, 1024')
        s.h_pack = s(f'buffer_load_dwordx4 v23, {sr(rW)}, s89 offen lds')
    def publish_a(s, conv=True):
        s.wait_vm(0, force=True)
        s('s_barrier')
        s.stamp(5)
        s.gflag8(0, sFO, sTX, 118)
        s(f's_lshl4_add_u32 s{sFO}, s2, {FB}')
        if s.cfg.dma_at == 1 or not conv: s.pack_dma(); s(f's_mov_b32 m0, s{sKG}')
    def pack_late_store(s):
        P = 240
        s.wait(s.h_pack)
        for e in range(4): s(f'ds_read_b64_tr_b16 {vr(P+2*e,2)}, v24 offset:{1024*(e>>1) + 256*(e&1)}')
        def colsum():
            s(f's_mov_b32 vcc_lo, 0xf0f00f0f\ns_mov_b32 vcc_hi, 0xf0f00f0f\nv_mov_b32 v{P+12}, 0x3f803f80')
            for i in range(4): s(f'v_cndmask_b32 v{P+8+i}, 0, v{P+12}, vcc')
            s(f'''s_lshr_b32 s72, s{sPD0}, 4
            s_add_u32 s72, s72, {CSP - W3P // 16}
            v_mfma_f32_16x16x32_bf16 {vr(P+12)}, {vr(P+8)}, {vr(P)}, 0
            v_mfma_f32_16x16x32_bf16 {vr(P+12)}, {vr(P+8)}, {vr(P+4)}, {vr(P+12)}
            v_lshlrev_b32 v{P+8}, 2, v{vL}
            s_mov_b32 exec_hi, 0
            buffer_store_dword v{P+12}, v{P+8}, {sr(rWS)}, s72 offen sc1
            s_mov_b32 exec_hi, -1''')
        s.cond('s_cmp_lg_u32 s43, 2', colsum, drain=False)
        s(f"""s_mov_b32 s{rW}, s{sWS}
        s_mov_b32 s{rW+1}, s{sWS+1}
        s_mov_b32 s{rW+2}, s{sPACT}
        buffer_store_dwordx4 {vr(P)}, v{vL16}, {sr(rW)}, s{sPD0} offen sc1""")
        s.h_pst = s(f'buffer_store_dwordx4 {vr(P+4)}, v{vL16}, {sr(rW)}, s{sPD1} offen sc1')

    def cm(s, d, a, b, t):
        return [f'v_pk_mul_f32 {vr(t,2)}, {vr(a,2)}, {vr(b,2)} op_sel_hi:[1,0]',
                f'v_pk_fma_f32 {vr(d,2)}, {vr(a,2)}, {vr(b,2)}, {vr(t,2)} op_sel:[1,1,0] op_sel_hi:[0,1,1] neg_lo:[1,0,0]']
    def kgen(s):
        c = s.cfg
        s.pin(c.pins[0])
        assert c.fa_at <= c.poll_at <= c.chk_at
        Z = lambda k: 74 + 2 * k
        Z128, ZD, R0, R1, TT = 92, 94, 112, 114, 116
        CH = [(96, 98, 100, 102), (104, 106, 108, 110)]
        BF, AF, ACC = 156, (172, 188, 204), 220
        s(f"""s_lshl_b32 s70, s{sLDT}, 16
        s_and_b32 s71, s{sLDT}, 0xffff0000
        s_cmp_lt_u32 s{sW}, 4
        s_cselect_b32 s72, s70, s71
        s_mov_b32 s70, {LOG2E}
        s_mov_b32 s71, {INV2PI}
        v_mov_b32 v64, s72
        v_lshlrev_b32 v60, 16, v60
        v_mul_f32 v64, s70, v64
        v_mul_f32 v60, s70, v60
        v_exp_f32 v64, v64
        v_exp_f32 v60, v60
        v_lshlrev_b32 v61, 16, v61
        v_lshlrev_b32 v62, 16, v62
        v_lshlrev_b32 v63, 16, v63
        v_cvt_pk_bf16_f32 v64, v64, v60
        v_and_b32 v60, 0xffff0000, v64
        v_lshlrev_b32 v64, 16, v64
        v_pk_mul_f32 v[60:61], v[60:61], v[64:65] op_sel_hi:[1,0]
        v_add_f32 v64, v64, v64
        v_pk_mul_f32 v[60:61], v[60:61], s[70:71]
        v_pk_mul_f32 {vr(R0,2)}, v[62:63], v[64:65] op_sel_hi:[1,0]
        s_mov_b32 m0, s{sKG}
        s_mov_b32 s70, 0x41000000
        s_mov_b32 s71, 0x43000000
        v_pk_mul_f32 v[62:63], v[60:61], s[70:71] op_sel_hi:[1,0]
        v_pk_mul_f32 v[64:65], s[70:71], v[60:61] op_sel:[1,0]
        s_lshl_b32 s{sD0}, s{sD1}, 16
        s_and_b32 s{sD1}, s{sD1}, 0xffff0000""")
        for r in (62, 64, 60): s(f'v_exp_f32 v{r}, -v{r}\nv_fract_f32 v{r+1}, v{r+1}')
        for r, d in ((62, Z(8)), (64, Z128), (60, Z(1))): s(f'v_cos_f32 v{d}, v{r+1}\nv_sin_f32 v{d+1}, v{r+1}')
        for r, d in ((62, Z(8)), (64, Z128), (60, Z(1))): s(f'v_pk_mul_f32 {vr(d,2)}, {vr(d,2)}, {vr(r,2)} op_sel_hi:[1,0]')
        s.stamp(4)
        def chain(st, rows, start, mul, neg=False):
            a, b, t, pk = CH[st]; out = []; cur, nxt = start, a
            for i, row in enumerate(rows):
                cc = s.cm(nxt, cur, mul, t) if i < len(rows) - 1 else []
                out += cc[:1] + [f'v_cvt_pk_bf16_f32 v{pk + (i&1)}, v{cur}, {"-" if neg else ""}v{cur+1}'] + cc[1:] + [f'ds_write_addtid_b32 v{pk + (i&1)} offset:{row*KGP}']
                cur, nxt = nxt, (b if nxt == a else a)
            return out
        def rd(dst):
            for ks in range(4): s(f'ds_read_b128 {vr(dst+4*ks)}, v20 offset:{64*ks}')
        E = lambda l: [s(x) for x in l]
        zz = zipl if c.two else (lambda *a: sum(a, []))
        uld = f'buffer_load_dwordx4 v[120:123], v10, {sr(rWS)}, s{sUS} offen sc1'
        uck = [f'v_xor_b32 v{120+i}, s{78+i}, v{120+i}' for i in range(4)] + ['v_or3_b32 v119, v120, v121, v122', 'v_or_b32 v119, v119, v123', 'v_and_b32 v119, 0x70007000, v119', 'v_cmp_ne_u32 vcc, 0, v119']
        def hook(k):
            if c.fa_at == k: s.publish_a()
            if c.u_at == k: s(uld)
            if c.poll_at == k: s.poll_issue(118, 17, 0)
            if c.dma_at == k and k > 1:
                s.pack_dma()
                if k < 4: s(f's_mov_b32 m0, s{sKG}')
            if c.uchk_at == k:
                retry, back = s.lab('ur'), s.lab('ub')
                for l in uck: s(l)
                s(f's_mov_b32 s97, 0\ns_cbranch_vccnz {retry}'); s.label(back)
                s.ool.append(f'{retry}:\n    {uld}\n    s_add_u32 s97, s97, 1\n    s_cmp_gt_u32 s97, {SPIN}\n    s_waitcnt vmcnt(0)\n    s_cbranch_scc1 {back}\n'
                             + ''.join(f'    {l}\n' for l in uck) + f'    s_nop 1\n    s_cbranch_vccnz {retry}\n    s_branch {back}\n')
                if s.stamps: s('v_writelane_b32 v3, s97, 44')
                for i in range(4): s(f'v_add_u32 v{120+i}, 0x32003200, v{120+i}')
                s(f'v_add_u32 v119, s{sUM}, v{vL16}\nds_write_b128 v119, v[120:123]')
                s.stamp(8)
            if c.chk_at == k:
                s.poll_check(118, 17, 0, c.fa_sleep)
                if s.stamps: s('v_writelane_b32 v3, s97, 58')
            if c.pst_at == k: s.pack_late_store()
        hook(0)
        if c.two:
            E(zipl(s.cm(ZD, Z(8), Z(8), 100), s.cm(R1, R0, Z(8), 108), s.cm(Z(2), Z(1), Z(1), TT)))
            E(zipl(chain(0, range(0, 16, 2), R0, ZD, True), chain(1, range(1, 16, 2), R1, ZD, True)))
            rd(BF)
            E(zipl(s.cm(ZD, Z128, Z128, 100), s.cm(R1, Z(8), Z128, 108), s.cm(Z(4), Z(2), Z(2), TT)))
            hook(1); s.stamp(35)
            E(zipl(chain(0, range(0, 16, 2), Z(8), ZD), chain(1, range(1, 16, 2), R1, ZD)))
        else:
            rc = chain(0, range(16), R0, Z(8), True)
            E(rc[:4*c.rsplit]); hook(0.5); E(rc[4*c.rsplit:])
            rd(BF)
            E(s.cm(Z(2), Z(1), Z(1), TT) + s.cm(Z(4), Z(2), Z(2), TT))
            hook(1); s.stamp(35)
            E(chain(0, range(16), Z(8), Z128))
        rd(AF[0])
        E(zipl(s.cm(Z(6), Z(4), Z(2), 100), s.cm(Z(3), Z(2), Z(1), 108), s.cm(Z(5), Z(4), Z(1), TT)))
        hook(2); s.stamp(36)
        E(zz(chain(0, range(0, 8), Z(4), Z128), chain(1, range(8, 12), Z(2), Z128) + chain(1, range(12, 16), Z(6), Z128), s.cm(Z(7), Z(6), Z(1), TT)))
        rd(AF[1])
        s.stamp(47); hook(3); s.stamp(37)
        E(zz(chain(0, (0, 1), Z(1), Z128) + chain(0, (4, 5), Z(5), Z128), chain(1, (2, 3), Z(3), Z128) + chain(1, (6, 7), Z(7), Z128)))
        s(f'v_mov_b32 v{TT}, 0x3f80\nds_write_addtid_b32 v{TT} offset:{8*KGP}')
        rd(AF[2])
        s.stamp(6); hook(4)
        if c.kbar: s('s_barrier')
        mf = lambda t, ks: f'v_mfma_f32_16x16x32_bf16 {vr(ACC+4*t)}, {vr(AF[t]+4*ks)}, {vr(BF+4*ks)}, {vr(ACC+4*t) if ks else 0}'
        wr = lambda t, r: f'ds_write_b32 v19, v{ACC+4*t+r} offset:{(16*t+r)*256}'
        if c.ktm:
            E([mf(0, k) for k in range(4)] + [mf(1, k) for k in range(4)] + zipl([mf(2, k) for k in range(4)], [wr(0, r) for r in range(4)]))
            E([wr(t, r) for t in (1, 2) for r in range(4)])
        else:
            E([mf(t, k) for k in range(4) for t in range(2)] + [mf(2, k) for k in range(4)] + [wr(t, r) for t in range(3) for r in range(4)])
        s.stamp(48); hook(5)
        s.barrier()
        s.stamp(7)
        hook(5.5)
        for t in range(9): s(f'ds_read_b128 {vr(28+4*t)}, v{132+t}')
        hook(6)
        if c.chk_at <= 5 and c.pst_at != 7: s.feed(c.f_kt, 63)
        for t in range(9):
            s(f'v_pk_add_f32 {vr(28+4*t,2)}, {vr(28+4*t,2)}, {vr(30+4*t,2)}')
            if t: s(f'v_add_f32 v{24+4*t}, v{24+4*t}, v{25+4*t}')
        s('v_add_f32 v60, v60, v61')
        for i in range(4): s(f'v_cvt_pk_bf16_f32 v{64+i}, v{28+8*i}, v{32+8*i}')
        s('ds_write_b128 v18, v[64:67]')
        for i in range(4): s(f'v_cvt_pk_bf16_f32 v{68+i}, v{32+8*i}, v{36+8*i}')
        s(f'ds_write_b128 v18, v[68:71] offset:{KEO}')
        s.stamp(9); hook(7)
        if c.chk_at <= 5 and c.pst_at == 7: s.feed(c.f_kt, 63)

    def conv(s):
        c = s.cfg
        A, B, ACC = 28, 60, 92
        def rd(kind, slot, e, j):
            if kind == 'B': return [f'ds_read_b128 {vr(B+4*slot)}, v{8+e} offset:{1024*j}']
            off = 16 * (1 - e) + 128 * (1 - (j & 1))
            return [f'ds_read2_b32 {vr(A+4*slot+2*h,2)}, v{4+(j>>1)} offset0:{off+2*h} offset1:{off+2*h+1}' for h in range(2)]
        M = []
        for k in range(8):
            p1 = [(k, j) for j in range(k + 1) if k + j <= 7]; p2 = [(j, k) for j in range(k) if k + j <= 7]
            M += [(0, a, b) for a, b in p1 + p2]
        if c.cil:
            for nu in range(0, 8, 2): M += [(1, a, b) for a, b in zipl([(a, nu + 1 - a) for a in list(range(1, nu + 1)) + [0, nu + 1]], [(a, nu - a) for a in range(nu + 1)])]
        else:
            for nu in range(8): M += [(1, a, nu - a) for a in range(nu + 1)]
        slot = {(0, j): j for j in range(8)}
        for k in range(4, 8): slot[1, 2*(k-4)] = k; slot[1, 2*(k-4) + 1] = 7 - k
        ops = []
        for e in range(2):
            for j in range(8):
                for kind, ix in (('A', 1), ('B', 2)):
                    need = min(n for n, m in enumerate(M) if m[0] == e and m[ix] == j)
                    early = -1 if e == 0 else max(n for n, m in enumerate(M) if m[0] == 0 and m[ix] == slot[1, j])
                    ops += [(need, early, t) for t in rd(kind, slot[e, j], e, j)]
        ops.sort(key=lambda o: o[0])
        D = {n: [] for n in range(-1, 73)}
        pos = -1.0
        for i, (need, early, t) in enumerate(ops):
            if i < c.chead: D[-1].append(t); continue
            pos = max(pos + c.cpace, early)
            pos = max(min(pos, need - c.clead), early)
            D[int(pos)].append(t)
        done = {nu: max(n for n, m in enumerate(M) if m[1] + m[2] == nu) for nu in range(8)}
        at = c.cy0
        for nu in range(8):
            at = max(at, done[nu] + 3)
            D[min(int(at), 72)].append(f'ds_write_b128 v13, {vr(ACC+4*nu)} offset:{L_Y + 8192*nu}')
            at += c.cyp
        s.pin(c.pins[1])
        s.barrier(); s.stamp(10)
        for t in D[-1]: s(t)
        ex = s.spread(c.f_conv, 66, 4)
        bs = ['ds_read_b64 v[140:141], v15', 'ds_read_b64 v[142:143], v16', '', '', '', '']
        for i in range(4): bs += [f'v_lshlrev_b32 v{132+2*i}, 16, v{140+i}', f'v_and_b32 v{133+2*i}, 0xffff0000, v{140+i}']
        for ch in range(2):
            bs += [f'v_add_f32 v{140+r}, s{sD0+ch}, v{124+2*r}' for r in range(4)]
            bs += [f'v_fma_f32 v{132+4*ch+r}, v{132+4*ch+r}, v{140+r}, v{125+2*r}' for r in range(4)]
        ha = s.h2_addr().split('\n')
        seen = set(); assert 3 <= c.hint_at <= 73
        for n, (e, a, b) in enumerate(M):
            nu = a + b
            s.fair(n, c.fc)
            s(f'v_mfma_f32_16x16x32_bf16 {vr(ACC+4*nu)}, {vr(A+4*slot[e, a])}, {vr(B+4*slot[e, b])}, {vr(ACC+4*nu) if nu in seen else 0}')
            seen.add(nu)
            for t in D[n]: s(t)
            if n == 1: s(f'buffer_load_dwordx4 v[124:127], v11, {sr(rWS)}, s{sSM} offen sc1')
            if n == 2: s(f'buffer_load_dwordx4 v[128:131], v11, {sr(rWS)}, s{sSM} offen offset:16 sc1\ns_lshl_b32 s68, s2, 6\ns_add_u32 s68, s68, {FH}')
            if c.pst_at == 8 and n == c.pslot: s.pack_late_store()
            if n == c.hint_at: s.gflag(7, 68, sTAG, 23, False, False)
            if ex: ex.pop(0)()
            if n >= 4 and ha: s(ha.pop(0))
            if n >= 40 and bs: s(bs.pop(0))
        if c.fc: s('s_setprio 0')
        for t in D[72]: s(t)
        assert not bs and not ha
        s.stamp(38)
        s.wait(s.h_pst); assert c.f_conv <= 24
        s.barrier(); s.stamp(11)
        for i in (0, 4, 1, 5, 2, 6, 3, 7): s(f'ds_read_b128 {vr(A+4*i)}, v14 offset:{L_Y + 1024*i}')
        fb = lambda: s.gflag8(6, sFO, sTAG, 23)
        if not c.fblate: fb()
        if c.hint_at == 72: s.gflag(7, 68, sTAG, 17, False)
        for i in (0, 4, 1, 5, 2, 6, 3, 7):
            ch = i >> 2
            for h in range(2): s(f'v_pk_add_f32 {vr(132+4*ch+2*h,2)}, {vr(132+4*ch+2*h,2)}, {vr(A+4*i+2*h,2)}')
        for r in range(4): s(f'v_cvt_pk_bf16_f32 v{140+r}, v{132+r}, v{136+r}')
        s('v_and_b32 v140, -2, v140')
        h = s.hstore(140)
        s.stamp(12)
        if c.fblate: fb()
        if c.hint_at == 73: s.gflag(7, 68, sTAG, 17, False)
        s.feed(c.f_hst, 63)
        return h

    def nonconv(s):
        c = s.cfg
        s(f'v_lshlrev_b32 v15, 7, v{vL}')
        if c.sb_at == 1: s.setup_b()
        s(f'v_lshlrev_b32 v15, 7, v{vL}')
        s(s.h2_addr())
        if c.dma_at == 0: s.pack_dma()
        s.publish_a(False)
        s.pack_late_store()
        s.poll(18, 17, 0, sleep=8)
        s.barrier(); s.stamp(8)
        s.gflag8(1, sFO, sTAG, 118)
        s(f's_add_u32 s70, s{sA2}, {14*1024 - 8192}')
        s.feed(c.f_hst, c.nc_depth)
        if c.warm: s(f'buffer_load_dword v119, v15, {sr(rG)}, s70 offen')
        s.wait_vm(0); s.stamp(10)
    def hint_wait(s):
        def body():
            s(f's_lshl_b32 s68, s2, 6\ns_add_u32 s68, s68, {FH - 32*64}\nv_mov_b32 v9, 0')
            s.poll(8, 9, 's68', 1, 0, sleep=4)
        s.cond(f's_cmp_lt_u32 s{sI}, 28', body)

    def h2(s, behind, mid=lambda: None, halo=False):
        ld = [f'buffer_load_dwordx4 {vr(8+4*j)}, v4, {sr(rWS)}, s88 offen offset:{128*j} sc1' for j in range(4)]
        chk = ['v_or3_b32 v24, v8, v12, v16', 'v_or_b32 v24, v24, v20', 'v_and_b32 v24, 1, v24', 'v_cmp_eq_u32 vcc, 1, v24']
        if s.cfg.hdel: s(f's_sleep {s.cfg.hdel}')
        for l in ld: s(l)
        s.poll_issue(25, 26, 0)
        mid()
        for l in chk: s(l)
        retry, back = s.lab('hr'), s.lab('hb')
        s(f's_mov_b32 s97, 0\ns_cbranch_vccnz {retry}')
        s.label(back)
        s.ool.append(f'{retry}:\n' + ('    s_mov_b64 exec, vcc\n' if s.cfg.hmask else '') + ''.join(f'    {l}\n' for l in ld) + f'    buffer_load_dword v25, v26, {sr(rWS)}, 0 offen sc1\n    s_add_u32 s97, s97, 1\n    s_cmp_gt_u32 s97, {SPIN}\n    s_waitcnt vmcnt(0)\n    s_cbranch_scc1 {back}\n'
                     + ''.join(f'    {l}\n' for l in chk) + f'    s_nop 1\n    s_cbranch_vccnz {retry}\n    s_branch {back}\n')
        if s.cfg.hmask: s('s_mov_b64 exec, -1')
        if s.stamps: s('v_writelane_b32 v3, s97, 59')
        s.stamp(14)
        if not s.cfg.hfeed: behind()
        if halo:
            s(f's_bitcmp1_b32 s{sQ}, 0\ns_cselect_b64 vcc, -1, 0')
            for i in range(2):
                for j in range(4): s(f'v_cndmask_b32 v{28+4*i+j}, v{10+4*j+i}, v{8+4*j+i}, vcc')
                s(f'ds_write_b128 v5, {vr(28+4*i)} offset:{64*i}')
        else:
            for j in range(4):
                for i in range(j): s(f'v_swap_b32 v{8+4*j+i}, v{8+4*i+j}')
            for i in range(4): s(f'ds_write_b128 v5, {vr(8+4*i)} offset:{64*i}')
        s.stamp(32)
        s.poll_check(25, 26, 0, 2)
        if s.cfg.hfeed: behind()
        if s.stamps: s('v_writelane_b32 v3, s97, 57')

    def stats_tail(s, a, extra, vadr, tab):
        s('s_mov_b64 exec, -1')
        for t in range(3): s(f'v_cndmask_b32 v{a+4*t}, v{a+4*t}, v{a+4*t+1}, s[92:93]')
        for t in range(3): s(f'v_cndmask_b32 v{a+4*t}, v{a+4*t}, v{a+4*t+2}, s[94:95]')
        for t in (1, 2):
            s(f'v_mov_b32_dpp v{a+4*t+1}, v{a+4*t+3} row_ror:{4*t}\nv_mov_b32_dpp v{a+4*t+2}, v{a+4*t} row_ror:{4*t}')
        for t in (1, 2):
            s(f'v_cndmask_b32 v{a+3}, v{a+3}, v{a+4*t+1}, {sr(76+2*t,2)}\nv_cndmask_b32 v{a}, v{a}, v{a+4*t+2}, {sr(76+2*t,2)}')
        s(f'''s_mov_b32 exec_lo, 0x77700777
        s_mov_b32 exec_hi, 0x70777707
        v_mul_f32 v{a+3}, s96, v{a+3}
        v_mul_f32 v{a}, s96, v{a}
        v_fma_f32 v{a}, -v{a+3}, v{a+3}, v{a}
        v_max_f32 v{a}, 0, v{a}''')
        if extra:
            s(f'''v_fmaak_f32 v{a+2}, v{a}, v49, {fh(1e-10)}
            v_add_f32 v51, {EPS}, v{a}
            v_rsq_f32 v{a+1}, v{a+2}
            v_rsq_f32 v51, v51
            v_mul_f32 v{a}, {fh(C1)}, v{a+1}
            v_mul_f32 v{a+4}, {fh(0.044715)}, v{a+1}
            v_mul_f32 v{a+2}, v{a+2}, v{a+1}
            v_mul_f32 v{a+1}, v{a+1}, v{a}
            v_mul_f32 v50, -v{a+3}, v51
            v_mul_f32 v{a+1}, v{a+1}, v{a+4}
            ds_write_b64 v{extra}, v[50:51] offset:{tab // 2}
            ds_write_b128 v{vadr}, {vr(a)} offset:{tab}''')
        else:
            s(f'''v_add_f32 v50, {EPS}, v{a}
            v_rsq_f32 v{a+1}, v50
            v_cvt_pk_bf16_f32 v{a}, -v{a+3}, -v{a+3}
            v_mul_f32 v{a+2}, {fh(C1)}, v{a+1}
            v_mul_f32 v{a+4}, {fh(0.044715)}, v{a+1}
            v_and_b32 v51, 0xffff0000, v{a}
            v_add_f32 v51, v51, v{a+3}
            v_mul_f32 v{a+3}, v50, v{a+1}
            v_mul_f32 v{a+1}, v{a+1}, v{a+2}
            v_and_b32 v{a+2}, 0xffffff7f, v{a+2}
            v_mul_f32 v{a+1}, v{a+1}, v{a+4}
            v_and_b32 v{a+3}, 0xffffff7f, v{a+3}
            v_and_b32 v{a+1}, 0xffffff7f, v{a+1}
            ds_write_b128 v{vadr}, {vr(a)} offset:{tab}
            v_cvt_pk_bf16_f32 v{a}, -v51, -v51
            ds_write_b128 v{vadr}, {vr(a)} offset:{tab + 512}''')
    def gelu_pk(s, acc, cs, st, n, t, out):
        P = range(0, n, 2); o = []
        if s.cfg.gsc:
            R = range(n)
            o += [f'v_fma_f32 v{acc+i}, -v{cs+i}, v{st+3}, v{acc+i}' for i in R]
            if s.cfg.gsc == 2: return o + s.gelu_pk2(acc, cs, st, n, t, out)[n//2:]
            o += [f'v_mul_f32 v{t+i}, v{acc+i}, v{acc+i}' for i in R] + [f'v_fma_f32 v{t+i}, v{t+i}, v{st+1}, v{st}' for i in R]
            o += [f'v_mul_f32 v{t+i}, v{t+i}, v{acc+i}' for i in R] + [f'v_exp_f32 v{t+i}, v{t+i}' for i in R]
            o += [f'v_fma_f32 v{t+i}, v{t+i}, v{st+2}, v{st+2}' for i in R] + [f'v_rcp_f32 v{t+i}, v{t+i}' for i in R]
            o += [f'v_mul_f32 v{t+i}, v{t+i}, v{acc+i}' for i in R] + [f'v_cvt_pk_bf16_f32 v{out+i//2}, v{t+i}, v{t+i+1}' for i in P]
            return o
        return s.gelu_pk2(acc, cs, st, n, t, out)
    def gelu_pk2(s, acc, cs, st, n, t, out):
        P = range(0, n, 2); o = []
        o += [f'v_pk_fma_f32 {vr(acc+i,2)}, {vr(st+2,2)}, {vr(cs+i,2)}, {vr(acc+i,2)} op_sel:[1,0,0] op_sel_hi:[1,1,1] neg_lo:[1,0,0] neg_hi:[1,0,0]' for i in P]
        o += [f'v_pk_mul_f32 {vr(t+i,2)}, {vr(acc+i,2)}, {vr(acc+i,2)}' for i in P]
        o += [f'v_pk_fma_f32 {vr(t+i,2)}, {vr(st,2)}, {vr(t+i,2)}, {vr(st,2)} op_sel:[1,0,0] op_sel_hi:[1,1,0]' for i in P]
        o += [f'v_pk_mul_f32 {vr(t+i,2)}, {vr(t+i,2)}, {vr(acc+i,2)}' for i in P]
        o += [f'v_exp_f32 v{t+i}, v{t+i}' for i in range(n)]
        o += [f'v_pk_fma_f32 {vr(t+i,2)}, {vr(t+i,2)}, {vr(st+2,2)}, {vr(st+2,2)} op_sel_hi:[1,0,0]' for i in P]
        o += [f'v_rcp_f32 v{t+i}, v{t+i}' for i in range(n)]
        o += [f'v_pk_mul_f32 {vr(t+i,2)}, {vr(t+i,2)}, {vr(acc+i,2)}' for i in P]
        o += [f'v_cvt_pk_bf16_f32 v{out+i//2}, v{t+i}, v{t+i+1}' for i in P]
        return o
    def gelu_sc(s, acc, cs, st, n, t, out, ex):
        steps = [lambda i: f'v_fma_f32 v{acc+i}, -v{cs+i}, v{st+3}, v{acc+i}', lambda i: f'v_mul_f32 v{t+i}, v{acc+i}, v{acc+i}',
                 lambda i: f'v_fma_f32 v{t+i}, v{t+i}, v{st+1}, v{st}', lambda i: f'v_mul_f32 v{t+i}, v{t+i}, v{acc+i}',
                 lambda i: f'v_exp_f32 v{t+i}, v{t+i}', lambda i: f'v_fma_f32 v{t+i}, v{t+i}, v{st+2}, v{st+2}',
                 lambda i: f'v_rcp_f32 v{t+i}, v{t+i}', lambda i: f'v_mul_f32 v{t+i}, v{t+i}, v{acc+i}',
                 lambda i: f'v_cvt_pk_bf16_f32 v{out+i//2}, v{t+i}, v{t+i+1}' if i % 2 == 0 else '']
        for f in steps:
            ex.pop(0)()
            for i in range(n): s(f(i))
    def gemm16(s, W, acc, vaddr, kstride, first_zero, ex):
        seq = [(ks, t) for ks in range(14) for t in range(2)]
        def rd(i): ks, t = seq[i]; s(f'ds_read_b128 {vr(8+4*(i%4))}, v{vaddr} offset:{ks*kstride + 256*t}')
        for i in range(3): rd(i)
        for i, (ks, t) in enumerate(seq):
            if i + 3 < 28: rd(i + 3)
            c = 0 if (first_zero and ks == 0) else vr(acc + 4*t)
            s.fair(i, s.cfg.fg)
            s(f'v_mfma_f32_16x16x32_bf16 {vr(acc+4*t)}, {vr(W+4*ks)}, {vr(8+4*(i%4))}, {c}')
            if ex: ex.pop(0)()
        if s.cfg.fg: s('s_setprio 0')
    def gemm32(s, jobs, vaddr, extra=None, nb=4, buf=8):
        seq = [(j, i) for j, job in enumerate(jobs) for i in range(job[1])]
        ex = list(extra or [])
        def rd(n): j, i = seq[n]; s(f'ds_read_b128 {vr(buf+4*(n%nb))}, v{vaddr} offset:{jobs[j][3] + 1024*i}')
        if s.cfg.prio: s('s_setprio 1')
        for n in range(nb - 1): rd(n)
        for n, (j, i) in enumerate(seq):
            W, nk, acc, _, after = jobs[j]
            if n + nb - 1 < len(seq): rd(n + nb - 1)
            s(f'v_mfma_f32_32x32x16_bf16 {vr(acc,16)}, {vr(W+4*i)}, {vr(buf+4*(n%nb))}, {vr(acc,16) if i else 0}')
            if ex: ex.pop(0)()
            if i == nk - 1 and after: ex += [lambda: None] * 3 + after
        s('s_setprio 0')
        s.run(ex)
    def g_pre(s):
        s.comment('G wave addresses (v6 GEMM1 B, v7 residual h, v50/v51 stats, masks)')
        s(f'''s_lshl_b32 s70, s{sQ}, 2
        s_lshr_b32 s71, 0x2213, s70
        s_and_b32 s71, s71, 15
        s_lshr_b32 s72, 0x0404, s70
        s_and_b32 s72, s72, 15
        v_and_b32 v44, 15, v{vL}
        v_lshrrev_b32 v45, 4, v{vL}
        v_add_u32 v46, s71, v44
        v_add_u32 v47, s72, v44''')
        s.pos(6, 46, 48)
        s(f'v_mul_u32_u24 v48, 768, v45\nv_add_u32 v6, v6, v48\nv_add_u32 v6, {L_HI}, v6')
        s.pos(7, 47, 48)
        s(f'''v_lshrrev_b32 v48, 1, v45
        s_lshl_b32 s73, s{sCT}, 1
        v_add_u32 v48, s73, v48
        v_mul_u32_u24 v48, 768, v48
        v_and_b32 v49, 1, v45
        v_lshl_add_u32 v48, v49, 3, v48
        v_add_u32 v7, v7, v48
        v_add_u32 v7, {L_HI}, v7
        s_sub_u32 s73, s71, s72
        s_lshl_b32 s70, s{sTB}, 5
        s_add_u32 s73, s73, s70
        v_add_u32 v48, s73, v44
        v_add_u32 v49, 16, v48
        s_movk_i32 s70, 2048
        v_cmp_gt_u32 {sr(sM0,2)}, s70, v48
        v_cmp_gt_u32 {sr(sM1,2)}, s70, v49
        v_lshlrev_b32 v50, 4, v46
        v_add_u32 v50, {L_STA}, v50
        v_lshlrev_b32 v51, 3, v47
        v_add_u32 v51, {L_STB}, v51''')
        for j in range(3): s(f's_add_u32 s70, s{sQ}, {j+1}\ns_and_b32 s70, s70, 3\ns_mul_i32 s70, s70, 7\ns_add_u32 s70, s70, s{sW}\ns_lshl_b32 s{4+j}, s70, 10')
        s(f'''s_lshl_b32 s7, s{sW}, 10
        s_mul_i32 s8, s{sTB}, 28672
        s_add_u32 s8, s8, {GX}
        s_xor_b32 s9, s{sTB}, 1
        s_mul_i32 s9, s9, 28672
        s_add_u32 s9, s9, s7
        s_add_u32 s9, s9, {X1}
        s_lshl_b32 s69, s{sCT}, 10
        s_add_u32 s70, s69, s8
        s_add_u32 s71, s70, {X1 - GX}
        v_add_u32 v46, s69, v{vL16}
        v_add_u32 v47, s7, v{vL16}''')
        for i in range(4): s(f'v_mov_b32 v{28+i}, 0x3f803f80')
        for ks in range(14): s(f'v_mfma_f32_16x16x32_bf16 v[32:35], {vr(vW1+4*ks)}, v[28:31], {"v[32:35]" if ks else 0}')

    def g_wave(s, hst):
        c = s.cfg
        assert c.f_hok <= 28
        s.g_pre()
        if c.hack: s.wait(hst)
        s.hint_wait()
        s.stamp(13)
        s.h2(lambda: s.feed(c.f_hok, 63), lambda: s.feed(c.f_hld, 63))
        s.pin(c.pins[2])
        s.barrier(); s.stamp(15)
        s(f'v_mov_b32 v4, {L_FAST}\nds_read_b32 v4, v4\nv_lshlrev_b32 v5, 4, v44\nv_lshl_add_u32 v5, v45, 9, v5')
        s.gemm16(vW1, 24, 6, 3072, True, s.spread(c.f_g1, 28))
        s.stamp(39)
        s(f'v_readfirstlane_b32 s{sFAST}, v4')
        s(f's_mul_i32 s69, s{sM}, 7\ns_add_u32 s69, s69, s{sW}\ns_mul_i32 s69, s69, 1792\ns_add_u32 s69, s69, {CSP}\nv_lshlrev_b32 v48, 2, v{vL}')
        csl = lambda: [s(f'buffer_load_dword v{164+i}, v48, {sr(rWS)}, s69 offen offset:{256*i}') for i in range(7)]
        if c.cs_at == 0: csl()
        if c.evb2:
            spin, back = s.lab('es'), s.lab('eb')
            rdl = ['ds_read_b32 v49, v4', 'ds_read_b128 v[36:39], v50', 'ds_read_b128 v[40:43], v50 offset:256'][:1 if c.evc else 3]
            s(f'v_mov_b32 v4, {L_EV + 6*2048 + 7*260}')
            for l in rdl: s(l)
            s(f'v_cmp_eq_u32 vcc, 0, v49\ns_mov_b32 s97, 0\ns_cbranch_vccnz {spin}'); s.label(back)
            s.ool.append(f'{spin}:\n' + ''.join(f'    {l}\n' for l in rdl) + f'    s_add_u32 s97, s97, 1\n    s_cmp_gt_u32 s97, {SPIN*8}\n    s_waitcnt lgkmcnt(0)\n    s_cbranch_scc1 {back}\n'
                         f'    v_cmp_eq_u32 vcc, 0, v49\n    s_nop 1\n    s_cbranch_vccnz {spin}\n    s_branch {back}\n')
            s.stamp(16)
            if c.evc: s('ds_read_b128 v[36:39], v50\nds_read_b128 v[40:43], v50 offset:256')
        else:
            s.barrier(); s.stamp(16)
            s('ds_read_b128 v[36:39], v50\nds_read_b128 v[40:43], v50 offset:256')
        gl = zipl(s.gelu_pk(24, 32, 36, 4, 8, 20), s.gelu_pk(28, 32, 40, 4, 12, 22))
        ex = s.spread(c.f_gel, len(gl))
        for l in gl: s(l); ex.pop(0)()
        s(f"""v_cndmask_b32 v20, 0, v20, {sr(sM0,2)}
        v_cndmask_b32 v22, 0, v22, {sr(sM1,2)}
        v_cndmask_b32 v21, 0, v21, {sr(sM0,2)}
        v_cndmask_b32 v23, 0, v23, {sr(sM1,2)}
        v_permlane16_swap_b32 v20, v22
        v_permlane16_swap_b32 v21, v23
        v_or_b32 v20, 1, v20""")
        s.xstore([f'buffer_store_dwordx4 v[20:23], v{vL16}, {sr(rWS)}, s70 offen'])
        s.stamp(17)
        s(f"""ds_write_b128 v46, v[20:23] offset:{L_GI}
        ds_read_b64 v[8:9], v7
        ds_read_b64 v[10:11], v7 offset:256
        ds_read_b64 v[12:13], v51
        ds_read_b64 v[14:15], v51 offset:128""")
        for i in range(4): s(f'v_lshlrev_b32 v{vRES+2*i}, 16, v{8+i}\nv_and_b32 v{vRES+1+2*i}, 0xffff0000, v{8+i}')
        for i in range(4): s(f'v_pk_fma_f32 {vr(24+2*i,2)}, {vr(12+2*(i>>1),2)}, {vr(vRES+2*i,2)}, {vr(12+2*(i>>1),2)} op_sel:[1,0,0] op_sel_hi:[1,1,0]')
        if c.dack[0]: s.wait_vm(0)
        s.stamp(18)
        hd, td = s.fetch_issue([(4+j, L_GI, 4+j, 's8') for j in range(3)])
        if c.bar_a: s('s_barrier')
        if c.cs_at == 1: csl()
        s.feed(c.f_b3a, 63)
        p1, p2 = s.fetch_check(hd, td, 47, L_GI, 4, 8)
        p1(); p2(); s.stamp(42)
        if s.stamps: s('v_writelane_b32 v3, s97, 62')
        if c.cs_at == 2: csl()
        s.feed(c.f_gok, 63)
        s(f's_add_u32 s8, s8, {X1 - GX}\nv_add_u32 v47, {L_XI}, v47')
        s.barrier(); s.stamp(19)
        s.gemm16(vW2, 24, 5, 2048, False, s.spread(c.f_g2, c.g2span))
        for i in range(4): s(f'v_cvt_pk_bf16_f32 v{20+i}, v{24+2*i}, v{25+2*i}')
        s('v_permlane16_swap_b32 v20, v22\nv_permlane16_swap_b32 v21, v23\nv_or_b32 v20, 1, v20')
        s.xstore([f'buffer_store_dwordx4 v[20:23], v{vL16}, {sr(rWS)}, s71 offen'])
        s.stamp(20)
        s(f'ds_write_b128 v46, v[20:23] offset:{L_XI + 28672}')
        s(f"""v_mov_b32 v49, 0
        v_mov_b32 v50, 0
        v_mov_b32 v51, 0
        v_add_u32 v6, {L_XI}, v{vL16}
        s_lshl_b32 s70, s{sW}, 11
        s_add_u32 s70, s70, {L_HID}
        v_add_u32 v7, s70, v{vL16}
        v_add_u32 v44, {L_HID}, v{vL16}""")
        for i in range(8): s(f'v_add_f32 v{vRES+i}, v{vRES+i}, v{24+i}')
        if c.dack[1]: s.wait_vm(0)
        s.stamp(21)
        hd, td = s.fetch_issue([(7, L_XI + 7168*j, 9, 7168*j) for j in range(4)])
        s(f'''v_pk_add_f32 v[164:165], v[164:165], v[166:167]
        v_add_f32 v168, v168, v170
        v_pk_add_f32 v[164:165], v[164:165], v[168:169]
        v_add_f32 v164, v164, v165
        v_mov_b32 v165, v164
        v_permlane32_swap_b32 v164, v165
        v_add_f32 v164, v164, v165
        v_cvt_pk_bf16_f32 v48, v164, v164
        v_and_b32 v165, 0xffff0000, v48
        v_sub_f32 v165, v164, v165
        v_cvt_pk_bf16_f32 v48, v164, v165''')
        p1, p2 = s.fetch_check(hd, td, 47, 0, 4, 8)
        p1(); p2(); s.stamp(43)
        if s.stamps: s('v_writelane_b32 v3, s97, 63')
        hx, tx = s.fetch_issue([(4+j, L_XI + 28672, 4+j, 's8') for j in range(3)])
        s.feed(c.f_b4a, 63)
        later = []
        for r, x in ((12, 1), (15, 0)):
            later.append(f"""s_xor_b32 s69, s{sTB}, {x}
            s_mul_i32 s70, s69, 28
            s_add_u32 s70, s70, s{sCT}
            s_lshl_b32 s71, s70, 10
            s_add_u32 s{r}, s71, {GX}
            s_add_u32 s{r+1}, s71, {X1}
            s_lshl1_add_u32 s{r+2}, s71, {PX}
            s_lshl_b32 s69, s69, 5
            s_add_u32 s69, s69, s{sCT}
            s_lshl2_add_u32 s{18+x}, s69, {F7}""")
        later.append(f"""s_xor_b32 s72, s{sTB}, 1
        s_lshl_b32 s72, s72, 5
        s_lshr_b32 s74, s{sCT}, 2
        s_add_u32 s72, s72, s74
        s_lshl2_add_u32 s72, s72, {F7}
        s_bfe_u32 s74, s{sCT}, 0x10001
        s_mul_i32 s74, s74, {F7B - F7}
        s_add_u32 s72, s72, s74""")
        later.append(f"""s_mul_i32 s74, s{sTB}, 28
        s_lshr_b32 s22, s{sCT}, 2
        s_add_u32 s74, s74, s22
        s_lshl_b32 s74, s74, 10
        s_and_b32 s22, s{sCT}, 1
        s_lshl_b32 s71, s22, 21
        s_add_u32 s71, s71, s74
        s_add_u32 s71, s71, {GX}
        s_lshl_b32 s22, s22, 10
        s_lshl1_add_u32 s74, s74, s22
        s_add_u32 s74, s74, {PX}
        s_bitcmp1_b32 s{sCT}, 1
        s_cselect_b32 s74, s71, s74
        s_cselect_b32 s22, 7, 14
        s_lshl_b32 s22, s22, 10
        s_lshl1_add_u32 s75, s22, s74
        s_sub_u32 s22, s22, 1024
        v_lshrrev_b32 v28, 5, v{vL}
        v_mad_u32_u24 v5, v28, s22, v5
        s_mul_i32 s76, s{sTB}, {32*896}
        s_lshl_b32 s77, s{sCT}, 5
        s_add_u32 s76, s76, s77
        s_mov_b32 s{rX}, s{sOUT}
        s_mov_b32 s{rX+1}, s{sOUT+1}
        s_mov_b32 s{rX+2}, {2048*896}
        s_mov_b32 s{rX+3}, 0x20000""")
        AC, ST, A4 = (180, 164), (vST3, 160), ((112, 128), (180, 144))
        seq = []
        gp, gd = c.gp, c.gd
        for t, a, b in ((0, 0, gp), (1, 0, gd), (0, gp, 28), (1, gd, 28)): seq += [(vW3 + 4*k, AC[t], k == 0, (6, 28672*t + 1024*k)) for k in range(a, b)]
        use0 = lambda k: k if k < gp else k + gd
        e0 = 27 + gd
        for t in range(2):
            for j in range(2):
                prs = [(w, ctl) for w in range(7) for ctl in range(2)]
                if j == 1: prs = [(w, ctl ^ t) for ctl in range(2) for w in range(7)]
                seq += [((vW4A + 4*(2*w + ctl), vW4B + 4*(7*ctl + w))[j], A4[t][ctl], j == 0 and w == 0, (44, 14336*t + 1024*(2*w + j))) for w, ctl in prs]
        reads = []; ridx = []
        for n, e in enumerate(seq):
            if not reads or reads[-1][0] != e[3]: reads.append((e[3], n))
            ridx.append(len(reads) - 1)
        nb = 4
        rat = {}
        for r, (key, n) in enumerate(reads):
            free = max([m for m in range(112) if ridx[m] == r - nb], default=-1)
            rat[r] = max(free, n - c.pd)
        X = {i: [] for i in range(-1, 113)}
        def place(items, a, b):
            bu = c.burst
            for k, it in enumerate(items):
                p = a + (k * (b - a + 1)) // len(items)
                X[min(b, p + (bu - 1 - (p - a) % bu))].append(it)
        I = lambda t: (lambda: s(t))
        def gelu(t, h):
            acc, st, o, G = AC[t] + 8*h, ST[t], [], c.ggrp
            for j in range(0, 8, G):
                R = range(G); T = 24 + j
                o += [f'v_mul_f32 v{T+i}, v{acc+j+i}, v{acc+j+i}' for i in R]
                o += [f'v_fma_f32 v{T+i}, v{T+i}, v{st+1}, v{st+2}' for i in R]
                o += [f'v_mul_f32 v{T+i}, v{T+i}, v{acc+j+i}' for i in R]
                for i in R: o += [f'v_exp_f32 v{T+i}, v{T+i}', '']
                o += [f'v_fma_f32 v{T+i}, v{T+i}, v{st+3}, v{st+3}' for i in R]
                for i in R: o += [f'v_rcp_f32 v{T+i}, v{T+i}', '']
                o += [f'v_mul_f32 v{T+i}, v{T+i}, v{acc+j+i}' for i in R]
                o += [f'v_cvt_pk_bf16_f32 v{32+(j+i)//2}, v{T+i}, v{T+i+1}' for i in range(0, G, 2)]
            o.append(f'ds_write_b128 v7, v[32:35] offset:{14336*t + 1024*h}\nds_write_addtid_b32 v44 offset:{L_EV - 32768 + 2048*(2*t + h)}')
            return [I(x) for x in o]
        def sync(at, k, st):
            rdl = f'ds_read_b32 v4, v46 offset:{2048*k}'
            def chk():
                spin, back = s.lab('ls'), s.lab('lb')
                s(f's_cbranch_vccnz {spin}')
                s.label(back); s.stamp(st)
                s.ool.append(f'{spin}:\n    s_mov_b32 s97, 0\n{spin}a:\n    {rdl}\n    s_add_u32 s97, s97, 1\n    s_cmp_gt_u32 s97, {SPIN*8}\n    s_waitcnt lgkmcnt(0)\n    s_cbranch_scc1 {back}\n'
                             f'    v_cmp_eq_u32 vcc, 0, v4\n    s_nop 1\n    s_cbranch_vccz {back}\n    s_sleep 1\n    s_branch {spin}a\n')
            X[at - c.sd].append(I(rdl)); X[at].insert(0, I('v_cmp_eq_u32 vcc, 0, v4')); X[at].append(chk)
        hs = {}
        def blk(base, k): return f's{base + min(k ^ 2, 2)} offen offset:{1024 * (k == 1)}'
        def fin(t, ctl, h, pk, last=False):
            acc = A4[t][ctl] + 8*h
            def f():
                if t == 1:
                    un = A4[0][ctl] + 8*h
                    if last:
                        for i in range(0, 8, 2): s(f'v_pk_add_f32 {vr(acc+i,2)}, {vr(acc+i,2)}, {vr(un+i,2)}')
                    else:
                        for i in range(8): s(f'v_add_f32 v{acc+i}, v{acc+i}, v{un+i}')
                for i in range(4): s(f'v_cvt_pk_bf16_f32 v{pk+i}, v{acc+2*i}, v{acc+2*i+1}')
                s(f'v_or_b32 v{pk}, 1, v{pk}' if t else f'v_and_b32 v{pk}, -2, v{pk}')
                s.xstore([f'buffer_store_dwordx4 {vr(pk)}, v{vL16}, {sr(rWS)}, {blk(12 + 3*t, 2*ctl + h)}'])
                hs[t, ctl] = s.vm[-1][0]
            return f
        def stage1(ctl, at):
            fo = ctl * (F7B - F7)
            def flag():
                s(f'v_mov_b32 v45, s{sTAG}\ns_add_u32 s69, s18, {fo}')
                s.wait(hs[0, ctl]); s('s_mov_b64 exec, 1')
                s.xstore([f'buffer_store_dword v45, off, {sr(rWS)}, s69'])
                s('s_mov_b64 exec, -1')
            ld = [f'buffer_load_dwordx4 {vr(164 + 8*ctl + 4*h)}, v{vL16}, {sr(rWS)}, {blk(15, 2*ctl + h)} sc1' for h in range(2)]
            def fetch():
                if ctl == 0: s.poll_check(47, None, 's70'); s.stamp(45)
                for l in ld: s(l)
            def check():
                ck = ['v_or_b32 v4, v172, v176', 'v_and_b32 v4, 1, v4', 'v_cmp_eq_u32 vcc, 1, v4']
                retry, back = s.lab('sr'), s.lab('sb')
                for l in ck: s(l)
                s(f's_mov_b32 s97, 0\ns_cbranch_vccnz {retry}'); s.label(back); s.stamp(46)
                s.ool.append(f'{retry}:\n' + ''.join(f'    {l}\n' for l in ld) + f'    s_add_u32 s97, s97, 1\n    s_cmp_gt_u32 s97, {SPIN}\n    s_waitcnt vmcnt(0)\n    s_cbranch_scc1 {back}\n'
                             + ''.join(f'    {l}\n' for l in ck) + f'    s_nop 1\n    s_cbranch_vccnz {retry}\n    s_branch {back}\n')
            X[at[0]].append(fin(0, ctl, 0, 108)); X[at[1]].append(fin(0, ctl, 1, 196))
            X[at[2]].append(flag)
            if ctl == 0: X[at[3]].append(lambda: (s(f's_add_u32 s70, s19, {fo}'), s.poll_issue(47, None, 's70')))
            X[at[4]].append(fetch)
            if ctl == 1: X[at[5]].append(check)
            un = []
            for i in range(8): un += [f'v_lshlrev_b32 v{A4[0][ctl] + 2*i}, 16, v{164 + 8*ctl + i}', f'v_and_b32 v{A4[0][ctl] + 2*i + 1}, 0xffff0000, v{164 + 8*ctl + i}']
            place([I(x) for x in un], at[5], min(at[5] + 3, 111))
        bsave, c.burst = c.burst, 1
        ch = []
        for t in later:
            cur = []
            for l in t.split('\n'):
                if len(cur) >= 5 and 'cselect' not in l: ch.append('\n'.join(cur)); cur = []
                cur.append(l)
            ch.append('\n'.join(cur))
        assert not any(x.strip().split('\n')[-1].strip().startswith(('s_cmp', 's_bitcmp')) for x in ch)
        place([I(x) for x in ch], 8, 26)
        if s.wn < 56:
            w3e = c.w3e if c.w3e is not None else max(0, s.wn - 28 - 5)
            n3 = 56 - s.wn
            assert all((k * (w3e + 1)) // n3 < use0(s.wn - 28 + k) for k in range(n3)) and w3e < c.w4a[0]
            place([s.feed1] * n3, 0, w3e)
        if s.wn < 70: place([s.feed1] * (70 - max(s.wn, 56)), c.w4a[0], c.w4a[1])
        place([s.feed1] * 14, c.w4b[0], c.w4b[1])
        c.burst = bsave
        first = lambda n: rat[ridx[n]] - 1
        x1st = first(gp if gd else 28)
        assert c.x_at + 2 <= x1st - c.sd
        sync(x1st if gd else x1st - 3, 5, 49)
        sync(e0 - 3, 4, 23)
        X[e0 - 3].append(I(f'ds_read_b128 {vr(ST[0])}, v44 offset:{L_ST3 - L_HID}'))
        X[e0].append(I(f'v_mfma_f32_32x32x16_bf16 {vr(AC[0],16)}, v[48:51], {vr(ST[0])}, {vr(AC[0],16)}'))
        assert c.q[0] > e0
        q = c.q
        for k in range(4): place(gelu(k >> 1, k & 1), q[k], q[k+1] - 1)
        X[55].append(I(f'ds_read_b128 {vr(ST[1])}, v44 offset:{L_ST3 - L_HID + 1024}'))
        X[57].append(I(f'v_mfma_f32_32x32x16_bf16 {vr(AC[1],16)}, v[48:51], {vr(ST[1])}, {vr(AC[1],16)}'))
        for k in range(4):
            assert first(56 + 14*k) - c.sd >= q[k+1] - 1, (k, first(56 + 14*k))
            sync(first(56 + 14*k), k, (25, 26, 27, 41)[k])
        assert c.st0[4] >= q[3] and c.st1[4] >= q[4] and c.st1[5] > first(98) and c.st1[5] + 3 < 107 and c.st1[2] < c.fpoll
        stage1(0, c.st0); stage1(1, c.st1)
        X[107].append(fin(1, 1, 0, 108)); X[109].append(fin(1, 1, 1, 196)); X[112] += [fin(1, 0, 0, 24, c.lastpk), fin(1, 0, 1, 28, c.lastpk)]
        X[58].append(I(f'global_load_dwordx4 v[48:51], v{vL16}, s[94:95] offset:-1024'))
        X[q[4]].append(I(f'v_lshlrev_b32 v6, 3, v{vL}\nglobal_load_dwordx2 v[6:7], v6, s[94:95] offset:-1536'))
        X[c.fpoll].append(lambda: s.poll_issue(45, 7, 's72')); X[c.fpoll + c.fpd].append(lambda: s.poll_check(45, 7, 's72'))
        def rd(r): (va, off), _ = reads[r]; s(f'ds_read_b128 {vr(8+4*(r%nb))}, v{va} offset:{off}')
        p1, p2 = s.fetch_check(hx, tx, 47, 28672, 4, 24, f's_mov_b32 m0, s21')
        X[c.x_at].insert(0, p1); X[c.x_at + 2].append(lambda: (p2(), s(f'ds_write_addtid_b32 v44 offset:{L_EV - 32768 + 2048*5}')))
        s(f'v_and_b32 v46, 7, v{vL}\nv_mul_u32_u24 v46, 260, v46\nv_add_u32 v46, {L_EV}, v46\ns_lshl_b32 s21, s{sW}, 8\ns_add_u32 s21, s21, 32768\ns_mov_b32 m0, s21')
        s.pin(c.pins[3])
        s.barrier(); s.stamp(22)
        for r in range(len(reads)):
            if rat[r] < 0: rd(r)
        LS = [10, 26, 78, 80, 40, 42, 44, 46, 62, 64, 66, 88, 90, 92, 24]
        for n, (W, acc, fst, key) in enumerate(seq):
            if c.lst and n % 8 == 0: s.raw(f'    s_memtime s[{LS[n//8]}:{LS[n//8]+1}]')
            s.fair(n, c.fm)
            s(f'v_mfma_f32_32x32x16_bf16 {vr(acc,16)}, {vr(W)}, {vr(8+4*(ridx[n]%nb))}, {0 if fst else vr(acc,16)}')
            for r in range(len(reads)):
                if rat[r] == n: rd(r)
            s.run(X[n])
        if c.lst: s.raw('    s_memtime s[24:25]')
        s.run(X[112])
        if c.lst:
            s.wait_lg(0, force=True)
            for i, r in enumerate(LS): s(f'v_writelane_b32 v3, s{r}, {1 + i}')
        s.stamp(28)
        if c.dack[2]: s.wait_vm(0)
        s.stamp(29)
        ld = [f'buffer_load_dwordx4 {vr(52+8*u+4*t)}, v5, {sr(rWS)}, s{74+u} offen offset:{256*t} sc1' for u in range(2) for t in range(2)]
        ck = ['v_and_b32 v8, v52, v56', 'v_and_b32 v9, v60, v64', 'v_and_b32 v8, 1, v8', 'v_and_b32 v8, v8, v9', 'v_cmp_eq_u32 vcc, 0, v8']
        retry, back = s.lab('er'), s.lab('eb')
        for l in ld + ck: s(l)
        s(f's_mov_b32 s97, 0\ns_cbranch_vccnz {retry}'); s.label(back)
        s.ool.append(f'{retry}:\n' + ''.join(f'    {l}\n' for l in ld) + f'    s_add_u32 s97, s97, 1\n    s_cmp_gt_u32 s97, {SPIN}\n    s_waitcnt vmcnt(0)\n    s_cbranch_scc1 {back}\n'
                     + ''.join(f'    {l}\n' for l in ck) + f'    s_nop 1\n    s_cbranch_vccnz {retry}\n    s_branch {back}\n')
        s.stamp(30)
        for u in range(2):
            for t in range(2): s(f'v_mfma_f32_16x16x32_bf16 {vr(vRES+4*t)}, v[48:51], {vr(52+8*u+4*t)}, {vr(vRES+4*t)}')
        for i in range(4): s(f'v_cvt_pk_bf16_f32 v{20+i}, v{vRES+2*i}, v{vRES+1+2*i}')
        s('v_permlane16_swap_b32 v20, v22\nv_permlane16_swap_b32 v21, v23')
        s(f'buffer_store_dwordx4 v[20:23], v6, {sr(rX)}, s76 offen')
        s.stamp(31)

    def s_mfma(s, addrs, acc, kstride, base, nk=14):
        seq = [(ks, t) for ks in range(nk) for t in range(3)]
        nb = 8
        def rd(i): ks, t = seq[i]; s(f'ds_read_b128 {vr(52+4*(i%nb))}, v{addrs+t} offset:{base + ks*kstride}')
        s('s_mov_b32 exec_lo, 0x77777777\ns_mov_b32 exec_hi, 0x77777777')
        for i in range(nb - 1): rd(i)
        for i, (ks, t) in enumerate(seq):
            if i + nb - 1 < len(seq): rd(i + nb - 1)
            s(f'v_mfma_f32_16x16x32_bf16 {vr(acc+4*t)}, {vr(52+4*(i%nb))}, {vr(52+4*(i%nb))}, {vr(acc+4*t) if ks else 0}')
    def s_wave(s, hst):
        s.comment('S wave: statistics, polling, DMA')
        s.pin(s.cfg.pins[4])
        s('s_setprio 2')
        s(f'''s_and_b32 s70, s2, 0xc7
        s_lshl_b32 s70, s70, 4
        s_mul_i32 s71, s{sXCD}, {FCP}
        s_add_u32 s70, s70, s71
        s_add_u32 s70, s70, {FA}
        v_and_b32 v44, 7, v{vL}
        v_lshlrev_b32 v44, 7, v44
        buffer_load_dword v48, v44, {sr(rWS)}, s70 offen sc1''')
        def ftouch():
            s(f'''s_lshl_b32 s72, s{sTB}, 7
            s_add_u32 s72, s72, {F3}
            s_mov_b32 m0, {L_JUNK}
            v_min_u32 v45, 4, v{vL}
            v_lshlrev_b32 v45, 13, v45
            buffer_load_dword v45, {sr(rWS)}, s72 offen sc1 lds''')
            if s.cfg.etouch:
                s(f's_mul_i32 s70, s{sTB}, 28\ns_add_u32 s70, s70, s{sCT}\ns_lshl_b32 s70, s70, 11\ns_add_u32 s70, s70, {PX - 7*2048}\ns_add_u32 s71, s70, 7168\ns_mov_b32 exec_hi, 0x00ffffff')
                s(f'buffer_load_dword v7, {sr(rWS)}, s70 offen sc1 lds\nbuffer_load_dword v7, {sr(rWS)}, s71 offen sc1 lds\ns_mov_b32 exec_hi, -1')
        def setup():
            for i in range(32): s(f'v_mov_b32 v{52+i}, 0x3f803f80')
            s(f'''v_and_b32 v44, 3, v{vL}
        v_bfe_u32 v45, v{vL}, 2, 2
        v_mad_u32_u24 v40, v45, 3, v44
        v_lshrrev_b32 v41, 4, v{vL}''')
            for t in range(3):
                s(f'v_add_u32 v46, {12*t}, v40')
                s.pos(84 + t, 46, 47)
                s(f'v_mul_u32_u24 v47, 768, v41\nv_add_u32 v{84+t}, v{84+t}, v47\nv_add_u32 v{84+t}, {L_HI}, v{84+t}')
                s(f'v_min_u32 v46, 31, v46\nv_lshlrev_b32 v46, 4, v46\nv_lshl_add_u32 v46, v41, 9, v46\nv_add_u32 v{88+t}, {L_XI}, v46')
            s(f'''v_sub_u32 v45, v45, v41
        v_and_b32 v45, 3, v45
        v_cmp_eq_u32 s[78:79], 1, v45
        v_cmp_eq_u32 s[80:81], 2, v45
        v_mad_u32_u24 v40, v41, 3, v44
        v_mad_u32_u24 v40, v45, 12, v40
        v_min_u32 v92, 31, v40
        v_lshlrev_b32 v92, 4, v92
        v_add_u32 v92, {L_ST3}, v92
        v_lshlrev_b32 v42, 4, v40
        v_add_u32 v42, {L_STA}, v42
        v_lshlrev_b32 v43, 3, v40
        v_add_u32 v43, {L_STB}, v43
        v_lshlrev_b32 v6, 2, v{vL}
        v_lshlrev_b32 v7, 7, v{vL}
        v_cmp_ne_u32 vcc, s{sTX}, v48
        v_mov_b32 v46, {L_FAST}
        s_cmp_eq_u64 vcc, 0
        s_cselect_b32 s{sFAST}, 1, 0
        v_mov_b32 v45, s{sFAST}
        ds_write_b32 v46, v45
        v_and_b32 v38, 7, v{vL}
        v_mul_u32_u24 v38, 260, v38
        v_add_u32 v38, {L_EV}, v38
        v_lshlrev_b32 v46, 8, v{vL}
        v_and_b32 v46, 0x3800, v46
        v_add_u32 v46, v46, v38
        s_mov_b32 vcc_lo, 0x80800000
        s_mov_b32 vcc_hi, 0x807f
        v_cndmask_b32 v45, 0, v38, vcc
        ds_write_b32 v46, v45''')
        if not s.cfg.searly: setup()
        s(f'''s_and_b32 s70, s{sQ}, 1
        s_mul_i32 s71, s70, 9
        s_lshl3_add_u32 s71, s{sTB}, s71
        s_sub_u32 s71, s71, 1
        s_max_i32 s71, s71, 0
        s_min_i32 s71, s71, 511
        s_lshr_b32 s88, s71, 3
        s_mul_i32 s88, s88, 28672
        s_and_b32 s71, s71, 7
        s_lshl4_add_u32 s88, s71, s88
        s_add_u32 s88, s88, {X1}
        s_mul_i32 s70, s70, 384
        s_add_u32 s70, s70, {L_HI + 128}
        v_min_u32 v5, 55, v{vL}
        v_lshlrev_b32 v4, 9, v5
        v_mul_u32_u24 v5, 768, v5
        v_add_u32 v5, s70, v5''')
        s.wait(hst); s.hint_wait()
        s.stamp(13)
        s.h2(ftouch, setup if s.cfg.searly else (lambda: None), halo=True)
        s(f'v_cmp_eq_u32 s[92:93], 1, v44\nv_cmp_eq_u32 s[94:95], 2, v44\ns_mov_b32 s96, {INVD}\nv_mov_b32 v49, {fh(1 + 1e-5)}')
        s(f'''s_lshl2_add_u32 s70, s{sTB}, s{sQ}
        s_lshl_b32 s71, s70, 4
        s_add_u32 s71, s71, {FN}
        v_and_b32 v45, 1, v{vL}
        v_lshlrev_b32 v45, 3, v45
        v_sub_u32 v45, v44, v45
        s_lshl2_add_u32 s72, s{sTB}, 4
        v_add_u32 v45, s72, v45
        v_mov_b32 v47, s70
        v_cmp_gt_u32 vcc, 0x100, v45
        v_mov_b32 v36, s{sTAG}
        s_mov_b32 s72, {FN}
        v_cndmask_b32 v45, v47, v45, vcc
        s_xor_b32 s70, s70, 4
        v_writelane_b32 v45, s70, 4
        v_lshlrev_b32 v37, 4, v45''')
        s.barrier(); s.stamp(15)
        s(f's_mov_b64 exec, 1\nbuffer_store_dword v36, off, {sr(rWS)}, s71 sc1')
        s.s_mfma(84, 24, 3072, 0)
        s.stamp(39)
        s.stats_tail(24, 43, 42, 0)
        if s.cfg.evp: s.wait_lg(0)
        if s.cfg.evb2: s(f's_mov_b64 exec, 0x80\nds_write_b32 v38, v38 offset:{6*2048}\ns_mov_b64 exec, -1')
        else: s('s_mov_b64 exec, -1'); s.barrier()
        s.stamp(16)
        s.poll(4, 37, 's72', 31, 0, sleep=4)
        for i in range(2 + s.cfg.bar_a): s('s_barrier')
        s.stamp(22)
        def lwait(k):
            l, l2, l3 = s.lab('tw'), s.lab('tx'), s.lab('ty')
            s(f's_mov_b32 s97, 0\ns_branch {l2}'); s.label(l); s(f's_sleep 1\ns_add_u32 s97, s97, 1\ns_cmp_gt_u32 s97, {SPIN*8}\ns_cbranch_scc1 {l3}'); s.label(l2)
            s(f'ds_read_b32 v4, v38 offset:{2048*k}\nv_cmp_eq_u32 vcc, 0, v4\ns_cbranch_vccnz {l}'); s.label(l3)
        post = lambda k: s(f's_mov_b64 exec, 0x80\nds_write_b32 v38, v38 offset:{2048*k}\ns_mov_b64 exec, -1')
        def touch():
            s(f'''s_mul_i32 s70, s{sTB}, 28
            s_mul_i32 s71, s{sQ}, 7
            s_add_u32 s70, s70, s71
            s_lshl_b32 s71, s70, 10
            s_add_u32 s71, s71, {GX}
            s_add_u32 s69, s71, {X1 - GX}
            s_lshl_b32 s70, s70, 11
            s_add_u32 s70, s70, {PX}
            s_mov_b32 m0, {L_JUNK}
            s_mov_b32 exec_hi, 0x00ffffff''')
            rf = f'buffer_load_dword v7, {sr(rWS)}, s71 offen sc1 lds\nbuffer_load_dword v7, {sr(rWS)}, s69 offen sc1 lds'
            if s.cfg.refresh == 1: s(rf)
            for i in range(2):
                k = (s.cfg.touch_at, s.cfg.touch2)[i]
                if k < 4: lwait(k)
                s(f'buffer_load_dword v7, {sr(rWS)}, s70 offen sc1 lds\ns_add_u32 s70, s70, 7168')
            if s.cfg.refresh == 2: s(rf)
            s('s_mov_b32 exec_hi, -1')
        for t in range(2):
            if s.cfg.x_ns: s(f's_mov_b32 s96, {fh(1/96)}')
            s.s_mfma(88, 24, 2048, 28672 * t, 3 if s.cfg.x_ns else 14)
            s.stats_tail(24, None, 92, 1024 * t)
            post((4, 0)[t])
            s.stamp(23 + t)
            if t == 0:
                lwait(5)
                s(f's_lshl_b32 s72, s{sCL}, 8\ns_add_u32 s72, s72, {F5 + 28}\ns_lshl_b32 s73, s{sM}, 5\ns_add_u32 s73, s73, s72\nv_lshlrev_b32 v37, 5, v{vL}')
                s.flag(73)
        s.poll(4, 37, 's72', '0xff', 0, sleep=2)
        post(1)
        s.stamp(25)
        if s.cfg.touch_at != 5: touch()
        s.cond('s_cmp_lg_u32 s2, 0', lambda: s(f'v_mov_b32 v4, s{sTAG}\ns_mov_b32 s70, {EP}\ns_mov_b64 exec, 1\nbuffer_store_dword v4, off, {sr(rWS)}, s70 sc1\ns_mov_b64 exec, -1'))
        s.wait_vm(0); s.stamp(28)

def build(stamps=False, cfg=None):
    s = K(stamps, cfg or Cfg())
    c = s.cfg
    s.entry(); s.setup(); s(s.scalars())
    if c.dma_at == -1: s(f's_cmp_lt_u32 s43, 2\ns_cmov_b32 s{rW+2}, {448*896}'); s.pack_dma()
    if c.sb_at == 0: s.setup_b()
    s.stamp(34); s.ln()
    s(f's_cmp_ge_u32 s{sI}, 28'); s.flush_hazards(); s('s_cbranch_scc1 Lnonconv')
    st = s.state()
    s.clear()
    if c.sb_at == 1: s.setup_b()
    s.stamp(33)
    if c.dma_at == 0: s.pack_dma()
    if c.fa_at == -1: s.publish_a()
    s.kgen(); hst = s.conv()
    s.label('Ljoin')
    s(f'v_mov_b32 v4, v21\nv_mov_b32 v5, v22\ns_cmp_eq_u32 s{sW}, 7'); s.flush_hazards(); s('s_cbranch_scc1 Lsw')
    st2 = s.state()
    s.g_wave(hst); s.dump_stamps(); s('s_endpgm')
    s.label('Lsw'); s.set_state(st2)
    s.s_wave(hst); s.dump_stamps()
    s.label('Lend'); s('s_endpgm')
    s.label('Lnonconv'); s.set_state(st); s.wn = 0
    s.nonconv(); s.flush_hazards(); s('s_branch Ljoin')
    name = NAME + '_kernel'
    txt = f'''; @launch grid=(256,1,1) block=(512,1,1) lds={LDS_BYTES}
.amdgcn_target "amdgcn-amd-amdhsa--gfx950"
.text
.globl {name}
.p2align 8
.type {name},@function
{name}:
''' + s.text() + ''.join(s.ool) + tap_table() + f'''.section .rodata,"a"
.p2align 6
.amdhsa_kernel {name}
  .amdhsa_next_free_vgpr 256
  .amdhsa_next_free_sgpr 102
  .amdhsa_accum_offset 256
  .amdhsa_group_segment_fixed_size 0
  .amdhsa_kernarg_size 120
  .amdhsa_user_sgpr_count 2
  .amdhsa_user_sgpr_kernarg_segment_ptr 1
  .amdhsa_system_sgpr_workgroup_id_x 1
.end_amdhsa_kernel
'''
    size, syms = code_info(txt.replace('@CODE_BYTES@', '1000').replace('@TAB_OFF@', '1000'))
    return txt.replace('@CODE_BYTES@', str(syms['tap_table'] + 2048 + 4224 - syms['Lpc'] - 4)).replace('@TAB_OFF@', str(syms['tap_table'] - syms['Lpc']))
def tap_table():
    RB = {8: 0, 4: 16, 2: 24, 6: 28, 1: 32, 3: 34, 5: 36, 7: 38}
    def rnd(l):
        sh = max(0, l.bit_length() - 8)
        if not sh: return l
        q, r = l >> sh, l & ((1 << sh) - 1); half = 1 << (sh - 1)
        return (q + (r > half or (r == half and q & 1))) << sh
    v = []
    for i in range(2056):
        l = 2047 - i
        if l < 0: e = 768
        elif l == 0: e = 640
        else: p = rnd(l); e = RB[((p - 1) & 7) + 1] * 16 + ((p - 1) >> 3)
        v.append(e * 16)
    v += [0] * 56
    lane = []
    for l in range(64):
        n, g = l & 15, l >> 4; tb = 2*n + (g >> 1); rr, cc = (l >> 2) & 3, l & 3
        bb = lambda c_: 32*c_ + 16*((c_ >> 3) & 1)
        lane.append([4*(4*g - (n >> 1)) + 28 + KEO*(1 - (n & 1)), bb(30 + 2*n + g), bb(26 + 2*n + g), (l >> 1)*896 + 16*((l ^ g) & 1),
                     tb*64 + (g & 1)*32, (n >> 1)*1792 + 4*(n & 1) + g, bb(tb) + 8*(g & 1), (g*64 + n)*16 + 4*((l >> 3) & 3),
                     n*KGP + 16*g, (8*g + rr)*64 + cc*8, (8*(g >> 1) + rr)*64 + (g & 1)*32 + (cc & 1)*16 + (cc >> 1)*8,
                     (l >> 2)*896 + cc*16, (l >> 2)*3584 + cc*16, rr*LNP + 32*g + 8*cc, rr*KEO + 16*(l & 1), 0])
    pk = []
    for b in range(256):
        for w in range(8):
            U = 256*w + 32*(b & 7) + (b >> 3)
            if U < 392: m, V = divmod(U, 196); kb, cb = divmod(V, 14); src = kb*32*896; d0 = 392*m + 28*cb + kb; d1 = d0 + 14
            elif U < 1176: m = 2; kb, cb = divmod(U - 392, 56); src = kb*32*3584; d0 = 784 + 28*cb + 2*kb; d1 = d0 + 1
            elif U < 1960: m = 3; kb, cb = divmod(U - 1176, 14); src = kb*32*896; d1 = 2352 + ((kb//7)*7 + (cb >> 1))*28; d0 = d1 + 2*(kb % 7) + (cb & 1); d1 += 14 + 7*(cb & 1) + kb % 7
            else: m, cb, src, d0, d1 = 4, 0, 0, 0, 0
            pk += [(m << 24) | (src + 64*cb), d0 | (d1 << 16)]
    t = '.p2align 7\n.type tail_table,@object\ntail_table:\n'
    for l in range(64): t += f'.long {(l & 31)*896 + (l >> 5)*16}, {(l & 3)*28}\n'
    for l in range(64): t += '.short ' + ', '.join('0x3f80' if (l & 15) == 8*((l >> 4) & 1) + j else '0' for j in range(8)) + '\n'
    t += '.size tail_table, 1536\n.type tap_table,@object\ntap_table:\n'
    for h in range(2):
        for l in range(64): t += '.short ' + ', '.join(map(str, lane[l][8*h:8*h+8])) + '\n'
    for i in range(0, 2112, 8): t += '.short ' + ', '.join(map(str, v[i:i+8])) + '\n'
    for i in range(0, 4096, 8): t += '.long ' + ', '.join(map(str, pk[i:i+8])) + '\n'
    return t + f'.size tap_table, {2048 + 4224 + 16384}\n'
def code_info(txt):
    import subprocess, tempfile, re
    with tempfile.TemporaryDirectory() as d:
        open(d + '/a.s', 'w').write(txt)
        subprocess.run(['clang', '-x', 'assembler', '-target', 'amdgcn-amd-amdhsa', '-mcpu=gfx950', '-c', d + '/a.s', '-o', d + '/a.o'], check=True)
        o = subprocess.run(['llvm-readelf', '-S', '-s', d + '/a.o'], capture_output=True, text=True).stdout
        size = int(re.search(r'\.text\s+PROGBITS\s+\S+\s+\S+\s+(\S+)', o).group(1), 16)
        return size, {m.group(2): int(m.group(1), 16) for m in re.finditer(r'\d+: ([0-9a-f]{16}) .* (\S+)\n', o)}
if __name__ == '__main__':
    sys.stdout.write(build(stamps=len(sys.argv) > 1))
```

```python
import sys, os, struct
sys.path.insert(0, os.path.dirname(os.path.abspath(__file__)))
from dsl import Asm, Ins

NAME = 'sequential_preLN__ssm_conv_s4d__mixer_s_mlp__prompt'
W1P, W2P, W3P, W4P = 0, 392 * 1024, 784 * 1024, 2352 * 1024
SM, CSP = 0x600000, 0x700000
GX, X1, PX = 0xA00000, 0xC00000, 0x1000000
FL = 0x2000000
F3, F4, F5, F7, F7B = FL, FL + 0x2000, FL + 0x4000, FL + 0x6000, FL + 0x8000
FH, FN, EP, FA, FB = FL + 0x1A000, FL + 0x1E000, FL + 0x20000, FL + 0x30000, FL + 0x40000
FCP = 4352
TS = 0x3000000
WS_BYTES = 0x4000000
L_LN, LNP = 0, 960
L_PK = 119296
L_KG, KGP = 31744, 288
L_Y = 0
L_KT, KTSZ = 68608, 12320
L_KE, KEO, KECH = 93312, 4160, 8320
L_U = 110080
L_SM = 8 * LNP
L_HI, L_GI, L_XI, L_HID, L_ST = 106880, 0, 28672, 106880, 149888
L_STA, L_STB, L_FAST, L_JUNK, L_ST3 = L_ST, L_ST + 768, L_ST + 1152, L_ST + 1280, L_ST + 1536
L_EV = 86016
LDS_BYTES = 153600
LOG2E, INV2PI, EPS, INVD = 0x3fb8aa3b, 0x3e22f983, 0x3727c5ac, 0x3b124925
C1 = -2.0 * 0.7978845608028654 * 1.4426950408889634
def fh(x): return '0x%08x' % struct.unpack('<I', struct.pack('<f', x))[0]
SPIN = 1 << 18
sX, sLA, sAI, sCR, sCI, sDT, sDS = 4, 6, 8, 10, 12, 14, 16
sW1, sW2, sW3, sW4, sOUT, sWS = 20, 22, 24, 26, 28, 30
rWS, rX, rD, rW, rG = 32, 36, 40, 44, 48
sW, sXCD, sI, sP, sTAG, sTB, sQ, sCL, sM, sFAST = range(52, 62)
sPD0, sPD1, sUO, sSM, sFO, sPACT = range(62, 68)
sUS, sKG, sHD, sUM = 74, 75, 76, 77
sLDT, sD0, sD1 = 40, 41, 42
sM0, sM1, sCT, sTX = 78, 80, 82, 83
sA1, sA2, sA3, sA4 = 84, 85, 86, 87
def sr(n, k=4): return f's[{n}:{n+k-1}]'
def vr(n, k=4): return f'v[{n}:{n+k-1}]'
vL16, vL = 1, 2
vW1, vW2, vW3, vW4A, vW4B = 144, 200, 52, 200, 52
vCS3, vAC3, vST3, vRES = 164, 180, 196, 36

class Cfg:
    f_kt = 3
    fa_at, dma_at, poll_at, chk_at, pst_at, fa_sleep = 1, 5, 4, 7, 8, 1
    u_at, uchk_at, pslot = 2, 7, 24
    rsplit = 8
    f_conv = 18
    f_hst = 18
    f_hld = 18
    f_hok = 24
    f_g1 = 35
    f_gel = 0
    x_dp, g2span = 0, 14
    f_gfl = 0
    f_b3a = 0
    f_g2 = 43
    f_xfl = 0
    f_b4a = 45
    two = 0
    tab = 0
    xbar = 0
    fb_at = 0
    x_nof = 99
    prio = 0
    bar_a, x_at = 0, 3
    ggrp, burst, pd, sd = 4, 1, 3, 2
    q = (33, 47, 60, 73, 86)
    st0, st1, lastpk = (79, 80, 89, 94, 100, 108), (86, 87, 96, 0, 95, 103), 1
    w4a, w4b = (17, 44), (45, 68)
    nc_depth, hint_at, fblate = 8, 72, 0
    depth = 4
    touch_at = 1
    warm = 1
    x_pad = None
    pal, pins = 3, (None,) * 5
    gsc = 0
    evb2, searly, evp, evc = 1, 1, 1, 0
    fpd = 8
    hfeed = 1
    dack, fpoll, cs_at, f_gok = (1, 1, 1), 103, 2, 37
    etouch, touch2 = 0, 4
    x_ns = x_nc = 0
    gp, gd, w3e = 17, 4, 16
    hack, hdel, hmask = 1, 0, 0
    upf = 0
    ktm = 0
    kbar = 0
    lst2, lregs = (), (4, 6, 8, 10, 12, 14, 16, 18, 20, 22, 24, 26, 36, 38, 98)
    fm, fc, fg = 4, 0, 0
    lst = 0
    sb_at, clr_at = 1, 0
    cil, chead, cpace, clead, cy0, cyp = 0, 9, 1.0, 5, 42, 4
    rts = 0
    refresh = 0
    tdepth = 1
    cpf = 1
    x_late = 0

def zipl(*streams):
    out = []; n = max(len(x) for x in streams)
    for i in range(n):
        for x in streams:
            if i < len(x): out.append(x[i])
    return out

class K(Asm):
    def __init__(s, stamps, cfg):
        super().__init__(); s.stamps = stamps; s.cfg = cfg; s.ool = []; s.nlab = 0; s.wn = 0
    def lab(s, p): s.nlab += 1; return f'L{p}{s.nlab}'
    def srd(s, r, ptr, size):
        s(f's_mov_b32 s{r}, s{ptr}\ns_mov_b32 s{r+1}, s{ptr+1}\ns_mov_b32 s{r+2}, {size}\ns_mov_b32 s{r+3}, 0x20000')
    def stamp(s, idx, real=False):
        if s.cfg.x_pad and idx == s.cfg.x_pad[0]:
            l = s.lab('pad'); s.wait_lg(0); s.label(l)
            s.raw(f'    s_memrealtime s[98:99]\n    s_waitcnt lgkmcnt(0)\n    s_sub_u32 s98, s98, s101\n    s_cmp_lt_u32 s98, {s.cfg.x_pad[1]*100}\n    s_cbranch_scc1 {l}')
        if idx in s.cfg.lst2:
            r = s.cfg.lregs[list(s.cfg.lst2).index(idx)]
            s.raw(f'    s_memtime s[{r}:{r+1}]')
            if idx == s.cfg.lst2[-1]:
                s.wait_lg(0, force=True)
                for i, k in enumerate(s.cfg.lst2): s(f'v_writelane_b32 v3, s{s.cfg.lregs[i]}, {k}')
            return
        if not s.stamps or (s.stamps is not True and idx not in (31, 61) and (s.stamps == 'span' or idx not in s.stamps)): return
        s(f's_mem{"real" if real else ""}time s[98:99]'); s.wait_lg(0)
        s(f'v_writelane_b32 v3, s98, {idx}')
        rt = {3: 50, 10: 51, 11: 52, 15: 53, 22: 54, 25: 55, 28: 56}
        if s.cfg.rts and idx in rt:
            s('s_memrealtime s[98:99]'); s.wait_lg(0); s(f'v_writelane_b32 v3, s98, {rt[idx]}')
    def dump_stamps(s):
        if not s.stamps: return
        s.stamp(61, True)
        s(f's_lshl_b32 s98, s2, 3\ns_add_u32 s98, s98, s{sW}\ns_lshl_b32 s98, s98, 8\ns_add_u32 s98, s98, {TS}')
        s(f'v_lshlrev_b32 v4, 2, v{vL}\nbuffer_store_dword v3, v4, {sr(rWS)}, s98 offen')
    def cond(s, cmp_skip, body, drain=True, flush=True):
        l = s.lab('c')
        s(cmp_skip)
        if flush: s.flush_hazards()
        s(f's_cbranch_scc1 {l}')
        vm, lg, hist = list(s.vm), list(s.lg), list(s.hist)
        body()
        if drain: s._wait(lg=0)
        if flush: s.flush_hazards()
        else: s.hist = hist
        s.label(l)
        s.vm, s.lg = vm, lg
    def xstore(s, lines):
        slow, back = s.lab('xs'), s.lab('xb')
        s(f's_cmp_eq_u32 s{sFAST}, 0')
        for l in lines:
            ins = Ins(l); t = ins.rd | ins.wr
            hs = [x[0] for x in s.vm if x[1] & t] + [x[0] for x in s.lg if x[1] & t]
            if hs: s.wait(*hs)
        s(f's_cbranch_scc1 {slow}')
        for l in lines: s(l)
        s.label(back)
        s.ool.append(f'{slow}:\n    s_nop 7\n    s_nop 3\n' + ''.join(f'    {l} sc1\n' for l in lines) + f'    s_branch {back}\n')
    def feed1(s):
        n = s.wn; s.wn += 1
        if n >= s.cfg.x_nof: return
        if n < 14: reg, sb, i = vW1 + 4*n, sA1, n
        elif n < 28: reg, sb, i = vW2 + 4*(n-14), sA2, n - 14
        elif n < 56: reg, sb, i = vW3 + 4*(n-28), sA3, n - 28
        elif n < 70: reg, sb, i = vW4A + 4*(n-56), sA4, n - 56
        else: reg, sb, i = vW4B + 4*(n-70), sA4, n - 56
        if i % 4 == 0 and i: s(f's_add_u32 s{sb}, s{sb}, 4096')
        s(f'buffer_load_dwordx4 {vr(reg)}, v{vL16}, {sr(rG)}, s{sb} offen offset:{(i % 4) * 1024}')
    def feed(s, upto, depth=None):
        depth = depth or s.cfg.depth
        while s.wn < upto:
            s.wait_vm(depth - 1); s.feed1()
    def spread(s, upto, slots, first=0):
        n = max(0, upto - s.wn); out = [lambda: None] * slots
        pos = [first + (k * (slots - first)) // n for k in range(n)] if n else []
        for p in set(pos):
            out[p] = (lambda c=pos.count(p): [s.feed1() for _ in range(c)])
        return out
    def pin(s, k):
        if k is None: return
        s.raw(f'    .p2align {s.cfg.pal}')
        for i in range(k): s('s_nop 0')
    def fair(s, n, k):
        if k and n % k == 0: s('s_setprio 1')
        if k and n % k == k - 1: s('s_setprio 0')
    def run(s, l):
        for f in l: f()
    def pl(s, vdst, vaddr, soff): return f'buffer_load_dword v{vdst}, v{vaddr}, {sr(rWS)}, {soff} offen sc1' if vaddr is not None else f'buffer_load_dword v{vdst}, off, {sr(rWS)}, {soff} sc1'
    def poll_issue(s, vdst, vaddr, soff): return s(s.pl(vdst, vaddr, soff))
    def poll_check(s, vdst, vaddr, soff, sleep=0):
        retry, back = s.lab('pr'), s.lab('pb')
        s(f'v_subrev_u32 v{vdst}, s{sTAG}, v{vdst}\nv_cmp_lt_u32 vcc, 15, v{vdst}\ns_mov_b32 s97, 0\ns_cbranch_vccnz {retry}')
        s.label(back)
        s.ool.append(f'''{retry}:
''' + (f'    s_sleep {sleep}\n' if sleep else '') + f'''    {s.pl(vdst, vaddr, soff)}
    s_add_u32 s97, s97, 1
    s_cmp_gt_u32 s97, {SPIN}
    s_waitcnt vmcnt(0)
    s_cbranch_scc1 {back}
    v_subrev_u32 v{vdst}, s{sTAG}, v{vdst}
    v_cmp_lt_u32 vcc, 15, v{vdst}
    s_nop 1
    s_cbranch_vccnz {retry}
    s_branch {back}
''')
    def poll(s, vdst, vaddr, soff, lo=None, hi=None, sleep=0):
        if lo is not None: s(f's_mov_b32 exec_lo, {lo}\ns_mov_b32 exec_hi, {hi}')
        s.poll_issue(vdst, vaddr, soff); s.poll_check(vdst, vaddr, soff, sleep)
        if lo is not None: s('s_mov_b64 exec, -1')
    def flag(s, soff, vtmp=4):
        s(f'v_mov_b32 v{vtmp}, s{sTAG}')
        s.wait_vm(0, force=True)
        s('s_mov_b64 exec, 1')
        s.xstore([f'buffer_store_dword v{vtmp}, off, {sr(rWS)}, s{soff}'])
        s('s_mov_b64 exec, -1')
    def gflag(s, wave, soff, sval, vtmp, drain=False, flush=True):
        s.cond(f's_cmp_lg_u32 s{sW}, {wave}', drain=drain, flush=flush, body=lambda: s(f'v_mov_b32 v{vtmp}, s{sval}\ns_mov_b64 exec, 1\nbuffer_store_dword v{vtmp}, off, {sr(rWS)}, s{soff} sc1\ns_mov_b64 exec, -1'))
    def gflag8(s, wave, soff, sval, vtmp, flush=True):
        s.cond(f's_cmp_lg_u32 s{sW}, {wave}', drain=False, flush=flush, body=lambda: s(f'v_mov_b32 v{vtmp}, s{sval}\nv_mul_u32_u24 v{vtmp+1}, {FCP}, v{vL}\ns_mov_b64 exec, 0xff\nbuffer_store_dword v{vtmp}, v{vtmp+1}, {sr(rWS)}, s{soff} offen sc1\ns_mov_b64 exec, -1'))
    def dma(s, a, b, ssrc, ldsbase):
        h = None
        for i in range(a, b):
            if i % 4 == 0:
                if i: s(f's_add_u32 s{ssrc}, s{ssrc}, 4096')
                s(f's_mov_b32 m0, {ldsbase + i * 1024}')
            h = s(f'buffer_load_dwordx4 v{vL16}, {sr(rWS)}, s{ssrc} offen offset:{(i % 4) * 1024} sc1 lds')
        return h
    def fetch_issue(s, blocks):
        t = ''.join(f's_add_u32 m0, s{a}, {b}\ns_add_u32 s68, s{c_}, {d}\nbuffer_load_dwordx4 v{vL16}, {sr(rWS)}, s68 offen sc1 lds\n' for a, b, c_, d in blocks)
        return s(t), t
    def fetch_check(s, h, t, va, off, n, T, m0=None):
        rd = [f'ds_read_b32 v{T+j}, v{va} offset:{off + 7168*j}' for j in range(n)]
        ck = [f'v_and_b32 v{T}, v{T}, v{T+1}', f'v_and_b32 v{T+2}, v{T+2}, v{T+3}', f'v_and_b32 v{T}, 1, v{T}', f'v_and_b32 v{T}, v{T}, v{T+2}', f'v_cmp_eq_u32 vcc, 0, v{T}']
        retry, back = s.lab('fr'), s.lab('fb')
        def part1(): s.wait(h); [s(l) for l in rd]
        def part2():
            for l in ck: s(l)
            s(f's_mov_b32 s97, 0\ns_cbranch_vccnz {retry}'); s.label(back)
            s.ool.append(f'{retry}:\n' + ''.join(f'    {l}\n' for l in t.strip().split('\n')) + (f'    {m0}\n' if m0 else '') + f'    s_add_u32 s97, s97, 1\n    s_cmp_gt_u32 s97, {SPIN}\n    s_waitcnt vmcnt(0)\n    s_cbranch_scc1 {back}\n'
                         + ''.join(f'    {l}\n' for l in rd) + '    s_waitcnt lgkmcnt(0)\n' + ''.join(f'    {l}\n' for l in ck) + f'    s_nop 1\n    s_cbranch_vccnz {retry}\n    s_branch {back}\n')
        return part1, part2
    def pos(s, d, src, t):
        s(f'''v_and_b32 v{t}, 3, v{src}
        v_lshlrev_b32 v{t}, 2, v{t}
        v_and_or_b32 v{t}, v{src}, -16, v{t}
        v_bfe_u32 v{d}, v{src}, 2, 2
        v_or_b32 v{d}, v{d}, v{t}
        v_lshlrev_b32 v{d}, 4, v{d}''')

    def W(s, dst, k, base=None, op='add_u32'):
        src = f'v{76 + k//2}'; sel = f'WORD_{k&1}'
        if base is None: s(f'v_mov_b32_sdwa v{dst}, {src} dst_sel:DWORD dst_unused:UNUSED_PAD src0_sel:{sel}')
        else: s(f'v_{op}_sdwa v{dst}, {base}, {src} dst_sel:DWORD dst_unused:UNUSED_PAD src0_sel:DWORD src1_sel:{sel}')
    def entry(s):
        s('s_cmp_ge_u32 s2, 256\ns_cbranch_scc1 Lend')
        if s.stamps or s.cfg.x_pad: s('s_memtime s[100:101]\ns_memrealtime s[96:97]\nv_mov_b32 v3, 0'); s.wait_lg(0); s('s_mov_b32 s101, s96')
        s(f"""s_load_dwordx16 s[4:19], s[0:1], 0
        s_load_dwordx8 s[20:27], s[0:1], 64
        s_load_dwordx2 s[28:29], s[0:1], 96
        s_load_dwordx2 s[30:31], s[0:1], 112""")
        s('s_getpc_b64 s[94:95]')
        s.label('Lpc')
        s(f"""s_lshr_b32 s{sI}, s2, 3
        v_lshrrev_b32 v4, 6, v0
        v_and_b32 v{vL}, 63, v0""")
        s.cpf(0)
        s(f"""v_readfirstlane_b32 s{sW}, v4
        v_lshlrev_b32 v{vL16}, 4, v{vL}
        s_add_u32 s94, s94, @TAB_OFF@
        s_addc_u32 s95, s95, 0
        s_lshl_b32 s69, s2, 6
        s_add_u32 s69, s69, {2048 + 4224}
        v_lshl_add_u32 v5, v4, 3, s69
        global_load_dwordx2 v[84:85], v5, s[94:95]
        global_load_dwordx4 v[80:83], v{vL16}, s[94:95] offset:1024
        global_load_dwordx4 v[76:79], v{vL16}, s[94:95]
        s_lshl3_add_u32 s68, s2, s{sW}
        v_and_b32 v6, 255, v0
        v_lshlrev_b32 v18, 4, v6
        global_load_dwordx4 v[66:69], v18, s[94:95] offset:2048
        global_load_ushort v70, v18, s[94:95] offset:2064
        s_and_b32 s{sXCD}, s2, 7
        s_mul_i32 s{sP}, s{sXCD}, 28
        s_add_u32 s{sP}, s{sP}, s{sI}
        s_min_u32 s{sP}, s{sP}, 223
        s_lshl_b32 s70, s{sP}, 10
        v_lshl_add_u32 v64, v0, 1, s70
        s_mul_i32 s73, s68, 896
        s_mov_b32 s{rX+2}, 896
        s_mov_b32 s{rX+3}, 0x20000
        s_mov_b32 s{rW+3}, 0x20000
        s_mov_b32 s{rWS+2}, {WS_BYTES}
        s_mov_b32 s{rWS+3}, 0x20000
        s_lshl_b32 s93, s{sW}, 11
        s_add_u32 s93, s93, {L_PK}
        s_lshl_b32 s71, s{sP}, 2
        s_mov_b32 s72, {EP}
        s_add_u32 s{rX}, s{sX}, s73
        s_addc_u32 s{rX+1}, s{sX+1}, 0
        buffer_load_dwordx4 v[28:31], v{vL16}, {sr(rX)}, 0 offen""")
        if s.stamps: s('v_writelane_b32 v3, s100, 0\nv_writelane_b32 v3, s96, 60')
        s.stamp(1)
        s(f"""s_load_dword s{sTAG}, {sr(sWS,2)}, s72
        s_load_dword s{sLDT}, {sr(sDT,2)}, s71
        s_load_dword s{sD1}, {sr(sDS,2)}, s71
        global_load_ushort v60, v64, {sr(sLA,2)}
        global_load_ushort v61, v64, {sr(sAI,2)}
        global_load_ushort v62, v64, {sr(sCR,2)}
        global_load_ushort v63, v64, {sr(sCI,2)}
        v_readfirstlane_b32 s90, v84
        v_readfirstlane_b32 s91, v85
        s_lshr_b32 s43, s90, 24
        s_and_b32 s90, s90, 0xffffff
        s_bitcmp1_b32 s43, 0
        s_cselect_b64 s[20:21], s[22:23], s[20:21]
        s_cselect_b64 s[24:25], s[26:27], s[24:25]
        s_cmp_eq_u32 s43, 2
        s_cselect_b64 vcc, -1, 0
        s_movk_i32 s89, 896
        s_cmovk_i32 s89, 3584
        s_cmp_lt_u32 s43, 2
        s_cselect_b64 {sr(rW,2)}, s[20:21], s[24:25]
        s_cselect_b32 s{rW+2}, {448*896}, 0
        s_cselect_b64 s[72:73], -1, 0
        s_lshl4_add_u32 s89, s89, s90
        s_mov_b32 s{rWS}, s{sWS}
        s_mov_b32 s{rWS+1}, s{sWS+1}
        v_cndmask_b32_sdwa v23, v81, v82, vcc dst_sel:DWORD dst_unused:UNUSED_PAD src0_sel:WORD_1 src1_sel:WORD_0""")
        if s.cfg.dma_at >= 0: s.pack_dma()

    def cpf(s, once):
        l = s.lab('cp')
        s(f'v_lshl_add_u32 v7, v0, 8, s2' if once else f'v_lshl_add_u32 v7, v0, 5, s{sI}')
        s(f"""v_lshlrev_b32 v7, 7, v7
        v_cmp_gt_u32 vcc, @CODE_BYTES@, v7
        s_and_saveexec_b64 s[70:71], vcc
        s_cbranch_execz {l}""")
        s.raw('    global_load_dword v255, v7, s[94:95]')
        s.label(l)
        s('s_mov_b64 exec, -1')
    def clear(s):
        for i in range(4): s(f'v_mov_b32 v{72+i}, -1')
        s.hstore(72)
    def hstore(s, r): return s(f'buffer_store_dwordx4 {vr(r)}, v12, {sr(rWS)}, s{sHD} offen sc1')

    def setup(s):
        s.comment('offsets and lane addresses (in the shadow of the first loads)')
        assert L_U % 512 == 0
        s(f"""s_mov_b64 vcc, s[72:73]
        s_lshr_b32 s{sPD1}, s91, 16
        s_lshl_b32 s{sPD1}, s{sPD1}, 10
        v_cndmask_b32_sdwa v24, v81, v80, vcc dst_sel:DWORD dst_unused:UNUSED_PAD src0_sel:WORD_0 src1_sel:WORD_1
        s_and_b32 s{sPD0}, s91, 0xffff
        s_lshl_b32 s{sPD0}, s{sPD0}, 10
        v_mul_u32_u24 v71, 1171, v0
        s_lshl_b32 s70, s{sW}, 7
        v_add_u32 v24, s93, v24""")
        s.W(27, 13, 's70')
        s(f"""s_mul_i32 s70, s{sW}, {LNP}
        v_lshrrev_b32 v71, 16, v71
        v_add_u32 v26, s70, v{vL16}
        s_mul_i32 s70, s2, 896
        s_lshl_b32 s71, s{sW}, 10
        v_mul_u32_u24 v71, {229376 - 896}, v71
        s_add_u32 s70, s70, s71
        s_add_u32 s{sUO}, s70, {GX}
        v_add_u32 v71, v71, v{vL16}""")
        s.W(12, 5, 4, 'lshlrev_b32')
    def setup_b(s):
        s(f"""s_lshl_b32 s71, s{sW}, 10
        s_lshl4_add_u32 s{sFO}, s2, {FA}
        s_add_u32 s{sUM}, s71, {L_U + 1024}
        v_add_u32 v13, s71, v{vL16}
        s_lshl_b32 s70, s{sW}, 13
        v_add_u32 v14, s70, v{vL16}
        s_lshl_b32 s70, s{sW}, 9
        s_mul_i32 s72, s{sXCD}, {FCP}
        s_add_u32 s70, s70, s72
        s_add_u32 s70, s70, {FA}
        v_and_b32 v17, 0x1f0, v{vL16}
        v_add_u32 v17, s70, v17
        s_mul_i32 s{sKG}, s{sW}, {16*KGP}
        s_add_u32 s{sKG}, s{sKG}, {L_KG}""")
        s.W(20, 8, f's{sKG}'); s.W(10, 3); s.W(11, 4); s.W(15, 6, f's{sUM}')
        s(f"""s_and_b32 s70, s{sW}, 3
        s_lshr_b32 s71, s{sW}, 2
        s_mul_i32 s73, s71, {KECH}
        s_add_u32 s73, s73, {L_KE}
        v_add_u32 v18, s73, v18
        s_lshl_b32 s72, s70, 7
        s_sub_u32 s72, s73, s72
        s_add_u32 s72, s72, {4*(1015 - 144) - 28}""")
        s.W(4, 0, 's72')
        s(f"""s_lshl_b32 s72, s70, 8
        s_sub_u32 s72, {L_U}, s72
        v_xor_b32 v16, 16, v15""")
        s.W(8, 1, 's72'); s.W(9, 2, 's72')
        s(f"""s_xor_b32 s72, s70, s71
        s_and_b32 s72, s72, 1
        s_lshl_b32 s72, s72, 4
        v_subrev_u32 v5, 1024, v4
        v_subrev_u32 v6, 2048, v4
        v_subrev_u32 v7, 3072, v4
        v_xor_b32 v8, s72, v8
        v_xor_b32 v9, s72, v9
        s_lshl_b32 s72, s70, 2
        s_mul_i32 s70, s71, {KTSZ}
        s_add_u32 s70, s70, {L_KT}
        s_mov_b32 s73, {L_KE + 4096}""")
        s.W(19, 7, 's72', 'xor_b32'); s.W(88, 14, 's73')
        s(f"""v_mov_b32 v84, 0
        v_mov_b32 v85, 0
        v_mov_b32 v86, 0
        v_mov_b32 v87, 0
        v_add_u32 v19, s70, v19
        v_add_u32 v89, {L_U}, v{vL16}
        v_mov_b32 v90, s70
        ds_write_b128 v88, v[84:87]
        ds_write_b128 v89, v[84:87]
        ds_write_b128 v90, v[84:87] offset:{768*16}""")
        for t in range(9):
            s(f'v_add_u32_sdwa v{132+t}, s70, v{66+t//2} dst_sel:DWORD dst_unused:UNUSED_PAD src0_sel:DWORD src1_sel:WORD_{t&1}')
    def scalars(s):
        return f"""s_mov_b32 s{rG}, s{sWS}
        s_mov_b32 s{rG+1}, s{sWS+1}
        s_cmp_eq_u32 s{sW}, 7
        s_cselect_b32 s{rG+2}, 0, {WS_BYTES}
        s_mov_b32 s{rG+3}, 0x20000
        s_mul_i32 s{sHD}, s{sW}, 229376
        s_lshl_b32 s68, s{sP}, 7
        s_add_u32 s{sHD}, s{sHD}, s68
        s_add_u32 s{sHD}, s{sHD}, {X1}
        s_lshr_b32 s68, s{sI}, 2
        s_lshl3_add_u32 s{sTB}, s{sXCD}, s68
        s_and_b32 s{sQ}, s{sI}, 3
        s_lshr_b32 s{sCL}, s{sTB}, 1
        s_and_b32 s{sM}, s{sI}, 7
        s_mul_i32 s{sCT}, s{sQ}, 7
        s_add_u32 s{sCT}, s{sCT}, s{sW}
        s_mul_i32 s{sA1}, s{sCT}, {14*1024}
        s_add_u32 s{sA2}, s{sA1}, {W2P}
        s_mul_i32 s{sA3}, s{sM}, 7
        s_add_u32 s{sA3}, s{sA3}, s{sW}
        s_mul_i32 s{sA4}, s{sA3}, {28*1024}
        s_add_u32 s{sA3}, s{sA4}, {W3P}
        s_add_u32 s{sA4}, s{sA4}, {W4P}
        s_lshl3_add_u32 s{sUS}, s{sXCD}, s{sW}
        s_mul_i32 s{sUS}, s{sUS}, 28672
        s_lshl_b32 s68, s{sI}, 5
        s_add_u32 s{sUS}, s{sUS}, s68
        s_add_u32 s{sUS}, s{sUS}, {GX}
        s_lshl_b32 s{sSM}, s{sW}, 11
        s_add_u32 s{sSM}, s{sSM}, {SM}
        s_mov_b32 s{sFAST}, 0
        s_and_b32 s68, s43, 6
        s_cmp_eq_u32 s68, 2
        s_cselect_b32 s{rW+2}, {448*3584}, 0
        s_cselect_b32 s{sPACT}, {WS_BYTES}, 0"""
    def h2_addr(s):
        return f"""v_lshrrev_b32 v19, 3, v0
        v_and_b32 v20, 7, v0
        v_lshlrev_b32 v21, 9, v19
        v_lshl_add_u32 v21, v20, 4, v21
        s_andn2_b32 s70, 1, s{sQ}
        v_add_u32 v20, s70, v20
        v_mul_u32_u24 v22, 768, v19
        v_lshrrev_b32 v18, 2, v20
        v_lshl_add_u32 v22, v18, 8, v22
        v_and_b32 v18, 3, v20
        v_lshl_add_u32 v22, v18, 4, v22
        v_add_u32 v22, {L_HI}, v22
        s_mul_i32 s88, s{sTB}, 28672
        s_add_u32 s88, s88, {X1}
        v_add_u32 v26, {FB - FA}, v17"""

    def pack_early(s):
        s.wait(s.h_pack)
        s(f"""ds_read_b64_tr_b16 v[52:53], v24
        ds_read_b64_tr_b16 v[54:55], v24 offset:256
        ds_read_b64_tr_b16 v[56:57], v24 offset:32
        ds_read_b64_tr_b16 v[58:59], v24 offset:288
        buffer_store_dwordx4 v[52:55], v{vL16}, {sr(rWS)}, s{sPD0} offen sc1
        buffer_store_dwordx4 v[56:59], v{vL16}, {sr(rWS)}, s{sPD1} offen sc1""")

    def ln(s):
        s.comment('layernorm of one token per wave')
        s('v_mov_b32 v51, 0x3f803f80\nv_dot2_f32_bf16 v48, v28, v51, 0')
        s.stamp(2)
        s('v_dot2_f32_bf16 v49, v28, v28, 0')
        for i in (29, 30, 31): s(f'v_dot2_f32_bf16 v48, v{i}, v51, v48\nv_dot2_f32_bf16 v49, v{i}, v{i}, v49')
        un = []
        for i in range(4): un += [f'v_lshlrev_b32 v{32+2*i}, 16, v{28+i}', f'v_and_b32 v{33+2*i}, 0xffff0000, v{28+i}']
        s(un.pop()); s(un.pop()); s(f'v_mov_b32 v50, {INVD}')
        for m in ('row_shr:1', 'row_shr:2', 'row_shr:4', 'row_shr:8', 'row_bcast:15 row_mask:0xa', 'row_bcast:31 row_mask:0xc'):
            s(f'v_add_f32_dpp v48, v48, v48 {m}\nv_add_f32_dpp v49, v49, v49 {m}')
            s(un.pop())
        s(f"""v_readlane_b32 s70, v48, 63
        v_readlane_b32 s71, v49, 63
        s_lshl_b32 s72, s{sW}, 3
        v_mov_b32 v65, s72
        v_mul_f32 v49, s70, v50
        v_mul_f32 v48, s71, v50
        v_fma_f32 v48, -v49, v49, v48
        v_max_f32 v48, 0, v48
        v_add_f32 v48, {EPS}, v48
        v_rsq_f32 v51, v48
        s_mov_b32 exec_hi, 0x00ffffff
        v_mul_f32 v50, -v49, v51""")
        for i in range(4): s(f'v_pk_fma_f32 {vr(40+2*i,2)}, v[50:51], {vr(32+2*i,2)}, v[50:51] op_sel:[1,0,0] op_sel_hi:[1,1,0]')
        s('s_mov_b32 s70, 0x0d800000')
        for i in range(4): s(f'v_pk_mul_f32 {vr(40+2*i,2)}, {vr(40+2*i,2)}, s[70:71] op_sel_hi:[1,0]')
        for i in range(4): s(f'v_cvt_pk_bf16_f32 v{28+i}, v{40+2*i}, v{41+2*i}')
        s(f"""ds_write_b128 v26, v[28:31] offset:{L_LN}
        v_mul_f32 v48, v48, v51
        s_mov_b64 exec, 1
        ds_write_b64 v65, v[48:49] offset:{L_SM}
        s_mov_b64 exec, -1""")
        s.barrier()
        s(f"""ds_read_b64_tr_b16 v[48:49], v27 offset:{L_LN}
        ds_read_b64_tr_b16 v[50:51], v27 offset:{L_LN + 4*LNP}
        s_lshr_b32 s{sTAG}, s{sTAG}, 4
        s_mul_i32 s{sTAG}, s{sTAG}, 1664525
        s_add_u32 s{sTAG}, s{sTAG}, 1013904223
        s_lshl_b32 s{sTAG}, s{sTAG}, 4
        s_and_b32 s78, s{sTAG}, 0x70000000
        s_or_b32 s78, s78, 0x6000
        s_lshl_b32 s79, s{sTAG}, 3
        s_and_b32 s79, s79, 0x70000000
        s_or_b32 s79, s79, 0x1000
        s_lshl_b32 s80, s{sTAG}, 8
        s_and_b32 s80, s80, 0x70007000
        s_lshl_b32 s81, s{sTAG}, 5
        s_and_b32 s81, s81, 0x70007000
        v_mov_b32 v46, 0x8fff8ffe
        v_mov_b32 v47, 0x8fff8fff
        v_and_or_b32 v48, v48, v46, s78
        v_and_or_b32 v49, v49, v47, s79
        v_and_or_b32 v50, v50, v47, s80
        v_and_or_b32 v51, v51, v47, s81""")
        s.cond(f's_cmp_lg_u32 s{sW}, 7', lambda: s(f's_mov_b64 exec, 15\nds_read_b128 v[48:51], v{vL16} offset:{L_SM}\nv_mov_b32 v71, v{vL16}\ns_lshl_b32 s{sUO}, s2, 6\ns_add_u32 s{sUO}, s{sUO}, {SM}'), flush=False)
        s(f'buffer_store_dwordx4 v[48:51], v71, {sr(rWS)}, s{sUO} offen sc1\ns_mov_b64 exec, -1')
        s.stamp(3)
        s(f's_getreg_b32 s70, hwreg(HW_REG_XCC_ID, 0, 4)\ns_add_u32 s{sTX}, s70, s{sTAG}')
        s.wait(*[h for h, r in s.vm if r])
        s.stamp(40)
        s.cond(f's_cmp_ge_u32 s43, 2', s.pack_early)

    def pack_dma(s):
        s(f's_mov_b32 m0, s93\nbuffer_load_dwordx4 v23, {sr(rW)}, s90 offen lds\ns_add_u32 m0, s93, 1024')
        s.h_pack = s(f'buffer_load_dwordx4 v23, {sr(rW)}, s89 offen lds')
    def publish_a(s, conv=True):
        s.wait_vm(0, force=True)
        s('s_barrier')
        s.stamp(5)
        s.gflag8(0, sFO, sTX, 118)
        s(f's_lshl4_add_u32 s{sFO}, s2, {FB}')
        if s.cfg.dma_at == 1 or not conv: s.pack_dma(); s(f's_mov_b32 m0, s{sKG}')
    def pack_late_store(s):
        P = 240
        s.wait(s.h_pack)
        for e in range(4): s(f'ds_read_b64_tr_b16 {vr(P+2*e,2)}, v24 offset:{1024*(e>>1) + 256*(e&1)}')
        def colsum():
            s(f's_mov_b32 vcc_lo, 0xf0f00f0f\ns_mov_b32 vcc_hi, 0xf0f00f0f\nv_mov_b32 v{P+12}, 0x3f803f80')
            for i in range(4): s(f'v_cndmask_b32 v{P+8+i}, 0, v{P+12}, vcc')
            s(f'''s_lshr_b32 s72, s{sPD0}, 4
            s_add_u32 s72, s72, {CSP - W3P // 16}
            v_mfma_f32_16x16x32_bf16 {vr(P+12)}, {vr(P+8)}, {vr(P)}, 0
            v_mfma_f32_16x16x32_bf16 {vr(P+12)}, {vr(P+8)}, {vr(P+4)}, {vr(P+12)}
            v_lshlrev_b32 v{P+8}, 2, v{vL}
            s_mov_b32 exec_hi, 0
            buffer_store_dword v{P+12}, v{P+8}, {sr(rWS)}, s72 offen sc1
            s_mov_b32 exec_hi, -1''')
        s.cond('s_cmp_lg_u32 s43, 2', colsum, drain=False)
        s(f"""s_mov_b32 s{rW}, s{sWS}
        s_mov_b32 s{rW+1}, s{sWS+1}
        s_mov_b32 s{rW+2}, s{sPACT}
        buffer_store_dwordx4 {vr(P)}, v{vL16}, {sr(rW)}, s{sPD0} offen sc1""")
        s.h_pst = s(f'buffer_store_dwordx4 {vr(P+4)}, v{vL16}, {sr(rW)}, s{sPD1} offen sc1')

    def cm(s, d, a, b, t):
        return [f'v_pk_mul_f32 {vr(t,2)}, {vr(a,2)}, {vr(b,2)} op_sel_hi:[1,0]',
                f'v_pk_fma_f32 {vr(d,2)}, {vr(a,2)}, {vr(b,2)}, {vr(t,2)} op_sel:[1,1,0] op_sel_hi:[0,1,1] neg_lo:[1,0,0]']
    def kgen(s):
        c = s.cfg
        s.pin(c.pins[0])
        assert c.fa_at <= c.poll_at <= c.chk_at
        Z = lambda k: 74 + 2 * k
        Z128, ZD, R0, R1, TT = 92, 94, 112, 114, 116
        CH = [(96, 98, 100, 102), (104, 106, 108, 110)]
        BF, AF, ACC = 156, (172, 188, 204), 220
        s(f"""s_lshl_b32 s70, s{sLDT}, 16
        s_and_b32 s71, s{sLDT}, 0xffff0000
        s_cmp_lt_u32 s{sW}, 4
        s_cselect_b32 s72, s70, s71
        s_mov_b32 s70, {LOG2E}
        s_mov_b32 s71, {INV2PI}
        v_mov_b32 v64, s72
        v_lshlrev_b32 v60, 16, v60
        v_mul_f32 v64, s70, v64
        v_mul_f32 v60, s70, v60
        v_exp_f32 v64, v64
        v_exp_f32 v60, v60
        v_lshlrev_b32 v61, 16, v61
        v_lshlrev_b32 v62, 16, v62
        v_lshlrev_b32 v63, 16, v63
        v_cvt_pk_bf16_f32 v64, v64, v60
        v_and_b32 v60, 0xffff0000, v64
        v_lshlrev_b32 v64, 16, v64
        v_pk_mul_f32 v[60:61], v[60:61], v[64:65] op_sel_hi:[1,0]
        v_add_f32 v64, v64, v64
        v_pk_mul_f32 v[60:61], v[60:61], s[70:71]
        v_pk_mul_f32 {vr(R0,2)}, v[62:63], v[64:65] op_sel_hi:[1,0]
        s_mov_b32 m0, s{sKG}
        s_mov_b32 s70, 0x41000000
        s_mov_b32 s71, 0x43000000
        v_pk_mul_f32 v[62:63], v[60:61], s[70:71] op_sel_hi:[1,0]
        v_pk_mul_f32 v[64:65], s[70:71], v[60:61] op_sel:[1,0]
        s_lshl_b32 s{sD0}, s{sD1}, 16
        s_and_b32 s{sD1}, s{sD1}, 0xffff0000""")
        for r in (62, 64, 60): s(f'v_exp_f32 v{r}, -v{r}\nv_fract_f32 v{r+1}, v{r+1}')
        for r, d in ((62, Z(8)), (64, Z128), (60, Z(1))): s(f'v_cos_f32 v{d}, v{r+1}\nv_sin_f32 v{d+1}, v{r+1}')
        for r, d in ((62, Z(8)), (64, Z128), (60, Z(1))): s(f'v_pk_mul_f32 {vr(d,2)}, {vr(d,2)}, {vr(r,2)} op_sel_hi:[1,0]')
        s.stamp(4)
        def chain(st, rows, start, mul, neg=False):
            a, b, t, pk = CH[st]; out = []; cur, nxt = start, a
            for i, row in enumerate(rows):
                cc = s.cm(nxt, cur, mul, t) if i < len(rows) - 1 else []
                out += cc[:1] + [f'v_cvt_pk_bf16_f32 v{pk + (i&1)}, v{cur}, {"-" if neg else ""}v{cur+1}'] + cc[1:] + [f'ds_write_addtid_b32 v{pk + (i&1)} offset:{row*KGP}']
                cur, nxt = nxt, (b if nxt == a else a)
            return out
        def rd(dst):
            for ks in range(4): s(f'ds_read_b128 {vr(dst+4*ks)}, v20 offset:{64*ks}')
        E = lambda l: [s(x) for x in l]
        zz = zipl if c.two else (lambda *a: sum(a, []))
        uld = f'buffer_load_dwordx4 v[120:123], v10, {sr(rWS)}, s{sUS} offen sc1'
        uck = [f'v_xor_b32 v{120+i}, s{78+i}, v{120+i}' for i in range(4)] + ['v_or3_b32 v119, v120, v121, v122', 'v_or_b32 v119, v119, v123', 'v_and_b32 v119, 0x70007000, v119', 'v_cmp_ne_u32 vcc, 0, v119']
        def hook(k):
            if c.fa_at == k: s.publish_a()
            if c.u_at == k: s(uld)
            if c.poll_at == k: s.poll_issue(118, 17, 0)
            if c.dma_at == k and k > 1:
                s.pack_dma()
                if k < 4: s(f's_mov_b32 m0, s{sKG}')
            if c.uchk_at == k:
                retry, back = s.lab('ur'), s.lab('ub')
                for l in uck: s(l)
                s(f's_mov_b32 s97, 0\ns_cbranch_vccnz {retry}'); s.label(back)
                s.ool.append(f'{retry}:\n    {uld}\n    s_add_u32 s97, s97, 1\n    s_cmp_gt_u32 s97, {SPIN}\n    s_waitcnt vmcnt(0)\n    s_cbranch_scc1 {back}\n'
                             + ''.join(f'    {l}\n' for l in uck) + f'    s_nop 1\n    s_cbranch_vccnz {retry}\n    s_branch {back}\n')
                if s.stamps: s('v_writelane_b32 v3, s97, 44')
                for i in range(4): s(f'v_add_u32 v{120+i}, 0x32003200, v{120+i}')
                s(f'v_add_u32 v119, s{sUM}, v{vL16}\nds_write_b128 v119, v[120:123]')
                s.stamp(8)
            if c.chk_at == k:
                s.poll_check(118, 17, 0, c.fa_sleep)
                if s.stamps: s('v_writelane_b32 v3, s97, 58')
            if c.pst_at == k: s.pack_late_store()
        hook(0)
        if c.two:
            E(zipl(s.cm(ZD, Z(8), Z(8), 100), s.cm(R1, R0, Z(8), 108), s.cm(Z(2), Z(1), Z(1), TT)))
            E(zipl(chain(0, range(0, 16, 2), R0, ZD, True), chain(1, range(1, 16, 2), R1, ZD, True)))
            rd(BF)
            E(zipl(s.cm(ZD, Z128, Z128, 100), s.cm(R1, Z(8), Z128, 108), s.cm(Z(4), Z(2), Z(2), TT)))
            hook(1); s.stamp(35)
            E(zipl(chain(0, range(0, 16, 2), Z(8), ZD), chain(1, range(1, 16, 2), R1, ZD)))
        else:
            rc = chain(0, range(16), R0, Z(8), True)
            E(rc[:4*c.rsplit]); hook(0.5); E(rc[4*c.rsplit:])
            rd(BF)
            E(s.cm(Z(2), Z(1), Z(1), TT) + s.cm(Z(4), Z(2), Z(2), TT))
            hook(1); s.stamp(35)
            E(chain(0, range(16), Z(8), Z128))
        rd(AF[0])
        E(zipl(s.cm(Z(6), Z(4), Z(2), 100), s.cm(Z(3), Z(2), Z(1), 108), s.cm(Z(5), Z(4), Z(1), TT)))
        hook(2); s.stamp(36)
        E(zz(chain(0, range(0, 8), Z(4), Z128), chain(1, range(8, 12), Z(2), Z128) + chain(1, range(12, 16), Z(6), Z128), s.cm(Z(7), Z(6), Z(1), TT)))
        rd(AF[1])
        s.stamp(47); hook(3); s.stamp(37)
        E(zz(chain(0, (0, 1), Z(1), Z128) + chain(0, (4, 5), Z(5), Z128), chain(1, (2, 3), Z(3), Z128) + chain(1, (6, 7), Z(7), Z128)))
        s(f'v_mov_b32 v{TT}, 0x3f80\nds_write_addtid_b32 v{TT} offset:{8*KGP}')
        rd(AF[2])
        s.stamp(6); hook(4)
        if c.kbar: s('s_barrier')
        mf = lambda t, ks: f'v_mfma_f32_16x16x32_bf16 {vr(ACC+4*t)}, {vr(AF[t]+4*ks)}, {vr(BF+4*ks)}, {vr(ACC+4*t) if ks else 0}'
        wr = lambda t, r: f'ds_write_b32 v19, v{ACC+4*t+r} offset:{(16*t+r)*256}'
        if c.ktm:
            E([mf(0, k) for k in range(4)] + [mf(1, k) for k in range(4)] + zipl([mf(2, k) for k in range(4)], [wr(0, r) for r in range(4)]))
            E([wr(t, r) for t in (1, 2) for r in range(4)])
        else:
            E([mf(t, k) for k in range(4) for t in range(2)] + [mf(2, k) for k in range(4)] + [wr(t, r) for t in range(3) for r in range(4)])
        s.stamp(48); hook(5)
        s.barrier()
        s.stamp(7)
        hook(5.5)
        for t in range(9): s(f'ds_read_b128 {vr(28+4*t)}, v{132+t}')
        hook(6)
        if c.chk_at <= 5 and c.pst_at != 7: s.feed(c.f_kt, 63)
        for t in range(9):
            s(f'v_pk_add_f32 {vr(28+4*t,2)}, {vr(28+4*t,2)}, {vr(30+4*t,2)}')
            if t: s(f'v_add_f32 v{24+4*t}, v{24+4*t}, v{25+4*t}')
        s('v_add_f32 v60, v60, v61')
        for i in range(4): s(f'v_cvt_pk_bf16_f32 v{64+i}, v{28+8*i}, v{32+8*i}')
        s('ds_write_b128 v18, v[64:67]')
        for i in range(4): s(f'v_cvt_pk_bf16_f32 v{68+i}, v{32+8*i}, v{36+8*i}')
        s(f'ds_write_b128 v18, v[68:71] offset:{KEO}')
        s.stamp(9); hook(7)
        if c.chk_at <= 5 and c.pst_at == 7: s.feed(c.f_kt, 63)

    def conv(s):
        c = s.cfg
        A, B, ACC = 28, 60, 92
        def rd(kind, slot, e, j):
            if kind == 'B': return [f'ds_read_b128 {vr(B+4*slot)}, v{8+e} offset:{1024*j}']
            off = 16 * (1 - e) + 128 * (1 - (j & 1))
            return [f'ds_read2_b32 {vr(A+4*slot+2*h,2)}, v{4+(j>>1)} offset0:{off+2*h} offset1:{off+2*h+1}' for h in range(2)]
        M = []
        for k in range(8):
            p1 = [(k, j) for j in range(k + 1) if k + j <= 7]; p2 = [(j, k) for j in range(k) if k + j <= 7]
            M += [(0, a, b) for a, b in p1 + p2]
        if c.cil:
            for nu in range(0, 8, 2): M += [(1, a, b) for a, b in zipl([(a, nu + 1 - a) for a in list(range(1, nu + 1)) + [0, nu + 1]], [(a, nu - a) for a in range(nu + 1)])]
        else:
            for nu in range(8): M += [(1, a, nu - a) for a in range(nu + 1)]
        slot = {(0, j): j for j in range(8)}
        for k in range(4, 8): slot[1, 2*(k-4)] = k; slot[1, 2*(k-4) + 1] = 7 - k
        ops = []
        for e in range(2):
            for j in range(8):
                for kind, ix in (('A', 1), ('B', 2)):
                    need = min(n for n, m in enumerate(M) if m[0] == e and m[ix] == j)
                    early = -1 if e == 0 else max(n for n, m in enumerate(M) if m[0] == 0 and m[ix] == slot[1, j])
                    ops += [(need, early, t) for t in rd(kind, slot[e, j], e, j)]
        ops.sort(key=lambda o: o[0])
        D = {n: [] for n in range(-1, 73)}
        pos = -1.0
        for i, (need, early, t) in enumerate(ops):
            if i < c.chead: D[-1].append(t); continue
            pos = max(pos + c.cpace, early)
            pos = max(min(pos, need - c.clead), early)
            D[int(pos)].append(t)
        done = {nu: max(n for n, m in enumerate(M) if m[1] + m[2] == nu) for nu in range(8)}
        at = c.cy0
        for nu in range(8):
            at = max(at, done[nu] + 3)
            D[min(int(at), 72)].append(f'ds_write_b128 v13, {vr(ACC+4*nu)} offset:{L_Y + 8192*nu}')
            at += c.cyp
        s.pin(c.pins[1])
        s.barrier(); s.stamp(10)
        for t in D[-1]: s(t)
        ex = s.spread(c.f_conv, 66, 4)
        bs = ['ds_read_b64 v[140:141], v15', 'ds_read_b64 v[142:143], v16', '', '', '', '']
        for i in range(4): bs += [f'v_lshlrev_b32 v{132+2*i}, 16, v{140+i}', f'v_and_b32 v{133+2*i}, 0xffff0000, v{140+i}']
        for ch in range(2):
            bs += [f'v_add_f32 v{140+r}, s{sD0+ch}, v{124+2*r}' for r in range(4)]
            bs += [f'v_fma_f32 v{132+4*ch+r}, v{132+4*ch+r}, v{140+r}, v{125+2*r}' for r in range(4)]
        ha = s.h2_addr().split('\n')
        seen = set(); assert 3 <= c.hint_at <= 73
        for n, (e, a, b) in enumerate(M):
            nu = a + b
            s.fair(n, c.fc)
            s(f'v_mfma_f32_16x16x32_bf16 {vr(ACC+4*nu)}, {vr(A+4*slot[e, a])}, {vr(B+4*slot[e, b])}, {vr(ACC+4*nu) if nu in seen else 0}')
            seen.add(nu)
            for t in D[n]: s(t)
            if n == 1: s(f'buffer_load_dwordx4 v[124:127], v11, {sr(rWS)}, s{sSM} offen sc1')
            if n == 2: s(f'buffer_load_dwordx4 v[128:131], v11, {sr(rWS)}, s{sSM} offen offset:16 sc1\ns_lshl_b32 s68, s2, 6\ns_add_u32 s68, s68, {FH}')
            if c.pst_at == 8 and n == c.pslot: s.pack_late_store()
            if n == c.hint_at: s.gflag(7, 68, sTAG, 23, False, False)
            if ex: ex.pop(0)()
            if n >= 4 and ha: s(ha.pop(0))
            if n >= 40 and bs: s(bs.pop(0))
        if c.fc: s('s_setprio 0')
        for t in D[72]: s(t)
        assert not bs and not ha
        s.stamp(38)
        s.wait(s.h_pst); assert c.f_conv <= 24
        s.barrier(); s.stamp(11)
        for i in (0, 4, 1, 5, 2, 6, 3, 7): s(f'ds_read_b128 {vr(A+4*i)}, v14 offset:{L_Y + 1024*i}')
        fb = lambda: s.gflag8(6, sFO, sTAG, 23)
        if not c.fblate: fb()
        if c.hint_at == 72: s.gflag(7, 68, sTAG, 17, False)
        for i in (0, 4, 1, 5, 2, 6, 3, 7):
            ch = i >> 2
            for h in range(2): s(f'v_pk_add_f32 {vr(132+4*ch+2*h,2)}, {vr(132+4*ch+2*h,2)}, {vr(A+4*i+2*h,2)}')
        for r in range(4): s(f'v_cvt_pk_bf16_f32 v{140+r}, v{132+r}, v{136+r}')
        s('v_and_b32 v140, -2, v140')
        h = s.hstore(140)
        s.stamp(12)
        if c.fblate: fb()
        if c.hint_at == 73: s.gflag(7, 68, sTAG, 17, False)
        s.feed(c.f_hst, 63)
        return h

    def nonconv(s):
        c = s.cfg
        s(f'v_lshlrev_b32 v15, 7, v{vL}')
        if c.sb_at == 1: s.setup_b()
        s(f'v_lshlrev_b32 v15, 7, v{vL}')
        s(s.h2_addr())
        if c.dma_at == 0: s.pack_dma()
        s.publish_a(False)
        s.pack_late_store()
        s.poll(18, 17, 0, sleep=8)
        s.barrier(); s.stamp(8)
        s.gflag8(1, sFO, sTAG, 118)
        s(f's_add_u32 s70, s{sA2}, {14*1024 - 8192}')
        s.feed(c.f_hst, c.nc_depth)
        if c.warm: s(f'buffer_load_dword v119, v15, {sr(rG)}, s70 offen')
        s.wait_vm(0); s.stamp(10)
    def hint_wait(s):
        def body():
            s(f's_lshl_b32 s68, s2, 6\ns_add_u32 s68, s68, {FH - 32*64}\nv_mov_b32 v9, 0')
            s.poll(8, 9, 's68', 1, 0, sleep=4)
        s.cond(f's_cmp_lt_u32 s{sI}, 28', body)

    def h2(s, behind, mid=lambda: None, halo=False):
        ld = [f'buffer_load_dwordx4 {vr(8+4*j)}, v4, {sr(rWS)}, s88 offen offset:{128*j} sc1' for j in range(4)]
        chk = ['v_or3_b32 v24, v8, v12, v16', 'v_or_b32 v24, v24, v20', 'v_and_b32 v24, 1, v24', 'v_cmp_eq_u32 vcc, 1, v24']
        if s.cfg.hdel: s(f's_sleep {s.cfg.hdel}')
        for l in ld: s(l)
        s.poll_issue(25, 26, 0)
        mid()
        for l in chk: s(l)
        retry, back = s.lab('hr'), s.lab('hb')
        s(f's_mov_b32 s97, 0\ns_cbranch_vccnz {retry}')
        s.label(back)
        s.ool.append(f'{retry}:\n' + ('    s_mov_b64 exec, vcc\n' if s.cfg.hmask else '') + ''.join(f'    {l}\n' for l in ld) + f'    buffer_load_dword v25, v26, {sr(rWS)}, 0 offen sc1\n    s_add_u32 s97, s97, 1\n    s_cmp_gt_u32 s97, {SPIN}\n    s_waitcnt vmcnt(0)\n    s_cbranch_scc1 {back}\n'
                     + ''.join(f'    {l}\n' for l in chk) + f'    s_nop 1\n    s_cbranch_vccnz {retry}\n    s_branch {back}\n')
        if s.cfg.hmask: s('s_mov_b64 exec, -1')
        if s.stamps: s('v_writelane_b32 v3, s97, 59')
        s.stamp(14)
        if not s.cfg.hfeed: behind()
        if halo:
            s(f's_bitcmp1_b32 s{sQ}, 0\ns_cselect_b64 vcc, -1, 0')
            for i in range(2):
                for j in range(4): s(f'v_cndmask_b32 v{28+4*i+j}, v{10+4*j+i}, v{8+4*j+i}, vcc')
                s(f'ds_write_b128 v5, {vr(28+4*i)} offset:{64*i}')
        else:
            for j in range(4):
                for i in range(j): s(f'v_swap_b32 v{8+4*j+i}, v{8+4*i+j}')
            for i in range(4): s(f'ds_write_b128 v5, {vr(8+4*i)} offset:{64*i}')
        s.stamp(32)
        s.poll_check(25, 26, 0, 2)
        if s.cfg.hfeed: behind()
        if s.stamps: s('v_writelane_b32 v3, s97, 57')

    def stats_tail(s, a, extra, vadr, tab):
        s('s_mov_b64 exec, -1')
        for t in range(3): s(f'v_cndmask_b32 v{a+4*t}, v{a+4*t}, v{a+4*t+1}, s[92:93]')
        for t in range(3): s(f'v_cndmask_b32 v{a+4*t}, v{a+4*t}, v{a+4*t+2}, s[94:95]')
        for t in (1, 2):
            s(f'v_mov_b32_dpp v{a+4*t+1}, v{a+4*t+3} row_ror:{4*t}\nv_mov_b32_dpp v{a+4*t+2}, v{a+4*t} row_ror:{4*t}')
        for t in (1, 2):
            s(f'v_cndmask_b32 v{a+3}, v{a+3}, v{a+4*t+1}, {sr(76+2*t,2)}\nv_cndmask_b32 v{a}, v{a}, v{a+4*t+2}, {sr(76+2*t,2)}')
        s(f'''s_mov_b32 exec_lo, 0x77700777
        s_mov_b32 exec_hi, 0x70777707
        v_mul_f32 v{a+3}, s96, v{a+3}
        v_mul_f32 v{a}, s96, v{a}
        v_fma_f32 v{a}, -v{a+3}, v{a+3}, v{a}
        v_max_f32 v{a}, 0, v{a}''')
        if extra:
            s(f'''v_fmaak_f32 v{a+2}, v{a}, v49, {fh(1e-10)}
            v_add_f32 v51, {EPS}, v{a}
            v_rsq_f32 v{a+1}, v{a+2}
            v_rsq_f32 v51, v51
            v_mul_f32 v{a}, {fh(C1)}, v{a+1}
            v_mul_f32 v{a+4}, {fh(0.044715)}, v{a+1}
            v_mul_f32 v{a+2}, v{a+2}, v{a+1}
            v_mul_f32 v{a+1}, v{a+1}, v{a}
            v_mul_f32 v50, -v{a+3}, v51
            v_mul_f32 v{a+1}, v{a+1}, v{a+4}
            ds_write_b64 v{extra}, v[50:51] offset:{tab // 2}
            ds_write_b128 v{vadr}, {vr(a)} offset:{tab}''')
        else:
            s(f'''v_add_f32 v50, {EPS}, v{a}
            v_rsq_f32 v{a+1}, v50
            v_cvt_pk_bf16_f32 v{a}, -v{a+3}, -v{a+3}
            v_mul_f32 v{a+2}, {fh(C1)}, v{a+1}
            v_mul_f32 v{a+4}, {fh(0.044715)}, v{a+1}
            v_and_b32 v51, 0xffff0000, v{a}
            v_add_f32 v51, v51, v{a+3}
            v_mul_f32 v{a+3}, v50, v{a+1}
            v_mul_f32 v{a+1}, v{a+1}, v{a+2}
            v_and_b32 v{a+2}, 0xffffff7f, v{a+2}
            v_mul_f32 v{a+1}, v{a+1}, v{a+4}
            v_and_b32 v{a+3}, 0xffffff7f, v{a+3}
            v_and_b32 v{a+1}, 0xffffff7f, v{a+1}
            ds_write_b128 v{vadr}, {vr(a)} offset:{tab}
            v_cvt_pk_bf16_f32 v{a}, -v51, -v51
            ds_write_b128 v{vadr}, {vr(a)} offset:{tab + 512}''')
    def gelu_pk(s, acc, cs, st, n, t, out):
        P = range(0, n, 2); o = []
        if s.cfg.gsc:
            R = range(n)
            o += [f'v_fma_f32 v{acc+i}, -v{cs+i}, v{st+3}, v{acc+i}' for i in R]
            if s.cfg.gsc == 2: return o + s.gelu_pk2(acc, cs, st, n, t, out)[n//2:]
            o += [f'v_mul_f32 v{t+i}, v{acc+i}, v{acc+i}' for i in R] + [f'v_fma_f32 v{t+i}, v{t+i}, v{st+1}, v{st}' for i in R]
            o += [f'v_mul_f32 v{t+i}, v{t+i}, v{acc+i}' for i in R] + [f'v_exp_f32 v{t+i}, v{t+i}' for i in R]
            o += [f'v_fma_f32 v{t+i}, v{t+i}, v{st+2}, v{st+2}' for i in R] + [f'v_rcp_f32 v{t+i}, v{t+i}' for i in R]
            o += [f'v_mul_f32 v{t+i}, v{t+i}, v{acc+i}' for i in R] + [f'v_cvt_pk_bf16_f32 v{out+i//2}, v{t+i}, v{t+i+1}' for i in P]
            return o
        return s.gelu_pk2(acc, cs, st, n, t, out)
    def gelu_pk2(s, acc, cs, st, n, t, out):
        P = range(0, n, 2); o = []
        o += [f'v_pk_fma_f32 {vr(acc+i,2)}, {vr(st+2,2)}, {vr(cs+i,2)}, {vr(acc+i,2)} op_sel:[1,0,0] op_sel_hi:[1,1,1] neg_lo:[1,0,0] neg_hi:[1,0,0]' for i in P]
        o += [f'v_pk_mul_f32 {vr(t+i,2)}, {vr(acc+i,2)}, {vr(acc+i,2)}' for i in P]
        o += [f'v_pk_fma_f32 {vr(t+i,2)}, {vr(st,2)}, {vr(t+i,2)}, {vr(st,2)} op_sel:[1,0,0] op_sel_hi:[1,1,0]' for i in P]
        o += [f'v_pk_mul_f32 {vr(t+i,2)}, {vr(t+i,2)}, {vr(acc+i,2)}' for i in P]
        o += [f'v_exp_f32 v{t+i}, v{t+i}' for i in range(n)]
        o += [f'v_pk_fma_f32 {vr(t+i,2)}, {vr(t+i,2)}, {vr(st+2,2)}, {vr(st+2,2)} op_sel_hi:[1,0,0]' for i in P]
        o += [f'v_rcp_f32 v{t+i}, v{t+i}' for i in range(n)]
        o += [f'v_pk_mul_f32 {vr(t+i,2)}, {vr(t+i,2)}, {vr(acc+i,2)}' for i in P]
        o += [f'v_cvt_pk_bf16_f32 v{out+i//2}, v{t+i}, v{t+i+1}' for i in P]
        return o
    def gelu_sc(s, acc, cs, st, n, t, out, ex):
        steps = [lambda i: f'v_fma_f32 v{acc+i}, -v{cs+i}, v{st+3}, v{acc+i}', lambda i: f'v_mul_f32 v{t+i}, v{acc+i}, v{acc+i}',
                 lambda i: f'v_fma_f32 v{t+i}, v{t+i}, v{st+1}, v{st}', lambda i: f'v_mul_f32 v{t+i}, v{t+i}, v{acc+i}',
                 lambda i: f'v_exp_f32 v{t+i}, v{t+i}', lambda i: f'v_fma_f32 v{t+i}, v{t+i}, v{st+2}, v{st+2}',
                 lambda i: f'v_rcp_f32 v{t+i}, v{t+i}', lambda i: f'v_mul_f32 v{t+i}, v{t+i}, v{acc+i}',
                 lambda i: f'v_cvt_pk_bf16_f32 v{out+i//2}, v{t+i}, v{t+i+1}' if i % 2 == 0 else '']
        for f in steps:
            ex.pop(0)()
            for i in range(n): s(f(i))
    def gemm16(s, W, acc, vaddr, kstride, first_zero, ex):
        seq = [(ks, t) for ks in range(14) for t in range(2)]
        def rd(i): ks, t = seq[i]; s(f'ds_read_b128 {vr(8+4*(i%4))}, v{vaddr} offset:{ks*kstride + 256*t}')
        for i in range(3): rd(i)
        for i, (ks, t) in enumerate(seq):
            if i + 3 < 28: rd(i + 3)
            c = 0 if (first_zero and ks == 0) else vr(acc + 4*t)
            s.fair(i, s.cfg.fg)
            s(f'v_mfma_f32_16x16x32_bf16 {vr(acc+4*t)}, {vr(W+4*ks)}, {vr(8+4*(i%4))}, {c}')
            if ex: ex.pop(0)()
        if s.cfg.fg: s('s_setprio 0')
    def gemm32(s, jobs, vaddr, extra=None, nb=4, buf=8):
        seq = [(j, i) for j, job in enumerate(jobs) for i in range(job[1])]
        ex = list(extra or [])
        def rd(n): j, i = seq[n]; s(f'ds_read_b128 {vr(buf+4*(n%nb))}, v{vaddr} offset:{jobs[j][3] + 1024*i}')
        if s.cfg.prio: s('s_setprio 1')
        for n in range(nb - 1): rd(n)
        for n, (j, i) in enumerate(seq):
            W, nk, acc, _, after = jobs[j]
            if n + nb - 1 < len(seq): rd(n + nb - 1)
            s(f'v_mfma_f32_32x32x16_bf16 {vr(acc,16)}, {vr(W+4*i)}, {vr(buf+4*(n%nb))}, {vr(acc,16) if i else 0}')
            if ex: ex.pop(0)()
            if i == nk - 1 and after: ex += [lambda: None] * 3 + after
        s('s_setprio 0')
        s.run(ex)
    def g_pre(s):
        s.comment('G wave addresses (v6 GEMM1 B, v7 residual h, v50/v51 stats, masks)')
        s(f'''s_lshl_b32 s70, s{sQ}, 2
        s_lshr_b32 s71, 0x2213, s70
        s_and_b32 s71, s71, 15
        s_lshr_b32 s72, 0x0404, s70
        s_and_b32 s72, s72, 15
        v_and_b32 v44, 15, v{vL}
        v_lshrrev_b32 v45, 4, v{vL}
        v_add_u32 v46, s71, v44
        v_add_u32 v47, s72, v44''')
        s.pos(6, 46, 48)
        s(f'v_mul_u32_u24 v48, 768, v45\nv_add_u32 v6, v6, v48\nv_add_u32 v6, {L_HI}, v6')
        s.pos(7, 47, 48)
        s(f'''v_lshrrev_b32 v48, 1, v45
        s_lshl_b32 s73, s{sCT}, 1
        v_add_u32 v48, s73, v48
        v_mul_u32_u24 v48, 768, v48
        v_and_b32 v49, 1, v45
        v_lshl_add_u32 v48, v49, 3, v48
        v_add_u32 v7, v7, v48
        v_add_u32 v7, {L_HI}, v7
        s_sub_u32 s73, s71, s72
        s_lshl_b32 s70, s{sTB}, 5
        s_add_u32 s73, s73, s70
        v_add_u32 v48, s73, v44
        v_add_u32 v49, 16, v48
        s_movk_i32 s70, 2048
        v_cmp_gt_u32 {sr(sM0,2)}, s70, v48
        v_cmp_gt_u32 {sr(sM1,2)}, s70, v49
        v_lshlrev_b32 v50, 4, v46
        v_add_u32 v50, {L_STA}, v50
        v_lshlrev_b32 v51, 3, v47
        v_add_u32 v51, {L_STB}, v51''')
        for j in range(3): s(f's_add_u32 s70, s{sQ}, {j+1}\ns_and_b32 s70, s70, 3\ns_mul_i32 s70, s70, 7\ns_add_u32 s70, s70, s{sW}\ns_lshl_b32 s{4+j}, s70, 10')
        s(f'''s_lshl_b32 s7, s{sW}, 10
        s_mul_i32 s8, s{sTB}, 28672
        s_add_u32 s8, s8, {GX}
        s_xor_b32 s9, s{sTB}, 1
        s_mul_i32 s9, s9, 28672
        s_add_u32 s9, s9, s7
        s_add_u32 s9, s9, {X1}
        s_lshl_b32 s69, s{sCT}, 10
        s_add_u32 s70, s69, s8
        s_add_u32 s71, s70, {X1 - GX}
        v_add_u32 v46, s69, v{vL16}
        v_add_u32 v47, s7, v{vL16}''')
        for i in range(4): s(f'v_mov_b32 v{28+i}, 0x3f803f80')
        for ks in range(14): s(f'v_mfma_f32_16x16x32_bf16 v[32:35], {vr(vW1+4*ks)}, v[28:31], {"v[32:35]" if ks else 0}')

    def g_wave(s, hst):
        c = s.cfg
        assert c.f_hok <= 28
        s.g_pre()
        if c.hack: s.wait(hst)
        s.hint_wait()
        s.stamp(13)
        s.h2(lambda: s.feed(c.f_hok, 63), lambda: s.feed(c.f_hld, 63))
        s.pin(c.pins[2])
        s.barrier(); s.stamp(15)
        s(f'v_mov_b32 v4, {L_FAST}\nds_read_b32 v4, v4\nv_lshlrev_b32 v5, 4, v44\nv_lshl_add_u32 v5, v45, 9, v5')
        s.gemm16(vW1, 24, 6, 3072, True, s.spread(c.f_g1, 28))
        s.stamp(39)
        s(f'v_readfirstlane_b32 s{sFAST}, v4')
        s(f's_mul_i32 s69, s{sM}, 7\ns_add_u32 s69, s69, s{sW}\ns_mul_i32 s69, s69, 1792\ns_add_u32 s69, s69, {CSP}\nv_lshlrev_b32 v48, 2, v{vL}')
        csl = lambda: [s(f'buffer_load_dword v{164+i}, v48, {sr(rWS)}, s69 offen offset:{256*i}') for i in range(7)]
        if c.cs_at == 0: csl()
        if c.evb2:
            spin, back = s.lab('es'), s.lab('eb')
            rdl = ['ds_read_b32 v49, v4', 'ds_read_b128 v[36:39], v50', 'ds_read_b128 v[40:43], v50 offset:256'][:1 if c.evc else 3]
            s(f'v_mov_b32 v4, {L_EV + 6*2048 + 7*260}')
            for l in rdl: s(l)
            s(f'v_cmp_eq_u32 vcc, 0, v49\ns_mov_b32 s97, 0\ns_cbranch_vccnz {spin}'); s.label(back)
            s.ool.append(f'{spin}:\n' + ''.join(f'    {l}\n' for l in rdl) + f'    s_add_u32 s97, s97, 1\n    s_cmp_gt_u32 s97, {SPIN*8}\n    s_waitcnt lgkmcnt(0)\n    s_cbranch_scc1 {back}\n'
                         f'    v_cmp_eq_u32 vcc, 0, v49\n    s_nop 1\n    s_cbranch_vccnz {spin}\n    s_branch {back}\n')
            s.stamp(16)
            if c.evc: s('ds_read_b128 v[36:39], v50\nds_read_b128 v[40:43], v50 offset:256')
        else:
            s.barrier(); s.stamp(16)
            s('ds_read_b128 v[36:39], v50\nds_read_b128 v[40:43], v50 offset:256')
        gl = zipl(s.gelu_pk(24, 32, 36, 4, 8, 20), s.gelu_pk(28, 32, 40, 4, 12, 22))
        ex = s.spread(c.f_gel, len(gl))
        for l in gl: s(l); ex.pop(0)()
        s(f"""v_cndmask_b32 v20, 0, v20, {sr(sM0,2)}
        v_cndmask_b32 v22, 0, v22, {sr(sM1,2)}
        v_cndmask_b32 v21, 0, v21, {sr(sM0,2)}
        v_cndmask_b32 v23, 0, v23, {sr(sM1,2)}
        v_permlane16_swap_b32 v20, v22
        v_permlane16_swap_b32 v21, v23
        v_or_b32 v20, 1, v20""")
        s.xstore([f'buffer_store_dwordx4 v[20:23], v{vL16}, {sr(rWS)}, s70 offen'])
        s.stamp(17)
        s(f"""ds_write_b128 v46, v[20:23] offset:{L_GI}
        ds_read_b64 v[8:9], v7
        ds_read_b64 v[10:11], v7 offset:256
        ds_read_b64 v[12:13], v51
        ds_read_b64 v[14:15], v51 offset:128""")
        for i in range(4): s(f'v_lshlrev_b32 v{vRES+2*i}, 16, v{8+i}\nv_and_b32 v{vRES+1+2*i}, 0xffff0000, v{8+i}')
        for i in range(4): s(f'v_pk_fma_f32 {vr(24+2*i,2)}, {vr(12+2*(i>>1),2)}, {vr(vRES+2*i,2)}, {vr(12+2*(i>>1),2)} op_sel:[1,0,0] op_sel_hi:[1,1,0]')
        if c.dack[0]: s.wait_vm(0)
        s.stamp(18)
        hd, td = s.fetch_issue([(4+j, L_GI, 4+j, 's8') for j in range(3)])
        if c.bar_a: s('s_barrier')
        if c.cs_at == 1: csl()
        s.feed(c.f_b3a, 63)
        p1, p2 = s.fetch_check(hd, td, 47, L_GI, 4, 8)
        p1(); p2(); s.stamp(42)
        if s.stamps: s('v_writelane_b32 v3, s97, 62')
        if c.cs_at == 2: csl()
        s.feed(c.f_gok, 63)
        s(f's_add_u32 s8, s8, {X1 - GX}\nv_add_u32 v47, {L_XI}, v47')
        s.barrier(); s.stamp(19)
        s.gemm16(vW2, 24, 5, 2048, False, s.spread(c.f_g2, c.g2span))
        for i in range(4): s(f'v_cvt_pk_bf16_f32 v{20+i}, v{24+2*i}, v{25+2*i}')
        s('v_permlane16_swap_b32 v20, v22\nv_permlane16_swap_b32 v21, v23\nv_or_b32 v20, 1, v20')
        s.xstore([f'buffer_store_dwordx4 v[20:23], v{vL16}, {sr(rWS)}, s71 offen'])
        s.stamp(20)
        s(f'ds_write_b128 v46, v[20:23] offset:{L_XI + 28672}')
        s(f"""v_mov_b32 v49, 0
        v_mov_b32 v50, 0
        v_mov_b32 v51, 0
        v_add_u32 v6, {L_XI}, v{vL16}
        s_lshl_b32 s70, s{sW}, 11
        s_add_u32 s70, s70, {L_HID}
        v_add_u32 v7, s70, v{vL16}
        v_add_u32 v44, {L_HID}, v{vL16}""")
        for i in range(8): s(f'v_add_f32 v{vRES+i}, v{vRES+i}, v{24+i}')
        if c.dack[1]: s.wait_vm(0)
        s.stamp(21)
        hd, td = s.fetch_issue([(7, L_XI + 7168*j, 9, 7168*j) for j in range(4)])
        s(f'''v_pk_add_f32 v[164:165], v[164:165], v[166:167]
        v_add_f32 v168, v168, v170
        v_pk_add_f32 v[164:165], v[164:165], v[168:169]
        v_add_f32 v164, v164, v165
        v_mov_b32 v165, v164
        v_permlane32_swap_b32 v164, v165
        v_add_f32 v164, v164, v165
        v_cvt_pk_bf16_f32 v48, v164, v164
        v_and_b32 v165, 0xffff0000, v48
        v_sub_f32 v165, v164, v165
        v_cvt_pk_bf16_f32 v48, v164, v165''')
        p1, p2 = s.fetch_check(hd, td, 47, 0, 4, 8)
        p1(); p2(); s.stamp(43)
        if s.stamps: s('v_writelane_b32 v3, s97, 63')
        hx, tx = s.fetch_issue([(4+j, L_XI + 28672, 4+j, 's8') for j in range(3)])
        s.feed(c.f_b4a, 63)
        later = []
        for r, x in ((12, 1), (15, 0)):
            later.append(f"""s_xor_b32 s69, s{sTB}, {x}
            s_mul_i32 s70, s69, 28
            s_add_u32 s70, s70, s{sCT}
            s_lshl_b32 s71, s70, 10
            s_add_u32 s{r}, s71, {GX}
            s_add_u32 s{r+1}, s71, {X1}
            s_lshl1_add_u32 s{r+2}, s71, {PX}
            s_lshl_b32 s69, s69, 5
            s_add_u32 s69, s69, s{sCT}
            s_lshl2_add_u32 s{18+x}, s69, {F7}""")
        later.append(f"""s_xor_b32 s72, s{sTB}, 1
        s_lshl_b32 s72, s72, 5
        s_lshr_b32 s74, s{sCT}, 2
        s_add_u32 s72, s72, s74
        s_lshl2_add_u32 s72, s72, {F7}
        s_bfe_u32 s74, s{sCT}, 0x10001
        s_mul_i32 s74, s74, {F7B - F7}
        s_add_u32 s72, s72, s74""")
        later.append(f"""s_mul_i32 s74, s{sTB}, 28
        s_lshr_b32 s22, s{sCT}, 2
        s_add_u32 s74, s74, s22
        s_lshl_b32 s74, s74, 10
        s_and_b32 s22, s{sCT}, 1
        s_lshl_b32 s71, s22, 21
        s_add_u32 s71, s71, s74
        s_add_u32 s71, s71, {GX}
        s_lshl_b32 s22, s22, 10
        s_lshl1_add_u32 s74, s74, s22
        s_add_u32 s74, s74, {PX}
        s_bitcmp1_b32 s{sCT}, 1
        s_cselect_b32 s74, s71, s74
        s_cselect_b32 s22, 7, 14
        s_lshl_b32 s22, s22, 10
        s_lshl1_add_u32 s75, s22, s74
        s_sub_u32 s22, s22, 1024
        v_lshrrev_b32 v28, 5, v{vL}
        v_mad_u32_u24 v5, v28, s22, v5
        s_mul_i32 s76, s{sTB}, {32*896}
        s_lshl_b32 s77, s{sCT}, 5
        s_add_u32 s76, s76, s77
        s_mov_b32 s{rX}, s{sOUT}
        s_mov_b32 s{rX+1}, s{sOUT+1}
        s_mov_b32 s{rX+2}, {2048*896}
        s_mov_b32 s{rX+3}, 0x20000""")
        AC, ST, A4 = (180, 164), (vST3, 160), ((112, 128), (180, 144))
        seq = []
        gp, gd = c.gp, c.gd
        for t, a, b in ((0, 0, gp), (1, 0, gd), (0, gp, 28), (1, gd, 28)): seq += [(vW3 + 4*k, AC[t], k == 0, (6, 28672*t + 1024*k)) for k in range(a, b)]
        use0 = lambda k: k if k < gp else k + gd
        e0 = 27 + gd
        for t in range(2):
            for j in range(2):
                prs = [(w, ctl) for w in range(7) for ctl in range(2)]
                if j == 1: prs = [(w, ctl ^ t) for ctl in range(2) for w in range(7)]
                seq += [((vW4A + 4*(2*w + ctl), vW4B + 4*(7*ctl + w))[j], A4[t][ctl], j == 0 and w == 0, (44, 14336*t + 1024*(2*w + j))) for w, ctl in prs]
        reads = []; ridx = []
        for n, e in enumerate(seq):
            if not reads or reads[-1][0] != e[3]: reads.append((e[3], n))
            ridx.append(len(reads) - 1)
        nb = 4
        rat = {}
        for r, (key, n) in enumerate(reads):
            free = max([m for m in range(112) if ridx[m] == r - nb], default=-1)
            rat[r] = max(free, n - c.pd)
        X = {i: [] for i in range(-1, 113)}
        def place(items, a, b):
            bu = c.burst
            for k, it in enumerate(items):
                p = a + (k * (b - a + 1)) // len(items)
                X[min(b, p + (bu - 1 - (p - a) % bu))].append(it)
        I = lambda t: (lambda: s(t))
        def gelu(t, h):
            acc, st, o, G = AC[t] + 8*h, ST[t], [], c.ggrp
            for j in range(0, 8, G):
                R = range(G); T = 24 + j
                o += [f'v_mul_f32 v{T+i}, v{acc+j+i}, v{acc+j+i}' for i in R]
                o += [f'v_fma_f32 v{T+i}, v{T+i}, v{st+1}, v{st+2}' for i in R]
                o += [f'v_mul_f32 v{T+i}, v{T+i}, v{acc+j+i}' for i in R]
                for i in R: o += [f'v_exp_f32 v{T+i}, v{T+i}', '']
                o += [f'v_fma_f32 v{T+i}, v{T+i}, v{st+3}, v{st+3}' for i in R]
                for i in R: o += [f'v_rcp_f32 v{T+i}, v{T+i}', '']
                o += [f'v_mul_f32 v{T+i}, v{T+i}, v{acc+j+i}' for i in R]
                o += [f'v_cvt_pk_bf16_f32 v{32+(j+i)//2}, v{T+i}, v{T+i+1}' for i in range(0, G, 2)]
            o.append(f'ds_write_b128 v7, v[32:35] offset:{14336*t + 1024*h}\nds_write_addtid_b32 v44 offset:{L_EV - 32768 + 2048*(2*t + h)}')
            return [I(x) for x in o]
        def sync(at, k, st):
            rdl = f'ds_read_b32 v4, v46 offset:{2048*k}'
            def chk():
                spin, back = s.lab('ls'), s.lab('lb')
                s(f's_cbranch_vccnz {spin}')
                s.label(back); s.stamp(st)
                s.ool.append(f'{spin}:\n    s_mov_b32 s97, 0\n{spin}a:\n    {rdl}\n    s_add_u32 s97, s97, 1\n    s_cmp_gt_u32 s97, {SPIN*8}\n    s_waitcnt lgkmcnt(0)\n    s_cbranch_scc1 {back}\n'
                             f'    v_cmp_eq_u32 vcc, 0, v4\n    s_nop 1\n    s_cbranch_vccz {back}\n    s_sleep 1\n    s_branch {spin}a\n')
            X[at - c.sd].append(I(rdl)); X[at].insert(0, I('v_cmp_eq_u32 vcc, 0, v4')); X[at].append(chk)
        hs = {}
        def blk(base, k): return f's{base + min(k ^ 2, 2)} offen offset:{1024 * (k == 1)}'
        def fin(t, ctl, h, pk, last=False):
            acc = A4[t][ctl] + 8*h
            def f():
                if t == 1:
                    un = A4[0][ctl] + 8*h
                    if last:
                        for i in range(0, 8, 2): s(f'v_pk_add_f32 {vr(acc+i,2)}, {vr(acc+i,2)}, {vr(un+i,2)}')
                    else:
                        for i in range(8): s(f'v_add_f32 v{acc+i}, v{acc+i}, v{un+i}')
                for i in range(4): s(f'v_cvt_pk_bf16_f32 v{pk+i}, v{acc+2*i}, v{acc+2*i+1}')
                s(f'v_or_b32 v{pk}, 1, v{pk}' if t else f'v_and_b32 v{pk}, -2, v{pk}')
                s.xstore([f'buffer_store_dwordx4 {vr(pk)}, v{vL16}, {sr(rWS)}, {blk(12 + 3*t, 2*ctl + h)}'])
                hs[t, ctl] = s.vm[-1][0]
            return f
        def stage1(ctl, at):
            fo = ctl * (F7B - F7)
            def flag():
                s(f'v_mov_b32 v45, s{sTAG}\ns_add_u32 s69, s18, {fo}')
                s.wait(hs[0, ctl]); s('s_mov_b64 exec, 1')
                s.xstore([f'buffer_store_dword v45, off, {sr(rWS)}, s69'])
                s('s_mov_b64 exec, -1')
            ld = [f'buffer_load_dwordx4 {vr(164 + 8*ctl + 4*h)}, v{vL16}, {sr(rWS)}, {blk(15, 2*ctl + h)} sc1' for h in range(2)]
            def fetch():
                if ctl == 0: s.poll_check(47, None, 's70'); s.stamp(45)
                for l in ld: s(l)
            def check():
                ck = ['v_or_b32 v4, v172, v176', 'v_and_b32 v4, 1, v4', 'v_cmp_eq_u32 vcc, 1, v4']
                retry, back = s.lab('sr'), s.lab('sb')
                for l in ck: s(l)
                s(f's_mov_b32 s97, 0\ns_cbranch_vccnz {retry}'); s.label(back); s.stamp(46)
                s.ool.append(f'{retry}:\n' + ''.join(f'    {l}\n' for l in ld) + f'    s_add_u32 s97, s97, 1\n    s_cmp_gt_u32 s97, {SPIN}\n    s_waitcnt vmcnt(0)\n    s_cbranch_scc1 {back}\n'
                             + ''.join(f'    {l}\n' for l in ck) + f'    s_nop 1\n    s_cbranch_vccnz {retry}\n    s_branch {back}\n')
            X[at[0]].append(fin(0, ctl, 0, 108)); X[at[1]].append(fin(0, ctl, 1, 196))
            X[at[2]].append(flag)
            if ctl == 0: X[at[3]].append(lambda: (s(f's_add_u32 s70, s19, {fo}'), s.poll_issue(47, None, 's70')))
            X[at[4]].append(fetch)
            if ctl == 1: X[at[5]].append(check)
            un = []
            for i in range(8): un += [f'v_lshlrev_b32 v{A4[0][ctl] + 2*i}, 16, v{164 + 8*ctl + i}', f'v_and_b32 v{A4[0][ctl] + 2*i + 1}, 0xffff0000, v{164 + 8*ctl + i}']
            place([I(x) for x in un], at[5], min(at[5] + 3, 111))
        bsave, c.burst = c.burst, 1
        ch = []
        for t in later:
            cur = []
            for l in t.split('\n'):
                if len(cur) >= 5 and 'cselect' not in l: ch.append('\n'.join(cur)); cur = []
                cur.append(l)
            ch.append('\n'.join(cur))
        assert not any(x.strip().split('\n')[-1].strip().startswith(('s_cmp', 's_bitcmp')) for x in ch)
        place([I(x) for x in ch], 8, 26)
        if s.wn < 56:
            w3e = c.w3e if c.w3e is not None else max(0, s.wn - 28 - 5)
            n3 = 56 - s.wn
            assert all((k * (w3e + 1)) // n3 < use0(s.wn - 28 + k) for k in range(n3)) and w3e < c.w4a[0]
            place([s.feed1] * n3, 0, w3e)
        if s.wn < 70: place([s.feed1] * (70 - max(s.wn, 56)), c.w4a[0], c.w4a[1])
        place([s.feed1] * 14, c.w4b[0], c.w4b[1])
        c.burst = bsave
        first = lambda n: rat[ridx[n]] - 1
        x1st = first(gp if gd else 28)
        assert c.x_at + 2 <= x1st - c.sd
        sync(x1st if gd else x1st - 3, 5, 49)
        sync(e0 - 3, 4, 23)
        X[e0 - 3].append(I(f'ds_read_b128 {vr(ST[0])}, v44 offset:{L_ST3 - L_HID}'))
        X[e0].append(I(f'v_mfma_f32_32x32x16_bf16 {vr(AC[0],16)}, v[48:51], {vr(ST[0])}, {vr(AC[0],16)}'))
        assert c.q[0] > e0
        q = c.q
        for k in range(4): place(gelu(k >> 1, k & 1), q[k], q[k+1] - 1)
        X[55].append(I(f'ds_read_b128 {vr(ST[1])}, v44 offset:{L_ST3 - L_HID + 1024}'))
        X[57].append(I(f'v_mfma_f32_32x32x16_bf16 {vr(AC[1],16)}, v[48:51], {vr(ST[1])}, {vr(AC[1],16)}'))
        for k in range(4):
            assert first(56 + 14*k) - c.sd >= q[k+1] - 1, (k, first(56 + 14*k))
            sync(first(56 + 14*k), k, (25, 26, 27, 41)[k])
        assert c.st0[4] >= q[3] and c.st1[4] >= q[4] and c.st1[5] > first(98) and c.st1[5] + 3 < 107 and c.st1[2] < c.fpoll
        stage1(0, c.st0); stage1(1, c.st1)
        X[107].append(fin(1, 1, 0, 108)); X[109].append(fin(1, 1, 1, 196)); X[112] += [fin(1, 0, 0, 24, c.lastpk), fin(1, 0, 1, 28, c.lastpk)]
        X[58].append(I(f'global_load_dwordx4 v[48:51], v{vL16}, s[94:95] offset:-1024'))
        X[q[4]].append(I(f'v_lshlrev_b32 v6, 3, v{vL}\nglobal_load_dwordx2 v[6:7], v6, s[94:95] offset:-1536'))
        X[c.fpoll].append(lambda: s.poll_issue(45, 7, 's72')); X[c.fpoll + c.fpd].append(lambda: s.poll_check(45, 7, 's72'))
        def rd(r): (va, off), _ = reads[r]; s(f'ds_read_b128 {vr(8+4*(r%nb))}, v{va} offset:{off}')
        p1, p2 = s.fetch_check(hx, tx, 47, 28672, 4, 24, f's_mov_b32 m0, s21')
        X[c.x_at].insert(0, p1); X[c.x_at + 2].append(lambda: (p2(), s(f'ds_write_addtid_b32 v44 offset:{L_EV - 32768 + 2048*5}')))
        s(f'v_and_b32 v46, 7, v{vL}\nv_mul_u32_u24 v46, 260, v46\nv_add_u32 v46, {L_EV}, v46\ns_lshl_b32 s21, s{sW}, 8\ns_add_u32 s21, s21, 32768\ns_mov_b32 m0, s21')
        s.pin(c.pins[3])
        s.barrier(); s.stamp(22)
        for r in range(len(reads)):
            if rat[r] < 0: rd(r)
        LS = [10, 26, 78, 80, 40, 42, 44, 46, 62, 64, 66, 88, 90, 92, 24]
        for n, (W, acc, fst, key) in enumerate(seq):
            if c.lst and n % 8 == 0: s.raw(f'    s_mem{"real" if c.lst == 2 else ""}time s[{LS[n//8]}:{LS[n//8]+1}]')
            s.fair(n, c.fm)
            s(f'v_mfma_f32_32x32x16_bf16 {vr(acc,16)}, {vr(W)}, {vr(8+4*(ridx[n]%nb))}, {0 if fst else vr(acc,16)}')
            for r in range(len(reads)):
                if rat[r] == n: rd(r)
            s.run(X[n])
        if c.lst: s.raw(f'    s_mem{"real" if c.lst == 2 else ""}time s[24:25]')
        s.run(X[112])
        if c.lst:
            s.wait_lg(0, force=True)
            for i, r in enumerate(LS): s(f'v_writelane_b32 v3, s{r}, {1 + i}')
        s.stamp(28)
        if c.dack[2]: s.wait_vm(0)
        s.stamp(29)
        ld = [f'buffer_load_dwordx4 {vr(52+8*u+4*t)}, v5, {sr(rWS)}, s{74+u} offen offset:{256*t} sc1' for u in range(2) for t in range(2)]
        ck = ['v_and_b32 v8, v52, v56', 'v_and_b32 v9, v60, v64', 'v_and_b32 v8, 1, v8', 'v_and_b32 v8, v8, v9', 'v_cmp_eq_u32 vcc, 0, v8']
        retry, back = s.lab('er'), s.lab('eb')
        for l in ld + ck: s(l)
        s(f's_mov_b32 s97, 0\ns_cbranch_vccnz {retry}'); s.label(back)
        s.ool.append(f'{retry}:\n' + ''.join(f'    {l}\n' for l in ld) + f'    s_add_u32 s97, s97, 1\n    s_cmp_gt_u32 s97, {SPIN}\n    s_waitcnt vmcnt(0)\n    s_cbranch_scc1 {back}\n'
                     + ''.join(f'    {l}\n' for l in ck) + f'    s_nop 1\n    s_cbranch_vccnz {retry}\n    s_branch {back}\n')
        s.stamp(30)
        for u in range(2):
            for t in range(2): s(f'v_mfma_f32_16x16x32_bf16 {vr(vRES+4*t)}, v[48:51], {vr(52+8*u+4*t)}, {vr(vRES+4*t)}')
        for i in range(4): s(f'v_cvt_pk_bf16_f32 v{20+i}, v{vRES+2*i}, v{vRES+1+2*i}')
        s('v_permlane16_swap_b32 v20, v22\nv_permlane16_swap_b32 v21, v23')
        s(f'buffer_store_dwordx4 v[20:23], v6, {sr(rX)}, s76 offen')
        s.stamp(31)

    def s_mfma(s, addrs, acc, kstride, base, nk=14):
        seq = [(ks, t) for ks in range(nk) for t in range(3)]
        nb = 8
        def rd(i): ks, t = seq[i]; s(f'ds_read_b128 {vr(52+4*(i%nb))}, v{addrs+t} offset:{base + ks*kstride}')
        s('s_mov_b32 exec_lo, 0x77777777\ns_mov_b32 exec_hi, 0x77777777')
        for i in range(nb - 1): rd(i)
        for i, (ks, t) in enumerate(seq):
            if i + nb - 1 < len(seq): rd(i + nb - 1)
            s(f'v_mfma_f32_16x16x32_bf16 {vr(acc+4*t)}, {vr(52+4*(i%nb))}, {vr(52+4*(i%nb))}, {vr(acc+4*t) if ks else 0}')
    def s_wave(s, hst):
        s.comment('S wave: statistics, polling, DMA')
        s.pin(s.cfg.pins[4])
        s('s_setprio 2')
        s(f'''s_and_b32 s70, s2, 0xc7
        s_lshl_b32 s70, s70, 4
        s_mul_i32 s71, s{sXCD}, {FCP}
        s_add_u32 s70, s70, s71
        s_add_u32 s70, s70, {FA}
        v_and_b32 v44, 7, v{vL}
        v_lshlrev_b32 v44, 7, v44
        buffer_load_dword v48, v44, {sr(rWS)}, s70 offen sc1''')
        def ftouch():
            s(f'''s_lshl_b32 s72, s{sTB}, 7
            s_add_u32 s72, s72, {F3}
            s_mov_b32 m0, {L_JUNK}
            v_min_u32 v45, 4, v{vL}
            v_lshlrev_b32 v45, 13, v45
            buffer_load_dword v45, {sr(rWS)}, s72 offen sc1 lds''')
            if s.cfg.etouch:
                s(f's_mul_i32 s70, s{sTB}, 28\ns_add_u32 s70, s70, s{sCT}\ns_lshl_b32 s70, s70, 11\ns_add_u32 s70, s70, {PX - 7*2048}\ns_add_u32 s71, s70, 7168\ns_mov_b32 exec_hi, 0x00ffffff')
                s(f'buffer_load_dword v7, {sr(rWS)}, s70 offen sc1 lds\nbuffer_load_dword v7, {sr(rWS)}, s71 offen sc1 lds\ns_mov_b32 exec_hi, -1')
        def setup():
            for i in range(32): s(f'v_mov_b32 v{52+i}, 0x3f803f80')
            s(f'''v_and_b32 v44, 3, v{vL}
        v_bfe_u32 v45, v{vL}, 2, 2
        v_mad_u32_u24 v40, v45, 3, v44
        v_lshrrev_b32 v41, 4, v{vL}''')
            for t in range(3):
                s(f'v_add_u32 v46, {12*t}, v40')
                s.pos(84 + t, 46, 47)
                s(f'v_mul_u32_u24 v47, 768, v41\nv_add_u32 v{84+t}, v{84+t}, v47\nv_add_u32 v{84+t}, {L_HI}, v{84+t}')
                s(f'v_min_u32 v46, 31, v46\nv_lshlrev_b32 v46, 4, v46\nv_lshl_add_u32 v46, v41, 9, v46\nv_add_u32 v{88+t}, {L_XI}, v46')
            s(f'''v_sub_u32 v45, v45, v41
        v_and_b32 v45, 3, v45
        v_cmp_eq_u32 s[78:79], 1, v45
        v_cmp_eq_u32 s[80:81], 2, v45
        v_mad_u32_u24 v40, v41, 3, v44
        v_mad_u32_u24 v40, v45, 12, v40
        v_min_u32 v92, 31, v40
        v_lshlrev_b32 v92, 4, v92
        v_add_u32 v92, {L_ST3}, v92
        v_lshlrev_b32 v42, 4, v40
        v_add_u32 v42, {L_STA}, v42
        v_lshlrev_b32 v43, 3, v40
        v_add_u32 v43, {L_STB}, v43
        v_lshlrev_b32 v6, 2, v{vL}
        v_lshlrev_b32 v7, 7, v{vL}
        v_cmp_ne_u32 vcc, s{sTX}, v48
        v_mov_b32 v46, {L_FAST}
        s_cmp_eq_u64 vcc, 0
        s_cselect_b32 s{sFAST}, 1, 0
        v_mov_b32 v45, s{sFAST}
        ds_write_b32 v46, v45
        v_and_b32 v38, 7, v{vL}
        v_mul_u32_u24 v38, 260, v38
        v_add_u32 v38, {L_EV}, v38
        v_lshlrev_b32 v46, 8, v{vL}
        v_and_b32 v46, 0x3800, v46
        v_add_u32 v46, v46, v38
        s_mov_b32 vcc_lo, 0x80800000
        s_mov_b32 vcc_hi, 0x807f
        v_cndmask_b32 v45, 0, v38, vcc
        ds_write_b32 v46, v45''')
        if not s.cfg.searly: setup()
        s(f'''s_and_b32 s70, s{sQ}, 1
        s_mul_i32 s71, s70, 9
        s_lshl3_add_u32 s71, s{sTB}, s71
        s_sub_u32 s71, s71, 1
        s_max_i32 s71, s71, 0
        s_min_i32 s71, s71, 511
        s_lshr_b32 s88, s71, 3
        s_mul_i32 s88, s88, 28672
        s_and_b32 s71, s71, 7
        s_lshl4_add_u32 s88, s71, s88
        s_add_u32 s88, s88, {X1}
        s_mul_i32 s70, s70, 384
        s_add_u32 s70, s70, {L_HI + 128}
        v_min_u32 v5, 55, v{vL}
        v_lshlrev_b32 v4, 9, v5
        v_mul_u32_u24 v5, 768, v5
        v_add_u32 v5, s70, v5''')
        s.wait(hst); s.hint_wait()
        s.stamp(13)
        s.h2(ftouch, setup if s.cfg.searly else (lambda: None), halo=True)
        s(f'v_cmp_eq_u32 s[92:93], 1, v44\nv_cmp_eq_u32 s[94:95], 2, v44\ns_mov_b32 s96, {INVD}\nv_mov_b32 v49, {fh(1 + 1e-5)}')
        s(f'''s_lshl2_add_u32 s70, s{sTB}, s{sQ}
        s_lshl_b32 s71, s70, 4
        s_add_u32 s71, s71, {FN}
        v_and_b32 v45, 1, v{vL}
        v_lshlrev_b32 v45, 3, v45
        v_sub_u32 v45, v44, v45
        s_lshl2_add_u32 s72, s{sTB}, 4
        v_add_u32 v45, s72, v45
        v_mov_b32 v47, s70
        v_cmp_gt_u32 vcc, 0x100, v45
        v_mov_b32 v36, s{sTAG}
        s_mov_b32 s72, {FN}
        v_cndmask_b32 v45, v47, v45, vcc
        s_xor_b32 s70, s70, 4
        v_writelane_b32 v45, s70, 4
        v_lshlrev_b32 v37, 4, v45''')
        s.barrier(); s.stamp(15)
        s(f's_mov_b64 exec, 1\nbuffer_store_dword v36, off, {sr(rWS)}, s71 sc1')
        s.s_mfma(84, 24, 3072, 0)
        s.stamp(39)
        s.stats_tail(24, 43, 42, 0)
        if s.cfg.evp: s.wait_lg(0)
        if s.cfg.evb2: s(f's_mov_b64 exec, 0x80\nds_write_b32 v38, v38 offset:{6*2048}\ns_mov_b64 exec, -1')
        else: s('s_mov_b64 exec, -1'); s.barrier()
        s.stamp(16)
        s.poll(4, 37, 's72', 31, 0, sleep=4)
        for i in range(2 + s.cfg.bar_a): s('s_barrier')
        s.stamp(22)
        def lwait(k):
            l, l2, l3 = s.lab('tw'), s.lab('tx'), s.lab('ty')
            s(f's_mov_b32 s97, 0\ns_branch {l2}'); s.label(l); s(f's_sleep 1\ns_add_u32 s97, s97, 1\ns_cmp_gt_u32 s97, {SPIN*8}\ns_cbranch_scc1 {l3}'); s.label(l2)
            s(f'ds_read_b32 v4, v38 offset:{2048*k}\nv_cmp_eq_u32 vcc, 0, v4\ns_cbranch_vccnz {l}'); s.label(l3)
        post = lambda k: s(f's_mov_b64 exec, 0x80\nds_write_b32 v38, v38 offset:{2048*k}\ns_mov_b64 exec, -1')
        def touch():
            s(f'''s_mul_i32 s70, s{sTB}, 28
            s_mul_i32 s71, s{sQ}, 7
            s_add_u32 s70, s70, s71
            s_lshl_b32 s71, s70, 10
            s_add_u32 s71, s71, {GX}
            s_add_u32 s69, s71, {X1 - GX}
            s_lshl_b32 s70, s70, 11
            s_add_u32 s70, s70, {PX}
            s_mov_b32 m0, {L_JUNK}
            s_mov_b32 exec_hi, 0x00ffffff''')
            rf = f'buffer_load_dword v7, {sr(rWS)}, s71 offen sc1 lds\nbuffer_load_dword v7, {sr(rWS)}, s69 offen sc1 lds'
            if s.cfg.refresh == 1: s(rf)
            for i in range(2):
                k = (s.cfg.touch_at, s.cfg.touch2)[i]
                if k < 4: lwait(k)
                s(f'buffer_load_dword v7, {sr(rWS)}, s70 offen sc1 lds\ns_add_u32 s70, s70, 7168')
            if s.cfg.refresh == 2: s(rf)
            s('s_mov_b32 exec_hi, -1')
        for t in range(2):
            if s.cfg.x_ns: s(f's_mov_b32 s96, {fh(1/96)}')
            s.s_mfma(88, 24, 2048, 28672 * t, 3 if s.cfg.x_ns else 14)
            s.stats_tail(24, None, 92, 1024 * t)
            post((4, 0)[t])
            s.stamp(23 + t)
            if t == 0:
                lwait(5)
                s(f's_lshl_b32 s72, s{sCL}, 8\ns_add_u32 s72, s72, {F5 + 28}\ns_lshl_b32 s73, s{sM}, 5\ns_add_u32 s73, s73, s72\nv_lshlrev_b32 v37, 5, v{vL}')
                s.flag(73)
        s.poll(4, 37, 's72', '0xff', 0, sleep=2)
        post(1)
        s.stamp(25)
        if s.cfg.touch_at != 5: touch()
        s.cond('s_cmp_lg_u32 s2, 0', lambda: s(f'v_mov_b32 v4, s{sTAG}\ns_mov_b32 s70, {EP}\ns_mov_b64 exec, 1\nbuffer_store_dword v4, off, {sr(rWS)}, s70 sc1\ns_mov_b64 exec, -1'))
        s.wait_vm(0); s.stamp(28)

def build(stamps=False, cfg=None):
    s = K(stamps, cfg or Cfg())
    c = s.cfg
    s.entry(); s.setup(); s(s.scalars())
    if c.dma_at == -1: s(f's_cmp_lt_u32 s43, 2\ns_cmov_b32 s{rW+2}, {448*896}'); s.pack_dma()
    if c.sb_at == 0: s.setup_b()
    s.stamp(34); s.ln()
    s(f's_cmp_ge_u32 s{sI}, 28'); s.flush_hazards(); s('s_cbranch_scc1 Lnonconv')
    st = s.state()
    s.clear()
    if c.sb_at == 1: s.setup_b()
    s.stamp(33)
    if c.dma_at == 0: s.pack_dma()
    if c.fa_at == -1: s.publish_a()
    s.kgen(); hst = s.conv()
    s.label('Ljoin')
    s(f'v_mov_b32 v4, v21\nv_mov_b32 v5, v22\ns_cmp_eq_u32 s{sW}, 7'); s.flush_hazards(); s('s_cbranch_scc1 Lsw')
    st2 = s.state()
    s.g_wave(hst); s.dump_stamps(); s('s_endpgm')
    s.label('Lsw'); s.set_state(st2)
    s.s_wave(hst); s.dump_stamps()
    s.label('Lend'); s('s_endpgm')
    s.label('Lnonconv'); s.set_state(st); s.wn = 0
    s.nonconv(); s.flush_hazards(); s('s_branch Ljoin')
    name = NAME + '_kernel'
    txt = f'''; @launch grid=(256,1,1) block=(512,1,1) lds={LDS_BYTES}
.amdgcn_target "amdgcn-amd-amdhsa--gfx950"
.text
.globl {name}
.p2align 8
.type {name},@function
{name}:
''' + s.text() + ''.join(s.ool) + tap_table() + f'''.section .rodata,"a"
.p2align 6
.amdhsa_kernel {name}
  .amdhsa_next_free_vgpr 256
  .amdhsa_next_free_sgpr 102
  .amdhsa_accum_offset 256
  .amdhsa_group_segment_fixed_size 0
  .amdhsa_kernarg_size 120
  .amdhsa_user_sgpr_count 2
  .amdhsa_user_sgpr_kernarg_segment_ptr 1
  .amdhsa_system_sgpr_workgroup_id_x 1
.end_amdhsa_kernel
'''
    size, syms = code_info(txt.replace('@CODE_BYTES@', '1000').replace('@TAB_OFF@', '1000'))
    return txt.replace('@CODE_BYTES@', str(syms['tap_table'] + 2048 + 4224 - syms['Lpc'] - 4)).replace('@TAB_OFF@', str(syms['tap_table'] - syms['Lpc']))
def tap_table():
    RB = {8: 0, 4: 16, 2: 24, 6: 28, 1: 32, 3: 34, 5: 36, 7: 38}
    def rnd(l):
        sh = max(0, l.bit_length() - 8)
        if not sh: return l
        q, r = l >> sh, l & ((1 << sh) - 1); half = 1 << (sh - 1)
        return (q + (r > half or (r == half and q & 1))) << sh
    v = []
    for i in range(2056):
        l = 2047 - i
        if l < 0: e = 768
        elif l == 0: e = 640
        else: p = rnd(l); e = RB[((p - 1) & 7) + 1] * 16 + ((p - 1) >> 3)
        v.append(e * 16)
    v += [0] * 56
    lane = []
    for l in range(64):
        n, g = l & 15, l >> 4; tb = 2*n + (g >> 1); rr, cc = (l >> 2) & 3, l & 3
        bb = lambda c_: 32*c_ + 16*((c_ >> 3) & 1)
        lane.append([4*(4*g - (n >> 1)) + 28 + KEO*(1 - (n & 1)), bb(30 + 2*n + g), bb(26 + 2*n + g), (l >> 1)*896 + 16*((l ^ g) & 1),
                     tb*64 + (g & 1)*32, (n >> 1)*1792 + 4*(n & 1) + g, bb(tb) + 8*(g & 1), (g*64 + n)*16 + 4*((l >> 3) & 3),
                     n*KGP + 16*g, (8*g + rr)*64 + cc*8, (8*(g >> 1) + rr)*64 + (g & 1)*32 + (cc & 1)*16 + (cc >> 1)*8,
                     (l >> 2)*896 + cc*16, (l >> 2)*3584 + cc*16, rr*LNP + 32*g + 8*cc, rr*KEO + 16*(l & 1), 0])
    pk = []
    for b in range(256):
        for w in range(8):
            U = 256*w + 32*(b & 7) + (b >> 3)
            if U < 392: m, V = divmod(U, 196); kb, cb = divmod(V, 14); src = kb*32*896; d0 = 392*m + 28*cb + kb; d1 = d0 + 14
            elif U < 1176: m = 2; kb, cb = divmod(U - 392, 56); src = kb*32*3584; d0 = 784 + 28*cb + 2*kb; d1 = d0 + 1
            elif U < 1960: m = 3; kb, cb = divmod(U - 1176, 14); src = kb*32*896; d1 = 2352 + ((kb//7)*7 + (cb >> 1))*28; d0 = d1 + 2*(kb % 7) + (cb & 1); d1 += 14 + 7*(cb & 1) + kb % 7
            else: m, cb, src, d0, d1 = 4, 0, 0, 0, 0
            pk += [(m << 24) | (src + 64*cb), d0 | (d1 << 16)]
    t = '.p2align 7\n.type tail_table,@object\ntail_table:\n'
    for l in range(64): t += f'.long {(l & 31)*896 + (l >> 5)*16}, {(l & 3)*28}\n'
    for l in range(64): t += '.short ' + ', '.join('0x3f80' if (l & 15) == 8*((l >> 4) & 1) + j else '0' for j in range(8)) + '\n'
    t += '.size tail_table, 1536\n.type tap_table,@object\ntap_table:\n'
    for h in range(2):
        for l in range(64): t += '.short ' + ', '.join(map(str, lane[l][8*h:8*h+8])) + '\n'
    for i in range(0, 2112, 8): t += '.short ' + ', '.join(map(str, v[i:i+8])) + '\n'
    for i in range(0, 4096, 8): t += '.long ' + ', '.join(map(str, pk[i:i+8])) + '\n'
    return t + f'.size tap_table, {2048 + 4224 + 16384}\n'
def code_info(txt):
    import subprocess, tempfile, re
    with tempfile.TemporaryDirectory() as d:
        open(d + '/a.s', 'w').write(txt)
        subprocess.run(['clang', '-x', 'assembler', '-target', 'amdgcn-amd-amdhsa', '-mcpu=gfx950', '-c', d + '/a.s', '-o', d + '/a.o'], check=True)
        o = subprocess.run(['llvm-readelf', '-S', '-s', d + '/a.o'], capture_output=True, text=True).stdout
        size = int(re.search(r'\.text\s+PROGBITS\s+\S+\s+\S+\s+(\S+)', o).group(1), 16)
        return size, {m.group(2): int(m.group(1), 16) for m in re.finditer(r'\d+: ([0-9a-f]{16}) .* (\S+)\n', o)}
if __name__ == '__main__':
    sys.stdout.write(build(stamps=len(sys.argv) > 1))
```

```python
import sys, os, struct
sys.path.insert(0, os.path.dirname(os.path.abspath(__file__)))
from dsl import Asm, Ins

NAME = 'sequential_preLN__ssm_conv_s4d__mixer_s_mlp__prompt'
W1P, W2P, W3P, W4P = 0, 392 * 1024, 784 * 1024, 2352 * 1024
SM, CSP = 0x600000, 0x700000
GX, X1, PX = 0xA00000, 0xC00000, 0x1000000
FL = 0x2000000
F3, F4, F5, F7, F7B = FL, FL + 0x2000, FL + 0x4000, FL + 0x6000, FL + 0x8000
FH, FN, EP, FA, FB = FL + 0x1A000, FL + 0x1E000, FL + 0x20000, FL + 0x30000, FL + 0x40000
FCP = 4352
TS = 0x3000000
WS_BYTES = 0x4000000
L_LN, LNP = 0, 960
L_PK = 119296
L_KG, KGP = 31744, 288
L_Y = 0
L_KT, KTSZ = 68608, 12320
L_KE, KEO, KECH = 93312, 4160, 8320
L_U = 110080
L_SM = 8 * LNP
L_HI, L_GI, L_XI, L_HID, L_ST = 106880, 0, 28672, 106880, 149888
L_STA, L_STB, L_FAST, L_JUNK, L_ST3 = L_ST, L_ST + 768, L_ST + 1152, L_ST + 1280, L_ST + 1536
L_EV = 86016
LDS_BYTES = 153600
LOG2E, INV2PI, EPS, INVD = 0x3fb8aa3b, 0x3e22f983, 0x3727c5ac, 0x3b124925
C1 = -2.0 * 0.7978845608028654 * 1.4426950408889634
def fh(x): return '0x%08x' % struct.unpack('<I', struct.pack('<f', x))[0]
SPIN = 1 << 18
sX, sLA, sAI, sCR, sCI, sDT, sDS = 4, 6, 8, 10, 12, 14, 16
sW1, sW2, sW3, sW4, sOUT, sWS = 20, 22, 24, 26, 28, 30
rWS, rX, rD, rW, rG = 32, 36, 40, 44, 48
sW, sXCD, sI, sP, sTAG, sTB, sQ, sCL, sM, sFAST = range(52, 62)
sPD0, sPD1, sUO, sSM, sFO, sPACT = range(62, 68)
sUS, sKG, sHD, sUM = 74, 75, 76, 77
sLDT, sD0, sD1 = 40, 41, 42
sM0, sM1, sCT, sTX = 78, 80, 82, 83
sA1, sA2, sA3, sA4 = 84, 85, 86, 87
def sr(n, k=4): return f's[{n}:{n+k-1}]'
def vr(n, k=4): return f'v[{n}:{n+k-1}]'
vL16, vL = 1, 2
vW1, vW2, vW3, vW4A, vW4B = 144, 200, 52, 200, 52
vCS3, vAC3, vST3, vRES = 164, 180, 196, 36

class Cfg:
    f_kt = 3
    fa_at, dma_at, poll_at, chk_at, pst_at, fa_sleep = 1, 5, 4, 7, 8, 1
    u_at, uchk_at, pslot = 2, 7, 24
    rsplit = 8
    f_conv = 18
    f_hst = 18
    f_hld = 18
    f_hok = 24
    f_g1 = 35
    f_gel = 0
    x_dp, g2span = 0, 14
    f_gfl = 0
    f_b3a = 0
    f_g2 = 43
    f_xfl = 0
    f_b4a = 45
    two = 0
    tab = 0
    xbar = 0
    fb_at = 0
    x_nof = 99
    prio = 0
    bar_a, x_at = 0, 3
    ggrp, burst, pd, sd = 4, 1, 3, 2
    q = (33, 47, 60, 73, 86)
    st0, st1, lastpk = (79, 80, 89, 94, 100, 108), (86, 87, 96, 0, 95, 103), 1
    w4a, w4b = (17, 44), (45, 68)
    nc_depth, hint_at, fblate = 8, 72, 0
    depth = 4
    touch_at = 1
    warm = 1
    pal, pins = 3, (None,) * 5
    gsc = 0
    evb2, searly, evp, evc = 1, 1, 1, 0
    fpd = 8
    hfeed = 1
    dack, fpoll, cs_at, f_gok = (1, 1, 1), 103, 2, 37
    etouch, touch2 = 0, 4
    x_ns = x_nc = 0
    gp, gd, w3e = 17, 4, 16
    hack, hdel, hmask = 1, 0, 0
    upf = 0
    ktm = 0
    kbar = 0
    lst2, lregs = (), (4, 6, 8, 10, 12, 14, 16, 18, 20, 22, 24, 26, 36, 38, 98)
    fm, fc, fg = 4, 0, 0
    lst = 0
    sb_at, clr_at = 1, 0
    cil, chead, cpace, clead, cy0, cyp = 0, 9, 1.0, 5, 42, 4
    rts = 0
    refresh = 0
    tdepth = 1
    cpf = 1
    x_late = 0

def zipl(*streams):
    out = []; n = max(len(x) for x in streams)
    for i in range(n):
        for x in streams:
            if i < len(x): out.append(x[i])
    return out

class K(Asm):
    def __init__(s, stamps, cfg):
        super().__init__(); s.stamps = stamps; s.cfg = cfg; s.ool = []; s.nlab = 0; s.wn = 0
    def lab(s, p): s.nlab += 1; return f'L{p}{s.nlab}'
    def srd(s, r, ptr, size):
        s(f's_mov_b32 s{r}, s{ptr}\ns_mov_b32 s{r+1}, s{ptr+1}\ns_mov_b32 s{r+2}, {size}\ns_mov_b32 s{r+3}, 0x20000')
    def stamp(s, idx, real=False):
        if idx in s.cfg.lst2:
            r = s.cfg.lregs[list(s.cfg.lst2).index(idx)]
            s.raw(f'    s_memtime s[{r}:{r+1}]')
            if idx == s.cfg.lst2[-1]:
                s.wait_lg(0, force=True)
                for i, k in enumerate(s.cfg.lst2): s(f'v_writelane_b32 v3, s{s.cfg.lregs[i]}, {k}')
            return
        if not s.stamps or (s.stamps is not True and idx not in (31, 61) and (s.stamps == 'span' or idx not in s.stamps)): return
        s(f's_mem{"real" if real else ""}time s[98:99]'); s.wait_lg(0)
        s(f'v_writelane_b32 v3, s98, {idx}')
        rt = {3: 50, 10: 51, 11: 52, 15: 53, 22: 54, 25: 55, 28: 56}
        if s.cfg.rts and idx in rt:
            s('s_memrealtime s[98:99]'); s.wait_lg(0); s(f'v_writelane_b32 v3, s98, {rt[idx]}')
    def dump_stamps(s):
        if not s.stamps: return
        s.stamp(61, True)
        s(f's_lshl_b32 s98, s2, 3\ns_add_u32 s98, s98, s{sW}\ns_lshl_b32 s98, s98, 8\ns_add_u32 s98, s98, {TS}')
        s(f'v_lshlrev_b32 v4, 2, v{vL}\nbuffer_store_dword v3, v4, {sr(rWS)}, s98 offen')
    def cond(s, cmp_skip, body, drain=True, flush=True):
        l = s.lab('c')
        s(cmp_skip)
        if flush: s.flush_hazards()
        s(f's_cbranch_scc1 {l}')
        vm, lg, hist = list(s.vm), list(s.lg), list(s.hist)
        body()
        if drain: s._wait(lg=0)
        if flush: s.flush_hazards()
        else: s.hist = hist
        s.label(l)
        s.vm, s.lg = vm, lg
    def xstore(s, lines):
        slow, back = s.lab('xs'), s.lab('xb')
        s(f's_cmp_eq_u32 s{sFAST}, 0')
        for l in lines:
            ins = Ins(l); t = ins.rd | ins.wr
            hs = [x[0] for x in s.vm if x[1] & t] + [x[0] for x in s.lg if x[1] & t]
            if hs: s.wait(*hs)
        s(f's_cbranch_scc1 {slow}')
        for l in lines: s(l)
        s.label(back)
        s.ool.append(f'{slow}:\n    s_nop 7\n    s_nop 3\n' + ''.join(f'    {l} sc1\n' for l in lines) + f'    s_branch {back}\n')
    def feed1(s):
        n = s.wn; s.wn += 1
        if n >= s.cfg.x_nof: return
        if n < 14: reg, sb, i = vW1 + 4*n, sA1, n
        elif n < 28: reg, sb, i = vW2 + 4*(n-14), sA2, n - 14
        elif n < 56: reg, sb, i = vW3 + 4*(n-28), sA3, n - 28
        elif n < 70: reg, sb, i = vW4A + 4*(n-56), sA4, n - 56
        else: reg, sb, i = vW4B + 4*(n-70), sA4, n - 56
        if i % 4 == 0 and i: s(f's_add_u32 s{sb}, s{sb}, 4096')
        s(f'buffer_load_dwordx4 {vr(reg)}, v{vL16}, {sr(rG)}, s{sb} offen offset:{(i % 4) * 1024}')
    def feed(s, upto, depth=None):
        depth = depth or s.cfg.depth
        while s.wn < upto:
            s.wait_vm(depth - 1); s.feed1()
    def spread(s, upto, slots, first=0):
        n = max(0, upto - s.wn); out = [lambda: None] * slots
        pos = [first + (k * (slots - first)) // n for k in range(n)] if n else []
        for p in set(pos):
            out[p] = (lambda c=pos.count(p): [s.feed1() for _ in range(c)])
        return out
    def pin(s, k):
        if k is None: return
        s.raw(f'    .p2align {s.cfg.pal}')
        for i in range(k): s('s_nop 0')
    def fair(s, n, k):
        if k and n % k == 0: s('s_setprio 1')
        if k and n % k == k - 1: s('s_setprio 0')
    def run(s, l):
        for f in l: f()
    def pl(s, vdst, vaddr, soff): return f'buffer_load_dword v{vdst}, v{vaddr}, {sr(rWS)}, {soff} offen sc1' if vaddr is not None else f'buffer_load_dword v{vdst}, off, {sr(rWS)}, {soff} sc1'
    def poll_issue(s, vdst, vaddr, soff): return s(s.pl(vdst, vaddr, soff))
    def poll_check(s, vdst, vaddr, soff, sleep=0):
        retry, back = s.lab('pr'), s.lab('pb')
        s(f'v_subrev_u32 v{vdst}, s{sTAG}, v{vdst}\nv_cmp_lt_u32 vcc, 15, v{vdst}\ns_mov_b32 s97, 0\ns_cbranch_vccnz {retry}')
        s.label(back)
        s.ool.append(f'''{retry}:
''' + (f'    s_sleep {sleep}\n' if sleep else '') + f'''    {s.pl(vdst, vaddr, soff)}
    s_add_u32 s97, s97, 1
    s_cmp_gt_u32 s97, {SPIN}
    s_waitcnt vmcnt(0)
    s_cbranch_scc1 {back}
    v_subrev_u32 v{vdst}, s{sTAG}, v{vdst}
    v_cmp_lt_u32 vcc, 15, v{vdst}
    s_nop 1
    s_cbranch_vccnz {retry}
    s_branch {back}
''')
    def poll(s, vdst, vaddr, soff, lo=None, hi=None, sleep=0):
        if lo is not None: s(f's_mov_b32 exec_lo, {lo}\ns_mov_b32 exec_hi, {hi}')
        s.poll_issue(vdst, vaddr, soff); s.poll_check(vdst, vaddr, soff, sleep)
        if lo is not None: s('s_mov_b64 exec, -1')
    def flag(s, soff, vtmp=4):
        s(f'v_mov_b32 v{vtmp}, s{sTAG}')
        s.wait_vm(0, force=True)
        s('s_mov_b64 exec, 1')
        s.xstore([f'buffer_store_dword v{vtmp}, off, {sr(rWS)}, s{soff}'])
        s('s_mov_b64 exec, -1')
    def gflag(s, wave, soff, sval, vtmp, drain=False, flush=True):
        s.cond(f's_cmp_lg_u32 s{sW}, {wave}', drain=drain, flush=flush, body=lambda: s(f'v_mov_b32 v{vtmp}, s{sval}\ns_mov_b64 exec, 1\nbuffer_store_dword v{vtmp}, off, {sr(rWS)}, s{soff} sc1\ns_mov_b64 exec, -1'))
    def gflag8(s, wave, soff, sval, vtmp, flush=True):
        s.cond(f's_cmp_lg_u32 s{sW}, {wave}', drain=False, flush=flush, body=lambda: s(f'v_mov_b32 v{vtmp}, s{sval}\nv_mul_u32_u24 v{vtmp+1}, {FCP}, v{vL}\ns_mov_b64 exec, 0xff\nbuffer_store_dword v{vtmp}, v{vtmp+1}, {sr(rWS)}, s{soff} offen sc1\ns_mov_b64 exec, -1'))
    def dma(s, a, b, ssrc, ldsbase):
        h = None
        for i in range(a, b):
            if i % 4 == 0:
                if i: s(f's_add_u32 s{ssrc}, s{ssrc}, 4096')
                s(f's_mov_b32 m0, {ldsbase + i * 1024}')
            h = s(f'buffer_load_dwordx4 v{vL16}, {sr(rWS)}, s{ssrc} offen offset:{(i % 4) * 1024} sc1 lds')
        return h
    def fetch_issue(s, blocks):
        t = ''.join(f's_add_u32 m0, s{a}, {b}\ns_add_u32 s68, s{c_}, {d}\nbuffer_load_dwordx4 v{vL16}, {sr(rWS)}, s68 offen sc1 lds\n' for a, b, c_, d in blocks)
        return s(t), t
    def fetch_check(s, h, t, va, off, n, T, m0=None):
        rd = [f'ds_read_b32 v{T+j}, v{va} offset:{off + 7168*j}' for j in range(n)]
        ck = [f'v_and_b32 v{T}, v{T}, v{T+1}', f'v_and_b32 v{T+2}, v{T+2}, v{T+3}', f'v_and_b32 v{T}, 1, v{T}', f'v_and_b32 v{T}, v{T}, v{T+2}', f'v_cmp_eq_u32 vcc, 0, v{T}']
        retry, back = s.lab('fr'), s.lab('fb')
        def part1(): s.wait(h); [s(l) for l in rd]
        def part2():
            for l in ck: s(l)
            s(f's_mov_b32 s97, 0\ns_cbranch_vccnz {retry}'); s.label(back)
            s.ool.append(f'{retry}:\n' + ''.join(f'    {l}\n' for l in t.strip().split('\n')) + (f'    {m0}\n' if m0 else '') + f'    s_add_u32 s97, s97, 1\n    s_cmp_gt_u32 s97, {SPIN}\n    s_waitcnt vmcnt(0)\n    s_cbranch_scc1 {back}\n'
                         + ''.join(f'    {l}\n' for l in rd) + '    s_waitcnt lgkmcnt(0)\n' + ''.join(f'    {l}\n' for l in ck) + f'    s_nop 1\n    s_cbranch_vccnz {retry}\n    s_branch {back}\n')
        return part1, part2
    def pos(s, d, src, t):
        s(f'''v_and_b32 v{t}, 3, v{src}
        v_lshlrev_b32 v{t}, 2, v{t}
        v_and_or_b32 v{t}, v{src}, -16, v{t}
        v_bfe_u32 v{d}, v{src}, 2, 2
        v_or_b32 v{d}, v{d}, v{t}
        v_lshlrev_b32 v{d}, 4, v{d}''')

    def W(s, dst, k, base=None, op='add_u32'):
        src = f'v{76 + k//2}'; sel = f'WORD_{k&1}'
        if base is None: s(f'v_mov_b32_sdwa v{dst}, {src} dst_sel:DWORD dst_unused:UNUSED_PAD src0_sel:{sel}')
        else: s(f'v_{op}_sdwa v{dst}, {base}, {src} dst_sel:DWORD dst_unused:UNUSED_PAD src0_sel:DWORD src1_sel:{sel}')
    def entry(s):
        s('s_cmp_ge_u32 s2, 256\ns_cbranch_scc1 Lend')
        if s.stamps: s('s_memtime s[100:101]\ns_memrealtime s[96:97]\nv_mov_b32 v3, 0'); s.wait_lg(0)
        s(f"""s_load_dwordx16 s[4:19], s[0:1], 0
        s_load_dwordx8 s[20:27], s[0:1], 64
        s_load_dwordx2 s[28:29], s[0:1], 96
        s_load_dwordx2 s[30:31], s[0:1], 112""")
        s('s_getpc_b64 s[94:95]')
        s.label('Lpc')
        s(f"""s_lshr_b32 s{sI}, s2, 3
        v_lshrrev_b32 v4, 6, v0
        v_and_b32 v{vL}, 63, v0""")
        s.cpf(0)
        s(f"""v_readfirstlane_b32 s{sW}, v4
        v_lshlrev_b32 v{vL16}, 4, v{vL}
        s_add_u32 s94, s94, @TAB_OFF@
        s_addc_u32 s95, s95, 0
        s_lshl_b32 s69, s2, 6
        s_add_u32 s69, s69, {2048 + 4224}
        v_lshl_add_u32 v5, v4, 3, s69
        global_load_dwordx2 v[84:85], v5, s[94:95]
        global_load_dwordx4 v[80:83], v{vL16}, s[94:95] offset:1024
        global_load_dwordx4 v[76:79], v{vL16}, s[94:95]
        s_lshl3_add_u32 s68, s2, s{sW}
        v_and_b32 v6, 255, v0
        v_lshlrev_b32 v18, 4, v6
        global_load_dwordx4 v[66:69], v18, s[94:95] offset:2048
        global_load_ushort v70, v18, s[94:95] offset:2064
        s_and_b32 s{sXCD}, s2, 7
        s_mul_i32 s{sP}, s{sXCD}, 28
        s_add_u32 s{sP}, s{sP}, s{sI}
        s_min_u32 s{sP}, s{sP}, 223
        s_lshl_b32 s70, s{sP}, 10
        v_lshl_add_u32 v64, v0, 1, s70
        s_mul_i32 s73, s68, 896
        s_mov_b32 s{rX+2}, 896
        s_mov_b32 s{rX+3}, 0x20000
        s_mov_b32 s{rW+3}, 0x20000
        s_mov_b32 s{rWS+2}, {WS_BYTES}
        s_mov_b32 s{rWS+3}, 0x20000
        s_lshl_b32 s93, s{sW}, 11
        s_add_u32 s93, s93, {L_PK}
        s_lshl_b32 s71, s{sP}, 2
        s_mov_b32 s72, {EP}
        s_add_u32 s{rX}, s{sX}, s73
        s_addc_u32 s{rX+1}, s{sX+1}, 0
        buffer_load_dwordx4 v[28:31], v{vL16}, {sr(rX)}, 0 offen""")
        if s.stamps: s('v_writelane_b32 v3, s100, 0\nv_writelane_b32 v3, s96, 60')
        s.stamp(1)
        s(f"""s_load_dword s{sTAG}, {sr(sWS,2)}, s72
        s_load_dword s{sLDT}, {sr(sDT,2)}, s71
        s_load_dword s{sD1}, {sr(sDS,2)}, s71
        global_load_ushort v60, v64, {sr(sLA,2)}
        global_load_ushort v61, v64, {sr(sAI,2)}
        global_load_ushort v62, v64, {sr(sCR,2)}
        global_load_ushort v63, v64, {sr(sCI,2)}
        v_readfirstlane_b32 s90, v84
        v_readfirstlane_b32 s91, v85
        s_lshr_b32 s43, s90, 24
        s_and_b32 s90, s90, 0xffffff
        s_bitcmp1_b32 s43, 0
        s_cselect_b64 s[20:21], s[22:23], s[20:21]
        s_cselect_b64 s[24:25], s[26:27], s[24:25]
        s_cmp_eq_u32 s43, 2
        s_cselect_b64 vcc, -1, 0
        s_movk_i32 s89, 896
        s_cmovk_i32 s89, 3584
        s_cmp_lt_u32 s43, 2
        s_cselect_b64 {sr(rW,2)}, s[20:21], s[24:25]
        s_cselect_b32 s{rW+2}, {448*896}, 0
        s_cselect_b64 s[72:73], -1, 0
        s_lshl4_add_u32 s89, s89, s90
        s_mov_b32 s{rWS}, s{sWS}
        s_mov_b32 s{rWS+1}, s{sWS+1}
        v_cndmask_b32_sdwa v23, v81, v82, vcc dst_sel:DWORD dst_unused:UNUSED_PAD src0_sel:WORD_1 src1_sel:WORD_0""")
        if s.cfg.dma_at >= 0: s.pack_dma()

    def cpf(s, once):
        l = s.lab('cp')
        s(f'v_lshl_add_u32 v7, v0, 8, s2' if once else f'v_lshl_add_u32 v7, v0, 5, s{sI}')
        s(f"""v_lshlrev_b32 v7, 7, v7
        v_cmp_gt_u32 vcc, @CODE_BYTES@, v7
        s_and_saveexec_b64 s[70:71], vcc
        s_cbranch_execz {l}""")
        s.raw('    global_load_dword v255, v7, s[94:95]')
        s.label(l)
        s('s_mov_b64 exec, -1')
    def clear(s):
        for i in range(4): s(f'v_mov_b32 v{72+i}, -1')
        s.hstore(72)
    def hstore(s, r): return s(f'buffer_store_dwordx4 {vr(r)}, v12, {sr(rWS)}, s{sHD} offen sc1')

    def setup(s):
        s.comment('offsets and lane addresses (in the shadow of the first loads)')
        assert L_U % 512 == 0
        s(f"""s_mov_b64 vcc, s[72:73]
        s_lshr_b32 s{sPD1}, s91, 16
        s_lshl_b32 s{sPD1}, s{sPD1}, 10
        v_cndmask_b32_sdwa v24, v81, v80, vcc dst_sel:DWORD dst_unused:UNUSED_PAD src0_sel:WORD_0 src1_sel:WORD_1
        s_and_b32 s{sPD0}, s91, 0xffff
        s_lshl_b32 s{sPD0}, s{sPD0}, 10
        v_mul_u32_u24 v71, 1171, v0
        s_lshl_b32 s70, s{sW}, 7
        v_add_u32 v24, s93, v24""")
        s.W(27, 13, 's70')
        s(f"""s_mul_i32 s70, s{sW}, {LNP}
        v_lshrrev_b32 v71, 16, v71
        v_add_u32 v26, s70, v{vL16}
        s_mul_i32 s70, s2, 896
        s_lshl_b32 s71, s{sW}, 10
        v_mul_u32_u24 v71, {229376 - 896}, v71
        s_add_u32 s70, s70, s71
        s_add_u32 s{sUO}, s70, {GX}
        v_add_u32 v71, v71, v{vL16}""")
        s.W(12, 5, 4, 'lshlrev_b32')
    def setup_b(s):
        s(f"""s_lshl_b32 s71, s{sW}, 10
        s_lshl4_add_u32 s{sFO}, s2, {FA}
        s_add_u32 s{sUM}, s71, {L_U + 1024}
        v_add_u32 v13, s71, v{vL16}
        s_lshl_b32 s70, s{sW}, 13
        v_add_u32 v14, s70, v{vL16}
        s_lshl_b32 s70, s{sW}, 9
        s_mul_i32 s72, s{sXCD}, {FCP}
        s_add_u32 s70, s70, s72
        s_add_u32 s70, s70, {FA}
        v_and_b32 v17, 0x1f0, v{vL16}
        v_add_u32 v17, s70, v17
        s_mul_i32 s{sKG}, s{sW}, {16*KGP}
        s_add_u32 s{sKG}, s{sKG}, {L_KG}""")
        s.W(20, 8, f's{sKG}'); s.W(10, 3); s.W(11, 4); s.W(15, 6, f's{sUM}')
        s(f"""s_and_b32 s70, s{sW}, 3
        s_lshr_b32 s71, s{sW}, 2
        s_mul_i32 s73, s71, {KECH}
        s_add_u32 s73, s73, {L_KE}
        v_add_u32 v18, s73, v18
        s_lshl_b32 s72, s70, 7
        s_sub_u32 s72, s73, s72
        s_add_u32 s72, s72, {4*(1015 - 144) - 28}""")
        s.W(4, 0, 's72')
        s(f"""s_lshl_b32 s72, s70, 8
        s_sub_u32 s72, {L_U}, s72
        v_xor_b32 v16, 16, v15""")
        s.W(8, 1, 's72'); s.W(9, 2, 's72')
        s(f"""s_xor_b32 s72, s70, s71
        s_and_b32 s72, s72, 1
        s_lshl_b32 s72, s72, 4
        v_subrev_u32 v5, 1024, v4
        v_subrev_u32 v6, 2048, v4
        v_subrev_u32 v7, 3072, v4
        v_xor_b32 v8, s72, v8
        v_xor_b32 v9, s72, v9
        s_lshl_b32 s72, s70, 2
        s_mul_i32 s70, s71, {KTSZ}
        s_add_u32 s70, s70, {L_KT}
        s_mov_b32 s73, {L_KE + 4096}""")
        s.W(19, 7, 's72', 'xor_b32'); s.W(88, 14, 's73')
        s(f"""v_mov_b32 v84, 0
        v_mov_b32 v85, 0
        v_mov_b32 v86, 0
        v_mov_b32 v87, 0
        v_add_u32 v19, s70, v19
        v_add_u32 v89, {L_U}, v{vL16}
        v_mov_b32 v90, s70
        ds_write_b128 v88, v[84:87]
        ds_write_b128 v89, v[84:87]
        ds_write_b128 v90, v[84:87] offset:{768*16}""")
        for t in range(9):
            s(f'v_add_u32_sdwa v{132+t}, s70, v{66+t//2} dst_sel:DWORD dst_unused:UNUSED_PAD src0_sel:DWORD src1_sel:WORD_{t&1}')
    def scalars(s):
        return f"""s_mov_b32 s{rG}, s{sWS}
        s_mov_b32 s{rG+1}, s{sWS+1}
        s_cmp_eq_u32 s{sW}, 7
        s_cselect_b32 s{rG+2}, 0, {WS_BYTES}
        s_mov_b32 s{rG+3}, 0x20000
        s_mul_i32 s{sHD}, s{sW}, 229376
        s_lshl_b32 s68, s{sP}, 7
        s_add_u32 s{sHD}, s{sHD}, s68
        s_add_u32 s{sHD}, s{sHD}, {X1}
        s_lshr_b32 s68, s{sI}, 2
        s_lshl3_add_u32 s{sTB}, s{sXCD}, s68
        s_and_b32 s{sQ}, s{sI}, 3
        s_lshr_b32 s{sCL}, s{sTB}, 1
        s_and_b32 s{sM}, s{sI}, 7
        s_mul_i32 s{sCT}, s{sQ}, 7
        s_add_u32 s{sCT}, s{sCT}, s{sW}
        s_mul_i32 s{sA1}, s{sCT}, {14*1024}
        s_add_u32 s{sA2}, s{sA1}, {W2P}
        s_mul_i32 s{sA3}, s{sM}, 7
        s_add_u32 s{sA3}, s{sA3}, s{sW}
        s_mul_i32 s{sA4}, s{sA3}, {28*1024}
        s_add_u32 s{sA3}, s{sA4}, {W3P}
        s_add_u32 s{sA4}, s{sA4}, {W4P}
        s_lshl3_add_u32 s{sUS}, s{sXCD}, s{sW}
        s_mul_i32 s{sUS}, s{sUS}, 28672
        s_lshl_b32 s68, s{sI}, 5
        s_add_u32 s{sUS}, s{sUS}, s68
        s_add_u32 s{sUS}, s{sUS}, {GX}
        s_lshl_b32 s{sSM}, s{sW}, 11
        s_add_u32 s{sSM}, s{sSM}, {SM}
        s_mov_b32 s{sFAST}, 0
        s_and_b32 s68, s43, 6
        s_cmp_eq_u32 s68, 2
        s_cselect_b32 s{rW+2}, {448*3584}, 0
        s_cselect_b32 s{sPACT}, {WS_BYTES}, 0"""
    def h2_addr(s):
        return f"""v_lshrrev_b32 v19, 3, v0
        v_and_b32 v20, 7, v0
        v_lshlrev_b32 v21, 9, v19
        v_lshl_add_u32 v21, v20, 4, v21
        s_andn2_b32 s70, 1, s{sQ}
        v_add_u32 v20, s70, v20
        v_mul_u32_u24 v22, 768, v19
        v_lshrrev_b32 v18, 2, v20
        v_lshl_add_u32 v22, v18, 8, v22
        v_and_b32 v18, 3, v20
        v_lshl_add_u32 v22, v18, 4, v22
        v_add_u32 v22, {L_HI}, v22
        s_mul_i32 s88, s{sTB}, 28672
        s_add_u32 s88, s88, {X1}
        v_add_u32 v26, {FB - FA}, v17"""

    def pack_early(s):
        s.wait(s.h_pack)
        s(f"""ds_read_b64_tr_b16 v[52:53], v24
        ds_read_b64_tr_b16 v[54:55], v24 offset:256
        ds_read_b64_tr_b16 v[56:57], v24 offset:32
        ds_read_b64_tr_b16 v[58:59], v24 offset:288
        buffer_store_dwordx4 v[52:55], v{vL16}, {sr(rWS)}, s{sPD0} offen sc1
        buffer_store_dwordx4 v[56:59], v{vL16}, {sr(rWS)}, s{sPD1} offen sc1""")

    def ln(s):
        s.comment('layernorm of one token per wave')
        s('v_mov_b32 v51, 0x3f803f80\nv_dot2_f32_bf16 v48, v28, v51, 0')
        s.stamp(2)
        s('v_dot2_f32_bf16 v49, v28, v28, 0')
        for i in (29, 30, 31): s(f'v_dot2_f32_bf16 v48, v{i}, v51, v48\nv_dot2_f32_bf16 v49, v{i}, v{i}, v49')
        un = []
        for i in range(4): un += [f'v_lshlrev_b32 v{32+2*i}, 16, v{28+i}', f'v_and_b32 v{33+2*i}, 0xffff0000, v{28+i}']
        s(un.pop()); s(un.pop()); s(f'v_mov_b32 v50, {INVD}')
        for m in ('row_shr:1', 'row_shr:2', 'row_shr:4', 'row_shr:8', 'row_bcast:15 row_mask:0xa', 'row_bcast:31 row_mask:0xc'):
            s(f'v_add_f32_dpp v48, v48, v48 {m}\nv_add_f32_dpp v49, v49, v49 {m}')
            s(un.pop())
        s(f"""v_readlane_b32 s70, v48, 63
        v_readlane_b32 s71, v49, 63
        s_lshl_b32 s72, s{sW}, 3
        v_mov_b32 v65, s72
        v_mul_f32 v49, s70, v50
        v_mul_f32 v48, s71, v50
        v_fma_f32 v48, -v49, v49, v48
        v_max_f32 v48, 0, v48
        v_add_f32 v48, {EPS}, v48
        v_rsq_f32 v51, v48
        s_mov_b32 exec_hi, 0x00ffffff
        v_mul_f32 v50, -v49, v51""")
        for i in range(4): s(f'v_pk_fma_f32 {vr(40+2*i,2)}, v[50:51], {vr(32+2*i,2)}, v[50:51] op_sel:[1,0,0] op_sel_hi:[1,1,0]')
        s('s_mov_b32 s70, 0x0d800000')
        for i in range(4): s(f'v_pk_mul_f32 {vr(40+2*i,2)}, {vr(40+2*i,2)}, s[70:71] op_sel_hi:[1,0]')
        for i in range(4): s(f'v_cvt_pk_bf16_f32 v{28+i}, v{40+2*i}, v{41+2*i}')
        s(f"""ds_write_b128 v26, v[28:31] offset:{L_LN}
        v_mul_f32 v48, v48, v51
        s_mov_b64 exec, 1
        ds_write_b64 v65, v[48:49] offset:{L_SM}
        s_mov_b64 exec, -1""")
        s.barrier()
        s(f"""ds_read_b64_tr_b16 v[48:49], v27 offset:{L_LN}
        ds_read_b64_tr_b16 v[50:51], v27 offset:{L_LN + 4*LNP}
        s_lshr_b32 s{sTAG}, s{sTAG}, 4
        s_mul_i32 s{sTAG}, s{sTAG}, 1664525
        s_add_u32 s{sTAG}, s{sTAG}, 1013904223
        s_lshl_b32 s{sTAG}, s{sTAG}, 4
        s_and_b32 s78, s{sTAG}, 0x70000000
        s_or_b32 s78, s78, 0x6000
        s_lshl_b32 s79, s{sTAG}, 3
        s_and_b32 s79, s79, 0x70000000
        s_or_b32 s79, s79, 0x1000
        s_lshl_b32 s80, s{sTAG}, 8
        s_and_b32 s80, s80, 0x70007000
        s_lshl_b32 s81, s{sTAG}, 5
        s_and_b32 s81, s81, 0x70007000
        v_mov_b32 v46, 0x8fff8ffe
        v_mov_b32 v47, 0x8fff8fff
        v_and_or_b32 v48, v48, v46, s78
        v_and_or_b32 v49, v49, v47, s79
        v_and_or_b32 v50, v50, v47, s80
        v_and_or_b32 v51, v51, v47, s81""")
        s.cond(f's_cmp_lg_u32 s{sW}, 7', lambda: s(f's_mov_b64 exec, 15\nds_read_b128 v[48:51], v{vL16} offset:{L_SM}\nv_mov_b32 v71, v{vL16}\ns_lshl_b32 s{sUO}, s2, 6\ns_add_u32 s{sUO}, s{sUO}, {SM}'), flush=False)
        s(f'buffer_store_dwordx4 v[48:51], v71, {sr(rWS)}, s{sUO} offen sc1\ns_mov_b64 exec, -1')
        s.stamp(3)
        s(f's_getreg_b32 s70, hwreg(HW_REG_XCC_ID, 0, 4)\ns_add_u32 s{sTX}, s70, s{sTAG}')
        s.wait(*[h for h, r in s.vm if r])
        s.stamp(40)
        s.cond(f's_cmp_ge_u32 s43, 2', s.pack_early)

    def pack_dma(s):
        s(f's_mov_b32 m0, s93\nbuffer_load_dwordx4 v23, {sr(rW)}, s90 offen lds\ns_add_u32 m0, s93, 1024')
        s.h_pack = s(f'buffer_load_dwordx4 v23, {sr(rW)}, s89 offen lds')
    def publish_a(s, conv=True):
        s.wait_vm(0, force=True)
        s('s_barrier')
        s.stamp(5)
        s.gflag8(0, sFO, sTX, 118)
        s(f's_lshl4_add_u32 s{sFO}, s2, {FB}')
        if s.cfg.dma_at == 1 or not conv: s.pack_dma(); s(f's_mov_b32 m0, s{sKG}')
    def pack_late_store(s):
        P = 240
        s.wait(s.h_pack)
        for e in range(4): s(f'ds_read_b64_tr_b16 {vr(P+2*e,2)}, v24 offset:{1024*(e>>1) + 256*(e&1)}')
        def colsum():
            s(f's_mov_b32 vcc_lo, 0xf0f00f0f\ns_mov_b32 vcc_hi, 0xf0f00f0f\nv_mov_b32 v{P+12}, 0x3f803f80')
            for i in range(4): s(f'v_cndmask_b32 v{P+8+i}, 0, v{P+12}, vcc')
            s(f'''s_lshr_b32 s72, s{sPD0}, 4
            s_add_u32 s72, s72, {CSP - W3P // 16}
            v_mfma_f32_16x16x32_bf16 {vr(P+12)}, {vr(P+8)}, {vr(P)}, 0
            v_mfma_f32_16x16x32_bf16 {vr(P+12)}, {vr(P+8)}, {vr(P+4)}, {vr(P+12)}
            v_lshlrev_b32 v{P+8}, 2, v{vL}
            s_mov_b32 exec_hi, 0
            buffer_store_dword v{P+12}, v{P+8}, {sr(rWS)}, s72 offen sc1
            s_mov_b32 exec_hi, -1''')
        s.cond('s_cmp_lg_u32 s43, 2', colsum, drain=False)
        s(f"""s_mov_b32 s{rW}, s{sWS}
        s_mov_b32 s{rW+1}, s{sWS+1}
        s_mov_b32 s{rW+2}, s{sPACT}
        buffer_store_dwordx4 {vr(P)}, v{vL16}, {sr(rW)}, s{sPD0} offen sc1""")
        s.h_pst = s(f'buffer_store_dwordx4 {vr(P+4)}, v{vL16}, {sr(rW)}, s{sPD1} offen sc1')

    def cm(s, d, a, b, t):
        return [f'v_pk_mul_f32 {vr(t,2)}, {vr(a,2)}, {vr(b,2)} op_sel_hi:[1,0]',
                f'v_pk_fma_f32 {vr(d,2)}, {vr(a,2)}, {vr(b,2)}, {vr(t,2)} op_sel:[1,1,0] op_sel_hi:[0,1,1] neg_lo:[1,0,0]']
    def kgen(s):
        c = s.cfg
        s.pin(c.pins[0])
        assert c.fa_at <= c.poll_at <= c.chk_at
        Z = lambda k: 74 + 2 * k
        Z128, ZD, R0, R1, TT = 92, 94, 112, 114, 116
        CH = [(96, 98, 100, 102), (104, 106, 108, 110)]
        BF, AF, ACC = 156, (172, 188, 204), 220
        s(f"""s_lshl_b32 s70, s{sLDT}, 16
        s_and_b32 s71, s{sLDT}, 0xffff0000
        s_cmp_lt_u32 s{sW}, 4
        s_cselect_b32 s72, s70, s71
        s_mov_b32 s70, {LOG2E}
        s_mov_b32 s71, {INV2PI}
        v_mov_b32 v64, s72
        v_lshlrev_b32 v60, 16, v60
        v_mul_f32 v64, s70, v64
        v_mul_f32 v60, s70, v60
        v_exp_f32 v64, v64
        v_exp_f32 v60, v60
        v_lshlrev_b32 v61, 16, v61
        v_lshlrev_b32 v62, 16, v62
        v_lshlrev_b32 v63, 16, v63
        v_cvt_pk_bf16_f32 v64, v64, v60
        v_and_b32 v60, 0xffff0000, v64
        v_lshlrev_b32 v64, 16, v64
        v_pk_mul_f32 v[60:61], v[60:61], v[64:65] op_sel_hi:[1,0]
        v_add_f32 v64, v64, v64
        v_pk_mul_f32 v[60:61], v[60:61], s[70:71]
        v_pk_mul_f32 {vr(R0,2)}, v[62:63], v[64:65] op_sel_hi:[1,0]
        s_mov_b32 m0, s{sKG}
        s_mov_b32 s70, 0x41000000
        s_mov_b32 s71, 0x43000000
        v_pk_mul_f32 v[62:63], v[60:61], s[70:71] op_sel_hi:[1,0]
        v_pk_mul_f32 v[64:65], s[70:71], v[60:61] op_sel:[1,0]
        s_lshl_b32 s{sD0}, s{sD1}, 16
        s_and_b32 s{sD1}, s{sD1}, 0xffff0000""")
        for r in (62, 64, 60): s(f'v_exp_f32 v{r}, -v{r}\nv_fract_f32 v{r+1}, v{r+1}')
        for r, d in ((62, Z(8)), (64, Z128), (60, Z(1))): s(f'v_cos_f32 v{d}, v{r+1}\nv_sin_f32 v{d+1}, v{r+1}')
        for r, d in ((62, Z(8)), (64, Z128), (60, Z(1))): s(f'v_pk_mul_f32 {vr(d,2)}, {vr(d,2)}, {vr(r,2)} op_sel_hi:[1,0]')
        s.stamp(4)
        def chain(st, rows, start, mul, neg=False):
            a, b, t, pk = CH[st]; out = []; cur, nxt = start, a
            for i, row in enumerate(rows):
                cc = s.cm(nxt, cur, mul, t) if i < len(rows) - 1 else []
                out += cc[:1] + [f'v_cvt_pk_bf16_f32 v{pk + (i&1)}, v{cur}, {"-" if neg else ""}v{cur+1}'] + cc[1:] + [f'ds_write_addtid_b32 v{pk + (i&1)} offset:{row*KGP}']
                cur, nxt = nxt, (b if nxt == a else a)
            return out
        def rd(dst):
            for ks in range(4): s(f'ds_read_b128 {vr(dst+4*ks)}, v20 offset:{64*ks}')
        E = lambda l: [s(x) for x in l]
        zz = zipl if c.two else (lambda *a: sum(a, []))
        uld = f'buffer_load_dwordx4 v[120:123], v10, {sr(rWS)}, s{sUS} offen sc1'
        uck = [f'v_xor_b32 v{120+i}, s{78+i}, v{120+i}' for i in range(4)] + ['v_or3_b32 v119, v120, v121, v122', 'v_or_b32 v119, v119, v123', 'v_and_b32 v119, 0x70007000, v119', 'v_cmp_ne_u32 vcc, 0, v119']
        def hook(k):
            if c.fa_at == k: s.publish_a()
            if c.u_at == k: s(uld)
            if c.poll_at == k: s.poll_issue(118, 17, 0)
            if c.dma_at == k and k > 1:
                s.pack_dma()
                if k < 4: s(f's_mov_b32 m0, s{sKG}')
            if c.uchk_at == k:
                retry, back = s.lab('ur'), s.lab('ub')
                for l in uck: s(l)
                s(f's_mov_b32 s97, 0\ns_cbranch_vccnz {retry}'); s.label(back)
                s.ool.append(f'{retry}:\n    {uld}\n    s_add_u32 s97, s97, 1\n    s_cmp_gt_u32 s97, {SPIN}\n    s_waitcnt vmcnt(0)\n    s_cbranch_scc1 {back}\n'
                             + ''.join(f'    {l}\n' for l in uck) + f'    s_nop 1\n    s_cbranch_vccnz {retry}\n    s_branch {back}\n')
                if s.stamps: s('v_writelane_b32 v3, s97, 44')
                for i in range(4): s(f'v_add_u32 v{120+i}, 0x32003200, v{120+i}')
                s(f'v_add_u32 v119, s{sUM}, v{vL16}\nds_write_b128 v119, v[120:123]')
                s.stamp(8)
            if c.chk_at == k:
                s.poll_check(118, 17, 0, c.fa_sleep)
                if s.stamps: s('v_writelane_b32 v3, s97, 58')
            if c.pst_at == k: s.pack_late_store()
        hook(0)
        if c.two:
            E(zipl(s.cm(ZD, Z(8), Z(8), 100), s.cm(R1, R0, Z(8), 108), s.cm(Z(2), Z(1), Z(1), TT)))
            E(zipl(chain(0, range(0, 16, 2), R0, ZD, True), chain(1, range(1, 16, 2), R1, ZD, True)))
            rd(BF)
            E(zipl(s.cm(ZD, Z128, Z128, 100), s.cm(R1, Z(8), Z128, 108), s.cm(Z(4), Z(2), Z(2), TT)))
            hook(1); s.stamp(35)
            E(zipl(chain(0, range(0, 16, 2), Z(8), ZD), chain(1, range(1, 16, 2), R1, ZD)))
        else:
            rc = chain(0, range(16), R0, Z(8), True)
            E(rc[:4*c.rsplit]); hook(0.5); E(rc[4*c.rsplit:])
            rd(BF)
            E(s.cm(Z(2), Z(1), Z(1), TT) + s.cm(Z(4), Z(2), Z(2), TT))
            hook(1); s.stamp(35)
            E(chain(0, range(16), Z(8), Z128))
        rd(AF[0])
        E(zipl(s.cm(Z(6), Z(4), Z(2), 100), s.cm(Z(3), Z(2), Z(1), 108), s.cm(Z(5), Z(4), Z(1), TT)))
        hook(2); s.stamp(36)
        E(zz(chain(0, range(0, 8), Z(4), Z128), chain(1, range(8, 12), Z(2), Z128) + chain(1, range(12, 16), Z(6), Z128), s.cm(Z(7), Z(6), Z(1), TT)))
        rd(AF[1])
        s.stamp(47); hook(3); s.stamp(37)
        E(zz(chain(0, (0, 1), Z(1), Z128) + chain(0, (4, 5), Z(5), Z128), chain(1, (2, 3), Z(3), Z128) + chain(1, (6, 7), Z(7), Z128)))
        s(f'v_mov_b32 v{TT}, 0x3f80\nds_write_addtid_b32 v{TT} offset:{8*KGP}')
        rd(AF[2])
        s.stamp(6); hook(4)
        if c.kbar: s('s_barrier')
        mf = lambda t, ks: f'v_mfma_f32_16x16x32_bf16 {vr(ACC+4*t)}, {vr(AF[t]+4*ks)}, {vr(BF+4*ks)}, {vr(ACC+4*t) if ks else 0}'
        wr = lambda t, r: f'ds_write_b32 v19, v{ACC+4*t+r} offset:{(16*t+r)*256}'
        if c.ktm:
            E([mf(0, k) for k in range(4)] + [mf(1, k) for k in range(4)] + zipl([mf(2, k) for k in range(4)], [wr(0, r) for r in range(4)]))
            E([wr(t, r) for t in (1, 2) for r in range(4)])
        else:
            E([mf(t, k) for k in range(4) for t in range(2)] + [mf(2, k) for k in range(4)] + [wr(t, r) for t in range(3) for r in range(4)])
        s.stamp(48); hook(5)
        s.barrier()
        s.stamp(7)
        hook(5.5)
        for t in range(9): s(f'ds_read_b128 {vr(28+4*t)}, v{132+t}')
        hook(6)
        if c.chk_at <= 5 and c.pst_at != 7: s.feed(c.f_kt, 63)
        for t in range(9):
            s(f'v_pk_add_f32 {vr(28+4*t,2)}, {vr(28+4*t,2)}, {vr(30+4*t,2)}')
            if t: s(f'v_add_f32 v{24+4*t}, v{24+4*t}, v{25+4*t}')
        s('v_add_f32 v60, v60, v61')
        for i in range(4): s(f'v_cvt_pk_bf16_f32 v{64+i}, v{28+8*i}, v{32+8*i}')
        s('ds_write_b128 v18, v[64:67]')
        for i in range(4): s(f'v_cvt_pk_bf16_f32 v{68+i}, v{32+8*i}, v{36+8*i}')
        s(f'ds_write_b128 v18, v[68:71] offset:{KEO}')
        s.stamp(9); hook(7)
        if c.chk_at <= 5 and c.pst_at == 7: s.feed(c.f_kt, 63)

    def conv(s):
        c = s.cfg
        A, B, ACC = 28, 60, 92
        def rd(kind, slot, e, j):
            if kind == 'B': return [f'ds_read_b128 {vr(B+4*slot)}, v{8+e} offset:{1024*j}']
            off = 16 * (1 - e) + 128 * (1 - (j & 1))
            return [f'ds_read2_b32 {vr(A+4*slot+2*h,2)}, v{4+(j>>1)} offset0:{off+2*h} offset1:{off+2*h+1}' for h in range(2)]
        M = []
        for k in range(8):
            p1 = [(k, j) for j in range(k + 1) if k + j <= 7]; p2 = [(j, k) for j in range(k) if k + j <= 7]
            M += [(0, a, b) for a, b in p1 + p2]
        if c.cil:
            for nu in range(0, 8, 2): M += [(1, a, b) for a, b in zipl([(a, nu + 1 - a) for a in list(range(1, nu + 1)) + [0, nu + 1]], [(a, nu - a) for a in range(nu + 1)])]
        else:
            for nu in range(8): M += [(1, a, nu - a) for a in range(nu + 1)]
        slot = {(0, j): j for j in range(8)}
        for k in range(4, 8): slot[1, 2*(k-4)] = k; slot[1, 2*(k-4) + 1] = 7 - k
        ops = []
        for e in range(2):
            for j in range(8):
                for kind, ix in (('A', 1), ('B', 2)):
                    need = min(n for n, m in enumerate(M) if m[0] == e and m[ix] == j)
                    early = -1 if e == 0 else max(n for n, m in enumerate(M) if m[0] == 0 and m[ix] == slot[1, j])
                    ops += [(need, early, t) for t in rd(kind, slot[e, j], e, j)]
        ops.sort(key=lambda o: o[0])
        D = {n: [] for n in range(-1, 73)}
        pos = -1.0
        for i, (need, early, t) in enumerate(ops):
            if i < c.chead: D[-1].append(t); continue
            pos = max(pos + c.cpace, early)
            pos = max(min(pos, need - c.clead), early)
            D[int(pos)].append(t)
        done = {nu: max(n for n, m in enumerate(M) if m[1] + m[2] == nu) for nu in range(8)}
        at = c.cy0
        for nu in range(8):
            at = max(at, done[nu] + 3)
            D[min(int(at), 72)].append(f'ds_write_b128 v13, {vr(ACC+4*nu)} offset:{L_Y + 8192*nu}')
            at += c.cyp
        s.pin(c.pins[1])
        s.barrier(); s.stamp(10)
        for t in D[-1]: s(t)
        ex = s.spread(c.f_conv, 66, 4)
        bs = ['ds_read_b64 v[140:141], v15', 'ds_read_b64 v[142:143], v16', '', '', '', '']
        for i in range(4): bs += [f'v_lshlrev_b32 v{132+2*i}, 16, v{140+i}', f'v_and_b32 v{133+2*i}, 0xffff0000, v{140+i}']
        for ch in range(2):
            bs += [f'v_add_f32 v{140+r}, s{sD0+ch}, v{124+2*r}' for r in range(4)]
            bs += [f'v_fma_f32 v{132+4*ch+r}, v{132+4*ch+r}, v{140+r}, v{125+2*r}' for r in range(4)]
        ha = s.h2_addr().split('\n')
        seen = set(); assert 3 <= c.hint_at <= 73
        for n, (e, a, b) in enumerate(M):
            nu = a + b
            s.fair(n, c.fc)
            s(f'v_mfma_f32_16x16x32_bf16 {vr(ACC+4*nu)}, {vr(A+4*slot[e, a])}, {vr(B+4*slot[e, b])}, {vr(ACC+4*nu) if nu in seen else 0}')
            seen.add(nu)
            for t in D[n]: s(t)
            if n == 1: s(f'buffer_load_dwordx4 v[124:127], v11, {sr(rWS)}, s{sSM} offen sc1')
            if n == 2: s(f'buffer_load_dwordx4 v[128:131], v11, {sr(rWS)}, s{sSM} offen offset:16 sc1\ns_lshl_b32 s68, s2, 6\ns_add_u32 s68, s68, {FH}')
            if c.pst_at == 8 and n == c.pslot: s.pack_late_store()
            if n == c.hint_at: s.gflag(7, 68, sTAG, 23, False, False)
            if ex: ex.pop(0)()
            if n >= 4 and ha: s(ha.pop(0))
            if n >= 40 and bs: s(bs.pop(0))
        if c.fc: s('s_setprio 0')
        for t in D[72]: s(t)
        assert not bs and not ha
        s.stamp(38)
        s.wait(s.h_pst); assert c.f_conv <= 24
        s.barrier(); s.stamp(11)
        for i in (0, 4, 1, 5, 2, 6, 3, 7): s(f'ds_read_b128 {vr(A+4*i)}, v14 offset:{L_Y + 1024*i}')
        fb = lambda: s.gflag8(6, sFO, sTAG, 23)
        if not c.fblate: fb()
        if c.hint_at == 72: s.gflag(7, 68, sTAG, 17, False)
        for i in (0, 4, 1, 5, 2, 6, 3, 7):
            ch = i >> 2
            for h in range(2): s(f'v_pk_add_f32 {vr(132+4*ch+2*h,2)}, {vr(132+4*ch+2*h,2)}, {vr(A+4*i+2*h,2)}')
        for r in range(4): s(f'v_cvt_pk_bf16_f32 v{140+r}, v{132+r}, v{136+r}')
        s('v_and_b32 v140, -2, v140')
        h = s.hstore(140)
        s.stamp(12)
        if c.fblate: fb()
        if c.hint_at == 73: s.gflag(7, 68, sTAG, 17, False)
        s.feed(c.f_hst, 63)
        return h

    def nonconv(s):
        c = s.cfg
        s(f'v_lshlrev_b32 v15, 7, v{vL}')
        if c.sb_at == 1: s.setup_b()
        s(f'v_lshlrev_b32 v15, 7, v{vL}')
        s(s.h2_addr())
        if c.dma_at == 0: s.pack_dma()
        s.publish_a(False)
        s.pack_late_store()
        s.poll(18, 17, 0, sleep=8)
        s.barrier(); s.stamp(8)
        s.gflag8(1, sFO, sTAG, 118)
        s(f's_add_u32 s70, s{sA2}, {14*1024 - 8192}')
        s.feed(c.f_hst, c.nc_depth)
        if c.warm: s(f'buffer_load_dword v119, v15, {sr(rG)}, s70 offen')
        s.wait_vm(0); s.stamp(10)
    def hint_wait(s):
        def body():
            s(f's_lshl_b32 s68, s2, 6\ns_add_u32 s68, s68, {FH - 32*64}\nv_mov_b32 v9, 0')
            s.poll(8, 9, 's68', 1, 0, sleep=4)
        s.cond(f's_cmp_lt_u32 s{sI}, 28', body)

    def h2(s, behind, mid=lambda: None, halo=False):
        ld = [f'buffer_load_dwordx4 {vr(8+4*j)}, v4, {sr(rWS)}, s88 offen offset:{128*j} sc1' for j in range(4)]
        chk = ['v_or3_b32 v24, v8, v12, v16', 'v_or_b32 v24, v24, v20', 'v_and_b32 v24, 1, v24', 'v_cmp_eq_u32 vcc, 1, v24']
        if s.cfg.hdel: s(f's_sleep {s.cfg.hdel}')
        for l in ld: s(l)
        s.poll_issue(25, 26, 0)
        mid()
        for l in chk: s(l)
        retry, back = s.lab('hr'), s.lab('hb')
        s(f's_mov_b32 s97, 0\ns_cbranch_vccnz {retry}')
        s.label(back)
        s.ool.append(f'{retry}:\n' + ('    s_mov_b64 exec, vcc\n' if s.cfg.hmask else '') + ''.join(f'    {l}\n' for l in ld) + f'    buffer_load_dword v25, v26, {sr(rWS)}, 0 offen sc1\n    s_add_u32 s97, s97, 1\n    s_cmp_gt_u32 s97, {SPIN}\n    s_waitcnt vmcnt(0)\n    s_cbranch_scc1 {back}\n'
                     + ''.join(f'    {l}\n' for l in chk) + f'    s_nop 1\n    s_cbranch_vccnz {retry}\n    s_branch {back}\n')
        if s.cfg.hmask: s('s_mov_b64 exec, -1')
        if s.stamps: s('v_writelane_b32 v3, s97, 59')
        s.stamp(14)
        if not s.cfg.hfeed: behind()
        if halo:
            s(f's_bitcmp1_b32 s{sQ}, 0\ns_cselect_b64 vcc, -1, 0')
            for i in range(2):
                for j in range(4): s(f'v_cndmask_b32 v{28+4*i+j}, v{10+4*j+i}, v{8+4*j+i}, vcc')
                s(f'ds_write_b128 v5, {vr(28+4*i)} offset:{64*i}')
        else:
            for j in range(4):
                for i in range(j): s(f'v_swap_b32 v{8+4*j+i}, v{8+4*i+j}')
            for i in range(4): s(f'ds_write_b128 v5, {vr(8+4*i)} offset:{64*i}')
        s.stamp(32)
        s.poll_check(25, 26, 0, 2)
        if s.cfg.hfeed: behind()
        if s.stamps: s('v_writelane_b32 v3, s97, 57')

    def stats_tail(s, a, extra, vadr, tab):
        s('s_mov_b64 exec, -1')
        for t in range(3): s(f'v_cndmask_b32 v{a+4*t}, v{a+4*t}, v{a+4*t+1}, s[92:93]')
        for t in range(3): s(f'v_cndmask_b32 v{a+4*t}, v{a+4*t}, v{a+4*t+2}, s[94:95]')
        for t in (1, 2):
            s(f'v_mov_b32_dpp v{a+4*t+1}, v{a+4*t+3} row_ror:{4*t}\nv_mov_b32_dpp v{a+4*t+2}, v{a+4*t} row_ror:{4*t}')
        for t in (1, 2):
            s(f'v_cndmask_b32 v{a+3}, v{a+3}, v{a+4*t+1}, {sr(76+2*t,2)}\nv_cndmask_b32 v{a}, v{a}, v{a+4*t+2}, {sr(76+2*t,2)}')
        s(f'''s_mov_b32 exec_lo, 0x77700777
        s_mov_b32 exec_hi, 0x70777707
        v_mul_f32 v{a+3}, s96, v{a+3}
        v_mul_f32 v{a}, s96, v{a}
        v_fma_f32 v{a}, -v{a+3}, v{a+3}, v{a}
        v_max_f32 v{a}, 0, v{a}''')
        if extra:
            s(f'''v_fmaak_f32 v{a+2}, v{a}, v49, {fh(1e-10)}
            v_add_f32 v51, {EPS}, v{a}
            v_rsq_f32 v{a+1}, v{a+2}
            v_rsq_f32 v51, v51
            v_mul_f32 v{a}, {fh(C1)}, v{a+1}
            v_mul_f32 v{a+4}, {fh(0.044715)}, v{a+1}
            v_mul_f32 v{a+2}, v{a+2}, v{a+1}
            v_mul_f32 v{a+1}, v{a+1}, v{a}
            v_mul_f32 v50, -v{a+3}, v51
            v_mul_f32 v{a+1}, v{a+1}, v{a+4}
            ds_write_b64 v{extra}, v[50:51] offset:{tab // 2}
            ds_write_b128 v{vadr}, {vr(a)} offset:{tab}''')
        else:
            s(f'''v_add_f32 v50, {EPS}, v{a}
            v_rsq_f32 v{a+1}, v50
            v_cvt_pk_bf16_f32 v{a}, -v{a+3}, -v{a+3}
            v_mul_f32 v{a+2}, {fh(C1)}, v{a+1}
            v_mul_f32 v{a+4}, {fh(0.044715)}, v{a+1}
            v_and_b32 v51, 0xffff0000, v{a}
            v_add_f32 v51, v51, v{a+3}
            v_mul_f32 v{a+3}, v50, v{a+1}
            v_mul_f32 v{a+1}, v{a+1}, v{a+2}
            v_and_b32 v{a+2}, 0xffffff7f, v{a+2}
            v_mul_f32 v{a+1}, v{a+1}, v{a+4}
            v_and_b32 v{a+3}, 0xffffff7f, v{a+3}
            v_and_b32 v{a+1}, 0xffffff7f, v{a+1}
            ds_write_b128 v{vadr}, {vr(a)} offset:{tab}
            v_cvt_pk_bf16_f32 v{a}, -v51, -v51
            ds_write_b128 v{vadr}, {vr(a)} offset:{tab + 512}''')
    def gelu_pk(s, acc, cs, st, n, t, out):
        P = range(0, n, 2); o = []
        if s.cfg.gsc:
            R = range(n)
            o += [f'v_fma_f32 v{acc+i}, -v{cs+i}, v{st+3}, v{acc+i}' for i in R]
            if s.cfg.gsc == 2: return o + s.gelu_pk2(acc, cs, st, n, t, out)[n//2:]
            o += [f'v_mul_f32 v{t+i}, v{acc+i}, v{acc+i}' for i in R] + [f'v_fma_f32 v{t+i}, v{t+i}, v{st+1}, v{st}' for i in R]
            o += [f'v_mul_f32 v{t+i}, v{t+i}, v{acc+i}' for i in R] + [f'v_exp_f32 v{t+i}, v{t+i}' for i in R]
            o += [f'v_fma_f32 v{t+i}, v{t+i}, v{st+2}, v{st+2}' for i in R] + [f'v_rcp_f32 v{t+i}, v{t+i}' for i in R]
            o += [f'v_mul_f32 v{t+i}, v{t+i}, v{acc+i}' for i in R] + [f'v_cvt_pk_bf16_f32 v{out+i//2}, v{t+i}, v{t+i+1}' for i in P]
            return o
        return s.gelu_pk2(acc, cs, st, n, t, out)
    def gelu_pk2(s, acc, cs, st, n, t, out):
        P = range(0, n, 2); o = []
        o += [f'v_pk_fma_f32 {vr(acc+i,2)}, {vr(st+2,2)}, {vr(cs+i,2)}, {vr(acc+i,2)} op_sel:[1,0,0] op_sel_hi:[1,1,1] neg_lo:[1,0,0] neg_hi:[1,0,0]' for i in P]
        o += [f'v_pk_mul_f32 {vr(t+i,2)}, {vr(acc+i,2)}, {vr(acc+i,2)}' for i in P]
        o += [f'v_pk_fma_f32 {vr(t+i,2)}, {vr(st,2)}, {vr(t+i,2)}, {vr(st,2)} op_sel:[1,0,0] op_sel_hi:[1,1,0]' for i in P]
        o += [f'v_pk_mul_f32 {vr(t+i,2)}, {vr(t+i,2)}, {vr(acc+i,2)}' for i in P]
        o += [f'v_exp_f32 v{t+i}, v{t+i}' for i in range(n)]
        o += [f'v_pk_fma_f32 {vr(t+i,2)}, {vr(t+i,2)}, {vr(st+2,2)}, {vr(st+2,2)} op_sel_hi:[1,0,0]' for i in P]
        o += [f'v_rcp_f32 v{t+i}, v{t+i}' for i in range(n)]
        o += [f'v_pk_mul_f32 {vr(t+i,2)}, {vr(t+i,2)}, {vr(acc+i,2)}' for i in P]
        o += [f'v_cvt_pk_bf16_f32 v{out+i//2}, v{t+i}, v{t+i+1}' for i in P]
        return o
    def gelu_sc(s, acc, cs, st, n, t, out, ex):
        steps = [lambda i: f'v_fma_f32 v{acc+i}, -v{cs+i}, v{st+3}, v{acc+i}', lambda i: f'v_mul_f32 v{t+i}, v{acc+i}, v{acc+i}',
                 lambda i: f'v_fma_f32 v{t+i}, v{t+i}, v{st+1}, v{st}', lambda i: f'v_mul_f32 v{t+i}, v{t+i}, v{acc+i}',
                 lambda i: f'v_exp_f32 v{t+i}, v{t+i}', lambda i: f'v_fma_f32 v{t+i}, v{t+i}, v{st+2}, v{st+2}',
                 lambda i: f'v_rcp_f32 v{t+i}, v{t+i}', lambda i: f'v_mul_f32 v{t+i}, v{t+i}, v{acc+i}',
                 lambda i: f'v_cvt_pk_bf16_f32 v{out+i//2}, v{t+i}, v{t+i+1}' if i % 2 == 0 else '']
        for f in steps:
            ex.pop(0)()
            for i in range(n): s(f(i))
    def gemm16(s, W, acc, vaddr, kstride, first_zero, ex):
        seq = [(ks, t) for ks in range(14) for t in range(2)]
        def rd(i): ks, t = seq[i]; s(f'ds_read_b128 {vr(8+4*(i%4))}, v{vaddr} offset:{ks*kstride + 256*t}')
        for i in range(3): rd(i)
        for i, (ks, t) in enumerate(seq):
            if i + 3 < 28: rd(i + 3)
            c = 0 if (first_zero and ks == 0) else vr(acc + 4*t)
            s.fair(i, s.cfg.fg)
            s(f'v_mfma_f32_16x16x32_bf16 {vr(acc+4*t)}, {vr(W+4*ks)}, {vr(8+4*(i%4))}, {c}')
            if ex: ex.pop(0)()
        if s.cfg.fg: s('s_setprio 0')
    def gemm32(s, jobs, vaddr, extra=None, nb=4, buf=8):
        seq = [(j, i) for j, job in enumerate(jobs) for i in range(job[1])]
        ex = list(extra or [])
        def rd(n): j, i = seq[n]; s(f'ds_read_b128 {vr(buf+4*(n%nb))}, v{vaddr} offset:{jobs[j][3] + 1024*i}')
        if s.cfg.prio: s('s_setprio 1')
        for n in range(nb - 1): rd(n)
        for n, (j, i) in enumerate(seq):
            W, nk, acc, _, after = jobs[j]
            if n + nb - 1 < len(seq): rd(n + nb - 1)
            s(f'v_mfma_f32_32x32x16_bf16 {vr(acc,16)}, {vr(W+4*i)}, {vr(buf+4*(n%nb))}, {vr(acc,16) if i else 0}')
            if ex: ex.pop(0)()
            if i == nk - 1 and after: ex += [lambda: None] * 3 + after
        s('s_setprio 0')
        s.run(ex)
    def g_pre(s):
        s.comment('G wave addresses (v6 GEMM1 B, v7 residual h, v50/v51 stats, masks)')
        s(f'''s_lshl_b32 s70, s{sQ}, 2
        s_lshr_b32 s71, 0x2213, s70
        s_and_b32 s71, s71, 15
        s_lshr_b32 s72, 0x0404, s70
        s_and_b32 s72, s72, 15
        v_and_b32 v44, 15, v{vL}
        v_lshrrev_b32 v45, 4, v{vL}
        v_add_u32 v46, s71, v44
        v_add_u32 v47, s72, v44''')
        s.pos(6, 46, 48)
        s(f'v_mul_u32_u24 v48, 768, v45\nv_add_u32 v6, v6, v48\nv_add_u32 v6, {L_HI}, v6')
        s.pos(7, 47, 48)
        s(f'''v_lshrrev_b32 v48, 1, v45
        s_lshl_b32 s73, s{sCT}, 1
        v_add_u32 v48, s73, v48
        v_mul_u32_u24 v48, 768, v48
        v_and_b32 v49, 1, v45
        v_lshl_add_u32 v48, v49, 3, v48
        v_add_u32 v7, v7, v48
        v_add_u32 v7, {L_HI}, v7
        s_sub_u32 s73, s71, s72
        s_lshl_b32 s70, s{sTB}, 5
        s_add_u32 s73, s73, s70
        v_add_u32 v48, s73, v44
        v_add_u32 v49, 16, v48
        s_movk_i32 s70, 2048
        v_cmp_gt_u32 {sr(sM0,2)}, s70, v48
        v_cmp_gt_u32 {sr(sM1,2)}, s70, v49
        v_lshlrev_b32 v50, 4, v46
        v_add_u32 v50, {L_STA}, v50
        v_lshlrev_b32 v51, 3, v47
        v_add_u32 v51, {L_STB}, v51''')
        for j in range(3): s(f's_add_u32 s70, s{sQ}, {j+1}\ns_and_b32 s70, s70, 3\ns_mul_i32 s70, s70, 7\ns_add_u32 s70, s70, s{sW}\ns_lshl_b32 s{4+j}, s70, 10')
        s(f'''s_lshl_b32 s7, s{sW}, 10
        s_mul_i32 s8, s{sTB}, 28672
        s_add_u32 s8, s8, {GX}
        s_xor_b32 s9, s{sTB}, 1
        s_mul_i32 s9, s9, 28672
        s_add_u32 s9, s9, s7
        s_add_u32 s9, s9, {X1}
        s_lshl_b32 s69, s{sCT}, 10
        s_add_u32 s70, s69, s8
        s_add_u32 s71, s70, {X1 - GX}
        v_add_u32 v46, s69, v{vL16}
        v_add_u32 v47, s7, v{vL16}''')
        for i in range(4): s(f'v_mov_b32 v{28+i}, 0x3f803f80')
        for ks in range(14): s(f'v_mfma_f32_16x16x32_bf16 v[32:35], {vr(vW1+4*ks)}, v[28:31], {"v[32:35]" if ks else 0}')

    def g_wave(s, hst):
        c = s.cfg
        assert c.f_hok <= 28
        s.g_pre()
        if c.hack: s.wait(hst)
        s.hint_wait()
        s.stamp(13)
        s.h2(lambda: s.feed(c.f_hok, 63), lambda: s.feed(c.f_hld, 63))
        s.pin(c.pins[2])
        s.barrier(); s.stamp(15)
        s(f'v_mov_b32 v4, {L_FAST}\nds_read_b32 v4, v4\nv_lshlrev_b32 v5, 4, v44\nv_lshl_add_u32 v5, v45, 9, v5')
        s.gemm16(vW1, 24, 6, 3072, True, s.spread(c.f_g1, 28))
        s.stamp(39)
        s(f'v_readfirstlane_b32 s{sFAST}, v4')
        s(f's_mul_i32 s69, s{sM}, 7\ns_add_u32 s69, s69, s{sW}\ns_mul_i32 s69, s69, 1792\ns_add_u32 s69, s69, {CSP}\nv_lshlrev_b32 v48, 2, v{vL}')
        csl = lambda: [s(f'buffer_load_dword v{164+i}, v48, {sr(rWS)}, s69 offen offset:{256*i}') for i in range(7)]
        if c.cs_at == 0: csl()
        if c.evb2:
            spin, back = s.lab('es'), s.lab('eb')
            rdl = ['ds_read_b32 v49, v4', 'ds_read_b128 v[36:39], v50', 'ds_read_b128 v[40:43], v50 offset:256'][:1 if c.evc else 3]
            s(f'v_mov_b32 v4, {L_EV + 6*2048 + 7*260}')
            for l in rdl: s(l)
            s(f'v_cmp_eq_u32 vcc, 0, v49\ns_mov_b32 s97, 0\ns_cbranch_vccnz {spin}'); s.label(back)
            s.ool.append(f'{spin}:\n' + ''.join(f'    {l}\n' for l in rdl) + f'    s_add_u32 s97, s97, 1\n    s_cmp_gt_u32 s97, {SPIN*8}\n    s_waitcnt lgkmcnt(0)\n    s_cbranch_scc1 {back}\n'
                         f'    v_cmp_eq_u32 vcc, 0, v49\n    s_nop 1\n    s_cbranch_vccnz {spin}\n    s_branch {back}\n')
            s.stamp(16)
            if c.evc: s('ds_read_b128 v[36:39], v50\nds_read_b128 v[40:43], v50 offset:256')
        else:
            s.barrier(); s.stamp(16)
            s('ds_read_b128 v[36:39], v50\nds_read_b128 v[40:43], v50 offset:256')
        gl = zipl(s.gelu_pk(24, 32, 36, 4, 8, 20), s.gelu_pk(28, 32, 40, 4, 12, 22))
        ex = s.spread(c.f_gel, len(gl))
        for l in gl: s(l); ex.pop(0)()
        s(f"""v_cndmask_b32 v20, 0, v20, {sr(sM0,2)}
        v_cndmask_b32 v22, 0, v22, {sr(sM1,2)}
        v_cndmask_b32 v21, 0, v21, {sr(sM0,2)}
        v_cndmask_b32 v23, 0, v23, {sr(sM1,2)}
        v_permlane16_swap_b32 v20, v22
        v_permlane16_swap_b32 v21, v23
        v_or_b32 v20, 1, v20""")
        s.xstore([f'buffer_store_dwordx4 v[20:23], v{vL16}, {sr(rWS)}, s70 offen'])
        s.stamp(17)
        s(f"""ds_write_b128 v46, v[20:23] offset:{L_GI}
        ds_read_b64 v[8:9], v7
        ds_read_b64 v[10:11], v7 offset:256
        ds_read_b64 v[12:13], v51
        ds_read_b64 v[14:15], v51 offset:128""")
        for i in range(4): s(f'v_lshlrev_b32 v{vRES+2*i}, 16, v{8+i}\nv_and_b32 v{vRES+1+2*i}, 0xffff0000, v{8+i}')
        for i in range(4): s(f'v_pk_fma_f32 {vr(24+2*i,2)}, {vr(12+2*(i>>1),2)}, {vr(vRES+2*i,2)}, {vr(12+2*(i>>1),2)} op_sel:[1,0,0] op_sel_hi:[1,1,0]')
        if c.dack[0]: s.wait_vm(0)
        s.stamp(18)
        hd, td = s.fetch_issue([(4+j, L_GI, 4+j, 's8') for j in range(3)])
        if c.bar_a: s('s_barrier')
        if c.cs_at == 1: csl()
        s.feed(c.f_b3a, 63)
        p1, p2 = s.fetch_check(hd, td, 47, L_GI, 4, 8)
        p1(); p2(); s.stamp(42)
        if s.stamps: s('v_writelane_b32 v3, s97, 62')
        if c.cs_at == 2: csl()
        s.feed(c.f_gok, 63)
        s(f's_add_u32 s8, s8, {X1 - GX}\nv_add_u32 v47, {L_XI}, v47')
        s.barrier(); s.stamp(19)
        s.gemm16(vW2, 24, 5, 2048, False, s.spread(c.f_g2, c.g2span))
        for i in range(4): s(f'v_cvt_pk_bf16_f32 v{20+i}, v{24+2*i}, v{25+2*i}')
        s('v_permlane16_swap_b32 v20, v22\nv_permlane16_swap_b32 v21, v23\nv_or_b32 v20, 1, v20')
        s.xstore([f'buffer_store_dwordx4 v[20:23], v{vL16}, {sr(rWS)}, s71 offen'])
        s.stamp(20)
        s(f'ds_write_b128 v46, v[20:23] offset:{L_XI + 28672}')
        s(f"""v_mov_b32 v49, 0
        v_mov_b32 v50, 0
        v_mov_b32 v51, 0
        v_add_u32 v6, {L_XI}, v{vL16}
        s_lshl_b32 s70, s{sW}, 11
        s_add_u32 s70, s70, {L_HID}
        v_add_u32 v7, s70, v{vL16}
        v_add_u32 v44, {L_HID}, v{vL16}""")
        for i in range(8): s(f'v_add_f32 v{vRES+i}, v{vRES+i}, v{24+i}')
        if c.dack[1]: s.wait_vm(0)
        s.stamp(21)
        hd, td = s.fetch_issue([(7, L_XI + 7168*j, 9, 7168*j) for j in range(4)])
        s(f'''v_pk_add_f32 v[164:165], v[164:165], v[166:167]
        v_add_f32 v168, v168, v170
        v_pk_add_f32 v[164:165], v[164:165], v[168:169]
        v_add_f32 v164, v164, v165
        v_mov_b32 v165, v164
        v_permlane32_swap_b32 v164, v165
        v_add_f32 v164, v164, v165
        v_cvt_pk_bf16_f32 v48, v164, v164
        v_and_b32 v165, 0xffff0000, v48
        v_sub_f32 v165, v164, v165
        v_cvt_pk_bf16_f32 v48, v164, v165''')
        p1, p2 = s.fetch_check(hd, td, 47, 0, 4, 8)
        p1(); p2(); s.stamp(43)
        if s.stamps: s('v_writelane_b32 v3, s97, 63')
        hx, tx = s.fetch_issue([(4+j, L_XI + 28672, 4+j, 's8') for j in range(3)])
        s.feed(c.f_b4a, 63)
        later = []
        for r, x in ((12, 1), (15, 0)):
            later.append(f"""s_xor_b32 s69, s{sTB}, {x}
            s_mul_i32 s70, s69, 28
            s_add_u32 s70, s70, s{sCT}
            s_lshl_b32 s71, s70, 10
            s_add_u32 s{r}, s71, {GX}
            s_add_u32 s{r+1}, s71, {X1}
            s_lshl1_add_u32 s{r+2}, s71, {PX}
            s_lshl_b32 s69, s69, 5
            s_add_u32 s69, s69, s{sCT}
            s_lshl2_add_u32 s{18+x}, s69, {F7}""")
        later.append(f"""s_xor_b32 s72, s{sTB}, 1
        s_lshl_b32 s72, s72, 5
        s_lshr_b32 s74, s{sCT}, 2
        s_add_u32 s72, s72, s74
        s_lshl2_add_u32 s72, s72, {F7}
        s_bfe_u32 s74, s{sCT}, 0x10001
        s_mul_i32 s74, s74, {F7B - F7}
        s_add_u32 s72, s72, s74""")
        later.append(f"""s_mul_i32 s74, s{sTB}, 28
        s_lshr_b32 s22, s{sCT}, 2
        s_add_u32 s74, s74, s22
        s_lshl_b32 s74, s74, 10
        s_and_b32 s22, s{sCT}, 1
        s_lshl_b32 s71, s22, 21
        s_add_u32 s71, s71, s74
        s_add_u32 s71, s71, {GX}
        s_lshl_b32 s22, s22, 10
        s_lshl1_add_u32 s74, s74, s22
        s_add_u32 s74, s74, {PX}
        s_bitcmp1_b32 s{sCT}, 1
        s_cselect_b32 s74, s71, s74
        s_cselect_b32 s22, 7, 14
        s_lshl_b32 s22, s22, 10
        s_lshl1_add_u32 s75, s22, s74
        s_sub_u32 s22, s22, 1024
        v_lshrrev_b32 v28, 5, v{vL}
        v_mad_u32_u24 v5, v28, s22, v5
        s_mul_i32 s76, s{sTB}, {32*896}
        s_lshl_b32 s77, s{sCT}, 5
        s_add_u32 s76, s76, s77
        s_mov_b32 s{rX}, s{sOUT}
        s_mov_b32 s{rX+1}, s{sOUT+1}
        s_mov_b32 s{rX+2}, {2048*896}
        s_mov_b32 s{rX+3}, 0x20000""")
        AC, ST, A4 = (180, 164), (vST3, 160), ((112, 128), (180, 144))
        seq = []
        gp, gd = c.gp, c.gd
        for t, a, b in ((0, 0, gp), (1, 0, gd), (0, gp, 28), (1, gd, 28)): seq += [(vW3 + 4*k, AC[t], k == 0, (6, 28672*t + 1024*k)) for k in range(a, b)]
        use0 = lambda k: k if k < gp else k + gd
        e0 = 27 + gd
        for t in range(2):
            for j in range(2):
                prs = [(w, ctl) for w in range(7) for ctl in range(2)]
                if j == 1: prs = [(w, ctl ^ t) for ctl in range(2) for w in range(7)]
                seq += [((vW4A + 4*(2*w + ctl), vW4B + 4*(7*ctl + w))[j], A4[t][ctl], j == 0 and w == 0, (44, 14336*t + 1024*(2*w + j))) for w, ctl in prs]
        reads = []; ridx = []
        for n, e in enumerate(seq):
            if not reads or reads[-1][0] != e[3]: reads.append((e[3], n))
            ridx.append(len(reads) - 1)
        nb = 4
        rat = {}
        for r, (key, n) in enumerate(reads):
            free = max([m for m in range(112) if ridx[m] == r - nb], default=-1)
            rat[r] = max(free, n - c.pd)
        X = {i: [] for i in range(-1, 113)}
        def place(items, a, b):
            bu = c.burst
            for k, it in enumerate(items):
                p = a + (k * (b - a + 1)) // len(items)
                X[min(b, p + (bu - 1 - (p - a) % bu))].append(it)
        I = lambda t: (lambda: s(t))
        def gelu(t, h):
            acc, st, o, G = AC[t] + 8*h, ST[t], [], c.ggrp
            for j in range(0, 8, G):
                R = range(G); T = 24 + j
                o += [f'v_mul_f32 v{T+i}, v{acc+j+i}, v{acc+j+i}' for i in R]
                o += [f'v_fma_f32 v{T+i}, v{T+i}, v{st+1}, v{st+2}' for i in R]
                o += [f'v_mul_f32 v{T+i}, v{T+i}, v{acc+j+i}' for i in R]
                for i in R: o += [f'v_exp_f32 v{T+i}, v{T+i}', '']
                o += [f'v_fma_f32 v{T+i}, v{T+i}, v{st+3}, v{st+3}' for i in R]
                for i in R: o += [f'v_rcp_f32 v{T+i}, v{T+i}', '']
                o += [f'v_mul_f32 v{T+i}, v{T+i}, v{acc+j+i}' for i in R]
                o += [f'v_cvt_pk_bf16_f32 v{32+(j+i)//2}, v{T+i}, v{T+i+1}' for i in range(0, G, 2)]
            o.append(f'ds_write_b128 v7, v[32:35] offset:{14336*t + 1024*h}\nds_write_addtid_b32 v44 offset:{L_EV - 32768 + 2048*(2*t + h)}')
            return [I(x) for x in o]
        def sync(at, k, st):
            rdl = f'ds_read_b32 v4, v46 offset:{2048*k}'
            def chk():
                spin, back = s.lab('ls'), s.lab('lb')
                s(f's_cbranch_vccnz {spin}')
                s.label(back); s.stamp(st)
                s.ool.append(f'{spin}:\n    s_mov_b32 s97, 0\n{spin}a:\n    {rdl}\n    s_add_u32 s97, s97, 1\n    s_cmp_gt_u32 s97, {SPIN*8}\n    s_waitcnt lgkmcnt(0)\n    s_cbranch_scc1 {back}\n'
                             f'    v_cmp_eq_u32 vcc, 0, v4\n    s_nop 1\n    s_cbranch_vccz {back}\n    s_sleep 1\n    s_branch {spin}a\n')
            X[at - c.sd].append(I(rdl)); X[at].insert(0, I('v_cmp_eq_u32 vcc, 0, v4')); X[at].append(chk)
        hs = {}
        def blk(base, k): return f's{base + min(k ^ 2, 2)} offen offset:{1024 * (k == 1)}'
        def fin(t, ctl, h, pk, last=False):
            acc = A4[t][ctl] + 8*h
            def f():
                if t == 1:
                    un = A4[0][ctl] + 8*h
                    if last:
                        for i in range(0, 8, 2): s(f'v_pk_add_f32 {vr(acc+i,2)}, {vr(acc+i,2)}, {vr(un+i,2)}')
                    else:
                        for i in range(8): s(f'v_add_f32 v{acc+i}, v{acc+i}, v{un+i}')
                for i in range(4): s(f'v_cvt_pk_bf16_f32 v{pk+i}, v{acc+2*i}, v{acc+2*i+1}')
                s(f'v_or_b32 v{pk}, 1, v{pk}' if t else f'v_and_b32 v{pk}, -2, v{pk}')
                s.xstore([f'buffer_store_dwordx4 {vr(pk)}, v{vL16}, {sr(rWS)}, {blk(12 + 3*t, 2*ctl + h)}'])
                hs[t, ctl] = s.vm[-1][0]
            return f
        def stage1(ctl, at):
            fo = ctl * (F7B - F7)
            def flag():
                s(f'v_mov_b32 v45, s{sTAG}\ns_add_u32 s69, s18, {fo}')
                s.wait(hs[0, ctl]); s('s_mov_b64 exec, 1')
                s.xstore([f'buffer_store_dword v45, off, {sr(rWS)}, s69'])
                s('s_mov_b64 exec, -1')
            ld = [f'buffer_load_dwordx4 {vr(164 + 8*ctl + 4*h)}, v{vL16}, {sr(rWS)}, {blk(15, 2*ctl + h)} sc1' for h in range(2)]
            def fetch():
                if ctl == 0: s.poll_check(47, None, 's70'); s.stamp(45)
                for l in ld: s(l)
            def check():
                ck = ['v_or_b32 v4, v172, v176', 'v_and_b32 v4, 1, v4', 'v_cmp_eq_u32 vcc, 1, v4']
                retry, back = s.lab('sr'), s.lab('sb')
                for l in ck: s(l)
                s(f's_mov_b32 s97, 0\ns_cbranch_vccnz {retry}'); s.label(back); s.stamp(46)
                s.ool.append(f'{retry}:\n' + ''.join(f'    {l}\n' for l in ld) + f'    s_add_u32 s97, s97, 1\n    s_cmp_gt_u32 s97, {SPIN}\n    s_waitcnt vmcnt(0)\n    s_cbranch_scc1 {back}\n'
                             + ''.join(f'    {l}\n' for l in ck) + f'    s_nop 1\n    s_cbranch_vccnz {retry}\n    s_branch {back}\n')
            X[at[0]].append(fin(0, ctl, 0, 108)); X[at[1]].append(fin(0, ctl, 1, 196))
            X[at[2]].append(flag)
            if ctl == 0: X[at[3]].append(lambda: (s(f's_add_u32 s70, s19, {fo}'), s.poll_issue(47, None, 's70')))
            X[at[4]].append(fetch)
            if ctl == 1: X[at[5]].append(check)
            un = []
            for i in range(8): un += [f'v_lshlrev_b32 v{A4[0][ctl] + 2*i}, 16, v{164 + 8*ctl + i}', f'v_and_b32 v{A4[0][ctl] + 2*i + 1}, 0xffff0000, v{164 + 8*ctl + i}']
            place([I(x) for x in un], at[5], min(at[5] + 3, 111))
        bsave, c.burst = c.burst, 1
        ch = []
        for t in later:
            cur = []
            for l in t.split('\n'):
                if len(cur) >= 5 and 'cselect' not in l: ch.append('\n'.join(cur)); cur = []
                cur.append(l)
            ch.append('\n'.join(cur))
        assert not any(x.strip().split('\n')[-1].strip().startswith(('s_cmp', 's_bitcmp')) for x in ch)
        place([I(x) for x in ch], 8, 26)
        if s.wn < 56:
            w3e = c.w3e if c.w3e is not None else max(0, s.wn - 28 - 5)
            n3 = 56 - s.wn
            assert all((k * (w3e + 1)) // n3 < use0(s.wn - 28 + k) for k in range(n3)) and w3e < c.w4a[0]
            place([s.feed1] * n3, 0, w3e)
        if s.wn < 70: place([s.feed1] * (70 - max(s.wn, 56)), c.w4a[0], c.w4a[1])
        place([s.feed1] * 14, c.w4b[0], c.w4b[1])
        c.burst = bsave
        first = lambda n: rat[ridx[n]] - 1
        x1st = first(gp if gd else 28)
        assert c.x_at + 2 <= x1st - c.sd
        sync(x1st if gd else x1st - 3, 5, 49)
        sync(e0 - 3, 4, 23)
        X[e0 - 3].append(I(f'ds_read_b128 {vr(ST[0])}, v44 offset:{L_ST3 - L_HID}'))
        X[e0].append(I(f'v_mfma_f32_32x32x16_bf16 {vr(AC[0],16)}, v[48:51], {vr(ST[0])}, {vr(AC[0],16)}'))
        assert c.q[0] > e0
        q = c.q
        for k in range(4): place(gelu(k >> 1, k & 1), q[k], q[k+1] - 1)
        X[55].append(I(f'ds_read_b128 {vr(ST[1])}, v44 offset:{L_ST3 - L_HID + 1024}'))
        X[57].append(I(f'v_mfma_f32_32x32x16_bf16 {vr(AC[1],16)}, v[48:51], {vr(ST[1])}, {vr(AC[1],16)}'))
        for k in range(4):
            assert first(56 + 14*k) - c.sd >= q[k+1] - 1, (k, first(56 + 14*k))
            sync(first(56 + 14*k), k, (25, 26, 27, 41)[k])
        assert c.st0[4] >= q[3] and c.st1[4] >= q[4] and c.st1[5] > first(98) and c.st1[5] + 3 < 107 and c.st1[2] < c.fpoll
        stage1(0, c.st0); stage1(1, c.st1)
        X[107].append(fin(1, 1, 0, 108)); X[109].append(fin(1, 1, 1, 196)); X[112] += [fin(1, 0, 0, 24, c.lastpk), fin(1, 0, 1, 28, c.lastpk)]
        X[58].append(I(f'global_load_dwordx4 v[48:51], v{vL16}, s[94:95] offset:-1024'))
        X[q[4]].append(I(f'v_lshlrev_b32 v6, 3, v{vL}\nglobal_load_dwordx2 v[6:7], v6, s[94:95] offset:-1536'))
        X[c.fpoll].append(lambda: s.poll_issue(45, 7, 's72')); X[c.fpoll + c.fpd].append(lambda: s.poll_check(45, 7, 's72'))
        def rd(r): (va, off), _ = reads[r]; s(f'ds_read_b128 {vr(8+4*(r%nb))}, v{va} offset:{off}')
        p1, p2 = s.fetch_check(hx, tx, 47, 28672, 4, 24, f's_mov_b32 m0, s21')
        X[c.x_at].insert(0, p1); X[c.x_at + 2].append(lambda: (p2(), s(f'ds_write_addtid_b32 v44 offset:{L_EV - 32768 + 2048*5}')))
        s(f'v_and_b32 v46, 7, v{vL}\nv_mul_u32_u24 v46, 260, v46\nv_add_u32 v46, {L_EV}, v46\ns_lshl_b32 s21, s{sW}, 8\ns_add_u32 s21, s21, 32768\ns_mov_b32 m0, s21')
        s.pin(c.pins[3])
        s.barrier(); s.stamp(22)
        for r in range(len(reads)):
            if rat[r] < 0: rd(r)
        LS = [10, 26, 78, 80, 40, 42, 44, 46, 62, 64, 66, 88, 90, 92, 24]
        for n, (W, acc, fst, key) in enumerate(seq):
            if c.lst and n % 8 == 0: s.raw(f'    s_memtime s[{LS[n//8]}:{LS[n//8]+1}]')
            s.fair(n, c.fm)
            s(f'v_mfma_f32_32x32x16_bf16 {vr(acc,16)}, {vr(W)}, {vr(8+4*(ridx[n]%nb))}, {0 if fst else vr(acc,16)}')
            for r in range(len(reads)):
                if rat[r] == n: rd(r)
            s.run(X[n])
        if c.lst: s.raw('    s_memtime s[24:25]')
        s.run(X[112])
        if c.lst:
            s.wait_lg(0, force=True)
            for i, r in enumerate(LS): s(f'v_writelane_b32 v3, s{r}, {1 + i}')
        s.stamp(28)
        if c.dack[2]: s.wait_vm(0)
        s.stamp(29)
        ld = [f'buffer_load_dwordx4 {vr(52+8*u+4*t)}, v5, {sr(rWS)}, s{74+u} offen offset:{256*t} sc1' for u in range(2) for t in range(2)]
        ck = ['v_and_b32 v8, v52, v56', 'v_and_b32 v9, v60, v64', 'v_and_b32 v8, 1, v8', 'v_and_b32 v8, v8, v9', 'v_cmp_eq_u32 vcc, 0, v8']
        retry, back = s.lab('er'), s.lab('eb')
        for l in ld + ck: s(l)
        s(f's_mov_b32 s97, 0\ns_cbranch_vccnz {retry}'); s.label(back)
        s.ool.append(f'{retry}:\n' + ''.join(f'    {l}\n' for l in ld) + f'    s_add_u32 s97, s97, 1\n    s_cmp_gt_u32 s97, {SPIN}\n    s_waitcnt vmcnt(0)\n    s_cbranch_scc1 {back}\n'
                     + ''.join(f'    {l}\n' for l in ck) + f'    s_nop 1\n    s_cbranch_vccnz {retry}\n    s_branch {back}\n')
        s.stamp(30)
        for u in range(2):
            for t in range(2): s(f'v_mfma_f32_16x16x32_bf16 {vr(vRES+4*t)}, v[48:51], {vr(52+8*u+4*t)}, {vr(vRES+4*t)}')
        for i in range(4): s(f'v_cvt_pk_bf16_f32 v{20+i}, v{vRES+2*i}, v{vRES+1+2*i}')
        s('v_permlane16_swap_b32 v20, v22\nv_permlane16_swap_b32 v21, v23')
        s(f'buffer_store_dwordx4 v[20:23], v6, {sr(rX)}, s76 offen')
        s.stamp(31)

    def s_mfma(s, addrs, acc, kstride, base, nk=14):
        seq = [(ks, t) for ks in range(nk) for t in range(3)]
        nb = 8
        def rd(i): ks, t = seq[i]; s(f'ds_read_b128 {vr(52+4*(i%nb))}, v{addrs+t} offset:{base + ks*kstride}')
        s('s_mov_b32 exec_lo, 0x77777777\ns_mov_b32 exec_hi, 0x77777777')
        for i in range(nb - 1): rd(i)
        for i, (ks, t) in enumerate(seq):
            if i + nb - 1 < len(seq): rd(i + nb - 1)
            s(f'v_mfma_f32_16x16x32_bf16 {vr(acc+4*t)}, {vr(52+4*(i%nb))}, {vr(52+4*(i%nb))}, {vr(acc+4*t) if ks else 0}')
    def s_wave(s, hst):
        s.comment('S wave: statistics, polling, DMA')
        s.pin(s.cfg.pins[4])
        s('s_setprio 2')
        s(f'''s_and_b32 s70, s2, 0xc7
        s_lshl_b32 s70, s70, 4
        s_mul_i32 s71, s{sXCD}, {FCP}
        s_add_u32 s70, s70, s71
        s_add_u32 s70, s70, {FA}
        v_and_b32 v44, 7, v{vL}
        v_lshlrev_b32 v44, 7, v44
        buffer_load_dword v48, v44, {sr(rWS)}, s70 offen sc1''')
        def ftouch():
            s(f'''s_lshl_b32 s72, s{sTB}, 7
            s_add_u32 s72, s72, {F3}
            s_mov_b32 m0, {L_JUNK}
            v_min_u32 v45, 4, v{vL}
            v_lshlrev_b32 v45, 13, v45
            buffer_load_dword v45, {sr(rWS)}, s72 offen sc1 lds''')
            if s.cfg.etouch:
                s(f's_mul_i32 s70, s{sTB}, 28\ns_add_u32 s70, s70, s{sCT}\ns_lshl_b32 s70, s70, 11\ns_add_u32 s70, s70, {PX - 7*2048}\ns_add_u32 s71, s70, 7168\ns_mov_b32 exec_hi, 0x00ffffff')
                s(f'buffer_load_dword v7, {sr(rWS)}, s70 offen sc1 lds\nbuffer_load_dword v7, {sr(rWS)}, s71 offen sc1 lds\ns_mov_b32 exec_hi, -1')
        def setup():
            for i in range(32): s(f'v_mov_b32 v{52+i}, 0x3f803f80')
            s(f'''v_and_b32 v44, 3, v{vL}
        v_bfe_u32 v45, v{vL}, 2, 2
        v_mad_u32_u24 v40, v45, 3, v44
        v_lshrrev_b32 v41, 4, v{vL}''')
            for t in range(3):
                s(f'v_add_u32 v46, {12*t}, v40')
                s.pos(84 + t, 46, 47)
                s(f'v_mul_u32_u24 v47, 768, v41\nv_add_u32 v{84+t}, v{84+t}, v47\nv_add_u32 v{84+t}, {L_HI}, v{84+t}')
                s(f'v_min_u32 v46, 31, v46\nv_lshlrev_b32 v46, 4, v46\nv_lshl_add_u32 v46, v41, 9, v46\nv_add_u32 v{88+t}, {L_XI}, v46')
            s(f'''v_sub_u32 v45, v45, v41
        v_and_b32 v45, 3, v45
        v_cmp_eq_u32 s[78:79], 1, v45
        v_cmp_eq_u32 s[80:81], 2, v45
        v_mad_u32_u24 v40, v41, 3, v44
        v_mad_u32_u24 v40, v45, 12, v40
        v_min_u32 v92, 31, v40
        v_lshlrev_b32 v92, 4, v92
        v_add_u32 v92, {L_ST3}, v92
        v_lshlrev_b32 v42, 4, v40
        v_add_u32 v42, {L_STA}, v42
        v_lshlrev_b32 v43, 3, v40
        v_add_u32 v43, {L_STB}, v43
        v_lshlrev_b32 v6, 2, v{vL}
        v_lshlrev_b32 v7, 7, v{vL}
        v_cmp_ne_u32 vcc, s{sTX}, v48
        v_mov_b32 v46, {L_FAST}
        s_cmp_eq_u64 vcc, 0
        s_cselect_b32 s{sFAST}, 1, 0
        v_mov_b32 v45, s{sFAST}
        ds_write_b32 v46, v45
        v_and_b32 v38, 7, v{vL}
        v_mul_u32_u24 v38, 260, v38
        v_add_u32 v38, {L_EV}, v38
        v_lshlrev_b32 v46, 8, v{vL}
        v_and_b32 v46, 0x3800, v46
        v_add_u32 v46, v46, v38
        s_mov_b32 vcc_lo, 0x80800000
        s_mov_b32 vcc_hi, 0x807f
        v_cndmask_b32 v45, 0, v38, vcc
        ds_write_b32 v46, v45''')
        if not s.cfg.searly: setup()
        s(f'''s_and_b32 s70, s{sQ}, 1
        s_mul_i32 s71, s70, 9
        s_lshl3_add_u32 s71, s{sTB}, s71
        s_sub_u32 s71, s71, 1
        s_max_i32 s71, s71, 0
        s_min_i32 s71, s71, 511
        s_lshr_b32 s88, s71, 3
        s_mul_i32 s88, s88, 28672
        s_and_b32 s71, s71, 7
        s_lshl4_add_u32 s88, s71, s88
        s_add_u32 s88, s88, {X1}
        s_mul_i32 s70, s70, 384
        s_add_u32 s70, s70, {L_HI + 128}
        v_min_u32 v5, 55, v{vL}
        v_lshlrev_b32 v4, 9, v5
        v_mul_u32_u24 v5, 768, v5
        v_add_u32 v5, s70, v5''')
        s.wait(hst); s.hint_wait()
        s.stamp(13)
        s.h2(ftouch, setup if s.cfg.searly else (lambda: None), halo=True)
        s(f'v_cmp_eq_u32 s[92:93], 1, v44\nv_cmp_eq_u32 s[94:95], 2, v44\ns_mov_b32 s96, {INVD}\nv_mov_b32 v49, {fh(1 + 1e-5)}')
        s(f'''s_lshl2_add_u32 s70, s{sTB}, s{sQ}
        s_lshl_b32 s71, s70, 4
        s_add_u32 s71, s71, {FN}
        v_and_b32 v45, 1, v{vL}
        v_lshlrev_b32 v45, 3, v45
        v_sub_u32 v45, v44, v45
        s_lshl2_add_u32 s72, s{sTB}, 4
        v_add_u32 v45, s72, v45
        v_mov_b32 v47, s70
        v_cmp_gt_u32 vcc, 0x100, v45
        v_mov_b32 v36, s{sTAG}
        s_mov_b32 s72, {FN}
        v_cndmask_b32 v45, v47, v45, vcc
        s_xor_b32 s70, s70, 4
        v_writelane_b32 v45, s70, 4
        v_lshlrev_b32 v37, 4, v45''')
        s.barrier(); s.stamp(15)
        s(f's_mov_b64 exec, 1\nbuffer_store_dword v36, off, {sr(rWS)}, s71 sc1')
        s.s_mfma(84, 24, 3072, 0)
        s.stamp(39)
        s.stats_tail(24, 43, 42, 0)
        if s.cfg.evp: s.wait_lg(0)
        if s.cfg.evb2: s(f's_mov_b64 exec, 0x80\nds_write_b32 v38, v38 offset:{6*2048}\ns_mov_b64 exec, -1')
        else: s('s_mov_b64 exec, -1'); s.barrier()
        s.stamp(16)
        s.poll(4, 37, 's72', 31, 0, sleep=4)
        for i in range(2 + s.cfg.bar_a): s('s_barrier')
        s.stamp(22)
        def lwait(k):
            l, l2, l3 = s.lab('tw'), s.lab('tx'), s.lab('ty')
            s(f's_mov_b32 s97, 0\ns_branch {l2}'); s.label(l); s(f's_sleep 1\ns_add_u32 s97, s97, 1\ns_cmp_gt_u32 s97, {SPIN*8}\ns_cbranch_scc1 {l3}'); s.label(l2)
            s(f'ds_read_b32 v4, v38 offset:{2048*k}\nv_cmp_eq_u32 vcc, 0, v4\ns_cbranch_vccnz {l}'); s.label(l3)
        post = lambda k: s(f's_mov_b64 exec, 0x80\nds_write_b32 v38, v38 offset:{2048*k}\ns_mov_b64 exec, -1')
        def touch():
            s(f'''s_mul_i32 s70, s{sTB}, 28
            s_mul_i32 s71, s{sQ}, 7
            s_add_u32 s70, s70, s71
            s_lshl_b32 s71, s70, 10
            s_add_u32 s71, s71, {GX}
            s_add_u32 s69, s71, {X1 - GX}
            s_lshl_b32 s70, s70, 11
            s_add_u32 s70, s70, {PX}
            s_mov_b32 m0, {L_JUNK}
            s_mov_b32 exec_hi, 0x00ffffff''')
            rf = f'buffer_load_dword v7, {sr(rWS)}, s71 offen sc1 lds\nbuffer_load_dword v7, {sr(rWS)}, s69 offen sc1 lds'
            if s.cfg.refresh == 1: s(rf)
            for i in range(2):
                k = (s.cfg.touch_at, s.cfg.touch2)[i]
                if k < 4: lwait(k)
                s(f'buffer_load_dword v7, {sr(rWS)}, s70 offen sc1 lds\ns_add_u32 s70, s70, 7168')
            if s.cfg.refresh == 2: s(rf)
            s('s_mov_b32 exec_hi, -1')
        for t in range(2):
            if s.cfg.x_ns: s(f's_mov_b32 s96, {fh(1/96)}')
            s.s_mfma(88, 24, 2048, 28672 * t, 3 if s.cfg.x_ns else 14)
            s.stats_tail(24, None, 92, 1024 * t)
            post((4, 0)[t])
            s.stamp(23 + t)
            if t == 0:
                lwait(5)
                s(f's_lshl_b32 s72, s{sCL}, 8\ns_add_u32 s72, s72, {F5 + 28}\ns_lshl_b32 s73, s{sM}, 5\ns_add_u32 s73, s73, s72\nv_lshlrev_b32 v37, 5, v{vL}')
                s.flag(73)
        s.poll(4, 37, 's72', '0xff', 0, sleep=2)
        post(1)
        s.stamp(25)
        if s.cfg.touch_at != 5: touch()
        s.cond('s_cmp_lg_u32 s2, 0', lambda: s(f'v_mov_b32 v4, s{sTAG}\ns_mov_b32 s70, {EP}\ns_mov_b64 exec, 1\nbuffer_store_dword v4, off, {sr(rWS)}, s70 sc1\ns_mov_b64 exec, -1'))
        s.wait_vm(0); s.stamp(28)

def build(stamps=False, cfg=None):
    s = K(stamps, cfg or Cfg())
    c = s.cfg
    s.entry(); s.setup(); s(s.scalars())
    if c.dma_at == -1: s(f's_cmp_lt_u32 s43, 2\ns_cmov_b32 s{rW+2}, {448*896}'); s.pack_dma()
    if c.sb_at == 0: s.setup_b()
    s.stamp(34); s.ln()
    s(f's_cmp_ge_u32 s{sI}, 28'); s.flush_hazards(); s('s_cbranch_scc1 Lnonconv')
    st = s.state()
    s.clear()
    if c.sb_at == 1: s.setup_b()
    s.stamp(33)
    if c.dma_at == 0: s.pack_dma()
    if c.fa_at == -1: s.publish_a()
    s.kgen(); hst = s.conv()
    s.label('Ljoin')
    s(f'v_mov_b32 v4, v21\nv_mov_b32 v5, v22\ns_cmp_eq_u32 s{sW}, 7'); s.flush_hazards(); s('s_cbranch_scc1 Lsw')
    st2 = s.state()
    s.g_wave(hst); s.dump_stamps(); s('s_endpgm')
    s.label('Lsw'); s.set_state(st2)
    s.s_wave(hst); s.dump_stamps()
    s.label('Lend'); s('s_endpgm')
    s.label('Lnonconv'); s.set_state(st); s.wn = 0
    s.nonconv(); s.flush_hazards(); s('s_branch Ljoin')
    name = NAME + '_kernel'
    txt = f'''; @launch grid=(256,1,1) block=(512,1,1) lds={LDS_BYTES}
.amdgcn_target "amdgcn-amd-amdhsa--gfx950"
.text
.globl {name}
.p2align 8
.type {name},@function
{name}:
''' + s.text() + ''.join(s.ool) + tap_table() + f'''.section .rodata,"a"
.p2align 6
.amdhsa_kernel {name}
  .amdhsa_next_free_vgpr 256
  .amdhsa_next_free_sgpr 102
  .amdhsa_accum_offset 256
  .amdhsa_group_segment_fixed_size 0
  .amdhsa_kernarg_size 120
  .amdhsa_user_sgpr_count 2
  .amdhsa_user_sgpr_kernarg_segment_ptr 1
  .amdhsa_system_sgpr_workgroup_id_x 1
.end_amdhsa_kernel
'''
    size, syms = code_info(txt.replace('@CODE_BYTES@', '1000').replace('@TAB_OFF@', '1000'))
    return txt.replace('@CODE_BYTES@', str(syms['tap_table'] + 2048 + 4224 - syms['Lpc'] - 4)).replace('@TAB_OFF@', str(syms['tap_table'] - syms['Lpc']))
def tap_table():
    RB = {8: 0, 4: 16, 2: 24, 6: 28, 1: 32, 3: 34, 5: 36, 7: 38}
    def rnd(l):
        sh = max(0, l.bit_length() - 8)
        if not sh: return l
        q, r = l >> sh, l & ((1 << sh) - 1); half = 1 << (sh - 1)
        return (q + (r > half or (r == half and q & 1))) << sh
    v = []
    for i in range(2056):
        l = 2047 - i
        if l < 0: e = 768
        elif l == 0: e = 640
        else: p = rnd(l); e = RB[((p - 1) & 7) + 1] * 16 + ((p - 1) >> 3)
        v.append(e * 16)
    v += [0] * 56
    lane = []
    for l in range(64):
        n, g = l & 15, l >> 4; tb = 2*n + (g >> 1); rr, cc = (l >> 2) & 3, l & 3
        bb = lambda c_: 32*c_ + 16*((c_ >> 3) & 1)
        lane.append([4*(4*g - (n >> 1)) + 28 + KEO*(1 - (n & 1)), bb(30 + 2*n + g), bb(26 + 2*n + g), (l >> 1)*896 + 16*((l ^ g) & 1),
                     tb*64 + (g & 1)*32, (n >> 1)*1792 + 4*(n & 1) + g, bb(tb) + 8*(g & 1), (g*64 + n)*16 + 4*((l >> 3) & 3),
                     n*KGP + 16*g, (8*g + rr)*64 + cc*8, (8*(g >> 1) + rr)*64 + (g & 1)*32 + (cc & 1)*16 + (cc >> 1)*8,
                     (l >> 2)*896 + cc*16, (l >> 2)*3584 + cc*16, rr*LNP + 32*g + 8*cc, rr*KEO + 16*(l & 1), 0])
    pk = []
    for b in range(256):
        for w in range(8):
            U = 256*w + 32*(b & 7) + (b >> 3)
            if U < 392: m, V = divmod(U, 196); kb, cb = divmod(V, 14); src = kb*32*896; d0 = 392*m + 28*cb + kb; d1 = d0 + 14
            elif U < 1176: m = 2; kb, cb = divmod(U - 392, 56); src = kb*32*3584; d0 = 784 + 28*cb + 2*kb; d1 = d0 + 1
            elif U < 1960: m = 3; kb, cb = divmod(U - 1176, 14); src = kb*32*896; d1 = 2352 + ((kb//7)*7 + (cb >> 1))*28; d0 = d1 + 2*(kb % 7) + (cb & 1); d1 += 14 + 7*(cb & 1) + kb % 7
            else: m, cb, src, d0, d1 = 4, 0, 0, 0, 0
            pk += [(m << 24) | (src + 64*cb), d0 | (d1 << 16)]
    t = '.p2align 7\n.type tail_table,@object\ntail_table:\n'
    for l in range(64): t += f'.long {(l & 31)*896 + (l >> 5)*16}, {(l & 3)*28}\n'
    for l in range(64): t += '.short ' + ', '.join('0x3f80' if (l & 15) == 8*((l >> 4) & 1) + j else '0' for j in range(8)) + '\n'
    t += '.size tail_table, 1536\n.type tap_table,@object\ntap_table:\n'
    for h in range(2):
        for l in range(64): t += '.short ' + ', '.join(map(str, lane[l][8*h:8*h+8])) + '\n'
    for i in range(0, 2112, 8): t += '.short ' + ', '.join(map(str, v[i:i+8])) + '\n'
    for i in range(0, 4096, 8): t += '.long ' + ', '.join(map(str, pk[i:i+8])) + '\n'
    return t + f'.size tap_table, {2048 + 4224 + 16384}\n'
def code_info(txt):
    import subprocess, tempfile, re
    with tempfile.TemporaryDirectory() as d:
        open(d + '/a.s', 'w').write(txt)
        subprocess.run(['clang', '-x', 'assembler', '-target', 'amdgcn-amd-amdhsa', '-mcpu=gfx950', '-c', d + '/a.s', '-o', d + '/a.o'], check=True)
        o = subprocess.run(['llvm-readelf', '-S', '-s', d + '/a.o'], capture_output=True, text=True).stdout
        size = int(re.search(r'\.text\s+PROGBITS\s+\S+\s+\S+\s+(\S+)', o).group(1), 16)
        return size, {m.group(2): int(m.group(1), 16) for m in re.finditer(r'\d+: ([0-9a-f]{16}) .* (\S+)\n', o)}
if __name__ == '__main__':
    sys.stdout.write(build(stamps=len(sys.argv) > 1))
```

```python
import sys, os, struct
sys.path.insert(0, os.path.dirname(os.path.abspath(__file__)))
from dsl import Asm, Ins

NAME = 'sequential_preLN__ssm_conv_s4d__mixer_s_mlp__prompt'
W1P, W2P, W3P, W4P = 0, 392 * 1024, 784 * 1024, 2352 * 1024
SM, CSP, ST1 = 0x600000, 0x700000, 0x780000
GX, X1, PX = 0xA00000, 0xC00000, 0x1000000
FL = 0x2000000
F3, F4, F5, F7, F7B = FL, FL + 0x2000, FL + 0x4000, FL + 0x6000, FL + 0x8000
FH, FN, EP, FA, FB = FL + 0x1A000, FL + 0x1E000, FL + 0x20000, FL + 0x30000, FL + 0x40000
FC = FL + 0x50000
FCP = 4352
TS = 0x3000000
WS_BYTES = 0x4000000
L_LN, LNP = 0, 960
L_PK = 119296
L_KG, KGP = 31744, 288
L_Y = 0
L_KT, KTSZ = 68608, 12320
L_KE, KEO, KECH = 93312, 4160, 8320
L_U = 110080
L_SM = 8 * LNP
L_HI, L_GI, L_XI, L_HID, L_ST = 106880, 0, 28672, 106880, 149888
L_STA, L_STB, L_FAST, L_JUNK, L_ST3 = L_ST, L_ST + 768, L_ST + 1152, L_ST + 1280, L_ST + 1536
L_PS = 102400
L_EV = 86016
LDS_BYTES = 153600
LOG2E, INV2PI, EPS, INVD = 0x3fb8aa3b, 0x3e22f983, 0x3727c5ac, 0x3b124925
C1 = -2.0 * 0.7978845608028654 * 1.4426950408889634
def fh(x): return '0x%08x' % struct.unpack('<I', struct.pack('<f', x))[0]
SPIN = 1 << 18
sX, sLA, sAI, sCR, sCI, sDT, sDS = 4, 6, 8, 10, 12, 14, 16
sW1, sW2, sW3, sW4, sOUT, sWS = 20, 22, 24, 26, 28, 30
rWS, rX, rD, rW, rG = 32, 36, 40, 44, 48
sW, sXCD, sI, sP, sTAG, sTB, sQ, sCL, sM, sFAST = range(52, 62)
sPD0, sPD1, sUO, sSM, sFO, sPACT = range(62, 68)
sUS, sKG, sHD, sUM = 74, 75, 76, 77
sLDT, sD0, sD1 = 40, 41, 42
sM0, sM1, sCT, sTX = 78, 80, 82, 83
sA1, sA2, sA3, sA4 = 84, 85, 86, 87
def sr(n, k=4): return f's[{n}:{n+k-1}]'
def vr(n, k=4): return f'v[{n}:{n+k-1}]'
vL16, vL = 1, 2
vW1, vW2, vW3, vW4A, vW4B = 144, 200, 52, 200, 52
vCS3, vAC3, vST3, vRES = 164, 180, 196, 36

class Cfg:
    f_kt = 3
    fa_at, dma_at, poll_at, chk_at, pst_at, fa_sleep = 1, 5, 4, 7, 8, 1
    fslot = 2
    u_at, uchk_at, pslot = 2, 7, 24
    rsplit = 8
    f_conv = 15
    f_hst = 15
    f_hld = 15
    f_hok = 24
    f_g1 = 35
    f_gel = 0
    x_dp, g2span = 0, 14
    f_gfl = 0
    f_b3a = 0
    f_g2 = 43
    f_xfl = 0
    f_b4a = 45
    two = 0
    tab = 0
    xbar = 0
    fb_at = 0
    x_nof = 99
    prio = 0
    bar_a, x_at = 0, 3
    ggrp, burst, pd, sd = 8, 1, 3, 2
    q = (33, 47, 60, 73, 86)
    st0, st1, lastpk = (79, 80, 89, 94, 100, 108), (86, 87, 96, 0, 95, 103), 1
    w4a, w4b = (17, 44), (45, 68)
    nc_depth, hint_at, fblate = 16, 72, 0
    depth = 4
    touch_at = 1
    warm = 1
    gaft, nb1, nb2 = 0, 4, 4
    x_heat = None
    x_pad = None
    pal, pins = 3, (None,) * 5
    gsc = 1
    evb2, searly, evp, evc = 1, 1, 1, 0
    fpd = 8
    hfeed = 1
    dack, fpoll, cs_at, f_gok = (1, 1, 1), 103, 2, 37
    etouch, touch2 = 0, 4
    x_ns = x_nc = 0
    gp, gd, w3e = 17, 4, 16
    hack, hdel, hmask = 1, 0, 0
    upf = 0
    ktm = 2
    kbar = 0
    lst2, lregs = (), (4, 6, 8, 10, 12, 14, 16, 18, 20, 22, 24, 26, 36, 38, 98)
    fm, fc, fg = 4, 0, 0
    lst = 0
    sb_at, clr_at, cslot = 1, None, 40
    cil, chead, cpace, clead, cy0, cyp = 0, 9, 1.0, 5, 42, 4
    rts = 0
    refresh = 0
    tdepth = 1
    cpf = 1
    x_late = 0

def zipl(*streams):
    out = []; n = max(len(x) for x in streams)
    for i in range(n):
        for x in streams:
            if i < len(x): out.append(x[i])
    return out

class K(Asm):
    def __init__(s, stamps, cfg):
        super().__init__(); s.stamps = stamps; s.cfg = cfg; s.ool = []; s.nlab = 0; s.wn = 0
    def lab(s, p): s.nlab += 1; return f'L{p}{s.nlab}'
    def srd(s, r, ptr, size):
        s(f's_mov_b32 s{r}, s{ptr}\ns_mov_b32 s{r+1}, s{ptr+1}\ns_mov_b32 s{r+2}, {size}\ns_mov_b32 s{r+3}, 0x20000')
    def stamp(s, idx, real=False):
        if s.cfg.x_pad and idx == s.cfg.x_pad[0]:
            l = s.lab('pad'); s.wait_lg(0); s.label(l)
            s.raw(f'    s_memrealtime s[98:99]\n    s_waitcnt lgkmcnt(0)\n    s_sub_u32 s98, s98, s101\n    s_cmp_lt_u32 s98, {s.cfg.x_pad[1]*100}\n    s_cbranch_scc1 {l}')
        if idx in s.cfg.lst2:
            r = s.cfg.lregs[list(s.cfg.lst2).index(idx)]
            s.raw(f'    s_memtime s[{r}:{r+1}]')
            if idx == s.cfg.lst2[-1]:
                s.wait_lg(0, force=True)
                for i, k in enumerate(s.cfg.lst2): s(f'v_writelane_b32 v3, s{s.cfg.lregs[i]}, {k}')
            return
        if not s.stamps or (s.stamps is not True and idx not in (31, 61) and (s.stamps == 'span' or idx not in s.stamps)): return
        s(f's_mem{"real" if real else ""}time s[98:99]'); s.wait_lg(0)
        s(f'v_writelane_b32 v3, s98, {idx}')
        rt = {3: 50, 10: 51, 11: 52, 15: 53, 22: 54, 25: 55, 28: 56}
        if s.cfg.rts and idx in rt:
            s('s_memrealtime s[98:99]'); s.wait_lg(0); s(f'v_writelane_b32 v3, s98, {rt[idx]}')
    def dump_stamps(s):
        if not s.stamps: return
        s.stamp(61, True)
        s(f's_lshl_b32 s98, s2, 3\ns_add_u32 s98, s98, s{sW}\ns_lshl_b32 s98, s98, 8\ns_add_u32 s98, s98, {TS}')
        s(f'v_lshlrev_b32 v4, 2, v{vL}\nbuffer_store_dword v3, v4, {sr(rWS)}, s98 offen')
    def cond(s, cmp_skip, body, drain=True, flush=True):
        l = s.lab('c')
        s(cmp_skip)
        if flush: s.flush_hazards()
        s(f's_cbranch_scc1 {l}')
        vm, lg, hist = list(s.vm), list(s.lg), list(s.hist)
        body()
        if drain: s._wait(lg=0)
        if flush: s.flush_hazards()
        else: s.hist = hist
        s.label(l)
        s.vm, s.lg = vm, lg
    def xstore(s, lines):
        slow, back = s.lab('xs'), s.lab('xb')
        s(f's_cmp_eq_u32 s{sFAST}, 0')
        for l in lines:
            ins = Ins(l); t = ins.rd | ins.wr
            hs = [x[0] for x in s.vm if x[1] & t] + [x[0] for x in s.lg if x[1] & t]
            if hs: s.wait(*hs)
        s(f's_cbranch_scc1 {slow}')
        for l in lines: s(l)
        s.label(back)
        s.ool.append(f'{slow}:\n    s_nop 7\n    s_nop 3\n' + ''.join(f'    {l} sc1\n' for l in lines) + f'    s_branch {back}\n')
    def feed1(s):
        n = s.wn; s.wn += 1
        if n >= s.cfg.x_nof: return
        if n < 14: reg, sb, i = vW1 + 4*n, sA1, n
        elif n < 28: reg, sb, i = vW2 + 4*(n-14), sA2, n - 14
        elif n < 56: reg, sb, i = vW3 + 4*(n-28), sA3, n - 28
        elif n < 70: reg, sb, i = vW4A + 4*(n-56), sA4, n - 56
        else: reg, sb, i = vW4B + 4*(n-70), sA4, n - 56
        if i % 4 == 0 and i: s(f's_add_u32 s{sb}, s{sb}, 4096')
        s(f'buffer_load_dwordx4 {vr(reg)}, v{vL16}, {sr(rG)}, s{sb} offen offset:{(i % 4) * 1024}')
    def feed(s, upto, depth=None):
        depth = depth or s.cfg.depth
        while s.wn < upto:
            s.wait_vm(depth - 1); s.feed1()
    def spread(s, upto, slots, first=0):
        n = max(0, upto - s.wn); out = [lambda: None] * slots
        pos = [first + (k * (slots - first)) // n for k in range(n)] if n else []
        for p in set(pos):
            out[p] = (lambda c=pos.count(p): [s.feed1() for _ in range(c)])
        return out
    def pin(s, k):
        if k is None: return
        s.raw(f'    .p2align {s.cfg.pal}')
        for i in range(k): s('s_nop 0')
    def fair(s, n, k):
        if k and n % k == 0: s('s_setprio 1')
        if k and n % k == k - 1: s('s_setprio 0')
    def run(s, l):
        for f in l: f()
    def pl(s, vdst, vaddr, soff): return f'buffer_load_dword v{vdst}, v{vaddr}, {sr(rWS)}, {soff} offen sc1' if vaddr is not None else f'buffer_load_dword v{vdst}, off, {sr(rWS)}, {soff} sc1'
    def poll_issue(s, vdst, vaddr, soff): return s(s.pl(vdst, vaddr, soff))
    def poll_check(s, vdst, vaddr, soff, sleep=0):
        retry, back = s.lab('pr'), s.lab('pb')
        s(f'v_subrev_u32 v{vdst}, s{sTAG}, v{vdst}\nv_cmp_lt_u32 vcc, 15, v{vdst}\ns_mov_b32 s97, 0\ns_cbranch_vccnz {retry}')
        s.label(back)
        s.ool.append(f'''{retry}:
''' + (f'    s_sleep {sleep}\n' if sleep else '') + f'''    {s.pl(vdst, vaddr, soff)}
    s_add_u32 s97, s97, 1
    s_cmp_gt_u32 s97, {SPIN}
    s_waitcnt vmcnt(0)
    s_cbranch_scc1 {back}
    v_subrev_u32 v{vdst}, s{sTAG}, v{vdst}
    v_cmp_lt_u32 vcc, 15, v{vdst}
    s_nop 1
    s_cbranch_vccnz {retry}
    s_branch {back}
''')
    def poll(s, vdst, vaddr, soff, lo=None, hi=None, sleep=0):
        if lo is not None: s(f's_mov_b32 exec_lo, {lo}\ns_mov_b32 exec_hi, {hi}')
        s.poll_issue(vdst, vaddr, soff); s.poll_check(vdst, vaddr, soff, sleep)
        if lo is not None: s('s_mov_b64 exec, -1')
    def flag(s, soff, vtmp=4):
        s(f'v_mov_b32 v{vtmp}, s{sTAG}')
        s.wait_vm(0, force=True)
        s('s_mov_b64 exec, 1')
        s.xstore([f'buffer_store_dword v{vtmp}, off, {sr(rWS)}, s{soff}'])
        s('s_mov_b64 exec, -1')
    def gflag(s, wave, soff, sval, vtmp, drain=False, flush=True):
        s.cond(f's_cmp_lg_u32 s{sW}, {wave}', drain=drain, flush=flush, body=lambda: s(f'v_mov_b32 v{vtmp}, s{sval}\ns_mov_b64 exec, 1\nbuffer_store_dword v{vtmp}, off, {sr(rWS)}, s{soff} sc1\ns_mov_b64 exec, -1'))
    def gflag8(s, wave, soff, sval, vtmp, flush=True):
        s.cond(f's_cmp_lg_u32 s{sW}, {wave}', drain=False, flush=flush, body=lambda: s(f'v_mov_b32 v{vtmp}, s{sval}\nv_mul_u32_u24 v{vtmp+1}, {FCP}, v{vL}\ns_mov_b64 exec, 0xff\nbuffer_store_dword v{vtmp}, v{vtmp+1}, {sr(rWS)}, s{soff} offen sc1\ns_mov_b64 exec, -1'))
    def dma(s, a, b, ssrc, ldsbase):
        h = None
        for i in range(a, b):
            if i % 4 == 0:
                if i: s(f's_add_u32 s{ssrc}, s{ssrc}, 4096')
                s(f's_mov_b32 m0, {ldsbase + i * 1024}')
            h = s(f'buffer_load_dwordx4 v{vL16}, {sr(rWS)}, s{ssrc} offen offset:{(i % 4) * 1024} sc1 lds')
        return h
    def fetch_issue(s, blocks):
        t = ''.join(f's_add_u32 m0, s{a}, {b}\ns_add_u32 s68, s{c_}, {d}\nbuffer_load_dwordx4 v{vL16}, {sr(rWS)}, s68 offen sc1 lds\n' for a, b, c_, d in blocks)
        return s(t), t
    def fetch_check(s, h, t, va, off, n, T, m0=None):
        rd = [f'ds_read_b32 v{T+j}, v{va} offset:{off + 7168*j}' for j in range(n)]
        ck = [f'v_and_b32 v{T}, v{T}, v{T+1}', f'v_and_b32 v{T+2}, v{T+2}, v{T+3}', f'v_and_b32 v{T}, 1, v{T}', f'v_and_b32 v{T}, v{T}, v{T+2}', f'v_cmp_eq_u32 vcc, 0, v{T}']
        retry, back = s.lab('fr'), s.lab('fb')
        def part1(): s.wait(h); [s(l) for l in rd]
        def part2():
            for l in ck: s(l)
            s(f's_mov_b32 s97, 0\ns_cbranch_vccnz {retry}'); s.label(back)
            s.ool.append(f'{retry}:\n' + ''.join(f'    {l}\n' for l in t.strip().split('\n')) + (f'    {m0}\n' if m0 else '') + f'    s_add_u32 s97, s97, 1\n    s_cmp_gt_u32 s97, {SPIN}\n    s_waitcnt vmcnt(0)\n    s_cbranch_scc1 {back}\n'
                         + ''.join(f'    {l}\n' for l in rd) + '    s_waitcnt lgkmcnt(0)\n' + ''.join(f'    {l}\n' for l in ck) + f'    s_nop 1\n    s_cbranch_vccnz {retry}\n    s_branch {back}\n')
        return part1, part2
    def pos(s, d, src, t):
        s(f'''v_and_b32 v{t}, 3, v{src}
        v_lshlrev_b32 v{t}, 2, v{t}
        v_and_or_b32 v{t}, v{src}, -16, v{t}
        v_bfe_u32 v{d}, v{src}, 2, 2
        v_or_b32 v{d}, v{d}, v{t}
        v_lshlrev_b32 v{d}, 4, v{d}''')

    def W(s, dst, k, base=None, op='add_u32'):
        src = f'v{76 + k//2}'; sel = f'WORD_{k&1}'
        if base is None: s(f'v_mov_b32_sdwa v{dst}, {src} dst_sel:DWORD dst_unused:UNUSED_PAD src0_sel:{sel}')
        else: s(f'v_{op}_sdwa v{dst}, {base}, {src} dst_sel:DWORD dst_unused:UNUSED_PAD src0_sel:DWORD src1_sel:{sel}')
    def entry(s):
        s('s_cmp_ge_u32 s2, 256\ns_cbranch_scc1 Lend')
        if s.stamps or s.cfg.x_pad: s('s_memtime s[100:101]\ns_memrealtime s[96:97]\nv_mov_b32 v3, 0'); s.wait_lg(0); s('s_mov_b32 s101, s96')
        s(f"""s_load_dwordx16 s[4:19], s[0:1], 0
        s_load_dwordx8 s[20:27], s[0:1], 64
        s_load_dwordx2 s[28:29], s[0:1], 96
        s_load_dwordx2 s[30:31], s[0:1], 112""")
        s('s_getpc_b64 s[94:95]')
        s.label('Lpc')
        s(f"""s_lshr_b32 s{sI}, s2, 3
        v_lshrrev_b32 v4, 6, v0
        v_and_b32 v{vL}, 63, v0""")
        s.cpf(0)
        s(f"""v_readfirstlane_b32 s{sW}, v4
        v_lshlrev_b32 v{vL16}, 4, v{vL}
        s_add_u32 s94, s94, @TAB_OFF@
        s_addc_u32 s95, s95, 0
        s_lshl_b32 s69, s2, 6
        s_add_u32 s69, s69, {2048 + 4224}
        v_lshl_add_u32 v5, v4, 3, s69
        global_load_dwordx2 v[84:85], v5, s[94:95]
        global_load_dwordx4 v[80:83], v{vL16}, s[94:95] offset:1024
        global_load_dwordx4 v[76:79], v{vL16}, s[94:95]
        s_lshl3_add_u32 s68, s2, s{sW}
        v_and_b32 v6, 255, v0
        v_lshlrev_b32 v18, 4, v6
        global_load_dwordx4 v[66:69], v18, s[94:95] offset:2048
        global_load_ushort v70, v18, s[94:95] offset:2064
        s_and_b32 s{sXCD}, s2, 7
        s_mul_i32 s{sP}, s{sXCD}, 28
        s_add_u32 s{sP}, s{sP}, s{sI}
        s_min_u32 s{sP}, s{sP}, 223
        s_lshl_b32 s70, s{sP}, 10
        v_lshl_add_u32 v64, v0, 1, s70
        s_mul_i32 s73, s68, 896
        s_mov_b32 s{rX+2}, 896
        s_mov_b32 s{rX+3}, 0x20000
        s_mov_b32 s{rW+3}, 0x20000
        s_mov_b32 s{rWS+2}, {WS_BYTES}
        s_mov_b32 s{rWS+3}, 0x20000
        s_lshl_b32 s93, s{sW}, 11
        s_add_u32 s93, s93, {L_PK}
        s_lshl_b32 s71, s{sP}, 2
        s_mov_b32 s72, {EP}
        s_add_u32 s{rX}, s{sX}, s73
        s_addc_u32 s{rX+1}, s{sX+1}, 0
        buffer_load_dwordx4 v[28:31], v{vL16}, {sr(rX)}, 0 offen""")
        if s.stamps: s('v_writelane_b32 v3, s100, 0\nv_writelane_b32 v3, s96, 60')
        s.stamp(1)
        s(f"""s_load_dword s{sTAG}, {sr(sWS,2)}, s72
        s_load_dword s{sLDT}, {sr(sDT,2)}, s71
        s_load_dword s{sD1}, {sr(sDS,2)}, s71
        global_load_ushort v60, v64, {sr(sLA,2)}
        global_load_ushort v61, v64, {sr(sAI,2)}
        global_load_ushort v62, v64, {sr(sCR,2)}
        global_load_ushort v63, v64, {sr(sCI,2)}
        v_readfirstlane_b32 s90, v84
        v_readfirstlane_b32 s91, v85
        s_lshr_b32 s43, s90, 24
        s_and_b32 s90, s90, 0xffffff
        s_bitcmp1_b32 s43, 0
        s_cselect_b64 s[20:21], s[22:23], s[20:21]
        s_cselect_b64 s[24:25], s[26:27], s[24:25]
        s_cmp_eq_u32 s43, 2
        s_cselect_b64 vcc, -1, 0
        s_movk_i32 s89, 896
        s_cmovk_i32 s89, 3584
        s_cmp_lt_u32 s43, 2
        s_cselect_b64 {sr(rW,2)}, s[20:21], s[24:25]
        s_cselect_b32 s{rW+2}, {448*896}, 0
        s_cselect_b64 s[72:73], -1, 0
        s_lshl4_add_u32 s89, s89, s90
        s_mov_b32 s{rWS}, s{sWS}
        s_mov_b32 s{rWS+1}, s{sWS+1}
        v_cndmask_b32_sdwa v23, v81, v82, vcc dst_sel:DWORD dst_unused:UNUSED_PAD src0_sel:WORD_1 src1_sel:WORD_0""")
        if s.cfg.dma_at >= 0: s.pack_dma()

    def cpf(s, once):
        l = s.lab('cp')
        s(f'v_lshl_add_u32 v7, v0, 8, s2' if once else f'v_lshl_add_u32 v7, v0, 5, s{sI}')
        s(f"""v_lshlrev_b32 v7, 7, v7
        v_cmp_gt_u32 vcc, @CODE_BYTES@, v7
        s_and_saveexec_b64 s[70:71], vcc
        s_cbranch_execz {l}""")
        s.raw('    global_load_dword v255, v7, s[94:95]')
        s.label(l)
        s('s_mov_b64 exec, -1')
    def clear(s):
        for i in range(4): s(f'v_mov_b32 v{72+i}, -1')
        s.h_clr = s.hstore(72)
    def hstore(s, r): return s(f'buffer_store_dwordx4 {vr(r)}, v12, {sr(rWS)}, s{sHD} offen sc1')

    def setup(s):
        s.comment('offsets and lane addresses (in the shadow of the first loads)')
        assert L_U % 512 == 0
        s(f"""s_mov_b64 vcc, s[72:73]
        s_lshr_b32 s{sPD1}, s91, 16
        s_lshl_b32 s{sPD1}, s{sPD1}, 10
        v_cndmask_b32_sdwa v24, v81, v80, vcc dst_sel:DWORD dst_unused:UNUSED_PAD src0_sel:WORD_0 src1_sel:WORD_1
        s_and_b32 s{sPD0}, s91, 0xffff
        s_lshl_b32 s{sPD0}, s{sPD0}, 10
        v_mul_u32_u24 v71, 1171, v0
        s_lshl_b32 s70, s{sW}, 7
        v_add_u32 v24, s93, v24""")
        s.W(27, 13, 's70')
        s(f"""s_mul_i32 s70, s{sW}, {LNP}
        v_lshrrev_b32 v71, 16, v71
        v_add_u32 v26, s70, v{vL16}
        s_mul_i32 s70, s2, 896
        s_lshl_b32 s71, s{sW}, 10
        v_mul_u32_u24 v71, {229376 - 896}, v71
        s_add_u32 s70, s70, s71
        s_add_u32 s{sUO}, s70, {GX}
        v_add_u32 v71, v71, v{vL16}""")
        s.W(12, 5, 4, 'lshlrev_b32')
    def setup_b(s):
        s(f"""s_lshl_b32 s71, s{sW}, 10
        s_lshl4_add_u32 s{sFO}, s2, {FA}
        s_add_u32 s{sUM}, s71, {L_U + 1024}
        v_add_u32 v13, s71, v{vL16}
        s_lshl_b32 s70, s{sW}, 13
        v_add_u32 v14, s70, v{vL16}
        s_lshl_b32 s70, s{sW}, 9
        s_mul_i32 s72, s{sXCD}, {FCP}
        s_add_u32 s70, s70, s72
        s_add_u32 s70, s70, {FA}
        v_and_b32 v17, 0x1f0, v{vL16}
        v_add_u32 v17, s70, v17
        s_mul_i32 s{sKG}, s{sW}, {16*KGP}
        s_add_u32 s{sKG}, s{sKG}, {L_KG}""")
        s.W(20, 8, f's{sKG}'); s.W(10, 3); s.W(11, 4); s.W(15, 6, f's{sUM}')
        s(f"""s_and_b32 s70, s{sW}, 3
        s_lshr_b32 s71, s{sW}, 2
        s_mul_i32 s73, s71, {KECH}
        s_add_u32 s73, s73, {L_KE}
        v_add_u32 v18, s73, v18
        s_lshl_b32 s72, s70, 7
        s_sub_u32 s72, s73, s72
        s_add_u32 s72, s72, {4*(1015 - 144) - 28}""")
        s.W(4, 0, 's72')
        s(f"""s_lshl_b32 s72, s70, 8
        s_sub_u32 s72, {L_U}, s72
        v_xor_b32 v16, 16, v15""")
        s.W(8, 1, 's72'); s.W(9, 2, 's72')
        s(f"""s_xor_b32 s72, s70, s71
        s_and_b32 s72, s72, 1
        s_lshl_b32 s72, s72, 4
        v_subrev_u32 v5, 1024, v4
        v_subrev_u32 v6, 2048, v4
        v_subrev_u32 v7, 3072, v4
        v_xor_b32 v8, s72, v8
        v_xor_b32 v9, s72, v9
        s_lshl_b32 s72, s70, 2
        s_mul_i32 s70, s71, {KTSZ}
        s_add_u32 s70, s70, {L_KT}
        s_mov_b32 s73, {L_KE + 4096}""")
        s.W(19, 7, 's72', 'xor_b32'); s.W(88, 14, 's73')
        s(f"""v_mov_b32 v84, 0
        v_mov_b32 v85, 0
        v_mov_b32 v86, 0
        v_mov_b32 v87, 0
        v_add_u32 v19, s70, v19
        s_add_u32 s72, s70, {768*16}
        s_bitcmp1_b32 s{sW}, 0
        s_cselect_b64 vcc, -1, 0
        v_add_u32 v89, {L_U}, v{vL16}
        v_writelane_b32 v88, s72, 63
        v_cndmask_b32 v88, v89, v88, vcc
        ds_write_b128 v88, v[84:87]""")
        for t in range(9):
            s(f'v_add_u32_sdwa v{132+t}, s70, v{66+t//2} dst_sel:DWORD dst_unused:UNUSED_PAD src0_sel:DWORD src1_sel:WORD_{t&1}')
    def scalars(s):
        return f"""s_mov_b32 s{rG}, s{sWS}
        s_mov_b32 s{rG+1}, s{sWS+1}
        s_cmp_eq_u32 s{sW}, 7
        s_cselect_b32 s{rG+2}, 0, {WS_BYTES}
        s_mov_b32 s{rG+3}, 0x20000
        s_mul_i32 s{sHD}, s{sW}, 229376
        s_lshl_b32 s68, s{sP}, 7
        s_add_u32 s{sHD}, s{sHD}, s68
        s_add_u32 s{sHD}, s{sHD}, {X1}
        s_lshr_b32 s68, s{sI}, 2
        s_lshl3_add_u32 s{sTB}, s{sXCD}, s68
        s_and_b32 s{sQ}, s{sI}, 3
        s_lshr_b32 s{sCL}, s{sTB}, 1
        s_and_b32 s{sM}, s{sI}, 7
        s_mul_i32 s{sCT}, s{sQ}, 7
        s_add_u32 s{sCT}, s{sCT}, s{sW}
        s_mul_i32 s{sA1}, s{sCT}, {14*1024}
        s_add_u32 s{sA2}, s{sA1}, {W2P}
        s_mul_i32 s{sA3}, s{sM}, 7
        s_add_u32 s{sA3}, s{sA3}, s{sW}
        s_mul_i32 s{sA4}, s{sA3}, {28*1024}
        s_add_u32 s{sA3}, s{sA4}, {W3P}
        s_add_u32 s{sA4}, s{sA4}, {W4P}
        s_lshl3_add_u32 s{sUS}, s{sXCD}, s{sW}
        s_mul_i32 s{sUS}, s{sUS}, 28672
        s_lshl_b32 s68, s{sI}, 5
        s_add_u32 s{sUS}, s{sUS}, s68
        s_add_u32 s{sUS}, s{sUS}, {GX}
        s_lshl_b32 s{sSM}, s{sW}, 11
        s_add_u32 s{sSM}, s{sSM}, {SM}
        s_mov_b32 s{sFAST}, 0
        s_and_b32 s68, s43, 6
        s_cmp_eq_u32 s68, 2
        s_cselect_b32 s{rW+2}, {448*3584}, 0
        s_cselect_b32 s{sPACT}, {WS_BYTES}, 0"""
    def h2_addr(s):
        return f"""v_lshrrev_b32 v19, 3, v0
        v_and_b32 v20, 7, v0
        v_lshlrev_b32 v21, 9, v19
        v_lshl_add_u32 v21, v20, 4, v21
        s_andn2_b32 s70, 1, s{sQ}
        v_add_u32 v20, s70, v20
        v_mul_u32_u24 v22, 768, v19
        v_lshrrev_b32 v18, 2, v20
        v_lshl_add_u32 v22, v18, 8, v22
        v_and_b32 v18, 3, v20
        v_lshl_add_u32 v22, v18, 4, v22
        v_add_u32 v22, {L_HI}, v22
        s_mul_i32 s88, s{sTB}, 28672
        s_add_u32 s88, s88, {X1}
        v_add_u32 v26, {FB - FA}, v17"""

    def pack_early(s):
        s.wait(s.h_pack)
        s(f"""ds_read_b64_tr_b16 v[52:53], v24
        ds_read_b64_tr_b16 v[54:55], v24 offset:256
        ds_read_b64_tr_b16 v[56:57], v24 offset:32
        ds_read_b64_tr_b16 v[58:59], v24 offset:288
        buffer_store_dwordx4 v[52:55], v{vL16}, {sr(rWS)}, s{sPD0} offen sc1
        buffer_store_dwordx4 v[56:59], v{vL16}, {sr(rWS)}, s{sPD1} offen sc1""")

    def ln(s):
        s.comment('layernorm of one token per wave')
        s('v_mov_b32 v51, 0x3f803f80\nv_dot2_f32_bf16 v48, v28, v51, 0')
        s.stamp(2)
        s('v_dot2_f32_bf16 v49, v28, v28, 0')
        for i in (29, 30, 31): s(f'v_dot2_f32_bf16 v48, v{i}, v51, v48\nv_dot2_f32_bf16 v49, v{i}, v{i}, v49')
        un = []
        for i in range(4): un += [f'v_lshlrev_b32 v{32+2*i}, 16, v{28+i}', f'v_and_b32 v{33+2*i}, 0xffff0000, v{28+i}']
        s(un.pop()); s(un.pop()); s(f'v_mov_b32 v50, {INVD}')
        for m in ('row_shr:1', 'row_shr:2', 'row_shr:4', 'row_shr:8', 'row_bcast:15 row_mask:0xa', 'row_bcast:31 row_mask:0xc'):
            s(f'v_add_f32_dpp v48, v48, v48 {m}\nv_add_f32_dpp v49, v49, v49 {m}')
            s(un.pop())
        s(f"""v_readlane_b32 s70, v48, 63
        v_readlane_b32 s71, v49, 63
        s_lshl_b32 s72, s{sW}, 3
        v_mov_b32 v65, s72
        v_mul_f32 v49, s70, v50
        v_mul_f32 v48, s71, v50
        v_fma_f32 v48, -v49, v49, v48
        v_max_f32 v48, 0, v48
        v_add_f32 v48, {EPS}, v48
        v_rsq_f32 v51, v48
        s_mov_b32 exec_hi, 0x00ffffff
        v_mul_f32 v50, -v49, v51""")
        for i in range(4): s(f'v_pk_fma_f32 {vr(40+2*i,2)}, v[50:51], {vr(32+2*i,2)}, v[50:51] op_sel:[1,0,0] op_sel_hi:[1,1,0]')
        s('s_mov_b32 s70, 0x0d800000')
        for i in range(4): s(f'v_pk_mul_f32 {vr(40+2*i,2)}, {vr(40+2*i,2)}, s[70:71] op_sel_hi:[1,0]')
        for i in range(4): s(f'v_cvt_pk_bf16_f32 v{28+i}, v{40+2*i}, v{41+2*i}')
        s(f"""ds_write_b128 v26, v[28:31] offset:{L_LN}
        v_mul_f32 v48, v48, v51
        s_mov_b64 exec, 1
        ds_write_b64 v65, v[48:49] offset:{L_SM}
        s_mov_b64 exec, -1""")
        s.barrier()
        s(f"""ds_read_b64_tr_b16 v[48:49], v27 offset:{L_LN}
        ds_read_b64_tr_b16 v[50:51], v27 offset:{L_LN + 4*LNP}
        s_lshr_b32 s{sTAG}, s{sTAG}, 4
        s_mul_i32 s{sTAG}, s{sTAG}, 1664525
        s_add_u32 s{sTAG}, s{sTAG}, 1013904223
        s_lshl_b32 s{sTAG}, s{sTAG}, 4
        s_and_b32 s78, s{sTAG}, 0x70000000
        s_or_b32 s78, s78, 0x6000
        s_lshl_b32 s79, s{sTAG}, 3
        s_and_b32 s79, s79, 0x70000000
        s_or_b32 s79, s79, 0x1000
        s_lshl_b32 s80, s{sTAG}, 8
        s_and_b32 s80, s80, 0x70007000
        s_lshl_b32 s81, s{sTAG}, 5
        s_and_b32 s81, s81, 0x70007000
        v_mov_b32 v46, 0x8fff8ffe
        v_mov_b32 v47, 0x8fff8fff
        v_and_or_b32 v48, v48, v46, s78
        v_and_or_b32 v49, v49, v47, s79
        v_and_or_b32 v50, v50, v47, s80
        v_and_or_b32 v51, v51, v47, s81""")
        s.cond(f's_cmp_lg_u32 s{sW}, 7', lambda: s(f's_mov_b64 exec, 15\nds_read_b128 v[48:51], v{vL16} offset:{L_SM}\nv_mov_b32 v71, v{vL16}\ns_lshl_b32 s{sUO}, s2, 6\ns_add_u32 s{sUO}, s{sUO}, {SM}'), flush=False)
        s(f'buffer_store_dwordx4 v[48:51], v71, {sr(rWS)}, s{sUO} offen sc1\ns_mov_b64 exec, -1')
        s.stamp(3)
        s(f's_getreg_b32 s70, hwreg(HW_REG_XCC_ID, 0, 4)\ns_add_u32 s{sTX}, s70, s{sTAG}')
        s.wait(*[h for h, r in s.vm if r])
        s.stamp(40)
        s.cond(f's_cmp_ge_u32 s43, 2', s.pack_early)

    def pack_dma(s):
        s(f's_mov_b32 m0, s93\nbuffer_load_dwordx4 v23, {sr(rW)}, s90 offen lds\ns_add_u32 m0, s93, 1024')
        s.h_pack = s(f'buffer_load_dwordx4 v23, {sr(rW)}, s89 offen lds')
    def publish_a(s, conv=True):
        s.wait_vm(0, force=True)
        s('s_barrier')
        s.stamp(5)
        s.gflag8(0, sFO, sTX, 118)
        s(f's_lshl4_add_u32 s{sFO}, s2, {FB}')
        if s.cfg.dma_at == 1 or not conv: s.pack_dma(); s(f's_mov_b32 m0, s{sKG}')
    def pack_late_store(s):
        P = 240
        s.wait(s.h_pack)
        for e in range(4): s(f'ds_read_b64_tr_b16 {vr(P+2*e,2)}, v24 offset:{1024*(e>>1) + 256*(e&1)}')
        def colsum():
            s(f's_mov_b32 vcc_lo, 0xf0f00f0f\ns_mov_b32 vcc_hi, 0xf0f00f0f\nv_mov_b32 v{P+12}, 0x3f803f80')
            for i in range(4): s(f'v_cndmask_b32 v{P+8+i}, 0, v{P+12}, vcc')
            s(f'''s_lshr_b32 s72, s{sPD0}, 4
            s_add_u32 s72, s72, {CSP - W3P // 16}
            v_mfma_f32_16x16x32_bf16 {vr(P+12)}, {vr(P+8)}, {vr(P)}, 0
            v_mfma_f32_16x16x32_bf16 {vr(P+12)}, {vr(P+8)}, {vr(P+4)}, {vr(P+12)}
            v_lshlrev_b32 v{P+8}, 2, v{vL}
            s_mov_b32 exec_hi, 0
            buffer_store_dword v{P+12}, v{P+8}, {sr(rWS)}, s72 offen sc1
            s_mov_b32 exec_hi, -1''')
        s.cond('s_cmp_lg_u32 s43, 2', colsum, drain=False)
        s(f"""s_mov_b32 s{rW}, s{sWS}
        s_mov_b32 s{rW+1}, s{sWS+1}
        s_mov_b32 s{rW+2}, s{sPACT}
        buffer_store_dwordx4 {vr(P)}, v{vL16}, {sr(rW)}, s{sPD0} offen sc1""")
        s.h_pst = s(f'buffer_store_dwordx4 {vr(P+4)}, v{vL16}, {sr(rW)}, s{sPD1} offen sc1')

    def cm(s, d, a, b, t):
        return [f'v_pk_mul_f32 {vr(t,2)}, {vr(a,2)}, {vr(b,2)} op_sel_hi:[1,0]',
                f'v_pk_fma_f32 {vr(d,2)}, {vr(a,2)}, {vr(b,2)}, {vr(t,2)} op_sel:[1,1,0] op_sel_hi:[0,1,1] neg_lo:[1,0,0]']
    def kgen(s):
        c = s.cfg
        s.pin(c.pins[0])
        assert c.fa_at <= c.poll_at <= c.chk_at
        Z = lambda k: 74 + 2 * k
        Z128, ZD, R0, R1, TT = 92, 94, 112, 114, 116
        CH = [(96, 98, 100, 102), (104, 106, 108, 110)]
        BF, AF, ACC = 156, (172, 188, 204), 220
        s(f"""s_lshl_b32 s70, s{sLDT}, 16
        s_and_b32 s71, s{sLDT}, 0xffff0000
        s_cmp_lt_u32 s{sW}, 4
        s_cselect_b32 s72, s70, s71
        s_mov_b32 s70, {LOG2E}
        s_mov_b32 s71, {INV2PI}
        v_mov_b32 v64, s72
        v_lshlrev_b32 v60, 16, v60
        v_mul_f32 v64, s70, v64
        v_mul_f32 v60, s70, v60
        v_exp_f32 v64, v64
        v_exp_f32 v60, v60
        v_lshlrev_b32 v61, 16, v61
        v_lshlrev_b32 v62, 16, v62
        v_lshlrev_b32 v63, 16, v63
        v_cvt_pk_bf16_f32 v64, v64, v60
        v_and_b32 v60, 0xffff0000, v64
        v_lshlrev_b32 v64, 16, v64
        v_pk_mul_f32 v[60:61], v[60:61], v[64:65] op_sel_hi:[1,0]
        v_add_f32 v64, v64, v64
        v_pk_mul_f32 v[60:61], v[60:61], s[70:71]
        v_pk_mul_f32 {vr(R0,2)}, v[62:63], v[64:65] op_sel_hi:[1,0]
        s_mov_b32 m0, s{sKG}
        s_mov_b32 s70, 0x41000000
        s_mov_b32 s71, 0x43000000
        v_pk_mul_f32 v[62:63], v[60:61], s[70:71] op_sel_hi:[1,0]
        v_pk_mul_f32 v[64:65], s[70:71], v[60:61] op_sel:[1,0]
        s_lshl_b32 s{sD0}, s{sD1}, 16
        s_and_b32 s{sD1}, s{sD1}, 0xffff0000""")
        for r in (62, 64, 60): s(f'v_exp_f32 v{r}, -v{r}\nv_fract_f32 v{r+1}, v{r+1}')
        for r, d in ((62, Z(8)), (64, Z128), (60, Z(1))): s(f'v_cos_f32 v{d}, v{r+1}\nv_sin_f32 v{d+1}, v{r+1}')
        for r, d in ((62, Z(8)), (64, Z128), (60, Z(1))): s(f'v_pk_mul_f32 {vr(d,2)}, {vr(d,2)}, {vr(r,2)} op_sel_hi:[1,0]')
        s.stamp(4)
        def chain(st, rows, start, mul, neg=False):
            a, b, t, pk = CH[st]; out = []; cur, nxt = start, a
            for i, row in enumerate(rows):
                cc = s.cm(nxt, cur, mul, t) if i < len(rows) - 1 else []
                out += cc[:1] + [f'v_cvt_pk_bf16_f32 v{pk + (i&1)}, v{cur}, {"-" if neg else ""}v{cur+1}'] + cc[1:] + [f'ds_write_addtid_b32 v{pk + (i&1)} offset:{row*KGP}']
                cur, nxt = nxt, (b if nxt == a else a)
            return out
        def rd(dst):
            for ks in range(4): s(f'ds_read_b128 {vr(dst+4*ks)}, v20 offset:{64*ks}')
        E = lambda l: [s(x) for x in l]
        zz = zipl if c.two else (lambda *a: sum(a, []))
        uld = f'buffer_load_dwordx4 v[120:123], v10, {sr(rWS)}, s{sUS} offen sc1'
        uck = [f'v_xor_b32 v{120+i}, s{78+i}, v{120+i}' for i in range(4)] + ['v_or3_b32 v119, v120, v121, v122', 'v_or_b32 v119, v119, v123', 'v_and_b32 v119, 0x70007000, v119', 'v_cmp_ne_u32 vcc, 0, v119']
        def hook(k):
            if c.fa_at == k: s.publish_a()
            if c.clr_at == k: s.clear()
            if c.u_at == k: s(uld)
            if c.poll_at == k: s.poll_issue(27, 17, 0)
            if c.dma_at == k and k > 1:
                s.pack_dma()
                if k < 4: s(f's_mov_b32 m0, s{sKG}')
            if c.uchk_at == k:
                retry, back = s.lab('ur'), s.lab('ub')
                for l in uck: s(l)
                s(f's_mov_b32 s97, 0\ns_cbranch_vccnz {retry}'); s.label(back)
                s.ool.append(f'{retry}:\n    {uld}\n    s_add_u32 s97, s97, 1\n    s_cmp_gt_u32 s97, {SPIN}\n    s_waitcnt vmcnt(0)\n    s_cbranch_scc1 {back}\n'
                             + ''.join(f'    {l}\n' for l in uck) + f'    s_nop 1\n    s_cbranch_vccnz {retry}\n    s_branch {back}\n')
                if s.stamps: s('v_writelane_b32 v3, s97, 44')
                for i in range(4): s(f'v_add_u32 v{120+i}, 0x32003200, v{120+i}')
                s(f'v_add_u32 v119, s{sUM}, v{vL16}\nds_write_b128 v119, v[120:123]')
                s.stamp(8)
            if c.chk_at == k:
                s.poll_check(27, 17, 0, c.fa_sleep)
                if s.stamps: s('v_writelane_b32 v3, s97, 58')
            if c.pst_at == k: s.pack_late_store()
        hook(0)
        if c.two:
            E(zipl(s.cm(ZD, Z(8), Z(8), 100), s.cm(R1, R0, Z(8), 108), s.cm(Z(2), Z(1), Z(1), TT)))
            E(zipl(chain(0, range(0, 16, 2), R0, ZD, True), chain(1, range(1, 16, 2), R1, ZD, True)))
            rd(BF)
            E(zipl(s.cm(ZD, Z128, Z128, 100), s.cm(R1, Z(8), Z128, 108), s.cm(Z(4), Z(2), Z(2), TT)))
            hook(1); s.stamp(35)
            E(zipl(chain(0, range(0, 16, 2), Z(8), ZD), chain(1, range(1, 16, 2), R1, ZD)))
        else:
            rc = chain(0, range(16), R0, Z(8), True)
            E(rc[:4*c.rsplit]); hook(0.5); E(rc[4*c.rsplit:])
            rd(BF)
            E(s.cm(Z(2), Z(1), Z(1), TT) + s.cm(Z(4), Z(2), Z(2), TT))
            hook(1); s.stamp(35)
            E(chain(0, range(16), Z(8), Z128))
        rd(AF[0])
        E(zipl(s.cm(Z(6), Z(4), Z(2), 100), s.cm(Z(3), Z(2), Z(1), 108), s.cm(Z(5), Z(4), Z(1), TT)))
        hook(2); s.stamp(36)
        E(zz(chain(0, range(0, 8), Z(4), Z128), chain(1, range(8, 12), Z(2), Z128) + chain(1, range(12, 16), Z(6), Z128), s.cm(Z(7), Z(6), Z(1), TT)))
        rd(AF[1])
        s.stamp(47); hook(3); s.stamp(37)
        if c.kbar: s('s_barrier')
        mf = lambda t, ks: f'v_mfma_f32_16x16x32_bf16 {vr(ACC+4*t)}, {vr(AF[t]+4*ks)}, {vr(BF+4*ks)}, {vr(ACC+4*t) if ks else 0}'
        wr = lambda t, r: f'ds_write_b32 v19, v{ACC+4*t+r} offset:{(16*t+r)*256}'
        if c.ktm == 2:
            t2 = [f'v_mov_b32 v{TT}, 0x3f80', f'ds_write_addtid_b32 v{TT} offset:{8*KGP}']
            for i, phi in enumerate((1, 3, 5, 7)):
                z, d = Z(phi), 96 + 4*i
                t2 += [f'v_cvt_pk_bf16_f32 v{d+2}, v{z}, v{z+1}', f'v_mul_f32 v{d}, v{z}, v{Z128}', f'ds_write_addtid_b32 v{d+2} offset:{2*i*KGP}', f'v_mul_f32 v{d+1}, v{z+1}, v{Z128}',
                       f'v_fma_f32 v{d}, -v{z+1}, v{Z128+1}, v{d}', f'v_fmac_f32 v{d+1}, v{z}, v{Z128+1}', f'v_cvt_pk_bf16_f32 v{d+3}, v{d}, v{d+1}', f'ds_write_addtid_b32 v{d+3} offset:{(2*i+1)*KGP}']
            m01 = [mf(t, k) for t in range(2) for k in range(4)]
            for i, l in enumerate(t2):
                if i % 4 == 0 and m01: s(m01.pop(0))
                s(l)
            rd(AF[2])
            s.stamp(6); hook(4)
            E([wr(0, r) for r in range(4)] + zipl([mf(2, k) for k in range(4)], [wr(1, r) for r in range(4)]) + [wr(2, r) for r in range(4)])
        else:
            E(zz(chain(0, (0, 1), Z(1), Z128) + chain(0, (4, 5), Z(5), Z128), chain(1, (2, 3), Z(3), Z128) + chain(1, (6, 7), Z(7), Z128)))
            s(f'v_mov_b32 v{TT}, 0x3f80\nds_write_addtid_b32 v{TT} offset:{8*KGP}')
            rd(AF[2])
            s.stamp(6); hook(4)
            if c.ktm:
                E([mf(0, k) for k in range(4)] + [mf(1, k) for k in range(4)] + zipl([mf(2, k) for k in range(4)], [wr(0, r) for r in range(4)]))
                E([wr(t, r) for t in (1, 2) for r in range(4)])
            else:
                E([mf(t, k) for k in range(4) for t in range(2)] + [mf(2, k) for k in range(4)] + [wr(t, r) for t in range(3) for r in range(4)])
        s.stamp(48); hook(5)
        if c.clr_at is not None: s.wait(s.h_clr)
        s.barrier()
        s.stamp(7)
        hook(5.5)
        for t in range(9): s(f'ds_read_b128 {vr(28+4*t)}, v{132+t}')
        if c.clr_at is not None: s(f's_add_u32 s72, s{sFO}, {FC - FB}'); s.gflag8(2, 72, sTAG, 72)
        hook(6)
        if c.chk_at <= 5 and c.pst_at != 7: s.feed(c.f_kt, 63)
        for t in range(9):
            s(f'v_pk_add_f32 {vr(28+4*t,2)}, {vr(28+4*t,2)}, {vr(30+4*t,2)}')
            if t: s(f'v_add_f32 v{24+4*t}, v{24+4*t}, v{25+4*t}')
        s('v_add_f32 v60, v60, v61')
        for i in range(4): s(f'v_cvt_pk_bf16_f32 v{64+i}, v{28+8*i}, v{32+8*i}')
        s('ds_write_b128 v18, v[64:67]')
        for i in range(4): s(f'v_cvt_pk_bf16_f32 v{68+i}, v{32+8*i}, v{36+8*i}')
        s(f'ds_write_b128 v18, v[68:71] offset:{KEO}')
        s.stamp(9); hook(7)
        if c.chk_at <= 5 and c.pst_at == 7: s.feed(c.f_kt, 63)

    def conv(s):
        c = s.cfg
        A, B, ACC = 28, 60, 92
        def rd(kind, slot, e, j):
            if kind == 'B': return [f'ds_read_b128 {vr(B+4*slot)}, v{8+e} offset:{1024*j}']
            off = 16 * (1 - e) + 128 * (1 - (j & 1))
            return [f'ds_read2_b32 {vr(A+4*slot+2*h,2)}, v{4+(j>>1)} offset0:{off+2*h} offset1:{off+2*h+1}' for h in range(2)]
        M = []
        for k in range(8):
            p1 = [(k, j) for j in range(k + 1) if k + j <= 7]; p2 = [(j, k) for j in range(k) if k + j <= 7]
            M += [(0, a, b) for a, b in p1 + p2]
        if c.cil:
            for nu in range(0, 8, 2): M += [(1, a, b) for a, b in zipl([(a, nu + 1 - a) for a in list(range(1, nu + 1)) + [0, nu + 1]], [(a, nu - a) for a in range(nu + 1)])]
        else:
            for nu in range(8): M += [(1, a, nu - a) for a in range(nu + 1)]
        slot = {(0, j): j for j in range(8)}
        for k in range(4, 8): slot[1, 2*(k-4)] = k; slot[1, 2*(k-4) + 1] = 7 - k
        ops = []
        for e in range(2):
            for j in range(8):
                for kind, ix in (('A', 1), ('B', 2)):
                    need = min(n for n, m in enumerate(M) if m[0] == e and m[ix] == j)
                    early = -1 if e == 0 else max(n for n, m in enumerate(M) if m[0] == 0 and m[ix] == slot[1, j])
                    ops += [(need, early, t) for t in rd(kind, slot[e, j], e, j)]
        ops.sort(key=lambda o: o[0])
        D = {n: [] for n in range(-1, 73)}
        pos = -1.0
        for i, (need, early, t) in enumerate(ops):
            if i < c.chead: D[-1].append(t); continue
            pos = max(pos + c.cpace, early)
            pos = max(min(pos, need - c.clead), early)
            D[int(pos)].append(t)
        done = {nu: max(n for n, m in enumerate(M) if m[1] + m[2] == nu) for nu in range(8)}
        at = c.cy0
        for nu in range(8):
            at = max(at, done[nu] + 3)
            D[min(int(at), 72)].append(f'ds_write_b128 v13, {vr(ACC+4*nu)} offset:{L_Y + 8192*nu}')
            at += c.cyp
        s.pin(c.pins[1])
        s.barrier(); s.stamp(10)
        for t in D[-1]: s(t)
        f0 = c.fslot if c.chk_at == 8 else 0
        ex = s.spread(c.f_conv, 66, f0 + 3)
        bs = ['ds_read_b64 v[140:141], v15', 'ds_read_b64 v[142:143], v16', '', '', '', '']
        for i in range(4): bs += [f'v_lshlrev_b32 v{132+2*i}, 16, v{140+i}', f'v_and_b32 v{133+2*i}, 0xffff0000, v{140+i}']
        for ch in range(2):
            bs += [f'v_add_f32 v{140+r}, s{sD0+ch}, v{124+2*r}' for r in range(4)]
            bs += [f'v_fma_f32 v{132+4*ch+r}, v{132+4*ch+r}, v{140+r}, v{125+2*r}' for r in range(4)]
        ha = s.h2_addr().split('\n')
        seen = set(); assert f0 + 3 <= c.hint_at <= 73
        for n, (e, a, b) in enumerate(M):
            nu = a + b
            s.fair(n, c.fc)
            s(f'v_mfma_f32_16x16x32_bf16 {vr(ACC+4*nu)}, {vr(A+4*slot[e, a])}, {vr(B+4*slot[e, b])}, {vr(ACC+4*nu) if nu in seen else 0}')
            seen.add(nu)
            for t in D[n]: s(t)
            if n == f0 and c.chk_at == 8:
                s.poll_check(27, 17, 0, c.fa_sleep)
                if s.stamps: s('v_writelane_b32 v3, s97, 58')
                s('s_barrier')
            if n == f0 + 1: s(f'buffer_load_dwordx4 v[124:127], v11, {sr(rWS)}, s{sSM} offen sc1')
            if n == f0 + 2: s(f'buffer_load_dwordx4 v[128:131], v11, {sr(rWS)}, s{sSM} offen offset:16 sc1\ns_lshl_b32 s68, s2, 6\ns_add_u32 s68, s68, {FH}')
            if c.pst_at == 8 and n == c.pslot: s.pack_late_store()
            if c.clr_at is not None and n == c.cslot: s(f's_mov_b32 s73, {FC - FA}'); s.poll_issue(27, 17, 's73')
            if c.clr_at is not None and n == 66: s.poll_check(27, 17, 's73', 1)
            if n == c.hint_at: s.gflag(7, 68, sTAG, 23, False, False)
            if ex: ex.pop(0)()
            if n >= 4 and ha: s(ha.pop(0))
            if n >= 40 and bs: s(bs.pop(0))
        if c.fc: s('s_setprio 0')
        for t in D[72]: s(t)
        assert not bs and not ha
        s.stamp(38)
        s.wait(s.h_pst); assert c.f_conv <= 24
        s.barrier(); s.stamp(11)
        for i in (0, 4, 1, 5, 2, 6, 3, 7): s(f'ds_read_b128 {vr(A+4*i)}, v14 offset:{L_Y + 1024*i}')
        fb = lambda: s.gflag8(6, sFO, sTAG, 23)
        if not c.fblate: fb()
        if c.hint_at == 72: s.gflag(7, 68, sTAG, 17, False)
        for i in (0, 4, 1, 5, 2, 6, 3, 7):
            ch = i >> 2
            for h in range(2): s(f'v_pk_add_f32 {vr(132+4*ch+2*h,2)}, {vr(132+4*ch+2*h,2)}, {vr(A+4*i+2*h,2)}')
        for r in range(4): s(f'v_cvt_pk_bf16_f32 v{140+r}, v{132+r}, v{136+r}')
        s('v_and_b32 v140, -2, v140')
        h = s.hstore(140)
        s.stamp(12)
        if c.fblate: fb()
        if c.hint_at == 73: s.gflag(7, 68, sTAG, 17, False)
        s.feed(c.f_hst, 63)
        return h

    def nonconv(s):
        c = s.cfg
        s(f'v_lshlrev_b32 v15, 7, v{vL}')
        if c.sb_at == 1: s.setup_b()
        s(f'v_lshlrev_b32 v15, 7, v{vL}')
        s(s.h2_addr())
        if c.dma_at == 0: s.pack_dma()
        s.publish_a(False)
        s.pack_late_store()
        s.poll(18, 17, 0, sleep=8)
        s.barrier(); s.stamp(8)
        s.gflag8(1, sFO, sTAG, 118)
        if c.clr_at is not None: s(f's_add_u32 s72, s{sFO}, {FC - FB}'); s.gflag8(2, 72, sTAG, 118)
        s(f's_add_u32 s70, s{sA2}, {14*1024 - 8192}')
        s.feed(c.f_hst, c.nc_depth)
        if c.warm: s(f'buffer_load_dword v119, v15, {sr(rG)}, s70 offen')
        if c.clr_at is not None:
            s(f's_mov_b32 s73, {FC - FA}'); s.poll(18, 17, 's73', sleep=8); s.barrier()
        s.wait_vm(0); s.stamp(10)
    def hint_wait(s):
        def body():
            s(f's_lshl_b32 s68, s2, 6\ns_add_u32 s68, s68, {FH - 32*64}\nv_mov_b32 v9, 0')
            s.poll(8, 9, 's68', 1, 0, sleep=4)
        s.cond(f's_cmp_lt_u32 s{sI}, 28', body)

    def h2(s, behind, mid=lambda: None, halo=False):
        ld = [f'buffer_load_dwordx4 {vr(8+4*j)}, v4, {sr(rWS)}, s88 offen offset:{128*j} sc1' for j in range(4)]
        chk = ['v_or3_b32 v24, v8, v12, v16', 'v_or_b32 v24, v24, v20', 'v_and_b32 v24, 1, v24', 'v_cmp_eq_u32 vcc, 1, v24']
        if s.cfg.hdel: s(f's_sleep {s.cfg.hdel}')
        for l in ld: s(l)
        s.poll_issue(25, 26, 0)
        mid()
        for l in chk: s(l)
        retry, back = s.lab('hr'), s.lab('hb')
        s(f's_mov_b32 s97, 0\ns_cbranch_vccnz {retry}')
        s.label(back)
        s.ool.append(f'{retry}:\n' + ('    s_mov_b64 exec, vcc\n' if s.cfg.hmask else '') + ''.join(f'    {l}\n' for l in ld) + f'    buffer_load_dword v25, v26, {sr(rWS)}, 0 offen sc1\n    s_add_u32 s97, s97, 1\n    s_cmp_gt_u32 s97, {SPIN}\n    s_waitcnt vmcnt(0)\n    s_cbranch_scc1 {back}\n'
                     + ''.join(f'    {l}\n' for l in chk) + f'    s_nop 1\n    s_cbranch_vccnz {retry}\n    s_branch {back}\n')
        if s.cfg.hmask: s('s_mov_b64 exec, -1')
        if s.stamps: s('v_writelane_b32 v3, s97, 59')
        s.stamp(14)
        if not s.cfg.hfeed: behind()
        if halo:
            s(f's_bitcmp1_b32 s{sQ}, 0\ns_cselect_b64 vcc, -1, 0')
            for i in range(2):
                for j in range(4): s(f'v_cndmask_b32 v{28+4*i+j}, v{10+4*j+i}, v{8+4*j+i}, vcc')
                s(f'ds_write_b128 v5, {vr(28+4*i)} offset:{64*i}')
        else:
            for j in range(4):
                for i in range(j): s(f'v_swap_b32 v{8+4*j+i}, v{8+4*i+j}')
            for i in range(4): s(f'ds_write_b128 v5, {vr(8+4*i)} offset:{64*i}')
        s.stamp(32)
        s.poll_check(25, 26, 0, 2)
        if s.cfg.hfeed: behind()
        if s.stamps: s('v_writelane_b32 v3, s97, 57')

    def stats_tail(s, a, extra, vadr, tab):
        if extra:
            s('s_mov_b64 exec, -1')
            for t in range(3): s(f'v_cndmask_b32 v{a+4*t}, v{a+4*t}, v{a+4*t+1}, s[92:93]')
            for t in range(3): s(f'v_cndmask_b32 v{a+4*t}, v{a+4*t}, v{a+4*t+2}, s[94:95]')
            for t in (1, 2):
                s(f'v_mov_b32_dpp v{a+4*t+1}, v{a+4*t+3} row_ror:{4*t}\nv_mov_b32_dpp v{a+4*t+2}, v{a+4*t} row_ror:{4*t}')
            for t in (1, 2):
                s(f'v_cndmask_b32 v{a+3}, v{a+3}, v{a+4*t+1}, {sr(76+2*t,2)}\nv_cndmask_b32 v{a}, v{a}, v{a+4*t+2}, {sr(76+2*t,2)}')
            s('s_mov_b32 exec_lo, 0x77700777\ns_mov_b32 exec_hi, 0x70777707')
        s(f'''v_mul_f32 v{a+3}, s96, v{a+3}
        v_mul_f32 v{a}, s96, v{a}
        v_fma_f32 v{a}, -v{a+3}, v{a+3}, v{a}
        v_max_f32 v{a}, 0, v{a}''')
        if extra:
            s(f'''v_fmaak_f32 v{a+2}, v{a}, v49, {fh(1e-10)}
            v_add_f32 v51, {EPS}, v{a}
            v_rsq_f32 v{a+1}, v{a+2}
            v_rsq_f32 v51, v51
            v_mul_f32 v{a}, {fh(C1)}, v{a+1}
            v_mul_f32 v{a+4}, {fh(0.044715)}, v{a+1}
            v_mul_f32 v{a+2}, v{a+2}, v{a+1}
            v_mul_f32 v{a+1}, v{a+1}, v{a}
            v_mul_f32 v50, -v{a+3}, v51
            v_mul_f32 v{a+1}, v{a+1}, v{a+4}
            ds_write_b64 v{extra}, v[50:51] offset:{tab // 2}
            ds_write_b128 v{vadr}, {vr(a)} offset:{tab}''')
        else:
            s(f'''v_add_f32 v50, {EPS}, v{a}
            v_rsq_f32 v{a+1}, v50
            v_cvt_pk_bf16_f32 v{a}, -v{a+3}, -v{a+3}
            v_mul_f32 v{a+2}, {fh(C1)}, v{a+1}
            v_mul_f32 v{a+4}, {fh(0.044715)}, v{a+1}
            v_and_b32 v51, 0xffff0000, v{a}
            v_add_f32 v51, v51, v{a+3}
            v_mul_f32 v{a+3}, v50, v{a+1}
            v_mul_f32 v{a+1}, v{a+1}, v{a+2}
            v_and_b32 v{a+2}, 0xffffff7f, v{a+2}
            v_mul_f32 v{a+1}, v{a+1}, v{a+4}
            v_and_b32 v{a+3}, 0xffffff7f, v{a+3}
            v_and_b32 v{a+1}, 0xffffff7f, v{a+1}
            ds_write_b128 v{vadr}, {vr(a)} offset:{tab}
            v_cvt_pk_bf16_f32 v{a}, -v51, -v51
            ds_write_b128 v{vadr}, {vr(a)} offset:{tab + 512}''')
    def gelu_pk(s, acc, cs, st, n, t, out):
        P = range(0, n, 2); o = []
        if s.cfg.gsc:
            R = range(n)
            o += [f'v_fma_f32 v{acc+i}, -v{cs+i}, v{st+3}, v{acc+i}' for i in R]
            if s.cfg.gsc == 2: return o + s.gelu_pk2(acc, cs, st, n, t, out)[n//2:]
            o += [f'v_mul_f32 v{t+i}, v{acc+i}, v{acc+i}' for i in R] + [f'v_fma_f32 v{t+i}, v{t+i}, v{st+1}, v{st}' for i in R]
            o += [f'v_mul_f32 v{t+i}, v{t+i}, v{acc+i}' for i in R] + [f'v_exp_f32 v{t+i}, v{t+i}' for i in R]
            o += [f'v_fma_f32 v{t+i}, v{t+i}, v{st+2}, v{st+2}' for i in R] + [f'v_rcp_f32 v{t+i}, v{t+i}' for i in R]
            o += [f'v_mul_f32 v{t+i}, v{t+i}, v{acc+i}' for i in R] + [f'v_cvt_pk_bf16_f32 v{out+i//2}, v{t+i}, v{t+i+1}' for i in P]
            return o
        return s.gelu_pk2(acc, cs, st, n, t, out)
    def gelu_pk2(s, acc, cs, st, n, t, out):
        P = range(0, n, 2); o = []
        o += [f'v_pk_fma_f32 {vr(acc+i,2)}, {vr(st+2,2)}, {vr(cs+i,2)}, {vr(acc+i,2)} op_sel:[1,0,0] op_sel_hi:[1,1,1] neg_lo:[1,0,0] neg_hi:[1,0,0]' for i in P]
        o += [f'v_pk_mul_f32 {vr(t+i,2)}, {vr(acc+i,2)}, {vr(acc+i,2)}' for i in P]
        o += [f'v_pk_fma_f32 {vr(t+i,2)}, {vr(st,2)}, {vr(t+i,2)}, {vr(st,2)} op_sel:[1,0,0] op_sel_hi:[1,1,0]' for i in P]
        o += [f'v_pk_mul_f32 {vr(t+i,2)}, {vr(t+i,2)}, {vr(acc+i,2)}' for i in P]
        o += [f'v_exp_f32 v{t+i}, v{t+i}' for i in range(n)]
        o += [f'v_pk_fma_f32 {vr(t+i,2)}, {vr(t+i,2)}, {vr(st+2,2)}, {vr(st+2,2)} op_sel_hi:[1,0,0]' for i in P]
        o += [f'v_rcp_f32 v{t+i}, v{t+i}' for i in range(n)]
        o += [f'v_pk_mul_f32 {vr(t+i,2)}, {vr(t+i,2)}, {vr(acc+i,2)}' for i in P]
        o += [f'v_cvt_pk_bf16_f32 v{out+i//2}, v{t+i}, v{t+i+1}' for i in P]
        return o
    def gelu_sc(s, acc, cs, st, n, t, out, ex):
        steps = [lambda i: f'v_fma_f32 v{acc+i}, -v{cs+i}, v{st+3}, v{acc+i}', lambda i: f'v_mul_f32 v{t+i}, v{acc+i}, v{acc+i}',
                 lambda i: f'v_fma_f32 v{t+i}, v{t+i}, v{st+1}, v{st}', lambda i: f'v_mul_f32 v{t+i}, v{t+i}, v{acc+i}',
                 lambda i: f'v_exp_f32 v{t+i}, v{t+i}', lambda i: f'v_fma_f32 v{t+i}, v{t+i}, v{st+2}, v{st+2}',
                 lambda i: f'v_rcp_f32 v{t+i}, v{t+i}', lambda i: f'v_mul_f32 v{t+i}, v{t+i}, v{acc+i}',
                 lambda i: f'v_cvt_pk_bf16_f32 v{out+i//2}, v{t+i}, v{t+i+1}' if i % 2 == 0 else '']
        for f in steps:
            ex.pop(0)()
            for i in range(n): s(f(i))
    def gemm16(s, W, acc, vaddr, kstride, first_zero, ex, bufs=(8, 12, 16, 20)):
        seq = [(ks, t) for ks in range(14) for t in range(2)]; nb = len(bufs); after = s.cfg.gaft
        def rd(i): ks, t = seq[i]; s(f'ds_read_b128 {vr(bufs[i%nb])}, v{vaddr} offset:{ks*kstride + 256*t}')
        for i in range(nb - 1 + after): rd(i)
        for i, (ks, t) in enumerate(seq):
            if not after and i + nb - 1 < 28: rd(i + nb - 1)
            c = 0 if (first_zero and ks == 0) else vr(acc + 4*t)
            s.fair(i, s.cfg.fg)
            s(f'v_mfma_f32_16x16x32_bf16 {vr(acc+4*t)}, {vr(W+4*ks)}, {vr(bufs[i%nb])}, {c}')
            if after and i + nb < 28: rd(i + nb)
            if ex: ex.pop(0)()
        if s.cfg.fg: s('s_setprio 0')
    def gemm32(s, jobs, vaddr, extra=None, nb=4, buf=8):
        seq = [(j, i) for j, job in enumerate(jobs) for i in range(job[1])]
        ex = list(extra or [])
        def rd(n): j, i = seq[n]; s(f'ds_read_b128 {vr(buf+4*(n%nb))}, v{vaddr} offset:{jobs[j][3] + 1024*i}')
        if s.cfg.prio: s('s_setprio 1')
        for n in range(nb - 1): rd(n)
        for n, (j, i) in enumerate(seq):
            W, nk, acc, _, after = jobs[j]
            if n + nb - 1 < len(seq): rd(n + nb - 1)
            s(f'v_mfma_f32_32x32x16_bf16 {vr(acc,16)}, {vr(W+4*i)}, {vr(buf+4*(n%nb))}, {vr(acc,16) if i else 0}')
            if ex: ex.pop(0)()
            if i == nk - 1 and after: ex += [lambda: None] * 3 + after
        s('s_setprio 0')
        s.run(ex)
    def g_pre(s):
        s.comment('G wave addresses (v6 GEMM1 B, v7 residual h, v50/v51 stats, masks)')
        s(f'''s_lshl_b32 s70, s{sQ}, 2
        s_lshr_b32 s71, 0x2213, s70
        s_and_b32 s71, s71, 15
        s_lshr_b32 s72, 0x0404, s70
        s_and_b32 s72, s72, 15
        v_and_b32 v44, 15, v{vL}
        v_lshrrev_b32 v45, 4, v{vL}
        v_add_u32 v46, s71, v44
        v_add_u32 v47, s72, v44''')
        s.pos(6, 46, 48)
        s(f'v_mul_u32_u24 v48, 768, v45\nv_add_u32 v6, v6, v48\nv_add_u32 v6, {L_HI}, v6')
        s.pos(7, 47, 48)
        s(f'''v_lshrrev_b32 v48, 1, v45
        s_lshl_b32 s73, s{sCT}, 1
        v_add_u32 v48, s73, v48
        v_mul_u32_u24 v48, 768, v48
        v_and_b32 v49, 1, v45
        v_lshl_add_u32 v48, v49, 3, v48
        v_add_u32 v7, v7, v48
        v_add_u32 v7, {L_HI}, v7
        s_sub_u32 s73, s71, s72
        s_lshl_b32 s70, s{sTB}, 5
        s_add_u32 s73, s73, s70
        v_add_u32 v48, s73, v44
        v_add_u32 v49, 16, v48
        s_movk_i32 s70, 2048
        v_cmp_gt_u32 {sr(sM0,2)}, s70, v48
        v_cmp_gt_u32 {sr(sM1,2)}, s70, v49
        v_lshlrev_b32 v50, 4, v46
        v_add_u32 v50, {L_STA}, v50
        v_lshlrev_b32 v51, 3, v47
        v_add_u32 v51, {L_STB}, v51''')
        for j in range(3): s(f's_add_u32 s70, s{sQ}, {j+1}\ns_and_b32 s70, s70, 3\ns_mul_i32 s70, s70, 7\ns_add_u32 s70, s70, s{sW}\ns_lshl_b32 s{4+j}, s70, 10')
        s(f'''s_lshl_b32 s7, s{sW}, 10
        s_mul_i32 s8, s{sTB}, 28672
        s_add_u32 s8, s8, {GX}
        s_xor_b32 s9, s{sTB}, 1
        s_mul_i32 s9, s9, 28672
        s_add_u32 s9, s9, s7
        s_add_u32 s9, s9, {X1}
        s_lshl_b32 s69, s{sCT}, 10
        s_add_u32 s70, s69, s8
        s_add_u32 s71, s70, {X1 - GX}
        v_add_u32 v46, s69, v{vL16}
        v_add_u32 v47, s7, v{vL16}''')
        for i in range(4): s(f'v_mov_b32 v{28+i}, 0x3f803f80')
        for ks in range(14): s(f'v_mfma_f32_16x16x32_bf16 v[32:35], {vr(vW1+4*ks)}, v[28:31], {"v[32:35]" if ks else 0}')

    def g_wave(s, hst):
        c = s.cfg
        assert c.f_hok <= 28
        s.g_pre()
        if c.hack: s.wait(hst)
        s.hint_wait()
        s.stamp(13)
        s.h2(lambda: s.feed(c.f_hok, 63), lambda: s.feed(c.f_hld, 63))
        s.pin(c.pins[2])
        s.barrier(); s.stamp(15)
        s(f'v_mov_b32 v4, {L_FAST}\nds_read_b32 v4, v4\nv_lshlrev_b32 v5, 4, v44\nv_lshl_add_u32 v5, v45, 9, v5')
        s.gemm16(vW1, 24, 6, 3072, True, s.spread(c.f_g1, 28), (8, 12, 16, 20, 36, 40)[:c.nb1])
        s.stamp(39)
        s(f'v_readfirstlane_b32 s{sFAST}, v4')
        s(f's_mul_i32 s69, s{sM}, 7\ns_add_u32 s69, s69, s{sW}\ns_mul_i32 s69, s69, 1792\ns_add_u32 s69, s69, {CSP}\nv_lshlrev_b32 v48, 2, v{vL}')
        csl = lambda: [s(f'buffer_load_dword v{164+i}, v48, {sr(rWS)}, s69 offen offset:{256*i}') for i in range(7)]
        if c.cs_at == 0: csl()
        if c.evb2:
            spin, back = s.lab('es'), s.lab('eb')
            rdl = ['ds_read_b32 v49, v4', 'ds_read_b128 v[36:39], v50', 'ds_read_b128 v[40:43], v50 offset:256'][:1 if c.evc else 3]
            s(f'v_mov_b32 v4, {L_EV + 6*2048 + 7*260}')
            for l in rdl: s(l)
            s(f'v_cmp_eq_u32 vcc, 0, v49\ns_mov_b32 s97, 0\ns_cbranch_vccnz {spin}'); s.label(back)
            s.ool.append(f'{spin}:\n' + ''.join(f'    {l}\n' for l in rdl) + f'    s_add_u32 s97, s97, 1\n    s_cmp_gt_u32 s97, {SPIN*8}\n    s_waitcnt lgkmcnt(0)\n    s_cbranch_scc1 {back}\n'
                         f'    v_cmp_eq_u32 vcc, 0, v49\n    s_nop 1\n    s_cbranch_vccnz {spin}\n    s_branch {back}\n')
            s.stamp(16)
            if c.evc: s('ds_read_b128 v[36:39], v50\nds_read_b128 v[40:43], v50 offset:256')
        else:
            s.barrier(); s.stamp(16)
            s('ds_read_b128 v[36:39], v50\nds_read_b128 v[40:43], v50 offset:256')
        gl = zipl(s.gelu_pk(24, 32, 36, 4, 8, 20), s.gelu_pk(28, 32, 40, 4, 12, 22))
        ex = s.spread(c.f_gel, len(gl))
        for l in gl: s(l); ex.pop(0)()
        s(f"""v_cndmask_b32 v20, 0, v20, {sr(sM0,2)}
        v_cndmask_b32 v22, 0, v22, {sr(sM1,2)}
        v_cndmask_b32 v21, 0, v21, {sr(sM0,2)}
        v_cndmask_b32 v23, 0, v23, {sr(sM1,2)}
        v_permlane16_swap_b32 v20, v22
        v_permlane16_swap_b32 v21, v23
        v_or_b32 v20, 1, v20""")
        s.xstore([f'buffer_store_dwordx4 v[20:23], v{vL16}, {sr(rWS)}, s70 offen'])
        s.stamp(17)
        s(f"""ds_write_b128 v46, v[20:23] offset:{L_GI}
        ds_read_b64 v[8:9], v7
        ds_read_b64 v[10:11], v7 offset:256
        ds_read_b64 v[12:13], v51
        ds_read_b64 v[14:15], v51 offset:128""")
        for i in range(4): s(f'v_lshlrev_b32 v{vRES+2*i}, 16, v{8+i}\nv_and_b32 v{vRES+1+2*i}, 0xffff0000, v{8+i}')
        for i in range(4): s(f'v_pk_fma_f32 {vr(24+2*i,2)}, {vr(12+2*(i>>1),2)}, {vr(vRES+2*i,2)}, {vr(12+2*(i>>1),2)} op_sel:[1,0,0] op_sel_hi:[1,1,0]')
        if c.dack[0]: s.wait_vm(0)
        s.stamp(18)
        hd, td = s.fetch_issue([(4+j, L_GI, 4+j, 's8') for j in range(3)])
        if c.bar_a: s('s_barrier')
        if c.cs_at == 1: csl()
        s.feed(c.f_b3a, 63)
        s(f'v_mov_b32 v34, 0x3f803f80\nv_lshrrev_b32 v35, 1, v47\nv_add_u32 v35, {L_PS}, v35\ns_mul_i32 s70, s{sW}, 260\ns_add_u32 s70, s70, {L_EV + 7*2048}\nv_mov_b32 v45, s70')
        p1, p2 = s.fetch_check(hd, td, 47, L_GI, 4, 8)
        p1(); p2(); s.stamp(42)
        if s.stamps: s('v_writelane_b32 v3, s97, 62')
        if c.cs_at == 2: csl()
        s.feed(c.f_gok, 63)
        s(f's_add_u32 s8, s8, {X1 - GX}\nv_add_u32 v47, {L_XI}, v47')
        s.barrier(); s.stamp(19)
        s.gemm16(vW2, 24, 5, 2048, False, s.spread(c.f_g2, c.g2span), (8, 12, 16, 20, 172, 176, 180, 184)[:c.nb2])
        for i in range(4): s(f'v_cvt_pk_bf16_f32 v{20+i}, v{24+2*i}, v{25+2*i}')
        s('v_permlane16_swap_b32 v20, v22\nv_permlane16_swap_b32 v21, v23\nv_or_b32 v20, 1, v20')
        s.xstore([f'buffer_store_dwordx4 v[20:23], v{vL16}, {sr(rWS)}, s71 offen'])
        s.stamp(20)
        s(f'ds_write_b128 v46, v[20:23] offset:{L_XI + 28672}')
        s('v_dot2_f32_bf16 v32, v20, v34, 0\nv_dot2_f32_bf16 v33, v20, v20, 0')
        for i in (21, 22, 23): s(f'v_dot2_f32_bf16 v32, v{i}, v34, v32\nv_dot2_f32_bf16 v33, v{i}, v{i}, v33')
        s(f"""v_mov_b32 v49, 0
        v_mov_b32 v50, 0
        v_mov_b32 v51, 0
        v_add_u32 v6, {L_XI}, v{vL16}
        s_lshl_b32 s70, s{sW}, 11
        s_add_u32 s70, s70, {L_HID}
        v_add_u32 v7, s70, v{vL16}
        v_add_u32 v44, {L_HID}, v{vL16}
        ds_write_b64 v35, v[32:33]
        s_mov_b64 exec, 1
        ds_write_b32 v45, v45
        s_mov_b64 exec, -1""")
        for i in range(8): s(f'v_add_f32 v{vRES+i}, v{vRES+i}, v{24+i}')
        if c.dack[1]: s.wait_vm(0)
        s.stamp(21)
        hd, td = s.fetch_issue([(7, L_XI + 7168*j, 9, 7168*j) for j in range(4)])
        s(f'''v_pk_add_f32 v[164:165], v[164:165], v[166:167]
        v_add_f32 v168, v168, v170
        v_pk_add_f32 v[164:165], v[164:165], v[168:169]
        v_add_f32 v164, v164, v165
        v_mov_b32 v165, v164
        v_permlane32_swap_b32 v164, v165
        v_add_f32 v164, v164, v165
        v_cvt_pk_bf16_f32 v48, v164, v164
        v_and_b32 v165, 0xffff0000, v48
        v_sub_f32 v165, v164, v165
        v_cvt_pk_bf16_f32 v48, v164, v165''')
        p1, p2 = s.fetch_check(hd, td, 47, 0, 4, 8)
        p1(); p2(); s.stamp(43)
        if s.stamps: s('v_writelane_b32 v3, s97, 63')
        hx, tx = s.fetch_issue([(4+j, L_XI + 28672, 4+j, 's8') for j in range(3)])
        s.feed(c.f_b4a, 63)
        later = []
        for r, x in ((12, 1), (15, 0)):
            later.append(f"""s_xor_b32 s69, s{sTB}, {x}
            s_mul_i32 s70, s69, 28
            s_add_u32 s70, s70, s{sCT}
            s_lshl_b32 s71, s70, 10
            s_add_u32 s{r}, s71, {GX}
            s_add_u32 s{r+1}, s71, {X1}
            s_lshl1_add_u32 s{r+2}, s71, {PX}
            s_lshl_b32 s69, s69, 5
            s_add_u32 s69, s69, s{sCT}
            s_lshl2_add_u32 s{18+x}, s69, {F7}""")
        later.append(f"""s_xor_b32 s72, s{sTB}, 1
        s_lshl_b32 s72, s72, 5
        s_lshr_b32 s74, s{sCT}, 2
        s_add_u32 s72, s72, s74
        s_lshl2_add_u32 s72, s72, {F7}
        s_bfe_u32 s74, s{sCT}, 0x10001
        s_mul_i32 s74, s74, {F7B - F7}
        s_add_u32 s72, s72, s74""")
        later.append(f"""s_mul_i32 s74, s{sTB}, 28
        s_lshr_b32 s22, s{sCT}, 2
        s_add_u32 s74, s74, s22
        s_lshl_b32 s74, s74, 10
        s_and_b32 s22, s{sCT}, 1
        s_lshl_b32 s71, s22, 21
        s_add_u32 s71, s71, s74
        s_add_u32 s71, s71, {GX}
        s_lshl_b32 s22, s22, 10
        s_lshl1_add_u32 s74, s74, s22
        s_add_u32 s74, s74, {PX}
        s_bitcmp1_b32 s{sCT}, 1
        s_cselect_b32 s74, s71, s74
        s_cselect_b32 s22, 7, 14
        s_lshl_b32 s22, s22, 10
        s_lshl1_add_u32 s75, s22, s74
        s_sub_u32 s22, s22, 1024
        v_lshrrev_b32 v28, 5, v{vL}
        v_mad_u32_u24 v5, v28, s22, v5
        s_mul_i32 s76, s{sTB}, {32*896}
        s_lshl_b32 s77, s{sCT}, 5
        s_add_u32 s76, s76, s77
        s_mov_b32 s{rX}, s{sOUT}
        s_mov_b32 s{rX+1}, s{sOUT+1}
        s_mov_b32 s{rX+2}, {2048*896}
        s_mov_b32 s{rX+3}, 0x20000""")
        AC, ST, A4 = (180, 164), (vST3, 160), ((112, 128), (180, 144))
        seq = []
        gp, gd = c.gp, c.gd
        for t, a, b in ((0, 0, gp), (1, 0, gd), (0, gp, 28), (1, gd, 28)): seq += [(vW3 + 4*k, AC[t], k == 0, (6, 28672*t + 1024*k)) for k in range(a, b)]
        use0 = lambda k: k if k < gp else k + gd
        e0 = 27 + gd
        for t in range(2):
            for j in range(2):
                prs = [(w, ctl) for w in range(7) for ctl in range(2)]
                if j == 1: prs = [(w, ctl ^ t) for ctl in range(2) for w in range(7)]
                seq += [((vW4A + 4*(2*w + ctl), vW4B + 4*(7*ctl + w))[j], A4[t][ctl], j == 0 and w == 0, (44, 14336*t + 1024*(2*w + j))) for w, ctl in prs]
        reads = []; ridx = []
        for n, e in enumerate(seq):
            if not reads or reads[-1][0] != e[3]: reads.append((e[3], n))
            ridx.append(len(reads) - 1)
        nb = 4
        rat = {}
        for r, (key, n) in enumerate(reads):
            free = max([m for m in range(112) if ridx[m] == r - nb], default=-1)
            rat[r] = max(free, n - c.pd)
        X = {i: [] for i in range(-1, 113)}
        def place(items, a, b):
            bu = c.burst
            for k, it in enumerate(items):
                p = a + (k * (b - a + 1)) // len(items)
                X[min(b, p + (bu - 1 - (p - a) % bu))].append(it)
        I = lambda t: (lambda: s(t))
        def gelu(t, h):
            acc, st, o, G = AC[t] + 8*h, ST[t], [], c.ggrp
            for j in range(0, 8, G):
                R = range(G); T = 24 + j
                o += [f'v_mul_f32 v{T+i}, v{acc+j+i}, v{acc+j+i}' for i in R]
                o += [f'v_fma_f32 v{T+i}, v{T+i}, v{st+1}, v{st+2}' for i in R]
                o += [f'v_mul_f32 v{T+i}, v{T+i}, v{acc+j+i}' for i in R]
                for i in R: o += [f'v_exp_f32 v{T+i}, v{T+i}', '']
                o += [f'v_fma_f32 v{T+i}, v{T+i}, v{st+3}, v{st+3}' for i in R]
                for i in R: o += [f'v_rcp_f32 v{T+i}, v{T+i}', '']
                o += [f'v_mul_f32 v{T+i}, v{T+i}, v{acc+j+i}' for i in R]
                o += [f'v_cvt_pk_bf16_f32 v{32+(j+i)//2}, v{T+i}, v{T+i+1}' for i in range(0, G, 2)]
            o.append(f'ds_write_b128 v7, v[32:35] offset:{14336*t + 1024*h}\nds_write_addtid_b32 v44 offset:{L_EV - 32768 + 2048*(2*t + h)}')
            return [I(x) for x in o]
        def sync(at, k, st):
            rdl = f'ds_read_b32 v4, v46 offset:{2048*k}'
            def chk():
                spin, back = s.lab('ls'), s.lab('lb')
                s(f's_cbranch_vccnz {spin}')
                s.label(back); s.stamp(st)
                s.ool.append(f'{spin}:\n    s_mov_b32 s97, 0\n{spin}a:\n    {rdl}\n    s_add_u32 s97, s97, 1\n    s_cmp_gt_u32 s97, {SPIN*8}\n    s_waitcnt lgkmcnt(0)\n    s_cbranch_scc1 {back}\n'
                             f'    v_cmp_eq_u32 vcc, 0, v4\n    s_nop 1\n    s_cbranch_vccz {back}\n    s_sleep 1\n    s_branch {spin}a\n')
            X[at - c.sd].append(I(rdl)); X[at].insert(0, I('v_cmp_eq_u32 vcc, 0, v4')); X[at].append(chk)
        hs = {}
        def blk(base, k): return f's{base + min(k ^ 2, 2)} offen offset:{1024 * (k == 1)}'
        def fin(t, ctl, h, pk, last=False):
            acc = A4[t][ctl] + 8*h
            def f():
                if t == 1:
                    un = A4[0][ctl] + 8*h
                    if last:
                        for i in range(0, 8, 2): s(f'v_pk_add_f32 {vr(acc+i,2)}, {vr(acc+i,2)}, {vr(un+i,2)}')
                    else:
                        for i in range(8): s(f'v_add_f32 v{acc+i}, v{acc+i}, v{un+i}')
                for i in range(4): s(f'v_cvt_pk_bf16_f32 v{pk+i}, v{acc+2*i}, v{acc+2*i+1}')
                s(f'v_or_b32 v{pk}, 1, v{pk}' if t else f'v_and_b32 v{pk}, -2, v{pk}')
                s.xstore([f'buffer_store_dwordx4 {vr(pk)}, v{vL16}, {sr(rWS)}, {blk(12 + 3*t, 2*ctl + h)}'])
                hs[t, ctl] = s.vm[-1][0]
            return f
        def stage1(ctl, at):
            fo = ctl * (F7B - F7)
            def flag():
                s(f'v_mov_b32 v45, s{sTAG}\ns_add_u32 s69, s18, {fo}')
                s.wait(hs[0, ctl]); s('s_mov_b64 exec, 1')
                s.xstore([f'buffer_store_dword v45, off, {sr(rWS)}, s69'])
                s('s_mov_b64 exec, -1')
            ld = [f'buffer_load_dwordx4 {vr(164 + 8*ctl + 4*h)}, v{vL16}, {sr(rWS)}, {blk(15, 2*ctl + h)} sc1' for h in range(2)]
            def fetch():
                if ctl == 0: s.poll_check(47, None, 's70'); s.stamp(45)
                for l in ld: s(l)
            def check():
                ck = ['v_or_b32 v4, v172, v176', 'v_and_b32 v4, 1, v4', 'v_cmp_eq_u32 vcc, 1, v4']
                retry, back = s.lab('sr'), s.lab('sb')
                for l in ck: s(l)
                s(f's_mov_b32 s97, 0\ns_cbranch_vccnz {retry}'); s.label(back); s.stamp(46)
                s.ool.append(f'{retry}:\n' + ''.join(f'    {l}\n' for l in ld) + f'    s_add_u32 s97, s97, 1\n    s_cmp_gt_u32 s97, {SPIN}\n    s_waitcnt vmcnt(0)\n    s_cbranch_scc1 {back}\n'
                             + ''.join(f'    {l}\n' for l in ck) + f'    s_nop 1\n    s_cbranch_vccnz {retry}\n    s_branch {back}\n')
            X[at[0]].append(fin(0, ctl, 0, 108)); X[at[1]].append(fin(0, ctl, 1, 196))
            X[at[2]].append(flag)
            if ctl == 0: X[at[3]].append(lambda: (s(f's_add_u32 s70, s19, {fo}'), s.poll_issue(47, None, 's70')))
            X[at[4]].append(fetch)
            if ctl == 1: X[at[5]].append(check)
            un = []
            for i in range(8): un += [f'v_lshlrev_b32 v{A4[0][ctl] + 2*i}, 16, v{164 + 8*ctl + i}', f'v_and_b32 v{A4[0][ctl] + 2*i + 1}, 0xffff0000, v{164 + 8*ctl + i}']
            place([I(x) for x in un], at[5], min(at[5] + 3, 111))
        bsave, c.burst = c.burst, 1
        ch = []
        for t in later:
            cur = []
            for l in t.split('\n'):
                if len(cur) >= 5 and 'cselect' not in l: ch.append('\n'.join(cur)); cur = []
                cur.append(l)
            ch.append('\n'.join(cur))
        assert not any(x.strip().split('\n')[-1].strip().startswith(('s_cmp', 's_bitcmp')) for x in ch)
        place([I(x) for x in ch], 8, 26)
        if s.wn < 56:
            w3e = c.w3e if c.w3e is not None else max(0, s.wn - 28 - 5)
            n3 = 56 - s.wn
            assert all((k * (w3e + 1)) // n3 < use0(s.wn - 28 + k) for k in range(n3)) and w3e < c.w4a[0]
            place([s.feed1] * n3, 0, w3e)
        if s.wn < 70: place([s.feed1] * (70 - max(s.wn, 56)), c.w4a[0], c.w4a[1])
        place([s.feed1] * 14, c.w4b[0], c.w4b[1])
        c.burst = bsave
        first = lambda n: rat[ridx[n]] - 1
        x1st = first(gp if gd else 28)
        assert c.x_at + 2 <= x1st - c.sd
        sync(x1st if gd else x1st - 3, 5, 49)
        sync(e0 - 3, 4, 23)
        X[e0 - 3].append(I(f'ds_read_b128 {vr(ST[0])}, v44 offset:{L_ST3 - L_HID}'))
        X[e0].append(I(f'v_mfma_f32_32x32x16_bf16 {vr(AC[0],16)}, v[48:51], {vr(ST[0])}, {vr(AC[0],16)}'))
        assert c.q[0] > e0
        q = c.q
        for k in range(4): place(gelu(k >> 1, k & 1), q[k], q[k+1] - 1)
        X[55].append(I(f'ds_read_b128 {vr(ST[1])}, v44 offset:{L_ST3 - L_HID + 1024}'))
        X[57].append(I(f'v_mfma_f32_32x32x16_bf16 {vr(AC[1],16)}, v[48:51], {vr(ST[1])}, {vr(AC[1],16)}'))
        for k in range(4):
            assert first(56 + 14*k) - c.sd >= q[k+1] - 1, (k, first(56 + 14*k))
            sync(first(56 + 14*k), k, (25, 26, 27, 41)[k])
        assert c.st0[4] >= q[3] and c.st1[4] >= q[4] and c.st1[5] > first(98) and c.st1[5] + 3 < 107 and c.st1[2] < c.fpoll
        stage1(0, c.st0); stage1(1, c.st1)
        X[107].append(fin(1, 1, 0, 108)); X[109].append(fin(1, 1, 1, 196)); X[112] += [fin(1, 0, 0, 24, c.lastpk), fin(1, 0, 1, 28, c.lastpk)]
        X[58].append(I(f'global_load_dwordx4 v[48:51], v{vL16}, s[94:95] offset:-1024'))
        X[q[4]].append(I(f'v_lshlrev_b32 v6, 3, v{vL}\nglobal_load_dwordx2 v[6:7], v6, s[94:95] offset:-1536'))
        X[c.fpoll].append(lambda: s.poll_issue(45, 7, 's72')); X[c.fpoll + c.fpd].append(lambda: s.poll_check(45, 7, 's72'))
        def rd(r): (va, off), _ = reads[r]; s(f'ds_read_b128 {vr(8+4*(r%nb))}, v{va} offset:{off}')
        p1, p2 = s.fetch_check(hx, tx, 47, 28672, 4, 24, f's_mov_b32 m0, s21')
        X[c.x_at].insert(0, p1); X[c.x_at + 2].append(lambda: (p2(), s(f'ds_write_addtid_b32 v44 offset:{L_EV - 32768 + 2048*5}')))
        s(f'v_and_b32 v46, 7, v{vL}\nv_mul_u32_u24 v46, 260, v46\nv_add_u32 v46, {L_EV}, v46\ns_lshl_b32 s21, s{sW}, 8\ns_add_u32 s21, s21, 32768\ns_mov_b32 m0, s21')
        s.pin(c.pins[3])
        s.barrier(); s.stamp(22)
        for r in range(len(reads)):
            if rat[r] < 0: rd(r)
        LS = [10, 26, 78, 80, 40, 42, 44, 46, 62, 64, 66, 88, 90, 92, 24]
        for n, (W, acc, fst, key) in enumerate(seq):
            if c.lst and n % 8 == 0: s.raw(f'    s_mem{"real" if c.lst == 2 else ""}time s[{LS[n//8]}:{LS[n//8]+1}]')
            s.fair(n, c.fm)
            s(f'v_mfma_f32_32x32x16_bf16 {vr(acc,16)}, {vr(W)}, {vr(8+4*(ridx[n]%nb))}, {0 if fst else vr(acc,16)}')
            for r in range(len(reads)):
                if rat[r] == n: rd(r)
            s.run(X[n])
        if c.lst: s.raw(f'    s_mem{"real" if c.lst == 2 else ""}time s[24:25]')
        s.run(X[112])
        if c.lst:
            s.wait_lg(0, force=True)
            for i, r in enumerate(LS): s(f'v_writelane_b32 v3, s{r}, {1 + i}')
        s.stamp(28)
        if c.dack[2]: s.wait_vm(0)
        s.stamp(29)
        ld = [f'buffer_load_dwordx4 {vr(52+8*u+4*t)}, v5, {sr(rWS)}, s{74+u} offen offset:{256*t} sc1' for u in range(2) for t in range(2)]
        ck = ['v_and_b32 v8, v52, v56', 'v_and_b32 v9, v60, v64', 'v_and_b32 v8, 1, v8', 'v_and_b32 v8, v8, v9', 'v_cmp_eq_u32 vcc, 0, v8']
        retry, back = s.lab('er'), s.lab('eb')
        for l in ld + ck: s(l)
        s(f's_mov_b32 s97, 0\ns_cbranch_vccnz {retry}'); s.label(back)
        s.ool.append(f'{retry}:\n' + ''.join(f'    {l}\n' for l in ld) + f'    s_add_u32 s97, s97, 1\n    s_cmp_gt_u32 s97, {SPIN}\n    s_waitcnt vmcnt(0)\n    s_cbranch_scc1 {back}\n'
                     + ''.join(f'    {l}\n' for l in ck) + f'    s_nop 1\n    s_cbranch_vccnz {retry}\n    s_branch {back}\n')
        s.stamp(30)
        for u in range(2):
            for t in range(2): s(f'v_mfma_f32_16x16x32_bf16 {vr(vRES+4*t)}, v[48:51], {vr(52+8*u+4*t)}, {vr(vRES+4*t)}')
        for i in range(4): s(f'v_cvt_pk_bf16_f32 v{20+i}, v{vRES+2*i}, v{vRES+1+2*i}')
        s('v_permlane16_swap_b32 v20, v22\nv_permlane16_swap_b32 v21, v23')
        s(f'buffer_store_dwordx4 v[20:23], v6, {sr(rX)}, s76 offen')
        s.stamp(31)

    def s_mfma(s, addrs, acc, kstride, base, nk=14):
        seq = [(ks, t) for ks in range(nk) for t in range(3)]
        nb = 8
        def rd(i): ks, t = seq[i]; s(f'ds_read_b128 {vr(52+4*(i%nb))}, v{addrs+t} offset:{base + ks*kstride}')
        s('s_mov_b32 exec_lo, 0x77777777\ns_mov_b32 exec_hi, 0x77777777')
        for i in range(nb - 1): rd(i)
        for i, (ks, t) in enumerate(seq):
            if i + nb - 1 < len(seq): rd(i + nb - 1)
            s(f'v_mfma_f32_16x16x32_bf16 {vr(acc+4*t)}, {vr(52+4*(i%nb))}, {vr(52+4*(i%nb))}, {vr(acc+4*t) if ks else 0}')
    def s_wave(s, hst):
        s.comment('S wave: statistics, polling, DMA')
        s.pin(s.cfg.pins[4])
        s('s_setprio 2')
        s(f'''s_and_b32 s70, s2, 0xc7
        s_lshl_b32 s70, s70, 4
        s_mul_i32 s71, s{sXCD}, {FCP}
        s_add_u32 s70, s70, s71
        s_add_u32 s70, s70, {FA}
        v_and_b32 v44, 7, v{vL}
        v_lshlrev_b32 v44, 7, v44
        buffer_load_dword v48, v44, {sr(rWS)}, s70 offen sc1''')
        def ftouch():
            s(f'''s_lshl_b32 s72, s{sTB}, 7
            s_add_u32 s72, s72, {F5}
            s_lshl2_add_u32 s4, s{sTB}, s{sQ}
            s_lshl_b32 s4, s4, 9
            s_add_u32 s4, s4, {ST1}
            s_mov_b32 m0, {L_JUNK}
            v_min_u32 v45, 2, v{vL}
            v_lshlrev_b32 v45, 13, v45
            v_and_b32 v47, 0x180, v7
            buffer_load_dword v45, {sr(rWS)}, s72 offen sc1 lds
            buffer_load_dword v47, {sr(rWS)}, s4 offen sc1 lds''')
            if s.cfg.etouch:
                s(f's_mul_i32 s70, s{sTB}, 28\ns_add_u32 s70, s70, s{sCT}\ns_lshl_b32 s70, s70, 11\ns_add_u32 s70, s70, {PX - 7*2048}\ns_add_u32 s71, s70, 7168\ns_mov_b32 exec_hi, 0x00ffffff')
                s(f'buffer_load_dword v7, {sr(rWS)}, s70 offen sc1 lds\nbuffer_load_dword v7, {sr(rWS)}, s71 offen sc1 lds\ns_mov_b32 exec_hi, -1')
        def setup():
            for i in range(32): s(f'v_mov_b32 v{52+i}, 0x3f803f80')
            s(f'''v_and_b32 v44, 3, v{vL}
        v_bfe_u32 v45, v{vL}, 2, 2
        v_mad_u32_u24 v40, v45, 3, v44
        v_lshrrev_b32 v41, 4, v{vL}''')
            for t in range(3):
                s(f'v_add_u32 v46, {12*t}, v40')
                s.pos(84 + t, 46, 47)
                s(f'v_mul_u32_u24 v47, 768, v41\nv_add_u32 v{84+t}, v{84+t}, v47\nv_add_u32 v{84+t}, {L_HI}, v{84+t}')
            s(f'''v_sub_u32 v45, v45, v41
        v_and_b32 v45, 3, v45
        v_cmp_eq_u32 s[78:79], 1, v45
        v_cmp_eq_u32 s[80:81], 2, v45
        v_mad_u32_u24 v40, v41, 3, v44
        v_mad_u32_u24 v40, v45, 12, v40
        v_lshlrev_b32 v42, 4, v40
        v_add_u32 v42, {L_STA}, v42
        v_lshlrev_b32 v43, 3, v40
        v_add_u32 v43, {L_STB}, v43
        v_lshlrev_b32 v6, 2, v{vL}
        v_lshlrev_b32 v7, 7, v{vL}
        v_cmp_ne_u32 vcc, s{sTX}, v48
        v_mov_b32 v46, {L_FAST}
        s_cmp_eq_u64 vcc, 0
        s_cselect_b32 s{sFAST}, 1, 0
        v_mov_b32 v45, s{sFAST}
        ds_write_b32 v46, v45
        v_and_b32 v38, 7, v{vL}
        v_mul_u32_u24 v38, 260, v38
        v_add_u32 v38, {L_EV}, v38
        v_lshlrev_b32 v46, 8, v{vL}
        v_and_b32 v46, 0x3800, v46
        v_add_u32 v46, v46, v38
        s_mov_b32 vcc_lo, 0x80800080
        s_mov_b32 vcc_hi, 0x8000807f
        v_cndmask_b32 v45, 0, v38, vcc
        ds_write_b32 v46, v45''')
        if not s.cfg.searly: setup()
        s(f'''s_and_b32 s70, s{sQ}, 1
        s_mul_i32 s71, s70, 9
        s_lshl3_add_u32 s71, s{sTB}, s71
        s_sub_u32 s71, s71, 1
        s_max_i32 s71, s71, 0
        s_min_i32 s71, s71, 511
        s_lshr_b32 s88, s71, 3
        s_mul_i32 s88, s88, 28672
        s_and_b32 s71, s71, 7
        s_lshl4_add_u32 s88, s71, s88
        s_add_u32 s88, s88, {X1}
        s_mul_i32 s70, s70, 384
        s_add_u32 s70, s70, {L_HI + 128}
        v_min_u32 v5, 55, v{vL}
        v_lshlrev_b32 v4, 9, v5
        v_mul_u32_u24 v5, 768, v5
        v_add_u32 v5, s70, v5''')
        s.wait(hst); s.hint_wait()
        s.stamp(13)
        s.h2(ftouch, setup if s.cfg.searly else (lambda: None), halo=True)
        s(f'v_cmp_eq_u32 s[92:93], 1, v44\nv_cmp_eq_u32 s[94:95], 2, v44\ns_mov_b32 s96, {INVD}\nv_mov_b32 v49, {fh(1 + 1e-5)}')
        s(f'''s_lshl2_add_u32 s70, s{sTB}, s{sQ}
        s_lshl_b32 s71, s70, 4
        s_add_u32 s71, s71, {FN}
        v_and_b32 v45, 1, v{vL}
        v_lshlrev_b32 v45, 3, v45
        v_sub_u32 v45, v44, v45
        s_lshl2_add_u32 s72, s{sTB}, 4
        v_add_u32 v45, s72, v45
        v_mov_b32 v47, s70
        v_cmp_gt_u32 vcc, 0x100, v45
        v_mov_b32 v36, s{sTAG}
        s_mov_b32 s72, {FN}
        v_cndmask_b32 v45, v47, v45, vcc
        s_xor_b32 s70, s70, 4
        v_writelane_b32 v45, s70, 4
        v_lshlrev_b32 v37, 4, v45''')
        s.barrier(); s.stamp(15)
        s(f's_mov_b64 exec, 1\nbuffer_store_dword v36, off, {sr(rWS)}, s71 sc1')
        s.s_mfma(84, 24, 3072, 0)
        s.stamp(39)
        s.stats_tail(24, 43, 42, 0)
        if s.cfg.evp: s.wait_lg(0)
        if s.cfg.evb2: s(f's_mov_b64 exec, 0x80\nds_write_b32 v38, v38 offset:{6*2048}\ns_mov_b64 exec, -1')
        else: s('s_mov_b64 exec, -1'); s.barrier()
        s.stamp(16)
        s.poll(4, 37, 's72', 31, 0, sleep=4)
        def lwait(k):
            l, l2, l3 = s.lab('tw'), s.lab('tx'), s.lab('ty')
            s(f's_mov_b32 s97, 0\ns_branch {l2}'); s.label(l); s(f's_sleep 1\ns_add_u32 s97, s97, 1\ns_cmp_gt_u32 s97, {SPIN*8}\ns_cbranch_scc1 {l3}'); s.label(l2)
            s(f'ds_read_b32 v4, v38 offset:{2048*k}\nv_cmp_eq_u32 vcc, 0, v4\ns_cbranch_vccnz {l}'); s.label(l3)
        post = lambda k: s(f's_mov_b64 exec, 0x80\nds_write_b32 v38, v38 offset:{2048*k}\ns_mov_b64 exec, -1')
        def touch():
            s(f'''s_mul_i32 s70, s{sTB}, 28
            s_mul_i32 s71, s{sQ}, 7
            s_add_u32 s70, s70, s71
            s_lshl_b32 s71, s70, 10
            s_add_u32 s71, s71, {GX}
            s_add_u32 s69, s71, {X1 - GX}
            s_lshl_b32 s70, s70, 11
            s_add_u32 s70, s70, {PX}
            s_mov_b32 m0, {L_JUNK}
            s_mov_b32 exec_hi, 0x00ffffff''')
            rf = f'buffer_load_dword v7, {sr(rWS)}, s71 offen sc1 lds\nbuffer_load_dword v7, {sr(rWS)}, s69 offen sc1 lds'
            if s.cfg.refresh == 1: s(rf)
            for i in range(2):
                k = (s.cfg.touch_at, s.cfg.touch2)[i]
                if k < 4: lwait(k)
                s(f'buffer_load_dword v7, {sr(rWS)}, s70 offen sc1 lds\ns_add_u32 s70, s70, 7168')
            if s.cfg.refresh == 2: s(rf)
            s('s_mov_b32 exec_hi, -1')
        s(f"""v_lshlrev_b32 v39, 3, v{vL}
        v_add_u32 v39, {L_PS}, v39
        v_and_b32 v40, 0x1f0, v{vL16}
        v_lshrrev_b32 v41, 5, v{vL}
        v_lshl_add_u32 v42, v41, 10, v40
        v_add_u32 v42, {L_ST3}, v42
        v_xor_b32 v41, s{sTB}, v41
        v_xor_b32 v41, 1, v41
        v_lshl_add_u32 v40, v41, 11, v40
        v_mov_b32 v10, s{sTAG}
        v_mov_b32 v11, s{sTAG}
        s_mov_b32 s5, {ST1}""")
        for i in range(1 + s.cfg.bar_a): s('s_barrier')
        lwait(7)
        for i in range(7): s(f'ds_read_b64 {vr(12+2*i,2)}, v39 offset:{512*i}')
        for h in range(2): s(f'v_add_f32 v{12+h}, v{12+h}, v{14+h}\nv_add_f32 v{16+h}, v{16+h}, v{18+h}')
        for h in range(2): s(f'v_add_f32 v{20+h}, v{20+h}, v{22+h}\nv_add_f32 v{12+h}, v{12+h}, v{16+h}')
        for h in range(2): s(f'v_add_f32 v{20+h}, v{20+h}, v{24+h}')
        for h in range(2): s(f'v_add_f32 v{8+h}, v{12+h}, v{20+h}\nv_add_f32 v{12+h}, v{12+h}, v{20+h}')
        for h in range(2): s(f'v_permlane32_swap_b32 v{8+h}, v{12+h}')
        for h in range(2): s(f'v_add_f32 v{8+h}, v{8+h}, v{12+h}')
        s('s_mov_b32 exec_hi, 0')
        s.xstore([f'buffer_store_dwordx4 v[8:11], v{vL16}, {sr(rWS)}, s4 offen'])
        s('s_mov_b32 exec_hi, -1\ns_barrier')
        s.stamp(22)
        ld = [f'buffer_load_dwordx4 {vr(52+4*j)}, v40, {sr(rWS)}, s5 offen offset:{512*j} sc1' for j in range(4)]
        ck = [f'v_xor_b32 v{54+4*j}, s{sTAG}, v{54+4*j}' for j in range(4)] + ['v_or3_b32 v54, v54, v58, v62', 'v_or_b32 v54, v54, v66', 'v_cmp_ne_u32 vcc, 0, v54']
        retry, back = s.lab('xr'), s.lab('xb')
        for l in ld + ck: s(l)
        s(f's_mov_b32 s97, 0\ns_cbranch_vccnz {retry}'); s.label(back)
        s.ool.append(f'{retry}:\n' + ''.join(f'    {l}\n' for l in ld) + f'    s_add_u32 s97, s97, 1\n    s_cmp_gt_u32 s97, {SPIN}\n    s_waitcnt vmcnt(0)\n    s_cbranch_scc1 {back}\n'
                     + ''.join(f'    {l}\n' for l in ck) + f'    s_nop 1\n    s_cbranch_vccnz {retry}\n    s_branch {back}\n')
        for h in range(2): s(f'v_add_f32 v{52+h}, v{52+h}, v{56+h}\nv_add_f32 v{60+h}, v{60+h}, v{64+h}')
        s('v_add_f32 v27, v52, v60\nv_add_f32 v24, v53, v61')
        s.stats_tail(24, None, 42, 0)
        s.wait_lg(0); post(4)
        s.stamp(23)
        lwait(5)
        s(f's_lshl_b32 s72, s{sCL}, 8\ns_add_u32 s72, s72, {F5 + 28}\ns_lshl_b32 s73, s{sM}, 5\ns_add_u32 s73, s73, s72\nv_lshlrev_b32 v37, 5, v{vL}')
        s.flag(73)
        s.poll(4, 37, 's72', '0xff', 0, sleep=2)
        post(1)
        def heat(n):
            s('s_setprio 0')
            for i in range(n):
                s(f'v_mfma_f32_32x32x16_bf16 v[100:115], {vr(52+4*(i%8))}, {vr(52+4*((i+3)%8))}, {"v[100:115]" if i % 8 else 0}')
                if s.cfg.x_heat[1]: s(f's_nop {s.cfg.x_heat[1] - 1}')
        if s.cfg.x_heat: heat(s.cfg.x_heat[0])
        s.stamp(25)
        if s.cfg.touch_at != 5: touch()
        if s.cfg.x_heat: heat(s.cfg.x_heat[0])
        s.cond('s_cmp_lg_u32 s2, 0', lambda: s(f'v_mov_b32 v4, s{sTAG}\ns_mov_b32 s70, {EP}\ns_mov_b64 exec, 1\nbuffer_store_dword v4, off, {sr(rWS)}, s70 sc1\ns_mov_b64 exec, -1'))
        s.wait_vm(0); s.stamp(28)

def build(stamps=False, cfg=None):
    s = K(stamps, cfg or Cfg())
    c = s.cfg
    s.entry(); s.setup(); s(s.scalars())
    if c.dma_at == -1: s(f's_cmp_lt_u32 s43, 2\ns_cmov_b32 s{rW+2}, {448*896}'); s.pack_dma()
    if c.sb_at == 0: s.setup_b()
    s.stamp(34); s.ln()
    s(f's_cmp_ge_u32 s{sI}, 28'); s.flush_hazards(); s('s_cbranch_scc1 Lnonconv')
    st = s.state()
    if c.clr_at is None: s.clear()
    if c.sb_at == 1: s.setup_b()
    s.stamp(33)
    if c.dma_at == 0: s.pack_dma()
    if c.fa_at == -1: s.publish_a()
    s.kgen(); hst = s.conv()
    s.label('Ljoin')
    s(f'v_mov_b32 v4, v21\nv_mov_b32 v5, v22\ns_cmp_eq_u32 s{sW}, 7'); s.flush_hazards(); s('s_cbranch_scc1 Lsw')
    st2 = s.state()
    s.g_wave(hst); s.dump_stamps(); s('s_endpgm')
    s.label('Lsw'); s.set_state(st2)
    s.s_wave(hst); s.dump_stamps()
    s.label('Lend'); s('s_endpgm')
    s.label('Lnonconv'); s.set_state(st); s.wn = 0
    s.nonconv(); s.flush_hazards(); s('s_branch Ljoin')
    name = NAME + '_kernel'
    txt = f'''; @launch grid=(256,1,1) block=(512,1,1) lds={LDS_BYTES}
.amdgcn_target "amdgcn-amd-amdhsa--gfx950"
.text
.globl {name}
.p2align 8
.type {name},@function
{name}:
''' + s.text() + ''.join(s.ool) + tap_table() + f'''.section .rodata,"a"
.p2align 6
.amdhsa_kernel {name}
  .amdhsa_next_free_vgpr 256
  .amdhsa_next_free_sgpr 102
  .amdhsa_accum_offset 256
  .amdhsa_group_segment_fixed_size 0
  .amdhsa_kernarg_size 120
  .amdhsa_user_sgpr_count 2
  .amdhsa_user_sgpr_kernarg_segment_ptr 1
  .amdhsa_system_sgpr_workgroup_id_x 1
.end_amdhsa_kernel
'''
    size, syms = code_info(txt.replace('@CODE_BYTES@', '1000').replace('@TAB_OFF@', '1000'))
    return txt.replace('@CODE_BYTES@', str(syms['tap_table'] + 2048 + 4224 - syms['Lpc'] - 4)).replace('@TAB_OFF@', str(syms['tap_table'] - syms['Lpc']))
def tap_table():
    RB = {8: 0, 4: 16, 2: 24, 6: 28, 1: 32, 3: 34, 5: 36, 7: 38}
    def rnd(l):
        sh = max(0, l.bit_length() - 8)
        if not sh: return l
        q, r = l >> sh, l & ((1 << sh) - 1); half = 1 << (sh - 1)
        return (q + (r > half or (r == half and q & 1))) << sh
    v = []
    for i in range(2056):
        l = 2047 - i
        if l < 0: e = 768
        elif l == 0: e = 640
        else: p = rnd(l); e = RB[((p - 1) & 7) + 1] * 16 + ((p - 1) >> 3)
        v.append(e * 16)
    v += [0] * 56
    lane = []
    for l in range(64):
        n, g = l & 15, l >> 4; tb = 2*n + (g >> 1); rr, cc = (l >> 2) & 3, l & 3
        bb = lambda c_: 32*c_ + 16*((c_ >> 3) & 1)
        lane.append([4*(4*g - (n >> 1)) + 28 + KEO*(1 - (n & 1)), bb(30 + 2*n + g), bb(26 + 2*n + g), (l >> 1)*896 + 16*((l ^ g) & 1),
                     tb*64 + (g & 1)*32, (n >> 1)*1792 + 4*(n & 1) + g, bb(tb) + 8*(g & 1), (g*64 + n)*16 + 4*((l >> 3) & 3),
                     n*KGP + 16*g, (8*g + rr)*64 + cc*8, (8*(g >> 1) + rr)*64 + (g & 1)*32 + (cc & 1)*16 + (cc >> 1)*8,
                     (l >> 2)*896 + cc*16, (l >> 2)*3584 + cc*16, rr*LNP + 32*g + 8*cc, rr*KEO + 16*(l & 1), 14*min(l & 31, 27)])
    pk = []
    for b in range(256):
        for w in range(8):
            U = 256*w + 32*(b & 7) + (b >> 3)
            if U < 392: m, V = divmod(U, 196); kb, cb = divmod(V, 14); src = kb*32*896; d0 = 392*m + 28*cb + kb; d1 = d0 + 14
            elif U < 1176: m = 2; kb, cb = divmod(U - 392, 56); src = kb*32*3584; d0 = 784 + 28*cb + 2*kb; d1 = d0 + 1
            elif U < 1960: m = 3; kb, cb = divmod(U - 1176, 14); src = kb*32*896; d1 = 2352 + ((kb//7)*7 + (cb >> 1))*28; d0 = d1 + 2*(kb % 7) + (cb & 1); d1 += 14 + 7*(cb & 1) + kb % 7
            else: m, cb, src, d0, d1 = 4, 0, 0, 0, 0
            pk += [(m << 24) | (src + 64*cb), d0 | (d1 << 16)]
    t = '.p2align 7\n.type tail_table,@object\ntail_table:\n'
    for l in range(64): t += f'.long {(l & 31)*896 + (l >> 5)*16}, {(l & 3)*28}\n'
    for l in range(64): t += '.short ' + ', '.join('0x3f80' if (l & 15) == 8*((l >> 4) & 1) + j else '0' for j in range(8)) + '\n'
    t += '.size tail_table, 1536\n.type tap_table,@object\ntap_table:\n'
    for h in range(2):
        for l in range(64): t += '.short ' + ', '.join(map(str, lane[l][8*h:8*h+8])) + '\n'
    for i in range(0, 2112, 8): t += '.short ' + ', '.join(map(str, v[i:i+8])) + '\n'
    for i in range(0, 4096, 8): t += '.long ' + ', '.join(map(str, pk[i:i+8])) + '\n'
    return t + f'.size tap_table, {2048 + 4224 + 16384}\n'
def code_info(txt):
    import subprocess, tempfile, re
    with tempfile.TemporaryDirectory() as d:
        open(d + '/a.s', 'w').write(txt)
        subprocess.run(['clang', '-x', 'assembler', '-target', 'amdgcn-amd-amdhsa', '-mcpu=gfx950', '-c', d + '/a.s', '-o', d + '/a.o'], check=True)
        o = subprocess.run(['llvm-readelf', '-S', '-s', d + '/a.o'], capture_output=True, text=True).stdout
        size = int(re.search(r'\.text\s+PROGBITS\s+\S+\s+\S+\s+(\S+)', o).group(1), 16)
        return size, {m.group(2): int(m.group(1), 16) for m in re.finditer(r'\d+: ([0-9a-f]{16}) .* (\S+)\n', o)}
if __name__ == '__main__':
    sys.stdout.write(build(stamps=len(sys.argv) > 1))
```

```python
import sys, os, struct
sys.path.insert(0, os.path.dirname(os.path.abspath(__file__)))
from dsl import Asm, Ins

NAME = 'sequential_preLN__ssm_conv_s4d__mixer_s_mlp__prompt'
W1P, W2P, W3P, W4P = 0, 392 * 1024, 784 * 1024, 2352 * 1024
SM, CSP, ST1 = 0x600000, 0x700000, 0x780000
GX, X1, PX = 0xA00000, 0xC00000, 0x1000000
FL = 0x2000000
F3, F4, F5, F7, F7B = FL, FL + 0x2000, FL + 0x4000, FL + 0x6000, FL + 0x8000
FH, FN, EP, FA, FB = FL + 0x1A000, FL + 0x1E000, FL + 0x20000, FL + 0x30000, FL + 0x40000
FC = FL + 0x50000
FCP = 4352
TS = 0x3000000
WS_BYTES = 0x4000000
L_LN, LNP = 0, 960
L_PK = 119296
L_KG, KGP = 31744, 288
L_Y = 0
L_KT, KTSZ = 68608, 12320
L_KE, KEO, KECH = 93312, 4160, 8320
L_U = 110080
L_SM = 8 * LNP
L_HI, L_GI, L_XI, L_HID, L_ST = 106880, 0, 28672, 106880, 149888
L_STA, L_STB, L_FAST, L_JUNK, L_ST3 = L_ST, L_ST + 768, L_ST + 1152, L_ST + 1280, L_ST + 1536
L_PS = 102400
L_EV = 86016
LDS_BYTES = 153600
LOG2E, INV2PI, EPS, INVD = 0x3fb8aa3b, 0x3e22f983, 0x3727c5ac, 0x3b124925
C1 = -2.0 * 0.7978845608028654 * 1.4426950408889634
def fh(x): return '0x%08x' % struct.unpack('<I', struct.pack('<f', x))[0]
SPIN = 1 << 18
sX, sLA, sAI, sCR, sCI, sDT, sDS = 4, 6, 8, 10, 12, 14, 16
sW1, sW2, sW3, sW4, sOUT, sWS = 20, 22, 24, 26, 28, 30
rWS, rX, rD, rW, rG = 32, 36, 40, 44, 48
sW, sXCD, sI, sP, sTAG, sTB, sQ, sCL, sM, sFAST = range(52, 62)
sPD0, sPD1, sUO, sSM, sFO, sPACT = range(62, 68)
sUS, sKG, sHD, sUM = 74, 75, 76, 77
sLDT, sD0, sD1 = 40, 41, 42
sM0, sM1, sCT, sTX = 78, 80, 82, 83
sA1, sA2, sA3, sA4 = 84, 85, 86, 87
def sr(n, k=4): return f's[{n}:{n+k-1}]'
def vr(n, k=4): return f'v[{n}:{n+k-1}]'
vL16, vL = 1, 2
vW1, vW2, vW3, vW4A, vW4B = 144, 200, 52, 200, 52
vCS3, vAC3, vST3, vRES = 164, 180, 196, 36

class Cfg:
    f_kt = 3
    fa_at, dma_at, poll_at, chk_at, pst_at, fa_sleep = 1, 5, 4, 7, 8, 1
    fslot = 2
    u_at, uchk_at, pslot = 2, 7, 24
    rsplit = 8
    f_conv = 15
    f_hst = 15
    f_hld = 15
    f_hok = 24
    f_g1 = 35
    f_gel = 0
    x_dp, g2span = 0, 14
    f_gfl = 0
    f_b3a = 0
    f_g2 = 43
    f_xfl = 0
    f_b4a = 45
    two = 0
    tab = 0
    xbar = 0
    fb_at = 0
    x_nof = 99
    prio = 0
    bar_a, x_at = 0, 3
    ggrp, burst, pd, sd = 8, 1, 3, 2
    q = (33, 47, 60, 73, 86)
    st0, st1, lastpk = (79, 80, 89, 94, 100, 108), (86, 87, 96, 0, 95, 103), 1
    w4a, w4b = (17, 44), (45, 68)
    nc_depth, hint_at, fblate = 16, 72, 0
    depth = 4
    touch_at = 1
    warm = 1
    x_mark = None
    gaft, nb1, nb2 = 0, 4, 4
    x_heat = None
    x_pad = None
    pal, pins = 3, (None,) * 5
    gsc = 1
    evb2, searly, evp, evc = 1, 1, 1, 0
    fpd = 8
    hfeed = 1
    dack, fpoll, cs_at, f_gok = (1, 1, 1), 103, 2, 37
    etouch, touch2 = 0, 4
    x_ns = x_nc = 0
    gp, gd, w3e = 17, 4, 16
    hack, hdel, hmask = 1, 0, 0
    upf = 0
    ktm = 2
    kbar = 0
    lst2, lregs = (), (4, 6, 8, 10, 12, 14, 16, 18, 20, 22, 24, 26, 36, 38, 98)
    fm, fc, fg = 4, 0, 0
    lst = 0
    sb_at, clr_at, cslot = 1, None, 40
    cil, chead, cpace, clead, cy0, cyp = 0, 9, 1.0, 5, 42, 4
    rts = 0
    refresh = 0
    tdepth = 1
    cpf = 1
    x_late = 0

def zipl(*streams):
    out = []; n = max(len(x) for x in streams)
    for i in range(n):
        for x in streams:
            if i < len(x): out.append(x[i])
    return out

class K(Asm):
    def __init__(s, stamps, cfg):
        super().__init__(); s.stamps = stamps; s.cfg = cfg; s.ool = []; s.nlab = 0; s.wn = 0
    def lab(s, p): s.nlab += 1; return f'L{p}{s.nlab}'
    def srd(s, r, ptr, size):
        s(f's_mov_b32 s{r}, s{ptr}\ns_mov_b32 s{r+1}, s{ptr+1}\ns_mov_b32 s{r+2}, {size}\ns_mov_b32 s{r+3}, 0x20000')
    def stamp(s, idx, real=False):
        if s.cfg.x_mark == idx + getattr(s, 'nc', 0): s.raw('    s_memrealtime s[98:99]')
        if s.cfg.x_mark is not None and idx == 31: s.wait_lg(0, force=True); s.raw('    s_mov_b32 s101, s98')
        if s.cfg.x_pad and idx == s.cfg.x_pad[0]:
            l = s.lab('pad'); s.wait_lg(0); s.label(l)
            s.raw(f'    s_memrealtime s[98:99]\n    s_waitcnt lgkmcnt(0)\n    s_sub_u32 s98, s98, s101\n    s_cmp_lt_u32 s98, {s.cfg.x_pad[1]*100}\n    s_cbranch_scc1 {l}')
        if idx in s.cfg.lst2:
            r = s.cfg.lregs[list(s.cfg.lst2).index(idx)]
            s.raw(f'    s_memtime s[{r}:{r+1}]')
            if idx == s.cfg.lst2[-1]:
                s.wait_lg(0, force=True)
                for i, k in enumerate(s.cfg.lst2): s(f'v_writelane_b32 v3, s{s.cfg.lregs[i]}, {k}')
            return
        if not s.stamps or (s.stamps is not True and idx not in (31, 61) and (s.stamps == 'span' or idx not in s.stamps)): return
        s(f's_mem{"real" if real else ""}time s[98:99]'); s.wait_lg(0)
        s(f'v_writelane_b32 v3, s98, {idx}')
        rt = {3: 50, 10: 51, 11: 52, 15: 53, 22: 54, 25: 55, 28: 56}
        if s.cfg.rts and idx in rt:
            s('s_memrealtime s[98:99]'); s.wait_lg(0); s(f'v_writelane_b32 v3, s98, {rt[idx]}')
    def dump_stamps(s):
        if not s.stamps: return
        s.stamp(61, True)
        s(f's_lshl_b32 s98, s2, 3\ns_add_u32 s98, s98, s{sW}\ns_lshl_b32 s98, s98, 8\ns_add_u32 s98, s98, {TS}')
        s(f'v_lshlrev_b32 v4, 2, v{vL}\nbuffer_store_dword v3, v4, {sr(rWS)}, s98 offen')
    def cond(s, cmp_skip, body, drain=True, flush=True):
        l = s.lab('c')
        s(cmp_skip)
        if flush: s.flush_hazards()
        s(f's_cbranch_scc1 {l}')
        vm, lg, hist = list(s.vm), list(s.lg), list(s.hist)
        body()
        if drain: s._wait(lg=0)
        if flush: s.flush_hazards()
        else: s.hist = hist
        s.label(l)
        s.vm, s.lg = vm, lg
    def xstore(s, lines):
        slow, back = s.lab('xs'), s.lab('xb')
        s(f's_cmp_eq_u32 s{sFAST}, 0')
        for l in lines:
            ins = Ins(l); t = ins.rd | ins.wr
            hs = [x[0] for x in s.vm if x[1] & t] + [x[0] for x in s.lg if x[1] & t]
            if hs: s.wait(*hs)
        s(f's_cbranch_scc1 {slow}')
        for l in lines: s(l)
        s.label(back)
        s.ool.append(f'{slow}:\n    s_nop 7\n    s_nop 3\n' + ''.join(f'    {l} sc1\n' for l in lines) + f'    s_branch {back}\n')
    def feed1(s):
        n = s.wn; s.wn += 1
        if n >= s.cfg.x_nof: return
        if n < 14: reg, sb, i = vW1 + 4*n, sA1, n
        elif n < 28: reg, sb, i = vW2 + 4*(n-14), sA2, n - 14
        elif n < 56: reg, sb, i = vW3 + 4*(n-28), sA3, n - 28
        elif n < 70: reg, sb, i = vW4A + 4*(n-56), sA4, n - 56
        else: reg, sb, i = vW4B + 4*(n-70), sA4, n - 56
        if i % 4 == 0 and i: s(f's_add_u32 s{sb}, s{sb}, 4096')
        s(f'buffer_load_dwordx4 {vr(reg)}, v{vL16}, {sr(rG)}, s{sb} offen offset:{(i % 4) * 1024}')
    def feed(s, upto, depth=None):
        depth = depth or s.cfg.depth
        while s.wn < upto:
            s.wait_vm(depth - 1); s.feed1()
    def spread(s, upto, slots, first=0):
        n = max(0, upto - s.wn); out = [lambda: None] * slots
        pos = [first + (k * (slots - first)) // n for k in range(n)] if n else []
        for p in set(pos):
            out[p] = (lambda c=pos.count(p): [s.feed1() for _ in range(c)])
        return out
    def pin(s, k):
        if k is None: return
        s.raw(f'    .p2align {s.cfg.pal}')
        for i in range(k): s('s_nop 0')
    def fair(s, n, k):
        if k and n % k == 0: s('s_setprio 1')
        if k and n % k == k - 1: s('s_setprio 0')
    def run(s, l):
        for f in l: f()
    def pl(s, vdst, vaddr, soff): return f'buffer_load_dword v{vdst}, v{vaddr}, {sr(rWS)}, {soff} offen sc1' if vaddr is not None else f'buffer_load_dword v{vdst}, off, {sr(rWS)}, {soff} sc1'
    def poll_issue(s, vdst, vaddr, soff): return s(s.pl(vdst, vaddr, soff))
    def poll_check(s, vdst, vaddr, soff, sleep=0):
        retry, back = s.lab('pr'), s.lab('pb')
        s(f'v_subrev_u32 v{vdst}, s{sTAG}, v{vdst}\nv_cmp_lt_u32 vcc, 15, v{vdst}\ns_mov_b32 s97, 0\ns_cbranch_vccnz {retry}')
        s.label(back)
        s.ool.append(f'''{retry}:
''' + (f'    s_sleep {sleep}\n' if sleep else '') + f'''    {s.pl(vdst, vaddr, soff)}
    s_add_u32 s97, s97, 1
    s_cmp_gt_u32 s97, {SPIN}
    s_waitcnt vmcnt(0)
    s_cbranch_scc1 {back}
    v_subrev_u32 v{vdst}, s{sTAG}, v{vdst}
    v_cmp_lt_u32 vcc, 15, v{vdst}
    s_nop 1
    s_cbranch_vccnz {retry}
    s_branch {back}
''')
    def poll(s, vdst, vaddr, soff, lo=None, hi=None, sleep=0):
        if lo is not None: s(f's_mov_b32 exec_lo, {lo}\ns_mov_b32 exec_hi, {hi}')
        s.poll_issue(vdst, vaddr, soff); s.poll_check(vdst, vaddr, soff, sleep)
        if lo is not None: s('s_mov_b64 exec, -1')
    def flag(s, soff, vtmp=4):
        s(f'v_mov_b32 v{vtmp}, s{sTAG}')
        s.wait_vm(0, force=True)
        s('s_mov_b64 exec, 1')
        s.xstore([f'buffer_store_dword v{vtmp}, off, {sr(rWS)}, s{soff}'])
        s('s_mov_b64 exec, -1')
    def gflag(s, wave, soff, sval, vtmp, drain=False, flush=True):
        s.cond(f's_cmp_lg_u32 s{sW}, {wave}', drain=drain, flush=flush, body=lambda: s(f'v_mov_b32 v{vtmp}, s{sval}\ns_mov_b64 exec, 1\nbuffer_store_dword v{vtmp}, off, {sr(rWS)}, s{soff} sc1\ns_mov_b64 exec, -1'))
    def gflag8(s, wave, soff, sval, vtmp, flush=True):
        s.cond(f's_cmp_lg_u32 s{sW}, {wave}', drain=False, flush=flush, body=lambda: s(f'v_mov_b32 v{vtmp}, s{sval}\nv_mul_u32_u24 v{vtmp+1}, {FCP}, v{vL}\ns_mov_b64 exec, 0xff\nbuffer_store_dword v{vtmp}, v{vtmp+1}, {sr(rWS)}, s{soff} offen sc1\ns_mov_b64 exec, -1'))
    def dma(s, a, b, ssrc, ldsbase):
        h = None
        for i in range(a, b):
            if i % 4 == 0:
                if i: s(f's_add_u32 s{ssrc}, s{ssrc}, 4096')
                s(f's_mov_b32 m0, {ldsbase + i * 1024}')
            h = s(f'buffer_load_dwordx4 v{vL16}, {sr(rWS)}, s{ssrc} offen offset:{(i % 4) * 1024} sc1 lds')
        return h
    def fetch_issue(s, blocks):
        t = ''.join(f's_add_u32 m0, s{a}, {b}\ns_add_u32 s68, s{c_}, {d}\nbuffer_load_dwordx4 v{vL16}, {sr(rWS)}, s68 offen sc1 lds\n' for a, b, c_, d in blocks)
        return s(t), t
    def fetch_check(s, h, t, va, off, n, T, m0=None):
        rd = [f'ds_read_b32 v{T+j}, v{va} offset:{off + 7168*j}' for j in range(n)]
        ck = [f'v_and_b32 v{T}, v{T}, v{T+1}', f'v_and_b32 v{T+2}, v{T+2}, v{T+3}', f'v_and_b32 v{T}, 1, v{T}', f'v_and_b32 v{T}, v{T}, v{T+2}', f'v_cmp_eq_u32 vcc, 0, v{T}']
        retry, back = s.lab('fr'), s.lab('fb')
        def part1(): s.wait(h); [s(l) for l in rd]
        def part2():
            for l in ck: s(l)
            s(f's_mov_b32 s97, 0\ns_cbranch_vccnz {retry}'); s.label(back)
            s.ool.append(f'{retry}:\n' + ''.join(f'    {l}\n' for l in t.strip().split('\n')) + (f'    {m0}\n' if m0 else '') + f'    s_add_u32 s97, s97, 1\n    s_cmp_gt_u32 s97, {SPIN}\n    s_waitcnt vmcnt(0)\n    s_cbranch_scc1 {back}\n'
                         + ''.join(f'    {l}\n' for l in rd) + '    s_waitcnt lgkmcnt(0)\n' + ''.join(f'    {l}\n' for l in ck) + f'    s_nop 1\n    s_cbranch_vccnz {retry}\n    s_branch {back}\n')
        return part1, part2
    def pos(s, d, src, t):
        s(f'''v_and_b32 v{t}, 3, v{src}
        v_lshlrev_b32 v{t}, 2, v{t}
        v_and_or_b32 v{t}, v{src}, -16, v{t}
        v_bfe_u32 v{d}, v{src}, 2, 2
        v_or_b32 v{d}, v{d}, v{t}
        v_lshlrev_b32 v{d}, 4, v{d}''')

    def W(s, dst, k, base=None, op='add_u32'):
        src = f'v{76 + k//2}'; sel = f'WORD_{k&1}'
        if base is None: s(f'v_mov_b32_sdwa v{dst}, {src} dst_sel:DWORD dst_unused:UNUSED_PAD src0_sel:{sel}')
        else: s(f'v_{op}_sdwa v{dst}, {base}, {src} dst_sel:DWORD dst_unused:UNUSED_PAD src0_sel:DWORD src1_sel:{sel}')
    def entry(s):
        s('s_cmp_ge_u32 s2, 256\ns_cbranch_scc1 Lend')
        if s.stamps or s.cfg.x_pad: s('s_memtime s[100:101]\ns_memrealtime s[96:97]\nv_mov_b32 v3, 0'); s.wait_lg(0); s('s_mov_b32 s101, s96\ns_mov_b32 s98, s96')
        s(f"""s_load_dwordx16 s[4:19], s[0:1], 0
        s_load_dwordx8 s[20:27], s[0:1], 64
        s_load_dwordx2 s[28:29], s[0:1], 96
        s_load_dwordx2 s[30:31], s[0:1], 112""")
        s('s_getpc_b64 s[94:95]')
        s.label('Lpc')
        s(f"""s_lshr_b32 s{sI}, s2, 3
        v_lshrrev_b32 v4, 6, v0
        v_and_b32 v{vL}, 63, v0""")
        s.cpf(0)
        s(f"""v_readfirstlane_b32 s{sW}, v4
        v_lshlrev_b32 v{vL16}, 4, v{vL}
        s_add_u32 s94, s94, @TAB_OFF@
        s_addc_u32 s95, s95, 0
        s_lshl_b32 s69, s2, 6
        s_add_u32 s69, s69, {2048 + 4224}
        v_lshl_add_u32 v5, v4, 3, s69
        global_load_dwordx2 v[84:85], v5, s[94:95]
        global_load_dwordx4 v[80:83], v{vL16}, s[94:95] offset:1024
        global_load_dwordx4 v[76:79], v{vL16}, s[94:95]
        s_lshl3_add_u32 s68, s2, s{sW}
        v_and_b32 v6, 255, v0
        v_lshlrev_b32 v18, 4, v6
        global_load_dwordx4 v[66:69], v18, s[94:95] offset:2048
        global_load_ushort v70, v18, s[94:95] offset:2064
        s_and_b32 s{sXCD}, s2, 7
        s_mul_i32 s{sP}, s{sXCD}, 28
        s_add_u32 s{sP}, s{sP}, s{sI}
        s_min_u32 s{sP}, s{sP}, 223
        s_lshl_b32 s70, s{sP}, 10
        v_lshl_add_u32 v64, v0, 1, s70
        s_mul_i32 s73, s68, 896
        s_mov_b32 s{rX+2}, 896
        s_mov_b32 s{rX+3}, 0x20000
        s_mov_b32 s{rW+3}, 0x20000
        s_mov_b32 s{rWS+2}, {WS_BYTES}
        s_mov_b32 s{rWS+3}, 0x20000
        s_lshl_b32 s93, s{sW}, 11
        s_add_u32 s93, s93, {L_PK}
        s_lshl_b32 s71, s{sP}, 2
        s_mov_b32 s72, {EP}
        s_add_u32 s{rX}, s{sX}, s73
        s_addc_u32 s{rX+1}, s{sX+1}, 0
        buffer_load_dwordx4 v[28:31], v{vL16}, {sr(rX)}, 0 offen""")
        if s.stamps: s('v_writelane_b32 v3, s100, 0\nv_writelane_b32 v3, s96, 60')
        s.stamp(1)
        s(f"""s_load_dword s{sTAG}, {sr(sWS,2)}, s72
        s_load_dword s{sLDT}, {sr(sDT,2)}, s71
        s_load_dword s{sD1}, {sr(sDS,2)}, s71
        global_load_ushort v60, v64, {sr(sLA,2)}
        global_load_ushort v61, v64, {sr(sAI,2)}
        global_load_ushort v62, v64, {sr(sCR,2)}
        global_load_ushort v63, v64, {sr(sCI,2)}
        v_readfirstlane_b32 s90, v84
        v_readfirstlane_b32 s91, v85
        s_lshr_b32 s43, s90, 24
        s_and_b32 s90, s90, 0xffffff
        s_bitcmp1_b32 s43, 0
        s_cselect_b64 s[20:21], s[22:23], s[20:21]
        s_cselect_b64 s[24:25], s[26:27], s[24:25]
        s_cmp_eq_u32 s43, 2
        s_cselect_b64 vcc, -1, 0
        s_movk_i32 s89, 896
        s_cmovk_i32 s89, 3584
        s_cmp_lt_u32 s43, 2
        s_cselect_b64 {sr(rW,2)}, s[20:21], s[24:25]
        s_cselect_b32 s{rW+2}, {448*896}, 0
        s_cselect_b64 s[72:73], -1, 0
        s_lshl4_add_u32 s89, s89, s90
        s_mov_b32 s{rWS}, s{sWS}
        s_mov_b32 s{rWS+1}, s{sWS+1}
        v_cndmask_b32_sdwa v23, v81, v82, vcc dst_sel:DWORD dst_unused:UNUSED_PAD src0_sel:WORD_1 src1_sel:WORD_0""")
        if s.cfg.dma_at >= 0: s.pack_dma()

    def cpf(s, once):
        l = s.lab('cp')
        s(f'v_lshl_add_u32 v7, v0, 8, s2' if once else f'v_lshl_add_u32 v7, v0, 5, s{sI}')
        s(f"""v_lshlrev_b32 v7, 7, v7
        v_cmp_gt_u32 vcc, @CODE_BYTES@, v7
        s_and_saveexec_b64 s[70:71], vcc
        s_cbranch_execz {l}""")
        s.raw('    global_load_dword v255, v7, s[94:95]')
        s.label(l)
        s('s_mov_b64 exec, -1')
    def clear(s):
        for i in range(4): s(f'v_mov_b32 v{72+i}, -1')
        s.h_clr = s.hstore(72)
    def hstore(s, r): return s(f'buffer_store_dwordx4 {vr(r)}, v12, {sr(rWS)}, s{sHD} offen sc1')

    def setup(s):
        s.comment('offsets and lane addresses (in the shadow of the first loads)')
        assert L_U % 512 == 0
        s(f"""s_mov_b64 vcc, s[72:73]
        s_lshr_b32 s{sPD1}, s91, 16
        s_lshl_b32 s{sPD1}, s{sPD1}, 10
        v_cndmask_b32_sdwa v24, v81, v80, vcc dst_sel:DWORD dst_unused:UNUSED_PAD src0_sel:WORD_0 src1_sel:WORD_1
        s_and_b32 s{sPD0}, s91, 0xffff
        s_lshl_b32 s{sPD0}, s{sPD0}, 10
        v_mul_u32_u24 v71, 1171, v0
        s_lshl_b32 s70, s{sW}, 7
        v_add_u32 v24, s93, v24""")
        s.W(27, 13, 's70')
        s(f"""s_mul_i32 s70, s{sW}, {LNP}
        v_lshrrev_b32 v71, 16, v71
        v_add_u32 v26, s70, v{vL16}
        s_mul_i32 s70, s2, 896
        s_lshl_b32 s71, s{sW}, 10
        v_mul_u32_u24 v71, {229376 - 896}, v71
        s_add_u32 s70, s70, s71
        s_add_u32 s{sUO}, s70, {GX}
        v_add_u32 v71, v71, v{vL16}""")
        s.W(12, 5, 4, 'lshlrev_b32')
    def setup_b(s):
        s(f"""s_lshl_b32 s71, s{sW}, 10
        s_lshl4_add_u32 s{sFO}, s2, {FA}
        s_add_u32 s{sUM}, s71, {L_U + 1024}
        v_add_u32 v13, s71, v{vL16}
        s_lshl_b32 s70, s{sW}, 13
        v_add_u32 v14, s70, v{vL16}
        s_lshl_b32 s70, s{sW}, 9
        s_mul_i32 s72, s{sXCD}, {FCP}
        s_add_u32 s70, s70, s72
        s_add_u32 s70, s70, {FA}
        v_and_b32 v17, 0x1f0, v{vL16}
        v_add_u32 v17, s70, v17
        s_mul_i32 s{sKG}, s{sW}, {16*KGP}
        s_add_u32 s{sKG}, s{sKG}, {L_KG}""")
        s.W(20, 8, f's{sKG}'); s.W(10, 3); s.W(11, 4); s.W(15, 6, f's{sUM}')
        s(f"""s_and_b32 s70, s{sW}, 3
        s_lshr_b32 s71, s{sW}, 2
        s_mul_i32 s73, s71, {KECH}
        s_add_u32 s73, s73, {L_KE}
        v_add_u32 v18, s73, v18
        s_lshl_b32 s72, s70, 7
        s_sub_u32 s72, s73, s72
        s_add_u32 s72, s72, {4*(1015 - 144) - 28}""")
        s.W(4, 0, 's72')
        s(f"""s_lshl_b32 s72, s70, 8
        s_sub_u32 s72, {L_U}, s72
        v_xor_b32 v16, 16, v15""")
        s.W(8, 1, 's72'); s.W(9, 2, 's72')
        s(f"""s_xor_b32 s72, s70, s71
        s_and_b32 s72, s72, 1
        s_lshl_b32 s72, s72, 4
        v_subrev_u32 v5, 1024, v4
        v_subrev_u32 v6, 2048, v4
        v_subrev_u32 v7, 3072, v4
        v_xor_b32 v8, s72, v8
        v_xor_b32 v9, s72, v9
        s_lshl_b32 s72, s70, 2
        s_mul_i32 s70, s71, {KTSZ}
        s_add_u32 s70, s70, {L_KT}
        s_mov_b32 s73, {L_KE + 4096}""")
        s.W(19, 7, 's72', 'xor_b32'); s.W(88, 14, 's73')
        s(f"""v_mov_b32 v84, 0
        v_mov_b32 v85, 0
        v_mov_b32 v86, 0
        v_mov_b32 v87, 0
        v_add_u32 v19, s70, v19
        s_add_u32 s72, s70, {768*16}
        s_bitcmp1_b32 s{sW}, 0
        s_cselect_b64 vcc, -1, 0
        v_add_u32 v89, {L_U}, v{vL16}
        v_writelane_b32 v88, s72, 63
        v_cndmask_b32 v88, v89, v88, vcc
        ds_write_b128 v88, v[84:87]""")
        for t in range(9):
            s(f'v_add_u32_sdwa v{132+t}, s70, v{66+t//2} dst_sel:DWORD dst_unused:UNUSED_PAD src0_sel:DWORD src1_sel:WORD_{t&1}')
    def scalars(s):
        return f"""s_mov_b32 s{rG}, s{sWS}
        s_mov_b32 s{rG+1}, s{sWS+1}
        s_cmp_eq_u32 s{sW}, 7
        s_cselect_b32 s{rG+2}, 0, {WS_BYTES}
        s_mov_b32 s{rG+3}, 0x20000
        s_mul_i32 s{sHD}, s{sW}, 229376
        s_lshl_b32 s68, s{sP}, 7
        s_add_u32 s{sHD}, s{sHD}, s68
        s_add_u32 s{sHD}, s{sHD}, {X1}
        s_lshr_b32 s68, s{sI}, 2
        s_lshl3_add_u32 s{sTB}, s{sXCD}, s68
        s_and_b32 s{sQ}, s{sI}, 3
        s_lshr_b32 s{sCL}, s{sTB}, 1
        s_and_b32 s{sM}, s{sI}, 7
        s_mul_i32 s{sCT}, s{sQ}, 7
        s_add_u32 s{sCT}, s{sCT}, s{sW}
        s_mul_i32 s{sA1}, s{sCT}, {14*1024}
        s_add_u32 s{sA2}, s{sA1}, {W2P}
        s_mul_i32 s{sA3}, s{sM}, 7
        s_add_u32 s{sA3}, s{sA3}, s{sW}
        s_mul_i32 s{sA4}, s{sA3}, {28*1024}
        s_add_u32 s{sA3}, s{sA4}, {W3P}
        s_add_u32 s{sA4}, s{sA4}, {W4P}
        s_lshl3_add_u32 s{sUS}, s{sXCD}, s{sW}
        s_mul_i32 s{sUS}, s{sUS}, 28672
        s_lshl_b32 s68, s{sI}, 5
        s_add_u32 s{sUS}, s{sUS}, s68
        s_add_u32 s{sUS}, s{sUS}, {GX}
        s_lshl_b32 s{sSM}, s{sW}, 11
        s_add_u32 s{sSM}, s{sSM}, {SM}
        s_mov_b32 s{sFAST}, 0
        s_and_b32 s68, s43, 6
        s_cmp_eq_u32 s68, 2
        s_cselect_b32 s{rW+2}, {448*3584}, 0
        s_cselect_b32 s{sPACT}, {WS_BYTES}, 0"""
    def h2_addr(s):
        return f"""v_lshrrev_b32 v19, 3, v0
        v_and_b32 v20, 7, v0
        v_lshlrev_b32 v21, 9, v19
        v_lshl_add_u32 v21, v20, 4, v21
        s_andn2_b32 s70, 1, s{sQ}
        v_add_u32 v20, s70, v20
        v_mul_u32_u24 v22, 768, v19
        v_lshrrev_b32 v18, 2, v20
        v_lshl_add_u32 v22, v18, 8, v22
        v_and_b32 v18, 3, v20
        v_lshl_add_u32 v22, v18, 4, v22
        v_add_u32 v22, {L_HI}, v22
        s_mul_i32 s88, s{sTB}, 28672
        s_add_u32 s88, s88, {X1}
        v_add_u32 v26, {FB - FA}, v17"""

    def pack_early(s):
        s.wait(s.h_pack)
        s(f"""ds_read_b64_tr_b16 v[52:53], v24
        ds_read_b64_tr_b16 v[54:55], v24 offset:256
        ds_read_b64_tr_b16 v[56:57], v24 offset:32
        ds_read_b64_tr_b16 v[58:59], v24 offset:288
        buffer_store_dwordx4 v[52:55], v{vL16}, {sr(rWS)}, s{sPD0} offen sc1
        buffer_store_dwordx4 v[56:59], v{vL16}, {sr(rWS)}, s{sPD1} offen sc1""")

    def ln(s):
        s.comment('layernorm of one token per wave')
        s('v_mov_b32 v51, 0x3f803f80\nv_dot2_f32_bf16 v48, v28, v51, 0')
        s.stamp(2)
        s('v_dot2_f32_bf16 v49, v28, v28, 0')
        for i in (29, 30, 31): s(f'v_dot2_f32_bf16 v48, v{i}, v51, v48\nv_dot2_f32_bf16 v49, v{i}, v{i}, v49')
        un = []
        for i in range(4): un += [f'v_lshlrev_b32 v{32+2*i}, 16, v{28+i}', f'v_and_b32 v{33+2*i}, 0xffff0000, v{28+i}']
        s(un.pop()); s(un.pop()); s(f'v_mov_b32 v50, {INVD}')
        for m in ('row_shr:1', 'row_shr:2', 'row_shr:4', 'row_shr:8', 'row_bcast:15 row_mask:0xa', 'row_bcast:31 row_mask:0xc'):
            s(f'v_add_f32_dpp v48, v48, v48 {m}\nv_add_f32_dpp v49, v49, v49 {m}')
            s(un.pop())
        s(f"""v_readlane_b32 s70, v48, 63
        v_readlane_b32 s71, v49, 63
        s_lshl_b32 s72, s{sW}, 3
        v_mov_b32 v65, s72
        v_mul_f32 v49, s70, v50
        v_mul_f32 v48, s71, v50
        v_fma_f32 v48, -v49, v49, v48
        v_max_f32 v48, 0, v48
        v_add_f32 v48, {EPS}, v48
        v_rsq_f32 v51, v48
        s_mov_b32 exec_hi, 0x00ffffff
        v_mul_f32 v50, -v49, v51""")
        for i in range(4): s(f'v_pk_fma_f32 {vr(40+2*i,2)}, v[50:51], {vr(32+2*i,2)}, v[50:51] op_sel:[1,0,0] op_sel_hi:[1,1,0]')
        s('s_mov_b32 s70, 0x0d800000')
        for i in range(4): s(f'v_pk_mul_f32 {vr(40+2*i,2)}, {vr(40+2*i,2)}, s[70:71] op_sel_hi:[1,0]')
        for i in range(4): s(f'v_cvt_pk_bf16_f32 v{28+i}, v{40+2*i}, v{41+2*i}')
        s(f"""ds_write_b128 v26, v[28:31] offset:{L_LN}
        v_mul_f32 v48, v48, v51
        s_mov_b64 exec, 1
        ds_write_b64 v65, v[48:49] offset:{L_SM}
        s_mov_b64 exec, -1""")
        s.barrier()
        s(f"""ds_read_b64_tr_b16 v[48:49], v27 offset:{L_LN}
        ds_read_b64_tr_b16 v[50:51], v27 offset:{L_LN + 4*LNP}
        s_lshr_b32 s{sTAG}, s{sTAG}, 4
        s_mul_i32 s{sTAG}, s{sTAG}, 1664525
        s_add_u32 s{sTAG}, s{sTAG}, 1013904223
        s_lshl_b32 s{sTAG}, s{sTAG}, 4
        s_and_b32 s78, s{sTAG}, 0x70000000
        s_or_b32 s78, s78, 0x6000
        s_lshl_b32 s79, s{sTAG}, 3
        s_and_b32 s79, s79, 0x70000000
        s_or_b32 s79, s79, 0x1000
        s_lshl_b32 s80, s{sTAG}, 8
        s_and_b32 s80, s80, 0x70007000
        s_lshl_b32 s81, s{sTAG}, 5
        s_and_b32 s81, s81, 0x70007000
        v_mov_b32 v46, 0x8fff8ffe
        v_mov_b32 v47, 0x8fff8fff
        v_and_or_b32 v48, v48, v46, s78
        v_and_or_b32 v49, v49, v47, s79
        v_and_or_b32 v50, v50, v47, s80
        v_and_or_b32 v51, v51, v47, s81""")
        s.cond(f's_cmp_lg_u32 s{sW}, 7', lambda: s(f's_mov_b64 exec, 15\nds_read_b128 v[48:51], v{vL16} offset:{L_SM}\nv_mov_b32 v71, v{vL16}\ns_lshl_b32 s{sUO}, s2, 6\ns_add_u32 s{sUO}, s{sUO}, {SM}'), flush=False)
        s(f'buffer_store_dwordx4 v[48:51], v71, {sr(rWS)}, s{sUO} offen sc1\ns_mov_b64 exec, -1')
        s.stamp(3)
        s(f's_getreg_b32 s70, hwreg(HW_REG_XCC_ID, 0, 4)\ns_add_u32 s{sTX}, s70, s{sTAG}')
        s.wait(*[h for h, r in s.vm if r])
        s.stamp(40)
        s.cond(f's_cmp_ge_u32 s43, 2', s.pack_early)

    def pack_dma(s):
        s(f's_mov_b32 m0, s93\nbuffer_load_dwordx4 v23, {sr(rW)}, s90 offen lds\ns_add_u32 m0, s93, 1024')
        s.h_pack = s(f'buffer_load_dwordx4 v23, {sr(rW)}, s89 offen lds')
    def publish_a(s, conv=True):
        s.wait_vm(0, force=True)
        s('s_barrier')
        s.stamp(5)
        s.gflag8(0, sFO, sTX, 118)
        s(f's_lshl4_add_u32 s{sFO}, s2, {FB}')
        if s.cfg.dma_at == 1 or not conv: s.pack_dma(); s(f's_mov_b32 m0, s{sKG}')
    def pack_late_store(s):
        P = 240
        s.wait(s.h_pack)
        for e in range(4): s(f'ds_read_b64_tr_b16 {vr(P+2*e,2)}, v24 offset:{1024*(e>>1) + 256*(e&1)}')
        def colsum():
            s(f's_mov_b32 vcc_lo, 0xf0f00f0f\ns_mov_b32 vcc_hi, 0xf0f00f0f\nv_mov_b32 v{P+12}, 0x3f803f80')
            for i in range(4): s(f'v_cndmask_b32 v{P+8+i}, 0, v{P+12}, vcc')
            s(f'''s_lshr_b32 s72, s{sPD0}, 4
            s_add_u32 s72, s72, {CSP - W3P // 16}
            v_mfma_f32_16x16x32_bf16 {vr(P+12)}, {vr(P+8)}, {vr(P)}, 0
            v_mfma_f32_16x16x32_bf16 {vr(P+12)}, {vr(P+8)}, {vr(P+4)}, {vr(P+12)}
            v_lshlrev_b32 v{P+8}, 2, v{vL}
            s_mov_b32 exec_hi, 0
            buffer_store_dword v{P+12}, v{P+8}, {sr(rWS)}, s72 offen sc1
            s_mov_b32 exec_hi, -1''')
        s.cond('s_cmp_lg_u32 s43, 2', colsum, drain=False)
        s(f"""s_mov_b32 s{rW}, s{sWS}
        s_mov_b32 s{rW+1}, s{sWS+1}
        s_mov_b32 s{rW+2}, s{sPACT}
        buffer_store_dwordx4 {vr(P)}, v{vL16}, {sr(rW)}, s{sPD0} offen sc1""")
        s.h_pst = s(f'buffer_store_dwordx4 {vr(P+4)}, v{vL16}, {sr(rW)}, s{sPD1} offen sc1')

    def cm(s, d, a, b, t):
        return [f'v_pk_mul_f32 {vr(t,2)}, {vr(a,2)}, {vr(b,2)} op_sel_hi:[1,0]',
                f'v_pk_fma_f32 {vr(d,2)}, {vr(a,2)}, {vr(b,2)}, {vr(t,2)} op_sel:[1,1,0] op_sel_hi:[0,1,1] neg_lo:[1,0,0]']
    def kgen(s):
        c = s.cfg
        s.pin(c.pins[0])
        assert c.fa_at <= c.poll_at <= c.chk_at
        Z = lambda k: 74 + 2 * k
        Z128, ZD, R0, R1, TT = 92, 94, 112, 114, 116
        CH = [(96, 98, 100, 102), (104, 106, 108, 110)]
        BF, AF, ACC = 156, (172, 188, 204), 220
        s(f"""s_lshl_b32 s70, s{sLDT}, 16
        s_and_b32 s71, s{sLDT}, 0xffff0000
        s_cmp_lt_u32 s{sW}, 4
        s_cselect_b32 s72, s70, s71
        s_mov_b32 s70, {LOG2E}
        s_mov_b32 s71, {INV2PI}
        v_mov_b32 v64, s72
        v_lshlrev_b32 v60, 16, v60
        v_mul_f32 v64, s70, v64
        v_mul_f32 v60, s70, v60
        v_exp_f32 v64, v64
        v_exp_f32 v60, v60
        v_lshlrev_b32 v61, 16, v61
        v_lshlrev_b32 v62, 16, v62
        v_lshlrev_b32 v63, 16, v63
        v_cvt_pk_bf16_f32 v64, v64, v60
        v_and_b32 v60, 0xffff0000, v64
        v_lshlrev_b32 v64, 16, v64
        v_pk_mul_f32 v[60:61], v[60:61], v[64:65] op_sel_hi:[1,0]
        v_add_f32 v64, v64, v64
        v_pk_mul_f32 v[60:61], v[60:61], s[70:71]
        v_pk_mul_f32 {vr(R0,2)}, v[62:63], v[64:65] op_sel_hi:[1,0]
        s_mov_b32 m0, s{sKG}
        s_mov_b32 s70, 0x41000000
        s_mov_b32 s71, 0x43000000
        v_pk_mul_f32 v[62:63], v[60:61], s[70:71] op_sel_hi:[1,0]
        v_pk_mul_f32 v[64:65], s[70:71], v[60:61] op_sel:[1,0]
        s_lshl_b32 s{sD0}, s{sD1}, 16
        s_and_b32 s{sD1}, s{sD1}, 0xffff0000""")
        for r in (62, 64, 60): s(f'v_exp_f32 v{r}, -v{r}\nv_fract_f32 v{r+1}, v{r+1}')
        for r, d in ((62, Z(8)), (64, Z128), (60, Z(1))): s(f'v_cos_f32 v{d}, v{r+1}\nv_sin_f32 v{d+1}, v{r+1}')
        for r, d in ((62, Z(8)), (64, Z128), (60, Z(1))): s(f'v_pk_mul_f32 {vr(d,2)}, {vr(d,2)}, {vr(r,2)} op_sel_hi:[1,0]')
        s.stamp(4)
        def chain(st, rows, start, mul, neg=False):
            a, b, t, pk = CH[st]; out = []; cur, nxt = start, a
            for i, row in enumerate(rows):
                cc = s.cm(nxt, cur, mul, t) if i < len(rows) - 1 else []
                out += cc[:1] + [f'v_cvt_pk_bf16_f32 v{pk + (i&1)}, v{cur}, {"-" if neg else ""}v{cur+1}'] + cc[1:] + [f'ds_write_addtid_b32 v{pk + (i&1)} offset:{row*KGP}']
                cur, nxt = nxt, (b if nxt == a else a)
            return out
        def rd(dst):
            for ks in range(4): s(f'ds_read_b128 {vr(dst+4*ks)}, v20 offset:{64*ks}')
        E = lambda l: [s(x) for x in l]
        zz = zipl if c.two else (lambda *a: sum(a, []))
        uld = f'buffer_load_dwordx4 v[120:123], v10, {sr(rWS)}, s{sUS} offen sc1'
        uck = [f'v_xor_b32 v{120+i}, s{78+i}, v{120+i}' for i in range(4)] + ['v_or3_b32 v119, v120, v121, v122', 'v_or_b32 v119, v119, v123', 'v_and_b32 v119, 0x70007000, v119', 'v_cmp_ne_u32 vcc, 0, v119']
        def hook(k):
            if c.fa_at == k: s.publish_a()
            if c.clr_at == k: s.clear()
            if c.u_at == k: s(uld)
            if c.poll_at == k: s.poll_issue(27, 17, 0)
            if c.dma_at == k and k > 1:
                s.pack_dma()
                if k < 4: s(f's_mov_b32 m0, s{sKG}')
            if c.uchk_at == k:
                retry, back = s.lab('ur'), s.lab('ub')
                for l in uck: s(l)
                s(f's_mov_b32 s97, 0\ns_cbranch_vccnz {retry}'); s.label(back)
                s.ool.append(f'{retry}:\n    {uld}\n    s_add_u32 s97, s97, 1\n    s_cmp_gt_u32 s97, {SPIN}\n    s_waitcnt vmcnt(0)\n    s_cbranch_scc1 {back}\n'
                             + ''.join(f'    {l}\n' for l in uck) + f'    s_nop 1\n    s_cbranch_vccnz {retry}\n    s_branch {back}\n')
                if s.stamps: s('v_writelane_b32 v3, s97, 44')
                for i in range(4): s(f'v_add_u32 v{120+i}, 0x32003200, v{120+i}')
                s(f'v_add_u32 v119, s{sUM}, v{vL16}\nds_write_b128 v119, v[120:123]')
                s.stamp(8)
            if c.chk_at == k:
                s.poll_check(27, 17, 0, c.fa_sleep)
                if s.stamps: s('v_writelane_b32 v3, s97, 58')
            if c.pst_at == k: s.pack_late_store()
        hook(0)
        if c.two:
            E(zipl(s.cm(ZD, Z(8), Z(8), 100), s.cm(R1, R0, Z(8), 108), s.cm(Z(2), Z(1), Z(1), TT)))
            E(zipl(chain(0, range(0, 16, 2), R0, ZD, True), chain(1, range(1, 16, 2), R1, ZD, True)))
            rd(BF)
            E(zipl(s.cm(ZD, Z128, Z128, 100), s.cm(R1, Z(8), Z128, 108), s.cm(Z(4), Z(2), Z(2), TT)))
            hook(1); s.stamp(35)
            E(zipl(chain(0, range(0, 16, 2), Z(8), ZD), chain(1, range(1, 16, 2), R1, ZD)))
        else:
            rc = chain(0, range(16), R0, Z(8), True)
            E(rc[:4*c.rsplit]); hook(0.5); E(rc[4*c.rsplit:])
            rd(BF)
            E(s.cm(Z(2), Z(1), Z(1), TT) + s.cm(Z(4), Z(2), Z(2), TT))
            hook(1); s.stamp(35)
            E(chain(0, range(16), Z(8), Z128))
        rd(AF[0])
        E(zipl(s.cm(Z(6), Z(4), Z(2), 100), s.cm(Z(3), Z(2), Z(1), 108), s.cm(Z(5), Z(4), Z(1), TT)))
        hook(2); s.stamp(36)
        E(zz(chain(0, range(0, 8), Z(4), Z128), chain(1, range(8, 12), Z(2), Z128) + chain(1, range(12, 16), Z(6), Z128), s.cm(Z(7), Z(6), Z(1), TT)))
        rd(AF[1])
        s.stamp(47); hook(3); s.stamp(37)
        if c.kbar: s('s_barrier')
        mf = lambda t, ks: f'v_mfma_f32_16x16x32_bf16 {vr(ACC+4*t)}, {vr(AF[t]+4*ks)}, {vr(BF+4*ks)}, {vr(ACC+4*t) if ks else 0}'
        wr = lambda t, r: f'ds_write_b32 v19, v{ACC+4*t+r} offset:{(16*t+r)*256}'
        if c.ktm == 2:
            t2 = [f'v_mov_b32 v{TT}, 0x3f80', f'ds_write_addtid_b32 v{TT} offset:{8*KGP}']
            for i, phi in enumerate((1, 3, 5, 7)):
                z, d = Z(phi), 96 + 4*i
                t2 += [f'v_cvt_pk_bf16_f32 v{d+2}, v{z}, v{z+1}', f'v_mul_f32 v{d}, v{z}, v{Z128}', f'ds_write_addtid_b32 v{d+2} offset:{2*i*KGP}', f'v_mul_f32 v{d+1}, v{z+1}, v{Z128}',
                       f'v_fma_f32 v{d}, -v{z+1}, v{Z128+1}, v{d}', f'v_fmac_f32 v{d+1}, v{z}, v{Z128+1}', f'v_cvt_pk_bf16_f32 v{d+3}, v{d}, v{d+1}', f'ds_write_addtid_b32 v{d+3} offset:{(2*i+1)*KGP}']
            m01 = [mf(t, k) for t in range(2) for k in range(4)]
            for i, l in enumerate(t2):
                if i % 4 == 0 and m01: s(m01.pop(0))
                s(l)
            rd(AF[2])
            s.stamp(6); hook(4)
            E([wr(0, r) for r in range(4)] + zipl([mf(2, k) for k in range(4)], [wr(1, r) for r in range(4)]) + [wr(2, r) for r in range(4)])
        else:
            E(zz(chain(0, (0, 1), Z(1), Z128) + chain(0, (4, 5), Z(5), Z128), chain(1, (2, 3), Z(3), Z128) + chain(1, (6, 7), Z(7), Z128)))
            s(f'v_mov_b32 v{TT}, 0x3f80\nds_write_addtid_b32 v{TT} offset:{8*KGP}')
            rd(AF[2])
            s.stamp(6); hook(4)
            if c.ktm:
                E([mf(0, k) for k in range(4)] + [mf(1, k) for k in range(4)] + zipl([mf(2, k) for k in range(4)], [wr(0, r) for r in range(4)]))
                E([wr(t, r) for t in (1, 2) for r in range(4)])
            else:
                E([mf(t, k) for k in range(4) for t in range(2)] + [mf(2, k) for k in range(4)] + [wr(t, r) for t in range(3) for r in range(4)])
        s.stamp(48); hook(5)
        if c.clr_at is not None: s.wait(s.h_clr)
        s.barrier()
        s.stamp(7)
        hook(5.5)
        for t in range(9): s(f'ds_read_b128 {vr(28+4*t)}, v{132+t}')
        if c.clr_at is not None: s(f's_add_u32 s72, s{sFO}, {FC - FB}'); s.gflag8(2, 72, sTAG, 72)
        hook(6)
        if c.chk_at <= 5 and c.pst_at != 7: s.feed(c.f_kt, 63)
        for t in range(9):
            s(f'v_pk_add_f32 {vr(28+4*t,2)}, {vr(28+4*t,2)}, {vr(30+4*t,2)}')
            if t: s(f'v_add_f32 v{24+4*t}, v{24+4*t}, v{25+4*t}')
        s('v_add_f32 v60, v60, v61')
        for i in range(4): s(f'v_cvt_pk_bf16_f32 v{64+i}, v{28+8*i}, v{32+8*i}')
        s('ds_write_b128 v18, v[64:67]')
        for i in range(4): s(f'v_cvt_pk_bf16_f32 v{68+i}, v{32+8*i}, v{36+8*i}')
        s(f'ds_write_b128 v18, v[68:71] offset:{KEO}')
        s.stamp(9); hook(7)
        if c.chk_at <= 5 and c.pst_at == 7: s.feed(c.f_kt, 63)

    def conv(s):
        c = s.cfg
        A, B, ACC = 28, 60, 92
        def rd(kind, slot, e, j):
            if kind == 'B': return [f'ds_read_b128 {vr(B+4*slot)}, v{8+e} offset:{1024*j}']
            off = 16 * (1 - e) + 128 * (1 - (j & 1))
            return [f'ds_read2_b32 {vr(A+4*slot+2*h,2)}, v{4+(j>>1)} offset0:{off+2*h} offset1:{off+2*h+1}' for h in range(2)]
        M = []
        for k in range(8):
            p1 = [(k, j) for j in range(k + 1) if k + j <= 7]; p2 = [(j, k) for j in range(k) if k + j <= 7]
            M += [(0, a, b) for a, b in p1 + p2]
        if c.cil:
            for nu in range(0, 8, 2): M += [(1, a, b) for a, b in zipl([(a, nu + 1 - a) for a in list(range(1, nu + 1)) + [0, nu + 1]], [(a, nu - a) for a in range(nu + 1)])]
        else:
            for nu in range(8): M += [(1, a, nu - a) for a in range(nu + 1)]
        slot = {(0, j): j for j in range(8)}
        for k in range(4, 8): slot[1, 2*(k-4)] = k; slot[1, 2*(k-4) + 1] = 7 - k
        ops = []
        for e in range(2):
            for j in range(8):
                for kind, ix in (('A', 1), ('B', 2)):
                    need = min(n for n, m in enumerate(M) if m[0] == e and m[ix] == j)
                    early = -1 if e == 0 else max(n for n, m in enumerate(M) if m[0] == 0 and m[ix] == slot[1, j])
                    ops += [(need, early, t) for t in rd(kind, slot[e, j], e, j)]
        ops.sort(key=lambda o: o[0])
        D = {n: [] for n in range(-1, 73)}
        pos = -1.0
        for i, (need, early, t) in enumerate(ops):
            if i < c.chead: D[-1].append(t); continue
            pos = max(pos + c.cpace, early)
            pos = max(min(pos, need - c.clead), early)
            D[int(pos)].append(t)
        done = {nu: max(n for n, m in enumerate(M) if m[1] + m[2] == nu) for nu in range(8)}
        at = c.cy0
        for nu in range(8):
            at = max(at, done[nu] + 3)
            D[min(int(at), 72)].append(f'ds_write_b128 v13, {vr(ACC+4*nu)} offset:{L_Y + 8192*nu}')
            at += c.cyp
        s.pin(c.pins[1])
        s.barrier(); s.stamp(10)
        for t in D[-1]: s(t)
        f0 = c.fslot if c.chk_at == 8 else 0
        ex = s.spread(c.f_conv, 66, f0 + 3)
        bs = ['ds_read_b64 v[140:141], v15', 'ds_read_b64 v[142:143], v16', '', '', '', '']
        for i in range(4): bs += [f'v_lshlrev_b32 v{132+2*i}, 16, v{140+i}', f'v_and_b32 v{133+2*i}, 0xffff0000, v{140+i}']
        for ch in range(2):
            bs += [f'v_add_f32 v{140+r}, s{sD0+ch}, v{124+2*r}' for r in range(4)]
            bs += [f'v_fma_f32 v{132+4*ch+r}, v{132+4*ch+r}, v{140+r}, v{125+2*r}' for r in range(4)]
        ha = s.h2_addr().split('\n')
        seen = set(); assert f0 + 3 <= c.hint_at <= 73
        for n, (e, a, b) in enumerate(M):
            nu = a + b
            s.fair(n, c.fc)
            s(f'v_mfma_f32_16x16x32_bf16 {vr(ACC+4*nu)}, {vr(A+4*slot[e, a])}, {vr(B+4*slot[e, b])}, {vr(ACC+4*nu) if nu in seen else 0}')
            seen.add(nu)
            for t in D[n]: s(t)
            if n == f0 and c.chk_at == 8:
                s.poll_check(27, 17, 0, c.fa_sleep)
                if s.stamps: s('v_writelane_b32 v3, s97, 58')
                s('s_barrier')
            if n == f0 + 1: s(f'buffer_load_dwordx4 v[124:127], v11, {sr(rWS)}, s{sSM} offen sc1')
            if n == f0 + 2: s(f'buffer_load_dwordx4 v[128:131], v11, {sr(rWS)}, s{sSM} offen offset:16 sc1\ns_lshl_b32 s68, s2, 6\ns_add_u32 s68, s68, {FH}')
            if c.pst_at == 8 and n == c.pslot: s.pack_late_store()
            if c.clr_at is not None and n == c.cslot: s(f's_mov_b32 s73, {FC - FA}'); s.poll_issue(27, 17, 's73')
            if c.clr_at is not None and n == 66: s.poll_check(27, 17, 's73', 1)
            if n == c.hint_at: s.gflag(7, 68, sTAG, 23, False, False)
            if ex: ex.pop(0)()
            if n >= 4 and ha: s(ha.pop(0))
            if n >= 40 and bs: s(bs.pop(0))
        if c.fc: s('s_setprio 0')
        for t in D[72]: s(t)
        assert not bs and not ha
        s.stamp(38)
        s.wait(s.h_pst); assert c.f_conv <= 24
        s.barrier(); s.stamp(11)
        for i in (0, 4, 1, 5, 2, 6, 3, 7): s(f'ds_read_b128 {vr(A+4*i)}, v14 offset:{L_Y + 1024*i}')
        fb = lambda: s.gflag8(6, sFO, sTAG, 23)
        if not c.fblate: fb()
        if c.hint_at == 72: s.gflag(7, 68, sTAG, 17, False)
        for i in (0, 4, 1, 5, 2, 6, 3, 7):
            ch = i >> 2
            for h in range(2): s(f'v_pk_add_f32 {vr(132+4*ch+2*h,2)}, {vr(132+4*ch+2*h,2)}, {vr(A+4*i+2*h,2)}')
        for r in range(4): s(f'v_cvt_pk_bf16_f32 v{140+r}, v{132+r}, v{136+r}')
        s('v_and_b32 v140, -2, v140')
        h = s.hstore(140)
        s.stamp(12)
        if c.fblate: fb()
        if c.hint_at == 73: s.gflag(7, 68, sTAG, 17, False)
        s.feed(c.f_hst, 63)
        return h

    def nonconv(s):
        c = s.cfg
        s(f'v_lshlrev_b32 v15, 7, v{vL}')
        if c.sb_at == 1: s.setup_b()
        s(f'v_lshlrev_b32 v15, 7, v{vL}')
        s(s.h2_addr())
        if c.dma_at == 0: s.pack_dma()
        s.publish_a(False)
        s.pack_late_store()
        s.poll(18, 17, 0, sleep=8)
        s.barrier(); s.stamp(8)
        s.gflag8(1, sFO, sTAG, 118)
        if c.clr_at is not None: s(f's_add_u32 s72, s{sFO}, {FC - FB}'); s.gflag8(2, 72, sTAG, 118)
        s(f's_add_u32 s70, s{sA2}, {14*1024 - 8192}')
        s.feed(c.f_hst, c.nc_depth)
        if c.warm: s(f'buffer_load_dword v119, v15, {sr(rG)}, s70 offen')
        if c.clr_at is not None:
            s(f's_mov_b32 s73, {FC - FA}'); s.poll(18, 17, 's73', sleep=8); s.barrier()
        s.wait_vm(0); s.stamp(10)
    def hint_wait(s):
        def body():
            s(f's_lshl_b32 s68, s2, 6\ns_add_u32 s68, s68, {FH - 32*64}\nv_mov_b32 v9, 0')
            s.poll(8, 9, 's68', 1, 0, sleep=4)
        s.cond(f's_cmp_lt_u32 s{sI}, 28', body)

    def h2(s, behind, mid=lambda: None, halo=False):
        ld = [f'buffer_load_dwordx4 {vr(8+4*j)}, v4, {sr(rWS)}, s88 offen offset:{128*j} sc1' for j in range(4)]
        chk = ['v_or3_b32 v24, v8, v12, v16', 'v_or_b32 v24, v24, v20', 'v_and_b32 v24, 1, v24', 'v_cmp_eq_u32 vcc, 1, v24']
        if s.cfg.hdel: s(f's_sleep {s.cfg.hdel}')
        for l in ld: s(l)
        s.poll_issue(25, 26, 0)
        mid()
        for l in chk: s(l)
        retry, back = s.lab('hr'), s.lab('hb')
        s(f's_mov_b32 s97, 0\ns_cbranch_vccnz {retry}')
        s.label(back)
        s.ool.append(f'{retry}:\n' + ('    s_mov_b64 exec, vcc\n' if s.cfg.hmask else '') + ''.join(f'    {l}\n' for l in ld) + f'    buffer_load_dword v25, v26, {sr(rWS)}, 0 offen sc1\n    s_add_u32 s97, s97, 1\n    s_cmp_gt_u32 s97, {SPIN}\n    s_waitcnt vmcnt(0)\n    s_cbranch_scc1 {back}\n'
                     + ''.join(f'    {l}\n' for l in chk) + f'    s_nop 1\n    s_cbranch_vccnz {retry}\n    s_branch {back}\n')
        if s.cfg.hmask: s('s_mov_b64 exec, -1')
        if s.stamps: s('v_writelane_b32 v3, s97, 59')
        s.stamp(14)
        if not s.cfg.hfeed: behind()
        if halo:
            s(f's_bitcmp1_b32 s{sQ}, 0\ns_cselect_b64 vcc, -1, 0')
            for i in range(2):
                for j in range(4): s(f'v_cndmask_b32 v{28+4*i+j}, v{10+4*j+i}, v{8+4*j+i}, vcc')
                s(f'ds_write_b128 v5, {vr(28+4*i)} offset:{64*i}')
        else:
            for j in range(4):
                for i in range(j): s(f'v_swap_b32 v{8+4*j+i}, v{8+4*i+j}')
            for i in range(4): s(f'ds_write_b128 v5, {vr(8+4*i)} offset:{64*i}')
        s.stamp(32)
        s.poll_check(25, 26, 0, 2)
        if s.cfg.hfeed: behind()
        if s.stamps: s('v_writelane_b32 v3, s97, 57')

    def stats_tail(s, a, extra, vadr, tab):
        if extra:
            s('s_mov_b64 exec, -1')
            for t in range(3): s(f'v_cndmask_b32 v{a+4*t}, v{a+4*t}, v{a+4*t+1}, s[92:93]')
            for t in range(3): s(f'v_cndmask_b32 v{a+4*t}, v{a+4*t}, v{a+4*t+2}, s[94:95]')
            for t in (1, 2):
                s(f'v_mov_b32_dpp v{a+4*t+1}, v{a+4*t+3} row_ror:{4*t}\nv_mov_b32_dpp v{a+4*t+2}, v{a+4*t} row_ror:{4*t}')
            for t in (1, 2):
                s(f'v_cndmask_b32 v{a+3}, v{a+3}, v{a+4*t+1}, {sr(76+2*t,2)}\nv_cndmask_b32 v{a}, v{a}, v{a+4*t+2}, {sr(76+2*t,2)}')
            s('s_mov_b32 exec_lo, 0x77700777\ns_mov_b32 exec_hi, 0x70777707')
        s(f'''v_mul_f32 v{a+3}, s96, v{a+3}
        v_mul_f32 v{a}, s96, v{a}
        v_fma_f32 v{a}, -v{a+3}, v{a+3}, v{a}
        v_max_f32 v{a}, 0, v{a}''')
        if extra:
            s(f'''v_fmaak_f32 v{a+2}, v{a}, v49, {fh(1e-10)}
            v_add_f32 v51, {EPS}, v{a}
            v_rsq_f32 v{a+1}, v{a+2}
            v_rsq_f32 v51, v51
            v_mul_f32 v{a}, {fh(C1)}, v{a+1}
            v_mul_f32 v{a+4}, {fh(0.044715)}, v{a+1}
            v_mul_f32 v{a+2}, v{a+2}, v{a+1}
            v_mul_f32 v{a+1}, v{a+1}, v{a}
            v_mul_f32 v50, -v{a+3}, v51
            v_mul_f32 v{a+1}, v{a+1}, v{a+4}
            ds_write_b64 v{extra}, v[50:51] offset:{tab // 2}
            ds_write_b128 v{vadr}, {vr(a)} offset:{tab}''')
        else:
            s(f'''v_add_f32 v50, {EPS}, v{a}
            v_rsq_f32 v{a+1}, v50
            v_cvt_pk_bf16_f32 v{a}, -v{a+3}, -v{a+3}
            v_mul_f32 v{a+2}, {fh(C1)}, v{a+1}
            v_mul_f32 v{a+4}, {fh(0.044715)}, v{a+1}
            v_and_b32 v51, 0xffff0000, v{a}
            v_add_f32 v51, v51, v{a+3}
            v_mul_f32 v{a+3}, v50, v{a+1}
            v_mul_f32 v{a+1}, v{a+1}, v{a+2}
            v_and_b32 v{a+2}, 0xffffff7f, v{a+2}
            v_mul_f32 v{a+1}, v{a+1}, v{a+4}
            v_and_b32 v{a+3}, 0xffffff7f, v{a+3}
            v_and_b32 v{a+1}, 0xffffff7f, v{a+1}
            ds_write_b128 v{vadr}, {vr(a)} offset:{tab}
            v_cvt_pk_bf16_f32 v{a}, -v51, -v51
            ds_write_b128 v{vadr}, {vr(a)} offset:{tab + 512}''')
    def gelu_pk(s, acc, cs, st, n, t, out):
        P = range(0, n, 2); o = []
        if s.cfg.gsc:
            R = range(n)
            o += [f'v_fma_f32 v{acc+i}, -v{cs+i}, v{st+3}, v{acc+i}' for i in R]
            if s.cfg.gsc == 2: return o + s.gelu_pk2(acc, cs, st, n, t, out)[n//2:]
            o += [f'v_mul_f32 v{t+i}, v{acc+i}, v{acc+i}' for i in R] + [f'v_fma_f32 v{t+i}, v{t+i}, v{st+1}, v{st}' for i in R]
            o += [f'v_mul_f32 v{t+i}, v{t+i}, v{acc+i}' for i in R] + [f'v_exp_f32 v{t+i}, v{t+i}' for i in R]
            o += [f'v_fma_f32 v{t+i}, v{t+i}, v{st+2}, v{st+2}' for i in R] + [f'v_rcp_f32 v{t+i}, v{t+i}' for i in R]
            o += [f'v_mul_f32 v{t+i}, v{t+i}, v{acc+i}' for i in R] + [f'v_cvt_pk_bf16_f32 v{out+i//2}, v{t+i}, v{t+i+1}' for i in P]
            return o
        return s.gelu_pk2(acc, cs, st, n, t, out)
    def gelu_pk2(s, acc, cs, st, n, t, out):
        P = range(0, n, 2); o = []
        o += [f'v_pk_fma_f32 {vr(acc+i,2)}, {vr(st+2,2)}, {vr(cs+i,2)}, {vr(acc+i,2)} op_sel:[1,0,0] op_sel_hi:[1,1,1] neg_lo:[1,0,0] neg_hi:[1,0,0]' for i in P]
        o += [f'v_pk_mul_f32 {vr(t+i,2)}, {vr(acc+i,2)}, {vr(acc+i,2)}' for i in P]
        o += [f'v_pk_fma_f32 {vr(t+i,2)}, {vr(st,2)}, {vr(t+i,2)}, {vr(st,2)} op_sel:[1,0,0] op_sel_hi:[1,1,0]' for i in P]
        o += [f'v_pk_mul_f32 {vr(t+i,2)}, {vr(t+i,2)}, {vr(acc+i,2)}' for i in P]
        o += [f'v_exp_f32 v{t+i}, v{t+i}' for i in range(n)]
        o += [f'v_pk_fma_f32 {vr(t+i,2)}, {vr(t+i,2)}, {vr(st+2,2)}, {vr(st+2,2)} op_sel_hi:[1,0,0]' for i in P]
        o += [f'v_rcp_f32 v{t+i}, v{t+i}' for i in range(n)]
        o += [f'v_pk_mul_f32 {vr(t+i,2)}, {vr(t+i,2)}, {vr(acc+i,2)}' for i in P]
        o += [f'v_cvt_pk_bf16_f32 v{out+i//2}, v{t+i}, v{t+i+1}' for i in P]
        return o
    def gelu_sc(s, acc, cs, st, n, t, out, ex):
        steps = [lambda i: f'v_fma_f32 v{acc+i}, -v{cs+i}, v{st+3}, v{acc+i}', lambda i: f'v_mul_f32 v{t+i}, v{acc+i}, v{acc+i}',
                 lambda i: f'v_fma_f32 v{t+i}, v{t+i}, v{st+1}, v{st}', lambda i: f'v_mul_f32 v{t+i}, v{t+i}, v{acc+i}',
                 lambda i: f'v_exp_f32 v{t+i}, v{t+i}', lambda i: f'v_fma_f32 v{t+i}, v{t+i}, v{st+2}, v{st+2}',
                 lambda i: f'v_rcp_f32 v{t+i}, v{t+i}', lambda i: f'v_mul_f32 v{t+i}, v{t+i}, v{acc+i}',
                 lambda i: f'v_cvt_pk_bf16_f32 v{out+i//2}, v{t+i}, v{t+i+1}' if i % 2 == 0 else '']
        for f in steps:
            ex.pop(0)()
            for i in range(n): s(f(i))
    def gemm16(s, W, acc, vaddr, kstride, first_zero, ex, bufs=(8, 12, 16, 20)):
        seq = [(ks, t) for ks in range(14) for t in range(2)]; nb = len(bufs); after = s.cfg.gaft
        def rd(i): ks, t = seq[i]; s(f'ds_read_b128 {vr(bufs[i%nb])}, v{vaddr} offset:{ks*kstride + 256*t}')
        for i in range(nb - 1 + after): rd(i)
        for i, (ks, t) in enumerate(seq):
            if not after and i + nb - 1 < 28: rd(i + nb - 1)
            c = 0 if (first_zero and ks == 0) else vr(acc + 4*t)
            s.fair(i, s.cfg.fg)
            s(f'v_mfma_f32_16x16x32_bf16 {vr(acc+4*t)}, {vr(W+4*ks)}, {vr(bufs[i%nb])}, {c}')
            if after and i + nb < 28: rd(i + nb)
            if ex: ex.pop(0)()
        if s.cfg.fg: s('s_setprio 0')
    def gemm32(s, jobs, vaddr, extra=None, nb=4, buf=8):
        seq = [(j, i) for j, job in enumerate(jobs) for i in range(job[1])]
        ex = list(extra or [])
        def rd(n): j, i = seq[n]; s(f'ds_read_b128 {vr(buf+4*(n%nb))}, v{vaddr} offset:{jobs[j][3] + 1024*i}')
        if s.cfg.prio: s('s_setprio 1')
        for n in range(nb - 1): rd(n)
        for n, (j, i) in enumerate(seq):
            W, nk, acc, _, after = jobs[j]
            if n + nb - 1 < len(seq): rd(n + nb - 1)
            s(f'v_mfma_f32_32x32x16_bf16 {vr(acc,16)}, {vr(W+4*i)}, {vr(buf+4*(n%nb))}, {vr(acc,16) if i else 0}')
            if ex: ex.pop(0)()
            if i == nk - 1 and after: ex += [lambda: None] * 3 + after
        s('s_setprio 0')
        s.run(ex)
    def g_pre(s):
        s.comment('G wave addresses (v6 GEMM1 B, v7 residual h, v50/v51 stats, masks)')
        s(f'''s_lshl_b32 s70, s{sQ}, 2
        s_lshr_b32 s71, 0x2213, s70
        s_and_b32 s71, s71, 15
        s_lshr_b32 s72, 0x0404, s70
        s_and_b32 s72, s72, 15
        v_and_b32 v44, 15, v{vL}
        v_lshrrev_b32 v45, 4, v{vL}
        v_add_u32 v46, s71, v44
        v_add_u32 v47, s72, v44''')
        s.pos(6, 46, 48)
        s(f'v_mul_u32_u24 v48, 768, v45\nv_add_u32 v6, v6, v48\nv_add_u32 v6, {L_HI}, v6')
        s.pos(7, 47, 48)
        s(f'''v_lshrrev_b32 v48, 1, v45
        s_lshl_b32 s73, s{sCT}, 1
        v_add_u32 v48, s73, v48
        v_mul_u32_u24 v48, 768, v48
        v_and_b32 v49, 1, v45
        v_lshl_add_u32 v48, v49, 3, v48
        v_add_u32 v7, v7, v48
        v_add_u32 v7, {L_HI}, v7
        s_sub_u32 s73, s71, s72
        s_lshl_b32 s70, s{sTB}, 5
        s_add_u32 s73, s73, s70
        v_add_u32 v48, s73, v44
        v_add_u32 v49, 16, v48
        s_movk_i32 s70, 2048
        v_cmp_gt_u32 {sr(sM0,2)}, s70, v48
        v_cmp_gt_u32 {sr(sM1,2)}, s70, v49
        v_lshlrev_b32 v50, 4, v46
        v_add_u32 v50, {L_STA}, v50
        v_lshlrev_b32 v51, 3, v47
        v_add_u32 v51, {L_STB}, v51''')
        for j in range(3): s(f's_add_u32 s70, s{sQ}, {j+1}\ns_and_b32 s70, s70, 3\ns_mul_i32 s70, s70, 7\ns_add_u32 s70, s70, s{sW}\ns_lshl_b32 s{4+j}, s70, 10')
        s(f'''s_lshl_b32 s7, s{sW}, 10
        s_mul_i32 s8, s{sTB}, 28672
        s_add_u32 s8, s8, {GX}
        s_xor_b32 s9, s{sTB}, 1
        s_mul_i32 s9, s9, 28672
        s_add_u32 s9, s9, s7
        s_add_u32 s9, s9, {X1}
        s_lshl_b32 s69, s{sCT}, 10
        s_add_u32 s70, s69, s8
        s_add_u32 s71, s70, {X1 - GX}
        v_add_u32 v46, s69, v{vL16}
        v_add_u32 v47, s7, v{vL16}''')
        for i in range(4): s(f'v_mov_b32 v{28+i}, 0x3f803f80')
        for ks in range(14): s(f'v_mfma_f32_16x16x32_bf16 v[32:35], {vr(vW1+4*ks)}, v[28:31], {"v[32:35]" if ks else 0}')

    def g_wave(s, hst):
        c = s.cfg
        assert c.f_hok <= 28
        s.g_pre()
        if c.hack: s.wait(hst)
        s.hint_wait()
        s.stamp(13)
        s.h2(lambda: s.feed(c.f_hok, 63), lambda: s.feed(c.f_hld, 63))
        s.pin(c.pins[2])
        s.barrier(); s.stamp(15)
        s(f'v_mov_b32 v4, {L_FAST}\nds_read_b32 v4, v4\nv_lshlrev_b32 v5, 4, v44\nv_lshl_add_u32 v5, v45, 9, v5')
        s.gemm16(vW1, 24, 6, 3072, True, s.spread(c.f_g1, 28), (8, 12, 16, 20, 36, 40)[:c.nb1])
        s.stamp(39)
        s(f'v_readfirstlane_b32 s{sFAST}, v4')
        s(f's_mul_i32 s69, s{sM}, 7\ns_add_u32 s69, s69, s{sW}\ns_mul_i32 s69, s69, 1792\ns_add_u32 s69, s69, {CSP}\nv_lshlrev_b32 v48, 2, v{vL}')
        csl = lambda: [s(f'buffer_load_dword v{164+i}, v48, {sr(rWS)}, s69 offen offset:{256*i}') for i in range(7)]
        if c.cs_at == 0: csl()
        if c.evb2:
            spin, back = s.lab('es'), s.lab('eb')
            rdl = ['ds_read_b32 v49, v4', 'ds_read_b128 v[36:39], v50', 'ds_read_b128 v[40:43], v50 offset:256'][:1 if c.evc else 3]
            s(f'v_mov_b32 v4, {L_EV + 6*2048 + 7*260}')
            for l in rdl: s(l)
            s(f'v_cmp_eq_u32 vcc, 0, v49\ns_mov_b32 s97, 0\ns_cbranch_vccnz {spin}'); s.label(back)
            s.ool.append(f'{spin}:\n' + ''.join(f'    {l}\n' for l in rdl) + f'    s_add_u32 s97, s97, 1\n    s_cmp_gt_u32 s97, {SPIN*8}\n    s_waitcnt lgkmcnt(0)\n    s_cbranch_scc1 {back}\n'
                         f'    v_cmp_eq_u32 vcc, 0, v49\n    s_nop 1\n    s_cbranch_vccnz {spin}\n    s_branch {back}\n')
            s.stamp(16)
            if c.evc: s('ds_read_b128 v[36:39], v50\nds_read_b128 v[40:43], v50 offset:256')
        else:
            s.barrier(); s.stamp(16)
            s('ds_read_b128 v[36:39], v50\nds_read_b128 v[40:43], v50 offset:256')
        gl = zipl(s.gelu_pk(24, 32, 36, 4, 8, 20), s.gelu_pk(28, 32, 40, 4, 12, 22))
        ex = s.spread(c.f_gel, len(gl))
        for l in gl: s(l); ex.pop(0)()
        s(f"""v_cndmask_b32 v20, 0, v20, {sr(sM0,2)}
        v_cndmask_b32 v22, 0, v22, {sr(sM1,2)}
        v_cndmask_b32 v21, 0, v21, {sr(sM0,2)}
        v_cndmask_b32 v23, 0, v23, {sr(sM1,2)}
        v_permlane16_swap_b32 v20, v22
        v_permlane16_swap_b32 v21, v23
        v_or_b32 v20, 1, v20""")
        s.xstore([f'buffer_store_dwordx4 v[20:23], v{vL16}, {sr(rWS)}, s70 offen'])
        s.stamp(17)
        s(f"""ds_write_b128 v46, v[20:23] offset:{L_GI}
        ds_read_b64 v[8:9], v7
        ds_read_b64 v[10:11], v7 offset:256
        ds_read_b64 v[12:13], v51
        ds_read_b64 v[14:15], v51 offset:128""")
        for i in range(4): s(f'v_lshlrev_b32 v{vRES+2*i}, 16, v{8+i}\nv_and_b32 v{vRES+1+2*i}, 0xffff0000, v{8+i}')
        for i in range(4): s(f'v_pk_fma_f32 {vr(24+2*i,2)}, {vr(12+2*(i>>1),2)}, {vr(vRES+2*i,2)}, {vr(12+2*(i>>1),2)} op_sel:[1,0,0] op_sel_hi:[1,1,0]')
        if c.dack[0]: s.wait_vm(0)
        s.stamp(18)
        hd, td = s.fetch_issue([(4+j, L_GI, 4+j, 's8') for j in range(3)])
        if c.bar_a: s('s_barrier')
        if c.cs_at == 1: csl()
        s.feed(c.f_b3a, 63)
        s(f'v_mov_b32 v34, 0x3f803f80\nv_lshrrev_b32 v35, 1, v47\nv_add_u32 v35, {L_PS}, v35\ns_mul_i32 s70, s{sW}, 260\ns_add_u32 s70, s70, {L_EV + 7*2048}\nv_mov_b32 v45, s70')
        p1, p2 = s.fetch_check(hd, td, 47, L_GI, 4, 8)
        p1(); p2(); s.stamp(42)
        if s.stamps: s('v_writelane_b32 v3, s97, 62')
        if c.cs_at == 2: csl()
        s.feed(c.f_gok, 63)
        s(f's_add_u32 s8, s8, {X1 - GX}\nv_add_u32 v47, {L_XI}, v47')
        s.barrier(); s.stamp(19)
        s.gemm16(vW2, 24, 5, 2048, False, s.spread(c.f_g2, c.g2span), (8, 12, 16, 20, 172, 176, 180, 184)[:c.nb2])
        for i in range(4): s(f'v_cvt_pk_bf16_f32 v{20+i}, v{24+2*i}, v{25+2*i}')
        s('v_permlane16_swap_b32 v20, v22\nv_permlane16_swap_b32 v21, v23\nv_or_b32 v20, 1, v20')
        s.xstore([f'buffer_store_dwordx4 v[20:23], v{vL16}, {sr(rWS)}, s71 offen'])
        s.stamp(20)
        s(f'ds_write_b128 v46, v[20:23] offset:{L_XI + 28672}')
        s('v_dot2_f32_bf16 v32, v20, v34, 0\nv_dot2_f32_bf16 v33, v20, v20, 0')
        for i in (21, 22, 23): s(f'v_dot2_f32_bf16 v32, v{i}, v34, v32\nv_dot2_f32_bf16 v33, v{i}, v{i}, v33')
        s(f"""v_mov_b32 v49, 0
        v_mov_b32 v50, 0
        v_mov_b32 v51, 0
        v_add_u32 v6, {L_XI}, v{vL16}
        s_lshl_b32 s70, s{sW}, 11
        s_add_u32 s70, s70, {L_HID}
        v_add_u32 v7, s70, v{vL16}
        v_add_u32 v44, {L_HID}, v{vL16}
        ds_write_b64 v35, v[32:33]
        s_mov_b64 exec, 1
        ds_write_b32 v45, v45
        s_mov_b64 exec, -1""")
        for i in range(8): s(f'v_add_f32 v{vRES+i}, v{vRES+i}, v{24+i}')
        if c.dack[1]: s.wait_vm(0)
        s.stamp(21)
        hd, td = s.fetch_issue([(7, L_XI + 7168*j, 9, 7168*j) for j in range(4)])
        s(f'''v_pk_add_f32 v[164:165], v[164:165], v[166:167]
        v_add_f32 v168, v168, v170
        v_pk_add_f32 v[164:165], v[164:165], v[168:169]
        v_add_f32 v164, v164, v165
        v_mov_b32 v165, v164
        v_permlane32_swap_b32 v164, v165
        v_add_f32 v164, v164, v165
        v_cvt_pk_bf16_f32 v48, v164, v164
        v_and_b32 v165, 0xffff0000, v48
        v_sub_f32 v165, v164, v165
        v_cvt_pk_bf16_f32 v48, v164, v165''')
        p1, p2 = s.fetch_check(hd, td, 47, 0, 4, 8)
        p1(); p2(); s.stamp(43)
        if s.stamps: s('v_writelane_b32 v3, s97, 63')
        hx, tx = s.fetch_issue([(4+j, L_XI + 28672, 4+j, 's8') for j in range(3)])
        s.feed(c.f_b4a, 63)
        later = []
        for r, x in ((12, 1), (15, 0)):
            later.append(f"""s_xor_b32 s69, s{sTB}, {x}
            s_mul_i32 s70, s69, 28
            s_add_u32 s70, s70, s{sCT}
            s_lshl_b32 s71, s70, 10
            s_add_u32 s{r}, s71, {GX}
            s_add_u32 s{r+1}, s71, {X1}
            s_lshl1_add_u32 s{r+2}, s71, {PX}
            s_lshl_b32 s69, s69, 5
            s_add_u32 s69, s69, s{sCT}
            s_lshl2_add_u32 s{18+x}, s69, {F7}""")
        later.append(f"""s_xor_b32 s72, s{sTB}, 1
        s_lshl_b32 s72, s72, 5
        s_lshr_b32 s74, s{sCT}, 2
        s_add_u32 s72, s72, s74
        s_lshl2_add_u32 s72, s72, {F7}
        s_bfe_u32 s74, s{sCT}, 0x10001
        s_mul_i32 s74, s74, {F7B - F7}
        s_add_u32 s72, s72, s74""")
        later.append(f"""s_mul_i32 s74, s{sTB}, 28
        s_lshr_b32 s22, s{sCT}, 2
        s_add_u32 s74, s74, s22
        s_lshl_b32 s74, s74, 10
        s_and_b32 s22, s{sCT}, 1
        s_lshl_b32 s71, s22, 21
        s_add_u32 s71, s71, s74
        s_add_u32 s71, s71, {GX}
        s_lshl_b32 s22, s22, 10
        s_lshl1_add_u32 s74, s74, s22
        s_add_u32 s74, s74, {PX}
        s_bitcmp1_b32 s{sCT}, 1
        s_cselect_b32 s74, s71, s74
        s_cselect_b32 s22, 7, 14
        s_lshl_b32 s22, s22, 10
        s_lshl1_add_u32 s75, s22, s74
        s_sub_u32 s22, s22, 1024
        v_lshrrev_b32 v28, 5, v{vL}
        v_mad_u32_u24 v5, v28, s22, v5
        s_mul_i32 s76, s{sTB}, {32*896}
        s_lshl_b32 s77, s{sCT}, 5
        s_add_u32 s76, s76, s77
        s_mov_b32 s{rX}, s{sOUT}
        s_mov_b32 s{rX+1}, s{sOUT+1}
        s_mov_b32 s{rX+2}, {2048*896}
        s_mov_b32 s{rX+3}, 0x20000""")
        AC, ST, A4 = (180, 164), (vST3, 160), ((112, 128), (180, 144))
        seq = []
        gp, gd = c.gp, c.gd
        for t, a, b in ((0, 0, gp), (1, 0, gd), (0, gp, 28), (1, gd, 28)): seq += [(vW3 + 4*k, AC[t], k == 0, (6, 28672*t + 1024*k)) for k in range(a, b)]
        use0 = lambda k: k if k < gp else k + gd
        e0 = 27 + gd
        for t in range(2):
            for j in range(2):
                prs = [(w, ctl) for w in range(7) for ctl in range(2)]
                if j == 1: prs = [(w, ctl ^ t) for ctl in range(2) for w in range(7)]
                seq += [((vW4A + 4*(2*w + ctl), vW4B + 4*(7*ctl + w))[j], A4[t][ctl], j == 0 and w == 0, (44, 14336*t + 1024*(2*w + j))) for w, ctl in prs]
        reads = []; ridx = []
        for n, e in enumerate(seq):
            if not reads or reads[-1][0] != e[3]: reads.append((e[3], n))
            ridx.append(len(reads) - 1)
        nb = 4
        rat = {}
        for r, (key, n) in enumerate(reads):
            free = max([m for m in range(112) if ridx[m] == r - nb], default=-1)
            rat[r] = max(free, n - c.pd)
        X = {i: [] for i in range(-1, 113)}
        def place(items, a, b):
            bu = c.burst
            for k, it in enumerate(items):
                p = a + (k * (b - a + 1)) // len(items)
                X[min(b, p + (bu - 1 - (p - a) % bu))].append(it)
        I = lambda t: (lambda: s(t))
        def gelu(t, h):
            acc, st, o, G = AC[t] + 8*h, ST[t], [], c.ggrp
            for j in range(0, 8, G):
                R = range(G); T = 24 + j
                o += [f'v_mul_f32 v{T+i}, v{acc+j+i}, v{acc+j+i}' for i in R]
                o += [f'v_fma_f32 v{T+i}, v{T+i}, v{st+1}, v{st+2}' for i in R]
                o += [f'v_mul_f32 v{T+i}, v{T+i}, v{acc+j+i}' for i in R]
                for i in R: o += [f'v_exp_f32 v{T+i}, v{T+i}', '']
                o += [f'v_fma_f32 v{T+i}, v{T+i}, v{st+3}, v{st+3}' for i in R]
                for i in R: o += [f'v_rcp_f32 v{T+i}, v{T+i}', '']
                o += [f'v_mul_f32 v{T+i}, v{T+i}, v{acc+j+i}' for i in R]
                o += [f'v_cvt_pk_bf16_f32 v{32+(j+i)//2}, v{T+i}, v{T+i+1}' for i in range(0, G, 2)]
            o.append(f'ds_write_b128 v7, v[32:35] offset:{14336*t + 1024*h}\nds_write_addtid_b32 v44 offset:{L_EV - 32768 + 2048*(2*t + h)}')
            return [I(x) for x in o]
        def sync(at, k, st):
            rdl = f'ds_read_b32 v4, v46 offset:{2048*k}'
            def chk():
                spin, back = s.lab('ls'), s.lab('lb')
                s(f's_cbranch_vccnz {spin}')
                s.label(back); s.stamp(st)
                s.ool.append(f'{spin}:\n    s_mov_b32 s97, 0\n{spin}a:\n    {rdl}\n    s_add_u32 s97, s97, 1\n    s_cmp_gt_u32 s97, {SPIN*8}\n    s_waitcnt lgkmcnt(0)\n    s_cbranch_scc1 {back}\n'
                             f'    v_cmp_eq_u32 vcc, 0, v4\n    s_nop 1\n    s_cbranch_vccz {back}\n    s_sleep 1\n    s_branch {spin}a\n')
            X[at - c.sd].append(I(rdl)); X[at].insert(0, I('v_cmp_eq_u32 vcc, 0, v4')); X[at].append(chk)
        hs = {}
        def blk(base, k): return f's{base + min(k ^ 2, 2)} offen offset:{1024 * (k == 1)}'
        def fin(t, ctl, h, pk, last=False):
            acc = A4[t][ctl] + 8*h
            def f():
                if t == 1:
                    un = A4[0][ctl] + 8*h
                    if last:
                        for i in range(0, 8, 2): s(f'v_pk_add_f32 {vr(acc+i,2)}, {vr(acc+i,2)}, {vr(un+i,2)}')
                    else:
                        for i in range(8): s(f'v_add_f32 v{acc+i}, v{acc+i}, v{un+i}')
                for i in range(4): s(f'v_cvt_pk_bf16_f32 v{pk+i}, v{acc+2*i}, v{acc+2*i+1}')
                s(f'v_or_b32 v{pk}, 1, v{pk}' if t else f'v_and_b32 v{pk}, -2, v{pk}')
                s.xstore([f'buffer_store_dwordx4 {vr(pk)}, v{vL16}, {sr(rWS)}, {blk(12 + 3*t, 2*ctl + h)}'])
                hs[t, ctl] = s.vm[-1][0]
            return f
        def stage1(ctl, at):
            fo = ctl * (F7B - F7)
            def flag():
                s(f'v_mov_b32 v45, s{sTAG}\ns_add_u32 s69, s18, {fo}')
                s.wait(hs[0, ctl]); s('s_mov_b64 exec, 1')
                s.xstore([f'buffer_store_dword v45, off, {sr(rWS)}, s69'])
                s('s_mov_b64 exec, -1')
            ld = [f'buffer_load_dwordx4 {vr(164 + 8*ctl + 4*h)}, v{vL16}, {sr(rWS)}, {blk(15, 2*ctl + h)} sc1' for h in range(2)]
            def fetch():
                if ctl == 0: s.poll_check(47, None, 's70'); s.stamp(45)
                for l in ld: s(l)
            def check():
                ck = ['v_or_b32 v4, v172, v176', 'v_and_b32 v4, 1, v4', 'v_cmp_eq_u32 vcc, 1, v4']
                retry, back = s.lab('sr'), s.lab('sb')
                for l in ck: s(l)
                s(f's_mov_b32 s97, 0\ns_cbranch_vccnz {retry}'); s.label(back); s.stamp(46)
                s.ool.append(f'{retry}:\n' + ''.join(f'    {l}\n' for l in ld) + f'    s_add_u32 s97, s97, 1\n    s_cmp_gt_u32 s97, {SPIN}\n    s_waitcnt vmcnt(0)\n    s_cbranch_scc1 {back}\n'
                             + ''.join(f'    {l}\n' for l in ck) + f'    s_nop 1\n    s_cbranch_vccnz {retry}\n    s_branch {back}\n')
            X[at[0]].append(fin(0, ctl, 0, 108)); X[at[1]].append(fin(0, ctl, 1, 196))
            X[at[2]].append(flag)
            if ctl == 0: X[at[3]].append(lambda: (s(f's_add_u32 s70, s19, {fo}'), s.poll_issue(47, None, 's70')))
            X[at[4]].append(fetch)
            if ctl == 1: X[at[5]].append(check)
            un = []
            for i in range(8): un += [f'v_lshlrev_b32 v{A4[0][ctl] + 2*i}, 16, v{164 + 8*ctl + i}', f'v_and_b32 v{A4[0][ctl] + 2*i + 1}, 0xffff0000, v{164 + 8*ctl + i}']
            place([I(x) for x in un], at[5], min(at[5] + 3, 111))
        bsave, c.burst = c.burst, 1
        ch = []
        for t in later:
            cur = []
            for l in t.split('\n'):
                if len(cur) >= 5 and 'cselect' not in l: ch.append('\n'.join(cur)); cur = []
                cur.append(l)
            ch.append('\n'.join(cur))
        assert not any(x.strip().split('\n')[-1].strip().startswith(('s_cmp', 's_bitcmp')) for x in ch)
        place([I(x) for x in ch], 8, 26)
        if s.wn < 56:
            w3e = c.w3e if c.w3e is not None else max(0, s.wn - 28 - 5)
            n3 = 56 - s.wn
            assert all((k * (w3e + 1)) // n3 < use0(s.wn - 28 + k) for k in range(n3)) and w3e < c.w4a[0]
            place([s.feed1] * n3, 0, w3e)
        if s.wn < 70: place([s.feed1] * (70 - max(s.wn, 56)), c.w4a[0], c.w4a[1])
        place([s.feed1] * 14, c.w4b[0], c.w4b[1])
        c.burst = bsave
        first = lambda n: rat[ridx[n]] - 1
        x1st = first(gp if gd else 28)
        assert c.x_at + 2 <= x1st - c.sd
        sync(x1st if gd else x1st - 3, 5, 49)
        sync(e0 - 3, 4, 23)
        X[e0 - 3].append(I(f'ds_read_b128 {vr(ST[0])}, v44 offset:{L_ST3 - L_HID}'))
        X[e0].append(I(f'v_mfma_f32_32x32x16_bf16 {vr(AC[0],16)}, v[48:51], {vr(ST[0])}, {vr(AC[0],16)}'))
        assert c.q[0] > e0
        q = c.q
        for k in range(4): place(gelu(k >> 1, k & 1), q[k], q[k+1] - 1)
        X[55].append(I(f'ds_read_b128 {vr(ST[1])}, v44 offset:{L_ST3 - L_HID + 1024}'))
        X[57].append(I(f'v_mfma_f32_32x32x16_bf16 {vr(AC[1],16)}, v[48:51], {vr(ST[1])}, {vr(AC[1],16)}'))
        for k in range(4):
            assert first(56 + 14*k) - c.sd >= q[k+1] - 1, (k, first(56 + 14*k))
            sync(first(56 + 14*k), k, (25, 26, 27, 41)[k])
        assert c.st0[4] >= q[3] and c.st1[4] >= q[4] and c.st1[5] > first(98) and c.st1[5] + 3 < 107 and c.st1[2] < c.fpoll
        stage1(0, c.st0); stage1(1, c.st1)
        X[107].append(fin(1, 1, 0, 108)); X[109].append(fin(1, 1, 1, 196)); X[112] += [fin(1, 0, 0, 24, c.lastpk), fin(1, 0, 1, 28, c.lastpk)]
        X[58].append(I(f'global_load_dwordx4 v[48:51], v{vL16}, s[94:95] offset:-1024'))
        X[q[4]].append(I(f'v_lshlrev_b32 v6, 3, v{vL}\nglobal_load_dwordx2 v[6:7], v6, s[94:95] offset:-1536'))
        X[c.fpoll].append(lambda: s.poll_issue(45, 7, 's72')); X[c.fpoll + c.fpd].append(lambda: s.poll_check(45, 7, 's72'))
        def rd(r): (va, off), _ = reads[r]; s(f'ds_read_b128 {vr(8+4*(r%nb))}, v{va} offset:{off}')
        p1, p2 = s.fetch_check(hx, tx, 47, 28672, 4, 24, f's_mov_b32 m0, s21')
        X[c.x_at].insert(0, p1); X[c.x_at + 2].append(lambda: (p2(), s(f'ds_write_addtid_b32 v44 offset:{L_EV - 32768 + 2048*5}')))
        s(f'v_and_b32 v46, 7, v{vL}\nv_mul_u32_u24 v46, 260, v46\nv_add_u32 v46, {L_EV}, v46\ns_lshl_b32 s21, s{sW}, 8\ns_add_u32 s21, s21, 32768\ns_mov_b32 m0, s21')
        s.pin(c.pins[3])
        s.barrier(); s.stamp(22)
        for r in range(len(reads)):
            if rat[r] < 0: rd(r)
        LS = [10, 26, 78, 80, 40, 42, 44, 46, 62, 64, 66, 88, 90, 92, 24]
        for n, (W, acc, fst, key) in enumerate(seq):
            if c.lst and n % 8 == 0: s.raw(f'    s_mem{"real" if c.lst == 2 else ""}time s[{LS[n//8]}:{LS[n//8]+1}]')
            s.fair(n, c.fm)
            s(f'v_mfma_f32_32x32x16_bf16 {vr(acc,16)}, {vr(W)}, {vr(8+4*(ridx[n]%nb))}, {0 if fst else vr(acc,16)}')
            for r in range(len(reads)):
                if rat[r] == n: rd(r)
            s.run(X[n])
        if c.lst: s.raw(f'    s_mem{"real" if c.lst == 2 else ""}time s[24:25]')
        s.run(X[112])
        if c.lst:
            s.wait_lg(0, force=True)
            for i, r in enumerate(LS): s(f'v_writelane_b32 v3, s{r}, {1 + i}')
        s.stamp(28)
        if c.dack[2]: s.wait_vm(0)
        s.stamp(29)
        ld = [f'buffer_load_dwordx4 {vr(52+8*u+4*t)}, v5, {sr(rWS)}, s{74+u} offen offset:{256*t} sc1' for u in range(2) for t in range(2)]
        ck = ['v_and_b32 v8, v52, v56', 'v_and_b32 v9, v60, v64', 'v_and_b32 v8, 1, v8', 'v_and_b32 v8, v8, v9', 'v_cmp_eq_u32 vcc, 0, v8']
        retry, back = s.lab('er'), s.lab('eb')
        for l in ld + ck: s(l)
        s(f's_mov_b32 s97, 0\ns_cbranch_vccnz {retry}'); s.label(back)
        s.ool.append(f'{retry}:\n' + ''.join(f'    {l}\n' for l in ld) + f'    s_add_u32 s97, s97, 1\n    s_cmp_gt_u32 s97, {SPIN}\n    s_waitcnt vmcnt(0)\n    s_cbranch_scc1 {back}\n'
                     + ''.join(f'    {l}\n' for l in ck) + f'    s_nop 1\n    s_cbranch_vccnz {retry}\n    s_branch {back}\n')
        s.stamp(30)
        for u in range(2):
            for t in range(2): s(f'v_mfma_f32_16x16x32_bf16 {vr(vRES+4*t)}, v[48:51], {vr(52+8*u+4*t)}, {vr(vRES+4*t)}')
        for i in range(4): s(f'v_cvt_pk_bf16_f32 v{20+i}, v{vRES+2*i}, v{vRES+1+2*i}')
        s('v_permlane16_swap_b32 v20, v22\nv_permlane16_swap_b32 v21, v23')
        s(f'buffer_store_dwordx4 v[20:23], v6, {sr(rX)}, s76 offen')
        s.stamp(31)

    def s_mfma(s, addrs, acc, kstride, base, nk=14):
        seq = [(ks, t) for ks in range(nk) for t in range(3)]
        nb = 8
        def rd(i): ks, t = seq[i]; s(f'ds_read_b128 {vr(52+4*(i%nb))}, v{addrs+t} offset:{base + ks*kstride}')
        s('s_mov_b32 exec_lo, 0x77777777\ns_mov_b32 exec_hi, 0x77777777')
        for i in range(nb - 1): rd(i)
        for i, (ks, t) in enumerate(seq):
            if i + nb - 1 < len(seq): rd(i + nb - 1)
            s(f'v_mfma_f32_16x16x32_bf16 {vr(acc+4*t)}, {vr(52+4*(i%nb))}, {vr(52+4*(i%nb))}, {vr(acc+4*t) if ks else 0}')
    def s_wave(s, hst):
        s.comment('S wave: statistics, polling, DMA')
        s.pin(s.cfg.pins[4])
        s('s_setprio 2')
        s(f'''s_and_b32 s70, s2, 0xc7
        s_lshl_b32 s70, s70, 4
        s_mul_i32 s71, s{sXCD}, {FCP}
        s_add_u32 s70, s70, s71
        s_add_u32 s70, s70, {FA}
        v_and_b32 v44, 7, v{vL}
        v_lshlrev_b32 v44, 7, v44
        buffer_load_dword v48, v44, {sr(rWS)}, s70 offen sc1''')
        def ftouch():
            s(f'''s_lshl_b32 s72, s{sTB}, 7
            s_add_u32 s72, s72, {F5}
            s_lshl2_add_u32 s4, s{sTB}, s{sQ}
            s_lshl_b32 s4, s4, 9
            s_add_u32 s4, s4, {ST1}
            s_mov_b32 m0, {L_JUNK}
            v_min_u32 v45, 2, v{vL}
            v_lshlrev_b32 v45, 13, v45
            v_and_b32 v47, 0x180, v7
            buffer_load_dword v45, {sr(rWS)}, s72 offen sc1 lds
            buffer_load_dword v47, {sr(rWS)}, s4 offen sc1 lds''')
            if s.cfg.etouch:
                s(f's_mul_i32 s70, s{sTB}, 28\ns_add_u32 s70, s70, s{sCT}\ns_lshl_b32 s70, s70, 11\ns_add_u32 s70, s70, {PX - 7*2048}\ns_add_u32 s71, s70, 7168\ns_mov_b32 exec_hi, 0x00ffffff')
                s(f'buffer_load_dword v7, {sr(rWS)}, s70 offen sc1 lds\nbuffer_load_dword v7, {sr(rWS)}, s71 offen sc1 lds\ns_mov_b32 exec_hi, -1')
        def setup():
            for i in range(32): s(f'v_mov_b32 v{52+i}, 0x3f803f80')
            s(f'''v_and_b32 v44, 3, v{vL}
        v_bfe_u32 v45, v{vL}, 2, 2
        v_mad_u32_u24 v40, v45, 3, v44
        v_lshrrev_b32 v41, 4, v{vL}''')
            for t in range(3):
                s(f'v_add_u32 v46, {12*t}, v40')
                s.pos(84 + t, 46, 47)
                s(f'v_mul_u32_u24 v47, 768, v41\nv_add_u32 v{84+t}, v{84+t}, v47\nv_add_u32 v{84+t}, {L_HI}, v{84+t}')
            s(f'''v_sub_u32 v45, v45, v41
        v_and_b32 v45, 3, v45
        v_cmp_eq_u32 s[78:79], 1, v45
        v_cmp_eq_u32 s[80:81], 2, v45
        v_mad_u32_u24 v40, v41, 3, v44
        v_mad_u32_u24 v40, v45, 12, v40
        v_lshlrev_b32 v42, 4, v40
        v_add_u32 v42, {L_STA}, v42
        v_lshlrev_b32 v43, 3, v40
        v_add_u32 v43, {L_STB}, v43
        v_lshlrev_b32 v6, 2, v{vL}
        v_lshlrev_b32 v7, 7, v{vL}
        v_cmp_ne_u32 vcc, s{sTX}, v48
        v_mov_b32 v46, {L_FAST}
        s_cmp_eq_u64 vcc, 0
        s_cselect_b32 s{sFAST}, 1, 0
        v_mov_b32 v45, s{sFAST}
        ds_write_b32 v46, v45
        v_and_b32 v38, 7, v{vL}
        v_mul_u32_u24 v38, 260, v38
        v_add_u32 v38, {L_EV}, v38
        v_lshlrev_b32 v46, 8, v{vL}
        v_and_b32 v46, 0x3800, v46
        v_add_u32 v46, v46, v38
        s_mov_b32 vcc_lo, 0x80800080
        s_mov_b32 vcc_hi, 0x8000807f
        v_cndmask_b32 v45, 0, v38, vcc
        ds_write_b32 v46, v45''')
        if not s.cfg.searly: setup()
        s(f'''s_and_b32 s70, s{sQ}, 1
        s_mul_i32 s71, s70, 9
        s_lshl3_add_u32 s71, s{sTB}, s71
        s_sub_u32 s71, s71, 1
        s_max_i32 s71, s71, 0
        s_min_i32 s71, s71, 511
        s_lshr_b32 s88, s71, 3
        s_mul_i32 s88, s88, 28672
        s_and_b32 s71, s71, 7
        s_lshl4_add_u32 s88, s71, s88
        s_add_u32 s88, s88, {X1}
        s_mul_i32 s70, s70, 384
        s_add_u32 s70, s70, {L_HI + 128}
        v_min_u32 v5, 55, v{vL}
        v_lshlrev_b32 v4, 9, v5
        v_mul_u32_u24 v5, 768, v5
        v_add_u32 v5, s70, v5''')
        s.wait(hst); s.hint_wait()
        s.stamp(13)
        s.h2(ftouch, setup if s.cfg.searly else (lambda: None), halo=True)
        s(f'v_cmp_eq_u32 s[92:93], 1, v44\nv_cmp_eq_u32 s[94:95], 2, v44\ns_mov_b32 s96, {INVD}\nv_mov_b32 v49, {fh(1 + 1e-5)}')
        s(f'''s_lshl2_add_u32 s70, s{sTB}, s{sQ}
        s_lshl_b32 s71, s70, 4
        s_add_u32 s71, s71, {FN}
        v_and_b32 v45, 1, v{vL}
        v_lshlrev_b32 v45, 3, v45
        v_sub_u32 v45, v44, v45
        s_lshl2_add_u32 s72, s{sTB}, 4
        v_add_u32 v45, s72, v45
        v_mov_b32 v47, s70
        v_cmp_gt_u32 vcc, 0x100, v45
        v_mov_b32 v36, s{sTAG}
        s_mov_b32 s72, {FN}
        v_cndmask_b32 v45, v47, v45, vcc
        s_xor_b32 s70, s70, 4
        v_writelane_b32 v45, s70, 4
        v_lshlrev_b32 v37, 4, v45''')
        s.barrier(); s.stamp(15)
        s(f's_mov_b64 exec, 1\nbuffer_store_dword v36, off, {sr(rWS)}, s71 sc1')
        s.s_mfma(84, 24, 3072, 0)
        s.stamp(39)
        s.stats_tail(24, 43, 42, 0)
        if s.cfg.evp: s.wait_lg(0)
        if s.cfg.evb2: s(f's_mov_b64 exec, 0x80\nds_write_b32 v38, v38 offset:{6*2048}\ns_mov_b64 exec, -1')
        else: s('s_mov_b64 exec, -1'); s.barrier()
        s.stamp(16)
        s.poll(4, 37, 's72', 31, 0, sleep=4)
        def lwait(k):
            l, l2, l3 = s.lab('tw'), s.lab('tx'), s.lab('ty')
            s(f's_mov_b32 s97, 0\ns_branch {l2}'); s.label(l); s(f's_sleep 1\ns_add_u32 s97, s97, 1\ns_cmp_gt_u32 s97, {SPIN*8}\ns_cbranch_scc1 {l3}'); s.label(l2)
            s(f'ds_read_b32 v4, v38 offset:{2048*k}\nv_cmp_eq_u32 vcc, 0, v4\ns_cbranch_vccnz {l}'); s.label(l3)
        post = lambda k: s(f's_mov_b64 exec, 0x80\nds_write_b32 v38, v38 offset:{2048*k}\ns_mov_b64 exec, -1')
        def touch():
            s(f'''s_mul_i32 s70, s{sTB}, 28
            s_mul_i32 s71, s{sQ}, 7
            s_add_u32 s70, s70, s71
            s_lshl_b32 s71, s70, 10
            s_add_u32 s71, s71, {GX}
            s_add_u32 s69, s71, {X1 - GX}
            s_lshl_b32 s70, s70, 11
            s_add_u32 s70, s70, {PX}
            s_mov_b32 m0, {L_JUNK}
            s_mov_b32 exec_hi, 0x00ffffff''')
            rf = f'buffer_load_dword v7, {sr(rWS)}, s71 offen sc1 lds\nbuffer_load_dword v7, {sr(rWS)}, s69 offen sc1 lds'
            if s.cfg.refresh == 1: s(rf)
            for i in range(2):
                k = (s.cfg.touch_at, s.cfg.touch2)[i]
                if k < 4: lwait(k)
                s(f'buffer_load_dword v7, {sr(rWS)}, s70 offen sc1 lds\ns_add_u32 s70, s70, 7168')
            if s.cfg.refresh == 2: s(rf)
            s('s_mov_b32 exec_hi, -1')
        s(f"""v_lshlrev_b32 v39, 3, v{vL}
        v_add_u32 v39, {L_PS}, v39
        v_and_b32 v40, 0x1f0, v{vL16}
        v_lshrrev_b32 v41, 5, v{vL}
        v_lshl_add_u32 v42, v41, 10, v40
        v_add_u32 v42, {L_ST3}, v42
        v_xor_b32 v41, s{sTB}, v41
        v_xor_b32 v41, 1, v41
        v_lshl_add_u32 v40, v41, 11, v40
        v_mov_b32 v10, s{sTAG}
        v_mov_b32 v11, s{sTAG}
        s_mov_b32 s5, {ST1}""")
        for i in range(1 + s.cfg.bar_a): s('s_barrier')
        lwait(7)
        for i in range(7): s(f'ds_read_b64 {vr(12+2*i,2)}, v39 offset:{512*i}')
        for h in range(2): s(f'v_add_f32 v{12+h}, v{12+h}, v{14+h}\nv_add_f32 v{16+h}, v{16+h}, v{18+h}')
        for h in range(2): s(f'v_add_f32 v{20+h}, v{20+h}, v{22+h}\nv_add_f32 v{12+h}, v{12+h}, v{16+h}')
        for h in range(2): s(f'v_add_f32 v{20+h}, v{20+h}, v{24+h}')
        for h in range(2): s(f'v_add_f32 v{8+h}, v{12+h}, v{20+h}\nv_add_f32 v{12+h}, v{12+h}, v{20+h}')
        for h in range(2): s(f'v_permlane32_swap_b32 v{8+h}, v{12+h}')
        for h in range(2): s(f'v_add_f32 v{8+h}, v{8+h}, v{12+h}')
        s('s_mov_b32 exec_hi, 0')
        s.xstore([f'buffer_store_dwordx4 v[8:11], v{vL16}, {sr(rWS)}, s4 offen'])
        s('s_mov_b32 exec_hi, -1\ns_barrier')
        s.stamp(22)
        ld = [f'buffer_load_dwordx4 {vr(52+4*j)}, v40, {sr(rWS)}, s5 offen offset:{512*j} sc1' for j in range(4)]
        ck = [f'v_xor_b32 v{54+4*j}, s{sTAG}, v{54+4*j}' for j in range(4)] + ['v_or3_b32 v54, v54, v58, v62', 'v_or_b32 v54, v54, v66', 'v_cmp_ne_u32 vcc, 0, v54']
        retry, back = s.lab('xr'), s.lab('xb')
        for l in ld + ck: s(l)
        s(f's_mov_b32 s97, 0\ns_cbranch_vccnz {retry}'); s.label(back)
        s.ool.append(f'{retry}:\n' + ''.join(f'    {l}\n' for l in ld) + f'    s_add_u32 s97, s97, 1\n    s_cmp_gt_u32 s97, {SPIN}\n    s_waitcnt vmcnt(0)\n    s_cbranch_scc1 {back}\n'
                     + ''.join(f'    {l}\n' for l in ck) + f'    s_nop 1\n    s_cbranch_vccnz {retry}\n    s_branch {back}\n')
        for h in range(2): s(f'v_add_f32 v{52+h}, v{52+h}, v{56+h}\nv_add_f32 v{60+h}, v{60+h}, v{64+h}')
        s('v_add_f32 v27, v52, v60\nv_add_f32 v24, v53, v61')
        s.stats_tail(24, None, 42, 0)
        s.wait_lg(0); post(4)
        s.stamp(23)
        lwait(5)
        s(f's_lshl_b32 s72, s{sCL}, 8\ns_add_u32 s72, s72, {F5 + 28}\ns_lshl_b32 s73, s{sM}, 5\ns_add_u32 s73, s73, s72\nv_lshlrev_b32 v37, 5, v{vL}')
        s.flag(73)
        s.poll(4, 37, 's72', '0xff', 0, sleep=2)
        post(1)
        def heat(n):
            s('s_setprio 0')
            for i in range(n):
                s(f'v_mfma_f32_32x32x16_bf16 v[100:115], {vr(52+4*(i%8))}, {vr(52+4*((i+3)%8))}, {"v[100:115]" if i % 8 else 0}')
                if s.cfg.x_heat[1]: s(f's_nop {s.cfg.x_heat[1] - 1}')
        if s.cfg.x_heat: heat(s.cfg.x_heat[0])
        s.stamp(25)
        if s.cfg.touch_at != 5: touch()
        if s.cfg.x_heat: heat(s.cfg.x_heat[0])
        s.cond('s_cmp_lg_u32 s2, 0', lambda: s(f'v_mov_b32 v4, s{sTAG}\ns_mov_b32 s70, {EP}\ns_mov_b64 exec, 1\nbuffer_store_dword v4, off, {sr(rWS)}, s70 sc1\ns_mov_b64 exec, -1'))
        s.wait_vm(0); s.stamp(28)

def build(stamps=False, cfg=None):
    s = K(stamps, cfg or Cfg())
    c = s.cfg
    s.entry(); s.setup(); s(s.scalars())
    if c.dma_at == -1: s(f's_cmp_lt_u32 s43, 2\ns_cmov_b32 s{rW+2}, {448*896}'); s.pack_dma()
    if c.sb_at == 0: s.setup_b()
    s.stamp(34); s.ln()
    s(f's_cmp_ge_u32 s{sI}, 28'); s.flush_hazards(); s('s_cbranch_scc1 Lnonconv')
    st = s.state()
    if c.clr_at is None: s.clear()
    if c.sb_at == 1: s.setup_b()
    s.stamp(33)
    if c.dma_at == 0: s.pack_dma()
    if c.fa_at == -1: s.publish_a()
    s.kgen(); hst = s.conv()
    s.label('Ljoin')
    s(f'v_mov_b32 v4, v21\nv_mov_b32 v5, v22\ns_cmp_eq_u32 s{sW}, 7'); s.flush_hazards(); s('s_cbranch_scc1 Lsw')
    st2 = s.state()
    s.g_wave(hst); s.dump_stamps(); s('s_endpgm')
    s.label('Lsw'); s.set_state(st2)
    s.s_wave(hst); s.dump_stamps()
    s.label('Lend'); s('s_endpgm')
    s.label('Lnonconv'); s.set_state(st); s.wn = 0
    s.nc = 100; s.nonconv(); s.flush_hazards(); s('s_branch Ljoin')
    name = NAME + '_kernel'
    txt = f'''; @launch grid=(256,1,1) block=(512,1,1) lds={LDS_BYTES}
.amdgcn_target "amdgcn-amd-amdhsa--gfx950"
.text
.globl {name}
.p2align 8
.type {name},@function
{name}:
''' + s.text() + ''.join(s.ool) + tap_table() + f'''.section .rodata,"a"
.p2align 6
.amdhsa_kernel {name}
  .amdhsa_next_free_vgpr 256
  .amdhsa_next_free_sgpr 102
  .amdhsa_accum_offset 256
  .amdhsa_group_segment_fixed_size 0
  .amdhsa_kernarg_size 120
  .amdhsa_user_sgpr_count 2
  .amdhsa_user_sgpr_kernarg_segment_ptr 1
  .amdhsa_system_sgpr_workgroup_id_x 1
.end_amdhsa_kernel
'''
    size, syms = code_info(txt.replace('@CODE_BYTES@', '1000').replace('@TAB_OFF@', '1000'))
    return txt.replace('@CODE_BYTES@', str(syms['tap_table'] + 2048 + 4224 - syms['Lpc'] - 4)).replace('@TAB_OFF@', str(syms['tap_table'] - syms['Lpc']))
def tap_table():
    RB = {8: 0, 4: 16, 2: 24, 6: 28, 1: 32, 3: 34, 5: 36, 7: 38}
    def rnd(l):
        sh = max(0, l.bit_length() - 8)
        if not sh: return l
        q, r = l >> sh, l & ((1 << sh) - 1); half = 1 << (sh - 1)
        return (q + (r > half or (r == half and q & 1))) << sh
    v = []
    for i in range(2056):
        l = 2047 - i
        if l < 0: e = 768
        elif l == 0: e = 640
        else: p = rnd(l); e = RB[((p - 1) & 7) + 1] * 16 + ((p - 1) >> 3)
        v.append(e * 16)
    v += [0] * 56
    lane = []
    for l in range(64):
        n, g = l & 15, l >> 4; tb = 2*n + (g >> 1); rr, cc = (l >> 2) & 3, l & 3
        bb = lambda c_: 32*c_ + 16*((c_ >> 3) & 1)
        lane.append([4*(4*g - (n >> 1)) + 28 + KEO*(1 - (n & 1)), bb(30 + 2*n + g), bb(26 + 2*n + g), (l >> 1)*896 + 16*((l ^ g) & 1),
                     tb*64 + (g & 1)*32, (n >> 1)*1792 + 4*(n & 1) + g, bb(tb) + 8*(g & 1), (g*64 + n)*16 + 4*((l >> 3) & 3),
                     n*KGP + 16*g, (8*g + rr)*64 + cc*8, (8*(g >> 1) + rr)*64 + (g & 1)*32 + (cc & 1)*16 + (cc >> 1)*8,
                     (l >> 2)*896 + cc*16, (l >> 2)*3584 + cc*16, rr*LNP + 32*g + 8*cc, rr*KEO + 16*(l & 1), 14*min(l & 31, 27)])
    pk = []
    for b in range(256):
        for w in range(8):
            U = 256*w + 32*(b & 7) + (b >> 3)
            if U < 392: m, V = divmod(U, 196); kb, cb = divmod(V, 14); src = kb*32*896; d0 = 392*m + 28*cb + kb; d1 = d0 + 14
            elif U < 1176: m = 2; kb, cb = divmod(U - 392, 56); src = kb*32*3584; d0 = 784 + 28*cb + 2*kb; d1 = d0 + 1
            elif U < 1960: m = 3; kb, cb = divmod(U - 1176, 14); src = kb*32*896; d1 = 2352 + ((kb//7)*7 + (cb >> 1))*28; d0 = d1 + 2*(kb % 7) + (cb & 1); d1 += 14 + 7*(cb & 1) + kb % 7
            else: m, cb, src, d0, d1 = 4, 0, 0, 0, 0
            pk += [(m << 24) | (src + 64*cb), d0 | (d1 << 16)]
    t = '.p2align 7\n.type tail_table,@object\ntail_table:\n'
    for l in range(64): t += f'.long {(l & 31)*896 + (l >> 5)*16}, {(l & 3)*28}\n'
    for l in range(64): t += '.short ' + ', '.join('0x3f80' if (l & 15) == 8*((l >> 4) & 1) + j else '0' for j in range(8)) + '\n'
    t += '.size tail_table, 1536\n.type tap_table,@object\ntap_table:\n'
    for h in range(2):
        for l in range(64): t += '.short ' + ', '.join(map(str, lane[l][8*h:8*h+8])) + '\n'
    for i in range(0, 2112, 8): t += '.short ' + ', '.join(map(str, v[i:i+8])) + '\n'
    for i in range(0, 4096, 8): t += '.long ' + ', '.join(map(str, pk[i:i+8])) + '\n'
    return t + f'.size tap_table, {2048 + 4224 + 16384}\n'
def code_info(txt):
    import subprocess, tempfile, re
    with tempfile.TemporaryDirectory() as d:
        open(d + '/a.s', 'w').write(txt)
        subprocess.run(['clang', '-x', 'assembler', '-target', 'amdgcn-amd-amdhsa', '-mcpu=gfx950', '-c', d + '/a.s', '-o', d + '/a.o'], check=True)
        o = subprocess.run(['llvm-readelf', '-S', '-s', d + '/a.o'], capture_output=True, text=True).stdout
        size = int(re.search(r'\.text\s+PROGBITS\s+\S+\s+\S+\s+(\S+)', o).group(1), 16)
        return size, {m.group(2): int(m.group(1), 16) for m in re.finditer(r'\d+: ([0-9a-f]{16}) .* (\S+)\n', o)}
if __name__ == '__main__':
    sys.stdout.write(build(stamps=len(sys.argv) > 1))
```

```python
import sys
sys.path.insert(0, 'gen')
import gen
base = gen.build('split')
def add(kernels, front):
    lines = base.split('\n')
    n = sum(1 for l in lines if l.startswith('; @launch'))
    L = [f'; @launch kernel={k[0]} grid=({k[1]},1,1) block=({k[2]},1,1) lds={k[3]}' for k in kernels]
    head = (L + lines[:n]) if front else (lines[:n] + L)
    rest = '\n'.join(lines[n:])
    seen = {}
    for k in kernels: seen[k[0]] = k
    code = ''.join(gen.head(k[0]) + k[4] + '    s_endpgm\n' for k in seen.values())
    rest = rest.replace('.section .rodata,"a"\n', code + '.section .rodata,"a"\n' + ''.join('.p2align 6\n' + gen.kd(k[0]) for k in seen.values()))
    return '\n'.join(head) + '\n' + rest
def rd(off, n):
    b = f"""    s_cmp_ge_u32 s2, 256
    s_cbranch_scc1 Lrd_end
    s_load_dwordx2 s[4:5], s[0:1], 112
    v_lshlrev_b32 v1, 4, v0
    s_mul_i32 s16, s2, {n*4096}
    s_add_u32 s16, s16, {off}
    s_waitcnt lgkmcnt(0)
    s_mov_b32 s8, s4
    s_mov_b32 s9, s5
    s_mov_b32 s10, 0x10000000
    s_mov_b32 s11, 0x20000
"""
    for i in range(n): b += f"    buffer_load_dwordx4 v[{4+4*i}:{7+4*i}], v1, s[8:11], s16 offen\n    s_add_u32 s16, s16, 4096\n"
    return b + "    s_waitcnt vmcnt(0)\nLrd_end:\n"
e = ('e_kernel', 256, 256, 0, '')
open('v_front4.s', 'w').write(add([e] * 4, True))
open('v_back4.s', 'w').write(add([e] * 4, False))
open('v_rd_lo.s', 'w').write(add([('r_kernel', 256, 256, 0, rd(0x4000000, 32))], True))
open('v_rd_hi.s', 'w').write(add([('r_kernel', 256, 256, 0, rd(0xE000000, 32))], True))
open('v_base.s', 'w').write(base)
def chase(slot, off, n, stride, size):
    b = f"""    s_cmp_ge_u32 s2, 1
    s_cbranch_scc1 Lrd_end
    s_load_dwordx2 s[4:5], s[0:1], {slot}
    v_mov_b32 v1, 0
    s_mov_b32 s16, {off}
    s_mov_b32 s17, {n}
    s_waitcnt lgkmcnt(0)
    s_mov_b32 s8, s4
    s_mov_b32 s9, s5
    s_mov_b32 s10, {size}
    s_mov_b32 s11, 0x20000
Lch:
    buffer_load_dword v2, v1, s[8:11], s16 offen
    s_add_u32 s16, s16, {stride}
    s_sub_u32 s17, s17, 1
    s_cmp_lg_u32 s17, 0
    s_waitcnt vmcnt(0)
    s_cbranch_scc1 Lch
Lrd_end:
"""
    return b
open('v_ch_wslo.s', 'w').write(add([('r_kernel', 1, 64, 0, chase(112, 0x4000000, 100, 4224, 0x10000000))], True))
open('v_ch_wshi.s', 'w').write(add([('r_kernel', 1, 64, 0, chase(112, 0xFE00000, 100, 4224, 0x10000000))], True))
open('v_ch_bx.s', 'w').write(add([('r_kernel', 1, 64, 0, chase(56, 0, 100, 4224, 1835008))], True))
open('v_ch_same.s', 'w').write(add([('r_kernel', 1, 64, 0, chase(56, 0, 100, 0, 1835008))], True))
open('v_ch_out.s', 'w').write(add([('r_kernel', 1, 64, 0, chase(96, 0, 100, 4224, 1835008))], True))
open('v_ch_tlb.s', 'w').write(add([('r_kernel', 1, 64, 0, chase(112, 0x3000000, 100, 0x200080, 0x10000000))], True))
def schase(off, n, stride, lanes, ld=False):
    return f"""    s_cmp_ge_u32 s2, 1
    s_cbranch_scc1 Lrd_end
    s_load_dwordx2 s[4:5], s[0:1], 112
    v_lshlrev_b32 v1, 2, v0
    v_mov_b32 v2, 0
    s_mov_b32 s16, {off}
    s_mov_b32 s17, {n}
    s_mov_b32 exec_lo, {lanes}
    s_mov_b32 exec_hi, 0
    s_waitcnt lgkmcnt(0)
    s_mov_b32 s8, s4
    s_mov_b32 s9, s5
    s_mov_b32 s10, 0x10000000
    s_mov_b32 s11, 0x20000
Lch:
    buffer_store_dword v2, v1, s[8:11], s16 offen sc1
    s_waitcnt vmcnt(0)
""" + ("    buffer_load_dword v3, v1, s[8:11], s16 offen sc1\n    s_waitcnt vmcnt(0)\n" if ld else "") + f"""    s_add_u32 s16, s16, {stride}
    s_sub_u32 s17, s17, 1
    s_cmp_lg_u32 s17, 0
    s_cbranch_scc1 Lch
Lrd_end:
"""
def bulk(off, n, rounds):
    b = f"""    s_cmp_ge_u32 s2, 256
    s_cbranch_scc1 Lrd_end
    s_load_dwordx2 s[4:5], s[0:1], 112
    v_lshlrev_b32 v1, 4, v0
    s_mul_i32 s16, s2, {n*4096}
    s_add_u32 s16, s16, {off}
    s_waitcnt lgkmcnt(0)
    s_mov_b32 s8, s4
    s_mov_b32 s9, s5
    s_mov_b32 s10, 0x10000000
    s_mov_b32 s11, 0x20000
"""
    for r in range(rounds):
        for i in range(n): b += f"    buffer_store_dwordx4 v[4:7], v1, s[8:11], s16 offen sc1\n    s_add_u32 s16, s16, 4096\n"
        b += f"    s_waitcnt vmcnt(0)\n    s_barrier\n    s_add_u32 s16, s16, {255*n*4096}\n"
    return b + "Lrd_end:\n"
open('w0.s', 'w').write(add([('r_kernel', 1, 64, 0, '')], True))
open('w1.s', 'w').write(add([('r_kernel', 1, 64, 0, schase(0x4000000, 100, 4224, 1))], True))
open('w2.s', 'w').write(add([('r_kernel', 1, 64, 0, schase(0x4000000, 100, 4224, -1))], True))
open('w3.s', 'w').write(add([('r_kernel', 1, 64, 0, schase(0x4000000, 100, 4224, -1, True))], True))
open('w4.s', 'w').write(add([('r_kernel', 1, 64, 0, schase(0x4000000, 100, 4224, 1, True))], True))
open('w5.s', 'w').write(add([('r_kernel', 256, 256, 0, bulk(0x4000000, 2, 20))], True))
```

```python
import sys, os, struct
sys.path.insert(0, os.path.dirname(os.path.abspath(__file__)))
from dsl import Asm, Ins

NAME = 'sequential_preLN__ssm_conv_s4d__mixer_s_mlp__prompt'
W1P, W2P, W3P, W4P = 0, 392 * 1024, 784 * 1024, 2352 * 1024
SM, CSP, ST1 = 0x600000, 0x700000, 0x780000
GX, X1, PX = 0xA00000, 0xC00000, 0x1000000
FL = 0x2000000
F3, F4, F5, F7, F7B = FL, FL + 0x2000, FL + 0x4000, FL + 0x6000, FL + 0x8000
FH, FN, EP, FA, FB = FL + 0x1A000, FL + 0x1E000, FL + 0x20000, FL + 0x30000, FL + 0x40000
FC = FL + 0x50000
FCP = 4352
TS = 0x3000000
WS_BYTES = 0x4000000
L_LN, LNP = 0, 960
L_PK = 119296
L_KG, KGP = 31744, 288
L_Y = 0
L_KT, KTSZ = 68608, 12320
L_KE, KEO, KECH = 93312, 4160, 8320
L_U = 110080
L_SM = 8 * LNP
L_HI, L_GI, L_XI, L_HID, L_ST = 106880, 0, 28672, 106880, 149888
L_STA, L_STB, L_FAST, L_JUNK, L_ST3 = L_ST, L_ST + 768, L_ST + 1152, L_ST + 1280, L_ST + 1536
L_PS = 102400
L_EV = 86016
LDS_BYTES = 153600
LOG2E, INV2PI, EPS, INVD = 0x3fb8aa3b, 0x3e22f983, 0x3727c5ac, 0x3b124925
C1 = -2.0 * 0.7978845608028654 * 1.4426950408889634
def fh(x): return '0x%08x' % struct.unpack('<I', struct.pack('<f', x))[0]
SPIN = 1 << 18
sX, sLA, sAI, sCR, sCI, sDT, sDS = 4, 6, 8, 10, 12, 14, 16
sW1, sW2, sW3, sW4, sOUT, sWS = 20, 22, 24, 26, 28, 30
rWS, rX, rD, rW, rG = 32, 36, 40, 44, 48
sW, sXCD, sI, sP, sTAG, sTB, sQ, sCL, sM, sFAST = range(52, 62)
sPD0, sPD1, sUO, sSM, sFO, sPACT = range(62, 68)
sUS, sKG, sHD, sUM = 74, 75, 76, 77
sLDT, sD0, sD1 = 40, 41, 42
sM0, sM1, sCT, sTX = 78, 80, 82, 83
sA1, sA2, sA3, sA4 = 84, 85, 86, 87
def sr(n, k=4): return f's[{n}:{n+k-1}]'
def vr(n, k=4): return f'v[{n}:{n+k-1}]'
vL16, vL = 1, 2
vW1, vW2, vW3, vW4A, vW4B = 144, 200, 52, 200, 52
vCS3, vAC3, vST3, vRES = 164, 180, 196, 36

class Cfg:
    f_kt = 3
    fa_at, dma_at, poll_at, chk_at, pst_at, fa_sleep = 1, 5, 4, 7, 8, 1
    fslot = 2
    u_at, uchk_at, pslot = 2, 7, 24
    rsplit = 8
    f_conv = 15
    f_hst = 15
    f_hld = 15
    f_hok = 24
    f_g1 = 35
    f_gel = 0
    x_dp, g2span = 0, 14
    f_gfl = 0
    f_b3a = 0
    f_g2 = 43
    f_xfl = 0
    f_b4a = 45
    two = 0
    tab = 0
    xbar = 0
    fb_at = 0
    x_nof = 99
    prio = 0
    bar_a, x_at = 0, 3
    ggrp, burst, pd, sd = 8, 1, 3, 2
    q = (33, 47, 60, 73, 86)
    st0, st1, lastpk = (79, 80, 89, 94, 100, 108), (86, 87, 96, 0, 95, 103), 1
    w4a, w4b = (17, 44), (45, 68)
    nc_depth, hint_at, fblate = 16, 72, 0
    depth = 4
    touch_at = 1
    warm = 1
    x_only, x_dbl, x_skew = None, 0, None
    x_mark = None
    gaft, nb1, nb2 = 0, 4, 4
    x_heat = None
    x_pad = None
    pal, pins = 3, (None,) * 5
    gsc = 1
    evb2, searly, evp, evc = 1, 1, 1, 0
    fpd = 8
    hfeed = 1
    dack, fpoll, cs_at, f_gok = (1, 1, 1), 103, 2, 37
    etouch, touch2 = 0, 4
    x_ns = x_nc = 0
    gp, gd, w3e = 17, 4, 16
    hack, hdel, hmask = 1, 0, 0
    upf = 0
    ktm = 2
    kbar = 0
    lst2, lregs = (), (4, 6, 8, 10, 12, 14, 16, 18, 20, 22, 24, 26, 36, 38, 98)
    fm, fc, fg = 4, 0, 0
    lst = 0
    sb_at, clr_at, cslot = 1, None, 40
    cil, chead, cpace, clead, cy0, cyp = 0, 9, 1.0, 5, 42, 4
    rts = 0
    refresh = 0
    tdepth = 1
    cpf = 1
    x_late = 0

def zipl(*streams):
    out = []; n = max(len(x) for x in streams)
    for i in range(n):
        for x in streams:
            if i < len(x): out.append(x[i])
    return out

class K(Asm):
    def __init__(s, stamps, cfg):
        super().__init__(); s.stamps = stamps; s.cfg = cfg; s.ool = []; s.nlab = 0; s.wn = 0
    def lab(s, p): s.nlab += 1; return f'L{p}{s.nlab}'
    def srd(s, r, ptr, size):
        s(f's_mov_b32 s{r}, s{ptr}\ns_mov_b32 s{r+1}, s{ptr+1}\ns_mov_b32 s{r+2}, {size}\ns_mov_b32 s{r+3}, 0x20000')
    def stamp(s, idx, real=False):
        if s.cfg.x_mark == idx + getattr(s, 'nc', 0): s.raw('    s_memrealtime s[98:99]')
        if s.cfg.x_mark is not None and idx == 31: s.wait_lg(0, force=True); s.raw('    s_mov_b32 s101, s98' if not s.cfg.x_dbl else '    s_sub_u32 s101, s98, s101\n    s_add_u32 s101, s101, s98\n    s_sub_u32 s101, s101, 1500')
        if s.cfg.x_pad and idx == s.cfg.x_pad[0]:
            l = s.lab('pad'); s.wait_lg(0)
            if s.cfg.x_only is not None: s.raw(f'    s_and_b32 s98, s2, {s.cfg.x_only[0]}\n    s_cmp_lg_u32 s98, {s.cfg.x_only[1]}\n    s_cbranch_scc1 Lend')
            s.label(l)
            s.raw(f'    s_memrealtime s[98:99]\n    s_waitcnt lgkmcnt(0)\n    s_sub_u32 s98, s98, s101\n    s_cmp_lt_u32 s98, {s.cfg.x_pad[1]*100}\n    s_cbranch_scc1 {l}')
        if idx in s.cfg.lst2:
            r = s.cfg.lregs[list(s.cfg.lst2).index(idx)]
            s.raw(f'    s_memtime s[{r}:{r+1}]')
            if idx == s.cfg.lst2[-1]:
                s.wait_lg(0, force=True)
                for i, k in enumerate(s.cfg.lst2): s(f'v_writelane_b32 v3, s{s.cfg.lregs[i]}, {k}')
            return
        if not s.stamps or (s.stamps is not True and idx not in (31, 61) and (s.stamps == 'span' or idx not in s.stamps)): return
        s(f's_mem{"real" if real else ""}time s[98:99]'); s.wait_lg(0)
        s(f'v_writelane_b32 v3, s98, {idx}')
        rt = {3: 50, 10: 51, 11: 52, 15: 53, 22: 54, 25: 55, 28: 56}
        if s.cfg.rts and idx in rt:
            s('s_memrealtime s[98:99]'); s.wait_lg(0); s(f'v_writelane_b32 v3, s98, {rt[idx]}')
    def dump_stamps(s):
        if not s.stamps: return
        s.stamp(61, True)
        s(f's_lshl_b32 s98, s2, 3\ns_add_u32 s98, s98, s{sW}\ns_lshl_b32 s98, s98, 8\ns_add_u32 s98, s98, {TS}')
        s(f'v_lshlrev_b32 v4, 2, v{vL}\nbuffer_store_dword v3, v4, {sr(rWS)}, s98 offen')
    def cond(s, cmp_skip, body, drain=True, flush=True):
        l = s.lab('c')
        s(cmp_skip)
        if flush: s.flush_hazards()
        s(f's_cbranch_scc1 {l}')
        vm, lg, hist = list(s.vm), list(s.lg), list(s.hist)
        body()
        if drain: s._wait(lg=0)
        if flush: s.flush_hazards()
        else: s.hist = hist
        s.label(l)
        s.vm, s.lg = vm, lg
    def xstore(s, lines):
        slow, back = s.lab('xs'), s.lab('xb')
        s(f's_cmp_eq_u32 s{sFAST}, 0')
        for l in lines:
            ins = Ins(l); t = ins.rd | ins.wr
            hs = [x[0] for x in s.vm if x[1] & t] + [x[0] for x in s.lg if x[1] & t]
            if hs: s.wait(*hs)
        s(f's_cbranch_scc1 {slow}')
        for l in lines: s(l)
        s.label(back)
        s.ool.append(f'{slow}:\n    s_nop 7\n    s_nop 3\n' + ''.join(f'    {l} sc1\n' for l in lines) + f'    s_branch {back}\n')
    def feed1(s):
        n = s.wn; s.wn += 1
        if n >= s.cfg.x_nof: return
        if n < 14: reg, sb, i = vW1 + 4*n, sA1, n
        elif n < 28: reg, sb, i = vW2 + 4*(n-14), sA2, n - 14
        elif n < 56: reg, sb, i = vW3 + 4*(n-28), sA3, n - 28
        elif n < 70: reg, sb, i = vW4A + 4*(n-56), sA4, n - 56
        else: reg, sb, i = vW4B + 4*(n-70), sA4, n - 56
        if i % 4 == 0 and i: s(f's_add_u32 s{sb}, s{sb}, 4096')
        s(f'buffer_load_dwordx4 {vr(reg)}, v{vL16}, {sr(rG)}, s{sb} offen offset:{(i % 4) * 1024}')
    def feed(s, upto, depth=None):
        depth = depth or s.cfg.depth
        while s.wn < upto:
            s.wait_vm(depth - 1); s.feed1()
    def spread(s, upto, slots, first=0):
        n = max(0, upto - s.wn); out = [lambda: None] * slots
        pos = [first + (k * (slots - first)) // n for k in range(n)] if n else []
        for p in set(pos):
            out[p] = (lambda c=pos.count(p): [s.feed1() for _ in range(c)])
        return out
    def pin(s, k):
        if k is None: return
        s.raw(f'    .p2align {s.cfg.pal}')
        for i in range(k): s('s_nop 0')
    def fair(s, n, k):
        if k and n % k == 0: s('s_setprio 1')
        if k and n % k == k - 1: s('s_setprio 0')
    def run(s, l):
        for f in l: f()
    def pl(s, vdst, vaddr, soff): return f'buffer_load_dword v{vdst}, v{vaddr}, {sr(rWS)}, {soff} offen sc1' if vaddr is not None else f'buffer_load_dword v{vdst}, off, {sr(rWS)}, {soff} sc1'
    def poll_issue(s, vdst, vaddr, soff): return s(s.pl(vdst, vaddr, soff))
    def poll_check(s, vdst, vaddr, soff, sleep=0):
        retry, back = s.lab('pr'), s.lab('pb')
        s(f'v_subrev_u32 v{vdst}, s{sTAG}, v{vdst}\nv_cmp_lt_u32 vcc, 15, v{vdst}\ns_mov_b32 s97, 0\ns_cbranch_vccnz {retry}')
        s.label(back)
        s.ool.append(f'''{retry}:
''' + (f'    s_sleep {sleep}\n' if sleep else '') + f'''    {s.pl(vdst, vaddr, soff)}
    s_add_u32 s97, s97, 1
    s_cmp_gt_u32 s97, {SPIN}
    s_waitcnt vmcnt(0)
    s_cbranch_scc1 {back}
    v_subrev_u32 v{vdst}, s{sTAG}, v{vdst}
    v_cmp_lt_u32 vcc, 15, v{vdst}
    s_nop 1
    s_cbranch_vccnz {retry}
    s_branch {back}
''')
    def poll(s, vdst, vaddr, soff, lo=None, hi=None, sleep=0):
        if lo is not None: s(f's_mov_b32 exec_lo, {lo}\ns_mov_b32 exec_hi, {hi}')
        s.poll_issue(vdst, vaddr, soff); s.poll_check(vdst, vaddr, soff, sleep)
        if lo is not None: s('s_mov_b64 exec, -1')
    def flag(s, soff, vtmp=4):
        s(f'v_mov_b32 v{vtmp}, s{sTAG}')
        s.wait_vm(0, force=True)
        s('s_mov_b64 exec, 1')
        s.xstore([f'buffer_store_dword v{vtmp}, off, {sr(rWS)}, s{soff}'])
        s('s_mov_b64 exec, -1')
    def gflag(s, wave, soff, sval, vtmp, drain=False, flush=True):
        s.cond(f's_cmp_lg_u32 s{sW}, {wave}', drain=drain, flush=flush, body=lambda: s(f'v_mov_b32 v{vtmp}, s{sval}\ns_mov_b64 exec, 1\nbuffer_store_dword v{vtmp}, off, {sr(rWS)}, s{soff} sc1\ns_mov_b64 exec, -1'))
    def gflag8(s, wave, soff, sval, vtmp, flush=True):
        s.cond(f's_cmp_lg_u32 s{sW}, {wave}', drain=False, flush=flush, body=lambda: s(f'v_mov_b32 v{vtmp}, s{sval}\nv_mul_u32_u24 v{vtmp+1}, {FCP}, v{vL}\ns_mov_b64 exec, 0xff\nbuffer_store_dword v{vtmp}, v{vtmp+1}, {sr(rWS)}, s{soff} offen sc1\ns_mov_b64 exec, -1'))
    def dma(s, a, b, ssrc, ldsbase):
        h = None
        for i in range(a, b):
            if i % 4 == 0:
                if i: s(f's_add_u32 s{ssrc}, s{ssrc}, 4096')
                s(f's_mov_b32 m0, {ldsbase + i * 1024}')
            h = s(f'buffer_load_dwordx4 v{vL16}, {sr(rWS)}, s{ssrc} offen offset:{(i % 4) * 1024} sc1 lds')
        return h
    def fetch_issue(s, blocks):
        t = ''.join(f's_add_u32 m0, s{a}, {b}\ns_add_u32 s68, s{c_}, {d}\nbuffer_load_dwordx4 v{vL16}, {sr(rWS)}, s68 offen sc1 lds\n' for a, b, c_, d in blocks)
        return s(t), t
    def fetch_check(s, h, t, va, off, n, T, m0=None):
        rd = [f'ds_read_b32 v{T+j}, v{va} offset:{off + 7168*j}' for j in range(n)]
        ck = [f'v_and_b32 v{T}, v{T}, v{T+1}', f'v_and_b32 v{T+2}, v{T+2}, v{T+3}', f'v_and_b32 v{T}, 1, v{T}', f'v_and_b32 v{T}, v{T}, v{T+2}', f'v_cmp_eq_u32 vcc, 0, v{T}']
        retry, back = s.lab('fr'), s.lab('fb')
        def part1(): s.wait(h); [s(l) for l in rd]
        def part2():
            for l in ck: s(l)
            s(f's_mov_b32 s97, 0\ns_cbranch_vccnz {retry}'); s.label(back)
            s.ool.append(f'{retry}:\n' + ''.join(f'    {l}\n' for l in t.strip().split('\n')) + (f'    {m0}\n' if m0 else '') + f'    s_add_u32 s97, s97, 1\n    s_cmp_gt_u32 s97, {SPIN}\n    s_waitcnt vmcnt(0)\n    s_cbranch_scc1 {back}\n'
                         + ''.join(f'    {l}\n' for l in rd) + '    s_waitcnt lgkmcnt(0)\n' + ''.join(f'    {l}\n' for l in ck) + f'    s_nop 1\n    s_cbranch_vccnz {retry}\n    s_branch {back}\n')
        return part1, part2
    def pos(s, d, src, t):
        s(f'''v_and_b32 v{t}, 3, v{src}
        v_lshlrev_b32 v{t}, 2, v{t}
        v_and_or_b32 v{t}, v{src}, -16, v{t}
        v_bfe_u32 v{d}, v{src}, 2, 2
        v_or_b32 v{d}, v{d}, v{t}
        v_lshlrev_b32 v{d}, 4, v{d}''')

    def W(s, dst, k, base=None, op='add_u32'):
        src = f'v{76 + k//2}'; sel = f'WORD_{k&1}'
        if base is None: s(f'v_mov_b32_sdwa v{dst}, {src} dst_sel:DWORD dst_unused:UNUSED_PAD src0_sel:{sel}')
        else: s(f'v_{op}_sdwa v{dst}, {base}, {src} dst_sel:DWORD dst_unused:UNUSED_PAD src0_sel:DWORD src1_sel:{sel}')
    def entry(s):
        s('s_cmp_ge_u32 s2, 256\ns_cbranch_scc1 Lend')
        if s.cfg.x_skew:
            s.raw(f'    s_and_b32 s3, s2, 7\n    s_mul_i32 s3, s3, {s.cfg.x_skew}\nLsk:\n    s_sub_u32 s3, s3, 1\n    s_cmp_lt_i32 s3, 0\n    s_cbranch_scc1 Lsk2\n    s_sleep 1\n    s_branch Lsk\nLsk2:')
        if s.stamps or s.cfg.x_pad: s('s_memtime s[100:101]\ns_memrealtime s[96:97]\nv_mov_b32 v3, 0'); s.wait_lg(0); s('s_mov_b32 s101, s96\ns_mov_b32 s98, s96')
        s(f"""s_load_dwordx16 s[4:19], s[0:1], 0
        s_load_dwordx8 s[20:27], s[0:1], 64
        s_load_dwordx2 s[28:29], s[0:1], 96
        s_load_dwordx2 s[30:31], s[0:1], 112""")
        s('s_getpc_b64 s[94:95]')
        s.label('Lpc')
        s(f"""s_lshr_b32 s{sI}, s2, 3
        v_lshrrev_b32 v4, 6, v0
        v_and_b32 v{vL}, 63, v0""")
        s.cpf(0)
        s(f"""v_readfirstlane_b32 s{sW}, v4
        v_lshlrev_b32 v{vL16}, 4, v{vL}
        s_add_u32 s94, s94, @TAB_OFF@
        s_addc_u32 s95, s95, 0
        s_lshl_b32 s69, s2, 6
        s_add_u32 s69, s69, {2048 + 4224}
        v_lshl_add_u32 v5, v4, 3, s69
        global_load_dwordx2 v[84:85], v5, s[94:95]
        global_load_dwordx4 v[80:83], v{vL16}, s[94:95] offset:1024
        global_load_dwordx4 v[76:79], v{vL16}, s[94:95]
        s_lshl3_add_u32 s68, s2, s{sW}
        v_and_b32 v6, 255, v0
        v_lshlrev_b32 v18, 4, v6
        global_load_dwordx4 v[66:69], v18, s[94:95] offset:2048
        global_load_ushort v70, v18, s[94:95] offset:2064
        s_and_b32 s{sXCD}, s2, 7
        s_mul_i32 s{sP}, s{sXCD}, 28
        s_add_u32 s{sP}, s{sP}, s{sI}
        s_min_u32 s{sP}, s{sP}, 223
        s_lshl_b32 s70, s{sP}, 10
        v_lshl_add_u32 v64, v0, 1, s70
        s_mul_i32 s73, s68, 896
        s_mov_b32 s{rX+2}, 896
        s_mov_b32 s{rX+3}, 0x20000
        s_mov_b32 s{rW+3}, 0x20000
        s_mov_b32 s{rWS+2}, {WS_BYTES}
        s_mov_b32 s{rWS+3}, 0x20000
        s_lshl_b32 s93, s{sW}, 11
        s_add_u32 s93, s93, {L_PK}
        s_lshl_b32 s71, s{sP}, 2
        s_mov_b32 s72, {EP}
        s_add_u32 s{rX}, s{sX}, s73
        s_addc_u32 s{rX+1}, s{sX+1}, 0
        buffer_load_dwordx4 v[28:31], v{vL16}, {sr(rX)}, 0 offen""")
        if s.stamps: s('v_writelane_b32 v3, s100, 0\nv_writelane_b32 v3, s96, 60')
        s.stamp(1)
        s(f"""s_load_dword s{sTAG}, {sr(sWS,2)}, s72
        s_load_dword s{sLDT}, {sr(sDT,2)}, s71
        s_load_dword s{sD1}, {sr(sDS,2)}, s71
        global_load_ushort v60, v64, {sr(sLA,2)}
        global_load_ushort v61, v64, {sr(sAI,2)}
        global_load_ushort v62, v64, {sr(sCR,2)}
        global_load_ushort v63, v64, {sr(sCI,2)}
        v_readfirstlane_b32 s90, v84
        v_readfirstlane_b32 s91, v85
        s_lshr_b32 s43, s90, 24
        s_and_b32 s90, s90, 0xffffff
        s_bitcmp1_b32 s43, 0
        s_cselect_b64 s[20:21], s[22:23], s[20:21]
        s_cselect_b64 s[24:25], s[26:27], s[24:25]
        s_cmp_eq_u32 s43, 2
        s_cselect_b64 vcc, -1, 0
        s_movk_i32 s89, 896
        s_cmovk_i32 s89, 3584
        s_cmp_lt_u32 s43, 2
        s_cselect_b64 {sr(rW,2)}, s[20:21], s[24:25]
        s_cselect_b32 s{rW+2}, {448*896}, 0
        s_cselect_b64 s[72:73], -1, 0
        s_lshl4_add_u32 s89, s89, s90
        s_mov_b32 s{rWS}, s{sWS}
        s_mov_b32 s{rWS+1}, s{sWS+1}
        v_cndmask_b32_sdwa v23, v81, v82, vcc dst_sel:DWORD dst_unused:UNUSED_PAD src0_sel:WORD_1 src1_sel:WORD_0""")
        if s.cfg.dma_at >= 0: s.pack_dma()

    def cpf(s, once):
        l = s.lab('cp')
        s(f'v_lshl_add_u32 v7, v0, 8, s2' if once else f'v_lshl_add_u32 v7, v0, 5, s{sI}')
        s(f"""v_lshlrev_b32 v7, 7, v7
        v_cmp_gt_u32 vcc, @CODE_BYTES@, v7
        s_and_saveexec_b64 s[70:71], vcc
        s_cbranch_execz {l}""")
        s.raw('    global_load_dword v255, v7, s[94:95]')
        s.label(l)
        s('s_mov_b64 exec, -1')
    def clear(s):
        for i in range(4): s(f'v_mov_b32 v{72+i}, -1')
        s.h_clr = s.hstore(72)
    def hstore(s, r): return s(f'buffer_store_dwordx4 {vr(r)}, v12, {sr(rWS)}, s{sHD} offen sc1')

    def setup(s):
        s.comment('offsets and lane addresses (in the shadow of the first loads)')
        assert L_U % 512 == 0
        s(f"""s_mov_b64 vcc, s[72:73]
        s_lshr_b32 s{sPD1}, s91, 16
        s_lshl_b32 s{sPD1}, s{sPD1}, 10
        v_cndmask_b32_sdwa v24, v81, v80, vcc dst_sel:DWORD dst_unused:UNUSED_PAD src0_sel:WORD_0 src1_sel:WORD_1
        s_and_b32 s{sPD0}, s91, 0xffff
        s_lshl_b32 s{sPD0}, s{sPD0}, 10
        v_mul_u32_u24 v71, 1171, v0
        s_lshl_b32 s70, s{sW}, 7
        v_add_u32 v24, s93, v24""")
        s.W(27, 13, 's70')
        s(f"""s_mul_i32 s70, s{sW}, {LNP}
        v_lshrrev_b32 v71, 16, v71
        v_add_u32 v26, s70, v{vL16}
        s_mul_i32 s70, s2, 896
        s_lshl_b32 s71, s{sW}, 10
        v_mul_u32_u24 v71, {229376 - 896}, v71
        s_add_u32 s70, s70, s71
        s_add_u32 s{sUO}, s70, {GX}
        v_add_u32 v71, v71, v{vL16}""")
        s.W(12, 5, 4, 'lshlrev_b32')
    def setup_b(s):
        s(f"""s_lshl_b32 s71, s{sW}, 10
        s_lshl4_add_u32 s{sFO}, s2, {FA}
        s_add_u32 s{sUM}, s71, {L_U + 1024}
        v_add_u32 v13, s71, v{vL16}
        s_lshl_b32 s70, s{sW}, 13
        v_add_u32 v14, s70, v{vL16}
        s_lshl_b32 s70, s{sW}, 9
        s_mul_i32 s72, s{sXCD}, {FCP}
        s_add_u32 s70, s70, s72
        s_add_u32 s70, s70, {FA}
        v_and_b32 v17, 0x1f0, v{vL16}
        v_add_u32 v17, s70, v17
        s_mul_i32 s{sKG}, s{sW}, {16*KGP}
        s_add_u32 s{sKG}, s{sKG}, {L_KG}""")
        s.W(20, 8, f's{sKG}'); s.W(10, 3); s.W(11, 4); s.W(15, 6, f's{sUM}')
        s(f"""s_and_b32 s70, s{sW}, 3
        s_lshr_b32 s71, s{sW}, 2
        s_mul_i32 s73, s71, {KECH}
        s_add_u32 s73, s73, {L_KE}
        v_add_u32 v18, s73, v18
        s_lshl_b32 s72, s70, 7
        s_sub_u32 s72, s73, s72
        s_add_u32 s72, s72, {4*(1015 - 144) - 28}""")
        s.W(4, 0, 's72')
        s(f"""s_lshl_b32 s72, s70, 8
        s_sub_u32 s72, {L_U}, s72
        v_xor_b32 v16, 16, v15""")
        s.W(8, 1, 's72'); s.W(9, 2, 's72')
        s(f"""s_xor_b32 s72, s70, s71
        s_and_b32 s72, s72, 1
        s_lshl_b32 s72, s72, 4
        v_subrev_u32 v5, 1024, v4
        v_subrev_u32 v6, 2048, v4
        v_subrev_u32 v7, 3072, v4
        v_xor_b32 v8, s72, v8
        v_xor_b32 v9, s72, v9
        s_lshl_b32 s72, s70, 2
        s_mul_i32 s70, s71, {KTSZ}
        s_add_u32 s70, s70, {L_KT}
        s_mov_b32 s73, {L_KE + 4096}""")
        s.W(19, 7, 's72', 'xor_b32'); s.W(88, 14, 's73')
        s(f"""v_mov_b32 v84, 0
        v_mov_b32 v85, 0
        v_mov_b32 v86, 0
        v_mov_b32 v87, 0
        v_add_u32 v19, s70, v19
        s_add_u32 s72, s70, {768*16}
        s_bitcmp1_b32 s{sW}, 0
        s_cselect_b64 vcc, -1, 0
        v_add_u32 v89, {L_U}, v{vL16}
        v_writelane_b32 v88, s72, 63
        v_cndmask_b32 v88, v89, v88, vcc
        ds_write_b128 v88, v[84:87]""")
        for t in range(9):
            s(f'v_add_u32_sdwa v{132+t}, s70, v{66+t//2} dst_sel:DWORD dst_unused:UNUSED_PAD src0_sel:DWORD src1_sel:WORD_{t&1}')
    def scalars(s):
        return f"""s_mov_b32 s{rG}, s{sWS}
        s_mov_b32 s{rG+1}, s{sWS+1}
        s_cmp_eq_u32 s{sW}, 7
        s_cselect_b32 s{rG+2}, 0, {WS_BYTES}
        s_mov_b32 s{rG+3}, 0x20000
        s_mul_i32 s{sHD}, s{sW}, 229376
        s_lshl_b32 s68, s{sP}, 7
        s_add_u32 s{sHD}, s{sHD}, s68
        s_add_u32 s{sHD}, s{sHD}, {X1}
        s_lshr_b32 s68, s{sI}, 2
        s_lshl3_add_u32 s{sTB}, s{sXCD}, s68
        s_and_b32 s{sQ}, s{sI}, 3
        s_lshr_b32 s{sCL}, s{sTB}, 1
        s_and_b32 s{sM}, s{sI}, 7
        s_mul_i32 s{sCT}, s{sQ}, 7
        s_add_u32 s{sCT}, s{sCT}, s{sW}
        s_mul_i32 s{sA1}, s{sCT}, {14*1024}
        s_add_u32 s{sA2}, s{sA1}, {W2P}
        s_mul_i32 s{sA3}, s{sM}, 7
        s_add_u32 s{sA3}, s{sA3}, s{sW}
        s_mul_i32 s{sA4}, s{sA3}, {28*1024}
        s_add_u32 s{sA3}, s{sA4}, {W3P}
        s_add_u32 s{sA4}, s{sA4}, {W4P}
        s_lshl3_add_u32 s{sUS}, s{sXCD}, s{sW}
        s_mul_i32 s{sUS}, s{sUS}, 28672
        s_lshl_b32 s68, s{sI}, 5
        s_add_u32 s{sUS}, s{sUS}, s68
        s_add_u32 s{sUS}, s{sUS}, {GX}
        s_lshl_b32 s{sSM}, s{sW}, 11
        s_add_u32 s{sSM}, s{sSM}, {SM}
        s_mov_b32 s{sFAST}, 0
        s_and_b32 s68, s43, 6
        s_cmp_eq_u32 s68, 2
        s_cselect_b32 s{rW+2}, {448*3584}, 0
        s_cselect_b32 s{sPACT}, {WS_BYTES}, 0"""
    def h2_addr(s):
        return f"""v_lshrrev_b32 v19, 3, v0
        v_and_b32 v20, 7, v0
        v_lshlrev_b32 v21, 9, v19
        v_lshl_add_u32 v21, v20, 4, v21
        s_andn2_b32 s70, 1, s{sQ}
        v_add_u32 v20, s70, v20
        v_mul_u32_u24 v22, 768, v19
        v_lshrrev_b32 v18, 2, v20
        v_lshl_add_u32 v22, v18, 8, v22
        v_and_b32 v18, 3, v20
        v_lshl_add_u32 v22, v18, 4, v22
        v_add_u32 v22, {L_HI}, v22
        s_mul_i32 s88, s{sTB}, 28672
        s_add_u32 s88, s88, {X1}
        v_add_u32 v26, {FB - FA}, v17"""

    def pack_early(s):
        s.wait(s.h_pack)
        s(f"""ds_read_b64_tr_b16 v[52:53], v24
        ds_read_b64_tr_b16 v[54:55], v24 offset:256
        ds_read_b64_tr_b16 v[56:57], v24 offset:32
        ds_read_b64_tr_b16 v[58:59], v24 offset:288
        buffer_store_dwordx4 v[52:55], v{vL16}, {sr(rWS)}, s{sPD0} offen sc1
        buffer_store_dwordx4 v[56:59], v{vL16}, {sr(rWS)}, s{sPD1} offen sc1""")

    def ln(s):
        s.comment('layernorm of one token per wave')
        s('v_mov_b32 v51, 0x3f803f80\nv_dot2_f32_bf16 v48, v28, v51, 0')
        s.stamp(2)
        s('v_dot2_f32_bf16 v49, v28, v28, 0')
        for i in (29, 30, 31): s(f'v_dot2_f32_bf16 v48, v{i}, v51, v48\nv_dot2_f32_bf16 v49, v{i}, v{i}, v49')
        un = []
        for i in range(4): un += [f'v_lshlrev_b32 v{32+2*i}, 16, v{28+i}', f'v_and_b32 v{33+2*i}, 0xffff0000, v{28+i}']
        s(un.pop()); s(un.pop()); s(f'v_mov_b32 v50, {INVD}')
        for m in ('row_shr:1', 'row_shr:2', 'row_shr:4', 'row_shr:8', 'row_bcast:15 row_mask:0xa', 'row_bcast:31 row_mask:0xc'):
            s(f'v_add_f32_dpp v48, v48, v48 {m}\nv_add_f32_dpp v49, v49, v49 {m}')
            s(un.pop())
        s(f"""v_readlane_b32 s70, v48, 63
        v_readlane_b32 s71, v49, 63
        s_lshl_b32 s72, s{sW}, 3
        v_mov_b32 v65, s72
        v_mul_f32 v49, s70, v50
        v_mul_f32 v48, s71, v50
        v_fma_f32 v48, -v49, v49, v48
        v_max_f32 v48, 0, v48
        v_add_f32 v48, {EPS}, v48
        v_rsq_f32 v51, v48
        s_mov_b32 exec_hi, 0x00ffffff
        v_mul_f32 v50, -v49, v51""")
        for i in range(4): s(f'v_pk_fma_f32 {vr(40+2*i,2)}, v[50:51], {vr(32+2*i,2)}, v[50:51] op_sel:[1,0,0] op_sel_hi:[1,1,0]')
        s('s_mov_b32 s70, 0x0d800000')
        for i in range(4): s(f'v_pk_mul_f32 {vr(40+2*i,2)}, {vr(40+2*i,2)}, s[70:71] op_sel_hi:[1,0]')
        for i in range(4): s(f'v_cvt_pk_bf16_f32 v{28+i}, v{40+2*i}, v{41+2*i}')
        s(f"""ds_write_b128 v26, v[28:31] offset:{L_LN}
        v_mul_f32 v48, v48, v51
        s_mov_b64 exec, 1
        ds_write_b64 v65, v[48:49] offset:{L_SM}
        s_mov_b64 exec, -1""")
        s.barrier()
        s(f"""ds_read_b64_tr_b16 v[48:49], v27 offset:{L_LN}
        ds_read_b64_tr_b16 v[50:51], v27 offset:{L_LN + 4*LNP}
        s_lshr_b32 s{sTAG}, s{sTAG}, 4
        s_mul_i32 s{sTAG}, s{sTAG}, 1664525
        s_add_u32 s{sTAG}, s{sTAG}, 1013904223
        s_lshl_b32 s{sTAG}, s{sTAG}, 4
        s_and_b32 s78, s{sTAG}, 0x70000000
        s_or_b32 s78, s78, 0x6000
        s_lshl_b32 s79, s{sTAG}, 3
        s_and_b32 s79, s79, 0x70000000
        s_or_b32 s79, s79, 0x1000
        s_lshl_b32 s80, s{sTAG}, 8
        s_and_b32 s80, s80, 0x70007000
        s_lshl_b32 s81, s{sTAG}, 5
        s_and_b32 s81, s81, 0x70007000
        v_mov_b32 v46, 0x8fff8ffe
        v_mov_b32 v47, 0x8fff8fff
        v_and_or_b32 v48, v48, v46, s78
        v_and_or_b32 v49, v49, v47, s79
        v_and_or_b32 v50, v50, v47, s80
        v_and_or_b32 v51, v51, v47, s81""")
        s.cond(f's_cmp_lg_u32 s{sW}, 7', lambda: s(f's_mov_b64 exec, 15\nds_read_b128 v[48:51], v{vL16} offset:{L_SM}\nv_mov_b32 v71, v{vL16}\ns_lshl_b32 s{sUO}, s2, 6\ns_add_u32 s{sUO}, s{sUO}, {SM}'), flush=False)
        s(f'buffer_store_dwordx4 v[48:51], v71, {sr(rWS)}, s{sUO} offen sc1\ns_mov_b64 exec, -1')
        s.stamp(3)
        s(f's_getreg_b32 s70, hwreg(HW_REG_XCC_ID, 0, 4)\ns_add_u32 s{sTX}, s70, s{sTAG}')
        s.wait(*[h for h, r in s.vm if r])
        s.stamp(40)
        s.cond(f's_cmp_ge_u32 s43, 2', s.pack_early)

    def pack_dma(s):
        s(f's_mov_b32 m0, s93\nbuffer_load_dwordx4 v23, {sr(rW)}, s90 offen lds\ns_add_u32 m0, s93, 1024')
        s.h_pack = s(f'buffer_load_dwordx4 v23, {sr(rW)}, s89 offen lds')
    def publish_a(s, conv=True):
        s.wait_vm(0, force=True)
        s('s_barrier')
        s.stamp(5)
        s.gflag8(0, sFO, sTX, 118)
        s(f's_lshl4_add_u32 s{sFO}, s2, {FB}')
        if s.cfg.dma_at == 1 or not conv: s.pack_dma(); s(f's_mov_b32 m0, s{sKG}')
    def pack_late_store(s):
        P = 240
        s.wait(s.h_pack)
        for e in range(4): s(f'ds_read_b64_tr_b16 {vr(P+2*e,2)}, v24 offset:{1024*(e>>1) + 256*(e&1)}')
        def colsum():
            s(f's_mov_b32 vcc_lo, 0xf0f00f0f\ns_mov_b32 vcc_hi, 0xf0f00f0f\nv_mov_b32 v{P+12}, 0x3f803f80')
            for i in range(4): s(f'v_cndmask_b32 v{P+8+i}, 0, v{P+12}, vcc')
            s(f'''s_lshr_b32 s72, s{sPD0}, 4
            s_add_u32 s72, s72, {CSP - W3P // 16}
            v_mfma_f32_16x16x32_bf16 {vr(P+12)}, {vr(P+8)}, {vr(P)}, 0
            v_mfma_f32_16x16x32_bf16 {vr(P+12)}, {vr(P+8)}, {vr(P+4)}, {vr(P+12)}
            v_lshlrev_b32 v{P+8}, 2, v{vL}
            s_mov_b32 exec_hi, 0
            buffer_store_dword v{P+12}, v{P+8}, {sr(rWS)}, s72 offen sc1
            s_mov_b32 exec_hi, -1''')
        s.cond('s_cmp_lg_u32 s43, 2', colsum, drain=False)
        s(f"""s_mov_b32 s{rW}, s{sWS}
        s_mov_b32 s{rW+1}, s{sWS+1}
        s_mov_b32 s{rW+2}, s{sPACT}
        buffer_store_dwordx4 {vr(P)}, v{vL16}, {sr(rW)}, s{sPD0} offen sc1""")
        s.h_pst = s(f'buffer_store_dwordx4 {vr(P+4)}, v{vL16}, {sr(rW)}, s{sPD1} offen sc1')

    def cm(s, d, a, b, t):
        return [f'v_pk_mul_f32 {vr(t,2)}, {vr(a,2)}, {vr(b,2)} op_sel_hi:[1,0]',
                f'v_pk_fma_f32 {vr(d,2)}, {vr(a,2)}, {vr(b,2)}, {vr(t,2)} op_sel:[1,1,0] op_sel_hi:[0,1,1] neg_lo:[1,0,0]']
    def kgen(s):
        c = s.cfg
        s.pin(c.pins[0])
        assert c.fa_at <= c.poll_at <= c.chk_at
        Z = lambda k: 74 + 2 * k
        Z128, ZD, R0, R1, TT = 92, 94, 112, 114, 116
        CH = [(96, 98, 100, 102), (104, 106, 108, 110)]
        BF, AF, ACC = 156, (172, 188, 204), 220
        s(f"""s_lshl_b32 s70, s{sLDT}, 16
        s_and_b32 s71, s{sLDT}, 0xffff0000
        s_cmp_lt_u32 s{sW}, 4
        s_cselect_b32 s72, s70, s71
        s_mov_b32 s70, {LOG2E}
        s_mov_b32 s71, {INV2PI}
        v_mov_b32 v64, s72
        v_lshlrev_b32 v60, 16, v60
        v_mul_f32 v64, s70, v64
        v_mul_f32 v60, s70, v60
        v_exp_f32 v64, v64
        v_exp_f32 v60, v60
        v_lshlrev_b32 v61, 16, v61
        v_lshlrev_b32 v62, 16, v62
        v_lshlrev_b32 v63, 16, v63
        v_cvt_pk_bf16_f32 v64, v64, v60
        v_and_b32 v60, 0xffff0000, v64
        v_lshlrev_b32 v64, 16, v64
        v_pk_mul_f32 v[60:61], v[60:61], v[64:65] op_sel_hi:[1,0]
        v_add_f32 v64, v64, v64
        v_pk_mul_f32 v[60:61], v[60:61], s[70:71]
        v_pk_mul_f32 {vr(R0,2)}, v[62:63], v[64:65] op_sel_hi:[1,0]
        s_mov_b32 m0, s{sKG}
        s_mov_b32 s70, 0x41000000
        s_mov_b32 s71, 0x43000000
        v_pk_mul_f32 v[62:63], v[60:61], s[70:71] op_sel_hi:[1,0]
        v_pk_mul_f32 v[64:65], s[70:71], v[60:61] op_sel:[1,0]
        s_lshl_b32 s{sD0}, s{sD1}, 16
        s_and_b32 s{sD1}, s{sD1}, 0xffff0000""")
        for r in (62, 64, 60): s(f'v_exp_f32 v{r}, -v{r}\nv_fract_f32 v{r+1}, v{r+1}')
        for r, d in ((62, Z(8)), (64, Z128), (60, Z(1))): s(f'v_cos_f32 v{d}, v{r+1}\nv_sin_f32 v{d+1}, v{r+1}')
        for r, d in ((62, Z(8)), (64, Z128), (60, Z(1))): s(f'v_pk_mul_f32 {vr(d,2)}, {vr(d,2)}, {vr(r,2)} op_sel_hi:[1,0]')
        s.stamp(4)
        def chain(st, rows, start, mul, neg=False):
            a, b, t, pk = CH[st]; out = []; cur, nxt = start, a
            for i, row in enumerate(rows):
                cc = s.cm(nxt, cur, mul, t) if i < len(rows) - 1 else []
                out += cc[:1] + [f'v_cvt_pk_bf16_f32 v{pk + (i&1)}, v{cur}, {"-" if neg else ""}v{cur+1}'] + cc[1:] + [f'ds_write_addtid_b32 v{pk + (i&1)} offset:{row*KGP}']
                cur, nxt = nxt, (b if nxt == a else a)
            return out
        def rd(dst):
            for ks in range(4): s(f'ds_read_b128 {vr(dst+4*ks)}, v20 offset:{64*ks}')
        E = lambda l: [s(x) for x in l]
        zz = zipl if c.two else (lambda *a: sum(a, []))
        uld = f'buffer_load_dwordx4 v[120:123], v10, {sr(rWS)}, s{sUS} offen sc1'
        uck = [f'v_xor_b32 v{120+i}, s{78+i}, v{120+i}' for i in range(4)] + ['v_or3_b32 v119, v120, v121, v122', 'v_or_b32 v119, v119, v123', 'v_and_b32 v119, 0x70007000, v119', 'v_cmp_ne_u32 vcc, 0, v119']
        def hook(k):
            if c.fa_at == k: s.publish_a()
            if c.clr_at == k: s.clear()
            if c.u_at == k: s(uld)
            if c.poll_at == k: s.poll_issue(27, 17, 0)
            if c.dma_at == k and 1 < k < 7:
                s.pack_dma()
                if k < 4: s(f's_mov_b32 m0, s{sKG}')
            if c.uchk_at == k:
                retry, back = s.lab('ur'), s.lab('ub')
                for l in uck: s(l)
                s(f's_mov_b32 s97, 0\ns_cbranch_vccnz {retry}'); s.label(back)
                s.ool.append(f'{retry}:\n    {uld}\n    s_add_u32 s97, s97, 1\n    s_cmp_gt_u32 s97, {SPIN}\n    s_waitcnt vmcnt(0)\n    s_cbranch_scc1 {back}\n'
                             + ''.join(f'    {l}\n' for l in uck) + f'    s_nop 1\n    s_cbranch_vccnz {retry}\n    s_branch {back}\n')
                if s.stamps: s('v_writelane_b32 v3, s97, 44')
                for i in range(4): s(f'v_add_u32 v{120+i}, 0x32003200, v{120+i}')
                s(f'v_add_u32 v119, s{sUM}, v{vL16}\nds_write_b128 v119, v[120:123]')
                s.stamp(8)
            if c.chk_at == k:
                s.poll_check(27, 17, 0, c.fa_sleep)
                if s.stamps: s('v_writelane_b32 v3, s97, 58')
            if c.dma_at == k == 7: s.pack_dma()
            if c.pst_at == k: s.pack_late_store()
        hook(0)
        if c.two:
            E(zipl(s.cm(ZD, Z(8), Z(8), 100), s.cm(R1, R0, Z(8), 108), s.cm(Z(2), Z(1), Z(1), TT)))
            E(zipl(chain(0, range(0, 16, 2), R0, ZD, True), chain(1, range(1, 16, 2), R1, ZD, True)))
            rd(BF)
            E(zipl(s.cm(ZD, Z128, Z128, 100), s.cm(R1, Z(8), Z128, 108), s.cm(Z(4), Z(2), Z(2), TT)))
            hook(1); s.stamp(35)
            E(zipl(chain(0, range(0, 16, 2), Z(8), ZD), chain(1, range(1, 16, 2), R1, ZD)))
        else:
            rc = chain(0, range(16), R0, Z(8), True)
            E(rc[:4*c.rsplit]); hook(0.5); E(rc[4*c.rsplit:])
            rd(BF)
            E(s.cm(Z(2), Z(1), Z(1), TT) + s.cm(Z(4), Z(2), Z(2), TT))
            hook(1); s.stamp(35)
            E(chain(0, range(16), Z(8), Z128))
        rd(AF[0])
        E(zipl(s.cm(Z(6), Z(4), Z(2), 100), s.cm(Z(3), Z(2), Z(1), 108), s.cm(Z(5), Z(4), Z(1), TT)))
        hook(2); s.stamp(36)
        E(zz(chain(0, range(0, 8), Z(4), Z128), chain(1, range(8, 12), Z(2), Z128) + chain(1, range(12, 16), Z(6), Z128), s.cm(Z(7), Z(6), Z(1), TT)))
        rd(AF[1])
        s.stamp(47); hook(3); s.stamp(37)
        if c.kbar: s('s_barrier')
        mf = lambda t, ks: f'v_mfma_f32_16x16x32_bf16 {vr(ACC+4*t)}, {vr(AF[t]+4*ks)}, {vr(BF+4*ks)}, {vr(ACC+4*t) if ks else 0}'
        wr = lambda t, r: f'ds_write_b32 v19, v{ACC+4*t+r} offset:{(16*t+r)*256}'
        if c.ktm == 2:
            t2 = [f'v_mov_b32 v{TT}, 0x3f80', f'ds_write_addtid_b32 v{TT} offset:{8*KGP}']
            for i, phi in enumerate((1, 3, 5, 7)):
                z, d = Z(phi), 96 + 4*i
                t2 += [f'v_cvt_pk_bf16_f32 v{d+2}, v{z}, v{z+1}', f'v_mul_f32 v{d}, v{z}, v{Z128}', f'ds_write_addtid_b32 v{d+2} offset:{2*i*KGP}', f'v_mul_f32 v{d+1}, v{z+1}, v{Z128}',
                       f'v_fma_f32 v{d}, -v{z+1}, v{Z128+1}, v{d}', f'v_fmac_f32 v{d+1}, v{z}, v{Z128+1}', f'v_cvt_pk_bf16_f32 v{d+3}, v{d}, v{d+1}', f'ds_write_addtid_b32 v{d+3} offset:{(2*i+1)*KGP}']
            m01 = [mf(t, k) for t in range(2) for k in range(4)]
            for i, l in enumerate(t2):
                if i % 4 == 0 and m01: s(m01.pop(0))
                s(l)
            rd(AF[2])
            s.stamp(6); hook(4)
            E([wr(0, r) for r in range(4)] + zipl([mf(2, k) for k in range(4)], [wr(1, r) for r in range(4)]) + [wr(2, r) for r in range(4)])
        else:
            E(zz(chain(0, (0, 1), Z(1), Z128) + chain(0, (4, 5), Z(5), Z128), chain(1, (2, 3), Z(3), Z128) + chain(1, (6, 7), Z(7), Z128)))
            s(f'v_mov_b32 v{TT}, 0x3f80\nds_write_addtid_b32 v{TT} offset:{8*KGP}')
            rd(AF[2])
            s.stamp(6); hook(4)
            if c.ktm:
                E([mf(0, k) for k in range(4)] + [mf(1, k) for k in range(4)] + zipl([mf(2, k) for k in range(4)], [wr(0, r) for r in range(4)]))
                E([wr(t, r) for t in (1, 2) for r in range(4)])
            else:
                E([mf(t, k) for k in range(4) for t in range(2)] + [mf(2, k) for k in range(4)] + [wr(t, r) for t in range(3) for r in range(4)])
        s.stamp(48); hook(5)
        if c.clr_at is not None: s.wait(s.h_clr)
        s.barrier()
        s.stamp(7)
        hook(5.5)
        for t in range(9): s(f'ds_read_b128 {vr(28+4*t)}, v{132+t}')
        if c.clr_at is not None: s(f's_add_u32 s72, s{sFO}, {FC - FB}'); s.gflag8(2, 72, sTAG, 72)
        hook(6)
        if c.chk_at <= 5 and c.pst_at != 7: s.feed(c.f_kt, 63)
        for t in range(9):
            s(f'v_pk_add_f32 {vr(28+4*t,2)}, {vr(28+4*t,2)}, {vr(30+4*t,2)}')
            if t: s(f'v_add_f32 v{24+4*t}, v{24+4*t}, v{25+4*t}')
        s('v_add_f32 v60, v60, v61')
        for i in range(4): s(f'v_cvt_pk_bf16_f32 v{64+i}, v{28+8*i}, v{32+8*i}')
        s('ds_write_b128 v18, v[64:67]')
        for i in range(4): s(f'v_cvt_pk_bf16_f32 v{68+i}, v{32+8*i}, v{36+8*i}')
        s(f'ds_write_b128 v18, v[68:71] offset:{KEO}')
        s.stamp(9); hook(7)
        if c.chk_at <= 5 and c.pst_at == 7: s.feed(c.f_kt, 63)

    def conv(s):
        c = s.cfg
        A, B, ACC = 28, 60, 92
        def rd(kind, slot, e, j):
            if kind == 'B': return [f'ds_read_b128 {vr(B+4*slot)}, v{8+e} offset:{1024*j}']
            off = 16 * (1 - e) + 128 * (1 - (j & 1))
            return [f'ds_read2_b32 {vr(A+4*slot+2*h,2)}, v{4+(j>>1)} offset0:{off+2*h} offset1:{off+2*h+1}' for h in range(2)]
        M = []
        for k in range(8):
            p1 = [(k, j) for j in range(k + 1) if k + j <= 7]; p2 = [(j, k) for j in range(k) if k + j <= 7]
            M += [(0, a, b) for a, b in p1 + p2]
        if c.cil:
            for nu in range(0, 8, 2): M += [(1, a, b) for a, b in zipl([(a, nu + 1 - a) for a in list(range(1, nu + 1)) + [0, nu + 1]], [(a, nu - a) for a in range(nu + 1)])]
        else:
            for nu in range(8): M += [(1, a, nu - a) for a in range(nu + 1)]
        slot = {(0, j): j for j in range(8)}
        for k in range(4, 8): slot[1, 2*(k-4)] = k; slot[1, 2*(k-4) + 1] = 7 - k
        ops = []
        for e in range(2):
            for j in range(8):
                for kind, ix in (('A', 1), ('B', 2)):
                    need = min(n for n, m in enumerate(M) if m[0] == e and m[ix] == j)
                    early = -1 if e == 0 else max(n for n, m in enumerate(M) if m[0] == 0 and m[ix] == slot[1, j])
                    ops += [(need, early, t) for t in rd(kind, slot[e, j], e, j)]
        ops.sort(key=lambda o: o[0])
        D = {n: [] for n in range(-1, 73)}
        pos = -1.0
        for i, (need, early, t) in enumerate(ops):
            if i < c.chead: D[-1].append(t); continue
            pos = max(pos + c.cpace, early)
            pos = max(min(pos, need - c.clead), early)
            D[int(pos)].append(t)
        done = {nu: max(n for n, m in enumerate(M) if m[1] + m[2] == nu) for nu in range(8)}
        at = c.cy0
        for nu in range(8):
            at = max(at, done[nu] + 3)
            D[min(int(at), 72)].append(f'ds_write_b128 v13, {vr(ACC+4*nu)} offset:{L_Y + 8192*nu}')
            at += c.cyp
        s.pin(c.pins[1])
        s.barrier(); s.stamp(10)
        for t in D[-1]: s(t)
        if c.dma_at == 8: s.pack_dma()
        f0 = c.fslot if c.chk_at == 8 else 0
        ex = s.spread(c.f_conv, 66, f0 + 3)
        bs = ['ds_read_b64 v[140:141], v15', 'ds_read_b64 v[142:143], v16', '', '', '', '']
        for i in range(4): bs += [f'v_lshlrev_b32 v{132+2*i}, 16, v{140+i}', f'v_and_b32 v{133+2*i}, 0xffff0000, v{140+i}']
        for ch in range(2):
            bs += [f'v_add_f32 v{140+r}, s{sD0+ch}, v{124+2*r}' for r in range(4)]
            bs += [f'v_fma_f32 v{132+4*ch+r}, v{132+4*ch+r}, v{140+r}, v{125+2*r}' for r in range(4)]
        ha = s.h2_addr().split('\n')
        seen = set(); assert f0 + 3 <= c.hint_at <= 73
        for n, (e, a, b) in enumerate(M):
            nu = a + b
            s.fair(n, c.fc)
            s(f'v_mfma_f32_16x16x32_bf16 {vr(ACC+4*nu)}, {vr(A+4*slot[e, a])}, {vr(B+4*slot[e, b])}, {vr(ACC+4*nu) if nu in seen else 0}')
            seen.add(nu)
            for t in D[n]: s(t)
            if n == f0 and c.chk_at == 8:
                s.poll_check(27, 17, 0, c.fa_sleep)
                if s.stamps: s('v_writelane_b32 v3, s97, 58')
                s('s_barrier')
            if n == f0 + 1: s(f'buffer_load_dwordx4 v[124:127], v11, {sr(rWS)}, s{sSM} offen sc1')
            if n == f0 + 2: s(f'buffer_load_dwordx4 v[128:131], v11, {sr(rWS)}, s{sSM} offen offset:16 sc1\ns_lshl_b32 s68, s2, 6\ns_add_u32 s68, s68, {FH}')
            if c.pst_at == 8 and n == c.pslot: s.pack_late_store()
            if c.clr_at is not None and n == c.cslot: s(f's_mov_b32 s73, {FC - FA}'); s.poll_issue(27, 17, 's73')
            if c.clr_at is not None and n == 66: s.poll_check(27, 17, 's73', 1)
            if n == c.hint_at: s.gflag(7, 68, sTAG, 23, False, False)
            if ex: ex.pop(0)()
            if n >= 4 and ha: s(ha.pop(0))
            if n >= 40 and bs: s(bs.pop(0))
        if c.fc: s('s_setprio 0')
        for t in D[72]: s(t)
        assert not bs and not ha
        s.stamp(38)
        s.wait(s.h_pst); assert c.f_conv <= 24
        s.barrier(); s.stamp(11)
        for i in (0, 4, 1, 5, 2, 6, 3, 7): s(f'ds_read_b128 {vr(A+4*i)}, v14 offset:{L_Y + 1024*i}')
        fb = lambda: s.gflag8(6, sFO, sTAG, 23)
        if not c.fblate: fb()
        if c.hint_at == 72: s.gflag(7, 68, sTAG, 17, False)
        for i in (0, 4, 1, 5, 2, 6, 3, 7):
            ch = i >> 2
            for h in range(2): s(f'v_pk_add_f32 {vr(132+4*ch+2*h,2)}, {vr(132+4*ch+2*h,2)}, {vr(A+4*i+2*h,2)}')
        for r in range(4): s(f'v_cvt_pk_bf16_f32 v{140+r}, v{132+r}, v{136+r}')
        s('v_and_b32 v140, -2, v140')
        h = s.hstore(140)
        s.stamp(12)
        if c.fblate: fb()
        if c.hint_at == 73: s.gflag(7, 68, sTAG, 17, False)
        s.feed(c.f_hst, 63)
        return h

    def nonconv(s):
        c = s.cfg
        s(f'v_lshlrev_b32 v15, 7, v{vL}')
        if c.sb_at == 1: s.setup_b()
        s(f'v_lshlrev_b32 v15, 7, v{vL}')
        s(s.h2_addr())
        if c.dma_at == 0: s.pack_dma()
        s.publish_a(False)
        s.pack_late_store()
        s.poll(18, 17, 0, sleep=8)
        s.barrier(); s.stamp(8)
        s.gflag8(1, sFO, sTAG, 118)
        if c.clr_at is not None: s(f's_add_u32 s72, s{sFO}, {FC - FB}'); s.gflag8(2, 72, sTAG, 118)
        s(f's_add_u32 s70, s{sA2}, {14*1024 - 8192}')
        s.feed(c.f_hst, c.nc_depth)
        if c.warm: s(f'buffer_load_dword v119, v15, {sr(rG)}, s70 offen')
        if c.clr_at is not None:
            s(f's_mov_b32 s73, {FC - FA}'); s.poll(18, 17, 's73', sleep=8); s.barrier()
        s.wait_vm(0); s.stamp(10)
    def hint_wait(s):
        def body():
            s(f's_lshl_b32 s68, s2, 6\ns_add_u32 s68, s68, {FH - 32*64}\nv_mov_b32 v9, 0')
            s.poll(8, 9, 's68', 1, 0, sleep=4)
        s.cond(f's_cmp_lt_u32 s{sI}, 28', body)

    def h2(s, behind, mid=lambda: None, halo=False):
        ld = [f'buffer_load_dwordx4 {vr(8+4*j)}, v4, {sr(rWS)}, s88 offen offset:{128*j} sc1' for j in range(4)]
        chk = ['v_or3_b32 v24, v8, v12, v16', 'v_or_b32 v24, v24, v20', 'v_and_b32 v24, 1, v24', 'v_cmp_eq_u32 vcc, 1, v24']
        if s.cfg.hdel: s(f's_sleep {s.cfg.hdel}')
        for l in ld: s(l)
        s.poll_issue(25, 26, 0)
        mid()
        for l in chk: s(l)
        retry, back = s.lab('hr'), s.lab('hb')
        s(f's_mov_b32 s97, 0\ns_cbranch_vccnz {retry}')
        s.label(back)
        s.ool.append(f'{retry}:\n' + ('    s_mov_b64 exec, vcc\n' if s.cfg.hmask else '') + ''.join(f'    {l}\n' for l in ld) + f'    buffer_load_dword v25, v26, {sr(rWS)}, 0 offen sc1\n    s_add_u32 s97, s97, 1\n    s_cmp_gt_u32 s97, {SPIN}\n    s_waitcnt vmcnt(0)\n    s_cbranch_scc1 {back}\n'
                     + ''.join(f'    {l}\n' for l in chk) + f'    s_nop 1\n    s_cbranch_vccnz {retry}\n    s_branch {back}\n')
        if s.cfg.hmask: s('s_mov_b64 exec, -1')
        if s.stamps: s('v_writelane_b32 v3, s97, 59')
        s.stamp(14)
        if not s.cfg.hfeed: behind()
        if halo:
            s(f's_bitcmp1_b32 s{sQ}, 0\ns_cselect_b64 vcc, -1, 0')
            for i in range(2):
                for j in range(4): s(f'v_cndmask_b32 v{28+4*i+j}, v{10+4*j+i}, v{8+4*j+i}, vcc')
                s(f'ds_write_b128 v5, {vr(28+4*i)} offset:{64*i}')
        else:
            for j in range(4):
                for i in range(j): s(f'v_swap_b32 v{8+4*j+i}, v{8+4*i+j}')
            for i in range(4): s(f'ds_write_b128 v5, {vr(8+4*i)} offset:{64*i}')
        s.stamp(32)
        s.poll_check(25, 26, 0, 2)
        if s.cfg.hfeed: behind()
        if s.stamps: s('v_writelane_b32 v3, s97, 57')

    def stats_tail(s, a, extra, vadr, tab):
        if extra:
            s('s_mov_b64 exec, -1')
            for t in range(3): s(f'v_cndmask_b32 v{a+4*t}, v{a+4*t}, v{a+4*t+1}, s[92:93]')
            for t in range(3): s(f'v_cndmask_b32 v{a+4*t}, v{a+4*t}, v{a+4*t+2}, s[94:95]')
            for t in (1, 2):
                s(f'v_mov_b32_dpp v{a+4*t+1}, v{a+4*t+3} row_ror:{4*t}\nv_mov_b32_dpp v{a+4*t+2}, v{a+4*t} row_ror:{4*t}')
            for t in (1, 2):
                s(f'v_cndmask_b32 v{a+3}, v{a+3}, v{a+4*t+1}, {sr(76+2*t,2)}\nv_cndmask_b32 v{a}, v{a}, v{a+4*t+2}, {sr(76+2*t,2)}')
            s('s_mov_b32 exec_lo, 0x77700777\ns_mov_b32 exec_hi, 0x70777707')
        s(f'''v_mul_f32 v{a+3}, s96, v{a+3}
        v_mul_f32 v{a}, s96, v{a}
        v_fma_f32 v{a}, -v{a+3}, v{a+3}, v{a}
        v_max_f32 v{a}, 0, v{a}''')
        if extra:
            s(f'''v_fmaak_f32 v{a+2}, v{a}, v49, {fh(1e-10)}
            v_add_f32 v51, {EPS}, v{a}
            v_rsq_f32 v{a+1}, v{a+2}
            v_rsq_f32 v51, v51
            v_mul_f32 v{a}, {fh(C1)}, v{a+1}
            v_mul_f32 v{a+4}, {fh(0.044715)}, v{a+1}
            v_mul_f32 v{a+2}, v{a+2}, v{a+1}
            v_mul_f32 v{a+1}, v{a+1}, v{a}
            v_mul_f32 v50, -v{a+3}, v51
            v_mul_f32 v{a+1}, v{a+1}, v{a+4}
            ds_write_b64 v{extra}, v[50:51] offset:{tab // 2}
            ds_write_b128 v{vadr}, {vr(a)} offset:{tab}''')
        else:
            s(f'''v_add_f32 v50, {EPS}, v{a}
            v_rsq_f32 v{a+1}, v50
            v_cvt_pk_bf16_f32 v{a}, -v{a+3}, -v{a+3}
            v_mul_f32 v{a+2}, {fh(C1)}, v{a+1}
            v_mul_f32 v{a+4}, {fh(0.044715)}, v{a+1}
            v_and_b32 v51, 0xffff0000, v{a}
            v_add_f32 v51, v51, v{a+3}
            v_mul_f32 v{a+3}, v50, v{a+1}
            v_mul_f32 v{a+1}, v{a+1}, v{a+2}
            v_and_b32 v{a+2}, 0xffffff7f, v{a+2}
            v_mul_f32 v{a+1}, v{a+1}, v{a+4}
            v_and_b32 v{a+3}, 0xffffff7f, v{a+3}
            v_and_b32 v{a+1}, 0xffffff7f, v{a+1}
            ds_write_b128 v{vadr}, {vr(a)} offset:{tab}
            v_cvt_pk_bf16_f32 v{a}, -v51, -v51
            ds_write_b128 v{vadr}, {vr(a)} offset:{tab + 512}''')
    def gelu_pk(s, acc, cs, st, n, t, out):
        P = range(0, n, 2); o = []
        if s.cfg.gsc:
            R = range(n)
            o += [f'v_fma_f32 v{acc+i}, -v{cs+i}, v{st+3}, v{acc+i}' for i in R]
            if s.cfg.gsc == 2: return o + s.gelu_pk2(acc, cs, st, n, t, out)[n//2:]
            o += [f'v_mul_f32 v{t+i}, v{acc+i}, v{acc+i}' for i in R] + [f'v_fma_f32 v{t+i}, v{t+i}, v{st+1}, v{st}' for i in R]
            o += [f'v_mul_f32 v{t+i}, v{t+i}, v{acc+i}' for i in R] + [f'v_exp_f32 v{t+i}, v{t+i}' for i in R]
            o += [f'v_fma_f32 v{t+i}, v{t+i}, v{st+2}, v{st+2}' for i in R] + [f'v_rcp_f32 v{t+i}, v{t+i}' for i in R]
            o += [f'v_mul_f32 v{t+i}, v{t+i}, v{acc+i}' for i in R] + [f'v_cvt_pk_bf16_f32 v{out+i//2}, v{t+i}, v{t+i+1}' for i in P]
            return o
        return s.gelu_pk2(acc, cs, st, n, t, out)
    def gelu_pk2(s, acc, cs, st, n, t, out):
        P = range(0, n, 2); o = []
        o += [f'v_pk_fma_f32 {vr(acc+i,2)}, {vr(st+2,2)}, {vr(cs+i,2)}, {vr(acc+i,2)} op_sel:[1,0,0] op_sel_hi:[1,1,1] neg_lo:[1,0,0] neg_hi:[1,0,0]' for i in P]
        o += [f'v_pk_mul_f32 {vr(t+i,2)}, {vr(acc+i,2)}, {vr(acc+i,2)}' for i in P]
        o += [f'v_pk_fma_f32 {vr(t+i,2)}, {vr(st,2)}, {vr(t+i,2)}, {vr(st,2)} op_sel:[1,0,0] op_sel_hi:[1,1,0]' for i in P]
        o += [f'v_pk_mul_f32 {vr(t+i,2)}, {vr(t+i,2)}, {vr(acc+i,2)}' for i in P]
        o += [f'v_exp_f32 v{t+i}, v{t+i}' for i in range(n)]
        o += [f'v_pk_fma_f32 {vr(t+i,2)}, {vr(t+i,2)}, {vr(st+2,2)}, {vr(st+2,2)} op_sel_hi:[1,0,0]' for i in P]
        o += [f'v_rcp_f32 v{t+i}, v{t+i}' for i in range(n)]
        o += [f'v_pk_mul_f32 {vr(t+i,2)}, {vr(t+i,2)}, {vr(acc+i,2)}' for i in P]
        o += [f'v_cvt_pk_bf16_f32 v{out+i//2}, v{t+i}, v{t+i+1}' for i in P]
        return o
    def gelu_sc(s, acc, cs, st, n, t, out, ex):
        steps = [lambda i: f'v_fma_f32 v{acc+i}, -v{cs+i}, v{st+3}, v{acc+i}', lambda i: f'v_mul_f32 v{t+i}, v{acc+i}, v{acc+i}',
                 lambda i: f'v_fma_f32 v{t+i}, v{t+i}, v{st+1}, v{st}', lambda i: f'v_mul_f32 v{t+i}, v{t+i}, v{acc+i}',
                 lambda i: f'v_exp_f32 v{t+i}, v{t+i}', lambda i: f'v_fma_f32 v{t+i}, v{t+i}, v{st+2}, v{st+2}',
                 lambda i: f'v_rcp_f32 v{t+i}, v{t+i}', lambda i: f'v_mul_f32 v{t+i}, v{t+i}, v{acc+i}',
                 lambda i: f'v_cvt_pk_bf16_f32 v{out+i//2}, v{t+i}, v{t+i+1}' if i % 2 == 0 else '']
        for f in steps:
            ex.pop(0)()
            for i in range(n): s(f(i))
    def gemm16(s, W, acc, vaddr, kstride, first_zero, ex, bufs=(8, 12, 16, 20)):
        seq = [(ks, t) for ks in range(14) for t in range(2)]; nb = len(bufs); after = s.cfg.gaft
        def rd(i): ks, t = seq[i]; s(f'ds_read_b128 {vr(bufs[i%nb])}, v{vaddr} offset:{ks*kstride + 256*t}')
        for i in range(nb - 1 + after): rd(i)
        for i, (ks, t) in enumerate(seq):
            if not after and i + nb - 1 < 28: rd(i + nb - 1)
            c = 0 if (first_zero and ks == 0) else vr(acc + 4*t)
            s.fair(i, s.cfg.fg)
            s(f'v_mfma_f32_16x16x32_bf16 {vr(acc+4*t)}, {vr(W+4*ks)}, {vr(bufs[i%nb])}, {c}')
            if after and i + nb < 28: rd(i + nb)
            if ex: ex.pop(0)()
        if s.cfg.fg: s('s_setprio 0')
    def gemm32(s, jobs, vaddr, extra=None, nb=4, buf=8):
        seq = [(j, i) for j, job in enumerate(jobs) for i in range(job[1])]
        ex = list(extra or [])
        def rd(n): j, i = seq[n]; s(f'ds_read_b128 {vr(buf+4*(n%nb))}, v{vaddr} offset:{jobs[j][3] + 1024*i}')
        if s.cfg.prio: s('s_setprio 1')
        for n in range(nb - 1): rd(n)
        for n, (j, i) in enumerate(seq):
            W, nk, acc, _, after = jobs[j]
            if n + nb - 1 < len(seq): rd(n + nb - 1)
            s(f'v_mfma_f32_32x32x16_bf16 {vr(acc,16)}, {vr(W+4*i)}, {vr(buf+4*(n%nb))}, {vr(acc,16) if i else 0}')
            if ex: ex.pop(0)()
            if i == nk - 1 and after: ex += [lambda: None] * 3 + after
        s('s_setprio 0')
        s.run(ex)
    def g_pre(s):
        s.comment('G wave addresses (v6 GEMM1 B, v7 residual h, v50/v51 stats, masks)')
        s(f'''s_lshl_b32 s70, s{sQ}, 2
        s_lshr_b32 s71, 0x2213, s70
        s_and_b32 s71, s71, 15
        s_lshr_b32 s72, 0x0404, s70
        s_and_b32 s72, s72, 15
        v_and_b32 v44, 15, v{vL}
        v_lshrrev_b32 v45, 4, v{vL}
        v_add_u32 v46, s71, v44
        v_add_u32 v47, s72, v44''')
        s.pos(6, 46, 48)
        s(f'v_mul_u32_u24 v48, 768, v45\nv_add_u32 v6, v6, v48\nv_add_u32 v6, {L_HI}, v6')
        s.pos(7, 47, 48)
        s(f'''v_lshrrev_b32 v48, 1, v45
        s_lshl_b32 s73, s{sCT}, 1
        v_add_u32 v48, s73, v48
        v_mul_u32_u24 v48, 768, v48
        v_and_b32 v49, 1, v45
        v_lshl_add_u32 v48, v49, 3, v48
        v_add_u32 v7, v7, v48
        v_add_u32 v7, {L_HI}, v7
        s_sub_u32 s73, s71, s72
        s_lshl_b32 s70, s{sTB}, 5
        s_add_u32 s73, s73, s70
        v_add_u32 v48, s73, v44
        v_add_u32 v49, 16, v48
        s_movk_i32 s70, 2048
        v_cmp_gt_u32 {sr(sM0,2)}, s70, v48
        v_cmp_gt_u32 {sr(sM1,2)}, s70, v49
        v_lshlrev_b32 v50, 4, v46
        v_add_u32 v50, {L_STA}, v50
        v_lshlrev_b32 v51, 3, v47
        v_add_u32 v51, {L_STB}, v51''')
        for j in range(3): s(f's_add_u32 s70, s{sQ}, {j+1}\ns_and_b32 s70, s70, 3\ns_mul_i32 s70, s70, 7\ns_add_u32 s70, s70, s{sW}\ns_lshl_b32 s{4+j}, s70, 10')
        s(f'''s_lshl_b32 s7, s{sW}, 10
        s_mul_i32 s8, s{sTB}, 28672
        s_add_u32 s8, s8, {GX}
        s_xor_b32 s9, s{sTB}, 1
        s_mul_i32 s9, s9, 28672
        s_add_u32 s9, s9, s7
        s_add_u32 s9, s9, {X1}
        s_lshl_b32 s69, s{sCT}, 10
        s_add_u32 s70, s69, s8
        s_add_u32 s71, s70, {X1 - GX}
        v_add_u32 v46, s69, v{vL16}
        v_add_u32 v47, s7, v{vL16}''')
        for i in range(4): s(f'v_mov_b32 v{28+i}, 0x3f803f80')
        for ks in range(14): s(f'v_mfma_f32_16x16x32_bf16 v[32:35], {vr(vW1+4*ks)}, v[28:31], {"v[32:35]" if ks else 0}')

    def g_wave(s, hst):
        c = s.cfg
        assert c.f_hok <= 28
        s.g_pre()
        if c.hack: s.wait(hst)
        s.hint_wait()
        s.stamp(13)
        s.h2(lambda: s.feed(c.f_hok, 63), lambda: s.feed(c.f_hld, 63))
        s.pin(c.pins[2])
        s.barrier(); s.stamp(15)
        s(f'v_mov_b32 v4, {L_FAST}\nds_read_b32 v4, v4\nv_lshlrev_b32 v5, 4, v44\nv_lshl_add_u32 v5, v45, 9, v5')
        s.gemm16(vW1, 24, 6, 3072, True, s.spread(c.f_g1, 28), (8, 12, 16, 20, 36, 40)[:c.nb1])
        s.stamp(39)
        s(f'v_readfirstlane_b32 s{sFAST}, v4')
        s(f's_mul_i32 s69, s{sM}, 7\ns_add_u32 s69, s69, s{sW}\ns_mul_i32 s69, s69, 1792\ns_add_u32 s69, s69, {CSP}\nv_lshlrev_b32 v48, 2, v{vL}')
        csl = lambda: [s(f'buffer_load_dword v{164+i}, v48, {sr(rWS)}, s69 offen offset:{256*i}') for i in range(7)]
        if c.cs_at == 0: csl()
        if c.evb2:
            spin, back = s.lab('es'), s.lab('eb')
            rdl = ['ds_read_b32 v49, v4', 'ds_read_b128 v[36:39], v50', 'ds_read_b128 v[40:43], v50 offset:256'][:1 if c.evc else 3]
            s(f'v_mov_b32 v4, {L_EV + 6*2048 + 7*260}')
            for l in rdl: s(l)
            s(f'v_cmp_eq_u32 vcc, 0, v49\ns_mov_b32 s97, 0\ns_cbranch_vccnz {spin}'); s.label(back)
            s.ool.append(f'{spin}:\n' + ''.join(f'    {l}\n' for l in rdl) + f'    s_add_u32 s97, s97, 1\n    s_cmp_gt_u32 s97, {SPIN*8}\n    s_waitcnt lgkmcnt(0)\n    s_cbranch_scc1 {back}\n'
                         f'    v_cmp_eq_u32 vcc, 0, v49\n    s_nop 1\n    s_cbranch_vccnz {spin}\n    s_branch {back}\n')
            s.stamp(16)
            if c.evc: s('ds_read_b128 v[36:39], v50\nds_read_b128 v[40:43], v50 offset:256')
        else:
            s.barrier(); s.stamp(16)
            s('ds_read_b128 v[36:39], v50\nds_read_b128 v[40:43], v50 offset:256')
        gl = zipl(s.gelu_pk(24, 32, 36, 4, 8, 20), s.gelu_pk(28, 32, 40, 4, 12, 22))
        ex = s.spread(c.f_gel, len(gl))
        for l in gl: s(l); ex.pop(0)()
        s(f"""v_cndmask_b32 v20, 0, v20, {sr(sM0,2)}
        v_cndmask_b32 v22, 0, v22, {sr(sM1,2)}
        v_cndmask_b32 v21, 0, v21, {sr(sM0,2)}
        v_cndmask_b32 v23, 0, v23, {sr(sM1,2)}
        v_permlane16_swap_b32 v20, v22
        v_permlane16_swap_b32 v21, v23
        v_or_b32 v20, 1, v20""")
        s.xstore([f'buffer_store_dwordx4 v[20:23], v{vL16}, {sr(rWS)}, s70 offen'])
        s.stamp(17)
        s(f"""ds_write_b128 v46, v[20:23] offset:{L_GI}
        ds_read_b64 v[8:9], v7
        ds_read_b64 v[10:11], v7 offset:256
        ds_read_b64 v[12:13], v51
        ds_read_b64 v[14:15], v51 offset:128""")
        for i in range(4): s(f'v_lshlrev_b32 v{vRES+2*i}, 16, v{8+i}\nv_and_b32 v{vRES+1+2*i}, 0xffff0000, v{8+i}')
        for i in range(4): s(f'v_pk_fma_f32 {vr(24+2*i,2)}, {vr(12+2*(i>>1),2)}, {vr(vRES+2*i,2)}, {vr(12+2*(i>>1),2)} op_sel:[1,0,0] op_sel_hi:[1,1,0]')
        if c.dack[0]: s.wait_vm(0)
        s.stamp(18)
        hd, td = s.fetch_issue([(4+j, L_GI, 4+j, 's8') for j in range(3)])
        if c.bar_a: s('s_barrier')
        if c.cs_at == 1: csl()
        s.feed(c.f_b3a, 63)
        s(f'v_mov_b32 v34, 0x3f803f80\nv_lshrrev_b32 v35, 1, v47\nv_add_u32 v35, {L_PS}, v35\ns_mul_i32 s70, s{sW}, 260\ns_add_u32 s70, s70, {L_EV + 7*2048}\nv_mov_b32 v45, s70')
        p1, p2 = s.fetch_check(hd, td, 47, L_GI, 4, 8)
        p1(); p2(); s.stamp(42)
        if s.stamps: s('v_writelane_b32 v3, s97, 62')
        if c.cs_at == 2: csl()
        s.feed(c.f_gok, 63)
        s(f's_add_u32 s8, s8, {X1 - GX}\nv_add_u32 v47, {L_XI}, v47')
        s.barrier(); s.stamp(19)
        s.gemm16(vW2, 24, 5, 2048, False, s.spread(c.f_g2, c.g2span), (8, 12, 16, 20, 172, 176, 180, 184)[:c.nb2])
        for i in range(4): s(f'v_cvt_pk_bf16_f32 v{20+i}, v{24+2*i}, v{25+2*i}')
        s('v_permlane16_swap_b32 v20, v22\nv_permlane16_swap_b32 v21, v23\nv_or_b32 v20, 1, v20')
        s.xstore([f'buffer_store_dwordx4 v[20:23], v{vL16}, {sr(rWS)}, s71 offen'])
        s.stamp(20)
        s(f'ds_write_b128 v46, v[20:23] offset:{L_XI + 28672}')
        s('v_dot2_f32_bf16 v32, v20, v34, 0\nv_dot2_f32_bf16 v33, v20, v20, 0')
        for i in (21, 22, 23): s(f'v_dot2_f32_bf16 v32, v{i}, v34, v32\nv_dot2_f32_bf16 v33, v{i}, v{i}, v33')
        s(f"""v_mov_b32 v49, 0
        v_mov_b32 v50, 0
        v_mov_b32 v51, 0
        v_add_u32 v6, {L_XI}, v{vL16}
        s_lshl_b32 s70, s{sW}, 11
        s_add_u32 s70, s70, {L_HID}
        v_add_u32 v7, s70, v{vL16}
        v_add_u32 v44, {L_HID}, v{vL16}
        ds_write_b64 v35, v[32:33]
        s_mov_b64 exec, 1
        ds_write_b32 v45, v45
        s_mov_b64 exec, -1""")
        for i in range(8): s(f'v_add_f32 v{vRES+i}, v{vRES+i}, v{24+i}')
        if c.dack[1]: s.wait_vm(0)
        s.stamp(21)
        hd, td = s.fetch_issue([(7, L_XI + 7168*j, 9, 7168*j) for j in range(4)])
        s(f'''v_pk_add_f32 v[164:165], v[164:165], v[166:167]
        v_add_f32 v168, v168, v170
        v_pk_add_f32 v[164:165], v[164:165], v[168:169]
        v_add_f32 v164, v164, v165
        v_mov_b32 v165, v164
        v_permlane32_swap_b32 v164, v165
        v_add_f32 v164, v164, v165
        v_cvt_pk_bf16_f32 v48, v164, v164
        v_and_b32 v165, 0xffff0000, v48
        v_sub_f32 v165, v164, v165
        v_cvt_pk_bf16_f32 v48, v164, v165''')
        p1, p2 = s.fetch_check(hd, td, 47, 0, 4, 8)
        p1(); p2(); s.stamp(43)
        if s.stamps: s('v_writelane_b32 v3, s97, 63')
        hx, tx = s.fetch_issue([(4+j, L_XI + 28672, 4+j, 's8') for j in range(3)])
        s.feed(c.f_b4a, 63)
        later = []
        for r, x in ((12, 1), (15, 0)):
            later.append(f"""s_xor_b32 s69, s{sTB}, {x}
            s_mul_i32 s70, s69, 28
            s_add_u32 s70, s70, s{sCT}
            s_lshl_b32 s71, s70, 10
            s_add_u32 s{r}, s71, {GX}
            s_add_u32 s{r+1}, s71, {X1}
            s_lshl1_add_u32 s{r+2}, s71, {PX}
            s_lshl_b32 s69, s69, 5
            s_add_u32 s69, s69, s{sCT}
            s_lshl2_add_u32 s{18+x}, s69, {F7}""")
        later.append(f"""s_xor_b32 s72, s{sTB}, 1
        s_lshl_b32 s72, s72, 5
        s_lshr_b32 s74, s{sCT}, 2
        s_add_u32 s72, s72, s74
        s_lshl2_add_u32 s72, s72, {F7}
        s_bfe_u32 s74, s{sCT}, 0x10001
        s_mul_i32 s74, s74, {F7B - F7}
        s_add_u32 s72, s72, s74""")
        later.append(f"""s_mul_i32 s74, s{sTB}, 28
        s_lshr_b32 s22, s{sCT}, 2
        s_add_u32 s74, s74, s22
        s_lshl_b32 s74, s74, 10
        s_and_b32 s22, s{sCT}, 1
        s_lshl_b32 s71, s22, 21
        s_add_u32 s71, s71, s74
        s_add_u32 s71, s71, {GX}
        s_lshl_b32 s22, s22, 10
        s_lshl1_add_u32 s74, s74, s22
        s_add_u32 s74, s74, {PX}
        s_bitcmp1_b32 s{sCT}, 1
        s_cselect_b32 s74, s71, s74
        s_cselect_b32 s22, 7, 14
        s_lshl_b32 s22, s22, 10
        s_lshl1_add_u32 s75, s22, s74
        s_sub_u32 s22, s22, 1024
        v_lshrrev_b32 v28, 5, v{vL}
        v_mad_u32_u24 v5, v28, s22, v5
        s_mul_i32 s76, s{sTB}, {32*896}
        s_lshl_b32 s77, s{sCT}, 5
        s_add_u32 s76, s76, s77
        s_mov_b32 s{rX}, s{sOUT}
        s_mov_b32 s{rX+1}, s{sOUT+1}
        s_mov_b32 s{rX+2}, {2048*896}
        s_mov_b32 s{rX+3}, 0x20000""")
        AC, ST, A4 = (180, 164), (vST3, 160), ((112, 128), (180, 144))
        seq = []
        gp, gd = c.gp, c.gd
        for t, a, b in ((0, 0, gp), (1, 0, gd), (0, gp, 28), (1, gd, 28)): seq += [(vW3 + 4*k, AC[t], k == 0, (6, 28672*t + 1024*k)) for k in range(a, b)]
        use0 = lambda k: k if k < gp else k + gd
        e0 = 27 + gd
        for t in range(2):
            for j in range(2):
                prs = [(w, ctl) for w in range(7) for ctl in range(2)]
                if j == 1: prs = [(w, ctl ^ t) for ctl in range(2) for w in range(7)]
                seq += [((vW4A + 4*(2*w + ctl), vW4B + 4*(7*ctl + w))[j], A4[t][ctl], j == 0 and w == 0, (44, 14336*t + 1024*(2*w + j))) for w, ctl in prs]
        reads = []; ridx = []
        for n, e in enumerate(seq):
            if not reads or reads[-1][0] != e[3]: reads.append((e[3], n))
            ridx.append(len(reads) - 1)
        nb = 4
        rat = {}
        for r, (key, n) in enumerate(reads):
            free = max([m for m in range(112) if ridx[m] == r - nb], default=-1)
            rat[r] = max(free, n - c.pd)
        X = {i: [] for i in range(-1, 113)}
        def place(items, a, b):
            bu = c.burst
            for k, it in enumerate(items):
                p = a + (k * (b - a + 1)) // len(items)
                X[min(b, p + (bu - 1 - (p - a) % bu))].append(it)
        I = lambda t: (lambda: s(t))
        def gelu(t, h):
            acc, st, o, G = AC[t] + 8*h, ST[t], [], c.ggrp
            for j in range(0, 8, G):
                R = range(G); T = 24 + j
                o += [f'v_mul_f32 v{T+i}, v{acc+j+i}, v{acc+j+i}' for i in R]
                o += [f'v_fma_f32 v{T+i}, v{T+i}, v{st+1}, v{st+2}' for i in R]
                o += [f'v_mul_f32 v{T+i}, v{T+i}, v{acc+j+i}' for i in R]
                for i in R: o += [f'v_exp_f32 v{T+i}, v{T+i}', '']
                o += [f'v_fma_f32 v{T+i}, v{T+i}, v{st+3}, v{st+3}' for i in R]
                for i in R: o += [f'v_rcp_f32 v{T+i}, v{T+i}', '']
                o += [f'v_mul_f32 v{T+i}, v{T+i}, v{acc+j+i}' for i in R]
                o += [f'v_cvt_pk_bf16_f32 v{32+(j+i)//2}, v{T+i}, v{T+i+1}' for i in range(0, G, 2)]
            o.append(f'ds_write_b128 v7, v[32:35] offset:{14336*t + 1024*h}\nds_write_addtid_b32 v44 offset:{L_EV - 32768 + 2048*(2*t + h)}')
            return [I(x) for x in o]
        def sync(at, k, st):
            rdl = f'ds_read_b32 v4, v46 offset:{2048*k}'
            def chk():
                spin, back = s.lab('ls'), s.lab('lb')
                s(f's_cbranch_vccnz {spin}')
                s.label(back); s.stamp(st)
                s.ool.append(f'{spin}:\n    s_mov_b32 s97, 0\n{spin}a:\n    {rdl}\n    s_add_u32 s97, s97, 1\n    s_cmp_gt_u32 s97, {SPIN*8}\n    s_waitcnt lgkmcnt(0)\n    s_cbranch_scc1 {back}\n'
                             f'    v_cmp_eq_u32 vcc, 0, v4\n    s_nop 1\n    s_cbranch_vccz {back}\n    s_sleep 1\n    s_branch {spin}a\n')
            X[at - c.sd].append(I(rdl)); X[at].insert(0, I('v_cmp_eq_u32 vcc, 0, v4')); X[at].append(chk)
        hs = {}
        def blk(base, k): return f's{base + min(k ^ 2, 2)} offen offset:{1024 * (k == 1)}'
        def fin(t, ctl, h, pk, last=False):
            acc = A4[t][ctl] + 8*h
            def f():
                if t == 1:
                    un = A4[0][ctl] + 8*h
                    if last:
                        for i in range(0, 8, 2): s(f'v_pk_add_f32 {vr(acc+i,2)}, {vr(acc+i,2)}, {vr(un+i,2)}')
                    else:
                        for i in range(8): s(f'v_add_f32 v{acc+i}, v{acc+i}, v{un+i}')
                for i in range(4): s(f'v_cvt_pk_bf16_f32 v{pk+i}, v{acc+2*i}, v{acc+2*i+1}')
                s(f'v_or_b32 v{pk}, 1, v{pk}' if t else f'v_and_b32 v{pk}, -2, v{pk}')
                s.xstore([f'buffer_store_dwordx4 {vr(pk)}, v{vL16}, {sr(rWS)}, {blk(12 + 3*t, 2*ctl + h)}'])
                hs[t, ctl] = s.vm[-1][0]
            return f
        def stage1(ctl, at):
            fo = ctl * (F7B - F7)
            def flag():
                s(f'v_mov_b32 v45, s{sTAG}\ns_add_u32 s69, s18, {fo}')
                s.wait(hs[0, ctl]); s('s_mov_b64 exec, 1')
                s.xstore([f'buffer_store_dword v45, off, {sr(rWS)}, s69'])
                s('s_mov_b64 exec, -1')
            ld = [f'buffer_load_dwordx4 {vr(164 + 8*ctl + 4*h)}, v{vL16}, {sr(rWS)}, {blk(15, 2*ctl + h)} sc1' for h in range(2)]
            def fetch():
                if ctl == 0: s.poll_check(47, None, 's70'); s.stamp(45)
                for l in ld: s(l)
            def check():
                ck = ['v_or_b32 v4, v172, v176', 'v_and_b32 v4, 1, v4', 'v_cmp_eq_u32 vcc, 1, v4']
                retry, back = s.lab('sr'), s.lab('sb')
                for l in ck: s(l)
                s(f's_mov_b32 s97, 0\ns_cbranch_vccnz {retry}'); s.label(back); s.stamp(46)
                s.ool.append(f'{retry}:\n' + ''.join(f'    {l}\n' for l in ld) + f'    s_add_u32 s97, s97, 1\n    s_cmp_gt_u32 s97, {SPIN}\n    s_waitcnt vmcnt(0)\n    s_cbranch_scc1 {back}\n'
                             + ''.join(f'    {l}\n' for l in ck) + f'    s_nop 1\n    s_cbranch_vccnz {retry}\n    s_branch {back}\n')
            X[at[0]].append(fin(0, ctl, 0, 108)); X[at[1]].append(fin(0, ctl, 1, 196))
            X[at[2]].append(flag)
            if ctl == 0: X[at[3]].append(lambda: (s(f's_add_u32 s70, s19, {fo}'), s.poll_issue(47, None, 's70')))
            X[at[4]].append(fetch)
            if ctl == 1: X[at[5]].append(check)
            un = []
            for i in range(8): un += [f'v_lshlrev_b32 v{A4[0][ctl] + 2*i}, 16, v{164 + 8*ctl + i}', f'v_and_b32 v{A4[0][ctl] + 2*i + 1}, 0xffff0000, v{164 + 8*ctl + i}']
            place([I(x) for x in un], at[5], min(at[5] + 3, 111))
        bsave, c.burst = c.burst, 1
        ch = []
        for t in later:
            cur = []
            for l in t.split('\n'):
                if len(cur) >= 5 and 'cselect' not in l: ch.append('\n'.join(cur)); cur = []
                cur.append(l)
            ch.append('\n'.join(cur))
        assert not any(x.strip().split('\n')[-1].strip().startswith(('s_cmp', 's_bitcmp')) for x in ch)
        place([I(x) for x in ch], 8, 26)
        if s.wn < 56:
            w3e = c.w3e if c.w3e is not None else max(0, s.wn - 28 - 5)
            n3 = 56 - s.wn
            assert all((k * (w3e + 1)) // n3 < use0(s.wn - 28 + k) for k in range(n3)) and w3e < c.w4a[0]
            place([s.feed1] * n3, 0, w3e)
        if s.wn < 70: place([s.feed1] * (70 - max(s.wn, 56)), c.w4a[0], c.w4a[1])
        place([s.feed1] * 14, c.w4b[0], c.w4b[1])
        c.burst = bsave
        first = lambda n: rat[ridx[n]] - 1
        x1st = first(gp if gd else 28)
        assert c.x_at + 2 <= x1st - c.sd
        sync(x1st if gd else x1st - 3, 5, 49)
        sync(e0 - 3, 4, 23)
        X[e0 - 3].append(I(f'ds_read_b128 {vr(ST[0])}, v44 offset:{L_ST3 - L_HID}'))
        X[e0].append(I(f'v_mfma_f32_32x32x16_bf16 {vr(AC[0],16)}, v[48:51], {vr(ST[0])}, {vr(AC[0],16)}'))
        assert c.q[0] > e0
        q = c.q
        for k in range(4): place(gelu(k >> 1, k & 1), q[k], q[k+1] - 1)
        X[55].append(I(f'ds_read_b128 {vr(ST[1])}, v44 offset:{L_ST3 - L_HID + 1024}'))
        X[57].append(I(f'v_mfma_f32_32x32x16_bf16 {vr(AC[1],16)}, v[48:51], {vr(ST[1])}, {vr(AC[1],16)}'))
        for k in range(4):
            assert first(56 + 14*k) - c.sd >= q[k+1] - 1, (k, first(56 + 14*k))
            sync(first(56 + 14*k), k, (25, 26, 27, 41)[k])
        assert c.st0[4] >= q[3] and c.st1[4] >= q[4] and c.st1[5] > first(98) and c.st1[5] + 3 < 107 and c.st1[2] < c.fpoll
        stage1(0, c.st0); stage1(1, c.st1)
        X[107].append(fin(1, 1, 0, 108)); X[109].append(fin(1, 1, 1, 196)); X[112] += [fin(1, 0, 0, 24, c.lastpk), fin(1, 0, 1, 28, c.lastpk)]
        X[58].append(I(f'global_load_dwordx4 v[48:51], v{vL16}, s[94:95] offset:-1024'))
        X[q[4]].append(I(f'v_lshlrev_b32 v6, 3, v{vL}\nglobal_load_dwordx2 v[6:7], v6, s[94:95] offset:-1536'))
        X[c.fpoll].append(lambda: s.poll_issue(45, 7, 's72')); X[c.fpoll + c.fpd].append(lambda: s.poll_check(45, 7, 's72'))
        def rd(r): (va, off), _ = reads[r]; s(f'ds_read_b128 {vr(8+4*(r%nb))}, v{va} offset:{off}')
        p1, p2 = s.fetch_check(hx, tx, 47, 28672, 4, 24, f's_mov_b32 m0, s21')
        X[c.x_at].insert(0, p1); X[c.x_at + 2].append(lambda: (p2(), s(f'ds_write_addtid_b32 v44 offset:{L_EV - 32768 + 2048*5}')))
        s(f'v_and_b32 v46, 7, v{vL}\nv_mul_u32_u24 v46, 260, v46\nv_add_u32 v46, {L_EV}, v46\ns_lshl_b32 s21, s{sW}, 8\ns_add_u32 s21, s21, 32768\ns_mov_b32 m0, s21')
        s.pin(c.pins[3])
        s.barrier(); s.stamp(22)
        for r in range(len(reads)):
            if rat[r] < 0: rd(r)
        LS = [10, 26, 78, 80, 40, 42, 44, 46, 62, 64, 66, 88, 90, 92, 24]
        for n, (W, acc, fst, key) in enumerate(seq):
            if c.lst and n % 8 == 0: s.raw(f'    s_mem{"real" if c.lst == 2 else ""}time s[{LS[n//8]}:{LS[n//8]+1}]')
            s.fair(n, c.fm)
            s(f'v_mfma_f32_32x32x16_bf16 {vr(acc,16)}, {vr(W)}, {vr(8+4*(ridx[n]%nb))}, {0 if fst else vr(acc,16)}')
            for r in range(len(reads)):
                if rat[r] == n: rd(r)
            s.run(X[n])
        if c.lst: s.raw(f'    s_mem{"real" if c.lst == 2 else ""}time s[24:25]')
        s.run(X[112])
        if c.lst:
            s.wait_lg(0, force=True)
            for i, r in enumerate(LS): s(f'v_writelane_b32 v3, s{r}, {1 + i}')
        s.stamp(28)
        if c.dack[2]: s.wait_vm(0)
        s.stamp(29)
        ld = [f'buffer_load_dwordx4 {vr(52+8*u+4*t)}, v5, {sr(rWS)}, s{74+u} offen offset:{256*t} sc1' for u in range(2) for t in range(2)]
        ck = ['v_and_b32 v8, v52, v56', 'v_and_b32 v9, v60, v64', 'v_and_b32 v8, 1, v8', 'v_and_b32 v8, v8, v9', 'v_cmp_eq_u32 vcc, 0, v8']
        retry, back = s.lab('er'), s.lab('eb')
        for l in ld + ck: s(l)
        s(f's_mov_b32 s97, 0\ns_cbranch_vccnz {retry}'); s.label(back)
        s.ool.append(f'{retry}:\n' + ''.join(f'    {l}\n' for l in ld) + f'    s_add_u32 s97, s97, 1\n    s_cmp_gt_u32 s97, {SPIN}\n    s_waitcnt vmcnt(0)\n    s_cbranch_scc1 {back}\n'
                     + ''.join(f'    {l}\n' for l in ck) + f'    s_nop 1\n    s_cbranch_vccnz {retry}\n    s_branch {back}\n')
        s.stamp(30)
        for u in range(2):
            for t in range(2): s(f'v_mfma_f32_16x16x32_bf16 {vr(vRES+4*t)}, v[48:51], {vr(52+8*u+4*t)}, {vr(vRES+4*t)}')
        for i in range(4): s(f'v_cvt_pk_bf16_f32 v{20+i}, v{vRES+2*i}, v{vRES+1+2*i}')
        s('v_permlane16_swap_b32 v20, v22\nv_permlane16_swap_b32 v21, v23')
        s(f'buffer_store_dwordx4 v[20:23], v6, {sr(rX)}, s76 offen')
        s.stamp(31)

    def s_mfma(s, addrs, acc, kstride, base, nk=14):
        seq = [(ks, t) for ks in range(nk) for t in range(3)]
        nb = 8
        def rd(i): ks, t = seq[i]; s(f'ds_read_b128 {vr(52+4*(i%nb))}, v{addrs+t} offset:{base + ks*kstride}')
        s('s_mov_b32 exec_lo, 0x77777777\ns_mov_b32 exec_hi, 0x77777777')
        for i in range(nb - 1): rd(i)
        for i, (ks, t) in enumerate(seq):
            if i + nb - 1 < len(seq): rd(i + nb - 1)
            s(f'v_mfma_f32_16x16x32_bf16 {vr(acc+4*t)}, {vr(52+4*(i%nb))}, {vr(52+4*(i%nb))}, {vr(acc+4*t) if ks else 0}')
    def s_wave(s, hst):
        s.comment('S wave: statistics, polling, DMA')
        s.pin(s.cfg.pins[4])
        s('s_setprio 2')
        s(f'''s_and_b32 s70, s2, 0xc7
        s_lshl_b32 s70, s70, 4
        s_mul_i32 s71, s{sXCD}, {FCP}
        s_add_u32 s70, s70, s71
        s_add_u32 s70, s70, {FA}
        v_and_b32 v44, 7, v{vL}
        v_lshlrev_b32 v44, 7, v44
        buffer_load_dword v48, v44, {sr(rWS)}, s70 offen sc1''')
        def ftouch():
            s(f'''s_lshl_b32 s72, s{sTB}, 7
            s_add_u32 s72, s72, {F5}
            s_lshl2_add_u32 s4, s{sTB}, s{sQ}
            s_lshl_b32 s4, s4, 9
            s_add_u32 s4, s4, {ST1}
            s_mov_b32 m0, {L_JUNK}
            v_min_u32 v45, 2, v{vL}
            v_lshlrev_b32 v45, 13, v45
            v_and_b32 v47, 0x180, v7
            buffer_load_dword v45, {sr(rWS)}, s72 offen sc1 lds
            buffer_load_dword v47, {sr(rWS)}, s4 offen sc1 lds''')
            if s.cfg.etouch:
                s(f's_mul_i32 s70, s{sTB}, 28\ns_add_u32 s70, s70, s{sCT}\ns_lshl_b32 s70, s70, 11\ns_add_u32 s70, s70, {PX - 7*2048}\ns_add_u32 s71, s70, 7168\ns_mov_b32 exec_hi, 0x00ffffff')
                s(f'buffer_load_dword v7, {sr(rWS)}, s70 offen sc1 lds\nbuffer_load_dword v7, {sr(rWS)}, s71 offen sc1 lds\ns_mov_b32 exec_hi, -1')
        def setup():
            for i in range(32): s(f'v_mov_b32 v{52+i}, 0x3f803f80')
            s(f'''v_and_b32 v44, 3, v{vL}
        v_bfe_u32 v45, v{vL}, 2, 2
        v_mad_u32_u24 v40, v45, 3, v44
        v_lshrrev_b32 v41, 4, v{vL}''')
            for t in range(3):
                s(f'v_add_u32 v46, {12*t}, v40')
                s.pos(84 + t, 46, 47)
                s(f'v_mul_u32_u24 v47, 768, v41\nv_add_u32 v{84+t}, v{84+t}, v47\nv_add_u32 v{84+t}, {L_HI}, v{84+t}')
            s(f'''v_sub_u32 v45, v45, v41
        v_and_b32 v45, 3, v45
        v_cmp_eq_u32 s[78:79], 1, v45
        v_cmp_eq_u32 s[80:81], 2, v45
        v_mad_u32_u24 v40, v41, 3, v44
        v_mad_u32_u24 v40, v45, 12, v40
        v_lshlrev_b32 v42, 4, v40
        v_add_u32 v42, {L_STA}, v42
        v_lshlrev_b32 v43, 3, v40
        v_add_u32 v43, {L_STB}, v43
        v_lshlrev_b32 v6, 2, v{vL}
        v_lshlrev_b32 v7, 7, v{vL}
        v_cmp_ne_u32 vcc, s{sTX}, v48
        v_mov_b32 v46, {L_FAST}
        s_cmp_eq_u64 vcc, 0
        s_cselect_b32 s{sFAST}, 1, 0
        v_mov_b32 v45, s{sFAST}
        ds_write_b32 v46, v45
        v_and_b32 v38, 7, v{vL}
        v_mul_u32_u24 v38, 260, v38
        v_add_u32 v38, {L_EV}, v38
        v_lshlrev_b32 v46, 8, v{vL}
        v_and_b32 v46, 0x3800, v46
        v_add_u32 v46, v46, v38
        s_mov_b32 vcc_lo, 0x80800080
        s_mov_b32 vcc_hi, 0x8000807f
        v_cndmask_b32 v45, 0, v38, vcc
        ds_write_b32 v46, v45''')
        if not s.cfg.searly: setup()
        s(f'''s_and_b32 s70, s{sQ}, 1
        s_mul_i32 s71, s70, 9
        s_lshl3_add_u32 s71, s{sTB}, s71
        s_sub_u32 s71, s71, 1
        s_max_i32 s71, s71, 0
        s_min_i32 s71, s71, 511
        s_lshr_b32 s88, s71, 3
        s_mul_i32 s88, s88, 28672
        s_and_b32 s71, s71, 7
        s_lshl4_add_u32 s88, s71, s88
        s_add_u32 s88, s88, {X1}
        s_mul_i32 s70, s70, 384
        s_add_u32 s70, s70, {L_HI + 128}
        v_min_u32 v5, 55, v{vL}
        v_lshlrev_b32 v4, 9, v5
        v_mul_u32_u24 v5, 768, v5
        v_add_u32 v5, s70, v5''')
        s.wait(hst); s.hint_wait()
        s.stamp(13)
        s.h2(ftouch, setup if s.cfg.searly else (lambda: None), halo=True)
        s(f'v_cmp_eq_u32 s[92:93], 1, v44\nv_cmp_eq_u32 s[94:95], 2, v44\ns_mov_b32 s96, {INVD}\nv_mov_b32 v49, {fh(1 + 1e-5)}')
        s(f'''s_lshl2_add_u32 s70, s{sTB}, s{sQ}
        s_lshl_b32 s71, s70, 4
        s_add_u32 s71, s71, {FN}
        v_and_b32 v45, 1, v{vL}
        v_lshlrev_b32 v45, 3, v45
        v_sub_u32 v45, v44, v45
        s_lshl2_add_u32 s72, s{sTB}, 4
        v_add_u32 v45, s72, v45
        v_mov_b32 v47, s70
        v_cmp_gt_u32 vcc, 0x100, v45
        v_mov_b32 v36, s{sTAG}
        s_mov_b32 s72, {FN}
        v_cndmask_b32 v45, v47, v45, vcc
        s_xor_b32 s70, s70, 4
        v_writelane_b32 v45, s70, 4
        v_lshlrev_b32 v37, 4, v45''')
        s.barrier(); s.stamp(15)
        s(f's_mov_b64 exec, 1\nbuffer_store_dword v36, off, {sr(rWS)}, s71 sc1')
        s.s_mfma(84, 24, 3072, 0)
        s.stamp(39)
        s.stats_tail(24, 43, 42, 0)
        if s.cfg.evp: s.wait_lg(0)
        if s.cfg.evb2: s(f's_mov_b64 exec, 0x80\nds_write_b32 v38, v38 offset:{6*2048}\ns_mov_b64 exec, -1')
        else: s('s_mov_b64 exec, -1'); s.barrier()
        s.stamp(16)
        s.poll(4, 37, 's72', 31, 0, sleep=4)
        def lwait(k):
            l, l2, l3 = s.lab('tw'), s.lab('tx'), s.lab('ty')
            s(f's_mov_b32 s97, 0\ns_branch {l2}'); s.label(l); s(f's_sleep 1\ns_add_u32 s97, s97, 1\ns_cmp_gt_u32 s97, {SPIN*8}\ns_cbranch_scc1 {l3}'); s.label(l2)
            s(f'ds_read_b32 v4, v38 offset:{2048*k}\nv_cmp_eq_u32 vcc, 0, v4\ns_cbranch_vccnz {l}'); s.label(l3)
        post = lambda k: s(f's_mov_b64 exec, 0x80\nds_write_b32 v38, v38 offset:{2048*k}\ns_mov_b64 exec, -1')
        def touch():
            s(f'''s_mul_i32 s70, s{sTB}, 28
            s_mul_i32 s71, s{sQ}, 7
            s_add_u32 s70, s70, s71
            s_lshl_b32 s71, s70, 10
            s_add_u32 s71, s71, {GX}
            s_add_u32 s69, s71, {X1 - GX}
            s_lshl_b32 s70, s70, 11
            s_add_u32 s70, s70, {PX}
            s_mov_b32 m0, {L_JUNK}
            s_mov_b32 exec_hi, 0x00ffffff''')
            rf = f'buffer_load_dword v7, {sr(rWS)}, s71 offen sc1 lds\nbuffer_load_dword v7, {sr(rWS)}, s69 offen sc1 lds'
            if s.cfg.refresh == 1: s(rf)
            for i in range(2):
                k = (s.cfg.touch_at, s.cfg.touch2)[i]
                if k < 4: lwait(k)
                s(f'buffer_load_dword v7, {sr(rWS)}, s70 offen sc1 lds\ns_add_u32 s70, s70, 7168')
            if s.cfg.refresh == 2: s(rf)
            s('s_mov_b32 exec_hi, -1')
        s(f"""v_lshlrev_b32 v39, 3, v{vL}
        v_add_u32 v39, {L_PS}, v39
        v_and_b32 v40, 0x1f0, v{vL16}
        v_lshrrev_b32 v41, 5, v{vL}
        v_lshl_add_u32 v42, v41, 10, v40
        v_add_u32 v42, {L_ST3}, v42
        v_xor_b32 v41, s{sTB}, v41
        v_xor_b32 v41, 1, v41
        v_lshl_add_u32 v40, v41, 11, v40
        v_mov_b32 v10, s{sTAG}
        v_mov_b32 v11, s{sTAG}
        s_mov_b32 s5, {ST1}""")
        for i in range(1 + s.cfg.bar_a): s('s_barrier')
        lwait(7)
        for i in range(7): s(f'ds_read_b64 {vr(12+2*i,2)}, v39 offset:{512*i}')
        for h in range(2): s(f'v_add_f32 v{12+h}, v{12+h}, v{14+h}\nv_add_f32 v{16+h}, v{16+h}, v{18+h}')
        for h in range(2): s(f'v_add_f32 v{20+h}, v{20+h}, v{22+h}\nv_add_f32 v{12+h}, v{12+h}, v{16+h}')
        for h in range(2): s(f'v_add_f32 v{20+h}, v{20+h}, v{24+h}')
        for h in range(2): s(f'v_add_f32 v{8+h}, v{12+h}, v{20+h}\nv_add_f32 v{12+h}, v{12+h}, v{20+h}')
        for h in range(2): s(f'v_permlane32_swap_b32 v{8+h}, v{12+h}')
        for h in range(2): s(f'v_add_f32 v{8+h}, v{8+h}, v{12+h}')
        s('s_mov_b32 exec_hi, 0')
        s.xstore([f'buffer_store_dwordx4 v[8:11], v{vL16}, {sr(rWS)}, s4 offen'])
        s('s_mov_b32 exec_hi, -1\ns_barrier')
        s.stamp(22)
        ld = [f'buffer_load_dwordx4 {vr(52+4*j)}, v40, {sr(rWS)}, s5 offen offset:{512*j} sc1' for j in range(4)]
        ck = [f'v_xor_b32 v{54+4*j}, s{sTAG}, v{54+4*j}' for j in range(4)] + ['v_or3_b32 v54, v54, v58, v62', 'v_or_b32 v54, v54, v66', 'v_cmp_ne_u32 vcc, 0, v54']
        retry, back = s.lab('xr'), s.lab('xb')
        for l in ld + ck: s(l)
        s(f's_mov_b32 s97, 0\ns_cbranch_vccnz {retry}'); s.label(back)
        s.ool.append(f'{retry}:\n' + ''.join(f'    {l}\n' for l in ld) + f'    s_add_u32 s97, s97, 1\n    s_cmp_gt_u32 s97, {SPIN}\n    s_waitcnt vmcnt(0)\n    s_cbranch_scc1 {back}\n'
                     + ''.join(f'    {l}\n' for l in ck) + f'    s_nop 1\n    s_cbranch_vccnz {retry}\n    s_branch {back}\n')
        for h in range(2): s(f'v_add_f32 v{52+h}, v{52+h}, v{56+h}\nv_add_f32 v{60+h}, v{60+h}, v{64+h}')
        s('v_add_f32 v27, v52, v60\nv_add_f32 v24, v53, v61')
        s.stats_tail(24, None, 42, 0)
        s.wait_lg(0); post(4)
        s.stamp(23)
        lwait(5)
        s(f's_lshl_b32 s72, s{sCL}, 8\ns_add_u32 s72, s72, {F5 + 28}\ns_lshl_b32 s73, s{sM}, 5\ns_add_u32 s73, s73, s72\nv_lshlrev_b32 v37, 5, v{vL}')
        s.flag(73)
        s.poll(4, 37, 's72', '0xff', 0, sleep=2)
        post(1)
        def heat(n):
            s('s_setprio 0')
            for i in range(n):
                s(f'v_mfma_f32_32x32x16_bf16 v[100:115], {vr(52+4*(i%8))}, {vr(52+4*((i+3)%8))}, {"v[100:115]" if i % 8 else 0}')
                if s.cfg.x_heat[1]: s(f's_nop {s.cfg.x_heat[1] - 1}')
        if s.cfg.x_heat: heat(s.cfg.x_heat[0])
        s.stamp(25)
        if s.cfg.touch_at != 5: touch()
        if s.cfg.x_heat: heat(s.cfg.x_heat[0])
        s.cond('s_cmp_lg_u32 s2, 0', lambda: s(f'v_mov_b32 v4, s{sTAG}\ns_mov_b32 s70, {EP}\ns_mov_b64 exec, 1\nbuffer_store_dword v4, off, {sr(rWS)}, s70 sc1\ns_mov_b64 exec, -1'))
        s.wait_vm(0); s.stamp(28)

def build(stamps=False, cfg=None):
    s = K(stamps, cfg or Cfg())
    c = s.cfg
    s.entry(); s.setup(); s(s.scalars())
    if c.dma_at == -1: s(f's_cmp_lt_u32 s43, 2\ns_cmov_b32 s{rW+2}, {448*896}'); s.pack_dma()
    if c.sb_at == 0: s.setup_b()
    s.stamp(34); s.ln()
    s(f's_cmp_ge_u32 s{sI}, 28'); s.flush_hazards(); s('s_cbranch_scc1 Lnonconv')
    st = s.state()
    if c.clr_at is None: s.clear()
    if c.sb_at == 1: s.setup_b()
    s.stamp(33)
    if c.dma_at == 0: s.pack_dma()
    if c.fa_at == -1: s.publish_a()
    s.kgen(); hst = s.conv()
    s.label('Ljoin')
    s(f'v_mov_b32 v4, v21\nv_mov_b32 v5, v22\ns_cmp_eq_u32 s{sW}, 7'); s.flush_hazards(); s('s_cbranch_scc1 Lsw')
    st2 = s.state()
    s.g_wave(hst); s.dump_stamps(); s('s_endpgm')
    s.label('Lsw'); s.set_state(st2)
    s.s_wave(hst); s.dump_stamps()
    s.label('Lend'); s('s_endpgm')
    s.label('Lnonconv'); s.set_state(st); s.wn = 0
    s.nc = 100; s.nonconv(); s.flush_hazards(); s('s_branch Ljoin')
    name = NAME + '_kernel'
    txt = f'''; @launch grid=(256,1,1) block=(512,1,1) lds={LDS_BYTES}
.amdgcn_target "amdgcn-amd-amdhsa--gfx950"
.text
.globl {name}
.p2align 8
.type {name},@function
{name}:
''' + s.text() + ''.join(s.ool) + tap_table() + f'''.section .rodata,"a"
.p2align 6
.amdhsa_kernel {name}
  .amdhsa_next_free_vgpr 256
  .amdhsa_next_free_sgpr 102
  .amdhsa_accum_offset 256
  .amdhsa_group_segment_fixed_size 0
  .amdhsa_kernarg_size 120
  .amdhsa_user_sgpr_count 2
  .amdhsa_user_sgpr_kernarg_segment_ptr 1
  .amdhsa_system_sgpr_workgroup_id_x 1
.end_amdhsa_kernel
'''
    size, syms = code_info(txt.replace('@CODE_BYTES@', '1000').replace('@TAB_OFF@', '1000'))
    return txt.replace('@CODE_BYTES@', str(syms['tap_table'] + 2048 + 4224 - syms['Lpc'] - 4)).replace('@TAB_OFF@', str(syms['tap_table'] - syms['Lpc']))
def tap_table():
    RB = {8: 0, 4: 16, 2: 24, 6: 28, 1: 32, 3: 34, 5: 36, 7: 38}
    def rnd(l):
        sh = max(0, l.bit_length() - 8)
        if not sh: return l
        q, r = l >> sh, l & ((1 << sh) - 1); half = 1 << (sh - 1)
        return (q + (r > half or (r == half and q & 1))) << sh
    v = []
    for i in range(2056):
        l = 2047 - i
        if l < 0: e = 768
        elif l == 0: e = 640
        else: p = rnd(l); e = RB[((p - 1) & 7) + 1] * 16 + ((p - 1) >> 3)
        v.append(e * 16)
    v += [0] * 56
    lane = []
    for l in range(64):
        n, g = l & 15, l >> 4; tb = 2*n + (g >> 1); rr, cc = (l >> 2) & 3, l & 3
        bb = lambda c_: 32*c_ + 16*((c_ >> 3) & 1)
        lane.append([4*(4*g - (n >> 1)) + 28 + KEO*(1 - (n & 1)), bb(30 + 2*n + g), bb(26 + 2*n + g), (l >> 1)*896 + 16*((l ^ g) & 1),
                     tb*64 + (g & 1)*32, (n >> 1)*1792 + 4*(n & 1) + g, bb(tb) + 8*(g & 1), (g*64 + n)*16 + 4*((l >> 3) & 3),
                     n*KGP + 16*g, (8*g + rr)*64 + cc*8, (8*(g >> 1) + rr)*64 + (g & 1)*32 + (cc & 1)*16 + (cc >> 1)*8,
                     (l >> 2)*896 + cc*16, (l >> 2)*3584 + cc*16, rr*LNP + 32*g + 8*cc, rr*KEO + 16*(l & 1), 14*min(l & 31, 27)])
    pk = []
    for b in range(256):
        for w in range(8):
            U = 256*w + 32*(b & 7) + (b >> 3)
            if U < 392: m, V = divmod(U, 196); kb, cb = divmod(V, 14); src = kb*32*896; d0 = 392*m + 28*cb + kb; d1 = d0 + 14
            elif U < 1176: m = 2; kb, cb = divmod(U - 392, 56); src = kb*32*3584; d0 = 784 + 28*cb + 2*kb; d1 = d0 + 1
            elif U < 1960: m = 3; kb, cb = divmod(U - 1176, 14); src = kb*32*896; d1 = 2352 + ((kb//7)*7 + (cb >> 1))*28; d0 = d1 + 2*(kb % 7) + (cb & 1); d1 += 14 + 7*(cb & 1) + kb % 7
            else: m, cb, src, d0, d1 = 4, 0, 0, 0, 0
            pk += [(m << 24) | (src + 64*cb), d0 | (d1 << 16)]
    t = '.p2align 7\n.type tail_table,@object\ntail_table:\n'
    for l in range(64): t += f'.long {(l & 31)*896 + (l >> 5)*16}, {(l & 3)*28}\n'
    for l in range(64): t += '.short ' + ', '.join('0x3f80' if (l & 15) == 8*((l >> 4) & 1) + j else '0' for j in range(8)) + '\n'
    t += '.size tail_table, 1536\n.type tap_table,@object\ntap_table:\n'
    for h in range(2):
        for l in range(64): t += '.short ' + ', '.join(map(str, lane[l][8*h:8*h+8])) + '\n'
    for i in range(0, 2112, 8): t += '.short ' + ', '.join(map(str, v[i:i+8])) + '\n'
    for i in range(0, 4096, 8): t += '.long ' + ', '.join(map(str, pk[i:i+8])) + '\n'
    return t + f'.size tap_table, {2048 + 4224 + 16384}\n'
def code_info(txt):
    import subprocess, tempfile, re
    with tempfile.TemporaryDirectory() as d:
        open(d + '/a.s', 'w').write(txt)
        subprocess.run(['clang', '-x', 'assembler', '-target', 'amdgcn-amd-amdhsa', '-mcpu=gfx950', '-c', d + '/a.s', '-o', d + '/a.o'], check=True)
        o = subprocess.run(['llvm-readelf', '-S', '-s', d + '/a.o'], capture_output=True, text=True).stdout
        size = int(re.search(r'\.text\s+PROGBITS\s+\S+\s+\S+\s+(\S+)', o).group(1), 16)
        return size, {m.group(2): int(m.group(1), 16) for m in re.finditer(r'\d+: ([0-9a-f]{16}) .* (\S+)\n', o)}
if __name__ == '__main__':
    sys.stdout.write(build(stamps=len(sys.argv) > 1))
```

```python
import sys, os, struct
sys.path.insert(0, os.path.dirname(os.path.abspath(__file__)))
from dsl import Asm, Ins

NAME = 'sequential_preLN__ssm_conv_s4d__mixer_s_mlp__prompt'
W1P, W2P, W3P, W4P = 0, 392 * 1024, 784 * 1024, 2352 * 1024
SM, CSP, ST1 = 0x600000, 0x700000, 0x780000
GX, X1, PX = 0xA00000, 0xC00000, 0x1000000
FL = 0x2000000
F3, F4, F5, F7, F7B = FL, FL + 0x2000, FL + 0x4000, FL + 0x6000, FL + 0x8000
FH, FN, EP, FA, FB = FL + 0x1A000, FL + 0x1E000, FL + 0x20000, FL + 0x30000, FL + 0x40000
FC = FL + 0x50000
FCP = 4352
TS = 0x3000000
WS_BYTES = 0x4000000
L_LN, LNP = 0, 960
L_PK = 119296
L_KG, KGP = 31744, 288
L_Y = 0
L_KT, KTSZ = 68608, 12320
L_KE, KEO, KECH = 93312, 4160, 8320
L_U = 110080
L_SM = 8 * LNP
L_HI, L_GI, L_XI, L_HID, L_ST = 106880, 0, 28672, 106880, 149888
L_STA, L_STB, L_FAST, L_JUNK, L_ST3 = L_ST, L_ST + 768, L_ST + 1152, L_ST + 1280, L_ST + 1536
L_PS = 102400
L_EV = 86016
LDS_BYTES = 153600
LOG2E, INV2PI, EPS, INVD = 0x3fb8aa3b, 0x3e22f983, 0x3727c5ac, 0x3b124925
C1 = -2.0 * 0.7978845608028654 * 1.4426950408889634
def fh(x): return '0x%08x' % struct.unpack('<I', struct.pack('<f', x))[0]
SPIN = 1 << 18
sX, sLA, sAI, sCR, sCI, sDT, sDS = 4, 6, 8, 10, 12, 14, 16
sW1, sW2, sW3, sW4, sOUT, sWS = 20, 22, 24, 26, 28, 30
rWS, rX, rD, rW, rG = 32, 36, 40, 44, 48
sW, sXCD, sI, sP, sTAG, sTB, sQ, sCL, sM, sFAST = range(52, 62)
sPD0, sPD1, sUO, sSM, sFO, sPACT = range(62, 68)
sUS, sKG, sHD, sUM = 74, 75, 76, 77
sLDT, sD0, sD1 = 40, 41, 42
sM0, sM1, sCT, sTX = 78, 80, 82, 83
sA1, sA2, sA3, sA4 = 84, 85, 86, 87
def sr(n, k=4): return f's[{n}:{n+k-1}]'
def vr(n, k=4): return f'v[{n}:{n+k-1}]'
vL16, vL = 1, 2
vW1, vW2, vW3, vW4A, vW4B = 144, 200, 52, 200, 52
vCS3, vAC3, vST3, vRES = 164, 180, 196, 36

class Cfg:
    f_kt = 3
    fa_at, dma_at, poll_at, chk_at, pst_at, fa_sleep = 1, 5, 4, 7, 8, 1
    fslot = 2
    u_at, uchk_at, pslot = 2, 7, 24
    rsplit = 8
    f_conv = 15
    f_hst = 15
    f_hld = 15
    f_hok = 24
    f_g1 = 35
    f_gel = 0
    x_dp, g2span = 0, 14
    f_gfl = 0
    f_b3a = 0
    f_g2 = 43
    f_xfl = 0
    f_b4a = 45
    two = 0
    tab = 0
    xbar = 0
    fb_at = 0
    x_nof = 99
    prio = 0
    bar_a, x_at = 0, 3
    ggrp, burst, pd, sd = 8, 1, 3, 2
    q = (33, 47, 60, 73, 86)
    st0, st1, lastpk = (79, 80, 89, 94, 100, 108), (86, 87, 96, 0, 95, 103), 1
    w4a, w4b = (17, 44), (45, 68)
    nc_depth, hint_at, fblate = 16, 72, 0
    depth = 4
    touch_at = 1
    warm = 1
    edma = 0
    ppos = 0
    help, hpos, htab = 0, 0, 1
    umap = 2
    tlb, tlbi = 0, 28
    x_only, x_dbl, x_skew = None, 0, None
    x_mark = None
    gaft, nb1, nb2 = 0, 4, 4
    x_heat = None
    x_pad = None
    pal, pins = 3, (None,) * 5
    gsc = 1
    evb2, searly, evp, evc = 1, 1, 1, 0
    fpd = 8
    hfeed = 1
    dack, fpoll, cs_at, f_gok = (1, 1, 1), 103, 2, 37
    etouch, touch2 = 0, 4
    x_ns = x_nc = 0
    gp, gd, w3e = 17, 4, 16
    hack, hdel, hmask = 1, 0, 0
    upf = 0
    ktm = 2
    kbar = 0
    lst2, lregs = (), (4, 6, 8, 10, 12, 14, 16, 18, 20, 22, 24, 26, 36, 38, 98)
    fm, fc, fg = 4, 0, 0
    lst = 0
    sb_at, clr_at, cslot = 1, None, 40
    cil, chead, cpace, clead, cy0, cyp = 0, 9, 1.0, 5, 42, 4
    rts = 0
    refresh = 0
    tdepth = 1
    cpf = 1
    x_late = 0

def zipl(*streams):
    out = []; n = max(len(x) for x in streams)
    for i in range(n):
        for x in streams:
            if i < len(x): out.append(x[i])
    return out

class K(Asm):
    def __init__(s, stamps, cfg):
        super().__init__(); s.stamps = stamps; s.cfg = cfg; s.ool = []; s.nlab = 0; s.wn = 0
    def lab(s, p): s.nlab += 1; return f'L{p}{s.nlab}'
    def srd(s, r, ptr, size):
        s(f's_mov_b32 s{r}, s{ptr}\ns_mov_b32 s{r+1}, s{ptr+1}\ns_mov_b32 s{r+2}, {size}\ns_mov_b32 s{r+3}, 0x20000')
    def stamp(s, idx, real=False):
        if s.cfg.x_mark == idx + getattr(s, 'nc', 0): s.raw('    s_memrealtime s[98:99]')
        if s.cfg.x_mark is not None and idx == 31: s.wait_lg(0, force=True); s.raw('    s_mov_b32 s101, s98' if not s.cfg.x_dbl else '    s_sub_u32 s101, s98, s101\n    s_add_u32 s101, s101, s98\n    s_sub_u32 s101, s101, 1500')
        if s.cfg.x_pad and idx == s.cfg.x_pad[0]:
            l = s.lab('pad'); s.wait_lg(0)
            if s.cfg.x_only is not None: s.raw(f'    s_and_b32 s98, s2, {s.cfg.x_only[0]}\n    s_cmp_lg_u32 s98, {s.cfg.x_only[1]}\n    s_cbranch_scc1 Lend')
            s.label(l)
            s.raw(f'    s_memrealtime s[98:99]\n    s_waitcnt lgkmcnt(0)\n    s_sub_u32 s98, s98, s101\n    s_cmp_lt_u32 s98, {s.cfg.x_pad[1]*100}\n    s_cbranch_scc1 {l}')
        if idx in s.cfg.lst2:
            r = s.cfg.lregs[list(s.cfg.lst2).index(idx)]
            s.raw(f'    s_memtime s[{r}:{r+1}]')
            if idx == s.cfg.lst2[-1]:
                s.wait_lg(0, force=True)
                for i, k in enumerate(s.cfg.lst2): s(f'v_writelane_b32 v3, s{s.cfg.lregs[i]}, {k}')
            return
        if not s.stamps or (s.stamps is not True and idx not in (31, 61) and (s.stamps == 'span' or idx not in s.stamps)): return
        s(f's_mem{"real" if real else ""}time s[98:99]'); s.wait_lg(0)
        s(f'v_writelane_b32 v3, s98, {idx}')
        rt = {3: 50, 10: 51, 11: 52, 15: 53, 22: 54, 25: 55, 28: 56}
        if s.cfg.rts and idx in rt:
            s('s_memrealtime s[98:99]'); s.wait_lg(0); s(f'v_writelane_b32 v3, s98, {rt[idx]}')
    def dump_stamps(s):
        if not s.stamps: return
        s.stamp(61, True)
        s(f's_lshl_b32 s98, s2, 3\ns_add_u32 s98, s98, s{sW}\ns_lshl_b32 s98, s98, 8\ns_add_u32 s98, s98, {TS}')
        s(f'v_lshlrev_b32 v4, 2, v{vL}\nbuffer_store_dword v3, v4, {sr(rWS)}, s98 offen')
    def cond(s, cmp_skip, body, drain=True, flush=True):
        l = s.lab('c')
        s(cmp_skip)
        if flush: s.flush_hazards()
        s(f's_cbranch_scc1 {l}')
        vm, lg, hist = list(s.vm), list(s.lg), list(s.hist)
        body()
        if drain: s._wait(lg=0)
        if flush: s.flush_hazards()
        else: s.hist = hist
        s.label(l)
        s.vm, s.lg = vm, lg
    def xstore(s, lines):
        slow, back = s.lab('xs'), s.lab('xb')
        s(f's_cmp_eq_u32 s{sFAST}, 0')
        for l in lines:
            ins = Ins(l); t = ins.rd | ins.wr
            hs = [x[0] for x in s.vm if x[1] & t] + [x[0] for x in s.lg if x[1] & t]
            if hs: s.wait(*hs)
        s(f's_cbranch_scc1 {slow}')
        for l in lines: s(l)
        s.label(back)
        s.ool.append(f'{slow}:\n    s_nop 7\n    s_nop 3\n' + ''.join(f'    {l} sc1\n' for l in lines) + f'    s_branch {back}\n')
    def feed1(s):
        n = s.wn; s.wn += 1
        if n >= s.cfg.x_nof: return
        if n < 14: reg, sb, i = vW1 + 4*n, sA1, n
        elif n < 28: reg, sb, i = vW2 + 4*(n-14), sA2, n - 14
        elif n < 56: reg, sb, i = vW3 + 4*(n-28), sA3, n - 28
        elif n < 70: reg, sb, i = vW4A + 4*(n-56), sA4, n - 56
        else: reg, sb, i = vW4B + 4*(n-70), sA4, n - 56
        if i % 4 == 0 and i: s(f's_add_u32 s{sb}, s{sb}, 4096')
        s(f'buffer_load_dwordx4 {vr(reg)}, v{vL16}, {sr(rG)}, s{sb} offen offset:{(i % 4) * 1024}')
    def feed(s, upto, depth=None):
        depth = depth or s.cfg.depth
        while s.wn < upto:
            s.wait_vm(depth - 1); s.feed1()
    def spread(s, upto, slots, first=0):
        n = max(0, upto - s.wn); out = [lambda: None] * slots
        pos = [first + (k * (slots - first)) // n for k in range(n)] if n else []
        for p in set(pos):
            out[p] = (lambda c=pos.count(p): [s.feed1() for _ in range(c)])
        return out
    def pin(s, k):
        if k is None: return
        s.raw(f'    .p2align {s.cfg.pal}')
        for i in range(k): s('s_nop 0')
    def fair(s, n, k):
        if k and n % k == 0: s('s_setprio 1')
        if k and n % k == k - 1: s('s_setprio 0')
    def run(s, l):
        for f in l: f()
    def pl(s, vdst, vaddr, soff): return f'buffer_load_dword v{vdst}, v{vaddr}, {sr(rWS)}, {soff} offen sc1' if vaddr is not None else f'buffer_load_dword v{vdst}, off, {sr(rWS)}, {soff} sc1'
    def poll_issue(s, vdst, vaddr, soff): return s(s.pl(vdst, vaddr, soff))
    def poll_check(s, vdst, vaddr, soff, sleep=0):
        retry, back = s.lab('pr'), s.lab('pb')
        s(f'v_subrev_u32 v{vdst}, s{sTAG}, v{vdst}\nv_cmp_lt_u32 vcc, 15, v{vdst}\ns_mov_b32 s97, 0\ns_cbranch_vccnz {retry}')
        s.label(back)
        s.ool.append(f'''{retry}:
''' + (f'    s_sleep {sleep}\n' if sleep else '') + f'''    {s.pl(vdst, vaddr, soff)}
    s_add_u32 s97, s97, 1
    s_cmp_gt_u32 s97, {SPIN}
    s_waitcnt vmcnt(0)
    s_cbranch_scc1 {back}
    v_subrev_u32 v{vdst}, s{sTAG}, v{vdst}
    v_cmp_lt_u32 vcc, 15, v{vdst}
    s_nop 1
    s_cbranch_vccnz {retry}
    s_branch {back}
''')
    def poll(s, vdst, vaddr, soff, lo=None, hi=None, sleep=0):
        if lo is not None: s(f's_mov_b32 exec_lo, {lo}\ns_mov_b32 exec_hi, {hi}')
        s.poll_issue(vdst, vaddr, soff); s.poll_check(vdst, vaddr, soff, sleep)
        if lo is not None: s('s_mov_b64 exec, -1')
    def flag(s, soff, vtmp=4):
        s(f'v_mov_b32 v{vtmp}, s{sTAG}')
        s.wait_vm(0, force=True)
        s('s_mov_b64 exec, 1')
        s.xstore([f'buffer_store_dword v{vtmp}, off, {sr(rWS)}, s{soff}'])
        s('s_mov_b64 exec, -1')
    def gflag(s, wave, soff, sval, vtmp, drain=False, flush=True):
        s.cond(f's_cmp_lg_u32 s{sW}, {wave}', drain=drain, flush=flush, body=lambda: s(f'v_mov_b32 v{vtmp}, s{sval}\ns_mov_b64 exec, 1\nbuffer_store_dword v{vtmp}, off, {sr(rWS)}, s{soff} sc1\ns_mov_b64 exec, -1'))
    def gflag8(s, wave, soff, sval, vtmp, flush=True):
        s.cond(f's_cmp_lg_u32 s{sW}, {wave}', drain=False, flush=flush, body=lambda: s(f'v_mov_b32 v{vtmp}, s{sval}\nv_mul_u32_u24 v{vtmp+1}, {FCP}, v{vL}\ns_mov_b64 exec, 0xff\nbuffer_store_dword v{vtmp}, v{vtmp+1}, {sr(rWS)}, s{soff} offen sc1\ns_mov_b64 exec, -1'))
    def dma(s, a, b, ssrc, ldsbase):
        h = None
        for i in range(a, b):
            if i % 4 == 0:
                if i: s(f's_add_u32 s{ssrc}, s{ssrc}, 4096')
                s(f's_mov_b32 m0, {ldsbase + i * 1024}')
            h = s(f'buffer_load_dwordx4 v{vL16}, {sr(rWS)}, s{ssrc} offen offset:{(i % 4) * 1024} sc1 lds')
        return h
    def fetch_issue(s, blocks):
        t = ''.join(f's_add_u32 m0, s{a}, {b}\ns_add_u32 s68, s{c_}, {d}\nbuffer_load_dwordx4 v{vL16}, {sr(rWS)}, s68 offen sc1 lds\n' for a, b, c_, d in blocks)
        return s(t), t
    def fetch_check(s, h, t, va, off, n, T, m0=None):
        rd = [f'ds_read_b32 v{T+j}, v{va} offset:{off + 7168*j}' for j in range(n)]
        ck = [f'v_and_b32 v{T}, v{T}, v{T+1}', f'v_and_b32 v{T+2}, v{T+2}, v{T+3}', f'v_and_b32 v{T}, 1, v{T}', f'v_and_b32 v{T}, v{T}, v{T+2}', f'v_cmp_eq_u32 vcc, 0, v{T}']
        retry, back = s.lab('fr'), s.lab('fb')
        def part1(): s.wait(h); [s(l) for l in rd]
        def part2():
            for l in ck: s(l)
            s(f's_mov_b32 s97, 0\ns_cbranch_vccnz {retry}'); s.label(back)
            s.ool.append(f'{retry}:\n' + ''.join(f'    {l}\n' for l in t.strip().split('\n')) + (f'    {m0}\n' if m0 else '') + f'    s_add_u32 s97, s97, 1\n    s_cmp_gt_u32 s97, {SPIN}\n    s_waitcnt vmcnt(0)\n    s_cbranch_scc1 {back}\n'
                         + ''.join(f'    {l}\n' for l in rd) + '    s_waitcnt lgkmcnt(0)\n' + ''.join(f'    {l}\n' for l in ck) + f'    s_nop 1\n    s_cbranch_vccnz {retry}\n    s_branch {back}\n')
        return part1, part2
    def pos(s, d, src, t):
        s(f'''v_and_b32 v{t}, 3, v{src}
        v_lshlrev_b32 v{t}, 2, v{t}
        v_and_or_b32 v{t}, v{src}, -16, v{t}
        v_bfe_u32 v{d}, v{src}, 2, 2
        v_or_b32 v{d}, v{d}, v{t}
        v_lshlrev_b32 v{d}, 4, v{d}''')

    def W(s, dst, k, base=None, op='add_u32'):
        src = f'v{76 + k//2}'; sel = f'WORD_{k&1}'
        if base is None: s(f'v_mov_b32_sdwa v{dst}, {src} dst_sel:DWORD dst_unused:UNUSED_PAD src0_sel:{sel}')
        else: s(f'v_{op}_sdwa v{dst}, {base}, {src} dst_sel:DWORD dst_unused:UNUSED_PAD src0_sel:DWORD src1_sel:{sel}')
    def entry(s):
        s('s_cmp_ge_u32 s2, 256\ns_cbranch_scc1 Lend')
        if s.cfg.x_skew:
            s.raw(f'    s_and_b32 s3, s2, 7\n    s_mul_i32 s3, s3, {s.cfg.x_skew}\nLsk:\n    s_sub_u32 s3, s3, 1\n    s_cmp_lt_i32 s3, 0\n    s_cbranch_scc1 Lsk2\n    s_sleep 1\n    s_branch Lsk\nLsk2:')
        if s.stamps or s.cfg.x_pad: s('s_memtime s[100:101]\ns_memrealtime s[96:97]\nv_mov_b32 v3, 0'); s.wait_lg(0); s('s_mov_b32 s101, s96\ns_mov_b32 s98, s96')
        s(f"""s_load_dwordx16 s[4:19], s[0:1], 0
        s_load_dwordx8 s[20:27], s[0:1], 64
        s_load_dwordx2 s[28:29], s[0:1], 96
        s_load_dwordx2 s[30:31], s[0:1], 112""")
        s('s_getpc_b64 s[94:95]')
        s.label('Lpc')
        s(f"""s_lshr_b32 s{sI}, s2, 3
        v_lshrrev_b32 v4, 6, v0
        v_and_b32 v{vL}, 63, v0""")
        s.cpf(0)
        s(f"""v_readfirstlane_b32 s{sW}, v4
        v_lshlrev_b32 v{vL16}, 4, v{vL}
        s_add_u32 s94, s94, @TAB_OFF@
        s_addc_u32 s95, s95, 0
        s_lshl_b32 s69, s2, 6
        s_add_u32 s69, s69, 4096
        v_lshl_add_u32 v5, v4, 3, s69
        {'' if not (s.cfg.help == 4 and s.cfg.htab) else f'v_and_b32 v6, 32, v0'}
        {'' if not (s.cfg.help == 4 and s.cfg.htab) else f'v_lshlrev_b32 v6, 3, v6'}
        {'' if not (s.cfg.help == 4 and s.cfg.htab) else f'v_xor_b32 v5, v5, v6'}
        global_load_dwordx2 v[84:85], v5, s[94:95] offset:{2048 + 4224 - 4096}
        global_load_dwordx4 v[80:83], v{vL16}, s[94:95] offset:1024
        global_load_dwordx4 v[76:79], v{vL16}, s[94:95]
        s_lshl3_add_u32 s68, s2, s{sW}
        v_and_b32 v6, 255, v0
        v_lshlrev_b32 v18, 4, v6
        global_load_dwordx4 v[66:69], v18, s[94:95] offset:2048
        global_load_ushort v70, v18, s[94:95] offset:2064
        s_and_b32 s{sXCD}, s2, 7
        s_mul_i32 s{sP}, s{sXCD}, 28
        s_add_u32 s{sP}, s{sP}, s{sI}
        s_min_u32 s{sP}, s{sP}, 223
        s_lshl_b32 s70, s{sP}, 10
        v_lshl_add_u32 v64, v0, 1, s70
        s_mul_i32 s73, s68, 896
        s_mov_b32 s{rX+2}, 896
        s_mov_b32 s{rX+3}, 0x20000
        s_mov_b32 s{rW+3}, 0x20000
        s_mov_b32 s{rWS+2}, {WS_BYTES}
        s_mov_b32 s{rWS+3}, 0x20000
        s_lshl_b32 s93, s{sW}, 11
        s_add_u32 s93, s93, {L_PK}
        s_lshl_b32 s71, s{sP}, 2
        s_mov_b32 s72, {EP}""")
        if s.cfg.edma:
            assert s.cfg.umap == 2
            s(f"""s_lshl_b32 s69, s{sXCD}, 5
            s_add_u32 s69, s69, s{sI}
            s_lshr_b32 s70, s{sW}, 1
            s_lshl_b32 s70, s70, 8
            s_add_u32 s70, s70, s69
            s_cmpk_lt_u32 s70, 196
            s_cselect_b32 s{rW+2}, {448*896}, 0
            s_cmpk_ge_u32 s69, 98
            s_cselect_b32 s88, 98, 0
            s_sub_u32 s69, s69, s88
            s_mul_i32 s70, s69, 9363
            s_lshr_b32 s70, s70, 16
            s_mul_i32 s70, s70, {32*896 - 7*128}
            s_lshl1_add_u32 s69, s69, s{sW}
            s_lshl_b32 s69, s69, 6
            s_add_u32 s90, s70, s69
            s_add_u32 s89, s90, {16*896}
            v_lshrrev_b32 v23, 2, v{vL}
            v_mul_u32_u24 v23, {896 - 64}, v23
            v_add_u32 v23, v23, v{vL16}""")
        s(f"""s_add_u32 s{rX}, s{sX}, s73
        s_addc_u32 s{rX+1}, s{sX+1}, 0
        buffer_load_dwordx4 v[28:31], v{vL16}, {sr(rX)}, 0 offen""")
        if s.stamps: s('v_writelane_b32 v3, s100, 0\nv_writelane_b32 v3, s96, 60')
        s.stamp(1)
        s(f"""s_load_dword s{sTAG}, {sr(sWS,2)}, s72
        s_load_dword s{sLDT}, {sr(sDT,2)}, s71
        s_load_dword s{sD1}, {sr(sDS,2)}, s71
        """)
        def edma(): s(f's_cmp_eq_u32 s88, 0\ns_cselect_b64 {sr(rW,2)}, {sr(sW1,2)}, {sr(sW2,2)}'); s.pack_dma()
        if s.cfg.edma == 1: edma()
        if s.cfg.ppos == 0: s.params()
        if s.cfg.edma == 2: edma()
        if s.cfg.help: s('s_mov_b64 s[18:19], s[20:21]')
        if s.cfg.hpos == 0: s.helper()
        if s.cfg.tlb:
            def tl():
                s(f'v_min_u32 v7, 24, v{vL}\nv_lshlrev_b32 v7, 16, v7')
                s.raw(f'    global_load_ubyte v254, v7, {sr(sW3,2)}\n    global_load_ubyte v254, v7, {sr(sW4,2)}')
                if s.cfg.tlb >= 2: s(f'v_min_u32 v8, 27, v{vL}\nv_lshlrev_b32 v8, 16, v8'); s.raw(f'    global_load_ubyte v254, v8, {sr(sOUT,2)}')
                if s.cfg.tlb >= 3: s(f'v_min_u32 v9, 33, v{vL}\nv_lshlrev_b32 v9, 20, v9\nv_add_u32 v9, 0x7ff80, v9'); s.raw(f'    global_load_ubyte v254, v9, {sr(sWS,2)}')
            s(f's_lshl3_add_u32 s70, s{sI}, s{sW}')
            s.cond(f's_cmp_lg_u32 s70, {8*s.cfg.tlbi + 7}', tl, drain=False)
        s(f"""v_readfirstlane_b32 s90, v84
        v_readfirstlane_b32 s91, v85
        s_lshr_b32 s43, s90, 24
        s_and_b32 s90, s90, 0xffffff
        s_bitcmp1_b32 s43, 0
        s_cselect_b64 s[20:21], s[22:23], s[20:21]
        s_cselect_b64 s[24:25], s[26:27], s[24:25]
        s_cmp_eq_u32 s43, 2
        s_cselect_b64 vcc, -1, 0
        s_movk_i32 s89, 896
        s_cmovk_i32 s89, 3584
        s_cmp_lt_u32 s43, 2
        s_cselect_b64 {sr(rW,2)}, s[20:21], s[24:25]
        s_cselect_b32 s{rW+2}, {448*896}, 0
        s_cselect_b64 s[72:73], -1, 0
        s_lshl4_add_u32 s89, s89, s90
        s_mov_b32 s{rWS}, s{sWS}
        s_mov_b32 s{rWS+1}, s{sWS+1}
        v_cndmask_b32_sdwa v23, v81, v82, vcc dst_sel:DWORD dst_unused:UNUSED_PAD src0_sel:WORD_1 src1_sel:WORD_0""")
        if not s.cfg.edma: s.pack_dma()
        if s.cfg.ppos == 1: s.params()
        if s.cfg.hpos == 1: s.helper()

    def params(s):
        for i, p in enumerate((sLA, sAI, sCR, sCI)): s(f'global_load_ushort v{60+i}, v64, {sr(p,2)}')
    def helper(s):
        if s.cfg.help:
            def hp():
                s(f'''s_xor_b32 s68, s2, {s.cfg.help}
                s_and_b32 s69, s68, 7
                s_mul_i32 s70, s69, 28
                s_add_u32 s70, s70, s{sI}
                s_min_u32 s70, s70, 223
                s_lshl_b32 s70, s70, 10
                s_mul_i32 s68, s68, 7168
                s_cmp_eq_u32 s{sW}, 2
                s_cselect_b32 s70, s68, s70
                s_cselect_b32 s71, 55, 7
                s_movk_i32 s68, 128
                s_cmp_eq_u32 s{sW}, 3
                s_cselect_b64 s[4:5], s[6:7], s[4:5]
                s_cmp_eq_u32 s{sW}, 4
                s_cselect_b64 s[4:5], s[8:9], s[4:5]
                s_cmp_eq_u32 s{sW}, 5
                s_cselect_b64 s[4:5], s[10:11], s[4:5]
                s_cmp_eq_u32 s{sW}, 6
                s_cselect_b64 s[4:5], s[12:13], s[4:5]''')
                def w12():
                    s(f'''s_lshl_b32 s69, s69, 5
                    s_add_u32 s69, s69, s{sI}
                    s_min_u32 s69, s69, 195
                    s_cmpk_ge_u32 s69, 98
                    s_cselect_b64 s[4:5], s[22:23], s[18:19]
                    s_cselect_b32 s70, 98, 0
                    s_sub_u32 s69, s69, s70
                    s_mul_i32 s70, s69, 9363
                    s_lshr_b32 s70, s70, 16
                    s_mul_i32 s70, s70, {32*896 - 7*128}
                    s_lshl_b32 s69, s69, 7
                    s_add_u32 s70, s70, s69
                    s_mov_b32 s71, 31
                    s_movk_i32 s68, 896''')
                s.cond(f's_cmp_lg_u32 s{sW}, 7', w12, drain=False)
                s(f'v_min_u32 v7, s71, v{vL}\nv_mul_u32_u24 v7, s68, v7\nv_add_u32 v7, s70, v7')
                s.raw('    global_load_ubyte v253, v7, s[4:5]')
            s.cond(f's_cmp_lt_u32 s{sW}, 2', hp, drain=False)

    def cpf(s, once):
        l = s.lab('cp')
        s(f'v_lshl_add_u32 v7, v0, 8, s2' if once else f'v_lshl_add_u32 v7, v0, 5, s{sI}')
        s(f"""v_lshlrev_b32 v7, 7, v7
        v_cmp_gt_u32 vcc, @CODE_BYTES@, v7
        s_and_saveexec_b64 s[70:71], vcc
        s_cbranch_execz {l}""")
        s.raw('    global_load_dword v255, v7, s[94:95]')
        s.label(l)
        s('s_mov_b64 exec, -1')
    def clear(s):
        for i in range(4): s(f'v_mov_b32 v{72+i}, -1')
        s.h_clr = s.hstore(72)
    def hstore(s, r): return s(f'buffer_store_dwordx4 {vr(r)}, v12, {sr(rWS)}, s{sHD} offen sc1')

    def setup(s):
        s.comment('offsets and lane addresses (in the shadow of the first loads)')
        assert L_U % 512 == 0
        s(f"""s_mov_b64 vcc, s[72:73]
        s_lshr_b32 s{sPD1}, s91, 16
        s_lshl_b32 s{sPD1}, s{sPD1}, 10
        v_cndmask_b32_sdwa v24, v81, v80, vcc dst_sel:DWORD dst_unused:UNUSED_PAD src0_sel:WORD_0 src1_sel:WORD_1
        s_and_b32 s{sPD0}, s91, 0xffff
        s_lshl_b32 s{sPD0}, s{sPD0}, 10
        v_mul_u32_u24 v71, 1171, v0
        s_lshl_b32 s70, s{sW}, 7
        v_add_u32 v24, s93, v24""")
        s.W(27, 13, 's70')
        s(f"""s_mul_i32 s70, s{sW}, {LNP}
        v_lshrrev_b32 v71, 16, v71
        v_add_u32 v26, s70, v{vL16}
        s_mul_i32 s70, s2, 896
        s_lshl_b32 s71, s{sW}, 10
        v_mul_u32_u24 v71, {229376 - 896}, v71
        s_add_u32 s70, s70, s71
        s_add_u32 s{sUO}, s70, {GX}
        v_add_u32 v71, v71, v{vL16}""")
        s.W(12, 5, 4, 'lshlrev_b32')
    def setup_b(s):
        s(f"""s_lshl_b32 s71, s{sW}, 10
        s_lshl4_add_u32 s{sFO}, s2, {FA}
        s_add_u32 s{sUM}, s71, {L_U + 1024}
        v_add_u32 v13, s71, v{vL16}
        s_lshl_b32 s70, s{sW}, 13
        v_add_u32 v14, s70, v{vL16}
        s_lshl_b32 s70, s{sW}, 9
        s_mul_i32 s72, s{sXCD}, {FCP}
        s_add_u32 s70, s70, s72
        s_add_u32 s70, s70, {FA}
        v_and_b32 v17, 0x1f0, v{vL16}
        v_add_u32 v17, s70, v17
        s_mul_i32 s{sKG}, s{sW}, {16*KGP}
        s_add_u32 s{sKG}, s{sKG}, {L_KG}""")
        s.W(20, 8, f's{sKG}'); s.W(10, 3); s.W(11, 4); s.W(15, 6, f's{sUM}')
        s(f"""s_and_b32 s70, s{sW}, 3
        s_lshr_b32 s71, s{sW}, 2
        s_mul_i32 s73, s71, {KECH}
        s_add_u32 s73, s73, {L_KE}
        v_add_u32 v18, s73, v18
        s_lshl_b32 s72, s70, 7
        s_sub_u32 s72, s73, s72
        s_add_u32 s72, s72, {4*(1015 - 144) - 28}""")
        s.W(4, 0, 's72')
        s(f"""s_lshl_b32 s72, s70, 8
        s_sub_u32 s72, {L_U}, s72
        v_xor_b32 v16, 16, v15""")
        s.W(8, 1, 's72'); s.W(9, 2, 's72')
        s(f"""s_xor_b32 s72, s70, s71
        s_and_b32 s72, s72, 1
        s_lshl_b32 s72, s72, 4
        v_subrev_u32 v5, 1024, v4
        v_subrev_u32 v6, 2048, v4
        v_subrev_u32 v7, 3072, v4
        v_xor_b32 v8, s72, v8
        v_xor_b32 v9, s72, v9
        s_lshl_b32 s72, s70, 2
        s_mul_i32 s70, s71, {KTSZ}
        s_add_u32 s70, s70, {L_KT}
        s_mov_b32 s73, {L_KE + 4096}""")
        s.W(19, 7, 's72', 'xor_b32'); s.W(88, 14, 's73')
        s(f"""v_mov_b32 v84, 0
        v_mov_b32 v85, 0
        v_mov_b32 v86, 0
        v_mov_b32 v87, 0
        v_add_u32 v19, s70, v19
        s_add_u32 s72, s70, {768*16}
        s_bitcmp1_b32 s{sW}, 0
        s_cselect_b64 vcc, -1, 0
        v_add_u32 v89, {L_U}, v{vL16}
        v_writelane_b32 v88, s72, 63
        v_cndmask_b32 v88, v89, v88, vcc
        ds_write_b128 v88, v[84:87]""")
        for t in range(9):
            s(f'v_add_u32_sdwa v{132+t}, s70, v{66+t//2} dst_sel:DWORD dst_unused:UNUSED_PAD src0_sel:DWORD src1_sel:WORD_{t&1}')
    def scalars(s):
        return f"""s_mov_b32 s{rG}, s{sWS}
        s_mov_b32 s{rG+1}, s{sWS+1}
        s_cmp_eq_u32 s{sW}, 7
        s_cselect_b32 s{rG+2}, 0, {WS_BYTES}
        s_mov_b32 s{rG+3}, 0x20000
        s_mul_i32 s{sHD}, s{sW}, 229376
        s_lshl_b32 s68, s{sP}, 7
        s_add_u32 s{sHD}, s{sHD}, s68
        s_add_u32 s{sHD}, s{sHD}, {X1}
        s_lshr_b32 s68, s{sI}, 2
        s_lshl3_add_u32 s{sTB}, s{sXCD}, s68
        s_and_b32 s{sQ}, s{sI}, 3
        s_lshr_b32 s{sCL}, s{sTB}, 1
        s_and_b32 s{sM}, s{sI}, 7
        s_mul_i32 s{sCT}, s{sQ}, 7
        s_add_u32 s{sCT}, s{sCT}, s{sW}
        s_mul_i32 s{sA1}, s{sCT}, {14*1024}
        s_add_u32 s{sA2}, s{sA1}, {W2P}
        s_mul_i32 s{sA3}, s{sM}, 7
        s_add_u32 s{sA3}, s{sA3}, s{sW}
        s_mul_i32 s{sA4}, s{sA3}, {28*1024}
        s_add_u32 s{sA3}, s{sA4}, {W3P}
        s_add_u32 s{sA4}, s{sA4}, {W4P}
        s_lshl3_add_u32 s{sUS}, s{sXCD}, s{sW}
        s_mul_i32 s{sUS}, s{sUS}, 28672
        s_lshl_b32 s68, s{sI}, 5
        s_add_u32 s{sUS}, s{sUS}, s68
        s_add_u32 s{sUS}, s{sUS}, {GX}
        s_lshl_b32 s{sSM}, s{sW}, 11
        s_add_u32 s{sSM}, s{sSM}, {SM}
        s_mov_b32 s{sFAST}, 0
        s_and_b32 s68, s43, 6
        s_cmp_eq_u32 s68, 2
        s_cselect_b32 s{rW+2}, {448*3584}, 0
        s_cselect_b32 s{sPACT}, {WS_BYTES}, 0"""
    def h2_addr(s):
        return f"""v_lshrrev_b32 v19, 3, v0
        v_and_b32 v20, 7, v0
        v_lshlrev_b32 v21, 9, v19
        v_lshl_add_u32 v21, v20, 4, v21
        s_andn2_b32 s70, 1, s{sQ}
        v_add_u32 v20, s70, v20
        v_mul_u32_u24 v22, 768, v19
        v_lshrrev_b32 v18, 2, v20
        v_lshl_add_u32 v22, v18, 8, v22
        v_and_b32 v18, 3, v20
        v_lshl_add_u32 v22, v18, 4, v22
        v_add_u32 v22, {L_HI}, v22
        s_mul_i32 s88, s{sTB}, 28672
        s_add_u32 s88, s88, {X1}
        v_add_u32 v26, {FB - FA}, v17"""

    def pack_early(s):
        s.wait(s.h_pack)
        s(f"""ds_read_b64_tr_b16 v[52:53], v24
        ds_read_b64_tr_b16 v[54:55], v24 offset:256
        ds_read_b64_tr_b16 v[56:57], v24 offset:32
        ds_read_b64_tr_b16 v[58:59], v24 offset:288
        buffer_store_dwordx4 v[52:55], v{vL16}, {sr(rWS)}, s{sPD0} offen sc1
        buffer_store_dwordx4 v[56:59], v{vL16}, {sr(rWS)}, s{sPD1} offen sc1""")

    def ln(s):
        s.comment('layernorm of one token per wave')
        s('v_mov_b32 v51, 0x3f803f80\nv_dot2_f32_bf16 v48, v28, v51, 0')
        s.stamp(2)
        s('v_dot2_f32_bf16 v49, v28, v28, 0')
        for i in (29, 30, 31): s(f'v_dot2_f32_bf16 v48, v{i}, v51, v48\nv_dot2_f32_bf16 v49, v{i}, v{i}, v49')
        un = []
        for i in range(4): un += [f'v_lshlrev_b32 v{32+2*i}, 16, v{28+i}', f'v_and_b32 v{33+2*i}, 0xffff0000, v{28+i}']
        s(un.pop()); s(un.pop()); s(f'v_mov_b32 v50, {INVD}')
        for m in ('row_shr:1', 'row_shr:2', 'row_shr:4', 'row_shr:8', 'row_bcast:15 row_mask:0xa', 'row_bcast:31 row_mask:0xc'):
            s(f'v_add_f32_dpp v48, v48, v48 {m}\nv_add_f32_dpp v49, v49, v49 {m}')
            s(un.pop())
        s(f"""v_readlane_b32 s70, v48, 63
        v_readlane_b32 s71, v49, 63
        s_lshl_b32 s72, s{sW}, 3
        v_mov_b32 v65, s72
        v_mul_f32 v49, s70, v50
        v_mul_f32 v48, s71, v50
        v_fma_f32 v48, -v49, v49, v48
        v_max_f32 v48, 0, v48
        v_add_f32 v48, {EPS}, v48
        v_rsq_f32 v51, v48
        s_mov_b32 exec_hi, 0x00ffffff
        v_mul_f32 v50, -v49, v51""")
        for i in range(4): s(f'v_pk_fma_f32 {vr(40+2*i,2)}, v[50:51], {vr(32+2*i,2)}, v[50:51] op_sel:[1,0,0] op_sel_hi:[1,1,0]')
        s('s_mov_b32 s70, 0x0d800000')
        for i in range(4): s(f'v_pk_mul_f32 {vr(40+2*i,2)}, {vr(40+2*i,2)}, s[70:71] op_sel_hi:[1,0]')
        for i in range(4): s(f'v_cvt_pk_bf16_f32 v{28+i}, v{40+2*i}, v{41+2*i}')
        s(f"""ds_write_b128 v26, v[28:31] offset:{L_LN}
        v_mul_f32 v48, v48, v51
        s_mov_b64 exec, 1
        ds_write_b64 v65, v[48:49] offset:{L_SM}
        s_mov_b64 exec, -1""")
        s.barrier()
        s(f"""ds_read_b64_tr_b16 v[48:49], v27 offset:{L_LN}
        ds_read_b64_tr_b16 v[50:51], v27 offset:{L_LN + 4*LNP}
        s_lshr_b32 s{sTAG}, s{sTAG}, 4
        s_mul_i32 s{sTAG}, s{sTAG}, 1664525
        s_add_u32 s{sTAG}, s{sTAG}, 1013904223
        s_lshl_b32 s{sTAG}, s{sTAG}, 4
        s_and_b32 s78, s{sTAG}, 0x70000000
        s_or_b32 s78, s78, 0x6000
        s_lshl_b32 s79, s{sTAG}, 3
        s_and_b32 s79, s79, 0x70000000
        s_or_b32 s79, s79, 0x1000
        s_lshl_b32 s80, s{sTAG}, 8
        s_and_b32 s80, s80, 0x70007000
        s_lshl_b32 s81, s{sTAG}, 5
        s_and_b32 s81, s81, 0x70007000
        v_mov_b32 v46, 0x8fff8ffe
        v_mov_b32 v47, 0x8fff8fff
        v_and_or_b32 v48, v48, v46, s78
        v_and_or_b32 v49, v49, v47, s79
        v_and_or_b32 v50, v50, v47, s80
        v_and_or_b32 v51, v51, v47, s81""")
        s.cond(f's_cmp_lg_u32 s{sW}, 7', lambda: s(f's_mov_b64 exec, 15\nds_read_b128 v[48:51], v{vL16} offset:{L_SM}\nv_mov_b32 v71, v{vL16}\ns_lshl_b32 s{sUO}, s2, 6\ns_add_u32 s{sUO}, s{sUO}, {SM}'), flush=False)
        s(f'buffer_store_dwordx4 v[48:51], v71, {sr(rWS)}, s{sUO} offen sc1\ns_mov_b64 exec, -1')
        s.stamp(3)
        s(f's_getreg_b32 s70, hwreg(HW_REG_XCC_ID, 0, 4)\ns_add_u32 s{sTX}, s70, s{sTAG}')
        s.wait(*[h for h, r in s.vm if r])
        s.stamp(40)
        s.cond(f's_cmp_ge_u32 s43, 2', s.pack_early)

    def pack_dma(s):
        s(f's_mov_b32 m0, s93\nbuffer_load_dwordx4 v23, {sr(rW)}, s90 offen lds\ns_add_u32 m0, s93, 1024')
        s.h_pack = s(f'buffer_load_dwordx4 v23, {sr(rW)}, s89 offen lds')
    def publish_a(s, conv=True):
        s.wait_vm(0, force=True)
        s('s_barrier')
        s.stamp(5)
        s.gflag8(0, sFO, sTX, 118)
        s(f's_lshl4_add_u32 s{sFO}, s2, {FB}')
        if s.cfg.dma_at == 1 or not conv: s.pack_dma(); s(f's_mov_b32 m0, s{sKG}')
    def pack_late_store(s):
        P = 240
        s.wait(s.h_pack)
        for e in range(4): s(f'ds_read_b64_tr_b16 {vr(P+2*e,2)}, v24 offset:{1024*(e>>1) + 256*(e&1)}')
        def colsum():
            s(f's_mov_b32 vcc_lo, 0xf0f00f0f\ns_mov_b32 vcc_hi, 0xf0f00f0f\nv_mov_b32 v{P+12}, 0x3f803f80')
            for i in range(4): s(f'v_cndmask_b32 v{P+8+i}, 0, v{P+12}, vcc')
            s(f'''s_lshr_b32 s72, s{sPD0}, 4
            s_add_u32 s72, s72, {CSP - W3P // 16}
            v_mfma_f32_16x16x32_bf16 {vr(P+12)}, {vr(P+8)}, {vr(P)}, 0
            v_mfma_f32_16x16x32_bf16 {vr(P+12)}, {vr(P+8)}, {vr(P+4)}, {vr(P+12)}
            v_lshlrev_b32 v{P+8}, 2, v{vL}
            s_mov_b32 exec_hi, 0
            buffer_store_dword v{P+12}, v{P+8}, {sr(rWS)}, s72 offen sc1
            s_mov_b32 exec_hi, -1''')
        s.cond('s_cmp_lg_u32 s43, 2', colsum, drain=False)
        s(f"""s_mov_b32 s{rW}, s{sWS}
        s_mov_b32 s{rW+1}, s{sWS+1}
        s_mov_b32 s{rW+2}, s{sPACT}
        buffer_store_dwordx4 {vr(P)}, v{vL16}, {sr(rW)}, s{sPD0} offen sc1""")
        s.h_pst = s(f'buffer_store_dwordx4 {vr(P+4)}, v{vL16}, {sr(rW)}, s{sPD1} offen sc1')

    def cm(s, d, a, b, t):
        return [f'v_pk_mul_f32 {vr(t,2)}, {vr(a,2)}, {vr(b,2)} op_sel_hi:[1,0]',
                f'v_pk_fma_f32 {vr(d,2)}, {vr(a,2)}, {vr(b,2)}, {vr(t,2)} op_sel:[1,1,0] op_sel_hi:[0,1,1] neg_lo:[1,0,0]']
    def kgen(s):
        c = s.cfg
        s.pin(c.pins[0])
        assert c.fa_at <= c.poll_at <= c.chk_at
        Z = lambda k: 74 + 2 * k
        Z128, ZD, R0, R1, TT = 92, 94, 112, 114, 116
        CH = [(96, 98, 100, 102), (104, 106, 108, 110)]
        BF, AF, ACC = 156, (172, 188, 204), 220
        s(f"""s_lshl_b32 s70, s{sLDT}, 16
        s_and_b32 s71, s{sLDT}, 0xffff0000
        s_cmp_lt_u32 s{sW}, 4
        s_cselect_b32 s72, s70, s71
        s_mov_b32 s70, {LOG2E}
        s_mov_b32 s71, {INV2PI}
        v_mov_b32 v64, s72
        v_lshlrev_b32 v60, 16, v60
        v_mul_f32 v64, s70, v64
        v_mul_f32 v60, s70, v60
        v_exp_f32 v64, v64
        v_exp_f32 v60, v60
        v_lshlrev_b32 v61, 16, v61
        v_lshlrev_b32 v62, 16, v62
        v_lshlrev_b32 v63, 16, v63
        v_cvt_pk_bf16_f32 v64, v64, v60
        v_and_b32 v60, 0xffff0000, v64
        v_lshlrev_b32 v64, 16, v64
        v_pk_mul_f32 v[60:61], v[60:61], v[64:65] op_sel_hi:[1,0]
        v_add_f32 v64, v64, v64
        v_pk_mul_f32 v[60:61], v[60:61], s[70:71]
        v_pk_mul_f32 {vr(R0,2)}, v[62:63], v[64:65] op_sel_hi:[1,0]
        s_mov_b32 m0, s{sKG}
        s_mov_b32 s70, 0x41000000
        s_mov_b32 s71, 0x43000000
        v_pk_mul_f32 v[62:63], v[60:61], s[70:71] op_sel_hi:[1,0]
        v_pk_mul_f32 v[64:65], s[70:71], v[60:61] op_sel:[1,0]
        s_lshl_b32 s{sD0}, s{sD1}, 16
        s_and_b32 s{sD1}, s{sD1}, 0xffff0000""")
        for r in (62, 64, 60): s(f'v_exp_f32 v{r}, -v{r}\nv_fract_f32 v{r+1}, v{r+1}')
        for r, d in ((62, Z(8)), (64, Z128), (60, Z(1))): s(f'v_cos_f32 v{d}, v{r+1}\nv_sin_f32 v{d+1}, v{r+1}')
        for r, d in ((62, Z(8)), (64, Z128), (60, Z(1))): s(f'v_pk_mul_f32 {vr(d,2)}, {vr(d,2)}, {vr(r,2)} op_sel_hi:[1,0]')
        s.stamp(4)
        def chain(st, rows, start, mul, neg=False):
            a, b, t, pk = CH[st]; out = []; cur, nxt = start, a
            for i, row in enumerate(rows):
                cc = s.cm(nxt, cur, mul, t) if i < len(rows) - 1 else []
                out += cc[:1] + [f'v_cvt_pk_bf16_f32 v{pk + (i&1)}, v{cur}, {"-" if neg else ""}v{cur+1}'] + cc[1:] + [f'ds_write_addtid_b32 v{pk + (i&1)} offset:{row*KGP}']
                cur, nxt = nxt, (b if nxt == a else a)
            return out
        def rd(dst):
            for ks in range(4): s(f'ds_read_b128 {vr(dst+4*ks)}, v20 offset:{64*ks}')
        E = lambda l: [s(x) for x in l]
        zz = zipl if c.two else (lambda *a: sum(a, []))
        uld = f'buffer_load_dwordx4 v[120:123], v10, {sr(rWS)}, s{sUS} offen sc1'
        uck = [f'v_xor_b32 v{120+i}, s{78+i}, v{120+i}' for i in range(4)] + ['v_or3_b32 v119, v120, v121, v122', 'v_or_b32 v119, v119, v123', 'v_and_b32 v119, 0x70007000, v119', 'v_cmp_ne_u32 vcc, 0, v119']
        def hook(k):
            if c.fa_at == k: s.publish_a()
            if c.clr_at == k: s.clear()
            if c.u_at == k: s(uld)
            if c.poll_at == k: s.poll_issue(27, 17, 0)
            if c.dma_at == k and 1 < k < 7:
                s.pack_dma()
                if k < 4: s(f's_mov_b32 m0, s{sKG}')
            if c.uchk_at == k:
                retry, back = s.lab('ur'), s.lab('ub')
                for l in uck: s(l)
                s(f's_mov_b32 s97, 0\ns_cbranch_vccnz {retry}'); s.label(back)
                s.ool.append(f'{retry}:\n    {uld}\n    s_add_u32 s97, s97, 1\n    s_cmp_gt_u32 s97, {SPIN}\n    s_waitcnt vmcnt(0)\n    s_cbranch_scc1 {back}\n'
                             + ''.join(f'    {l}\n' for l in uck) + f'    s_nop 1\n    s_cbranch_vccnz {retry}\n    s_branch {back}\n')
                if s.stamps: s('v_writelane_b32 v3, s97, 44')
                for i in range(4): s(f'v_add_u32 v{120+i}, 0x32003200, v{120+i}')
                s(f'v_add_u32 v119, s{sUM}, v{vL16}\nds_write_b128 v119, v[120:123]')
                s.stamp(8)
            if c.chk_at == k:
                s.poll_check(27, 17, 0, c.fa_sleep)
                if s.stamps: s('v_writelane_b32 v3, s97, 58')
            if c.dma_at == k == 7: s.pack_dma()
            if c.pst_at == k: s.pack_late_store()
        hook(0)
        if c.two:
            E(zipl(s.cm(ZD, Z(8), Z(8), 100), s.cm(R1, R0, Z(8), 108), s.cm(Z(2), Z(1), Z(1), TT)))
            E(zipl(chain(0, range(0, 16, 2), R0, ZD, True), chain(1, range(1, 16, 2), R1, ZD, True)))
            rd(BF)
            E(zipl(s.cm(ZD, Z128, Z128, 100), s.cm(R1, Z(8), Z128, 108), s.cm(Z(4), Z(2), Z(2), TT)))
            hook(1); s.stamp(35)
            E(zipl(chain(0, range(0, 16, 2), Z(8), ZD), chain(1, range(1, 16, 2), R1, ZD)))
        else:
            rc = chain(0, range(16), R0, Z(8), True)
            E(rc[:4*c.rsplit]); hook(0.5); E(rc[4*c.rsplit:])
            rd(BF)
            E(s.cm(Z(2), Z(1), Z(1), TT) + s.cm(Z(4), Z(2), Z(2), TT))
            hook(1); s.stamp(35)
            E(chain(0, range(16), Z(8), Z128))
        rd(AF[0])
        E(zipl(s.cm(Z(6), Z(4), Z(2), 100), s.cm(Z(3), Z(2), Z(1), 108), s.cm(Z(5), Z(4), Z(1), TT)))
        hook(2); s.stamp(36)
        E(zz(chain(0, range(0, 8), Z(4), Z128), chain(1, range(8, 12), Z(2), Z128) + chain(1, range(12, 16), Z(6), Z128), s.cm(Z(7), Z(6), Z(1), TT)))
        rd(AF[1])
        s.stamp(47); hook(3); s.stamp(37)
        if c.kbar: s('s_barrier')
        mf = lambda t, ks: f'v_mfma_f32_16x16x32_bf16 {vr(ACC+4*t)}, {vr(AF[t]+4*ks)}, {vr(BF+4*ks)}, {vr(ACC+4*t) if ks else 0}'
        wr = lambda t, r: f'ds_write_b32 v19, v{ACC+4*t+r} offset:{(16*t+r)*256}'
        if c.ktm == 2:
            t2 = [f'v_mov_b32 v{TT}, 0x3f80', f'ds_write_addtid_b32 v{TT} offset:{8*KGP}']
            for i, phi in enumerate((1, 3, 5, 7)):
                z, d = Z(phi), 96 + 4*i
                t2 += [f'v_cvt_pk_bf16_f32 v{d+2}, v{z}, v{z+1}', f'v_mul_f32 v{d}, v{z}, v{Z128}', f'ds_write_addtid_b32 v{d+2} offset:{2*i*KGP}', f'v_mul_f32 v{d+1}, v{z+1}, v{Z128}',
                       f'v_fma_f32 v{d}, -v{z+1}, v{Z128+1}, v{d}', f'v_fmac_f32 v{d+1}, v{z}, v{Z128+1}', f'v_cvt_pk_bf16_f32 v{d+3}, v{d}, v{d+1}', f'ds_write_addtid_b32 v{d+3} offset:{(2*i+1)*KGP}']
            m01 = [mf(t, k) for t in range(2) for k in range(4)]
            for i, l in enumerate(t2):
                if i % 4 == 0 and m01: s(m01.pop(0))
                s(l)
            rd(AF[2])
            s.stamp(6); hook(4)
            E([wr(0, r) for r in range(4)] + zipl([mf(2, k) for k in range(4)], [wr(1, r) for r in range(4)]) + [wr(2, r) for r in range(4)])
        else:
            E(zz(chain(0, (0, 1), Z(1), Z128) + chain(0, (4, 5), Z(5), Z128), chain(1, (2, 3), Z(3), Z128) + chain(1, (6, 7), Z(7), Z128)))
            s(f'v_mov_b32 v{TT}, 0x3f80\nds_write_addtid_b32 v{TT} offset:{8*KGP}')
            rd(AF[2])
            s.stamp(6); hook(4)
            if c.ktm:
                E([mf(0, k) for k in range(4)] + [mf(1, k) for k in range(4)] + zipl([mf(2, k) for k in range(4)], [wr(0, r) for r in range(4)]))
                E([wr(t, r) for t in (1, 2) for r in range(4)])
            else:
                E([mf(t, k) for k in range(4) for t in range(2)] + [mf(2, k) for k in range(4)] + [wr(t, r) for t in range(3) for r in range(4)])
        s.stamp(48); hook(5)
        if c.clr_at is not None: s.wait(s.h_clr)
        s.barrier()
        s.stamp(7)
        hook(5.5)
        for t in range(9): s(f'ds_read_b128 {vr(28+4*t)}, v{132+t}')
        if c.clr_at is not None: s(f's_add_u32 s72, s{sFO}, {FC - FB}'); s.gflag8(2, 72, sTAG, 72)
        hook(6)
        if c.chk_at <= 5 and c.pst_at != 7: s.feed(c.f_kt, 63)
        for t in range(9):
            s(f'v_pk_add_f32 {vr(28+4*t,2)}, {vr(28+4*t,2)}, {vr(30+4*t,2)}')
            if t: s(f'v_add_f32 v{24+4*t}, v{24+4*t}, v{25+4*t}')
        s('v_add_f32 v60, v60, v61')
        for i in range(4): s(f'v_cvt_pk_bf16_f32 v{64+i}, v{28+8*i}, v{32+8*i}')
        s('ds_write_b128 v18, v[64:67]')
        for i in range(4): s(f'v_cvt_pk_bf16_f32 v{68+i}, v{32+8*i}, v{36+8*i}')
        s(f'ds_write_b128 v18, v[68:71] offset:{KEO}')
        s.stamp(9); hook(7)
        if c.chk_at <= 5 and c.pst_at == 7: s.feed(c.f_kt, 63)

    def conv(s):
        c = s.cfg
        A, B, ACC = 28, 60, 92
        def rd(kind, slot, e, j):
            if kind == 'B': return [f'ds_read_b128 {vr(B+4*slot)}, v{8+e} offset:{1024*j}']
            off = 16 * (1 - e) + 128 * (1 - (j & 1))
            return [f'ds_read2_b32 {vr(A+4*slot+2*h,2)}, v{4+(j>>1)} offset0:{off+2*h} offset1:{off+2*h+1}' for h in range(2)]
        M = []
        for k in range(8):
            p1 = [(k, j) for j in range(k + 1) if k + j <= 7]; p2 = [(j, k) for j in range(k) if k + j <= 7]
            M += [(0, a, b) for a, b in p1 + p2]
        if c.cil:
            for nu in range(0, 8, 2): M += [(1, a, b) for a, b in zipl([(a, nu + 1 - a) for a in list(range(1, nu + 1)) + [0, nu + 1]], [(a, nu - a) for a in range(nu + 1)])]
        else:
            for nu in range(8): M += [(1, a, nu - a) for a in range(nu + 1)]
        slot = {(0, j): j for j in range(8)}
        for k in range(4, 8): slot[1, 2*(k-4)] = k; slot[1, 2*(k-4) + 1] = 7 - k
        ops = []
        for e in range(2):
            for j in range(8):
                for kind, ix in (('A', 1), ('B', 2)):
                    need = min(n for n, m in enumerate(M) if m[0] == e and m[ix] == j)
                    early = -1 if e == 0 else max(n for n, m in enumerate(M) if m[0] == 0 and m[ix] == slot[1, j])
                    ops += [(need, early, t) for t in rd(kind, slot[e, j], e, j)]
        ops.sort(key=lambda o: o[0])
        D = {n: [] for n in range(-1, 73)}
        pos = -1.0
        for i, (need, early, t) in enumerate(ops):
            if i < c.chead: D[-1].append(t); continue
            pos = max(pos + c.cpace, early)
            pos = max(min(pos, need - c.clead), early)
            D[int(pos)].append(t)
        done = {nu: max(n for n, m in enumerate(M) if m[1] + m[2] == nu) for nu in range(8)}
        at = c.cy0
        for nu in range(8):
            at = max(at, done[nu] + 3)
            D[min(int(at), 72)].append(f'ds_write_b128 v13, {vr(ACC+4*nu)} offset:{L_Y + 8192*nu}')
            at += c.cyp
        s.pin(c.pins[1])
        s.barrier(); s.stamp(10)
        for t in D[-1]: s(t)
        if c.dma_at == 8: s.pack_dma()
        f0 = c.fslot if c.chk_at == 8 else 0
        ex = s.spread(c.f_conv, 66, f0 + 3)
        bs = ['ds_read_b64 v[140:141], v15', 'ds_read_b64 v[142:143], v16', '', '', '', '']
        for i in range(4): bs += [f'v_lshlrev_b32 v{132+2*i}, 16, v{140+i}', f'v_and_b32 v{133+2*i}, 0xffff0000, v{140+i}']
        for ch in range(2):
            bs += [f'v_add_f32 v{140+r}, s{sD0+ch}, v{124+2*r}' for r in range(4)]
            bs += [f'v_fma_f32 v{132+4*ch+r}, v{132+4*ch+r}, v{140+r}, v{125+2*r}' for r in range(4)]
        ha = s.h2_addr().split('\n')
        seen = set(); assert f0 + 3 <= c.hint_at <= 73
        for n, (e, a, b) in enumerate(M):
            nu = a + b
            s.fair(n, c.fc)
            s(f'v_mfma_f32_16x16x32_bf16 {vr(ACC+4*nu)}, {vr(A+4*slot[e, a])}, {vr(B+4*slot[e, b])}, {vr(ACC+4*nu) if nu in seen else 0}')
            seen.add(nu)
            for t in D[n]: s(t)
            if n == f0 and c.chk_at == 8:
                s.poll_check(27, 17, 0, c.fa_sleep)
                if s.stamps: s('v_writelane_b32 v3, s97, 58')
                s('s_barrier')
            if n == f0 + 1: s(f'buffer_load_dwordx4 v[124:127], v11, {sr(rWS)}, s{sSM} offen sc1')
            if n == f0 + 2: s(f'buffer_load_dwordx4 v[128:131], v11, {sr(rWS)}, s{sSM} offen offset:16 sc1\ns_lshl_b32 s68, s2, 6\ns_add_u32 s68, s68, {FH}')
            if c.pst_at == 8 and n == c.pslot: s.pack_late_store()
            if c.clr_at is not None and n == c.cslot: s(f's_mov_b32 s73, {FC - FA}'); s.poll_issue(27, 17, 's73')
            if c.clr_at is not None and n == 66: s.poll_check(27, 17, 's73', 1)
            if n == c.hint_at: s.gflag(7, 68, sTAG, 23, False, False)
            if ex: ex.pop(0)()
            if n >= 4 and ha: s(ha.pop(0))
            if n >= 40 and bs: s(bs.pop(0))
        if c.fc: s('s_setprio 0')
        for t in D[72]: s(t)
        assert not bs and not ha
        s.stamp(38)
        s.wait(s.h_pst); assert c.f_conv <= 24
        s.barrier(); s.stamp(11)
        for i in (0, 4, 1, 5, 2, 6, 3, 7): s(f'ds_read_b128 {vr(A+4*i)}, v14 offset:{L_Y + 1024*i}')
        fb = lambda: s.gflag8(6, sFO, sTAG, 23)
        if not c.fblate: fb()
        if c.hint_at == 72: s.gflag(7, 68, sTAG, 17, False)
        for i in (0, 4, 1, 5, 2, 6, 3, 7):
            ch = i >> 2
            for h in range(2): s(f'v_pk_add_f32 {vr(132+4*ch+2*h,2)}, {vr(132+4*ch+2*h,2)}, {vr(A+4*i+2*h,2)}')
        for r in range(4): s(f'v_cvt_pk_bf16_f32 v{140+r}, v{132+r}, v{136+r}')
        s('v_and_b32 v140, -2, v140')
        h = s.hstore(140)
        s.stamp(12)
        if c.fblate: fb()
        if c.hint_at == 73: s.gflag(7, 68, sTAG, 17, False)
        s.feed(c.f_hst, 63)
        return h

    def nonconv(s):
        c = s.cfg
        s(f'v_lshlrev_b32 v15, 7, v{vL}')
        if c.sb_at == 1: s.setup_b()
        s(f'v_lshlrev_b32 v15, 7, v{vL}')
        s(s.h2_addr())
        if c.dma_at == 0: s.pack_dma()
        s.publish_a(False)
        s.pack_late_store()
        s.poll(18, 17, 0, sleep=8)
        s.barrier(); s.stamp(8)
        s.gflag8(1, sFO, sTAG, 118)
        if c.clr_at is not None: s(f's_add_u32 s72, s{sFO}, {FC - FB}'); s.gflag8(2, 72, sTAG, 118)
        s(f's_add_u32 s70, s{sA2}, {14*1024 - 8192}')
        s.feed(c.f_hst, c.nc_depth)
        if c.warm: s(f'buffer_load_dword v119, v15, {sr(rG)}, s70 offen')
        if c.clr_at is not None:
            s(f's_mov_b32 s73, {FC - FA}'); s.poll(18, 17, 's73', sleep=8); s.barrier()
        s.wait_vm(0); s.stamp(10)
    def hint_wait(s):
        def body():
            s(f's_lshl_b32 s68, s2, 6\ns_add_u32 s68, s68, {FH - 32*64}\nv_mov_b32 v9, 0')
            s.poll(8, 9, 's68', 1, 0, sleep=4)
        s.cond(f's_cmp_lt_u32 s{sI}, 28', body)

    def h2(s, behind, mid=lambda: None, halo=False):
        ld = [f'buffer_load_dwordx4 {vr(8+4*j)}, v4, {sr(rWS)}, s88 offen offset:{128*j} sc1' for j in range(4)]
        chk = ['v_or3_b32 v24, v8, v12, v16', 'v_or_b32 v24, v24, v20', 'v_and_b32 v24, 1, v24', 'v_cmp_eq_u32 vcc, 1, v24']
        if s.cfg.hdel: s(f's_sleep {s.cfg.hdel}')
        for l in ld: s(l)
        s.poll_issue(25, 26, 0)
        mid()
        for l in chk: s(l)
        retry, back = s.lab('hr'), s.lab('hb')
        s(f's_mov_b32 s97, 0\ns_cbranch_vccnz {retry}')
        s.label(back)
        s.ool.append(f'{retry}:\n' + ('    s_mov_b64 exec, vcc\n' if s.cfg.hmask else '') + ''.join(f'    {l}\n' for l in ld) + f'    buffer_load_dword v25, v26, {sr(rWS)}, 0 offen sc1\n    s_add_u32 s97, s97, 1\n    s_cmp_gt_u32 s97, {SPIN}\n    s_waitcnt vmcnt(0)\n    s_cbranch_scc1 {back}\n'
                     + ''.join(f'    {l}\n' for l in chk) + f'    s_nop 1\n    s_cbranch_vccnz {retry}\n    s_branch {back}\n')
        if s.cfg.hmask: s('s_mov_b64 exec, -1')
        if s.stamps: s('v_writelane_b32 v3, s97, 59')
        s.stamp(14)
        if not s.cfg.hfeed: behind()
        if halo:
            s(f's_bitcmp1_b32 s{sQ}, 0\ns_cselect_b64 vcc, -1, 0')
            for i in range(2):
                for j in range(4): s(f'v_cndmask_b32 v{28+4*i+j}, v{10+4*j+i}, v{8+4*j+i}, vcc')
                s(f'ds_write_b128 v5, {vr(28+4*i)} offset:{64*i}')
        else:
            for j in range(4):
                for i in range(j): s(f'v_swap_b32 v{8+4*j+i}, v{8+4*i+j}')
            for i in range(4): s(f'ds_write_b128 v5, {vr(8+4*i)} offset:{64*i}')
        s.stamp(32)
        s.poll_check(25, 26, 0, 2)
        if s.cfg.hfeed: behind()
        if s.stamps: s('v_writelane_b32 v3, s97, 57')

    def stats_tail(s, a, extra, vadr, tab):
        if extra:
            s('s_mov_b64 exec, -1')
            for t in range(3): s(f'v_cndmask_b32 v{a+4*t}, v{a+4*t}, v{a+4*t+1}, s[92:93]')
            for t in range(3): s(f'v_cndmask_b32 v{a+4*t}, v{a+4*t}, v{a+4*t+2}, s[94:95]')
            for t in (1, 2):
                s(f'v_mov_b32_dpp v{a+4*t+1}, v{a+4*t+3} row_ror:{4*t}\nv_mov_b32_dpp v{a+4*t+2}, v{a+4*t} row_ror:{4*t}')
            for t in (1, 2):
                s(f'v_cndmask_b32 v{a+3}, v{a+3}, v{a+4*t+1}, {sr(76+2*t,2)}\nv_cndmask_b32 v{a}, v{a}, v{a+4*t+2}, {sr(76+2*t,2)}')
            s('s_mov_b32 exec_lo, 0x77700777\ns_mov_b32 exec_hi, 0x70777707')
        s(f'''v_mul_f32 v{a+3}, s96, v{a+3}
        v_mul_f32 v{a}, s96, v{a}
        v_fma_f32 v{a}, -v{a+3}, v{a+3}, v{a}
        v_max_f32 v{a}, 0, v{a}''')
        if extra:
            s(f'''v_fmaak_f32 v{a+2}, v{a}, v49, {fh(1e-10)}
            v_add_f32 v51, {EPS}, v{a}
            v_rsq_f32 v{a+1}, v{a+2}
            v_rsq_f32 v51, v51
            v_mul_f32 v{a}, {fh(C1)}, v{a+1}
            v_mul_f32 v{a+4}, {fh(0.044715)}, v{a+1}
            v_mul_f32 v{a+2}, v{a+2}, v{a+1}
            v_mul_f32 v{a+1}, v{a+1}, v{a}
            v_mul_f32 v50, -v{a+3}, v51
            v_mul_f32 v{a+1}, v{a+1}, v{a+4}
            ds_write_b64 v{extra}, v[50:51] offset:{tab // 2}
            ds_write_b128 v{vadr}, {vr(a)} offset:{tab}''')
        else:
            s(f'''v_add_f32 v50, {EPS}, v{a}
            v_rsq_f32 v{a+1}, v50
            v_cvt_pk_bf16_f32 v{a}, -v{a+3}, -v{a+3}
            v_mul_f32 v{a+2}, {fh(C1)}, v{a+1}
            v_mul_f32 v{a+4}, {fh(0.044715)}, v{a+1}
            v_and_b32 v51, 0xffff0000, v{a}
            v_add_f32 v51, v51, v{a+3}
            v_mul_f32 v{a+3}, v50, v{a+1}
            v_mul_f32 v{a+1}, v{a+1}, v{a+2}
            v_and_b32 v{a+2}, 0xffffff7f, v{a+2}
            v_mul_f32 v{a+1}, v{a+1}, v{a+4}
            v_and_b32 v{a+3}, 0xffffff7f, v{a+3}
            v_and_b32 v{a+1}, 0xffffff7f, v{a+1}
            ds_write_b128 v{vadr}, {vr(a)} offset:{tab}
            v_cvt_pk_bf16_f32 v{a}, -v51, -v51
            ds_write_b128 v{vadr}, {vr(a)} offset:{tab + 512}''')
    def gelu_pk(s, acc, cs, st, n, t, out):
        P = range(0, n, 2); o = []
        if s.cfg.gsc:
            R = range(n)
            o += [f'v_fma_f32 v{acc+i}, -v{cs+i}, v{st+3}, v{acc+i}' for i in R]
            if s.cfg.gsc == 2: return o + s.gelu_pk2(acc, cs, st, n, t, out)[n//2:]
            o += [f'v_mul_f32 v{t+i}, v{acc+i}, v{acc+i}' for i in R] + [f'v_fma_f32 v{t+i}, v{t+i}, v{st+1}, v{st}' for i in R]
            o += [f'v_mul_f32 v{t+i}, v{t+i}, v{acc+i}' for i in R] + [f'v_exp_f32 v{t+i}, v{t+i}' for i in R]
            o += [f'v_fma_f32 v{t+i}, v{t+i}, v{st+2}, v{st+2}' for i in R] + [f'v_rcp_f32 v{t+i}, v{t+i}' for i in R]
            o += [f'v_mul_f32 v{t+i}, v{t+i}, v{acc+i}' for i in R] + [f'v_cvt_pk_bf16_f32 v{out+i//2}, v{t+i}, v{t+i+1}' for i in P]
            return o
        return s.gelu_pk2(acc, cs, st, n, t, out)
    def gelu_pk2(s, acc, cs, st, n, t, out):
        P = range(0, n, 2); o = []
        o += [f'v_pk_fma_f32 {vr(acc+i,2)}, {vr(st+2,2)}, {vr(cs+i,2)}, {vr(acc+i,2)} op_sel:[1,0,0] op_sel_hi:[1,1,1] neg_lo:[1,0,0] neg_hi:[1,0,0]' for i in P]
        o += [f'v_pk_mul_f32 {vr(t+i,2)}, {vr(acc+i,2)}, {vr(acc+i,2)}' for i in P]
        o += [f'v_pk_fma_f32 {vr(t+i,2)}, {vr(st,2)}, {vr(t+i,2)}, {vr(st,2)} op_sel:[1,0,0] op_sel_hi:[1,1,0]' for i in P]
        o += [f'v_pk_mul_f32 {vr(t+i,2)}, {vr(t+i,2)}, {vr(acc+i,2)}' for i in P]
        o += [f'v_exp_f32 v{t+i}, v{t+i}' for i in range(n)]
        o += [f'v_pk_fma_f32 {vr(t+i,2)}, {vr(t+i,2)}, {vr(st+2,2)}, {vr(st+2,2)} op_sel_hi:[1,0,0]' for i in P]
        o += [f'v_rcp_f32 v{t+i}, v{t+i}' for i in range(n)]
        o += [f'v_pk_mul_f32 {vr(t+i,2)}, {vr(t+i,2)}, {vr(acc+i,2)}' for i in P]
        o += [f'v_cvt_pk_bf16_f32 v{out+i//2}, v{t+i}, v{t+i+1}' for i in P]
        return o
    def gelu_sc(s, acc, cs, st, n, t, out, ex):
        steps = [lambda i: f'v_fma_f32 v{acc+i}, -v{cs+i}, v{st+3}, v{acc+i}', lambda i: f'v_mul_f32 v{t+i}, v{acc+i}, v{acc+i}',
                 lambda i: f'v_fma_f32 v{t+i}, v{t+i}, v{st+1}, v{st}', lambda i: f'v_mul_f32 v{t+i}, v{t+i}, v{acc+i}',
                 lambda i: f'v_exp_f32 v{t+i}, v{t+i}', lambda i: f'v_fma_f32 v{t+i}, v{t+i}, v{st+2}, v{st+2}',
                 lambda i: f'v_rcp_f32 v{t+i}, v{t+i}', lambda i: f'v_mul_f32 v{t+i}, v{t+i}, v{acc+i}',
                 lambda i: f'v_cvt_pk_bf16_f32 v{out+i//2}, v{t+i}, v{t+i+1}' if i % 2 == 0 else '']
        for f in steps:
            ex.pop(0)()
            for i in range(n): s(f(i))
    def gemm16(s, W, acc, vaddr, kstride, first_zero, ex, bufs=(8, 12, 16, 20)):
        seq = [(ks, t) for ks in range(14) for t in range(2)]; nb = len(bufs); after = s.cfg.gaft
        def rd(i): ks, t = seq[i]; s(f'ds_read_b128 {vr(bufs[i%nb])}, v{vaddr} offset:{ks*kstride + 256*t}')
        for i in range(nb - 1 + after): rd(i)
        for i, (ks, t) in enumerate(seq):
            if not after and i + nb - 1 < 28: rd(i + nb - 1)
            c = 0 if (first_zero and ks == 0) else vr(acc + 4*t)
            s.fair(i, s.cfg.fg)
            s(f'v_mfma_f32_16x16x32_bf16 {vr(acc+4*t)}, {vr(W+4*ks)}, {vr(bufs[i%nb])}, {c}')
            if after and i + nb < 28: rd(i + nb)
            if ex: ex.pop(0)()
        if s.cfg.fg: s('s_setprio 0')
    def gemm32(s, jobs, vaddr, extra=None, nb=4, buf=8):
        seq = [(j, i) for j, job in enumerate(jobs) for i in range(job[1])]
        ex = list(extra or [])
        def rd(n): j, i = seq[n]; s(f'ds_read_b128 {vr(buf+4*(n%nb))}, v{vaddr} offset:{jobs[j][3] + 1024*i}')
        if s.cfg.prio: s('s_setprio 1')
        for n in range(nb - 1): rd(n)
        for n, (j, i) in enumerate(seq):
            W, nk, acc, _, after = jobs[j]
            if n + nb - 1 < len(seq): rd(n + nb - 1)
            s(f'v_mfma_f32_32x32x16_bf16 {vr(acc,16)}, {vr(W+4*i)}, {vr(buf+4*(n%nb))}, {vr(acc,16) if i else 0}')
            if ex: ex.pop(0)()
            if i == nk - 1 and after: ex += [lambda: None] * 3 + after
        s('s_setprio 0')
        s.run(ex)
    def g_pre(s):
        s.comment('G wave addresses (v6 GEMM1 B, v7 residual h, v50/v51 stats, masks)')
        s(f'''s_lshl_b32 s70, s{sQ}, 2
        s_lshr_b32 s71, 0x2213, s70
        s_and_b32 s71, s71, 15
        s_lshr_b32 s72, 0x0404, s70
        s_and_b32 s72, s72, 15
        v_and_b32 v44, 15, v{vL}
        v_lshrrev_b32 v45, 4, v{vL}
        v_add_u32 v46, s71, v44
        v_add_u32 v47, s72, v44''')
        s.pos(6, 46, 48)
        s(f'v_mul_u32_u24 v48, 768, v45\nv_add_u32 v6, v6, v48\nv_add_u32 v6, {L_HI}, v6')
        s.pos(7, 47, 48)
        s(f'''v_lshrrev_b32 v48, 1, v45
        s_lshl_b32 s73, s{sCT}, 1
        v_add_u32 v48, s73, v48
        v_mul_u32_u24 v48, 768, v48
        v_and_b32 v49, 1, v45
        v_lshl_add_u32 v48, v49, 3, v48
        v_add_u32 v7, v7, v48
        v_add_u32 v7, {L_HI}, v7
        s_sub_u32 s73, s71, s72
        s_lshl_b32 s70, s{sTB}, 5
        s_add_u32 s73, s73, s70
        v_add_u32 v48, s73, v44
        v_add_u32 v49, 16, v48
        s_movk_i32 s70, 2048
        v_cmp_gt_u32 {sr(sM0,2)}, s70, v48
        v_cmp_gt_u32 {sr(sM1,2)}, s70, v49
        v_lshlrev_b32 v50, 4, v46
        v_add_u32 v50, {L_STA}, v50
        v_lshlrev_b32 v51, 3, v47
        v_add_u32 v51, {L_STB}, v51''')
        for j in range(3): s(f's_add_u32 s70, s{sQ}, {j+1}\ns_and_b32 s70, s70, 3\ns_mul_i32 s70, s70, 7\ns_add_u32 s70, s70, s{sW}\ns_lshl_b32 s{4+j}, s70, 10')
        s(f'''s_lshl_b32 s7, s{sW}, 10
        s_mul_i32 s8, s{sTB}, 28672
        s_add_u32 s8, s8, {GX}
        s_xor_b32 s9, s{sTB}, 1
        s_mul_i32 s9, s9, 28672
        s_add_u32 s9, s9, s7
        s_add_u32 s9, s9, {X1}
        s_lshl_b32 s69, s{sCT}, 10
        s_add_u32 s70, s69, s8
        s_add_u32 s71, s70, {X1 - GX}
        v_add_u32 v46, s69, v{vL16}
        v_add_u32 v47, s7, v{vL16}''')
        for i in range(4): s(f'v_mov_b32 v{28+i}, 0x3f803f80')
        for ks in range(14): s(f'v_mfma_f32_16x16x32_bf16 v[32:35], {vr(vW1+4*ks)}, v[28:31], {"v[32:35]" if ks else 0}')

    def g_wave(s, hst):
        c = s.cfg
        assert c.f_hok <= 28
        s.g_pre()
        if c.hack: s.wait(hst)
        s.hint_wait()
        s.stamp(13)
        s.h2(lambda: s.feed(c.f_hok, 63), lambda: s.feed(c.f_hld, 63))
        s.pin(c.pins[2])
        s.barrier(); s.stamp(15)
        s(f'v_mov_b32 v4, {L_FAST}\nds_read_b32 v4, v4\nv_lshlrev_b32 v5, 4, v44\nv_lshl_add_u32 v5, v45, 9, v5')
        s.gemm16(vW1, 24, 6, 3072, True, s.spread(c.f_g1, 28), (8, 12, 16, 20, 36, 40)[:c.nb1])
        s.stamp(39)
        s(f'v_readfirstlane_b32 s{sFAST}, v4')
        s(f's_mul_i32 s69, s{sM}, 7\ns_add_u32 s69, s69, s{sW}\ns_mul_i32 s69, s69, 1792\ns_add_u32 s69, s69, {CSP}\nv_lshlrev_b32 v48, 2, v{vL}')
        csl = lambda: [s(f'buffer_load_dword v{164+i}, v48, {sr(rWS)}, s69 offen offset:{256*i}') for i in range(7)]
        if c.cs_at == 0: csl()
        if c.evb2:
            spin, back = s.lab('es'), s.lab('eb')
            rdl = ['ds_read_b32 v49, v4', 'ds_read_b128 v[36:39], v50', 'ds_read_b128 v[40:43], v50 offset:256'][:1 if c.evc else 3]
            s(f'v_mov_b32 v4, {L_EV + 6*2048 + 7*260}')
            for l in rdl: s(l)
            s(f'v_cmp_eq_u32 vcc, 0, v49\ns_mov_b32 s97, 0\ns_cbranch_vccnz {spin}'); s.label(back)
            s.ool.append(f'{spin}:\n' + ''.join(f'    {l}\n' for l in rdl) + f'    s_add_u32 s97, s97, 1\n    s_cmp_gt_u32 s97, {SPIN*8}\n    s_waitcnt lgkmcnt(0)\n    s_cbranch_scc1 {back}\n'
                         f'    v_cmp_eq_u32 vcc, 0, v49\n    s_nop 1\n    s_cbranch_vccnz {spin}\n    s_branch {back}\n')
            s.stamp(16)
            if c.evc: s('ds_read_b128 v[36:39], v50\nds_read_b128 v[40:43], v50 offset:256')
        else:
            s.barrier(); s.stamp(16)
            s('ds_read_b128 v[36:39], v50\nds_read_b128 v[40:43], v50 offset:256')
        gl = zipl(s.gelu_pk(24, 32, 36, 4, 8, 20), s.gelu_pk(28, 32, 40, 4, 12, 22))
        ex = s.spread(c.f_gel, len(gl))
        for l in gl: s(l); ex.pop(0)()
        s(f"""v_cndmask_b32 v20, 0, v20, {sr(sM0,2)}
        v_cndmask_b32 v22, 0, v22, {sr(sM1,2)}
        v_cndmask_b32 v21, 0, v21, {sr(sM0,2)}
        v_cndmask_b32 v23, 0, v23, {sr(sM1,2)}
        v_permlane16_swap_b32 v20, v22
        v_permlane16_swap_b32 v21, v23
        v_or_b32 v20, 1, v20""")
        s.xstore([f'buffer_store_dwordx4 v[20:23], v{vL16}, {sr(rWS)}, s70 offen'])
        s.stamp(17)
        s(f"""ds_write_b128 v46, v[20:23] offset:{L_GI}
        ds_read_b64 v[8:9], v7
        ds_read_b64 v[10:11], v7 offset:256
        ds_read_b64 v[12:13], v51
        ds_read_b64 v[14:15], v51 offset:128""")
        for i in range(4): s(f'v_lshlrev_b32 v{vRES+2*i}, 16, v{8+i}\nv_and_b32 v{vRES+1+2*i}, 0xffff0000, v{8+i}')
        for i in range(4): s(f'v_pk_fma_f32 {vr(24+2*i,2)}, {vr(12+2*(i>>1),2)}, {vr(vRES+2*i,2)}, {vr(12+2*(i>>1),2)} op_sel:[1,0,0] op_sel_hi:[1,1,0]')
        if c.dack[0]: s.wait_vm(0)
        s.stamp(18)
        hd, td = s.fetch_issue([(4+j, L_GI, 4+j, 's8') for j in range(3)])
        if c.bar_a: s('s_barrier')
        if c.cs_at == 1: csl()
        s.feed(c.f_b3a, 63)
        s(f'v_mov_b32 v34, 0x3f803f80\nv_lshrrev_b32 v35, 1, v47\nv_add_u32 v35, {L_PS}, v35\ns_mul_i32 s70, s{sW}, 260\ns_add_u32 s70, s70, {L_EV + 7*2048}\nv_mov_b32 v45, s70')
        p1, p2 = s.fetch_check(hd, td, 47, L_GI, 4, 8)
        p1(); p2(); s.stamp(42)
        if s.stamps: s('v_writelane_b32 v3, s97, 62')
        if c.cs_at == 2: csl()
        s.feed(c.f_gok, 63)
        s(f's_add_u32 s8, s8, {X1 - GX}\nv_add_u32 v47, {L_XI}, v47')
        s.barrier(); s.stamp(19)
        s.gemm16(vW2, 24, 5, 2048, False, s.spread(c.f_g2, c.g2span), (8, 12, 16, 20, 172, 176, 180, 184)[:c.nb2])
        for i in range(4): s(f'v_cvt_pk_bf16_f32 v{20+i}, v{24+2*i}, v{25+2*i}')
        s('v_permlane16_swap_b32 v20, v22\nv_permlane16_swap_b32 v21, v23\nv_or_b32 v20, 1, v20')
        s.xstore([f'buffer_store_dwordx4 v[20:23], v{vL16}, {sr(rWS)}, s71 offen'])
        s.stamp(20)
        s(f'ds_write_b128 v46, v[20:23] offset:{L_XI + 28672}')
        s('v_dot2_f32_bf16 v32, v20, v34, 0\nv_dot2_f32_bf16 v33, v20, v20, 0')
        for i in (21, 22, 23): s(f'v_dot2_f32_bf16 v32, v{i}, v34, v32\nv_dot2_f32_bf16 v33, v{i}, v{i}, v33')
        s(f"""v_mov_b32 v49, 0
        v_mov_b32 v50, 0
        v_mov_b32 v51, 0
        v_add_u32 v6, {L_XI}, v{vL16}
        s_lshl_b32 s70, s{sW}, 11
        s_add_u32 s70, s70, {L_HID}
        v_add_u32 v7, s70, v{vL16}
        v_add_u32 v44, {L_HID}, v{vL16}
        ds_write_b64 v35, v[32:33]
        s_mov_b64 exec, 1
        ds_write_b32 v45, v45
        s_mov_b64 exec, -1""")
        for i in range(8): s(f'v_add_f32 v{vRES+i}, v{vRES+i}, v{24+i}')
        if c.dack[1]: s.wait_vm(0)
        s.stamp(21)
        hd, td = s.fetch_issue([(7, L_XI + 7168*j, 9, 7168*j) for j in range(4)])
        s(f'''v_pk_add_f32 v[164:165], v[164:165], v[166:167]
        v_add_f32 v168, v168, v170
        v_pk_add_f32 v[164:165], v[164:165], v[168:169]
        v_add_f32 v164, v164, v165
        v_mov_b32 v165, v164
        v_permlane32_swap_b32 v164, v165
        v_add_f32 v164, v164, v165
        v_cvt_pk_bf16_f32 v48, v164, v164
        v_and_b32 v165, 0xffff0000, v48
        v_sub_f32 v165, v164, v165
        v_cvt_pk_bf16_f32 v48, v164, v165''')
        p1, p2 = s.fetch_check(hd, td, 47, 0, 4, 8)
        p1(); p2(); s.stamp(43)
        if s.stamps: s('v_writelane_b32 v3, s97, 63')
        hx, tx = s.fetch_issue([(4+j, L_XI + 28672, 4+j, 's8') for j in range(3)])
        s.feed(c.f_b4a, 63)
        later = []
        for r, x in ((12, 1), (15, 0)):
            later.append(f"""s_xor_b32 s69, s{sTB}, {x}
            s_mul_i32 s70, s69, 28
            s_add_u32 s70, s70, s{sCT}
            s_lshl_b32 s71, s70, 10
            s_add_u32 s{r}, s71, {GX}
            s_add_u32 s{r+1}, s71, {X1}
            s_lshl1_add_u32 s{r+2}, s71, {PX}
            s_lshl_b32 s69, s69, 5
            s_add_u32 s69, s69, s{sCT}
            s_lshl2_add_u32 s{18+x}, s69, {F7}""")
        later.append(f"""s_xor_b32 s72, s{sTB}, 1
        s_lshl_b32 s72, s72, 5
        s_lshr_b32 s74, s{sCT}, 2
        s_add_u32 s72, s72, s74
        s_lshl2_add_u32 s72, s72, {F7}
        s_bfe_u32 s74, s{sCT}, 0x10001
        s_mul_i32 s74, s74, {F7B - F7}
        s_add_u32 s72, s72, s74""")
        later.append(f"""s_mul_i32 s74, s{sTB}, 28
        s_lshr_b32 s22, s{sCT}, 2
        s_add_u32 s74, s74, s22
        s_lshl_b32 s74, s74, 10
        s_and_b32 s22, s{sCT}, 1
        s_lshl_b32 s71, s22, 21
        s_add_u32 s71, s71, s74
        s_add_u32 s71, s71, {GX}
        s_lshl_b32 s22, s22, 10
        s_lshl1_add_u32 s74, s74, s22
        s_add_u32 s74, s74, {PX}
        s_bitcmp1_b32 s{sCT}, 1
        s_cselect_b32 s74, s71, s74
        s_cselect_b32 s22, 7, 14
        s_lshl_b32 s22, s22, 10
        s_lshl1_add_u32 s75, s22, s74
        s_sub_u32 s22, s22, 1024
        v_lshrrev_b32 v28, 5, v{vL}
        v_mad_u32_u24 v5, v28, s22, v5
        s_mul_i32 s76, s{sTB}, {32*896}
        s_lshl_b32 s77, s{sCT}, 5
        s_add_u32 s76, s76, s77
        s_mov_b32 s{rX}, s{sOUT}
        s_mov_b32 s{rX+1}, s{sOUT+1}
        s_mov_b32 s{rX+2}, {2048*896}
        s_mov_b32 s{rX+3}, 0x20000""")
        AC, ST, A4 = (180, 164), (vST3, 160), ((112, 128), (180, 144))
        seq = []
        gp, gd = c.gp, c.gd
        for t, a, b in ((0, 0, gp), (1, 0, gd), (0, gp, 28), (1, gd, 28)): seq += [(vW3 + 4*k, AC[t], k == 0, (6, 28672*t + 1024*k)) for k in range(a, b)]
        use0 = lambda k: k if k < gp else k + gd
        e0 = 27 + gd
        for t in range(2):
            for j in range(2):
                prs = [(w, ctl) for w in range(7) for ctl in range(2)]
                if j == 1: prs = [(w, ctl ^ t) for ctl in range(2) for w in range(7)]
                seq += [((vW4A + 4*(2*w + ctl), vW4B + 4*(7*ctl + w))[j], A4[t][ctl], j == 0 and w == 0, (44, 14336*t + 1024*(2*w + j))) for w, ctl in prs]
        reads = []; ridx = []
        for n, e in enumerate(seq):
            if not reads or reads[-1][0] != e[3]: reads.append((e[3], n))
            ridx.append(len(reads) - 1)
        nb = 4
        rat = {}
        for r, (key, n) in enumerate(reads):
            free = max([m for m in range(112) if ridx[m] == r - nb], default=-1)
            rat[r] = max(free, n - c.pd)
        X = {i: [] for i in range(-1, 113)}
        def place(items, a, b):
            bu = c.burst
            for k, it in enumerate(items):
                p = a + (k * (b - a + 1)) // len(items)
                X[min(b, p + (bu - 1 - (p - a) % bu))].append(it)
        I = lambda t: (lambda: s(t))
        def gelu(t, h):
            acc, st, o, G = AC[t] + 8*h, ST[t], [], c.ggrp
            for j in range(0, 8, G):
                R = range(G); T = 24 + j
                o += [f'v_mul_f32 v{T+i}, v{acc+j+i}, v{acc+j+i}' for i in R]
                o += [f'v_fma_f32 v{T+i}, v{T+i}, v{st+1}, v{st+2}' for i in R]
                o += [f'v_mul_f32 v{T+i}, v{T+i}, v{acc+j+i}' for i in R]
                for i in R: o += [f'v_exp_f32 v{T+i}, v{T+i}', '']
                o += [f'v_fma_f32 v{T+i}, v{T+i}, v{st+3}, v{st+3}' for i in R]
                for i in R: o += [f'v_rcp_f32 v{T+i}, v{T+i}', '']
                o += [f'v_mul_f32 v{T+i}, v{T+i}, v{acc+j+i}' for i in R]
                o += [f'v_cvt_pk_bf16_f32 v{32+(j+i)//2}, v{T+i}, v{T+i+1}' for i in range(0, G, 2)]
            o.append(f'ds_write_b128 v7, v[32:35] offset:{14336*t + 1024*h}\nds_write_addtid_b32 v44 offset:{L_EV - 32768 + 2048*(2*t + h)}')
            return [I(x) for x in o]
        def sync(at, k, st):
            rdl = f'ds_read_b32 v4, v46 offset:{2048*k}'
            def chk():
                spin, back = s.lab('ls'), s.lab('lb')
                s(f's_cbranch_vccnz {spin}')
                s.label(back); s.stamp(st)
                s.ool.append(f'{spin}:\n    s_mov_b32 s97, 0\n{spin}a:\n    {rdl}\n    s_add_u32 s97, s97, 1\n    s_cmp_gt_u32 s97, {SPIN*8}\n    s_waitcnt lgkmcnt(0)\n    s_cbranch_scc1 {back}\n'
                             f'    v_cmp_eq_u32 vcc, 0, v4\n    s_nop 1\n    s_cbranch_vccz {back}\n    s_sleep 1\n    s_branch {spin}a\n')
            X[at - c.sd].append(I(rdl)); X[at].insert(0, I('v_cmp_eq_u32 vcc, 0, v4')); X[at].append(chk)
        hs = {}
        def blk(base, k): return f's{base + min(k ^ 2, 2)} offen offset:{1024 * (k == 1)}'
        def fin(t, ctl, h, pk, last=False):
            acc = A4[t][ctl] + 8*h
            def f():
                if t == 1:
                    un = A4[0][ctl] + 8*h
                    if last:
                        for i in range(0, 8, 2): s(f'v_pk_add_f32 {vr(acc+i,2)}, {vr(acc+i,2)}, {vr(un+i,2)}')
                    else:
                        for i in range(8): s(f'v_add_f32 v{acc+i}, v{acc+i}, v{un+i}')
                for i in range(4): s(f'v_cvt_pk_bf16_f32 v{pk+i}, v{acc+2*i}, v{acc+2*i+1}')
                s(f'v_or_b32 v{pk}, 1, v{pk}' if t else f'v_and_b32 v{pk}, -2, v{pk}')
                s.xstore([f'buffer_store_dwordx4 {vr(pk)}, v{vL16}, {sr(rWS)}, {blk(12 + 3*t, 2*ctl + h)}'])
                hs[t, ctl] = s.vm[-1][0]
            return f
        def stage1(ctl, at):
            fo = ctl * (F7B - F7)
            def flag():
                s(f'v_mov_b32 v45, s{sTAG}\ns_add_u32 s69, s18, {fo}')
                s.wait(hs[0, ctl]); s('s_mov_b64 exec, 1')
                s.xstore([f'buffer_store_dword v45, off, {sr(rWS)}, s69'])
                s('s_mov_b64 exec, -1')
            ld = [f'buffer_load_dwordx4 {vr(164 + 8*ctl + 4*h)}, v{vL16}, {sr(rWS)}, {blk(15, 2*ctl + h)} sc1' for h in range(2)]
            def fetch():
                if ctl == 0: s.poll_check(47, None, 's70'); s.stamp(45)
                for l in ld: s(l)
            def check():
                ck = ['v_or_b32 v4, v172, v176', 'v_and_b32 v4, 1, v4', 'v_cmp_eq_u32 vcc, 1, v4']
                retry, back = s.lab('sr'), s.lab('sb')
                for l in ck: s(l)
                s(f's_mov_b32 s97, 0\ns_cbranch_vccnz {retry}'); s.label(back); s.stamp(46)
                s.ool.append(f'{retry}:\n' + ''.join(f'    {l}\n' for l in ld) + f'    s_add_u32 s97, s97, 1\n    s_cmp_gt_u32 s97, {SPIN}\n    s_waitcnt vmcnt(0)\n    s_cbranch_scc1 {back}\n'
                             + ''.join(f'    {l}\n' for l in ck) + f'    s_nop 1\n    s_cbranch_vccnz {retry}\n    s_branch {back}\n')
            X[at[0]].append(fin(0, ctl, 0, 108)); X[at[1]].append(fin(0, ctl, 1, 196))
            X[at[2]].append(flag)
            if ctl == 0: X[at[3]].append(lambda: (s(f's_add_u32 s70, s19, {fo}'), s.poll_issue(47, None, 's70')))
            X[at[4]].append(fetch)
            if ctl == 1: X[at[5]].append(check)
            un = []
            for i in range(8): un += [f'v_lshlrev_b32 v{A4[0][ctl] + 2*i}, 16, v{164 + 8*ctl + i}', f'v_and_b32 v{A4[0][ctl] + 2*i + 1}, 0xffff0000, v{164 + 8*ctl + i}']
            place([I(x) for x in un], at[5], min(at[5] + 3, 111))
        bsave, c.burst = c.burst, 1
        ch = []
        for t in later:
            cur = []
            for l in t.split('\n'):
                if len(cur) >= 5 and 'cselect' not in l: ch.append('\n'.join(cur)); cur = []
                cur.append(l)
            ch.append('\n'.join(cur))
        assert not any(x.strip().split('\n')[-1].strip().startswith(('s_cmp', 's_bitcmp')) for x in ch)
        place([I(x) for x in ch], 8, 26)
        if s.wn < 56:
            w3e = c.w3e if c.w3e is not None else max(0, s.wn - 28 - 5)
            n3 = 56 - s.wn
            assert all((k * (w3e + 1)) // n3 < use0(s.wn - 28 + k) for k in range(n3)) and w3e < c.w4a[0]
            place([s.feed1] * n3, 0, w3e)
        if s.wn < 70: place([s.feed1] * (70 - max(s.wn, 56)), c.w4a[0], c.w4a[1])
        place([s.feed1] * 14, c.w4b[0], c.w4b[1])
        c.burst = bsave
        first = lambda n: rat[ridx[n]] - 1
        x1st = first(gp if gd else 28)
        assert c.x_at + 2 <= x1st - c.sd
        sync(x1st if gd else x1st - 3, 5, 49)
        sync(e0 - 3, 4, 23)
        X[e0 - 3].append(I(f'ds_read_b128 {vr(ST[0])}, v44 offset:{L_ST3 - L_HID}'))
        X[e0].append(I(f'v_mfma_f32_32x32x16_bf16 {vr(AC[0],16)}, v[48:51], {vr(ST[0])}, {vr(AC[0],16)}'))
        assert c.q[0] > e0
        q = c.q
        for k in range(4): place(gelu(k >> 1, k & 1), q[k], q[k+1] - 1)
        X[55].append(I(f'ds_read_b128 {vr(ST[1])}, v44 offset:{L_ST3 - L_HID + 1024}'))
        X[57].append(I(f'v_mfma_f32_32x32x16_bf16 {vr(AC[1],16)}, v[48:51], {vr(ST[1])}, {vr(AC[1],16)}'))
        for k in range(4):
            assert first(56 + 14*k) - c.sd >= q[k+1] - 1, (k, first(56 + 14*k))
            sync(first(56 + 14*k), k, (25, 26, 27, 41)[k])
        assert c.st0[4] >= q[3] and c.st1[4] >= q[4] and c.st1[5] > first(98) and c.st1[5] + 3 < 107 and c.st1[2] < c.fpoll
        stage1(0, c.st0); stage1(1, c.st1)
        X[107].append(fin(1, 1, 0, 108)); X[109].append(fin(1, 1, 1, 196)); X[112] += [fin(1, 0, 0, 24, c.lastpk), fin(1, 0, 1, 28, c.lastpk)]
        X[58].append(I(f'global_load_dwordx4 v[48:51], v{vL16}, s[94:95] offset:-1024'))
        X[q[4]].append(I(f'v_lshlrev_b32 v6, 3, v{vL}\nglobal_load_dwordx2 v[6:7], v6, s[94:95] offset:-1536'))
        X[c.fpoll].append(lambda: s.poll_issue(45, 7, 's72')); X[c.fpoll + c.fpd].append(lambda: s.poll_check(45, 7, 's72'))
        def rd(r): (va, off), _ = reads[r]; s(f'ds_read_b128 {vr(8+4*(r%nb))}, v{va} offset:{off}')
        p1, p2 = s.fetch_check(hx, tx, 47, 28672, 4, 24, f's_mov_b32 m0, s21')
        X[c.x_at].insert(0, p1); X[c.x_at + 2].append(lambda: (p2(), s(f'ds_write_addtid_b32 v44 offset:{L_EV - 32768 + 2048*5}')))
        s(f'v_and_b32 v46, 7, v{vL}\nv_mul_u32_u24 v46, 260, v46\nv_add_u32 v46, {L_EV}, v46\ns_lshl_b32 s21, s{sW}, 8\ns_add_u32 s21, s21, 32768\ns_mov_b32 m0, s21')
        s.pin(c.pins[3])
        s.barrier(); s.stamp(22)
        for r in range(len(reads)):
            if rat[r] < 0: rd(r)
        LS = [10, 26, 78, 80, 40, 42, 44, 46, 62, 64, 66, 88, 90, 92, 24]
        for n, (W, acc, fst, key) in enumerate(seq):
            if c.lst and n % 8 == 0: s.raw(f'    s_mem{"real" if c.lst == 2 else ""}time s[{LS[n//8]}:{LS[n//8]+1}]')
            s.fair(n, c.fm)
            s(f'v_mfma_f32_32x32x16_bf16 {vr(acc,16)}, {vr(W)}, {vr(8+4*(ridx[n]%nb))}, {0 if fst else vr(acc,16)}')
            for r in range(len(reads)):
                if rat[r] == n: rd(r)
            s.run(X[n])
        if c.lst: s.raw(f'    s_mem{"real" if c.lst == 2 else ""}time s[24:25]')
        s.run(X[112])
        if c.lst:
            s.wait_lg(0, force=True)
            for i, r in enumerate(LS): s(f'v_writelane_b32 v3, s{r}, {1 + i}')
        s.stamp(28)
        if c.dack[2]: s.wait_vm(0)
        s.stamp(29)
        ld = [f'buffer_load_dwordx4 {vr(52+8*u+4*t)}, v5, {sr(rWS)}, s{74+u} offen offset:{256*t} sc1' for u in range(2) for t in range(2)]
        ck = ['v_and_b32 v8, v52, v56', 'v_and_b32 v9, v60, v64', 'v_and_b32 v8, 1, v8', 'v_and_b32 v8, v8, v9', 'v_cmp_eq_u32 vcc, 0, v8']
        retry, back = s.lab('er'), s.lab('eb')
        for l in ld + ck: s(l)
        s(f's_mov_b32 s97, 0\ns_cbranch_vccnz {retry}'); s.label(back)
        s.ool.append(f'{retry}:\n' + ''.join(f'    {l}\n' for l in ld) + f'    s_add_u32 s97, s97, 1\n    s_cmp_gt_u32 s97, {SPIN}\n    s_waitcnt vmcnt(0)\n    s_cbranch_scc1 {back}\n'
                     + ''.join(f'    {l}\n' for l in ck) + f'    s_nop 1\n    s_cbranch_vccnz {retry}\n    s_branch {back}\n')
        s.stamp(30)
        for u in range(2):
            for t in range(2): s(f'v_mfma_f32_16x16x32_bf16 {vr(vRES+4*t)}, v[48:51], {vr(52+8*u+4*t)}, {vr(vRES+4*t)}')
        for i in range(4): s(f'v_cvt_pk_bf16_f32 v{20+i}, v{vRES+2*i}, v{vRES+1+2*i}')
        s('v_permlane16_swap_b32 v20, v22\nv_permlane16_swap_b32 v21, v23')
        s(f'buffer_store_dwordx4 v[20:23], v6, {sr(rX)}, s76 offen')
        s.stamp(31)

    def s_mfma(s, addrs, acc, kstride, base, nk=14):
        seq = [(ks, t) for ks in range(nk) for t in range(3)]
        nb = 8
        def rd(i): ks, t = seq[i]; s(f'ds_read_b128 {vr(52+4*(i%nb))}, v{addrs+t} offset:{base + ks*kstride}')
        s('s_mov_b32 exec_lo, 0x77777777\ns_mov_b32 exec_hi, 0x77777777')
        for i in range(nb - 1): rd(i)
        for i, (ks, t) in enumerate(seq):
            if i + nb - 1 < len(seq): rd(i + nb - 1)
            s(f'v_mfma_f32_16x16x32_bf16 {vr(acc+4*t)}, {vr(52+4*(i%nb))}, {vr(52+4*(i%nb))}, {vr(acc+4*t) if ks else 0}')
    def s_wave(s, hst):
        s.comment('S wave: statistics, polling, DMA')
        s.pin(s.cfg.pins[4])
        s('s_setprio 2')
        s(f'''s_and_b32 s70, s2, 0xc7
        s_lshl_b32 s70, s70, 4
        s_mul_i32 s71, s{sXCD}, {FCP}
        s_add_u32 s70, s70, s71
        s_add_u32 s70, s70, {FA}
        v_and_b32 v44, 7, v{vL}
        v_lshlrev_b32 v44, 7, v44
        buffer_load_dword v48, v44, {sr(rWS)}, s70 offen sc1''')
        def ftouch():
            s(f'''s_lshl_b32 s72, s{sTB}, 7
            s_add_u32 s72, s72, {F5}
            s_lshl2_add_u32 s4, s{sTB}, s{sQ}
            s_lshl_b32 s4, s4, 9
            s_add_u32 s4, s4, {ST1}
            s_mov_b32 m0, {L_JUNK}
            v_min_u32 v45, 2, v{vL}
            v_lshlrev_b32 v45, 13, v45
            v_and_b32 v47, 0x180, v7
            buffer_load_dword v45, {sr(rWS)}, s72 offen sc1 lds
            buffer_load_dword v47, {sr(rWS)}, s4 offen sc1 lds''')
            if s.cfg.etouch:
                s(f's_mul_i32 s70, s{sTB}, 28\ns_add_u32 s70, s70, s{sCT}\ns_lshl_b32 s70, s70, 11\ns_add_u32 s70, s70, {PX - 7*2048}\ns_add_u32 s71, s70, 7168\ns_mov_b32 exec_hi, 0x00ffffff')
                s(f'buffer_load_dword v7, {sr(rWS)}, s70 offen sc1 lds\nbuffer_load_dword v7, {sr(rWS)}, s71 offen sc1 lds\ns_mov_b32 exec_hi, -1')
        def setup():
            for i in range(32): s(f'v_mov_b32 v{52+i}, 0x3f803f80')
            s(f'''v_and_b32 v44, 3, v{vL}
        v_bfe_u32 v45, v{vL}, 2, 2
        v_mad_u32_u24 v40, v45, 3, v44
        v_lshrrev_b32 v41, 4, v{vL}''')
            for t in range(3):
                s(f'v_add_u32 v46, {12*t}, v40')
                s.pos(84 + t, 46, 47)
                s(f'v_mul_u32_u24 v47, 768, v41\nv_add_u32 v{84+t}, v{84+t}, v47\nv_add_u32 v{84+t}, {L_HI}, v{84+t}')
            s(f'''v_sub_u32 v45, v45, v41
        v_and_b32 v45, 3, v45
        v_cmp_eq_u32 s[78:79], 1, v45
        v_cmp_eq_u32 s[80:81], 2, v45
        v_mad_u32_u24 v40, v41, 3, v44
        v_mad_u32_u24 v40, v45, 12, v40
        v_lshlrev_b32 v42, 4, v40
        v_add_u32 v42, {L_STA}, v42
        v_lshlrev_b32 v43, 3, v40
        v_add_u32 v43, {L_STB}, v43
        v_lshlrev_b32 v6, 2, v{vL}
        v_lshlrev_b32 v7, 7, v{vL}
        v_cmp_ne_u32 vcc, s{sTX}, v48
        v_mov_b32 v46, {L_FAST}
        s_cmp_eq_u64 vcc, 0
        s_cselect_b32 s{sFAST}, 1, 0
        v_mov_b32 v45, s{sFAST}
        ds_write_b32 v46, v45
        v_and_b32 v38, 7, v{vL}
        v_mul_u32_u24 v38, 260, v38
        v_add_u32 v38, {L_EV}, v38
        v_lshlrev_b32 v46, 8, v{vL}
        v_and_b32 v46, 0x3800, v46
        v_add_u32 v46, v46, v38
        s_mov_b32 vcc_lo, 0x80800080
        s_mov_b32 vcc_hi, 0x8000807f
        v_cndmask_b32 v45, 0, v38, vcc
        ds_write_b32 v46, v45''')
        if not s.cfg.searly: setup()
        s(f'''s_and_b32 s70, s{sQ}, 1
        s_mul_i32 s71, s70, 9
        s_lshl3_add_u32 s71, s{sTB}, s71
        s_sub_u32 s71, s71, 1
        s_max_i32 s71, s71, 0
        s_min_i32 s71, s71, 511
        s_lshr_b32 s88, s71, 3
        s_mul_i32 s88, s88, 28672
        s_and_b32 s71, s71, 7
        s_lshl4_add_u32 s88, s71, s88
        s_add_u32 s88, s88, {X1}
        s_mul_i32 s70, s70, 384
        s_add_u32 s70, s70, {L_HI + 128}
        v_min_u32 v5, 55, v{vL}
        v_lshlrev_b32 v4, 9, v5
        v_mul_u32_u24 v5, 768, v5
        v_add_u32 v5, s70, v5''')
        s.wait(hst); s.hint_wait()
        s.stamp(13)
        s.h2(ftouch, setup if s.cfg.searly else (lambda: None), halo=True)
        s(f'v_cmp_eq_u32 s[92:93], 1, v44\nv_cmp_eq_u32 s[94:95], 2, v44\ns_mov_b32 s96, {INVD}\nv_mov_b32 v49, {fh(1 + 1e-5)}')
        s(f'''s_lshl2_add_u32 s70, s{sTB}, s{sQ}
        s_lshl_b32 s71, s70, 4
        s_add_u32 s71, s71, {FN}
        v_and_b32 v45, 1, v{vL}
        v_lshlrev_b32 v45, 3, v45
        v_sub_u32 v45, v44, v45
        s_lshl2_add_u32 s72, s{sTB}, 4
        v_add_u32 v45, s72, v45
        v_mov_b32 v47, s70
        v_cmp_gt_u32 vcc, 0x100, v45
        v_mov_b32 v36, s{sTAG}
        s_mov_b32 s72, {FN}
        v_cndmask_b32 v45, v47, v45, vcc
        s_xor_b32 s70, s70, 4
        v_writelane_b32 v45, s70, 4
        v_lshlrev_b32 v37, 4, v45''')
        s.barrier(); s.stamp(15)
        s(f's_mov_b64 exec, 1\nbuffer_store_dword v36, off, {sr(rWS)}, s71 sc1')
        s.s_mfma(84, 24, 3072, 0)
        s.stamp(39)
        s.stats_tail(24, 43, 42, 0)
        if s.cfg.evp: s.wait_lg(0)
        if s.cfg.evb2: s(f's_mov_b64 exec, 0x80\nds_write_b32 v38, v38 offset:{6*2048}\ns_mov_b64 exec, -1')
        else: s('s_mov_b64 exec, -1'); s.barrier()
        s.stamp(16)
        s.poll(4, 37, 's72', 31, 0, sleep=4)
        def lwait(k):
            l, l2, l3 = s.lab('tw'), s.lab('tx'), s.lab('ty')
            s(f's_mov_b32 s97, 0\ns_branch {l2}'); s.label(l); s(f's_sleep 1\ns_add_u32 s97, s97, 1\ns_cmp_gt_u32 s97, {SPIN*8}\ns_cbranch_scc1 {l3}'); s.label(l2)
            s(f'ds_read_b32 v4, v38 offset:{2048*k}\nv_cmp_eq_u32 vcc, 0, v4\ns_cbranch_vccnz {l}'); s.label(l3)
        post = lambda k: s(f's_mov_b64 exec, 0x80\nds_write_b32 v38, v38 offset:{2048*k}\ns_mov_b64 exec, -1')
        def touch():
            s(f'''s_mul_i32 s70, s{sTB}, 28
            s_mul_i32 s71, s{sQ}, 7
            s_add_u32 s70, s70, s71
            s_lshl_b32 s71, s70, 10
            s_add_u32 s71, s71, {GX}
            s_add_u32 s69, s71, {X1 - GX}
            s_lshl_b32 s70, s70, 11
            s_add_u32 s70, s70, {PX}
            s_mov_b32 m0, {L_JUNK}
            s_mov_b32 exec_hi, 0x00ffffff''')
            rf = f'buffer_load_dword v7, {sr(rWS)}, s71 offen sc1 lds\nbuffer_load_dword v7, {sr(rWS)}, s69 offen sc1 lds'
            if s.cfg.refresh == 1: s(rf)
            for i in range(2):
                k = (s.cfg.touch_at, s.cfg.touch2)[i]
                if k < 4: lwait(k)
                s(f'buffer_load_dword v7, {sr(rWS)}, s70 offen sc1 lds\ns_add_u32 s70, s70, 7168')
            if s.cfg.refresh == 2: s(rf)
            s('s_mov_b32 exec_hi, -1')
        s(f"""v_lshlrev_b32 v39, 3, v{vL}
        v_add_u32 v39, {L_PS}, v39
        v_and_b32 v40, 0x1f0, v{vL16}
        v_lshrrev_b32 v41, 5, v{vL}
        v_lshl_add_u32 v42, v41, 10, v40
        v_add_u32 v42, {L_ST3}, v42
        v_xor_b32 v41, s{sTB}, v41
        v_xor_b32 v41, 1, v41
        v_lshl_add_u32 v40, v41, 11, v40
        v_mov_b32 v10, s{sTAG}
        v_mov_b32 v11, s{sTAG}
        s_mov_b32 s5, {ST1}""")
        for i in range(1 + s.cfg.bar_a): s('s_barrier')
        lwait(7)
        for i in range(7): s(f'ds_read_b64 {vr(12+2*i,2)}, v39 offset:{512*i}')
        for h in range(2): s(f'v_add_f32 v{12+h}, v{12+h}, v{14+h}\nv_add_f32 v{16+h}, v{16+h}, v{18+h}')
        for h in range(2): s(f'v_add_f32 v{20+h}, v{20+h}, v{22+h}\nv_add_f32 v{12+h}, v{12+h}, v{16+h}')
        for h in range(2): s(f'v_add_f32 v{20+h}, v{20+h}, v{24+h}')
        for h in range(2): s(f'v_add_f32 v{8+h}, v{12+h}, v{20+h}\nv_add_f32 v{12+h}, v{12+h}, v{20+h}')
        for h in range(2): s(f'v_permlane32_swap_b32 v{8+h}, v{12+h}')
        for h in range(2): s(f'v_add_f32 v{8+h}, v{8+h}, v{12+h}')
        s('s_mov_b32 exec_hi, 0')
        s.xstore([f'buffer_store_dwordx4 v[8:11], v{vL16}, {sr(rWS)}, s4 offen'])
        s('s_mov_b32 exec_hi, -1\ns_barrier')
        s.stamp(22)
        ld = [f'buffer_load_dwordx4 {vr(52+4*j)}, v40, {sr(rWS)}, s5 offen offset:{512*j} sc1' for j in range(4)]
        ck = [f'v_xor_b32 v{54+4*j}, s{sTAG}, v{54+4*j}' for j in range(4)] + ['v_or3_b32 v54, v54, v58, v62', 'v_or_b32 v54, v54, v66', 'v_cmp_ne_u32 vcc, 0, v54']
        retry, back = s.lab('xr'), s.lab('xb')
        for l in ld + ck: s(l)
        s(f's_mov_b32 s97, 0\ns_cbranch_vccnz {retry}'); s.label(back)
        s.ool.append(f'{retry}:\n' + ''.join(f'    {l}\n' for l in ld) + f'    s_add_u32 s97, s97, 1\n    s_cmp_gt_u32 s97, {SPIN}\n    s_waitcnt vmcnt(0)\n    s_cbranch_scc1 {back}\n'
                     + ''.join(f'    {l}\n' for l in ck) + f'    s_nop 1\n    s_cbranch_vccnz {retry}\n    s_branch {back}\n')
        for h in range(2): s(f'v_add_f32 v{52+h}, v{52+h}, v{56+h}\nv_add_f32 v{60+h}, v{60+h}, v{64+h}')
        s('v_add_f32 v27, v52, v60\nv_add_f32 v24, v53, v61')
        s.stats_tail(24, None, 42, 0)
        s.wait_lg(0); post(4)
        s.stamp(23)
        lwait(5)
        s(f's_lshl_b32 s72, s{sCL}, 8\ns_add_u32 s72, s72, {F5 + 28}\ns_lshl_b32 s73, s{sM}, 5\ns_add_u32 s73, s73, s72\nv_lshlrev_b32 v37, 5, v{vL}')
        s.flag(73)
        s.poll(4, 37, 's72', '0xff', 0, sleep=2)
        post(1)
        def heat(n):
            s('s_setprio 0')
            for i in range(n):
                s(f'v_mfma_f32_32x32x16_bf16 v[100:115], {vr(52+4*(i%8))}, {vr(52+4*((i+3)%8))}, {"v[100:115]" if i % 8 else 0}')
                if s.cfg.x_heat[1]: s(f's_nop {s.cfg.x_heat[1] - 1}')
        if s.cfg.x_heat: heat(s.cfg.x_heat[0])
        s.stamp(25)
        if s.cfg.touch_at != 5: touch()
        if s.cfg.x_heat: heat(s.cfg.x_heat[0])
        s.cond('s_cmp_lg_u32 s2, 0', lambda: s(f'v_mov_b32 v4, s{sTAG}\ns_mov_b32 s70, {EP}\ns_mov_b64 exec, 1\nbuffer_store_dword v4, off, {sr(rWS)}, s70 sc1\ns_mov_b64 exec, -1'))
        s.wait_vm(0); s.stamp(28)

def build(stamps=False, cfg=None):
    s = K(stamps, cfg or Cfg())
    c = s.cfg
    s.entry(); s.setup(); s(s.scalars())
    if c.ppos == 2: s.params()
    if c.dma_at == -1: s(f's_cmp_lt_u32 s43, 2\ns_cmov_b32 s{rW+2}, {448*896}'); s.pack_dma()
    if c.sb_at == 0: s.setup_b()
    s.stamp(34); s.ln()
    s(f's_cmp_ge_u32 s{sI}, 28'); s.flush_hazards(); s('s_cbranch_scc1 Lnonconv')
    st = s.state()
    if c.clr_at is None: s.clear()
    if c.sb_at == 1: s.setup_b()
    s.stamp(33)
    if c.dma_at == 0: s.pack_dma()
    if c.fa_at == -1: s.publish_a()
    s.kgen(); hst = s.conv()
    s.label('Ljoin')
    s(f'v_mov_b32 v4, v21\nv_mov_b32 v5, v22\ns_cmp_eq_u32 s{sW}, 7'); s.flush_hazards(); s('s_cbranch_scc1 Lsw')
    st2 = s.state()
    s.g_wave(hst); s.dump_stamps(); s('s_endpgm')
    s.label('Lsw'); s.set_state(st2)
    s.s_wave(hst); s.dump_stamps()
    s.label('Lend'); s('s_endpgm')
    s.label('Lnonconv'); s.set_state(st); s.wn = 0
    s.nc = 100; s.nonconv(); s.flush_hazards(); s('s_branch Ljoin')
    name = NAME + '_kernel'
    txt = f'''; @launch grid=(256,1,1) block=(512,1,1) lds={LDS_BYTES}
.amdgcn_target "amdgcn-amd-amdhsa--gfx950"
.text
.globl {name}
.p2align 8
.type {name},@function
{name}:
''' + s.text() + ''.join(s.ool) + tap_table(s.cfg.umap) + f'''.section .rodata,"a"
.p2align 6
.amdhsa_kernel {name}
  .amdhsa_next_free_vgpr 256
  .amdhsa_next_free_sgpr 102
  .amdhsa_accum_offset 256
  .amdhsa_group_segment_fixed_size 0
  .amdhsa_kernarg_size 120
  .amdhsa_user_sgpr_count 2
  .amdhsa_user_sgpr_kernarg_segment_ptr 1
  .amdhsa_system_sgpr_workgroup_id_x 1
.end_amdhsa_kernel
'''
    size, syms = code_info(txt.replace('@CODE_BYTES@', '1000').replace('@TAB_OFF@', '1000'))
    return txt.replace('@CODE_BYTES@', str(syms['tap_table'] + 2048 + 4224 - syms['Lpc'] - 4)).replace('@TAB_OFF@', str(syms['tap_table'] - syms['Lpc']))
def tap_table(umap):
    RB = {8: 0, 4: 16, 2: 24, 6: 28, 1: 32, 3: 34, 5: 36, 7: 38}
    def rnd(l):
        sh = max(0, l.bit_length() - 8)
        if not sh: return l
        q, r = l >> sh, l & ((1 << sh) - 1); half = 1 << (sh - 1)
        return (q + (r > half or (r == half and q & 1))) << sh
    v = []
    for i in range(2056):
        l = 2047 - i
        if l < 0: e = 768
        elif l == 0: e = 640
        else: p = rnd(l); e = RB[((p - 1) & 7) + 1] * 16 + ((p - 1) >> 3)
        v.append(e * 16)
    v += [0] * 56
    lane = []
    for l in range(64):
        n, g = l & 15, l >> 4; tb = 2*n + (g >> 1); rr, cc = (l >> 2) & 3, l & 3
        bb = lambda c_: 32*c_ + 16*((c_ >> 3) & 1)
        lane.append([4*(4*g - (n >> 1)) + 28 + KEO*(1 - (n & 1)), bb(30 + 2*n + g), bb(26 + 2*n + g), (l >> 1)*896 + 16*((l ^ g) & 1),
                     tb*64 + (g & 1)*32, (n >> 1)*1792 + 4*(n & 1) + g, bb(tb) + 8*(g & 1), (g*64 + n)*16 + 4*((l >> 3) & 3),
                     n*KGP + 16*g, (8*g + rr)*64 + cc*8, (8*(g >> 1) + rr)*64 + (g & 1)*32 + (cc & 1)*16 + (cc >> 1)*8,
                     (l >> 2)*896 + cc*16, (l >> 2)*3584 + cc*16, rr*LNP + 32*g + 8*cc, rr*KEO + 16*(l & 1), 14*min(l & 31, 27)])
    pk = []
    for b in range(256):
        for w in range(8):
            U = 256*w + 32*(b & 7) + (b >> 3)
            if umap:
                bb = 32*(b & 7) + (b >> 3)
                if w >= 2: U = 392 + 6*bb + w - 2
                elif umap == 1: U = U if U < 392 else 1928 + U - 392
                else: U = 2*bb + w if bb < 196 else 1928 + 2*(bb - 196) + w
            if U < 392: m, V = divmod(U, 196); kb, cb = divmod(V, 14); src = kb*32*896; d0 = 392*m + 28*cb + kb; d1 = d0 + 14
            elif U < 1176: m = 2; kb, cb = divmod(U - 392, 56); src = kb*32*3584; d0 = 784 + 28*cb + 2*kb; d1 = d0 + 1
            elif U < 1960: m = 3; kb, cb = divmod(U - 1176, 14); src = kb*32*896; d1 = 2352 + ((kb//7)*7 + (cb >> 1))*28; d0 = d1 + 2*(kb % 7) + (cb & 1); d1 += 14 + 7*(cb & 1) + kb % 7
            else: m, cb, src, d0, d1 = 4, 0, 0, 0, 0
            pk += [(m << 24) | (src + 64*cb), d0 | (d1 << 16)]
    t = '.p2align 7\n.type tail_table,@object\ntail_table:\n'
    for l in range(64): t += f'.long {(l & 31)*896 + (l >> 5)*16}, {(l & 3)*28}\n'
    for l in range(64): t += '.short ' + ', '.join('0x3f80' if (l & 15) == 8*((l >> 4) & 1) + j else '0' for j in range(8)) + '\n'
    t += '.size tail_table, 1536\n.type tap_table,@object\ntap_table:\n'
    for h in range(2):
        for l in range(64): t += '.short ' + ', '.join(map(str, lane[l][8*h:8*h+8])) + '\n'
    for i in range(0, 2112, 8): t += '.short ' + ', '.join(map(str, v[i:i+8])) + '\n'
    for i in range(0, 4096, 8): t += '.long ' + ', '.join(map(str, pk[i:i+8])) + '\n'
    return t + f'.size tap_table, {2048 + 4224 + 16384}\n'
def code_info(txt):
    import subprocess, tempfile, re
    with tempfile.TemporaryDirectory() as d:
        open(d + '/a.s', 'w').write(txt)
        subprocess.run(['clang', '-x', 'assembler', '-target', 'amdgcn-amd-amdhsa', '-mcpu=gfx950', '-c', d + '/a.s', '-o', d + '/a.o'], check=True)
        o = subprocess.run(['llvm-readelf', '-S', '-s', d + '/a.o'], capture_output=True, text=True).stdout
        size = int(re.search(r'\.text\s+PROGBITS\s+\S+\s+\S+\s+(\S+)', o).group(1), 16)
        return size, {m.group(2): int(m.group(1), 16) for m in re.finditer(r'\d+: ([0-9a-f]{16}) .* (\S+)\n', o)}
if __name__ == '__main__':
    sys.stdout.write(build(stamps=len(sys.argv) > 1))
```
